```python
import torch

def _softmax(x, axis=-1):
    return torch.softmax(x, dim=axis)
def _gelu(x):
    return torch.nn.functional.gelu(x, approximate="tanh")
def _silu(x):
    return torch.nn.functional.silu(x)
def _sigmoid(x):
    return torch.sigmoid(x)
def _layernorm(x, axis=-1, eps=1e-5):
    m = x.mean(dim=axis, keepdim=True)
    v = x.var(dim=axis, keepdim=True, unbiased=False)
    return (x - m) / torch.sqrt(v + eps)
def _scatter_add(tgt, idx, src, axis=0):
    return tgt.clone().index_add_(axis, idx, src)
def _segment_sum(src, seg, n):
    out = torch.zeros((n,) + src.shape[1:], dtype=src.dtype)
    return out.index_add_(0, seg, src)
def _pad(x, pw):
    flat = tuple(v for pair in reversed(pw) for v in pair)
    return torch.nn.functional.pad(x, flat)

kernel_name = 'recurrent_scan__compressed_kv_cla__glu_gated_geglu__prompt'

def setup_inputs():

    _w = (lambda a: (lambda t: t.to(torch.bfloat16) if t.is_floating_point() else t)(torch.as_tensor(a)))
    def _A_setup():
        B, H, Sq, Sk, D, M = 1, 32, 2048, 2048, 128, 512
        Dc = 4 * D
        return {
            "x": _w((lambda *s: torch.randn(*s, dtype=torch.bfloat16) * 0.05)(B, Sq, M)),
            "c_kv": _w((lambda *s: torch.randn(*s, dtype=torch.bfloat16) * 1.6)(B, Sk, Dc)),
            "w_q": _w((lambda *s: torch.randn(*s, dtype=torch.bfloat16) * 1.6)(M, H, D) * (M ** -0.5)),
            "w_uk": _w((lambda *s: torch.randn(*s, dtype=torch.bfloat16) * 1.6)(Dc, H, D) * (Dc ** -0.5)),
            "w_uv": _w((lambda *s: torch.randn(*s, dtype=torch.bfloat16) * 1.6)(Dc, H, D) * (Dc ** -0.5)),
            "w_o": _w((lambda *s: torch.randn(*s, dtype=torch.bfloat16) * 1.6)(H, D, M) * ((H * D) ** -0.5)),
        }
    _A_in = _A_setup()

    def _B_setup():
        B, S, Dm, Df = 1, 2048, 512, 1792
        return {
            "x": _w((lambda *s: torch.randn(*s, dtype=torch.bfloat16) * 0.05)(B, S, Dm)),
            "w_gate": _w((lambda *s: torch.randn(*s, dtype=torch.bfloat16) * 0.2)(Dm, Df) * (Dm ** -0.5)),
            "w_up": _w((lambda *s: torch.randn(*s, dtype=torch.bfloat16) * 0.2)(Dm, Df) * (Dm ** -0.5)),
            "w_down": _w((lambda *s: torch.randn(*s, dtype=torch.bfloat16) * 0.2)(Df, Dm) * (Df ** -0.5)),
        }
    _B_in = _B_setup()

    return {
        "A_x": _A_in["x"],
        "A_c_kv": _A_in["c_kv"],
        "A_w_q": _A_in["w_q"],
        "A_w_uk": _A_in["w_uk"],
        "A_w_uv": _A_in["w_uv"],
        "A_w_o": _A_in["w_o"],
        "B_x": _B_in["x"],
        "B_w_gate": _B_in["w_gate"],
        "B_w_up": _B_in["w_up"],
        "B_w_down": _B_in["w_down"],
    }

def reference(A_x, A_c_kv, A_w_q, A_w_uk, A_w_uv, A_w_o, B_x, B_w_gate, B_w_up, B_w_down):
    def _A_ref(x, c_kv, w_q, w_uk, w_uv, w_o):
        B, Sq, M = x.shape[0], x.shape[1], x.shape[2]
        Sk = c_kv.shape[1]
        H, D = w_q.shape[1], w_q.shape[2]
        q = torch.einsum("bqm,mhd->bhqd", x, w_q)
        k = torch.einsum("bkc,chd->bhkd", c_kv, w_uk)
        v = torch.einsum("bkc,chd->bhkd", c_kv, w_uv)
        scores = torch.einsum("bhqd,bhkd->bhqk", q, k) * (D ** -0.5)
        off = Sk - Sq
        qi = torch.arange(Sq)[:, None]
        kj = torch.arange(Sk)[None, :]
        cmask = kj <= (qi + off)
        scores = torch.where(cmask[None, None], scores, -1e9)
        p = _softmax(scores, axis=-1)
        ctx = torch.einsum("bhqk,bhkd->bhqd", p, v)
        return torch.einsum("bhqd,hdm->bqm", ctx, w_o)

    def _B_ref(x, w_gate, w_up, w_down):
        g = torch.einsum("bsd,df->bsf", x, w_gate)
        u = torch.einsum("bsd,df->bsf", x, w_up)
        h = _gelu(g) * u
        return torch.einsum("bsf,fd->bsd", h, w_down)

    x = A_x
    xn = _layernorm(x, axis=-1)
    s = _A_ref(xn, A_c_kv, A_w_q, A_w_uk, A_w_uv, A_w_o)
    g = _silu(_B_ref(xn, B_w_gate, B_w_up, B_w_down))
    return x + s * g
```

```python
import re, struct

def f2u(x):
    return struct.unpack("<I", struct.pack("<f", x))[0]

class Ins:
    __slots__ = ("t", "tag")
    def __init__(self, t, tag=None):
        self.t = t; self.tag = tag

class Wait:
    __slots__ = ("kind", "tag", "extra")
    def __init__(self, kind, tag, extra=0):
        self.kind = kind; self.tag = tag; self.extra = extra

def is_vm(t):
    return t.startswith("buffer_") or t.startswith("global_")
def is_ds(t):
    return t.startswith("ds_")

class Prog:
    def __init__(self):
        self.items = []
    def __call__(self, t, tag=None):
        for line in t.split("\n"):
            line = line.strip()
            if line:
                self.items.append(Ins(line, tag))
    def label(self, l):
        self.items.append(Ins(l + ":"))
    def wait_vm(self, tag): self.items.append(Wait("vm", tag))
    def wait_lgkm(self, tag): self.items.append(Wait("lgkm", tag))
    def extend(self, items): self.items.extend(items)

def resolve(items, pre=()):
    allit = list(pre) + list(items)
    n0 = len(pre)
    out = []
    vm_ops = []
    ds_ops = []
    vm_done = 0
    ds_done = 0
    for idx, it in enumerate(allit):
        if isinstance(it, Wait):
            ops = vm_ops if it.kind == "vm" else ds_ops
            tags = it.tag if isinstance(it.tag, (list, set, frozenset)) else [it.tag]
            pos = -1
            for tg in tags:
                p = max((i for i, x in enumerate(ops) if x == tg), default=None)
                if p is None:
                    raise RuntimeError(f"wait for tag {tg} never issued")
                pos = max(pos, p)
            done = vm_done if it.kind == "vm" else ds_done
            if pos < done:
                continue
            cnt = len(ops) - 1 - pos
            mx = 63 if it.kind == "vm" else 15
            cnt = min(cnt, mx)
            nd = len(ops) - cnt
            if it.kind == "vm": vm_done = max(vm_done, nd)
            else: ds_done = max(ds_done, nd)
            if idx >= n0:
                out.append(Ins(f"s_waitcnt {'vmcnt' if it.kind == 'vm' else 'lgkmcnt'}({cnt})"))
            continue
        t = it.t
        if is_vm(t): vm_ops.append(it.tag)
        elif is_ds(t): ds_ops.append(it.tag)
        elif t.startswith("s_waitcnt"):
            m = re.search(r"vmcnt\((\d+)\)", t)
            if m: vm_done = max(vm_done, len(vm_ops) - int(m.group(1)))
            m = re.search(r"lgkmcnt\((\d+)\)", t)
            if m: ds_done = max(ds_done, len(ds_ops) - int(m.group(1)))
        if idx >= n0:
            out.append(it)
    return out

TRANS = ("v_exp_f32", "v_rcp_f32", "v_rsq_f32", "v_sqrt_f32", "v_log_f32")
def cost(t):
    if t.startswith(TRANS): return 2
    if is_vm(t): return 2
    return 1

class Sched:
    CAP = 6
    def __init__(self, mfmas):
        self.m = list(mfmas)
        n = len(self.m)
        self.first = [[] for _ in range(n)]
        self.mem = [[] for _ in range(n)]
        self.valu = [[] for _ in range(n)]
        self.last = [[] for _ in range(n)]
    def load(self, g):
        u = max(0, len(self.first[g]) - 1)
        for x in self.mem[g] + self.valu[g] + self.last[g]:
            u += cost(x.t) if isinstance(x, Ins) else 1
        return u
    def add_first(self, g, x): self.first[g].append(x if not isinstance(x, str) else Ins(x))
    def add_mem(self, g, x, tag=None): self.mem[g].append(Ins(x, tag) if isinstance(x, str) else x)
    def add_valu(self, g, x): self.valu[g].append(Ins(x) if isinstance(x, str) else x)
    def add_last(self, g, x): self.last[g].append(Ins(x) if isinstance(x, str) else x)
    def place_valu_seq(self, ops, g0, g1, cap=None):
        cap = cap or self.CAP
        g = g0
        for op in ops:
            c = cost(op)
            while g <= g1 and self.load(g) + c > cap:
                g += 1
            if g > g1:
                g = g1
            self.add_valu(g, op)
        return g
    def items(self):
        out = []
        for g, m in enumerate(self.m):
            out.append(Ins(m) if isinstance(m, str) else m)
            out += self.first[g] + self.mem[g] + self.valu[g] + self.last[g]
        return out
    def report(self, name=""):
        loads = [self.load(g) for g in range(len(self.m))]
        over = sum(max(0, l - self.CAP) for l in loads)
        return f"{name}: gaps {len(loads)} total {sum(loads)} max {max(loads)} overflow {over} :: " + "".join(str(min(l, 9)) for l in loads)

_reg = re.compile(r"\b([vas])(?:(\d+)|\[(\d+):(\d+)\])")
def regs(tok):
    out = set()
    for m in _reg.finditer(tok):
        f = m.group(1)
        if m.group(2) is not None: out.add((f, int(m.group(2))))
        else:
            for i in range(int(m.group(3)), int(m.group(4)) + 1): out.add((f, i))
    if re.search(r"\bvcc\b", tok): out |= {("s", 106), ("s", 107)}
    if re.search(r"\bm0\b", tok): out.add(("s", 124))
    return out

def split_ops(t):
    t = t.split(";")[0].strip()
    parts = t.split(None, 1)
    op = parts[0]
    args = []
    if len(parts) > 1:
        depth = 0; cur = ""
        for ch in parts[1]:
            if ch == "[": depth += 1
            if ch == "]": depth -= 1
            if ch == "," and depth == 0:
                args.append(cur.strip()); cur = ""
            else: cur += ch
        args.append(cur.strip())
    return op, args

def analyze(t):
    op, a = split_ops(t)
    d = dict(op=op, cls="other", w=set(), r=set())
    if op.endswith(":") or op.startswith("."):
        d["cls"] = "label"; return d
    if op.startswith("v_mfma"):
        d["cls"] = "mfma"; d["w"] = regs(a[0]); d["ab"] = regs(a[1]) | regs(a[2]); d["c"] = regs(a[3])
        d["r"] = d["ab"] | d["c"]; d["passes"] = 8 if "32x32" in op else 4
        d["dtok"] = a[0]; d["ctok"] = a[3].split()[0]
    elif op.startswith("v_"):
        d["cls"] = "valu"
        d["trans"] = op.startswith(TRANS)
        if op == "v_nop": pass
        elif op.startswith("v_cmp"):
            d["w"] = regs(a[0]); d["r"] = set().union(*[regs(x) for x in a[1:]])
        elif op.startswith("v_permlane32_swap") or op.startswith("v_permlane16_swap"):
            d["w"] = regs(a[0]) | regs(a[1]); d["r"] = set(d["w"]); d["perm"] = True
        elif op.startswith(("v_readlane", "v_readfirstlane")):
            d["w"] = regs(a[0]); d["r"] = set().union(*[regs(x) for x in a[1:]]); d["rl"] = True
        elif op.startswith(("v_add_co", "v_addc_co", "v_sub_co")):
            d["w"] = regs(a[0]) | regs(a[1]); d["r"] = set().union(*[regs(x) for x in a[2:]])
        else:
            d["w"] = regs(a[0]); d["r"] = set().union(*[regs(x) for x in a[1:]]) if len(a) > 1 else set()
            if op.startswith(("v_fmac", "v_dot2c")): d["r"] |= d["w"]
            if op.startswith("v_cndmask") and len(a) == 3: d["r"] |= {("s", 106), ("s", 107)}
        if "dpp" in op or "row_" in t or "quad_perm" in t:
            d["dpp"] = True
            d["r"] |= d["w"]
    elif op.startswith("buffer_load") or op.startswith("global_load"):
        d["cls"] = "vmem"
        if " lds" in t:
            d["r"] = set().union(*[regs(x) for x in a]) | {("s", 124)}; d["dma"] = True
        else:
            d["w"] = regs(a[0]); d["r"] = set().union(*[regs(x) for x in a[1:]])
    elif op.startswith("buffer_store") or op.startswith("buffer_atomic"):
        d["cls"] = "vmem"; d["r"] = set().union(*[regs(x) for x in a]); d["sdata"] = regs(a[0])
        d["wide"] = op.endswith("x4") or op.endswith("x3")
    elif op.startswith("global_store") or op.startswith("global_atomic"):
        d["cls"] = "vmem"; d["r"] = set().union(*[regs(x) for x in a]); d["sdata"] = regs(a[1])
        d["wide"] = op.endswith("x4") or op.endswith("x3")
    elif op.startswith("ds_read") or op.startswith("ds_bpermute") or op.startswith("ds_swizzle"):
        d["cls"] = "ds"; d["w"] = regs(a[0]); d["r"] = set().union(*[regs(x) for x in a[1:]])
    elif op.startswith("ds_"):
        d["cls"] = "ds"; d["r"] = set().union(*[regs(x) for x in a])
    elif op.startswith("s_"):
        d["cls"] = "salu"
        if op in ("s_nop",): d["nop"] = int(a[0], 0) + 1
        elif op.startswith(("s_cmp", "s_cbranch", "s_branch", "s_waitcnt", "s_barrier", "s_endpgm", "s_setprio", "s_bitcmp", "s_sleep")):
            d["r"] = set().union(*[regs(x) for x in a]) if a else set()
            if op.startswith("s_waitcnt"): d["r"] = set()
        else:
            d["w"] = regs(a[0]); d["r"] = set().union(*[regs(x) for x in a[1:]]) if len(a) > 1 else set()
    return d

def lint(texts, name=""):
    an = [analyze(t) for t in texts]
    errs = []
    pos = []; p = 0
    for d in an:
        pos.append(p)
        if d["cls"] == "label": continue
        p += d.get("nop", 1)
    W = 24
    for j, c in enumerate(an):
        if c["cls"] == "label": continue
        i = j - 1
        while i >= 0:
            pr = an[i]
            if pr["cls"] == "label": i -= 1; continue
            dist = pos[j] - pos[i] - pr.get("nop", 1)
            if dist >= W: break
            need = 0; why = ""
            vw = {r for r in pr["w"] if r[0] in "va"}
            sw = {r for r in pr["w"] if r[0] == "s"}
            if pr["cls"] == "valu":
                if c["cls"] == "mfma" and vw & c["r"]: need, why = 2, "valu->mfma"
                if c["cls"] == "valu" and pr.get("trans") and not c.get("trans") and vw & c["r"]: need, why = max(need, 1), "trans->valu"
                if c["cls"] == "valu" and c.get("perm") and vw & c["r"]: need, why = max(need, 2), "valu->perm"
                if c["cls"] == "valu" and c.get("dpp") and vw & c["r"]: need, why = max(need, 2), "valu->dpp"
                if c["cls"] == "valu" and c.get("rl") and vw & c["r"]: need, why = max(need, 1), "valu->readlane"
                if c["cls"] == "valu" and sw & c["r"]: need, why = max(need, 4 if c.get("rl") else 2), "valu sgpr->valu"
                if c["cls"] == "vmem" and sw & c["r"]: need, why = max(need, 5), "valu sgpr->vmem"
            if pr["cls"] == "mfma":
                ps = pr["passes"]
                big = {8: 12, 4: 8}[ps]
                if c["cls"] == "mfma":
                    if pr["w"] & c["ab"]: need, why = big, "mfma->mfma ab"
                    elif pr["w"] & c["c"] and not (pr["dtok"] == c["ctok"] and ps == c["passes"]): need, why = big - 2, "mfma->mfma c overlap"
                elif c["cls"] in ("valu", "vmem", "ds"):
                    if pr["w"] & (c["r"] | c["w"]): need, why = big, "mfma D->read/write"
                    if c["cls"] == "valu" and pr["c"] & c["w"]: need, why = max(need, {8: 7, 4: 3}[ps]), "mfma C WAR"
            if pr["cls"] == "salu" and ("s", 124) in pr["w"] and c.get("dma"): need, why = max(need, 1), "m0->dma"
            if pr["cls"] == "vmem" and pr.get("wide") and pr["sdata"] & c["w"]: need, why = max(need, 2), "store data WAR"
            if need > dist:
                errs.append(f"{name} hazard {why}: need {need} have {dist}: [{i}] {texts[i]}  ->  [{j}] {texts[j]}")
            i -= 1
    vmq = []; dsq = []
    for j, c in enumerate(an):
        t = texts[j]
        if c["cls"] == "label": continue
        if t.startswith("s_waitcnt"):
            m = re.search(r"vmcnt\((\d+)\)", t)
            if m:
                n = int(m.group(1)); vmq = vmq[max(0, len(vmq) - n):] if n else []
            m = re.search(r"lgkmcnt\((\d+)\)", t)
            if m:
                n = int(m.group(1)); dsq = dsq[max(0, len(dsq) - n):] if n else []
            continue
        touched = c["r"] | c["w"]
        for q, nm in ((vmq, "vm"), (dsq, "ds")):
            for (k, w) in q:
                if w & touched and not (c["cls"] == ("vmem" if nm == "vm" else "ds") and not (w & c["r"])):
                    errs.append(f"{name} pending {nm} load [{k}] {texts[k]} touched by [{j}] {t}")
        if c["cls"] == "vmem": vmq.append((j, set(c["w"])))
        if c["cls"] == "ds" or t.startswith("s_load"): dsq.append((j, set(c["w"])))
    return errs

def kd(name, vgpr=512, acc=256, sgpr=102):
    return f""".p2align 6
.amdhsa_kernel {name}
  .amdhsa_next_free_vgpr {vgpr}
  .amdhsa_next_free_sgpr {sgpr}
  .amdhsa_accum_offset {acc}
  .amdhsa_group_segment_fixed_size 0
  .amdhsa_kernarg_size 104
  .amdhsa_user_sgpr_count 2
  .amdhsa_user_sgpr_kernarg_segment_ptr 1
  .amdhsa_system_sgpr_workgroup_id_x 1
  .amdhsa_float_denorm_mode_32 3
.end_amdhsa_kernel
"""

import os
DIAG = bool(os.environ.get("DIAG"))
WS_DIAG = 0x8000000
def stamp(k, real=False):
    if os.environ.get('REAL'): real = True
    return Ins(f"{'s_memrealtime' if real else 's_memtime'} s[{66 + 2 * k}:{67 + 2 * k}]")
def dump_stamps(p, kidx, wave_sgpr, ws_srd):
    p("s_waitcnt lgkmcnt(0)")
    for k in range(14): p(f"v_mov_b32 v{k}, s{66 + 2 * k}")
    p("s_getreg_b32 s64, hwreg(HW_REG_XCC_ID)")
    p("v_mov_b32 v14, s64")
    p("v_mov_b32 v15, 0")
    p("s_lshl_b32 s64, s2, 2")
    p(f"s_add_u32 s64, s64, s{wave_sgpr}")
    p("s_lshl_b32 s64, s64, 6")
    p(f"s_add_u32 s64, s64, {WS_DIAG + kidx * 0x10000:#x}")
    p("v_mov_b32 v16, 0")
    for q in range(4):
        p(f"buffer_store_dwordx4 v[{4 * q}:{4 * q + 3}], v16, s[{ws_srd}:{ws_srd + 3}], s64 offen offset:{16 * q}")
```

```python
from asmlib import *

WS_XN = 0x0
WS_KV = 0x200000
WS_ACT = 0x2200000
MF = "v_mfma_f32_32x32x16_bf16"

def vr(b, n=4): return f"v[{b}:{b + n - 1}]"
def ar(b, n=4): return f"a[{b}:{b + n - 1}]"

def srd(p, d, lo, size):
    p(f"s_mov_b32 s{d}, s{lo}")
    p(f"s_mov_b32 s{d + 1}, s{lo + 1}")
    p(f"s_mov_b32 s{d + 2}, {size:#x}")
    p(f"s_mov_b32 s{d + 3}, 0x20000")

def wave_reduce(p, regs_):
    steps = ["quad_perm:[1,0,3,2] row_mask:0xf bank_mask:0xf", "quad_perm:[2,3,0,1] row_mask:0xf bank_mask:0xf",
             "row_half_mirror row_mask:0xf bank_mask:0xf", "row_mirror row_mask:0xf bank_mask:0xf",
             "row_bcast:15 row_mask:0xa bank_mask:0xf", "row_bcast:31 row_mask:0xc bank_mask:0xf"]
    for st in steps:
        p("s_nop 1")
        for r in regs_:
            p(f"v_add_f32_dpp v{r}, v{r}, v{r} {st}")
    p("s_nop 1")

def round_bf16(p, dst, src):
    p(f"v_cvt_pk_bf16_f32 v{dst}, v{src}, v{src}")
    p(f"v_and_b32 v{dst}, 0xffff0000, v{dst}")

def store_opts():
    return STORE_FLAGS

STORE_FLAGS = ""

def gen_kv_kernel():
    p = Prog()
    p("s_cmp_ge_u32 s2, 256")
    p("s_cbranch_scc1 L_kv_end")
    if DIAG:
        for k in range(14): p(f"s_mov_b32 s{66 + 2 * k}, 0")
        p.items.append(stamp(0, True)); p.items.append(stamp(1))
    p("s_load_dwordx4 s[36:39], s[0:1], 0")
    p("s_load_dwordx4 s[40:43], s[0:1], 24")
    p("s_load_dwordx2 s[44:45], s[0:1], 96")
    p("v_and_b32 v254, 63, v0")
    p("v_lshrrev_b32 v255, 6, v0")
    p("v_lshlrev_b32 v240, 4, v254")
    p("v_readfirstlane_b32 s28, v255")
    p("s_and_b32 s34, s2, 7")
    p("s_lshr_b32 s35, s2, 3")
    p("s_and_b32 s30, s34, 1")
    p("s_lshl_b32 s30, s30, 2")
    p("s_and_b32 s46, s35, 3")
    p("s_add_u32 s30, s30, s46")
    p("s_lshr_b32 s29, s34, 1")
    p("s_lshl_b32 s29, s29, 3")
    p("s_lshr_b32 s46, s35, 2")
    p("s_add_u32 s29, s29, s46")
    p("s_lshl_b32 s46, s30, 2")
    p("s_add_u32 s46, s46, s28")
    p("s_lshl_b32 s31, s46, 16")
    p("s_lshl_b32 s33, s46, 15")
    p("s_lshl_b32 s47, s29, 20")
    p("s_add_u32 s33, s33, s47")
    p(f"s_add_u32 s33, s33, {WS_KV:#x}")
    p("s_lshl_b32 s32, s29, 8")
    p("v_lshrrev_b32 v241, 3, v254")
    p("v_lshlrev_b32 v241, 13, v241")
    p("v_and_b32 v242, 7, v254")
    for n in range(8):
        p(f"v_xor_b32 v243, {n}, v242")
        p(f"v_lshl_add_u32 v{224 + n}, v243, 4, v241")
    p("v_lshrrev_b32 v241, 2, v254")
    p("v_lshlrev_b32 v241, 13, v241")
    p("v_and_b32 v242, 3, v254")
    p("v_lshl_add_u32 v239, v242, 4, v241")
    p("v_and_b32 v241, 7, v254")
    p("v_bfe_u32 v242, v254, 3, 2")
    p("v_lshlrev_b32 v242, 7, v242")
    p("v_lshl_add_u32 v242, v241, 10, v242")
    p("v_lshl_add_u32 v242, v255, 13, v242")
    p("v_lshrrev_b32 v243, 5, v254")
    for tt in range(4):
        p(f"v_add_u32 v244, {2 * tt}, v243")
        p("v_xor_b32 v244, v244, v241")
        p(f"v_lshl_add_u32 v{232 + tt}, v244, 4, v242")
    p("v_lshlrev_b32 v241, 9, v243")
    p("v_bfe_u32 v242, v254, 2, 2")
    p("v_lshl_add_u32 v241, v242, 6, v241")
    p("v_bfe_u32 v242, v254, 4, 1")
    p("v_lshl_add_u32 v241, v242, 5, v241")
    p("v_and_b32 v242, 3, v254")
    p("v_lshl_add_u32 v236, v242, 3, v241")
    p("v_add_u32 v237, 0x10000, v236")
    p("v_add_u32 v238, 0x20000, v236")
    p("s_waitcnt lgkmcnt(0)")
    if DIAG: p.items.append(stamp(2))
    srd(p, 24, 36, 0x200000)
    srd(p, 8, 38, 0x200000)
    srd(p, 12, 40, 0x400000)
    srd(p, 16, 42, 0x400000)
    srd(p, 20, 44, 0x10000000)
    p("s_lshl_b32 s46, s2, 3")
    p("s_lshl_b32 s47, s28, 1")
    p("s_add_u32 s46, s46, s47")
    p("s_lshl_b32 s47, s46, 10")
    p("buffer_load_dwordx4 v[0:3], v240, s[24:27], s47 offen", "ln")
    p("buffer_load_dwordx4 v[4:7], v240, s[24:27], s47 offen offset:1024", "ln")
    p("s_lshl_b32 s48, s28, 13")
    p("s_lshl_b32 s49, s28, 12")
    p("s_lshl_b32 s50, s28, 6")
    p("s_add_u32 s50, s50, s32")
    p("s_and_b32 s51, s28, 1")
    p("s_lshr_b32 s52, s28, 1")
    p("s_lshl_b32 s53, s51, 13")
    p("s_lshl_b32 s54, s52, 12")
    p("s_add_u32 s53, s53, s54")
    p("s_lshl_b32 s54, s51, 6")
    p("s_lshl_b32 s55, s52, 19")
    p("s_add_u32 s54, s54, s55")
    p("s_add_u32 s54, s54, s32")

    def dma_step(s):
        ops = []
        base = (s % 3) * 49152
        for n in range(8):
            pre = []
            if n % 4 == 0:
                pre.append(f"s_add_u32 m0, s48, {base + (n // 4) * 4096}")
                pre.append(f"s_add_u32 s56, s31, {s * 128 + (n // 4) * 4096}")
            ops.append((pre, f"buffer_load_dwordx4 v{224 + n}, s[8:11], s56 offen offset:{(n % 4) * 1024} lds"))
        for n in range(4):
            pre = []
            if n == 0: pre.append(f"s_add_u32 m0, s49, {base + 32768}")
            pre.append(f"s_add_u32 s57, s50, {(s * 64 + n * 16) * 8192 - n * 1024}")
            ops.append((pre, f"buffer_load_dwordx4 v239, s[12:15], s57 offen offset:{n * 1024} lds"))
        return ops
    VSLOT = [147456, 98304, 114688, 131072, 0, 16384, 32768, 49152]
    def dma_vslot(k):
        ops = []
        u, q = k // 4, k % 4
        for n in range(4):
            pre = []
            if n == 0: pre.append(f"s_add_u32 m0, s53, {VSLOT[k]}")
            pre.append(f"s_add_u32 s57, s54, {(q * 128 + n * 16) * 8192 + u * 128 - n * 1024}")
            ops.append((pre, f"buffer_load_dwordx4 v239, s[16:19], s57 offen offset:{n * 1024} lds"))
        return ops
    def emit_dma_now(ops, tag):
        for pre, ins in ops:
            for x in pre: p(x)
            if len(pre) == 0 or True: pass
            p(ins, tag)
    for s in range(3):
        emit_dma_now(dma_step(s), ("st", s))

    if DIAG: p.items.append(stamp(3))
    p.wait_vm("ln")
    if DIAG: p.items.append(stamp(4))
    for r in range(2):
        for k in range(4):
            p(f"v_lshlrev_b32 v{8 + 8 * r + 2 * k}, 16, v{4 * r + k}")
            p(f"v_and_b32 v{9 + 8 * r + 2 * k}, 0xffff0000, v{4 * r + k}")
    for r in range(2):
        b = 8 + 8 * r
        p(f"v_add_f32 v{24 + r}, v{b}, v{b + 1}")
        for k in range(2, 8): p(f"v_add_f32 v{24 + r}, v{24 + r}, v{b + k}")
    wave_reduce(p, [24, 25])
    p("v_readlane_b32 s58, v24, 63")
    p("v_readlane_b32 s59, v25, 63")
    p(f"v_mov_b32 v30, {f2u(1.0 / 512):#x}")
    p("s_nop 1")
    for r in range(2):
        p(f"v_mul_f32 v{26 + r}, s{58 + r}, v30")
    for r in range(2):
        b = 8 + 8 * r
        for k in range(8):
            p(f"v_sub_f32 v{32 + k}, v{b + k}, v{26 + r}")
        p(f"v_mul_f32 v{24 + r}, v32, v32")
        for k in range(1, 8): p(f"v_fmac_f32 v{24 + r}, v{32 + k}, v{32 + k}")
    wave_reduce(p, [24, 25])
    p("v_readlane_b32 s58, v24, 63")
    p("v_readlane_b32 s59, v25, 63")
    p("s_nop 1")
    for r in range(2):
        p(f"v_mul_f32 v{28 + r}, s{58 + r}, v30")
        round_bf16(p, 28 + r, 28 + r)
        p(f"v_add_f32 v{28 + r}, {f2u(1e-5):#x}, v{28 + r}")
        round_bf16(p, 28 + r, 28 + r)
        p(f"v_sqrt_f32 v{28 + r}, v{28 + r}")
        p("s_nop 0")
        round_bf16(p, 28 + r, 28 + r)
        p(f"v_rcp_f32 v{28 + r}, v{28 + r}")
        round_bf16(p, 26 + r, 26 + r)
    for r in range(2):
        b = 8 + 8 * r
        for k in range(8):
            p(f"v_sub_f32 v{b + k}, v{b + k}, v{26 + r}")
        for k in range(4):
            p(f"v_cvt_pk_bf16_f32 v{32 + k}, v{b + 2 * k}, v{b + 2 * k + 1}")
        for k in range(4):
            p(f"v_lshlrev_b32 v{b + 2 * k}, 16, v{32 + k}")
            p(f"v_and_b32 v{b + 2 * k + 1}, 0xffff0000, v{32 + k}")
        for k in range(8):
            p(f"v_mul_f32 v{b + k}, v{b + k}, v{28 + r}")
        for k in range(4):
            p(f"v_cvt_pk_bf16_f32 v{40 + 4 * r + k}, v{b + 2 * k}, v{b + 2 * k + 1}")
    p("v_lshrrev_b32 v32, 1, v254")
    p("v_lshlrev_b32 v32, 10, v32")
    p("v_and_b32 v33, 1, v254")
    p("v_lshl_add_u32 v32, v33, 9, v32")
    p("s_lshr_b32 s58, s46, 5")
    p("s_lshl_b32 s58, s58, 15")
    p("s_and_b32 s59, s46, 31")
    p("s_lshl_b32 s59, s59, 4")
    p("s_add_u32 s58, s58, s59")
    p(f"s_add_u32 s58, s58, {WS_XN:#x}")
    p(f"buffer_store_dwordx4 v[40:43], v32, s[20:23], s58 offen{STORE_FLAGS}")
    p(f"buffer_store_dwordx4 v[44:47], v32, s[20:23], s58 offen offset:16{STORE_FLAGS}")

    def tr_addr(off):
        return f"v{236 + (off >> 16)}", off & 0xffff
    def p1_reads(t):
        s, tt = t // 4, t % 4
        base = (s % 3) * 49152
        ops = []
        for rb in range(2):
            ops.append((f"ds_read_b128 {ar((rb * 32 + t) * 4)}, v{232 + tt} offset:{rb * 512}", ("A", t)))
        for c in range(4):
            for hf in range(2):
                a, o = tr_addr(base + 32768 + c * 4096 + tt * 1024 + hf * 256)
                d = 192 + 16 * (t & 1) + 4 * c + 2 * hf
                ops.append((f"ds_read_b64_tr_b16 v[{d}:{d + 1}], {a} offset:{o}", ("W", t, c)))
        return ops
    def pv_reads(u, t):
        k = u * 4 + t // 8
        ops = []
        for c in range(2):
            for hf in range(2):
                a, o = tr_addr(VSLOT[k] + c * 8192 + (t % 8) * 1024 + hf * 256)
                d = 192 + 8 * (t & 3) + 4 * c + 2 * hf
                ops.append((f"ds_read_b64_tr_b16 v[{d}:{d + 1}], {a} offset:{o}", ("V", u, t, c)))
        return ops

    if DIAG: p.items.append(stamp(5))
    p.wait_vm(("st", 0))
    p("s_barrier")
    if DIAG: p.items.append(stamp(6))
    for ins, tag in p1_reads(0): p(ins, tag)
    p.wait_lgkm([("A", 0), ("W", 0, 0)])

    mf = []
    for t in range(32):
        for c in range(4):
            for rb in range(2):
                acc = (c >> 1) * 64 + ((c & 1) * 2 + rb) * 16
                w = 192 + 16 * (t & 1) + 4 * c
                mf.append(f"{MF} {vr(acc, 16)}, {vr(w)}, {ar((rb * 32 + t) * 4)}, {vr(acc, 16) if t else 0}")
    ACCV = [128, 0]
    for u in range(2):
        for t in range(32):
            for c in range(2):
                for rb in range(2):
                    acc = ACCV[u] + (c * 2 + rb) * 16
                    w = 192 + 8 * (t & 3) + 4 * c
                    mf.append(f"{MF} {vr(acc, 16)}, {ar((rb * 32 + t) * 4)}, {vr(w)}, {vr(acc, 16) if t else 0}")
    S = Sched(mf)
    for t in range(32):
        g0 = t * 8
        for c in range(1, 4):
            S.add_first(g0 + 2 * c - 1, Wait("lgkm", ("W", t, c)))
        if t + 1 < 32:
            ops = p1_reads(t + 1)
            for i, (ins, tag) in enumerate(ops):
                S.add_mem(g0 + i // 2, ins, tag)
            S.add_first(g0 + 7, Wait("lgkm", [("A", t + 1), ("W", t + 1, 0)]))
            if (t + 1) % 4 == 3:
                pass
        else:
            ops = pv_reads(0, 0) + pv_reads(0, 1)
            for i, (ins, tag) in enumerate(ops):
                S.add_mem(g0 + i // 2, ins, tag)
            S.add_first(g0 + 7, Wait("lgkm", ("V", 0, 0, 0)))
    for s in range(7):
        delta = 49152 if (s + 1) % 3 else -98304
        for tt in range(4):
            t = 4 * s + tt
            g = max(t - 1, 0) * 8 + 6 if t > 0 else 0
            if delta > 0: S.add_valu(g, f"v_add_u32 v{232 + tt}, {delta:#x}, v{232 + tt}")
            else: S.add_valu(g, f"v_subrev_u32 v{232 + tt}, {-delta:#x}, v{232 + tt}")
    def place_dma(ops, tag, g_start, stride):
        g = g_start
        for pre, ins in ops:
            for x in pre: S.add_first(g, x)
            S.add_mem(g, ins, tag)
            g += stride
        return g
    for s in range(8):
        gb = 32 * s + 23
        S.add_first(gb, Ins("s_waitcnt lgkmcnt(0)"))
        if s < 7: S.add_first(gb, Wait("vm", ("st", s + 1)))
        else: S.add_first(gb, Wait("vm", ("vs", 3)))
        S.add_first(gb, "s_barrier")
        if s + 3 < 8:
            g = place_dma(dma_step(s + 3), ("st", s + 3), gb + 1, 2)
        elif s == 5:
            g = gb + 1
            for k in (0, 1, 2, 3): g = place_dma(dma_vslot(k), ("vs", k), g, 2)
        elif s == 6:
            g = gb + 1
            for k in (4, 5, 6): g = place_dma(dma_vslot(k), ("vs", k), g, 2)
        elif s == 7:
            place_dma(dma_vslot(7), ("vs", 7), gb + 1, 2)
    P2 = 256
    for u in range(2):
        for t in range(32):
            g0 = P2 + u * 128 + t * 4
            S.add_first(g0 + 1, Wait("lgkm", ("V", u, t, 1)))
            nu, nt = (u, t + 2) if t + 2 < 32 else (u + 1, t + 2 - 32)
            if nu < 2:
                for i, (ins, tag) in enumerate(pv_reads(nu, nt)):
                    S.add_mem(g0 + i, ins, tag)
            nu, nt = (u, t + 1) if t + 1 < 32 else (u + 1, 0)
            if nu < 2:
                S.add_first(g0 + 3, Wait("lgkm", ("V", nu, nt, 0)))
    gb = P2 + 28 * 4
    S.add_first(gb, Wait("vm", ("vs", 7)))
    S.add_first(gb, "s_barrier")
    def epi_blocks(kind, u, accbase):
        out = []
        for c in range(2):
            for rb in range(2):
                R = accbase + (c * 2 + rb) * 16
                for jj in range(2):
                    cv = [f"v_cvt_pk_bf16_f32 v{R + 8 * jj + k}, v{R + 8 * jj + 2 * k}, v{R + 8 * jj + 2 * k + 1}" for k in range(4)]
                    if kind == "K": off = rb * 8192 + (4 * u + 2 * c + jj) * 1024
                    else: off = 16384 + (2 * rb + jj) * 4096 + (2 * u + c) * 1024
                    out.append((cv, off, R + 8 * jj))
        return out
    def place_epi(blocks, g_start, stride):
        g = g_start
        for cv, off, R in blocks:
            for x in cv: S.add_valu(g, x)
            S.add_first(g + 1, f"s_add_u32 s60, s33, {off & ~4095}")
            S.add_mem(g + 1, f"buffer_store_dwordx4 {vr(R)}, v240, s[20:23], s60 offen offset:{off & 4095}{STORE_FLAGS}", "out")
            g += stride
    place_epi(epi_blocks("K", 0, 0) + epi_blocks("K", 1, 64), P2 + 6, 7)
    place_epi(epi_blocks("V", 0, 128), P2 + 128 + 6, 8)
    if DIAG:
        S.add_first(96, stamp(7)); S.add_first(256, stamp(8)); S.add_first(384, stamp(9)); S.add_first(511, stamp(10))
    print(S.report("kv"))
    p.extend(S.items())
    p("s_nop 15")
    for cv, off, R in epi_blocks("V", 1, 0):
        for x in cv: p(x)
        p(f"s_add_u32 s60, s33, {off & ~4095}")
        p(f"buffer_store_dwordx4 {vr(R)}, v240, s[20:23], s60 offen offset:{off & 4095}{STORE_FLAGS}", "out")
    if DIAG:
        p.items.append(stamp(11))
        p("s_waitcnt vmcnt(0)")
        p.items.append(stamp(12)); p.items.append(stamp(13, True))
        dump_stamps(p, 0, 28, 20)
    p.label("L_kv_end")
    p("s_endpgm")
    items = resolve(p.items)
    texts = [i.t for i in items]
    for e in lint(texts, "kv"): print(e)
    return texts

if __name__ == "__main__":
    t = gen_kv_kernel()
    print(len(t), "instructions")
```

```python
from asmlib import *
from gen_a import WS_XN, WS_KV, WS_ACT, MF, vr, ar, srd
import math
LOG2E = 1.4426950408889634
QSCALE = LOG2E / math.sqrt(128.0)
BIG = 2.0 ** 100
THR = 40.0
STORE_FLAGS = ""

def Sreg(par, sb, kb): return par * 64 + sb * 32 + kb * 16
def Preg(sb, s): return 128 + sb * 16 + s * 4
def NEGM(sb): return 160 + 16 * sb
L_ = [192, 193]; MX = [194, 195]; VTM = 196; VTMASK = 197; TMP = [198, 199, 202, 203]
VCUR, VPREV = 200, 201
def Qreg(sb, t): return (t // 4) * 32 + sb * 16 + (t % 4) * 4
def Oreg(sb, db): return 64 + sb * 64 + db * 16
def Fbuf(f): return 192 + (f % 16) * 4
S_THR = 61

class Op:
    def __init__(self, t, earliest=0, deadline=10 ** 9, deps=()):
        self.t = t; self.e = earliest; self.d = deadline; self.deps = list(deps); self.g = None

def list_schedule(S, streams, ngaps, cap):
    heads = [0] * len(streams)
    placed = []
    extra = [0] * ngaps
    ok = True
    for g in range(ngaps):
        while True:
            best = None
            for si, st in enumerate(streams):
                if heads[si] >= len(st): continue
                op = st[heads[si]]
                if op.e > g or any(d.g is None or d.g >= g for d in op.deps): continue
                must = op.d <= g
                if not must and S.load(g) + extra[g] + cost(op.t) > cap: continue
                if best is None or op.d < best[1].d: best = (si, op)
            if best is None: break
            si, op = best
            if S.load(g) + extra[g] + cost(op.t) > cap: ok = False
            op.g = g; extra[g] += cost(op.t); placed.append(op); heads[si] += 1
    if any(heads[i] < len(streams[i]) for i in range(len(streams))): ok = False
    return ok, placed, heads

def tail_reads(tq_next, base_reg, off, npre):
    return [(f"ds_read_b128 {ar(Fbuf(f))}, v{base_reg} offset:{off + f * 1024}", ("F", "n", f)) for f in range(npre)]

NPRE = 6

def gen_iter(name, tq, tp, parq, masked, odd_q, kreg, koff, vreg, voff, nreg, noff, first_pv=False, next_q=True, dma=True, end_ops=(), swap=False):
    sbq = {"D": [0, 1], "S": [0], None: []}[tq]
    sbp = {"D": [0, 1], "S": [0]}[tp]
    parp = 1 - parq
    mf = []; use = {}
    lastq = {}
    for kb in range(2 if tq else 0):
        for t in range(8):
            f = kb * 8 + t
            use[f] = len(mf)
            for sb in sbq:
                d = Sreg(parq, sb, kb)
                mf.append(f"{MF} {vr(d, 16)}, {ar(Fbuf(f))}, {ar(Qreg(sb, t))}, {vr(NEGM(sb), 16) if t == 0 else vr(d, 16)}")
                lastq[(sb, kb)] = len(mf) - 1
    firstp = {}
    for s in range(4):
        for db in range(4):
            f = 16 + s * 4 + db
            use[f] = len(mf)
            for sb in sbp:
                o = Oreg(sb, db)
                firstp.setdefault((sb, s), len(mf))
                mf.append(f"{MF} {ar(o, 16)}, {ar(Fbuf(f))}, {vr(Preg(sb, s))}, {0 if (first_pv and s == 0) else ar(o, 16)}")
    n = len(mf)
    lastuse = {f: (use[f + 1] - 1 if f + 1 in use else n - 1) for f in use}
    best = None
    for cap in (5, 6, 7, 8, 9, 10, 12):
        S = Sched(mf)
        frs = sorted(use)
        pre = NPRE if tq else 0
        todo = [f for f in frs if not (tq and f < pre)]
        gB = n - (8 if len(sbp) == 1 else 10)
        lead = 4 if not tq else 0
        LEAD = 8
        rg = {}
        for f in todo:
            g = max(0, use[f] - LEAD)
            if f - 16 in lastuse: g = max(g, lastuse[f - 16])
            rg[f] = g
        if next_q:
            lim = gB - 3
            k = 0
            for f in reversed(todo):
                gmax = lim - k // 2
                if rg[f] > gmax: rg[f] = gmax
                k += 1
            for f in todo:
                if f - 16 in lastuse: assert rg[f] >= lastuse[f - 16], (name, f)
        early = []
        for f in todo:
            if f < 16: ins = f"ds_read_b128 {ar(Fbuf(f))}, v{kreg} offset:{koff + f * 1024}"
            else: ins = f"ds_read_b128 {ar(Fbuf(f))}, v{vreg} offset:{voff + (f - 16) * 1024}"
            if use[f] - 1 <= rg[f] or (not tq and f < 16 + 4): early.append(Ins(ins, ("F", "c", f)))
            else: S.add_mem(rg[f], ins, ("F", "c", f))
        for f in frs:
            tag = ("F", "n", f) if (tq and f < pre) else ("F", "c", f)
            if use[f] > 0: S.add_first(use[f] - 1, Wait("lgkm", tag))
        if next_q:
            S.add_first(gB, Ins("s_waitcnt vmcnt(16) lgkmcnt(0)"))
            S.add_first(gB, "s_barrier")
            g = gB
            for f, (ins, tag) in enumerate(tail_reads(None, nreg, noff, NPRE)):
                assert g >= lastuse[f + 16], (name, f, g)
                S.add_mem(g, ins, ("F", "x", f)); g += 1
            S.add_first(n - 1, Wait("lgkm", ("F", "x", 0)))
        if dma:
            step = 2 if n >= 48 else 1
            g = 1
            for q in range(8):
                if q == 0:
                    S.add_first(g - 1, "s_mov_b32 m0, s52")
                if q == 4:
                    S.add_first(g - 1, "s_mov_b32 m0, s53")
                S.add_mem(g, f"buffer_load_dwordx4 v240, s[20:23], s{54 if q < 4 else 55} offen offset:{(q % 4) * 1024} lds", "kv")
                g += 2 * step if False else (3 if n >= 48 else 2)
            for x in ["s_add_u32 s54, s54, 0x8000", "s_add_u32 s55, s55, 0x8000", "s_add_u32 s52, s52, 0x8000",
                      "s_and_b32 s52, s52, 0x1ffff", "s_add_u32 s53, s53, 0x8000", "s_and_b32 s53, s53, 0x1ffff"]:
                S.add_first(g, x); g += 1
        E = []; A = []; C = []
        for s in range(4):
            for sb in sbp:
                b = Sreg(parp, sb, s // 2) + 8 * (s % 2)
                dl = firstp[(sb, s)] - 2
                es = [Op(f"v_exp_f32 v{b + r}, v{b + r}", 0, dl - 1) for r in range(8)]
                E += es
                A += [Op(f"v_add_f32 v{L_[sb]}, v{L_[sb]}, v{b + r}", 0, n - 2, [es[r]]) for r in range(8)]
                C += [Op(f"v_cvt_pk_bf16_f32 v{Preg(sb, s) + k}, v{b + 2 * k}, v{b + 2 * k + 1}", 0, dl, [es[2 * k], es[2 * k + 1]]) for k in range(4)]
        M = []
        for kb in range(2 if tq else 0):
            for sb in sbq:
                b = Sreg(parq, sb, kb)
                e0 = lastq[(sb, kb)] + 3
                if masked and sb == sbq[-1]:
                    for r in range(16):
                        kk = 64 * odd_q + 32 * kb + 8 * (r // 4) + (r % 4)
                        tm = TMP[r % 2]
                        M.append(Op(f"v_subrev_f32 v{tm}, {f2u(kk * BIG):#x}, v{VTMASK}", 0, n - 3))
                        M.append(Op(f"v_min_f32 v{b + r}, v{b + r}, v{tm}", e0, n - 3))
                if kb == 0:
                    M.append(Op(f"v_max3_f32 v{MX[sb]}, v{b}, v{b + 1}, v{b + 2}", e0, n - 3))
                    rest = list(range(3, 16))
                else: rest = list(range(16))
                if kb == 0:
                    carry = rest.pop()
                    for k in range(0, len(rest), 2):
                        M.append(Op(f"v_max3_f32 v{MX[sb]}, v{MX[sb]}, v{b + rest[k]}, v{b + rest[k + 1]}", e0, n - 3))
                else:
                    for k in range(0, 16, 2):
                        M.append(Op(f"v_max3_f32 v{MX[sb]}, v{MX[sb]}, v{b + k}, v{b + k + 1}", e0, n - 3))
                    M.append(Op(f"v_max_f32 v{MX[sb]}, v{MX[sb]}, v{Sreg(parq, sb, 0) + 15}", e0, n - 3))
        if tq == "D":
            M.append(Op(f"v_max_f32 v{TMP[2]}, v{MX[0]}, v{MX[1]}", 0, n - 3))
            M.append(Op(f"v_cmp_lt_f32 vcc, s{S_THR}, v{TMP[2]}", 0, n - 2))
        elif tq == "S":
            M.append(Op(f"v_cmp_lt_f32 vcc, s{S_THR}, v{MX[0]}", 0, n - 2))
        X = []
        if swap:
            X = [Op(f"v_xor_b32 v{VCUR}, 0x10000, v{VCUR}", n - 1, n - 1), Op(f"v_xor_b32 v{VPREV}, 0x10000, v{VPREV}", n - 1, n - 1)]
        streams = [E, C, A, M, X]
        pre_ops = []
        if not tq:
            pass
        ok, placed, heads = list_schedule(S, streams, n, cap)
        if ok or cap == 12:
            for op in placed: S.add_valu(op.g, op.t)
            assert all(heads[i] == len(streams[i]) for i in range(len(streams))), name
            best = S
            break
    S = best
    for x in end_ops: S.add_last(n - 1, x)
    print(S.report(name))
    return early, S.items()

def retag(items, a, b):
    out = []
    for it in items:
        if isinstance(it, Ins) and isinstance(it.tag, tuple) and it.tag[:2] == ("F", a): out.append(Ins(it.t, ("F", b, it.tag[2])))
        elif isinstance(it, Wait) and isinstance(it.tag, tuple) and it.tag[:2] == ("F", a): out.append(Wait(it.kind, ("F", b, it.tag[2])))
        else: out.append(it)
    return out

def fake_tail():
    pre = [Ins(f"ds_read_b128 {ar(Fbuf(f))}, v0", ("F", "n", f)) for f in range(NPRE)]
    pre.append(Wait("lgkm", ("F", "n", 0)))
    return pre

def resolve_iter(items):
    return resolve(items, fake_tail())

def rowmax_full(p, sb):
    p(f"v_mov_b32 v{TMP[0]}, v{MX[sb]}")
    p(f"v_mov_b32 v{TMP[1]}, v{MX[sb]}")
    p("s_nop 1")
    p(f"v_permlane32_swap_b32 v{TMP[0]}, v{TMP[1]}")
    p("s_nop 1")
    p(f"v_max_f32 v{TMP[0]}, v{TMP[0]}, v{TMP[1]}")

def gen_rare(par, sbs):
    p = Prog()
    p("s_nop 15")
    for sb in sbs:
        rowmax_full(p, sb)
        p(f"v_max_f32 v{TMP[0]}, 0, v{TMP[0]}")
        p(f"v_sub_f32 v{TMP[1]}, 0, v{TMP[0]}")
        p(f"v_exp_f32 v{TMP[1]}, v{TMP[1]}")
        for r in range(16): p(f"v_sub_f32 v{NEGM(sb) + r}, v{NEGM(sb) + r}, v{TMP[0]}")
        for r in range(32): p(f"v_sub_f32 v{Sreg(par, sb, 0) + r}, v{Sreg(par, sb, 0) + r}, v{TMP[0]}")
        p(f"v_mul_f32 v{L_[sb]}, v{L_[sb]}, v{TMP[1]}")
        for r in range(0, 64, 2):
            a = Oreg(sb, 0) + r
            p(f"v_accvgpr_read_b32 v{TMP[2]}, a{a}")
            p(f"v_accvgpr_read_b32 v{TMP[3]}, a{a + 1}")
            p(f"v_mul_f32 v{TMP[2]}, v{TMP[2]}, v{TMP[1]}")
            p(f"v_mul_f32 v{TMP[3]}, v{TMP[3]}, v{TMP[1]}")
            p(f"v_accvgpr_write_b32 a{a}, v{TMP[2]}")
            p(f"v_accvgpr_write_b32 a{a + 1}, v{TMP[3]}")
    p("s_nop 1")
    p("s_setpc_b64 s[62:63]")
    return [i.t for i in p.items]

def gen_attn_kernel():
    p = Prog()
    p("s_cmp_ge_u32 s2, 256")
    p("s_cbranch_scc1 L_at_end")
    if DIAG:
        for k in range(14): p(f"s_mov_b32 s{66 + 2 * k}, 0")
        p.items.append(stamp(0, True)); p.items.append(stamp(1))
    p("s_load_dwordx2 s[36:37], s[0:1], 16")
    p("s_load_dwordx4 s[40:43], s[0:1], 56")
    p("s_load_dwordx2 s[44:45], s[0:1], 96")
    p("v_and_b32 v254, 63, v0")
    p("v_lshrrev_b32 v255, 6, v0")
    p("v_lshlrev_b32 v240, 4, v254")
    p("v_readfirstlane_b32 s28, v255")
    p("s_and_b32 s34, s2, 7")
    p("s_lshr_b32 s35, s2, 3")
    p("s_lshl_b32 s29, s34, 2")
    p("s_lshr_b32 s46, s35, 3")
    p("s_add_u32 s29, s29, s46")
    p("s_and_b32 s30, s35, 7")
    p("s_sub_u32 s31, 15, s30")
    p("s_lshl_b32 s32, s31, 2")
    p("s_add_u32 s32, s32, s28")
    p("s_lshl_b32 s33, s30, 2")
    p("s_add_u32 s33, s33, s28")
    p("s_lshl_b32 s46, s32, 15")
    p("s_lshl_b32 s47, s33, 15")
    p(f"s_mul_i32 s32, s32, {368 * 1024}")
    p(f"s_add_u32 s32, s32, {WS_ACT:#x}")
    p(f"s_mul_i32 s33, s33, {368 * 1024}")
    p(f"s_add_u32 s33, s33, {WS_ACT:#x}")
    p("s_add_u32 s48, s29, 32")
    p("s_cmp_lt_u32 s29, 24")
    p("s_cselect_b32 s48, s48, s29")
    p("v_lshrrev_b32 v241, 2, v254")
    p("v_and_b32 v242, 3, v254")
    p("v_lshlrev_b32 v242, 4, v242")
    p("v_lshl_add_u32 v237, v241, 13, v242")
    p("v_mul_u32_u24 v241, 3584, v241")
    p("v_add_u32 v238, v241, v242")
    p("s_cmp_lt_u32 s28, 2")
    p("s_cselect_b64 vcc, -1, 0")
    p("v_cndmask_b32 v239, v237, v238, vcc")
    p("s_movk_i32 s49, 0x2000")
    p("s_cselect_b32 s49, 3584, s49")
    p("v_lshrrev_b32 v243, 5, v254")
    p("v_lshlrev_b32 v241, 9, v243")
    p("v_bfe_u32 v242, v254, 2, 2")
    p("v_lshl_add_u32 v241, v242, 6, v241")
    p("v_bfe_u32 v242, v254, 4, 1")
    p("v_lshl_add_u32 v241, v242, 5, v241")
    p("v_and_b32 v242, 3, v254")
    p("v_lshl_add_u32 v234, v242, 3, v241")
    p("v_add_u32 v235, 0x10000, v234")
    p("v_add_u32 v236, 0x20000, v234")
    p("s_lshl_b32 s50, s29, 6")
    p("s_lshl_b32 s51, s29, 8")
    p("s_and_b32 s56, s28, 1")
    p("s_lshl_b32 s57, s56, 6")
    p("s_add_u32 s57, s57, s51")
    p("s_cmp_lt_u32 s28, 2")
    p("s_cselect_b32 s50, s50, s57")
    p("s_lshl_b32 s58, s49, 4")
    p("s_sub_u32 s59, s58, 1024")
    p("s_add_u32 s58, s58, 3072")
    p("s_lshr_b32 s60, s28, 1")
    p(f"s_mul_i32 s38, s60, {64 * 3584}")
    p("s_lshl_b32 s39, s48, 6")
    p("s_add_u32 s38, s38, s39")
    p("s_lshl_b32 s39, s60, 19")
    p("s_add_u32 s39, s39, s57")
    p("s_add_u32 s39, s39, 128")
    p("s_lshl_b32 s34, s28, 12")
    p("s_lshl_b32 s35, s56, 13")
    p("s_lshl_b32 s60, s60, 12")
    p("s_add_u32 s35, s35, s60")
    p("s_lshl_b32 s51, s29, 20")
    p("s_add_u32 s51, s51, s34")
    p(f"s_add_u32 s51, s51, {WS_KV:#x}")
    p("s_waitcnt lgkmcnt(0)")
    srd(p, 8, 36, 0x400000)
    srd(p, 20, 44, 0x10000000)
    p("s_cmp_eq_u32 s56, 0")
    p("s_cselect_b32 s16, s40, s42")
    p("s_cselect_b32 s17, s41, s43")
    p(f"s_mov_b32 s18, {512 * 3584}")
    p("s_mov_b32 s19, 0x20000")
    p("s_cmp_lt_u32 s28, 2")
    p("s_cselect_b32 s12, s16, s36")
    p("s_cselect_b32 s13, s17, s37")
    p(f"s_cselect_b32 s14, s18, s10")
    p("s_mov_b32 s15, 0x20000")

    BLK = [0, 1, 2, 3, 4, 5, 6, 7, 8, 9, 4, 5, 6, 7, 8, 9]
    def dma_seg(n):
        ops = []
        base = BLK[n] * 16384
        for q in range(4):
            pre = []
            if n < 8:
                if q == 0: pre.append(f"s_add_u32 m0, s34, {base}")
                if not (n == 0 and q == 0): pre.append(f"s_add_u32 s50, s50, s{58 if q == 0 else 59}")
                else: pre.append("s_nop 0")
                ops.append((pre, f"buffer_load_dwordx4 v239, s[12:15], s50 offen offset:{q * 1024} lds", ("L", n)))
            else:
                kq = n % 4
                if q == 0: pre.append(f"s_add_u32 m0, s35, {base}")
                if n < 12:
                    pre.append(f"s_add_u32 s57, s38, {(kq * 128 + q * 16) * 3584 - q * 1024}")
                    ops.append((pre, f"buffer_load_dwordx4 v238, s[16:19], s57 offen offset:{q * 1024} lds", ("L", n)))
                else:
                    pre.append(f"s_add_u32 s57, s39, {(kq * 128 + q * 16) * 8192 - q * 1024}")
                    ops.append((pre, f"buffer_load_dwordx4 v237, s[8:11], s57 offen offset:{q * 1024} lds", ("L", n)))
        return ops
    def xn_loads(s):
        ops = []
        for rb in range(2):
            for tt in range(4):
                pre = []
                if tt == 0: pre.append(f"s_add_u32 s{64 + rb}, s{46 + rb}, {WS_XN + s * 4096}")
                t = 4 * s + tt
                ops.append((pre, f"buffer_load_dwordx4 {ar((rb * 32 + t) * 4)}, v240, s[20:23], s{64 + rb} offen offset:{tt * 1024}", ("L", s)))
        return ops
    def kv_half(tile, part):
        ops = []
        for q in range(4):
            pre = []
            if q == 0:
                pre.append(f"s_add_u32 m0, s34, {tile * 32768 + part * 16384}")
                pre.append(f"s_add_u32 s57, s51, {tile * 32768 + part * 16384}")
            ops.append((pre, f"buffer_load_dwordx4 v240, s[20:23], s57 offen offset:{q * 1024} lds", "kv"))
        return ops
    for s in range(2):
        for pre, ins, tag in dma_seg(s) + xn_loads(s):
            for x in pre: p(x)
            p(ins, tag)
    def tr_addr(off): return f"v{234 + (off >> 16)}", off & 0xffff
    def p1_reads(t):
        s, tt = t // 4, t % 4
        ops = []
        for c in range(4):
            for hf in range(2):
                a, o = tr_addr(BLK[s] * 16384 + c * 4096 + tt * 1024 + hf * 256)
                d = 192 + 16 * (t & 1) + 4 * c + 2 * hf
                ops.append((f"ds_read_b64_tr_b16 v[{d}:{d + 1}], {a} offset:{o}", ("W", t, c)))
        return ops
    def p2_reads(u, t):
        ops = []
        for c in range(2):
            for hf in range(2):
                a, o = tr_addr(BLK[8 + u * 4 + t // 8] * 16384 + c * 8192 + (t % 8) * 1024 + hf * 256)
                d = 192 + 8 * (t & 3) + 4 * c + 2 * hf
                ops.append((f"ds_read_b64_tr_b16 v[{d}:{d + 1}], {a} offset:{o}", ("V", u, t, c)))
        return ops
    if DIAG: p.items.append(stamp(2))
    p.wait_vm(("L", 0))
    p("s_barrier")
    if DIAG: p.items.append(stamp(3))
    for ins, tag in p1_reads(0): p(ins, tag)
    p.wait_lgkm(("W", 0, 0))
    mf = []
    for t in range(32):
        for c in range(4):
            for rb in range(2):
                acc = (c >> 1) * 64 + ((c & 1) * 2 + rb) * 16
                mf.append(f"{MF} {vr(acc, 16)}, {vr(192 + 16 * (t & 1) + 4 * c)}, {ar((rb * 32 + t) * 4)}, {vr(acc, 16) if t else 0}")
    ACC2 = [128, 0]
    for u in range(2):
        for t in range(32):
            for c in range(2):
                for rb in range(2):
                    acc = ACC2[u] + (c * 2 + rb) * 16
                    mf.append(f"{MF} {vr(acc, 16)}, {vr(192 + 8 * (t & 3) + 4 * c)}, {ar((rb * 32 + t) * 4)}, {vr(acc, 16) if t else 0}")
    S = Sched(mf)
    for t in range(32):
        g0 = t * 8
        for c in range(1, 4): S.add_first(g0 + 2 * c - 1, Wait("lgkm", ("W", t, c)))
        ops = p1_reads(t + 1) if t + 1 < 32 else p2_reads(0, 0) + p2_reads(0, 1)
        for i, (ins, tag) in enumerate(ops): S.add_mem(g0 + i // 2, ins, tag)
        S.add_first(g0 + 7, Wait("lgkm", ("W", t + 1, 0) if t + 1 < 32 else ("V", 0, 0, 0)))
    P2 = 256
    for u in range(2):
        for t in range(32):
            g0 = P2 + u * 128 + t * 4
            S.add_first(g0 + 1, Wait("lgkm", ("V", u, t, 1)))
            nu, nt = (u, t + 2) if t + 2 < 32 else (u + 1, t - 30)
            if nu < 2:
                for i, (ins, tag) in enumerate(p2_reads(nu, nt)): S.add_mem(g0 + i // 2, ins, tag)
            nu, nt = (u, t + 1) if t + 1 < 32 else (u + 1, 0)
            if nu < 2: S.add_first(g0 + 3, Wait("lgkm", ("V", nu, nt, 0)))
    for n in range(15):
        gb = 32 * n + 23
        S.add_first(gb, Ins("s_waitcnt lgkmcnt(0)"))
        S.add_first(gb, Wait("vm", ("L", n + 1)))
        S.add_first(gb, "s_barrier")
    def place(ops, g, stride):
        for pre, ins, tag in ops:
            for x in pre: S.add_first(g, x)
            S.add_mem(g, ins, tag); g += stride
        return g
    def win(n): return 0 if n == 0 else 32 * (n - 1) + 24
    sched = {0: dma_seg(2) + xn_loads(2), 1: dma_seg(3) + xn_loads(3), 2: dma_seg(4) + xn_loads(4), 3: dma_seg(5) + xn_loads(5),
             4: dma_seg(6) + xn_loads(6), 5: dma_seg(7) + xn_loads(7), 6: dma_seg(8) + dma_seg(9) + dma_seg(10),
             7: dma_seg(11) + dma_seg(12) + kv_half(0, 0), 8: dma_seg(13) + kv_half(0, 1) + kv_half(1, 0),
             9: dma_seg(14) + kv_half(1, 1), 10: dma_seg(15), 11: kv_half(2, 0), 12: kv_half(2, 1), 13: kv_half(3, 0)}
    for n, ops in sched.items():
        place(ops, win(n), 2 if n else 1)
    C0 = -2.0 * math.sqrt(2.0 / math.pi) * LOG2E
    C1 = C0 * 0.044715
    p(f"s_mov_b32 s60, {f2u(C1):#x}")
    p(f"v_mov_b32 v233, {f2u(C0):#x}")
    def gu_epi(acc, psg, g_start, g_end):
        st = [[], []]
        stores = []
        for rb in range(2):
            G = acc + rb * 16; U = acc + 32 + rb * 16
            for jj in range(2):
                last = []
                for k in range(8):
                    r = 8 * jj + k
                    t = 224 + (k % 4) + 4 * rb
                    o1 = Op(f"v_mul_f32 v{t}, v{G + r}, v{G + r}", g_start, g_end)
                    o2 = Op(f"v_fma_f32 v{t}, v{t}, s60, v233", g_start, g_end)
                    o3 = Op(f"v_mul_f32 v{t}, v{t}, v{G + r}", g_start, g_end)
                    o4 = Op(f"v_exp_f32 v{t}, v{t}", g_start, g_end)
                    o5 = Op(f"v_mul_f32 v{G + r}, v{G + r}, v{U + r}", g_start, g_end)
                    o6 = Op(f"v_add_f32 v{t}, 1.0, v{t}", g_start, g_end)
                    o7 = Op(f"v_rcp_f32 v{t}, v{t}", g_start, g_end)
                    o8 = Op(f"v_mul_f32 v{G + r}, v{G + r}, v{t}", g_start, g_end, [o7])
                    st[rb] += [o1, o2, o3, o4, o5, o6, o7, o8]
                cv = [Op(f"v_cvt_pk_bf16_f32 v{G + 8 * jj + k}, v{G + 8 * jj + 2 * k}, v{G + 8 * jj + 2 * k + 1}", g_start, g_end) for k in range(4)]
                st[rb] += cv
                stores.append((cv[-1], rb, jj, G + 8 * jj))
        return st, stores
    def q_epi(acc, u, g_start, g_end, g_move):
        ops = []; mv = []
        for c in range(2):
            for sb in range(2):
                R = acc + (c * 2 + sb) * 16
                for r in range(16): ops.append(Op(f"v_mul_f32 v{R + r}, {f2u(QSCALE):#x}, v{R + r}", g_start, g_end))
                for jj in range(2):
                    for k in range(4):
                        o = Op(f"v_cvt_pk_bf16_f32 v{R + 8 * jj + k}, v{R + 8 * jj + 2 * k}, v{R + 8 * jj + 2 * k + 1}", g_start, g_end)
                        ops.append(o)
                        mv.append(Op(f"v_accvgpr_write_b32 a{Qreg(sb, 4 * u + 2 * c + jj) + k}, v{R + 8 * jj + k}", g_move, 510, [o]))
        return ops, mv
    st0, stores0 = gu_epi(0, 29, P2 + 4, P2 + 124)
    st1, stores1 = gu_epi(128, 48, P2 + 128 + 4, 508)
    q0, q0mv = q_epi(64, 0, P2 + 4, 500, P2 + 128 + 40)
    ok, placed, heads = list_schedule(S, [st0[0] + st1[0], st0[1] + st1[1], q0, q0mv], 512, 5)
    assert ok
    for op in placed: S.add_valu(op.g, op.t)
    for stores, psg in ((stores0, 29), (stores1, 48)):
        for cv, rb, jj, R in stores:
            g = cv.g + 1
            S.add_first(g, f"s_lshl_b32 s64, s{psg}, 11")
            S.add_first(g, f"s_add_u32 s64, s64, s{32 + rb}")
            S.add_first(g, f"s_add_u32 s64, s64, {256 * 1024}")
            S.add_mem(g, f"buffer_store_dwordx4 {vr(R)}, v240, s[20:23], s64 offen offset:{jj * 1024}{STORE_FLAGS}", "st")
    if DIAG:
        S.add_first(256, stamp(4)); S.add_first(511, stamp(5))
    print(S.report("pro"))
    p.extend(S.items())
    p(f"v_mov_b32 v{VCUR}, v240")
    p(f"v_add_u32 v{VPREV}, 0x10000, v240")
    p("v_and_b32 v241, 31, v254")
    p("v_lshl_add_u32 v241, v255, 5, v241")
    p("v_lshrrev_b32 v242, 5, v254")
    p("v_lshlrev_b32 v242, 2, v242")
    p("v_sub_u32 v241, v241, v242")
    p("v_cvt_f32_i32 v241, v241")
    p("v_add_f32 v241, 0.5, v241")
    p(f"v_mul_f32 v{VTM}, {f2u(BIG):#x}, v241")
    p(f"s_mov_b32 s{S_THR}, {f2u(THR):#x}")
    p("s_mov_b32 s52, s34")
    p(f"s_add_u32 s53, s34, {3 * 32768 + 16384}")
    p(f"s_add_u32 s54, s51, {4 * 32768}")
    p(f"s_add_u32 s55, s51, {3 * 32768 + 16384}")
    p("s_waitcnt vmcnt(0)")
    p("s_barrier")
    for f in range(16):
        p(f"ds_read_b128 {ar(Fbuf(f))}, v{VCUR} offset:{f * 1024}", ("K0", f))
    q1, q1mv = q_epi(0, 1, 0, 0, 0)
    for o in q1: p(o.t)
    for o in q1mv: p(o.t)
    HUGE = f2u(2.0 ** 120)
    def set_mask(cond_cmp):
        p(cond_cmp)
        p(f"s_cselect_b32 s60, {f2u(-2.0 ** 120):#x}, {HUGE:#x}" if False else f"s_cselect_b32 s60, s26, s27")
        p(f"v_max_f32 v{VTMASK}, s60, v{VTM}")
    p(f"s_mov_b32 s26, {f2u(-2.0 ** 120):#x}")
    p(f"s_mov_b32 s27, {HUGE:#x}")
    set_mask("s_cmp_eq_u32 s30, 0")
    p("s_waitcnt lgkmcnt(0)")
    if DIAG: p.items.append(stamp(6))
    mf = []
    for kb in range(2):
        for t in range(8):
            for sb in range(2):
                d = Sreg(0, sb, kb)
                mf.append(f"{MF} {vr(d, 16)}, {ar(Fbuf(kb * 8 + t))}, {ar(Qreg(sb, t))}, {0 if t == 0 else vr(d, 16)}")
    S = Sched(mf)
    for f, (ins, tag) in enumerate(tail_reads(None, VCUR, 32768, NPRE)):
        S.add_mem(20 + f, ins, tag)
    p.extend(S.items())
    p("s_nop 9")
    for kb in range(2):
        b = Sreg(0, 1, kb)
        for r in range(16):
            kk = 32 * kb + 8 * (r // 4) + (r % 4)
            p(f"v_subrev_f32 v{TMP[r % 2]}, {f2u(kk * BIG):#x}, v{VTMASK}")
            p(f"v_min_f32 v{b + r}, v{b + r}, v{TMP[r % 2]}")
    for sb in range(2):
        b = Sreg(0, sb, 0)
        p(f"v_max3_f32 v{MX[sb]}, v{b}, v{b + 1}, v{b + 2}")
        for k in range(3, 31, 2): p(f"v_max3_f32 v{MX[sb]}, v{MX[sb]}, v{b + k}, v{b + k + 1}")
        p(f"v_max_f32 v{MX[sb]}, v{MX[sb]}, v{b + 31}")
        rowmax_full(p, sb)
        for r in range(16): p(f"v_sub_f32 v{NEGM(sb) + r}, 0, v{TMP[0]}")
        for r in range(32): p(f"v_sub_f32 v{b + r}, v{b + r}, v{TMP[0]}")
        p(f"v_mov_b32 v{L_[sb]}, 0")
    p("s_waitcnt lgkmcnt(0)")
    pro_items = resolve(p.items)

    stubs = []
    def check(site, par, dual):
        stubs.append((site, par, dual))
        return [f"s_cbranch_vccnz L_stub_{site}", f"L_ret_{site}:"]
    def it_odd(name, tq, tp, masked):
        e, it = gen_iter(name, tq, tp, 0, masked, 0, VCUR, 0, VPREV, 49152, VCUR, 32768, end_ops=check(name, 0, tq == "D"))
        assert not e
        return resolve_iter(it)
    def it_even(name, tq, tp, masked, extra_end=(), first_pv=False, next_q=True):
        e, it = gen_iter(name, tq, tp, 1, masked, 1, VCUR, 32768, VCUR, 16384, VPREV, 0, first_pv=first_pv, next_q=next_q,
                         end_ops=check(name, 1, tq == "D") + list(extra_end), swap=True)
        assert not e
        return resolve_iter(it)
    T = lambda items: [i.t for i in items]
    seg = {}
    seg["P"] = T(pro_items) + T(it_even("it0", "D", "D", True, first_pv=True))
    seg["UDD"] = T(it_odd("uddA", "D", "D", False)) + T(it_even("uddB", "D", "D", False, ["s_sub_u32 s24, s24, 1", "s_cmp_lg_u32 s24, 0", "s_cbranch_scc1 L_udd"]))
    seg["UDDm"] = T(it_odd("uddmA", "D", "D", True)) + T(it_even("uddmB", "D", "D", True))
    seg["UDSm"] = T(it_odd("udsA", "S", "D", True)) + T(it_even("udsB", "S", "S", True))
    seg["USS"] = T(it_odd("ussA", "S", "S", False)) + T(it_even("ussB", "S", "S", False, ["s_sub_u32 s24, s24, 1", "s_cmp_lg_u32 s24, 0", "s_cbranch_scc1 L_uss"]))
    seg["USSm"] = T(it_odd("ussmA", "S", "S", True)) + T(it_even("ussmB", "S", "S", True))
    q = Prog()
    for f in range(16):
        q(f"ds_read_b128 {ar(Fbuf(16 + f))}, v{VPREV} offset:{49152 + f * 1024}", ("VE", f))
    b = Sreg(1, 0, 0)
    for r in range(32): q(f"v_exp_f32 v{b + r}, v{b + r}")
    for s in range(4):
        for k in range(4): q(f"v_cvt_pk_bf16_f32 v{Preg(0, s) + k}, v{b + 8 * s + 2 * k}, v{b + 8 * s + 2 * k + 1}")
    q("s_waitcnt lgkmcnt(0)")
    mf = []
    for s in range(4):
        for db in range(4):
            mf.append(f"{MF} {ar(Oreg(0, db), 16)}, {ar(Fbuf(16 + s * 4 + db))}, {vr(Preg(0, s))}, {ar(Oreg(0, db), 16)}")
    S = Sched(mf)
    for r in range(32): S.add_valu(r // 4, f"v_add_f32 v{L_[0]}, v{L_[0]}, v{b + r}")
    q.extend(S.items())
    if DIAG: q.items.append(stamp(10))
    q("s_lshl_b32 s60, s29, 13")
    for sb in (1, 0):
        q(f"v_mov_b32 v{TMP[0]}, v{L_[sb]}")
        q(f"v_mov_b32 v{TMP[1]}, v{L_[sb]}")
        q("s_nop 1")
        q(f"v_permlane32_swap_b32 v{TMP[0]}, v{TMP[1]}")
        q("s_nop 1")
        q(f"v_add_f32 v{TMP[0]}, v{TMP[0]}, v{TMP[1]}")
        q(f"v_rcp_f32 v{TMP[0]}, v{TMP[0]}")
        q(f"s_add_u32 s64, s60, s{32 + sb}")
        q(f"s_add_u32 s65, s64, 4096")
        for db in range(4):
            for jj in range(2):
                R = (sb * 8 + db * 2 + jj) * 8
                a = Oreg(sb, db) + 8 * jj
                for k in range(8): q(f"v_accvgpr_read_b32 v{R + k}, a{a + k}")
                for k in range(8): q(f"v_mul_f32 v{R + k}, v{R + k}, v{TMP[0]}")
                for k in range(4): q(f"v_cvt_pk_bf16_f32 v{R + k}, v{R + 2 * k}, v{R + 2 * k + 1}")
                t = 2 * db + jj
                q(f"buffer_store_dwordx4 {vr(R)}, v240, s[20:23], s{64 + t // 4} offen offset:{(t % 4) * 1024}{STORE_FLAGS}")
    if DIAG:
        q.items.append(stamp(11))
        q("s_waitcnt vmcnt(0)")
        q.items.append(stamp(12)); q.items.append(stamp(13, True))
        dump_stamps(q, 1, 28, 20)
    seg["E"] = T(resolve(q.items))

    out = []
    out += seg["P"]
    if DIAG: out.append(stamp(7).t)
    out += ["s_cmp_eq_u32 s30, 0", "s_cbranch_scc1 L_uds", "s_sub_u32 s24, s30, 1", "s_cmp_eq_u32 s24, 0", "s_cbranch_scc1 L_uddm"]
    out += [".p2align 3", "L_udd:"] + seg["UDD"]
    out += ["L_uddm:", f"v_mov_b32 v{VTMASK}, v{VTM}"] + seg["UDDm"]
    out += ["L_uds:"]
    if DIAG: out.append(stamp(8).t)
    out += ["s_cmp_eq_u32 s30, 7", "s_cselect_b32 s60, s26, s27", f"v_max_f32 v{VTMASK}, s60, v{VTM}"] + seg["UDSm"]
    out += ["s_cmp_eq_u32 s30, 7", "s_cbranch_scc1 L_fin", "s_lshl_b32 s24, s30, 1", "s_sub_u32 s24, 13, s24"]
    out += [".p2align 3", "L_uss:"] + seg["USS"]
    out += [f"v_mov_b32 v{VTMASK}, v{VTM}"] + seg["USSm"]
    out += ["L_fin:"]
    if DIAG: out.append(stamp(9).t)
    out += seg["E"]
    out += ["L_at_end:", "s_endpgm"]
    for site, par, dual in stubs:
        out += [f"L_stub_{site}:", f"s_call_b64 s[62:63], L_rare_{par}{'d' if dual else 's'}", f"s_branch L_ret_{site}"]
    for par in range(2):
        for dual in (True, False):
            out += [f"L_rare_{par}{'d' if dual else 's'}:"] + gen_rare(par, [0, 1] if dual else [0])
    for path in (["P", "UDD", "UDD", "UDDm", "UDSm", "USS", "USS", "USSm", "E"], ["P", "UDSm", "E"]):
        tx = []
        for k in path: tx += seg[k]
        for e in lint(tx, "attn")[:40]: print(e)
    return out

if __name__ == "__main__":
    print(len(gen_attn_kernel()))
```

```python
from asmlib import *
from gen_a import WS_ACT, MF, vr, ar, srd, round_bf16
LOG2E = 1.4426950408889634

def gen_out_kernel():
    p = Prog()
    p("s_cmp_ge_u32 s2, 256")
    p("s_cbranch_scc1 L_out_end")
    if DIAG:
        for k in range(14): p(f"s_mov_b32 s{66 + 2 * k}, 0")
        p.items.append(stamp(0, True)); p.items.append(stamp(1))
    p("s_load_dwordx2 s[36:37], s[0:1], 0")
    p("s_load_dwordx2 s[38:39], s[0:1], 40")
    p("s_load_dwordx4 s[40:43], s[0:1], 72")
    p("s_load_dwordx2 s[44:45], s[0:1], 96")
    p("v_and_b32 v254, 63, v0")
    p("v_lshrrev_b32 v255, 6, v0")
    p("v_lshlrev_b32 v240, 4, v254")
    p("v_readfirstlane_b32 s28, v255")
    p("s_and_b32 s34, s2, 7")
    p("s_lshr_b32 s35, s2, 3")
    p("s_lshl_b32 s29, s34, 2")
    p("s_lshr_b32 s46, s35, 3")
    p("s_add_u32 s29, s29, s46")
    p("s_and_b32 s30, s35, 7")
    p(f"s_mul_i32 s31, s29, {2 * 368 * 1024}")
    p(f"s_add_u32 s31, s31, {WS_ACT:#x}")
    p("s_lshl_b32 s46, s28, 16")
    p("s_add_u32 s32, s31, s46")
    p(f"s_mul_i32 s46, s28, {28 * 1024}")
    p("s_add_u32 s33, s31, s46")
    p(f"s_add_u32 s33, s33, {256 * 1024}")
    p(f"v_add_u32 v241, {368 * 1024}, v240")
    p("s_lshl_b32 s47, s30, 7")
    p("s_lshl_b32 s46, s28, 20")
    p("s_add_u32 s48, s46, s47")
    p(f"s_mul_i32 s46, s28, {28 * 16 * 1024}")
    p("s_add_u32 s49, s46, s47")
    p("s_lshl_b32 s50, s28, 15")
    p("v_lshrrev_b32 v246, 3, v254")
    p("v_and_b32 v247, 7, v254")
    p("v_bfe_u32 v248, v254, 4, 1")
    p("v_lshlrev_b32 v248, 2, v248")
    p("v_xor_b32 v247, v247, v248")
    p("v_lshlrev_b32 v246, 10, v246")
    p("v_lshl_add_u32 v242, v247, 4, v246")
    p(f"v_add_u32 v243, {8192 - 1024}, v242")
    p(f"v_add_u32 v244, {16384 - 2048}, v242")
    p(f"v_add_u32 v245, {24576 - 3072}, v242")
    p("v_lshrrev_b32 v246, 5, v254")
    p("v_lshlrev_b32 v246, 9, v246")
    p("v_bfe_u32 v247, v254, 2, 2")
    p("v_lshl_add_u32 v246, v247, 7, v246")
    p("v_bfe_u32 v247, v254, 4, 1")
    p("v_lshl_add_u32 v246, v247, 5, v246")
    p("v_and_b32 v247, 3, v254")
    p("v_lshl_add_u32 v246, v247, 3, v246")
    p("v_lshl_add_u32 v246, v255, 15, v246")
    p("v_bfe_u32 v247, v254, 3, 1")
    p("v_lshl_add_u32 v236, v247, 6, v246")
    p("v_xor_b32 v247, 1, v247")
    p("v_lshl_add_u32 v237, v247, 6, v246")
    p("v_and_b32 v246, 31, v254")
    p("v_lshlrev_b32 v246, 10, v246")
    p("v_lshrrev_b32 v247, 5, v254")
    p("v_lshl_add_u32 v238, v247, 3, v246")
    p("s_lshl_b32 s46, s29, 1")
    p("s_and_b32 s51, s28, 1")
    p("s_add_u32 s46, s46, s51")
    p("s_lshl_b32 s46, s46, 15")
    p("s_lshr_b32 s51, s28, 1")
    p("s_lshl_b32 s51, s51, 6")
    p("s_add_u32 s46, s46, s51")
    p("s_add_u32 s51, s46, s47")
    p("s_waitcnt lgkmcnt(0)")
    srd(p, 24, 36, 0x200000)
    srd(p, 8, 38, 0x400000)
    srd(p, 12, 40, 1792 * 1024)
    srd(p, 16, 42, 0x200000)
    srd(p, 20, 44, 0x10000000)
    NK = 92
    D = 14
    def vm_ops(n):
        ops = []
        sp = n < 64
        j = n if sp else n - 64
        wsrd = "s[8:11]" if sp else "s[12:15]"
        par = n & 1
        pre = []
        if par == 0:
            pre.append(f"s_add_u32 m0, s50, {(n % 16) * 2048}")
            pre.append(f"s_add_u32 s52, s{48 if sp else 49}, {j * 16384}")
        ops.append((pre, f"buffer_load_dwordx4 v{242 + 2 * par}, {wsrd}, s52 offen offset:{par * 2048} lds", ("k", n)))
        ops.append(([], f"buffer_load_dwordx4 v{243 + 2 * par}, {wsrd}, s52 offen offset:{par * 2048 + 1024} lds", ("k", n)))
        pre = []
        if j % 4 == 0:
            pre.append(f"s_add_u32 s53, s{32 if sp else 33}, {j * 1024}")
        a = (n % 16) * 8
        ops.append((pre, f"buffer_load_dwordx4 {ar(a)}, v240, s[20:23], s53 offen offset:{(j % 4) * 1024}", ("k", n)))
        ops.append(([], f"buffer_load_dwordx4 {ar(a + 4)}, v241, s[20:23], s53 offen offset:{(j % 4) * 1024}", ("k", n)))
        return ops
    def tr_ops(n):
        ops = []
        for c in range(2):
            for hf in range(2):
                d = 128 + 8 * (n & 3) + 4 * c + 2 * hf
                ops.append((f"ds_read_b64_tr_b16 v[{d}:{d + 1}], v{236 + c} offset:{(n % 16) * 2048 + hf * 1024}", ("t", n, c)))
        return ops
    for n in range(D):
        for pre, ins, tag in vm_ops(n):
            for x in pre: p(x)
            p(ins, tag)
    if DIAG: p.items.append(stamp(2))
    p.wait_vm(("k", 1))
    if DIAG: p.items.append(stamp(3))
    for n in range(2):
        for ins, tag in tr_ops(n): p(ins, tag)
    p.wait_lgkm(("t", 0, 0))
    mf = []
    for n in range(NK):
        base = 0 if n < 64 else 64
        first = n == 0 or n == 64
        for c in range(2):
            for rb in range(2):
                acc = base + (c * 2 + rb) * 16
                mf.append(f"{MF} {vr(acc, 16)}, {vr(128 + 8 * (n & 3) + 4 * c)}, {ar((n % 16) * 8 + 4 * rb)}, {0 if first else vr(acc, 16)}")
    S = Sched(mf)
    for n in range(NK):
        g0 = 4 * n
        S.add_first(g0 + 1, Wait("lgkm", ("t", n, 1)))
        if n + 2 < NK:
            S.add_first(g0, Wait("vm", ("k", n + 2)))
            for i, (ins, tag) in enumerate(tr_ops(n + 2)): S.add_mem(g0 + i, ins, tag)
        if n + D < NK:
            for i, (pre, ins, tag) in enumerate(vm_ops(n + D)):
                for x in pre: S.add_first(g0 + i, x)
                S.add_mem(g0 + i, ins, tag)
        if n + 1 < NK:
            S.add_first(g0 + 3, Wait("lgkm", ("t", n + 1, 0)))
    for j in range(4):
        S.add_mem(4 * (NK - D) + j, f"buffer_load_dwordx2 v[{160 + 2 * j}:{161 + 2 * j}], v238, s[24:27], s51 offen offset:{16 * j}", "x")
    if DIAG:
        S.add_first(64, stamp(4)); S.add_first(128, stamp(5)); S.add_first(256, stamp(6)); S.add_first(367, stamp(7))
    print(S.report("out"))
    p.extend(S.items())
    p("v_lshl_add_u32 v246, v255, 15, v240")
    for part in (0, 1):
        if part == 1: p("s_nop 7")
        for b in range(4):
            for q in range(4):
                r = part * 64 + b * 16 + q * 4
                p(f"ds_write_b128 v246, {vr(r)} offset:{((b * 2 + part) * 4 + q) * 1024}")
    p("v_lshl_add_u32 v247, v255, 13, v240")
    p("v_add_u32 v248, 0x10000, v247")
    p("s_waitcnt lgkmcnt(0)")
    p("s_barrier")
    if DIAG: p.items.append(stamp(8))
    for src in range(4):
        for part in range(2):
            for q in range(4):
                r = src * 32 + part * 16 + q * 4
                p(f"ds_read_b128 {vr(r)}, v{247 + (src >> 1)} offset:{(src & 1) * 32768 + (part * 4 + q) * 1024}", ("red", src))
    p.wait_lgkm(("red", 1))
    for k in range(32): p(f"v_add_f32 v{k}, v{k}, v{32 + k}")
    p.wait_lgkm(("red", 3))
    for k in range(32): p(f"v_add_f32 v{64 + k}, v{64 + k}, v{96 + k}")
    for k in range(32): p(f"v_add_f32 v{k}, v{k}, v{64 + k}")
    for k in range(0, 32, 2):
        p(f"v_cvt_pk_bf16_f32 v{32 + k // 2}, v{k}, v{k + 1}")
    for k in range(0, 32, 2):
        p(f"v_lshlrev_b32 v{k}, 16, v{32 + k // 2}")
        p(f"v_and_b32 v{k + 1}, 0xffff0000, v{32 + k // 2}")
    for k in range(16): p(f"v_mul_f32 v{32 + k}, {f2u(-LOG2E):#x}, v{16 + k}")
    for k in range(16): p(f"v_exp_f32 v{32 + k}, v{32 + k}")
    for k in range(16): p(f"v_add_f32 v{32 + k}, 1.0, v{32 + k}")
    for k in range(16): p(f"v_rcp_f32 v{32 + k}, v{32 + k}")
    for k in range(16): p(f"v_mul_f32 v{16 + k}, v{16 + k}, v{32 + k}")
    for k in range(0, 16, 2): p(f"v_cvt_pk_bf16_f32 v{32 + k // 2}, v{16 + k}, v{17 + k}")
    for k in range(0, 16, 2):
        p(f"v_lshlrev_b32 v{16 + k}, 16, v{32 + k // 2}")
        p(f"v_and_b32 v{17 + k}, 0xffff0000, v{32 + k // 2}")
    for k in range(16): p(f"v_mul_f32 v{k}, v{k}, v{16 + k}")
    for k in range(0, 16, 2): p(f"v_cvt_pk_bf16_f32 v{32 + k // 2}, v{k}, v{k + 1}")
    for k in range(0, 16, 2):
        p(f"v_lshlrev_b32 v{k}, 16, v{32 + k // 2}")
        p(f"v_and_b32 v{k + 1}, 0xffff0000, v{32 + k // 2}")
    p.wait_vm("x")
    for k in range(0, 16, 2):
        p(f"v_lshlrev_b32 v{16 + k}, 16, v{160 + k // 2}")
        p(f"v_and_b32 v{17 + k}, 0xffff0000, v{160 + k // 2}")
    for k in range(16): p(f"v_add_f32 v{k}, v{k}, v{16 + k}")
    for k in range(0, 16, 2): p(f"v_cvt_pk_bf16_f32 v{32 + k // 2}, v{k}, v{k + 1}")
    for j in range(4):
        p(f"buffer_store_dwordx2 v[{32 + 2 * j}:{33 + 2 * j}], v238, s[16:19], s51 offen offset:{16 * j}")
    if DIAG:
        p.items.append(stamp(11))
        p("s_waitcnt vmcnt(0)")
        p.items.append(stamp(12)); p.items.append(stamp(13, True))
        dump_stamps(p, 2, 28, 20)
    p.label("L_out_end")
    p("s_endpgm")
    items = resolve(p.items)
    texts = [i.t for i in items]
    for e in lint(texts, "out"): print(e)
    return texts

if __name__ == "__main__":
    print(len(gen_out_kernel()))
```

```python
import sys
sys.path.insert(0, "dev")
from asmlib import *
import gen_a
NAME = "recurrent_scan__compressed_kv_cla__glu_gated_geglu__prompt"
def build(path, kernels):
    hdr = open(f"cdna_kernels/{NAME}.s.ref").read().split("\n")
    lines = [l for l in hdr if l.startswith(";") and "@launch" not in l and "Override launch" not in l and "grid=ceil" not in l]
    s = "\n".join(lines) + "\n"
    for name, lds, body in kernels:
        s += f"; @launch kernel={name} grid=(256,1,1) block=(256,1,1) lds={lds}\n"
    s += '.amdgcn_target "amdgcn-amd-amdhsa--gfx950"\n.text\n'
    for name, lds, body in kernels:
        s += f".globl {name}\n.p2align 8\n.type {name},@function\n{name}:\n"
        for t in body:
            s += (t if t.endswith(":") or t.startswith(".") else "    " + t) + "\n"
    s += '.section .rodata,"a"\n'
    for name, lds, body in kernels:
        s += kd(name)
    open(path, "w").write(s)
if __name__ == "__main__":
    ks = [("kv_kernel", 163840, gen_a.gen_kv_kernel())]
    try:
        import gen_b
        ks.append(("attn_kernel", 163840, gen_b.gen_attn_kernel()))
    except ImportError: pass
    try:
        import gen_c
        ks.append(("out_kernel", 163840, gen_c.gen_out_kernel()))
    except ImportError: pass
    out = sys.argv[1] if len(sys.argv) > 1 else f"cdna_kernels/{NAME}.s"
    build(out, ks)
```

```python
from asmlib import *
from sched16 import *
import math, os, re
MF = "v_mfma_f32_16x16x32_bf16"
WSB = int(os.environ.get("WSB", "0"), 0)
WS_XN = WSB + 0x0
WS_KV = WSB + 0x200000
WS_ACT = WSB + 0x2200000
WS_PART = WSB + 0x4000000
WS_FLAG = WSB + 0x5000000
ACT_ROW = 184 * 1024
LOG2E = 1.4426950408889634
KSCALE = LOG2E / math.sqrt(128.0)
BIG = 2.0 ** 100
THR = float(os.environ.get("THR", "40"))
STF = " sc1"
NT = os.environ.get("NT", " nt")
WSB = int(os.environ.get("WSB", "0"), 0)
DIAG2 = [int(x) for x in os.environ.get("DIAG2", "").split(",") if x]
def vr(b, n=4): return f"v[{b}:{b + n - 1}]"
def ar(b, n=4): return f"a[{b}:{b + n - 1}]"
def srd(p, d, lo, size):
    p(f"s_mov_b32 s{d}, s{lo}")
    p(f"s_mov_b32 s{d + 1}, s{lo + 1}")
    p(f"s_mov_b32 s{d + 2}, {size:#x}")
    p(f"s_mov_b32 s{d + 3}, 0x20000")

def wave_reduce(p, regs_):
    steps = ["quad_perm:[1,0,3,2] row_mask:0xf bank_mask:0xf", "quad_perm:[2,3,0,1] row_mask:0xf bank_mask:0xf",
             "row_half_mirror row_mask:0xf bank_mask:0xf", "row_mirror row_mask:0xf bank_mask:0xf",
             "row_bcast:15 row_mask:0xa bank_mask:0xf", "row_bcast:31 row_mask:0xc bank_mask:0xf"]
    for st in steps:
        p("s_nop 1")
        for r in regs_: p(f"v_add_f32_dpp v{r}, v{r}, v{r} {st}")
    p("s_nop 1")
def round_bf16(p, dst, src):
    p(f"v_cvt_pk_bf16_f32 v{dst}, v{src}, v{src}")
    p(f"v_and_b32 v{dst}, 0xffff0000, v{dst}")

def emit_ln(p):
    for r in range(2):
        for k in range(4):
            p(f"v_lshlrev_b32 v{8 + 8 * r + 2 * k}, 16, v{4 * r + k}")
            p(f"v_and_b32 v{9 + 8 * r + 2 * k}, 0xffff0000, v{4 * r + k}")
    for r in range(2):
        b = 8 + 8 * r
        p(f"v_add_f32 v{24 + r}, v{b}, v{b + 1}")
        for k in range(2, 8): p(f"v_add_f32 v{24 + r}, v{24 + r}, v{b + k}")
    wave_reduce(p, [24, 25])
    p("v_readlane_b32 s58, v24, 63")
    p("v_readlane_b32 s59, v25, 63")
    p(f"v_mov_b32 v30, {f2u(1.0 / 512):#x}")
    p("s_nop 1")
    for r in range(2): p(f"v_mul_f32 v{26 + r}, s{58 + r}, v30")
    for r in range(2):
        b = 8 + 8 * r
        for k in range(8): p(f"v_sub_f32 v{32 + k}, v{b + k}, v{26 + r}")
        p(f"v_mul_f32 v{24 + r}, v32, v32")
        for k in range(1, 8): p(f"v_fmac_f32 v{24 + r}, v{32 + k}, v{32 + k}")
    wave_reduce(p, [24, 25])
    p("v_readlane_b32 s58, v24, 63")
    p("v_readlane_b32 s59, v25, 63")
    p("s_nop 1")
    for r in range(2):
        p(f"v_mul_f32 v{28 + r}, s{58 + r}, v30")
        round_bf16(p, 28 + r, 28 + r)
        p(f"v_add_f32 v{28 + r}, {f2u(1e-5):#x}, v{28 + r}")
        round_bf16(p, 28 + r, 28 + r)
        p(f"v_sqrt_f32 v{28 + r}, v{28 + r}")
        p("s_nop 0")
        round_bf16(p, 28 + r, 28 + r)
        p(f"v_rcp_f32 v{28 + r}, v{28 + r}")
        round_bf16(p, 26 + r, 26 + r)
    for r in range(2):
        b = 8 + 8 * r
        for k in range(8): p(f"v_sub_f32 v{b + k}, v{b + k}, v{26 + r}")
        for k in range(4): p(f"v_cvt_pk_bf16_f32 v{32 + k}, v{b + 2 * k}, v{b + 2 * k + 1}")
        for k in range(4):
            p(f"v_lshlrev_b32 v{b + 2 * k}, 16, v{32 + k}")
            p(f"v_and_b32 v{b + 2 * k + 1}, 0xffff0000, v{32 + k}")
        for k in range(8): p(f"v_mul_f32 v{b + k}, v{b + k}, v{28 + r}")
        for k in range(4): p(f"v_cvt_pk_bf16_f32 v{40 + 4 * r + k}, v{b + 2 * k}, v{b + 2 * k + 1}")

def ln_ops(g0, g1):
    p = Prog(); emit_ln(p)
    ops = []; lag = False
    for it in p.items:
        t = it.t
        if t.startswith("s_nop"): lag = True; continue
        t = re.sub(r"\bv(\d+)\b", lambda m: "v%d" % (int(m.group(1)) + 176 if int(m.group(1)) < 8 else int(m.group(1)) + 128), t)
        ops.append(Op(t, g0, g1, [ops[-1]] if lag else [], lag=2)); lag = False
    return ops

def Sreg(par, qb, kb): return par * 64 + qb * 16 + kb * 4
def Preg(qb, s): return 128 + qb * 8 + s * 4
def NEGM(qb): return 160 + 4 * qb
def LACC(qb): return 176 + 4 * qb
ONES = 192
MX = [196, 197]; VTM = 198; VTMASK = 199; VCUR, VPREV = 200, 201; TMP = [202, 203, 204, 205]
def Qreg(qb, t): return (t // 2) * 32 + qb * 8 + (t % 2) * 4
def Oreg(qb, db): return 64 + qb * 32 + db * 4
def Fbuf(f): return 192 + (f % 16) * 4
S_THR = 61
NPRE = 6

def tail_reads(base_reg, off):
    return [f"ds_read_b128 {ar(Fbuf(f))}, v{base_reg} offset:{off + f * 1024}" for f in range(NPRE)]

def gen_iter(name, tq, tp, parq, masked, odd_q, kreg, koff, vreg, voff, nreg, noff, first_pv=False, end_ops=(), swap=False, mid_ops=()):
    qq = {"D": [0, 1, 2, 3], "S": [0, 1]}[tq]
    qp = {"D": [0, 1, 2, 3], "S": [0, 1]}[tp]
    parp = 1 - parq
    mf = []; use = {}; lastq = {}; lastuse = {}
    for kb in range(4):
        for t in range(4):
            f = kb * 4 + t
            use[f] = len(mf)
            for qb in qq:
                d = Sreg(parq, qb, kb)
                mf.append(f"{MF} {vr(d)}, {ar(Fbuf(f))}, {ar(Qreg(qb, t))}, {vr(NEGM(qb)) if t == 0 else vr(d)}")
                lastq[(qb, kb)] = len(mf) - 1
            lastuse[f] = len(mf) - 1
    firstp = {}
    for s in range(2):
        for db in range(8):
            f = 16 + s * 8 + db
            use[f] = len(mf)
            for qb in qp:
                o = Oreg(qb, db)
                firstp.setdefault((qb, s), len(mf))
                mf.append(f"{MF} {ar(o)}, {ar(Fbuf(f))}, {vr(Preg(qb, s))}, {0 if (first_pv and s == 0) else ar(o)}")
            lastuse[f] = len(mf) - 1
        for qb in qp:
            mf.append(f"{MF} {vr(LACC(qb))}, {vr(ONES)}, {vr(Preg(qb, s))}, {0 if (first_pv and s == 0) else vr(LACC(qb))}")
    n = len(mf)
    S = Sched16(mf)
    gB = n - (16 if len(qp) == 2 else 22)
    LEAD = 14
    for f in range(32):
        tag = ("F", "n", f) if f < NPRE else ("F", "c", f)
        if use[f] > 0: S.add_first(use[f] - 1, Wait("lgkm", tag))
    S.add_first(gB, Ins("s_waitcnt vmcnt(16) lgkmcnt(0)"))
    S.add_first(gB + 1, "s_barrier")
    S.add_first(n - 1, Wait("lgkm", ("F", "x", 0)))
    R = []
    todo = list(range(NPRE, 32))
    for k, f in enumerate(todo):
        e = lastuse[f - 16] if f >= 16 else 0
        dl = min(use[f] - LEAD + 4, gB - 5 - (31 - f))
        e = max(e, min(use[f] - LEAD - 8, dl - 4))
        assert dl >= e, (name, f, dl, e)
        if f < 16: ins = f"ds_read_b128 {ar(Fbuf(f))}, v{kreg} offset:{koff + f * 1024}"
        else: ins = f"ds_read_b128 {ar(Fbuf(f))}, v{vreg} offset:{voff + (f - 16) * 1024}"
        R.append(Op(ins, max(e, 0), max(dl, 0), tag=("F", "c", f)))
    for f, ins in enumerate(tail_reads(nreg, noff)):
        R.append(Op(ins, max(gB + 1, lastuse[f + 16]), min(n - 2, gB + 3 + 2 * f), tag=("F", "x", f)))
    D = []
    for q in range(8):
        pre = ["s_mov_b32 m0, s53", "s_nop 0"] if q == 4 else []
        D.append(Op(f"buffer_load_dwordx4 v240, s[20:23], s{54 if q < 4 else 55} offen offset:{(q % 4) * 1024} sc1 lds",
                    gB + 1, n - 2, pre=pre, tag="kv"))
    E = []; C = []
    for s in range(2):
        for qb in qp:
            b = Sreg(parp, qb, 2 * s)
            dl = firstp[(qb, s)] - 2
            es = [Op(f"v_exp_f32 v{b + r}, v{b + r}", 0, dl - 1) for r in range(8)]
            E += es
            C += [Op(f"v_cvt_pk_bf16_f32 v{Preg(qb, s) + k}, v{b + 2 * k}, v{b + 2 * k + 1}", 0, dl, [es[2 * k], es[2 * k + 1]]) for k in range(4)]
    M = []
    vals = []
    mq = qq[-2:]
    first = True
    for kb in range(4):
        for qb in qq:
            b = Sreg(parq, qb, kb)
            e0 = lastq[(qb, kb)] + 5
            if masked and qb in mq:
                for r in range(4):
                    kk = 64 * odd_q + 16 * kb + r - 16 * (qb & 1)
                    tm = TMP[r % 2]
                    M.append(Op(f"v_subrev_f32 v{tm}, {f2u(kk * BIG):#x}, v{VTMASK}", 0, n - 3))
                    M.append(Op(f"v_min_f32 v{b + r}, v{b + r}, v{tm}", e0, n - 3))
            if first:
                M.append(Op(f"v_max_f32 v{MX[0]}, v{b}, v{b + 1}", e0, n - 3)); first = False
            else:
                M.append(Op(f"v_max3_f32 v{MX[0]}, v{MX[0]}, v{b}, v{b + 1}", e0, n - 3))
            M.append(Op(f"v_max3_f32 v{MX[0]}, v{MX[0]}, v{b + 2}, v{b + 3}", e0, n - 3))
    M.append(Op(f"v_cmp_lt_f32 vcc, s{S_THR}, v{MX[0]}", 0, n - 2))
    X = []
    if swap:
        X = [Op(f"v_xor_b32 v{VCUR}, 0x10000, v{VCUR}", gB, n - 1), Op(f"v_xor_b32 v{VPREV}, 0x10000, v{VPREV}", gB, n - 1, [R[-1]])]
    k = schedule(S, [R, D, E, C, M, X], 0, n - 1, name=name)
    g = 2
    for x in ["s_add_u32 s54, s54, 0x8000", "s_add_u32 s55, s55, 0x8000", "s_add_u32 s52, s52, 0x8000",
              "s_and_b32 s52, s52, 0x1ffff", "s_add_u32 s53, s53, 0x8000", "s_and_b32 s53, s53, 0x1ffff", "s_mov_b32 m0, s52"] + list(mid_ops):
        while S.first[g]: g += 1
        S.add_first(g, x); g += 1
    assert g < gB
    for x in end_ops: S.add_last(n - 1, x)
    print(S.report(f"{name}(k={k})"))
    pre = [Ins(f"ds_read_b128 {ar(Fbuf(f))}, v0", ("F", "n", f)) for f in range(NPRE)] + [Wait("lgkm", ("F", "n", 0))]
    return [i.t for i in resolve(S.items(), pre)]

def allreduce4(p, op, src, t0, t1):
    p(f"v_mov_b32 v{t0}, v{src}")
    p(f"v_mov_b32 v{t1}, v{src}")
    p("s_nop 1")
    p(f"v_permlane32_swap_b32 v{t0}, v{t1}")
    p("s_nop 1")
    p(f"{op} v{t0}, v{t0}, v{t1}")
    p(f"v_mov_b32 v{t1}, v{t0}")
    p("s_nop 1")
    p(f"v_permlane16_swap_b32 v{t0}, v{t1}")
    p("s_nop 1")
    p(f"{op} v{t0}, v{t0}, v{t1}")

def rowmax(p, par, qb):
    b = Sreg(par, qb, 0)
    p(f"v_max3_f32 v{MX[1]}, v{b}, v{b + 1}, v{b + 2}")
    for k in range(3, 15, 2): p(f"v_max3_f32 v{MX[1]}, v{MX[1]}, v{b + k}, v{b + k + 1}")
    p(f"v_max_f32 v{MX[1]}, v{MX[1]}, v{b + 15}")
    allreduce4(p, "v_max_f32", MX[1], TMP[0], TMP[1])

def gen_rare(par, qbs):
    p = Prog()
    p("s_nop 15")
    for qb in qbs:
        rowmax(p, par, qb)
        p(f"v_max_f32 v{TMP[0]}, 0, v{TMP[0]}")
        p(f"v_sub_f32 v{TMP[1]}, 0, v{TMP[0]}")
        p(f"v_exp_f32 v{TMP[1]}, v{TMP[1]}")
        for r in range(4): p(f"v_sub_f32 v{NEGM(qb) + r}, v{NEGM(qb) + r}, v{TMP[0]}")
        for r in range(16): p(f"v_sub_f32 v{Sreg(par, qb, 0) + r}, v{Sreg(par, qb, 0) + r}, v{TMP[0]}")
        for r in range(4): p(f"v_mul_f32 v{LACC(qb) + r}, v{LACC(qb) + r}, v{TMP[1]}")
        for r in range(0, 32, 2):
            a = Oreg(qb, 0) + r
            p(f"v_accvgpr_read_b32 v{TMP[2]}, a{a}")
            p(f"v_accvgpr_read_b32 v{TMP[3]}, a{a + 1}")
            p(f"v_mul_f32 v{TMP[2]}, v{TMP[2]}, v{TMP[1]}")
            p(f"v_mul_f32 v{TMP[3]}, v{TMP[3]}, v{TMP[1]}")
            p(f"v_accvgpr_write_b32 a{a}, v{TMP[2]}")
            p(f"v_accvgpr_write_b32 a{a + 1}, v{TMP[3]}")
    p("s_nop 1")
    p("s_setpc_b64 s[62:63]")
    return [i.t for i in p.items]

def gen_f_kernel():
    p = Prog()
    p("s_cmp_ge_u32 s2, 256")
    p("s_cbranch_scc1 L_f_end")
    if DIAG:
        for k in range(14): p(f"s_mov_b32 s{66 + 2 * k}, 0")
        p.items.append(stamp(0, True)); p.items.append(stamp(1))
    p("s_load_dwordx4 s[36:39], s[0:1], 0")
    p("s_load_dwordx4 s[40:43], s[0:1], 24")
    p("s_load_dwordx2 s[44:45], s[0:1], 96")
    p("v_and_b32 v254, 63, v0")
    p("v_lshrrev_b32 v255, 6, v0")
    p("s_and_b32 s34, s2, 7")
    p("v_readfirstlane_b32 s28, v255")
    p("s_lshr_b32 s35, s2, 3")
    p("v_lshlrev_b32 v252, 7, v254")
    if CPF:
        p("s_getpc_b64 s[4:5]")
        p("L_pc0:")
        p("s_sub_u32 s4, s4, L_pc0-f_kernel")
        p("s_subb_u32 s5, s5, 0")
        p("s_mov_b32 s6, L_code_end-f_kernel")
        p("s_mov_b32 s7, 0x20000")
        p("v_lshrrev_b32 v244, 3, v254")
        p("v_lshl_or_b32 v244, v244, 27, v252")
        p("v_lshl_add_u32 v244, v255, 15, v244")
        p("s_lshl_b32 s63, s35, 10")
        p("buffer_load_dword v52, v244, s[4:7], s63 offen", "pf")
    p("v_lshlrev_b32 v240, 4, v254")
    p("v_lshrrev_b32 v244, 4, v254")
    p("v_and_b32 v245, 15, v254")
    p("v_lshlrev_b32 v245, 7, v245")
    p("v_lshl_add_u32 v253, v244, 13, v245")
    p("s_lshl_b32 s60, s35, 2")
    p("s_add_u32 s60, s60, s28")
    p("s_and_b32 s61, s34, 1")
    p("s_lshl_b32 s61, s61, 20")
    p("s_lshl_b32 s63, s60, 13")
    p("s_add_u32 s61, s61, s63")
    p("s_lshr_b32 s62, s34, 1")
    p("s_lshl_b32 s62, s62, 11")
    p("s_lshl_b32 s63, s60, 15")
    p("s_add_u32 s62, s62, s63")
    p("s_lshl_b32 s47, s2, 13")
    p("s_lshl_b32 s46, s28, 11")
    p("s_add_u32 s47, s47, s46")
    for r, v in ((10, 0x200000), (11, 0x20000), (14, 0x400000), (15, 0x20000), (26, 0x200000), (27, 0x20000)): p(f"s_mov_b32 s{r}, {v:#x}")
    p("s_waitcnt lgkmcnt(0)")
    if DIAG and not DIAG2: p.items.append(stamp(2))
    for d, sr in ((24, 36), (25, 37), (8, 38), (9, 39), (12, 40), (13, 41)): p(f"s_mov_b32 s{d}, s{sr}")
    p("buffer_load_dwordx4 v[0:3], v240, s[24:27], s47 offen" + NT, "ln")
    p("buffer_load_dwordx4 v[4:7], v240, s[24:27], s47 offen offset:1024" + NT, "ln")
    p("buffer_load_dword v246, v252, s[8:11], s61 offen" + NT, "pf")
    p("buffer_load_dword v247, v253, s[12:15], s62 offen" + NT, "pf")
    srd(p, 16, 42, 0x400000)
    srd(p, 20, 44, 0x10000000)
    p("s_load_dwordx2 s[36:37], s[0:1], 16")
    p("s_load_dwordx2 s[38:39], s[0:1], 40")
    p("s_load_dwordx4 s[40:43], s[0:1], 56")
    p("s_load_dwordx2 s[96:97], s[0:1], 72")
    p("s_load_dwordx2 s[98:99], s[0:1], 88")
    p("v_lshl_add_u32 v244, v255, 6, v254")
    p("v_cmp_eq_u32 vcc, 0, v244")
    p("v_mov_b32 v248, 0x7ffff000")
    p("v_mov_b32 v249, 1")
    p("v_mov_b32 v250, 0")
    p("v_cndmask_b32_e64 v248, v248, 0, vcc")
    p("s_and_b32 s47, s34, 1")
    p("s_lshl_b32 s47, s47, 2")
    p("s_and_b32 s46, s35, 3")
    p("s_add_u32 s47, s47, s46")
    p("s_lshr_b32 s3, s34, 1")
    p("s_lshl_b32 s3, s3, 3")
    p("s_lshr_b32 s46, s35, 2")
    p("s_add_u32 s3, s3, s46")
    p("s_lshl_b32 s46, s47, 2")
    p("s_add_u32 s46, s46, s28")
    p("s_lshl_b32 s31, s46, 16")
    p("s_lshl_b32 s94, s46, 15")
    p("s_lshl_b32 s47, s3, 20")
    p("s_add_u32 s94, s94, s47")
    p(f"s_add_u32 s94, s94, {WS_KV:#x}")
    p("s_lshl_b32 s95, s3, 8")
    p("s_lshl_b32 s3, s3, 2")
    p("s_lshl_b32 s29, s34, 2")
    p("s_lshr_b32 s46, s35, 3")
    p("s_add_u32 s29, s29, s46")
    p("s_and_b32 s30, s35, 7")
    p(f"s_mul_i32 s48, s28, 24576")
    p("s_lshl_b32 s49, s28, 12")
    p("s_lshl_b32 s50, s28, 6")
    p("s_add_u32 s50, s50, s95")
    p("s_and_b32 s45, s28, 1")
    p("s_lshr_b32 s52, s28, 1")
    p("s_lshl_b32 s53, s45, 13")
    p("s_lshl_b32 s54, s52, 12")
    p("s_add_u32 s53, s53, s54")
    p("s_lshl_b32 s54, s45, 6")
    p("s_lshl_b32 s55, s52, 19")
    p("s_add_u32 s55, s54, s55")
    p("s_add_u32 s54, s55, s95")
    p("s_lshl_b32 s56, s29, 8")
    p("s_add_u32 s65, s55, s56")
    p("s_sub_u32 s56, 15, s30")
    p("s_lshl_b32 s32, s56, 3")
    p("s_lshl_b32 s63, s28, 1")
    p("s_add_u32 s32, s32, s63")
    p("s_lshl_b32 s33, s30, 3")
    p("s_add_u32 s33, s33, s63")
    p("s_lshl_b32 s46, s32, 14")
    p("s_lshl_b32 s47, s33, 14")
    p(f"s_mul_i32 s32, s32, {ACT_ROW}")
    p(f"s_add_u32 s32, s32, {WS_ACT:#x}")
    p(f"s_mul_i32 s33, s33, {ACT_ROW}")
    p(f"s_add_u32 s33, s33, {WS_ACT:#x}")
    p("s_add_u32 s55, s29, 32")
    p("s_cmp_lt_u32 s29, 24")
    p("s_cselect_b32 s55, s55, s29")
    p(f"s_mul_i32 s64, s52, {64 * 3584}")
    p("s_lshl_b32 s63, s29, 6")
    p("s_add_u32 s35, s64, s63")
    p("s_lshl_b32 s63, s55, 6")
    p("s_add_u32 s64, s64, s63")
    p("s_lshl_b32 s51, s29, 20")
    p("s_add_u32 s51, s51, s49")
    p(f"s_add_u32 s51, s51, {WS_KV:#x}")
    p("s_lshl_b32 s56, s29, 10")
    p(f"s_add_u32 s56, s56, {128 * 1024}")
    p("s_add_u32 s100, s56, s32")
    p("s_add_u32 s101, s56, s33")
    p("s_lshl_b32 s61, s34, 8")
    p("s_lshr_b32 s63, s60, 1")
    p(f"s_mul_i32 s63, s63, {8 * 3584}")
    p("s_add_u32 s61, s61, s63")
    p("s_lshl_b32 s52, s34, 10")
    p("s_lshl_b32 s63, s60, 15")
    p("s_add_u32 s52, s52, s63")
    p("v_lshrrev_b32 v241, 3, v254")
    p("v_lshlrev_b32 v241, 13, v241")
    p("v_and_b32 v242, 7, v254")
    for n in range(8):
        p(f"v_xor_b32 v243, {n}, v242")
        p(f"v_lshl_add_u32 v{224 + n}, v243, 4, v241")
    p("v_and_b32 v241, 7, v254")
    p("v_bfe_u32 v242, v254, 3, 1")
    p("v_lshlrev_b32 v242, 7, v242")
    p("v_lshl_add_u32 v242, v241, 10, v242")
    p("v_add_u32 v242, s48, v242")
    p("v_lshrrev_b32 v243, 4, v254")
    for tt in range(2):
        p(f"v_add_u32 v244, {4 * tt}, v243")
        p("v_xor_b32 v244, v244, v241")
        p(f"v_lshl_add_u32 v{232 + tt}, v244, 4, v242")
    p("v_lshlrev_b32 v241, 9, v243")
    p("v_bfe_u32 v242, v254, 2, 2")
    p("v_lshl_add_u32 v241, v242, 6, v241")
    p("v_and_b32 v242, 3, v254")
    p("v_lshl_add_u32 v241, v242, 3, v241")
    p("v_and_b32 v242, 1, v243")
    p("v_lshl_add_u32 v234, v242, 5, v241")
    p("v_xor_b32 v237, 32, v234")
    for cf in range(2):
        p(f"v_add_u32 v{235 + 3 * cf}, 0x10000, v{234 + 3 * cf}")
        p(f"v_add_u32 v{236 + 3 * cf}, 0x20000, v{234 + 3 * cf}")
    p("v_lshrrev_b32 v244, 5, v254")
    p("v_lshlrev_b32 v251, 30, v244")
    p("v_lshlrev_b32 v244, 1, v244")
    p("v_and_b32 v245, 3, v254")
    p("v_xor_b32 v245, v245, v244")
    p("v_lshlrev_b32 v245, 4, v245")
    p("v_lshrrev_b32 v244, 2, v254")
    p("v_lshl_add_u32 v241, v244, 13, v245")
    p("v_mul_u32_u24 v244, 3584, v244")
    p("v_add_u32 v242, v244, v245")
    p("v_bfe_u32 v245, v254, 2, 3")
    p("v_mul_u32_u24 v245, 3584, v245")
    p("v_and_b32 v244, 1, v254")
    p("v_lshl_add_u32 v245, v244, 7, v245")
    p("v_bfe_u32 v244, v254, 1, 1")
    p("v_lshl_add_u32 v245, v244, 11, v245")
    p("v_or_b32 v245, v245, v251")
    p("v_and_b32 v243, 15, v254")
    p("v_lshlrev_b32 v243, 2, v243")
    p("v_lshlrev_b32 v48, 7, v254")
    p("v_lshl_add_u32 v48, v255, 5, v48")
    p("v_lshl_add_u32 v49, v255, 11, v240")
    p("v_lshrrev_b32 v50, 3, v254")
    p("v_lshlrev_b32 v50, 8, v50")
    p("v_and_b32 v51, 7, v254")
    p("v_lshl_add_u32 v50, v51, 4, v50")
    p("s_waitcnt lgkmcnt(0)")
    p("s_cmp_eq_u32 s45, 0")
    p("s_cselect_b32 s40, s40, s42")
    p("s_cselect_b32 s41, s41, s43")
    p("s_mov_b32 s24, s98")
    p("s_mov_b32 s25, s99")
    p("s_mov_b32 s26, 256")
    p("s_lshl_b32 s56, s55, 10")
    p(f"s_add_u32 s56, s56, {128 * 1024}")
    p("s_add_u32 s98, s56, s32")
    p("s_add_u32 s99, s56, s33")
    p("s_lshl_b32 s63, s2, 7")
    p(f"s_add_u32 s63, s63, {WS_FLAG:#x}")
    p.wait_vm("ln")
    if DIAG and not DIAG2: p.items.append(stamp(3))
    emit_ln(p)
    p("ds_write_b128 v48, v[40:43]")
    p("ds_write_b128 v48, v[44:47] offset:16")
    p("s_lshr_b32 s58, s2, 1")
    p("s_lshl_b32 s58, s58, 14")
    p("s_and_b32 s59, s2, 1")
    p("s_lshl_b32 s59, s59, 7")
    p("s_add_u32 s58, s58, s59")
    p("s_add_u32 s58, s58, s49")
    if WS_XN: p(f"s_add_u32 s58, s58, {WS_XN:#x}")
    p("s_waitcnt lgkmcnt(0)")
    p("s_barrier")
    p("ds_read_b128 v[40:43], v49")
    p("ds_read_b128 v[44:47], v49 offset:1024")
    p("s_lshr_b32 s59, s2, 4")
    p("s_lshl_b32 s59, s59, 2")
    p("s_waitcnt lgkmcnt(0)")
    p(f"buffer_store_dwordx4 v[40:43], v50, s[20:23], s58 offen{STF}", "xnst")
    p(f"buffer_store_dwordx4 v[44:47], v50, s[20:23], s58 offen offset:2048{STF}", "xnst")
    p(f"buffer_store_dword v250, v248, s[20:23], s63 offen{STF}", "zf")
    p("s_barrier")

    BLK = [6, 7, 8, 9, 6, 7, 8, 9, 0, 1, 2, 3, 4, 5, 6, 7, 8, 9, 0, 1, 2, 3, 6, 7, 8, 9, 4, 5, 6, 7, 8, 9]
    def dma_A(s):
        ops = []
        for n in range(8):
            pre = []
            if n % 4 == 0:
                pre = [f"s_add_u32 m0, s48, {(s % 3) * 8192 + (n // 4) * 4096}", f"s_add_u32 s56, s31, {s * 128 + (n // 4) * 4096}"]
            ops.append((pre, f"buffer_load_dwordx4 v{224 + n}, s[8:11], s56 offen offset:{(n % 4) * 1024} lds", ("A", s)))
        return ops
    def dma_W(n):
        ops = []
        kq = n % 4
        for q in range(4):
            m0 = "s53"
            if n < 8:
                pre = [f"s_add_u32 s57, s54, {(kq * 128 + q * 16) * 8192 + (n // 4) * 128 - q * 1024}"]
                ins = f"buffer_load_dwordx4 v241, s[12:15], s57 offen offset:{q * 1024} lds"
            elif n < 16:
                pre = [f"s_add_u32 s57, s50, {((n - 8) * 64 + q * 16) * 8192 - q * 1024}"]; m0 = "s49"
                ins = f"buffer_load_dwordx4 v241, s[16:19], s57 offen offset:{q * 1024} lds"
            elif n < 24:
                pre = [f"s_add_u32 s57, s{35 if n < 20 else 64}, {(kq * 128 + q * 16) * 3584 - q * 1024}"]
                ins = f"buffer_load_dwordx4 v242, s[12:15], s57 offen offset:{q * 1024} lds"
            else:
                pre = [f"s_add_u32 s57, s65, {(kq * 128 + q * 16) * 8192 - q * 1024 + (128 if n >= 28 else 0)}"]
                ins = f"buffer_load_dwordx4 v241, s[8:11], s57 offen offset:{q * 1024} lds"
            if q == 0: pre = [f"s_add_u32 m0, {m0}, {BLK[n] * 16384}"] + pre
            ops.append((pre, ins, ("L", n)))
        return ops
    def kv_half(tile, part):
        ops = []
        for q in range(4):
            pre = []
            if q == 0: pre = [f"s_add_u32 m0, s49, {tile * 32768 + part * 16384}", f"s_add_u32 s57, s51, {tile * 32768 + part * 16384}"]
            ops.append((pre, f"buffer_load_dwordx4 v240, s[20:23], s57 offen offset:{q * 1024} sc1 lds", ("kv", tile, part)))
        return ops
    def now(ops):
        for pre, ins, tag in ops:
            for x in pre: p(x)
            p(ins, tag)
    now(dma_W(0) + dma_A(0) + dma_A(1) + dma_W(1) + dma_A(2))

    groups = []
    def accT(base, c, cf, rb): return base + (c * 4 + rb) * 8 + cf * 4
    def accV(base, c, cf, rb): return base + ((c * 2 + cf) * 2 + (rb >> 1)) * 8 + (rb & 1) * 4
    def add_double(seg0, bases):
        for s in range(8):
            for tt in range(2):
                for c in range(4):
                    for cf in range(2):
                        groups.append(dict(off=BLK[seg0 + s] * 16384 + c * 4096 + tt * 2048, cf=cf, t=2 * s + tt,
                                           acc=[accV(bases[c >> 1], c & 1, cf, rb) for rb in range(4)], vt=True))
    def add_single(seg0, base):
        for q in range(4):
            for tq in range(4):
                for c in range(2):
                    for cf in range(2):
                        groups.append(dict(off=BLK[seg0 + q] * 16384 + c * 8192 + tq * 2048, cf=cf, t=4 * q + tq,
                                           acc=[accT(base, c, cf, rb) for rb in range(4)], vt=False))
    add_single(0, 0); add_single(4, 64); add_double(8, [128, 0])
    add_single(16, 64); add_single(20, 128); add_single(24, 0); add_single(28, 64)
    NG = len(groups)
    mf = []
    for n, G in enumerate(groups):
        w = vr(192 + 4 * (n % 8))
        for rb in range(4):
            a = ar((rb * 16 + G["t"]) * 4)
            d = vr(G["acc"][rb])
            c = 0 if G["t"] == 0 else d
            mf.append(f"{MF} {d}, {a}, {w}, {c}" if G["vt"] else f"{MF} {d}, {w}, {a}, {c}")
    S = Sched16(mf)
    def w_reads(n):
        G = groups[n]
        out = []
        for hf in range(2):
            off = G["off"] + hf * 256
            d = 192 + 4 * (n % 8) + 2 * hf
            out.append(f"ds_read_b64_tr_b16 v[{d}:{d + 1}], v{234 + 3 * G['cf'] + (off >> 16)} offset:{off & 0xffff}")
        return out
    def a_reads(s):
        return [f"ds_read_b128 {ar((rb * 16 + 2 * s + tt) * 4)}, v{232 + tt} offset:{(s % 3) * 8192 + rb * 256}" for tt in range(2) for rb in range(4)]
    RA = 5
    if DIAG and not DIAG2: p.items.append(stamp(4))
    p.wait_vm(("A", 0))
    p("s_barrier")
    if DIAG and not DIAG2: p.items.append(stamp(5))
    for x in a_reads(0): p(x, ("Ar", 0))
    for n in range(RA):
        for x in w_reads(n): p(x, ("W", n))
    p.wait_lgkm(("W", 0))
    for n in range(RA, NG):
        k = n % 16
        if k <= 13: g = 4 * (n - RA)
        elif k == 14: g = 4 * (n - 6) + 2
        else: g = 4 * (n - 6)
        for i, x in enumerate(w_reads(n)): S.add_mem(g + i, x, ("W", n))
    for n in range(1, NG): S.add_first(4 * n - 1, Wait("lgkm", ("W", n)))
    for s in range(1, 8):
        g = 32 * s - 22
        S.add_first(g, Wait("vm", ("A", s)))
        for i, x in enumerate(a_reads(s)): S.add_mem(g + [0, 0, 1, 1, 4, 4, 5, 5][i], x, ("Ar", s))
        S.add_first(32 * s - 10, Wait("lgkm", ("Ar", s)))
    def gB(n): return 64 * n + 4 * 11
    for n in range(31):
        tags = [("L", n + 1)]
        if n == 0: tags.append("xnst")
        if n == KVPUB: tags.append("kvst")
        S.add_first(gB(n) - 2, Ins("s_waitcnt lgkmcnt(0)"))
        S.add_first(gB(n), Wait("vm", tags))
        S.add_first(gB(n), "s_barrier")
    def win(n): return gB(n - 1) + 1
    LD = []
    def ld(ops, e, pace=1):
        for i, (pre, ins, tag) in enumerate(ops): LD.append(Op(ins, e + i * pace, 2040, pre=pre, tag=tag))
    one = lambda ins, tag, pre=(): [([], x, None) for x in pre] + [([], ins, tag)]
    ld(dma_A(3), 0); ld(dma_W(2), 8); ld(dma_A(4), 22)
    ld(dma_A(5), 54); ld(dma_W(3), 62); ld(dma_A(6), 86); ld(dma_A(7), 118); ld(dma_W(4), 126); ld(dma_W(5), 140, 4)
    ld(one("buffer_atomic_add v249, v248, s[24:27], s59 offen offset:128", "pub"), win(3))
    ld(one("buffer_load_dword v246, v253, s[16:19], s62 offen" + NT, "pf"), win(3))
    ld(dma_W(6), win(3), 2); ld(dma_W(7), win(4), 2)
    for n in range(8, 14): ld(dma_W(n), VW0 + (n - 8) * 16, 3)
    ld(dma_W(14), win(5), 3); ld(dma_W(15), win(6), 3)
    ld(one("buffer_load_dword v244, v243, s[24:27], 0 offen offset:128 sc1", "poll"), 0)
    ld(one("buffer_load_dword v250, v245, s[12:15], s61 offen" + NT, "pf", ["s_mov_b32 s12, s40", "s_mov_b32 s13, s41", f"s_mov_b32 s14, {512 * 3584}"]), win(7))
    print("ld1", schedule(S, [LD], 0, 511, base_cap=3), "last", LD[-1].g, [o.g for o in LD if o.tag in ("pf", "poll")])
    gc = 512 + 12
    S.add_first(gc, Wait("vm", "poll"))
    S.add_valu(gc, "v_cmp_gt_u32 vcc, 16, v244")
    S.add_valu(gc, "v_add_u32 v247, 0x4000, v240")
    S.add_last(gc + 2, "s_cbranch_vccnz L_xnwait")
    S.add_last(gc + 2, "L_xnok:")
    LD = []
    for n in range(16, 24): ld(dma_W(n), win(n - 7), WP)
    S.add_valu(64 * 12, "v_and_b32 v253, 0xfffffbff, v253")
    S.add_valu(64 * 12 + 1, "v_bfe_u32 v246, v254, 3, 1")
    S.add_valu(64 * 12 + 2, "v_lshl_or_b32 v253, v246, 30, v253")
    ld(one("buffer_load_dword v244, v253, s[8:11], s52 offen" + NT, "pf", ["s_mov_b32 s8, s36", "s_mov_b32 s9, s37", "s_mov_b32 s10, 0x400000"]), win(17))
    for n in range(24, 32): ld(dma_W(n), win(n - 5), WP)
    S.add_valu(64 * 26, "v_mov_b32 v243, 0")
    ld(one("buffer_load_dword v244, v243, s[24:27], s59 offen sc1", "poll2", ["s_lshl_b32 s59, s29, 2"]), 64 * 27)
    gc = win(28) + 1
    ld(kv_half(0, 0) + kv_half(0, 1) + kv_half(1, 0) + kv_half(1, 1) + kv_half(2, 0) + kv_half(2, 1), gc + 4, 4)
    ld(kv_half(3, 0), win(29), 4); ld(kv_half(3, 1), win(30), 4)
    S.add_first(gc, Wait("vm", "poll2"))
    S.add_valu(gc, "v_cmp_gt_u32 vcc, 8, v244")
    S.add_last(gc + 2, "s_cbranch_vccnz L_kvwait")
    S.add_last(gc + 2, "L_kvok:")
    print("ld2", schedule(S, [LD], 512, 2046, base_cap=3), "last", LD[-1].g)
    XL = []
    for t in range(16):
        for rb in range(4):
            pre = []
            if t % 4 == 0 and rb % 2 == 0: pre = [f"s_add_u32 s{62 + rb // 2}, s{46 + rb // 2}, {WS_XN + t * 1024}"]
            vo = 240 if rb % 2 == 0 else 247
            XL.append(Op(f"buffer_load_dwordx4 {ar((rb * 16 + t) * 4)}, v{vo}, s[20:23], s{62 + rb // 2} offen offset:{(t % 4) * 1024} sc1",
                         512 + 32 * t + 32 + (6 * rb if t < 15 else 0), 512 + 32 * t + 64, pre=pre, tag=("X", t)))
    for t in range(16): S.add_first(1024 + 16 * t - 2, Wait("vm", ("X", t)))
    def kv_epi(kind, u, base, g0, g1, st0):
        ops = []
        for k8 in range(8):
            R = base + 8 * k8
            if kind == "K":
                c, rb = k8 // 4, k8 % 4
                off = rb * 4096 + (2 * u + c) * 1024
                for r in range(8): ops.append(Op(f"v_mul_f32 v{R + r}, {f2u(KSCALE):#x}, v{R + r}", g0, g1))
            else:
                db, s = 4 * u + k8 // 2, k8 % 2
                off = 16384 + s * 8192 + db * 1024
            cv = [Op(f"v_cvt_pk_bf16_f32 v{R + k}, v{R + 2 * k}, v{R + 2 * k + 1}", g0, g1) for k in range(4)]
            ops += cv
            ops.append(Op(f"buffer_store_dwordx4 {vr(R)}, v240, s[20:23], s95 offen offset:{off & 4095}{STF}", max(g0, st0[0] + int(k8 * st0[1])), g1, [cv[-1]],
                          pre=[f"s_add_u32 s95, s94, {off & ~4095}"], tag="kvst"))
        return ops
    C0 = -2.0 * math.sqrt(2.0 / math.pi) * LOG2E
    C1 = C0 * 0.044715
    S.add_valu(64 * 17, f"v_mov_b32 v232, {f2u(C0):#x}")
    S.add_valu(64 * 17 + 1, f"v_mov_b32 v233, {f2u(C1):#x}")
    S.add_valu(64 * 17 + 2, f"v_add_u32 v246, {ACT_ROW}, v240")
    def gu_epi(base, psg, g0, g1, gst):
        st = [[], []]; sto = []
        for rb in range(4):
            G = base + rb * 8; U = base + 32 + rb * 8
            L = st[rb & 1]
            for r in range(8):
                t = 224 + (r % 4) + 4 * (rb & 1)
                o4 = Op(f"v_exp_f32 v{t}, v{t}", g0, g1)
                o7 = Op(f"v_rcp_f32 v{t}, v{t}", g0, g1)
                L += [Op(f"v_mul_f32 v{t}, v{G + r}, v{G + r}", g0, g1), Op(f"v_fma_f32 v{t}, v{t}, v233, v232", g0, g1),
                      Op(f"v_mul_f32 v{t}, v{t}, v{G + r}", g0, g1), o4, Op(f"v_mul_f32 v{G + r}, v{G + r}, v{U + r}", g0, g1),
                      Op(f"v_add_f32 v{t}, 1.0, v{t}", g0, g1), o7, Op(f"v_mul_f32 v{G + r}, v{G + r}, v{t}", g0, g1, [o7])]
            cv = [Op(f"v_cvt_pk_bf16_f32 v{G + k}, v{G + 2 * k}, v{G + 2 * k + 1}", g0, g1 - 2) for k in range(4)]
            L += cv
            sto.append(Op(f"buffer_store_dwordx4 {vr(G)}, v{240 if rb % 2 == 0 else 246}, s[20:23], s{psg + rb // 2} offen{STF}", gst + 30 * rb, g1, [cv[-1]], tag="hst"))
        return st, sto
    def q_epi(base, u, g0, g1, gmove):
        cvs = []; mv = []
        for c in range(2):
            for qb in range(4):
                R = base + (c * 4 + qb) * 8
                for k in range(4):
                    o = Op(f"v_cvt_pk_bf16_f32 v{R + k}, v{R + 2 * k}, v{R + 2 * k + 1}", g0, g1)
                    cvs.append(o)
                    mv.append(Op(f"v_accvgpr_write_b32 a{Qreg(qb, 2 * u + c) + k}, v{R + k}", gmove, g1, [o]))
        return cvs, mv
    PH = [256 * k for k in range(9)]
    PE = 2048
    kvs = kv_epi("K", 0, 0, PH[1] + 6, PH[2] - 3, (PH[1] + 16, STP)) + kv_epi("K", 1, 64, PH[2] + 6, PH[4] - 3, (PH[2] + 16, STPK1)) + \
          kv_epi("V", 0, 128, PH[4] + 6, PH[5] - 3, (PH[4] + 12, STP)) + kv_epi("V", 1, 0, PH[4] + 6, PH[6] - 3, (PH[4] + 12 + 8 * STP, STP))
    print("kv epi", schedule(S, [XL, kvs], PH[1], PH[6]), "last store", kvs[-1].g, "pub at", gB(KVPUB))
    assert kvs[-1].g < gB(KVPUB)
    st0, so0 = gu_epi(64, 100, PH[5] + 6, PH[7] - 3, PH[6])
    st1, so1 = gu_epi(128, 98, PH[6] + 6, PE - 2, PH[6] + 130)
    q0c, q0m = q_epi(0, 0, PH[7] + 6, PE - 2, PH[7] + 130)
    print("gu epi", schedule(S, [st0[0] + st1[0], st0[1] + st1[1], so0 + so1, q0c, q0m], PH[5], PE - 1))
    S.add_mem(gB(KVPUB) + 2, "buffer_atomic_add v249, v248, s[24:27], s3 offen", "pub")
    if DIAG and not DIAG2:
        S.add_first(512, stamp(6)); S.add_first(1024, stamp(7)); S.add_first(PE - 1, stamp(8))
    if DIAG2:
        for k, g in enumerate(DIAG2): S.add_first(g, stamp(2 + k))
    print(S.report("gemm")[:600])
    its = S.items()
    DROP = os.environ.get("DROP", "").split(",")
    def keep(i):
        if isinstance(i, Ins):
            tg = i.tag[0] if isinstance(i.tag, tuple) else i.tag
            if tg in DROP and tg: return False
        if isinstance(i, Wait):
            tags = i.tag if isinstance(i.tag, list) else [i.tag]
            tags = [t for t in tags if (t[0] if isinstance(t, tuple) else t) not in DROP]
            if not tags: return False
            i.tag = tags
        return True
    p.extend([i for i in its if keep(i)])
    p("v_and_b32 v252, 0xfff, v252")
    p("v_or_b32 v252, v252, v251")
    p("s_mov_b32 s4, s38")
    p("s_mov_b32 s5, s39")
    p("s_mov_b32 s6, 0x400000")
    p("s_mov_b32 s7, 0x20000")
    p("s_lshl_b32 s59, s2, 2")
    p("s_add_u32 s59, s59, s28")
    p("s_lshl_b32 s50, s59, 12")
    p("buffer_load_dword v250, v252, s[4:7], s50 offen", "pf")
    p("s_mov_b32 s4, s96")
    p("s_mov_b32 s5, s97")
    p(f"s_mov_b32 s6, {1792 * 1024}")
    p("buffer_load_dword v251, v252, s[4:7], s50 offen", "pf")

    p(f"v_mov_b32 v{VCUR}, v240")
    p(f"v_add_u32 v{VPREV}, 0x10000, v240")
    p("v_and_b32 v241, 15, v254")
    p("v_lshl_add_u32 v241, v255, 5, v241")
    p("v_lshrrev_b32 v242, 4, v254")
    p("v_lshlrev_b32 v242, 2, v242")
    p("v_sub_u32 v241, v241, v242")
    p("v_cvt_f32_i32 v241, v241")
    p("v_add_f32 v241, 0.5, v241")
    p(f"v_mul_f32 v{VTM}, {f2u(BIG):#x}, v241")
    p(f"s_mov_b32 s{S_THR}, {f2u(THR):#x}")
    p("s_mov_b32 s52, s49")
    p(f"s_add_u32 s53, s49, {3 * 32768 + 16384}")
    p(f"s_add_u32 s54, s51, {4 * 32768}")
    p(f"s_add_u32 s55, s51, {3 * 32768 + 16384}")
    p.wait_vm(("kv", 1, 0))
    p("s_barrier")
    order = [kb * 4 + t for t in range(4) for kb in range(4)]
    for f in order: p(f"ds_read_b128 {ar(Fbuf(f))}, v{VCUR} offset:{f * 1024}", ("K0", f))
    for k in range(4): p(f"v_mov_b32 v{ONES + k}, 0x3f803f80")
    p(f"s_mov_b32 s26, {f2u(-2.0 ** 120):#x}")
    p(f"s_mov_b32 s27, {f2u(2.0 ** 120):#x}")
    p("s_cmp_eq_u32 s30, 0")
    p("s_cselect_b32 s60, s26, s27")
    p(f"v_max_f32 v{VTMASK}, s60, v{VTM}")
    p.wait_lgkm(("K0", 0))
    mf = []
    for f in order:
        kb, t = f // 4, f % 4
        for qb in range(4):
            d = Sreg(0, qb, kb)
            mf.append(f"{MF} {vr(d)}, {ar(Fbuf(f))}, {ar(Qreg(qb, t))}, {0 if t == 0 else vr(d)}")
    S = Sched16(mf)
    for i, f in enumerate(order[1:]): S.add_first(4 * i + 3, Wait("lgkm", ("K0", f)))
    q1c, q1m = q_epi(64, 1, 0, 29, 0)
    for o in q1c[16:] + q1m[16:]: o.d = 45
    schedule(S, [q1c, q1m], 0, 63)
    p.extend(S.items())
    p("s_barrier")
    p("s_mov_b32 m0, s52")
    for f, ins in enumerate(tail_reads(VCUR, 32768)): p(ins)
    for qq_ in range(4): p(f"buffer_load_dwordx4 v240, s[20:23], s54 offen offset:{qq_ * 1024} sc1 lds", "kv")
    for qb in (2, 3):
        for kb in range(4):
            b = Sreg(0, qb, kb)
            for r in range(4):
                kk = 16 * kb + r - 16 * (qb & 1)
                p(f"v_subrev_f32 v{TMP[r % 2]}, {f2u(kk * BIG):#x}, v{VTMASK}")
                p(f"v_min_f32 v{b + r}, v{b + r}, v{TMP[r % 2]}")
    for qb in range(4):
        rowmax(p, 0, qb)
        for r in range(4): p(f"v_sub_f32 v{NEGM(qb) + r}, 0, v{TMP[0]}")
        for r in range(16): p(f"v_sub_f32 v{Sreg(0, qb, 0) + r}, v{Sreg(0, qb, 0) + r}, v{TMP[0]}")
    p("s_waitcnt lgkmcnt(0)")
    pro = [i.t for i in resolve(p.items)]

    stubs = []
    def check(site, par, dual):
        stubs.append((site, par, dual))
        return [f"s_cbranch_vccnz L_stub_{site}", f"L_ret_{site}:"]
    def it_odd(name, tq, tp, masked):
        return gen_iter(name, tq, tp, 0, masked, 0, VCUR, 0, VPREV, 49152, VCUR, 32768, end_ops=check(name, 0, tq == "D"))
    def it_even(name, tq, tp, masked, extra_end=(), first_pv=False):
        return gen_iter(name, tq, tp, 1, masked, 1, VCUR, 32768, VCUR, 16384, VPREV, 0, first_pv=first_pv,
                        end_ops=check(name, 1, tq == "D") + list(extra_end[2:]), swap=True, mid_ops=extra_end[:2])
    seg = {}
    seg["P"] = pro + it_even("it0", "D", "D", True, first_pv=True)
    seg["UDD"] = it_odd("uddA", "D", "D", False) + it_even("uddB", "D", "D", False, ["s_sub_u32 s24, s24, 1", "s_cmp_lg_u32 s24, 0", "s_cbranch_scc1 L_udd"])
    seg["UDDm"] = it_odd("uddmA", "D", "D", True) + it_even("uddmB", "D", "D", True)
    seg["UDSm"] = it_odd("udsA", "S", "D", True) + it_even("udsB", "S", "S", True)
    seg["USS"] = it_odd("ussA", "S", "S", False) + it_even("ussB", "S", "S", False, ["s_sub_u32 s24, s24, 1", "s_cmp_lg_u32 s24, 0", "s_cbranch_scc1 L_uss"])
    seg["USSm"] = it_odd("ussmA", "S", "S", True) + it_even("ussmB", "S", "S", True)
    q = Prog()
    for f in range(16): q(f"ds_read_b128 {ar(Fbuf(16 + f))}, v{VPREV} offset:{49152 + f * 1024}", ("VE", f))
    for qb in range(2):
        b = Sreg(1, qb, 0)
        for r in range(16): q(f"v_exp_f32 v{b + r}, v{b + r}")
    for qb in range(2):
        b = Sreg(1, qb, 0)
        for k in range(8): q(f"v_cvt_pk_bf16_f32 v{Preg(qb, 0) + k}, v{b + 2 * k}, v{b + 2 * k + 1}")
    q("s_waitcnt lgkmcnt(0)")
    mf = []
    for s in range(2):
        for qb in range(2): mf.append(f"{MF} {vr(LACC(qb))}, {vr(ONES)}, {vr(Preg(qb, s))}, {vr(LACC(qb))}")
        for db in range(8):
            for qb in range(2):
                mf.append(f"{MF} {ar(Oreg(qb, db))}, {ar(Fbuf(16 + s * 8 + db))}, {vr(Preg(qb, s))}, {ar(Oreg(qb, db))}")
    def o_epi(qb):
        ops = [f"v_rcp_f32 v{TMP[qb]}, v{LACC(qb)}"]
        for t in range(4):
            R = (qb * 4 + t) * 8
            a = Oreg(qb, 2 * t)
            ops += [f"v_accvgpr_read_b32 v{R + k}, a{a + k}" for k in range(8)]
            ops += [f"v_mul_f32 v{R + k}, v{R + k}, v{TMP[qb]}" for k in range(8)]
            ops += [f"v_cvt_pk_bf16_f32 v{R + k}, v{R + 2 * k}, v{R + 2 * k + 1}" for k in range(4)]
            ops.append(f"buffer_store_dwordx4 {vr(R)}, v{240 if qb % 2 == 0 else 246}, s[20:23], s{100 + qb // 2} offen offset:{t * 1024}{STF}")
        return ops
    q("s_lshl_b32 s56, s29, 12")
    q("s_add_u32 s100, s56, s32")
    q("s_add_u32 s101, s56, s33")
    S = Sched16(mf)
    eo = o_epi(2) + o_epi(3)
    ne = 0
    for g in range(len(mf)):
        while ne < len(eo) and S.load(g) + cost(eo[ne]) <= 2:
            if is_vm(eo[ne]):
                if S.valu[g]: break
                S.add_mem(g, eo[ne])
            else: S.add_valu(g, eo[ne])
            ne += 1
    q.extend(S.items())
    if DIAG and not DIAG2: q.items.append(stamp(10))
    for x in eo[ne:] + o_epi(0) + o_epi(1): q(x)
    if DIAG:
        if not DIAG2: q.items.append(stamp(11))
        q("s_waitcnt vmcnt(0)")
        q.items.append(stamp(12)); q.items.append(stamp(13, True))
        dump_stamps(q, 0, 28, 20)
    seg["E"] = [i.t for i in resolve(q.items)]

    out = list(seg["P"])
    if DIAG and not DIAG2: out.append(stamp(9).t)
    out += ["s_cmp_eq_u32 s30, 0", "s_cbranch_scc1 L_uds", "s_sub_u32 s24, s30, 1", "s_cmp_eq_u32 s24, 0", "s_cbranch_scc1 L_uddm"]
    out += [".p2align 3", "L_udd:"] + seg["UDD"]
    out += ["L_uddm:", f"v_mov_b32 v{VTMASK}, v{VTM}"] + seg["UDDm"]
    out += ["L_uds:", "s_cmp_eq_u32 s30, 7", "s_cselect_b32 s60, s26, s27", f"v_max_f32 v{VTMASK}, s60, v{VTM}"] + seg["UDSm"]
    out += ["s_cmp_eq_u32 s30, 7", "s_cbranch_scc1 L_fin", "s_lshl_b32 s24, s30, 1", "s_sub_u32 s24, 13, s24"]
    out += [".p2align 3", "L_uss:"] + seg["USS"]
    out += [f"v_mov_b32 v{VTMASK}, v{VTM}"] + seg["USSm"]
    out += ["L_fin:"] + seg["E"]
    out += ["L_f_end:", "s_endpgm"]
    out += ["L_xnwait:", "s_mov_b32 s44, 0x40000", "L_xnspin:", "s_sub_u32 s44, s44, 1", "s_cbranch_scc1 L_xnok", "s_sleep 2",
            "buffer_load_dword v244, v243, s[24:27], 0 offen offset:128 sc1", "s_waitcnt vmcnt(0)",
            "v_cmp_gt_u32 vcc, 16, v244", "s_cbranch_vccnz L_xnspin", "s_branch L_xnok"]
    out += ["L_kvwait:", "s_mov_b32 s44, 0x40000", "L_kvspin:", "s_sub_u32 s44, s44, 1", "s_cbranch_scc1 L_kvok", "s_sleep 2",
            "buffer_load_dword v244, v243, s[24:27], s59 offen sc1", "s_waitcnt vmcnt(0)",
            "v_cmp_gt_u32 vcc, 8, v244", "s_cbranch_vccnz L_kvspin", "s_branch L_kvok"]
    for site, par, dual in stubs:
        out += [f"L_stub_{site}:", f"s_call_b64 s[62:63], L_rare_{par}{'d' if dual else 's'}", f"s_branch L_ret_{site}"]
    for par in range(2):
        for dual in (True, False):
            out += [f"L_rare_{par}{'d' if dual else 's'}:"] + gen_rare(par, [0, 1, 2, 3] if dual else [0, 1])
    for path in (["P", "UDD", "UDD", "UDDm", "UDSm", "USS", "USS", "USSm", "E"], ["UDDm", "UDSm", "E"]):
        tx = []
        for k in path: tx += seg[k]
        for e in lint(tx, "f")[:40]: print(e)
    return out

KVPUB = int(os.environ.get("KVPUB", "24"))
STP = float(os.environ.get("STP", "29"))
STPK1 = float(os.environ.get("STPK1", "50"))
VW0 = int(os.environ.get("VW0", "250"))
WP = int(os.environ.get("WP", "14"))
CPF = int(os.environ.get("CPF", "1"))
if __name__ == "__main__":
    print(len(gen_f_kernel()))
```

```python
from asmlib import *
from sched16 import *
from gen_f import MF, WS_ACT, WS_PART, WS_FLAG, ACT_ROW, LOG2E, vr, ar, srd
import os

def gen_o_kernel():
    p = Prog()
    p("s_cmp_ge_u32 s2, 256")
    p("s_cbranch_scc1 L_o_end")
    if DIAG:
        for k in range(14): p(f"s_mov_b32 s{66 + 2 * k}, 0")
        p.items.append(stamp(0, True)); p.items.append(stamp(1))
    p("s_load_dwordx2 s[36:37], s[0:1], 0")
    p("s_load_dwordx2 s[38:39], s[0:1], 40")
    p("s_load_dwordx4 s[40:43], s[0:1], 72")
    p("s_load_dwordx2 s[44:45], s[0:1], 96")
    p("v_and_b32 v254, 63, v0")
    p("v_lshrrev_b32 v255, 6, v0")
    p("v_lshlrev_b32 v240, 4, v254")
    p("v_readfirstlane_b32 s28, v255")
    p("v_cmp_eq_u32 vcc, 0, v0")
    p("v_mov_b32 v248, 0x7ffff000")
    p("s_and_b32 s34, s2, 7")
    p("v_cndmask_b32_e64 v248, v248, 0, vcc")
    p("s_lshr_b32 s35, s2, 3")
    p("s_lshr_b32 s29, s34, 1")
    p("s_and_b32 s30, s34, 1")
    p("s_lshl_b32 s30, s30, 3")
    p("s_lshr_b32 s46, s35, 2")
    p("s_add_u32 s30, s30, s46")
    p("s_and_b32 s31, s35, 3")
    p("s_lshl_b32 s46, s30, 3")
    p("s_lshl_b32 s47, s28, 1")
    p("s_add_u32 s46, s46, s47")
    p(f"s_mul_i32 s46, s46, {ACT_ROW}")
    p(f"s_add_u32 s46, s46, {WS_ACT:#x}")
    p(f"s_mul_i32 s47, s29, {14 * 1024}")
    p("s_add_u32 s32, s46, s47")
    p(f"s_add_u32 s32, s32, {128 * 1024}")
    p("s_lshl_b32 s47, s29, 15")
    p("s_add_u32 s33, s46, s47")
    p(f"v_add_u32 v241, {ACT_ROW}, v240")
    p("s_lshl_b32 s46, s31, 8")
    p("s_lshl_b32 s47, s28, 13")
    p("s_add_u32 s46, s46, s47")
    p(f"s_mul_i32 s47, s29, {14 * 32 * 1024}")
    p("s_add_u32 s48, s46, s47")
    p("s_lshl_b32 s47, s29, 20")
    p("s_add_u32 s49, s46, s47")
    p("s_lshl_b32 s50, s28, 11")
    p("v_lshrrev_b32 v244, 4, v254")
    p("v_and_b32 v245, 15, v254")
    p("v_lshlrev_b32 v246, 1, v244")
    p("v_xor_b32 v245, v245, v246")
    p("v_lshlrev_b32 v244, 10, v244")
    p("v_lshl_add_u32 v242, v245, 4, v244")
    p("v_xor_b32 v243, 0x80, v242")
    p(f"v_add_u32 v243, {4096 - 1024}, v243")
    p("v_lshrrev_b32 v244, 2, v254")
    p("v_and_b32 v245, 7, v244")
    p("v_lshlrev_b32 v244, 8, v244")
    p("v_and_b32 v246, 3, v254")
    p("v_lshl_add_u32 v244, v246, 3, v244")
    for c in range(8):
        p(f"v_xor_b32 v246, {c}, v245")
        p(f"v_lshl_add_u32 v{208 + c}, v246, 5, v244")
        p(f"v_add_u32 v{216 + c}, 0x10000, v{208 + c}")
    p("s_lshl_b32 s51, s30, 2")
    p("s_add_u32 s51, s51, s31")
    p("s_lshl_b32 s52, s51, 18")
    p(f"s_add_u32 s52, s52, {WS_PART:#x}")
    p("s_lshl_b32 s46, s28, 16")
    p("s_lshl_b32 s47, s29, 13")
    p("s_add_u32 s53, s52, s46")
    p("s_add_u32 s53, s53, s47")
    p("s_lshl_b32 s46, s29, 16")
    p("s_lshl_b32 s47, s28, 11")
    p("s_add_u32 s54, s52, s46")
    p("s_add_u32 s54, s54, s47")
    p("s_lshl_b32 s55, s51, 9")
    p(f"s_add_u32 s55, s55, {WS_FLAG:#x}")
    p("s_lshl_b32 s46, s29, 7")
    p("s_add_u32 s56, s55, s46")
    p("v_and_b32 v247, 3, v254")
    p("v_lshlrev_b32 v247, 7, v247")
    p("v_and_b32 v244, 15, v254")
    p("v_lshlrev_b32 v244, 10, v244")
    p("v_lshrrev_b32 v245, 4, v254")
    p("v_lshl_add_u32 v238, v245, 3, v244")
    p("v_add_u32 v239, 0x4000, v238")
    p("s_lshl_b32 s46, s30, 17")
    p("s_lshl_b32 s47, s29, 15")
    p("s_add_u32 s46, s46, s47")
    p("s_lshl_b32 s47, s31, 8")
    p("s_add_u32 s46, s46, s47")
    p("s_lshl_b32 s47, s28, 6")
    p("s_add_u32 s57, s46, s47")
    p("s_waitcnt lgkmcnt(0)")
    srd(p, 24, 36, 0x200000)
    srd(p, 8, 38, 0x400000)
    srd(p, 12, 40, 1792 * 1024)
    srd(p, 16, 42, 0x200000)
    srd(p, 20, 44, 0x10000000)
    NK = 46; NC = 23
    PD = int(os.environ.get("OPD", "6"))
    def vm_ops(n):
        gp = n < 14
        j = n if gp else n - 14
        ops = []
        pre = [f"s_add_u32 m0, s50, {(n % 16) * 8192}", f"s_add_u32 s58, s{48 if gp else 49}, {j * 32768}"]
        wsrd = "s[12:15]" if gp else "s[8:11]"
        ops.append((pre, f"buffer_load_dwordx4 v242, {wsrd}, s58 offen lds", ("c", n // 2)))
        ops.append(([], f"buffer_load_dwordx4 v243, {wsrd}, s58 offen offset:1024 lds", ("c", n // 2)))
        pre = [f"s_add_u32 s59, s{32 if gp else 33}, {j * 1024}"] if j % 2 == 0 else []
        a = (n % 16) * 8
        ops.append((pre, f"buffer_load_dwordx4 {ar(a)}, v240, s[20:23], s59 offen offset:{(j % 2) * 1024}", ("c", n // 2)))
        ops.append(([], f"buffer_load_dwordx4 {ar(a + 4)}, v241, s[20:23], s59 offen offset:{(j % 2) * 1024}", ("c", n // 2)))
        return ops
    def w_reads(gi):
        n, c = gi // 8, gi % 8
        off = (n % 16) * 8192
        d = 128 + 4 * (gi % 16)
        return [f"ds_read_b64_tr_b16 v[{d + 2 * hf}:{d + 2 * hf + 1}], v{208 + 8 * (off >> 16) + c} offset:{(off & 0xffff) + hf * 4096}" for hf in range(2)]
    for n in range(2 * min(PD, 3)):
        for pre, ins, tag in vm_ops(n):
            for x in pre: p(x)
            p(ins, tag)
    if DIAG: p.items.append(stamp(2))
    p.wait_vm(("c", 0))
    p("s_barrier")
    if DIAG: p.items.append(stamp(3))
    RA = 8
    for gi in range(RA):
        for x in w_reads(gi): p(x, ("W", gi))
    p.wait_lgkm(("W", 0))
    mf = []
    for n in range(NK):
        base = 0 if n < 14 else 64
        first = n in (0, 14)
        for c in range(8):
            for tb in range(2):
                acc = base + ((c >> 1) * 2 + tb) * 8 + (c & 1) * 4
                mf.append(f"{MF} {vr(acc)}, {vr(128 + 4 * ((n * 8 + c) % 16))}, {ar((n % 16) * 8 + 4 * tb)}, {0 if first else vr(acc)}")
    S = Sched16(mf)
    NG = NK * 8
    for gi in range(RA, NG):
        ch, k = gi // 16, gi % 16
        for hf, x in enumerate(w_reads(gi)):
            g = 32 * ch - 16 + ((2 * k + hf) * 27) // 31
            S.add_mem(max(g, 0), x, ("W", gi))
    for gi in range(1, NG): S.add_first(2 * gi - 1, Wait("lgkm", ("W", gi)))
    def gB(ch): return 32 * ch + 16
    for ch in range(NC - 1):
        S.add_first(gB(ch) - 2, Ins("s_waitcnt lgkmcnt(0)"))
        S.add_first(gB(ch), Wait("vm", ("c", ch + 1)))
        S.add_first(gB(ch), "s_barrier")
    nxt = min(PD, 3)
    for ch in range(NC):
        ops = []
        cnt = 0
        while nxt < NC and nxt <= ch + PD and cnt < 2:
            ops += vm_ops(2 * nxt) + vm_ops(2 * nxt + 1); nxt += 1; cnt += 1
        g = 32 * ch
        st = 4 if len(ops) <= 8 else 2
        for pre, ins, tag in ops:
            for x in pre: S.add_first(g, x)
            S.add_mem(g, ins, tag); g += st
    assert PD <= 6
    def pub(base, kind, g0, g1):
        ops = []
        for k8 in range(8):
            R = base + 8 * k8
            cv = [Op(f"v_cvt_pk_bf16_f32 v{R + k}, v{R + 2 * k}, v{R + 2 * k + 1}", g0, g1) for k in range(4)]
            ops += cv
            pre = [f"s_add_u32 s60, s53, {kind * 32768 + (k8 // 4) * 4096}"] if k8 % 4 == 0 else []
            ops.append(Op(f"buffer_store_dwordx4 {vr(R)}, v240, s[20:23], s60 offen offset:{(k8 % 4) * 1024} sc1", g0, g1, [cv[-1]], pre=pre, tag="pub"))
        return ops
    schedule(S, [pub(0, 0, 14 * 16 + 6, 30 * 16)], 14 * 16, len(mf) - 1, base_cap=3)
    for k in range(4):
        S.add_mem(len(mf) - 100 + 4 * k + 2, f"buffer_load_dwordx2 v[{192 + 2 * k}:{193 + 2 * k}], v{238 + k // 2}, s[24:27], s57 offen offset:{32 * (k % 2)}", "x")
    S.add_valu(len(mf) - 20, "v_mov_b32 v249, 1")
    if DIAG:
        S.add_first(14 * 16, stamp(4)); S.add_first(30 * 16, stamp(5)); S.add_first(len(mf) - 1, stamp(6))
    print(S.report("out")[:300])
    p.extend(S.items())
    p("s_nop 5")
    for o in pub(64, 1, 0, 0):
        for x in o.pre: p(x)
        p(o.t)
    if DIAG: p.items.append(stamp(7))
    p("s_waitcnt vmcnt(0)")
    p("s_barrier")
    if DIAG: p.items.append(stamp(8))
    p("buffer_store_dword v249, v248, s[20:23], s56 offen sc1")
    p("s_mov_b32 s44, 0x40000")
    p.label("L_o_poll")
    p("buffer_load_dword v250, v247, s[20:23], s55 offen sc1")
    p("s_waitcnt vmcnt(0)")
    p("v_cmp_ne_u32 vcc, 1, v250")
    p("s_cbranch_vccz L_o_go")
    p("s_sub_u32 s44, s44, 1")
    p("s_cbranch_scc1 L_o_go")
    p("s_sleep 1")
    p("s_branch L_o_poll")
    p.label("L_o_go")
    if DIAG: p.items.append(stamp(9))
    for kind in (1, 0):
        for src in range(4):
            p(f"s_add_u32 s60, s54, {kind * 32768 + src * 8192}")
            for tb in range(2):
                p(f"buffer_load_dwordx4 {vr((kind * 4 + src) * 8 + tb * 4)}, v240, s[20:23], s60 offen offset:{tb * 1024} sc1", ("ga", kind, src))
    for kind in (1, 0):
        D = 64 if kind == 1 else 80
        for src in range(4):
            p.wait_vm(("ga", kind, src))
            b = (kind * 4 + src) * 8
            for k in range(8):
                if src == 0:
                    p(f"v_lshlrev_b32 v{D + 2 * k}, 16, v{b + k}")
                    p(f"v_and_b32 v{D + 2 * k + 1}, 0xffff0000, v{b + k}")
                else:
                    p(f"v_lshlrev_b32 v{96 + 2 * k}, 16, v{b + k}")
                    p(f"v_and_b32 v{97 + 2 * k}, 0xffff0000, v{b + k}")
            if src:
                for k in range(16): p(f"v_add_f32 v{D + k}, v{D + k}, v{96 + k}")
    if DIAG: p.items.append(stamp(10))
    def rnd(b, n=16):
        for k in range(0, n, 2): p(f"v_cvt_pk_bf16_f32 v{96 + k // 2}, v{b + k}, v{b + k + 1}")
        for k in range(0, n, 2):
            p(f"v_lshlrev_b32 v{b + k}, 16, v{96 + k // 2}")
            p(f"v_and_b32 v{b + k + 1}, 0xffff0000, v{96 + k // 2}")
    rnd(64, 32)
    for k in range(16): p(f"v_mul_f32 v{k}, {f2u(-LOG2E):#x}, v{80 + k}")
    for k in range(16): p(f"v_exp_f32 v{k}, v{k}")
    for k in range(16): p(f"v_add_f32 v{k}, 1.0, v{k}")
    for k in range(16): p(f"v_rcp_f32 v{k}, v{k}")
    for k in range(16): p(f"v_mul_f32 v{80 + k}, v{80 + k}, v{k}")
    rnd(80)
    for k in range(16): p(f"v_mul_f32 v{64 + k}, v{64 + k}, v{80 + k}")
    rnd(64)
    for k in range(8):
        p(f"v_lshlrev_b32 v{80 + 2 * k}, 16, v{192 + k}")
        p(f"v_and_b32 v{81 + 2 * k}, 0xffff0000, v{192 + k}")
    for k in range(16): p(f"v_add_f32 v{64 + k}, v{64 + k}, v{80 + k}")
    for k in range(0, 16, 2): p(f"v_cvt_pk_bf16_f32 v{96 + k // 2}, v{64 + k}, v{65 + k}")
    for k in range(4):
        p(f"buffer_store_dwordx2 v[{96 + 2 * k}:{97 + 2 * k}], v{238 + k // 2}, s[16:19], s57 offen offset:{32 * (k % 2)}")
    if DIAG:
        p.items.append(stamp(11))
        p("s_waitcnt vmcnt(0)")
        p.items.append(stamp(12)); p.items.append(stamp(13, True))
        dump_stamps(p, 1, 28, 20)
    p.label("L_o_end")
    p("s_endpgm")
    texts = [i.t for i in resolve(p.items)]
    for e in lint(texts, "out")[:20]: print(e)
    return texts
if __name__ == "__main__":
    print(len(gen_o_kernel()))
```

```python
from asmlib import *
import math

class Op:
    def __init__(self, t, earliest=0, deadline=10 ** 9, deps=(), pre=(), tag=None, lag=1):
        self.t = t; self.e = earliest; self.d = deadline; self.deps = list(deps); self.g = None
        self.pre = list(pre); self.tag = tag; self.lag = lag
        self.mem = is_vm(t) or is_ds(t)
        self.ls = deadline
        self.salu = t.startswith('s_')

def latest_starts(streams, rate):
    for st in streams:
        for op in st: op.ls = float(op.d)
    for _ in range(3):
        for st in streams:
            nxt = None
            for op in reversed(st):
                if nxt is not None:
                    op.ls = min(op.ls, nxt.ls - cost(nxt.t) / rate)
                nxt = op
            for op in st:
                for d in op.deps: d.ls = min(d.ls, op.ls - op.lag)

def try_schedule(S, streams, g0, g1, cap):
    for st in streams:
        for op in st: op.g = None
    heads = [0] * len(streams)
    placed = []
    over = 0
    for g in range(g0, g1 + 1):
        extra = 0
        nfirst = len(S.first[g])
        base = S.load(g)
        valu_here = set(); any_here = set()
        while True:
            best = None
            for si, st in enumerate(streams):
                if heads[si] >= len(st): continue
                op = st[heads[si]]
                if op.e > g or any(d.g is None or d.g + op.lag > g for d in op.deps): continue
                if op.mem and si in valu_here: continue
                if (op.pre or op.salu) and si in any_here: continue
                if op.salu: c = 1 if nfirst else 0
                else: c = cost(op.t) + max(0, nfirst + len(op.pre) - 1) - max(0, nfirst - 1)
                must = math.floor(op.ls) <= g
                if not must and base + extra + c > cap: continue
                if best is None or op.ls < best[1].ls: best = (si, op, c)
            if best is None: break
            si, op, c = best
            op.g = g; extra += c; nfirst += len(op.pre) + (1 if op.salu else 0); placed.append(op); heads[si] += 1
            if not op.salu: any_here.add(si)
            if not op.mem and not op.salu: valu_here.add(si)
        over += max(0, base + extra - cap) - max(0, base - cap)
    done = all(heads[i] == len(streams[i]) for i in range(len(streams)))
    late = any(op.g is not None and op.g > op.d for st in streams for op in st)
    return done and not late, over, placed

def schedule(S, streams, g0, g1, base_cap=2, name=""):
    best = None
    for rate in (1.0, 1.2, 1.4, 1.6, 1.8, 2.0, 2.5, 3.0, 4.0):
        latest_starts(streams, rate)
        ok, over, placed = try_schedule(S, streams, g0, g1, base_cap)
        if ok and (best is None or over < best[0]): best = (over, rate)
    assert best is not None, name
    latest_starts(streams, best[1])
    ok, over, placed = try_schedule(S, streams, g0, g1, base_cap)
    for op in placed:
        for x in op.pre: S.add_first(op.g, x)
        if op.salu: S.add_first(op.g, op.t)
        elif op.mem: S.add_mem(op.g, op.t, op.tag)
        else: S.add_valu(op.g, op.t)
    return best

class Sched16(Sched):
    CAP = 2
```

```python
import sys
sys.path.insert(0, "dev")
from asmlib import *
NAME = "recurrent_scan__compressed_kv_cla__glu_gated_geglu__prompt"
def build(path, kernels):
    hdr = open(f"cdna_kernels/{NAME}.s.ref").read().split("\n")
    lines = [l for l in hdr if l.startswith(";") and "@launch" not in l and "Override launch" not in l and "grid=ceil" not in l]
    s = "\n".join(lines) + "\n"
    for name, lds, body in kernels:
        s += f"; @launch grid=(256,1,1) block=(256,1,1) lds={lds}\n"
    s += '.amdgcn_target "amdgcn-amd-amdhsa--gfx950"\n.text\n'
    for name, lds, body in kernels:
        s += f".globl {name}\n.p2align 8\n.type {name},@function\n{name}:\n"
        for t in body:
            s += (t if t.endswith(":") or t.startswith(".") else "    " + t) + "\n"
    s += 'L_code_end:\n    s_endpgm\n.section .rodata,"a"\n'
    for name, lds, body in kernels:
        s += kd(name)
    open(path, "w").write(s)
if __name__ == "__main__":
    import gen_f
    ks = [(gen_f.KNAME, 163840, gen_f.gen_f_kernel())]
    out = sys.argv[1] if len(sys.argv) > 1 else f"cdna_kernels/{NAME}.s"
    build(out, ks)
```

```python
import sys
def kd(name, vgpr=512, acc=256, sgpr=96):
    return f""".p2align 6
.amdhsa_kernel {name}
  .amdhsa_next_free_vgpr {vgpr}
  .amdhsa_next_free_sgpr {sgpr}
  .amdhsa_accum_offset {acc}
  .amdhsa_group_segment_fixed_size 0
  .amdhsa_user_sgpr_count 2
  .amdhsa_user_sgpr_kernarg_segment_ptr 1
  .amdhsa_system_sgpr_workgroup_id_x 1
.end_amdhsa_kernel
"""
def body(nm, nexp, nadd, ncvt, nmax, nds, ndma, barrier, dma_mode):
    gaps = [[] for _ in range(nm)]
    def spread(lst, phase=0.0):
        n = len(lst)
        for i, ins in enumerate(lst):
            g = int((i + phase) * nm / n) % nm
            gaps[g].append(ins)
    spread([f"v_exp_f32 v{64 + (i % 64)}, v{64 + (i % 64)}" for i in range(nexp)])
    spread([f"v_add_f32 v{200 + (i % 4)}, v{200 + (i % 4)}, v{64 + ((i + 40) % 64)}" for i in range(nadd)])
    spread([f"v_cvt_pk_bf16_f32 v{160 + (i % 32)}, v{64 + ((2 * i + 20) % 64)}, v{65 + ((2 * i + 20) % 64)}" for i in range(ncvt)], 0.5)
    spread([f"v_max3_f32 v{204 + (i % 2)}, v{204 + (i % 2)}, v{128 + ((2 * i) % 32)}, v{129 + ((2 * i) % 32)}" for i in range(nmax)], 0.0)
    spread([f"ds_read_b128 a[{192 + 4 * (i % 16)}:{195 + 4 * (i % 16)}], v1 offset:{(i * 1024) % 65536}" for i in range(nds)], 0.5)
    dl = []
    for i in range(ndma):
        pre = ""
        if i % 4 == 0:
            pre = f"s_add_u32 m0, s30, {(i // 4) * 4096}\n    "
        if dma_mode == 0:
            dl.append(pre + f"buffer_load_dwordx4 v2, s[8:11], s31 offen offset:{(i % 4) * 1024} lds")
        else:
            dl.append(pre + f"buffer_load_dwordx4 off, s[16:19], s31 offset:{(i % 4) * 1024} lds")
    if ndma: spread(dl, 0.3)
    out = []
    for g in range(nm):
        acc = (g % 8) * 16
        a = 192 + 4 * ((g // 2 + 8) % 16)
        b = 128 + 4 * (g % 16)
        out.append(f"v_mfma_f32_32x32x16_bf16 a[{acc}:{acc + 15}], a[{a}:{a + 3}], a[{b}:{b + 3}], a[{acc}:{acc + 15}]")
        out += gaps[g]
        if nds and g % 8 == 7:
            out.append("s_waitcnt lgkmcnt(2)")
    if ndma:
        out.append(f"s_waitcnt vmcnt({min(63, 2 * ndma)})")
    if barrier:
        out.append("s_barrier")
    return out

if __name__ == "__main__":
  pass
cfgs = [
    ("a", 64, 0, 0, 0, 0, 0, 0, 0, 0),
    ("b", 64, 64, 64, 32, 32, 0, 0, 0, 0),
    ("c", 64, 64, 64, 32, 32, 32, 0, 0, 0),
    ("d", 64, 64, 64, 32, 32, 32, 8, 0, 0),
    ("e", 64, 64, 64, 32, 32, 32, 16, 0, 0),
    ("f", 64, 64, 64, 32, 32, 32, 8, 1, 0),
    ("g", 64, 64, 64, 32, 32, 64, 16, 1, 0),
    ("h", 64, 0, 0, 0, 0, 0, 8, 0, 0),
    ("i", 64, 0, 0, 0, 0, 0, 16, 0, 0),
    ("l", 64, 64, 128, 32, 32, 32, 8, 1, 0),
]
s = ""
for c in cfgs:
    s += f"; @launch kernel=mb{c[0]}_kernel grid=(256,1,1) block=(256,1,1) lds=131072\n"
s += '.amdgcn_target "amdgcn-amd-amdhsa--gfx950"\n.text\n'
for c in cfgs:
    name = f"mb{c[0]}_kernel"
    s += f""".p2align 8
{name}:
    s_load_dwordx2 s[4:5], s[0:1], 0
    s_load_dwordx2 s[6:7], s[0:1], 8
    s_waitcnt lgkmcnt(0)
    s_mov_b32 s8, s4
    s_mov_b32 s9, s5
    s_mov_b32 s10, 0x2000000
    s_mov_b32 s11, 0x00020000
    s_mov_b32 s12, s6
    s_mov_b32 s13, s7
    s_mov_b32 s14, 65536
    s_mov_b32 s15, 0x00020000
    s_mov_b32 s16, s4
    s_and_b32 s17, s5, 0xffff
    s_or_b32 s17, s17, 0x100000
    s_mov_b32 s18, 0x200000
    s_mov_b32 s19, 0x00020000
    v_and_b32 v1, 63, v0
    v_lshlrev_b32 v1, 4, v1
    v_mov_b32 v2, v1
    v_lshrrev_b32 v3, 6, v0
    s_nop 0
    v_readfirstlane_b32 s29, v3
    s_lshl_b32 s30, s29, 14
    s_add_u32 s30, s30, 65536
    s_and_b32 s28, s2, 7
    s_lshl_b32 s28, s28, 20
    s_lshl_b32 s31, s29, 14
    s_add_u32 s28, s28, s31
    s_mov_b32 s31, s28
"""
    for r in range(64, 208):
        s += f"    v_mov_b32 v{r}, 0\n"
    for r in range(0, 256):
        s += f"    v_accvgpr_write_b32 a{r}, 0\n"
    s += """    s_mov_b32 s20, 0
    s_barrier
    s_memtime s[22:23]
    s_waitcnt lgkmcnt(0)
.p2align 6
L_%s:
""" % name
    s += "".join("    " + x + "\n" for x in body(*c[1:]))
    s += f"""    s_add_u32 s31, s31, 0x10000
    s_and_b32 s31, s31, 0xfffff
    s_or_b32 s31, s31, s28
    s_add_u32 s20, s20, 1
    s_cmp_lt_u32 s20, 100
    s_cbranch_scc1 L_{name}
    s_memtime s[24:25]
    s_waitcnt lgkmcnt(0) vmcnt(0)
    s_sub_u32 s24, s24, s22
    v_mov_b32 v4, s24
    s_lshl_b32 s26, s2, 4
    s_lshl_b32 s27, s29, 2
    s_add_u32 s26, s26, s27
    v_mov_b32 v5, s26
    buffer_store_dword v4, v5, s[12:15], 0 offen
    s_waitcnt vmcnt(0)
    s_endpgm
"""
s += '.section .rodata,"a"\n'
for c in cfgs:
    s += kd(f"mb{c[0]}_kernel")
open("mb1.s", "w").write(s)
```

```python
import sys
from mb1_gen import kd
def body(shape, pattern, nm):
    out = []
    cnt = {}
    for g in range(nm):
        if shape == 32:
            acc = (g % 8) * 16
            a = 192 + 4 * ((g // 2 + 8) % 16); b = 128 + 4 * (g % 16)
            out.append(f"v_mfma_f32_32x32x16_bf16 a[{acc}:{acc + 15}], a[{a}:{a + 3}], a[{b}:{b + 3}], a[{acc}:{acc + 15}]")
        else:
            acc = (g % 32) * 4
            a = 192 + 4 * ((g // 4 + 8) % 16); b = 128 + 4 * (g % 16)
            out.append(f"v_mfma_f32_16x16x32_bf16 a[{acc}:{acc + 3}], a[{a}:{a + 3}], a[{b}:{b + 3}], a[{acc}:{acc + 3}]")
        for ch in pattern[g % len(pattern)]:
            i = cnt.get(ch, 0)
            if ch == 'e': out.append(f"v_exp_f32 v{128 + (i % 64)}, v{64 + (i % 64)}")
            elif ch == 'a': out.append(f"v_add_f32 v{200 + (i % 8)}, v{64 + ((i + 13) % 64)}, v{64 + ((i + 40) % 64)}")
            elif ch == 'c': out.append(f"v_cvt_pk_bf16_f32 v{208 + (i % 8)}, v{64 + ((2 * i + 20) % 64)}, v{65 + ((2 * i + 20) % 64)}")
            elif ch == 'd': out.append(f"ds_read_b128 a[{192 + 4 * (i % 16)}:{195 + 4 * (i % 16)}], v1 offset:{(i * 1024) % 65536}")
            elif ch == 'n': out.append("s_nop 7")
            elif ch == 'N': out.append("s_nop 15")
            cnt[ch] = i + 1
    return out
def gen(cfgs, path, iters):
    s = ""
    for i, c in enumerate(cfgs):
        s += f"; @launch kernel=mb{i}_kernel grid=(256,1,1) block=(256,1,1) lds=131072\n"
    s += '.amdgcn_target "amdgcn-amd-amdhsa--gfx950"\n.text\n'
    for i, (shape, c) in enumerate(cfgs):
        name = f"mb{i}_kernel"
        s += f""".p2align 8
{name}:
    s_load_dwordx2 s[4:5], s[0:1], 0
    s_load_dwordx2 s[6:7], s[0:1], 8
    s_waitcnt lgkmcnt(0)
    s_mov_b32 s8, s4
    s_mov_b32 s9, s5
    s_mov_b32 s10, 0x2000000
    s_mov_b32 s11, 0x00020000
    s_mov_b32 s12, s6
    s_mov_b32 s13, s7
    s_mov_b32 s14, 0x1000000
    s_mov_b32 s15, 0x00020000
    v_and_b32 v1, 63, v0
    v_lshlrev_b32 v1, 4, v1
    v_lshlrev_b32 v2, 4, v0
    v_lshrrev_b32 v3, 6, v0
    s_nop 0
    v_readfirstlane_b32 s29, v3
"""
        for k in range(32):
            s += f"    s_mov_b32 s30, {k * 4096}\n    buffer_load_dwordx4 a[{128 + 4 * k}:{131 + 4 * k}], v2, s[8:11], s30 offen\n"
        for k in range(16):
            s += f"    s_mov_b32 s30, {0x100000 + k * 4096}\n    buffer_load_dwordx4 v[{64 + 4 * k}:{67 + 4 * k}], v2, s[8:11], s30 offen\n"
        for k in range(16):
            s += f"    s_mov_b32 s30, {k * 4096}\n    s_lshl_b32 s31, s29, 10\n    s_add_u32 m0, s31, {k * 4096}\n    s_nop 0\n    buffer_load_dwordx4 v2, s[8:11], s30 offen lds\n"
        for r in range(0, 128):
            s += f"    v_accvgpr_write_b32 a{r}, 0\n"
        s += """    s_waitcnt vmcnt(0)
    s_mov_b32 s20, 0
    s_barrier
    s_memtime s[22:23]
    s_memrealtime s[42:43]
    s_waitcnt lgkmcnt(0)
.p2align 6
L_%s:
""" % name
        s += "".join("    " + x + "\n" for x in body(shape, c.split(","), 64 if shape == 32 else 128))
        s += f"""    s_memrealtime s[50:51]
    s_memtime s[52:53]
    s_waitcnt lgkmcnt(0)
    v_mov_b32 v10, s50
    v_mov_b32 v11, s52
    s_lshl_b32 s54, s2, 12
    s_lshl_b32 s55, s29, 10
    s_add_u32 s54, s54, s55
    s_lshl_b32 s55, s20, 3
    s_add_u32 s54, s54, s55
    s_add_u32 s54, s54, 0x10000
    v_mov_b32 v12, 0
    buffer_store_dwordx2 v[10:11], v12, s[12:15], s54 offen
    s_add_u32 s20, s20, 1
    s_cmp_lt_u32 s20, {iters}
    s_cbranch_scc1 L_{name}
    s_memtime s[24:25]
    s_memrealtime s[44:45]
    s_waitcnt lgkmcnt(0) vmcnt(0)
    s_sub_u32 s24, s24, s22
    s_sub_u32 s44, s44, s42
    v_mov_b32 v4, s24
    v_mov_b32 v5, s44
    s_lshl_b32 s26, s2, 5
    s_lshl_b32 s27, s29, 3
    s_add_u32 s26, s26, s27
    v_mov_b32 v7, s26
    buffer_store_dwordx2 v[4:5], v7, s[12:15], 0 offen
    s_waitcnt vmcnt(0)
    s_endpgm
"""
    s += '.section .rodata,"a"\n'
    for i, c in enumerate(cfgs): s += kd(f"mb{i}_kernel")
    open(path, "w").write(s)
    open(path + ".cfg", "w").write("\n".join(f"{a}:{b}" for a, b in cfgs))
gen([(16, "d,,,"), (16, "de,ac,e,ac"), (32, "d,"), (16, "d,,,n")], "mb11.s", 60)
```

```python
from asmlib import *
from sched16 import *
import math, os, re
MF = "v_mfma_f32_16x16x32_bf16"
WSB = int(os.environ.get("WSB", "0"), 0)
WS_XN = WSB + 0x0
WS_KV = WSB + 0x200000
WS_ACT = WSB + 0x2200000
WS_PART = WSB + 0x4000000
WS_FLAG = WSB + 0x5000000
ACT_ROW = 184 * 1024
LOG2E = 1.4426950408889634
KSCALE = LOG2E / math.sqrt(128.0)
BIG = 2.0 ** 100
THR = float(os.environ.get("THR", "40"))
STF = " sc1"
NT = os.environ.get("NT", " nt")
NTV = os.environ.get("NTV", "")
OPF = int(os.environ.get("OPF", "1"))
WSB = int(os.environ.get("WSB", "0"), 0)
DIAG2 = [int(x) for x in os.environ.get("DIAG2", "").split(",") if x]
def vr(b, n=4): return f"v[{b}:{b + n - 1}]"
def ar(b, n=4): return f"a[{b}:{b + n - 1}]"
def srd(p, d, lo, size):
    p(f"s_mov_b32 s{d}, s{lo}")
    p(f"s_mov_b32 s{d + 1}, s{lo + 1}")
    p(f"s_mov_b32 s{d + 2}, {size:#x}")
    p(f"s_mov_b32 s{d + 3}, 0x20000")

def wave_reduce(p, regs_):
    steps = ["quad_perm:[1,0,3,2] row_mask:0xf bank_mask:0xf", "quad_perm:[2,3,0,1] row_mask:0xf bank_mask:0xf",
             "row_half_mirror row_mask:0xf bank_mask:0xf", "row_mirror row_mask:0xf bank_mask:0xf",
             "row_bcast:15 row_mask:0xa bank_mask:0xf", "row_bcast:31 row_mask:0xc bank_mask:0xf"]
    for st in steps:
        p("s_nop 1")
        for r in regs_: p(f"v_add_f32_dpp v{r}, v{r}, v{r} {st}")
    p("s_nop 1")
def round_bf16(p, dst, src):
    p(f"v_cvt_pk_bf16_f32 v{dst}, v{src}, v{src}")
    p(f"v_and_b32 v{dst}, 0xffff0000, v{dst}")

def emit_ln(p):
    for r in range(2):
        for k in range(4):
            p(f"v_lshlrev_b32 v{8 + 8 * r + 2 * k}, 16, v{4 * r + k}")
            p(f"v_and_b32 v{9 + 8 * r + 2 * k}, 0xffff0000, v{4 * r + k}")
    for r in range(2):
        b = 8 + 8 * r
        p(f"v_add_f32 v{24 + r}, v{b}, v{b + 1}")
        for k in range(2, 8): p(f"v_add_f32 v{24 + r}, v{24 + r}, v{b + k}")
    wave_reduce(p, [24, 25])
    p("v_readlane_b32 s58, v24, 63")
    p("v_readlane_b32 s59, v25, 63")
    p(f"v_mov_b32 v30, {f2u(1.0 / 512):#x}")
    p("s_nop 1")
    for r in range(2): p(f"v_mul_f32 v{26 + r}, s{58 + r}, v30")
    for r in range(2):
        b = 8 + 8 * r
        for k in range(8): p(f"v_sub_f32 v{32 + k}, v{b + k}, v{26 + r}")
        p(f"v_mul_f32 v{24 + r}, v32, v32")
        for k in range(1, 8): p(f"v_fmac_f32 v{24 + r}, v{32 + k}, v{32 + k}")
    wave_reduce(p, [24, 25])
    p("v_readlane_b32 s58, v24, 63")
    p("v_readlane_b32 s59, v25, 63")
    p("s_nop 1")
    for r in range(2):
        p(f"v_mul_f32 v{28 + r}, s{58 + r}, v30")
        round_bf16(p, 28 + r, 28 + r)
        p(f"v_add_f32 v{28 + r}, {f2u(1e-5):#x}, v{28 + r}")
        round_bf16(p, 28 + r, 28 + r)
        p(f"v_sqrt_f32 v{28 + r}, v{28 + r}")
        p("s_nop 0")
        round_bf16(p, 28 + r, 28 + r)
        p(f"v_rcp_f32 v{28 + r}, v{28 + r}")
        round_bf16(p, 26 + r, 26 + r)
    for r in range(2):
        b = 8 + 8 * r
        for k in range(8): p(f"v_sub_f32 v{b + k}, v{b + k}, v{26 + r}")
        for k in range(4): p(f"v_cvt_pk_bf16_f32 v{32 + k}, v{b + 2 * k}, v{b + 2 * k + 1}")
        for k in range(4):
            p(f"v_lshlrev_b32 v{b + 2 * k}, 16, v{32 + k}")
            p(f"v_and_b32 v{b + 2 * k + 1}, 0xffff0000, v{32 + k}")
        for k in range(8): p(f"v_mul_f32 v{b + k}, v{b + k}, v{28 + r}")
        for k in range(4): p(f"v_cvt_pk_bf16_f32 v{40 + 4 * r + k}, v{b + 2 * k}, v{b + 2 * k + 1}")

def ln_ops(g0, g1):
    p = Prog(); emit_ln(p)
    ops = []; lag = False
    for it in p.items:
        t = it.t
        if t.startswith("s_nop"): lag = True; continue
        t = re.sub(r"\bv(\d+)\b", lambda m: "v%d" % (int(m.group(1)) + 176 if int(m.group(1)) < 8 else int(m.group(1)) + 128), t)
        ops.append(Op(t, g0, g1, [ops[-1]] if lag else [], lag=2)); lag = False
    return ops

def Sreg(par, qb, kb): return par * 64 + qb * 16 + kb * 4
def Preg(qb, s): return 128 + qb * 8 + s * 4
def NEGM(qb): return 160 + 4 * qb
def LACC(qb): return 176 + 4 * qb
ONES = 192
MX = [196, 197]; VTM = 198; VTMASK = 199; VCUR, VPREV = 200, 201; TMP = [202, 203, 204, 205]
def Qreg(qb, t): return (t // 2) * 32 + qb * 8 + (t % 2) * 4
def Oreg(qb, db): return 64 + qb * 32 + db * 4
def Fbuf(f): return 192 + (f % 16) * 4
S_THR = 61
NPRE = 6

def tail_reads(base_reg, off):
    return [f"ds_read_b128 {ar(Fbuf(f))}, v{base_reg} offset:{off + f * 1024}" for f in range(NPRE)]

def gen_iter(name, tq, tp, parq, masked, odd_q, kreg, koff, vreg, voff, nreg, noff, first_pv=False, end_ops=(), swap=False, mid_ops=()):
    qq = {"D": [0, 1, 2, 3], "S": [0, 1]}[tq]
    qp = {"D": [0, 1, 2, 3], "S": [0, 1]}[tp]
    parp = 1 - parq
    mf = []; use = {}; lastq = {}; lastuse = {}
    for kb in range(4):
        for t in range(4):
            f = kb * 4 + t
            use[f] = len(mf)
            for qb in qq:
                d = Sreg(parq, qb, kb)
                mf.append(f"{MF} {vr(d)}, {ar(Fbuf(f))}, {ar(Qreg(qb, t))}, {vr(NEGM(qb)) if t == 0 else vr(d)}")
                lastq[(qb, kb)] = len(mf) - 1
            lastuse[f] = len(mf) - 1
    firstp = {}
    for s in range(2):
        for db in range(8):
            f = 16 + s * 8 + db
            use[f] = len(mf)
            for qb in qp:
                o = Oreg(qb, db)
                firstp.setdefault((qb, s), len(mf))
                mf.append(f"{MF} {ar(o)}, {ar(Fbuf(f))}, {vr(Preg(qb, s))}, {0 if (first_pv and s == 0) else ar(o)}")
            lastuse[f] = len(mf) - 1
        for qb in qp:
            mf.append(f"{MF} {vr(LACC(qb))}, {vr(ONES)}, {vr(Preg(qb, s))}, {0 if (first_pv and s == 0) else vr(LACC(qb))}")
    n = len(mf)
    S = Sched16(mf)
    gB = n - (16 if len(qp) == 2 else 22)
    LEAD = 14
    for f in range(32):
        tag = ("F", "n", f) if f < NPRE else ("F", "c", f)
        if use[f] > 0: S.add_first(use[f] - 1, Wait("lgkm", tag))
    S.add_first(gB, Ins("s_waitcnt vmcnt(16) lgkmcnt(0)"))
    S.add_first(gB + 1, "s_barrier")
    S.add_first(n - 1, Wait("lgkm", ("F", "x", 0)))
    R = []
    todo = list(range(NPRE, 32))
    for k, f in enumerate(todo):
        e = lastuse[f - 16] if f >= 16 else 0
        dl = min(use[f] - LEAD + 4, gB - 5 - (31 - f))
        e = max(e, min(use[f] - LEAD - 8, dl - 4))
        assert dl >= e, (name, f, dl, e)
        if f < 16: ins = f"ds_read_b128 {ar(Fbuf(f))}, v{kreg} offset:{koff + f * 1024}"
        else: ins = f"ds_read_b128 {ar(Fbuf(f))}, v{vreg} offset:{voff + (f - 16) * 1024}"
        R.append(Op(ins, max(e, 0), max(dl, 0), tag=("F", "c", f)))
    for f, ins in enumerate(tail_reads(nreg, noff)):
        R.append(Op(ins, max(gB + 1, lastuse[f + 16]), min(n - 2, gB + 3 + 2 * f), tag=("F", "x", f)))
    D = []
    span = gB - 8
    for q in range(4):
        D.append(Op(f"buffer_load_dwordx4 v240, s[20:23], s55 offen offset:{q * 1024} sc1 lds", 2 + q * span // 4, 2 + (q + 1) * span // 4 - 1, tag="kv"))
    for x in ["s_add_u32 s54, s54, 0x8000", "s_add_u32 s52, s52, 0x8000", "s_and_b32 s52, s52, 0x1ffff", "s_mov_b32 m0, s52"]:
        D.append(Op(x, 0, gB))
    tl = n - 3 - (gB + 1)
    for q in range(4):
        D.append(Op(f"buffer_load_dwordx4 v240, s[20:23], s54 offen offset:{q * 1024} sc1 lds", gB + 1 + q * tl // 4, gB + 1 + (q + 1) * tl // 4, tag="kv"))
    D.append(Op("s_mov_b32 m0, s53", 0, n - 1))
    E = []; C = []
    for s in range(2):
        for qb in qp:
            b = Sreg(parp, qb, 2 * s)
            dl = firstp[(qb, s)] - 2
            es = [Op(f"v_exp_f32 v{b + r}, v{b + r}", 0, dl - 1) for r in range(8)]
            E += es
            C += [Op(f"v_cvt_pk_bf16_f32 v{Preg(qb, s) + k}, v{b + 2 * k}, v{b + 2 * k + 1}", 0, dl, [es[2 * k], es[2 * k + 1]]) for k in range(4)]
    M = []
    vals = []
    mq = qq[-2:]
    first = True
    for kb in range(4):
        for qb in qq:
            b = Sreg(parq, qb, kb)
            e0 = lastq[(qb, kb)] + 5
            if masked and qb in mq:
                for r in range(4):
                    kk = 64 * odd_q + 16 * kb + r - 16 * (qb & 1)
                    tm = TMP[r % 2]
                    M.append(Op(f"v_subrev_f32 v{tm}, {f2u(kk * BIG):#x}, v{VTMASK}", 0, n - 3))
                    M.append(Op(f"v_min_f32 v{b + r}, v{b + r}, v{tm}", e0, n - 3))
            if first:
                M.append(Op(f"v_max_f32 v{MX[0]}, v{b}, v{b + 1}", e0, n - 3)); first = False
            else:
                M.append(Op(f"v_max3_f32 v{MX[0]}, v{MX[0]}, v{b}, v{b + 1}", e0, n - 3))
            M.append(Op(f"v_max3_f32 v{MX[0]}, v{MX[0]}, v{b + 2}, v{b + 3}", e0, n - 3))
    M.append(Op(f"v_cmp_lt_f32 vcc, s{S_THR}, v{MX[0]}", 0, n - 2))
    X = []
    if swap:
        X = [Op(f"v_xor_b32 v{VCUR}, 0x10000, v{VCUR}", gB, n - 1), Op(f"v_xor_b32 v{VPREV}, 0x10000, v{VPREV}", gB, n - 1, [R[-1]])]
    k = schedule(S, [R, D, E, C, M, X], 0, n - 1, name=name)
    g = D[7].g + 1
    for x in ["s_add_u32 s55, s55, 0x8000", "s_add_u32 s53, s53, 0x8000", "s_and_b32 s53, s53, 0x1ffff"] + list(mid_ops):
        while S.first[g]: g += 1
        S.add_first(g, x); g += 1
    assert g <= D[-1].g, (name, g, D[-1].g)
    for x in end_ops: S.add_last(n - 1, x)
    print(S.report(f"{name}(k={k})"))
    pre = [Ins(f"ds_read_b128 {ar(Fbuf(f))}, v0", ("F", "n", f)) for f in range(NPRE)] + [Wait("lgkm", ("F", "n", 0))]
    return [i.t for i in resolve(S.items(), pre)]

def allreduce4(p, op, src, t0, t1):
    p(f"v_mov_b32 v{t0}, v{src}")
    p(f"v_mov_b32 v{t1}, v{src}")
    p("s_nop 1")
    p(f"v_permlane32_swap_b32 v{t0}, v{t1}")
    p("s_nop 1")
    p(f"{op} v{t0}, v{t0}, v{t1}")
    p(f"v_mov_b32 v{t1}, v{t0}")
    p("s_nop 1")
    p(f"v_permlane16_swap_b32 v{t0}, v{t1}")
    p("s_nop 1")
    p(f"{op} v{t0}, v{t0}, v{t1}")

def rowmax(p, par, qb):
    b = Sreg(par, qb, 0)
    p(f"v_max3_f32 v{MX[1]}, v{b}, v{b + 1}, v{b + 2}")
    for k in range(3, 15, 2): p(f"v_max3_f32 v{MX[1]}, v{MX[1]}, v{b + k}, v{b + k + 1}")
    p(f"v_max_f32 v{MX[1]}, v{MX[1]}, v{b + 15}")
    allreduce4(p, "v_max_f32", MX[1], TMP[0], TMP[1])

def gen_rare(par, qbs):
    p = Prog()
    p("s_nop 15")
    for qb in qbs:
        rowmax(p, par, qb)
        p(f"v_max_f32 v{TMP[0]}, 0, v{TMP[0]}")
        p(f"v_sub_f32 v{TMP[1]}, 0, v{TMP[0]}")
        p(f"v_exp_f32 v{TMP[1]}, v{TMP[1]}")
        for r in range(4): p(f"v_sub_f32 v{NEGM(qb) + r}, v{NEGM(qb) + r}, v{TMP[0]}")
        for r in range(16): p(f"v_sub_f32 v{Sreg(par, qb, 0) + r}, v{Sreg(par, qb, 0) + r}, v{TMP[0]}")
        for r in range(4): p(f"v_mul_f32 v{LACC(qb) + r}, v{LACC(qb) + r}, v{TMP[1]}")
        for r in range(0, 32, 2):
            a = Oreg(qb, 0) + r
            p(f"v_accvgpr_read_b32 v{TMP[2]}, a{a}")
            p(f"v_accvgpr_read_b32 v{TMP[3]}, a{a + 1}")
            p(f"v_mul_f32 v{TMP[2]}, v{TMP[2]}, v{TMP[1]}")
            p(f"v_mul_f32 v{TMP[3]}, v{TMP[3]}, v{TMP[1]}")
            p(f"v_accvgpr_write_b32 a{a}, v{TMP[2]}")
            p(f"v_accvgpr_write_b32 a{a + 1}, v{TMP[3]}")
    p("s_nop 1")
    p("s_setpc_b64 s[62:63]")
    return [i.t for i in p.items]

def gen_f_kernel():
    p = Prog()
    p("s_cmp_ge_u32 s2, 256")
    p("s_cbranch_scc1 L_f_end")
    if DIAG:
        for k in range(14): p(f"s_mov_b32 s{66 + 2 * k}, 0")
        p.items.append(stamp(0, True)); p.items.append(stamp(1))
    p("s_load_dwordx4 s[36:39], s[0:1], 0")
    p("s_load_dwordx4 s[40:43], s[0:1], 24")
    p("s_load_dwordx2 s[44:45], s[0:1], 96")
    p("v_and_b32 v254, 63, v0")
    p("v_lshrrev_b32 v255, 6, v0")
    p("s_and_b32 s34, s2, 7")
    p("v_readfirstlane_b32 s28, v255")
    p("s_lshr_b32 s35, s2, 3")
    p("v_lshlrev_b32 v252, 7, v254")
    if CPF:
        p("s_getpc_b64 s[4:5]")
        p("L_pc0:")
        p("s_sub_u32 s4, s4, L_pc0-f_kernel")
        p("s_subb_u32 s5, s5, 0")
        p("s_mov_b32 s6, L_code_end-f_kernel")
        p("s_mov_b32 s7, 0x20000")
        p("v_lshrrev_b32 v244, 3, v254")
        p("v_lshl_or_b32 v244, v244, 27, v252")
        p("v_lshl_add_u32 v244, v255, 15, v244")
        p("s_lshl_b32 s63, s35, 10")
        p("buffer_load_dword v52, v244, s[4:7], s63 offen", "pf")
    p("v_lshlrev_b32 v240, 4, v254")
    p("v_lshrrev_b32 v244, 4, v254")
    p("v_and_b32 v245, 15, v254")
    p("v_lshlrev_b32 v245, 7, v245")
    p("v_lshl_add_u32 v253, v244, 13, v245")
    p("s_lshl_b32 s60, s35, 2")
    p("s_add_u32 s60, s60, s28")
    p("s_and_b32 s61, s34, 1")
    p("s_lshl_b32 s61, s61, 20")
    p("s_lshl_b32 s63, s60, 13")
    p("s_add_u32 s61, s61, s63")
    p("s_lshr_b32 s62, s34, 1")
    p("s_lshl_b32 s62, s62, 11")
    p("s_lshl_b32 s63, s60, 15")
    p("s_add_u32 s62, s62, s63")
    p("s_lshl_b32 s47, s2, 13")
    p("s_lshl_b32 s46, s28, 11")
    p("s_add_u32 s47, s47, s46")
    for r, v in ((10, 0x200000), (11, 0x20000), (14, 0x400000), (15, 0x20000), (26, 0x200000), (27, 0x20000)): p(f"s_mov_b32 s{r}, {v:#x}")
    p("s_waitcnt lgkmcnt(0)")
    if DIAG and not DIAG2: p.items.append(stamp(2))
    for d, sr in ((24, 36), (25, 37), (8, 38), (9, 39), (12, 40), (13, 41)): p(f"s_mov_b32 s{d}, s{sr}")
    p("buffer_load_dwordx4 v[0:3], v240, s[24:27], s47 offen" + NT, "ln")
    p("buffer_load_dwordx4 v[4:7], v240, s[24:27], s47 offen offset:1024" + NT, "ln")
    p("buffer_load_dword v246, v252, s[8:11], s61 offen" + NT, "pf")
    p("buffer_load_dword v247, v253, s[12:15], s62 offen" + NT, "pf")
    srd(p, 16, 42, 0x400000)
    srd(p, 20, 44, 0x10000000)
    p("s_load_dwordx2 s[36:37], s[0:1], 16")
    p("s_load_dwordx2 s[38:39], s[0:1], 40")
    p("s_load_dwordx4 s[40:43], s[0:1], 56")
    p("s_load_dwordx2 s[96:97], s[0:1], 72")
    p("s_load_dwordx2 s[98:99], s[0:1], 88")
    p("v_lshl_add_u32 v244, v255, 6, v254")
    p("v_cmp_eq_u32 vcc, 0, v244")
    p("v_mov_b32 v248, 0x7ffff000")
    p("v_mov_b32 v249, 1")
    p("v_mov_b32 v250, 0")
    p("v_cndmask_b32_e64 v248, v248, 0, vcc")
    p("s_and_b32 s47, s34, 1")
    p("s_lshl_b32 s47, s47, 2")
    p("s_and_b32 s46, s35, 3")
    p("s_add_u32 s47, s47, s46")
    p("s_lshr_b32 s3, s34, 1")
    p("s_lshl_b32 s3, s3, 3")
    p("s_lshr_b32 s46, s35, 2")
    p("s_add_u32 s3, s3, s46")
    p("s_lshl_b32 s45, s3, 3")
    p("s_add_u32 s45, s45, s47")
    p("s_lshl_b32 s46, s47, 2")
    p("s_add_u32 s46, s46, s28")
    p("s_lshl_b32 s31, s46, 16")
    p("s_lshl_b32 s94, s46, 15")
    p("s_lshl_b32 s47, s3, 20")
    p("s_add_u32 s94, s94, s47")
    p(f"s_add_u32 s94, s94, {WS_KV:#x}")
    p("s_lshl_b32 s95, s3, 8")
    p("s_lshl_b32 s3, s45, 7")
    p(f"s_add_u32 s3, s3, {WS_FLAG + 0x10000:#x}")
    p("s_lshl_b32 s29, s34, 2")
    p("s_lshr_b32 s46, s35, 3")
    p("s_add_u32 s29, s29, s46")
    p("s_and_b32 s30, s35, 7")
    p(f"s_mul_i32 s48, s28, 24576")
    p("s_lshl_b32 s49, s28, 12")
    p("s_lshl_b32 s50, s28, 6")
    p("s_add_u32 s50, s50, s95")
    p("s_and_b32 s45, s28, 1")
    p("s_lshr_b32 s52, s28, 1")
    p("s_lshl_b32 s53, s45, 13")
    p("s_lshl_b32 s54, s52, 12")
    p("s_add_u32 s53, s53, s54")
    p("s_lshl_b32 s54, s45, 6")
    p("s_lshl_b32 s55, s52, 19")
    p("s_add_u32 s55, s54, s55")
    p("s_add_u32 s54, s55, s95")
    p("s_lshl_b32 s56, s29, 8")
    p("s_add_u32 s65, s55, s56")
    p("s_sub_u32 s56, 15, s30")
    p("s_lshl_b32 s32, s56, 3")
    p("s_lshl_b32 s63, s28, 1")
    p("s_add_u32 s32, s32, s63")
    p("s_lshl_b32 s33, s30, 3")
    p("s_add_u32 s33, s33, s63")
    p("s_lshl_b32 s46, s32, 14")
    p("s_lshl_b32 s47, s33, 14")
    p(f"s_mul_i32 s32, s32, {ACT_ROW}")
    p(f"s_add_u32 s32, s32, {WS_ACT:#x}")
    p(f"s_mul_i32 s33, s33, {ACT_ROW}")
    p(f"s_add_u32 s33, s33, {WS_ACT:#x}")
    p("s_add_u32 s55, s29, 32")
    p("s_cmp_lt_u32 s29, 24")
    p("s_cselect_b32 s55, s55, s29")
    p(f"s_mul_i32 s64, s52, {64 * 3584}")
    p("s_lshl_b32 s63, s29, 6")
    p("s_add_u32 s35, s64, s63")
    p("s_lshl_b32 s63, s55, 6")
    p("s_add_u32 s64, s64, s63")
    p("s_lshl_b32 s51, s29, 20")
    p("s_add_u32 s51, s51, s49")
    p(f"s_add_u32 s51, s51, {WS_KV:#x}")
    p("s_lshl_b32 s56, s29, 10")
    p(f"s_add_u32 s56, s56, {128 * 1024}")
    p("s_add_u32 s100, s56, s32")
    p("s_add_u32 s101, s56, s33")
    p("s_lshl_b32 s61, s34, 8")
    p("s_lshr_b32 s63, s60, 1")
    p(f"s_mul_i32 s63, s63, {8 * 3584}")
    p("s_add_u32 s61, s61, s63")
    p("s_lshl_b32 s52, s34, 10")
    p("s_lshl_b32 s63, s60, 15")
    p("s_add_u32 s52, s52, s63")
    p("v_lshrrev_b32 v241, 3, v254")
    p("v_lshlrev_b32 v241, 13, v241")
    p("v_and_b32 v242, 7, v254")
    for n in range(8):
        p(f"v_xor_b32 v243, {n}, v242")
        p(f"v_lshl_add_u32 v{224 + n}, v243, 4, v241")
    p("v_and_b32 v241, 7, v254")
    p("v_bfe_u32 v242, v254, 3, 1")
    p("v_lshlrev_b32 v242, 7, v242")
    p("v_lshl_add_u32 v242, v241, 10, v242")
    p("v_add_u32 v242, s48, v242")
    p("v_lshrrev_b32 v243, 4, v254")
    for tt in range(2):
        p(f"v_add_u32 v244, {4 * tt}, v243")
        p("v_xor_b32 v244, v244, v241")
        p(f"v_lshl_add_u32 v{232 + tt}, v244, 4, v242")
    p("v_lshlrev_b32 v241, 9, v243")
    p("v_bfe_u32 v242, v254, 2, 2")
    p("v_lshl_add_u32 v241, v242, 6, v241")
    p("v_and_b32 v242, 3, v254")
    p("v_lshl_add_u32 v241, v242, 3, v241")
    p("v_and_b32 v242, 1, v243")
    p("v_lshl_add_u32 v234, v242, 5, v241")
    p("v_xor_b32 v237, 32, v234")
    for cf in range(2):
        p(f"v_add_u32 v{235 + 3 * cf}, 0x10000, v{234 + 3 * cf}")
        p(f"v_add_u32 v{236 + 3 * cf}, 0x20000, v{234 + 3 * cf}")
    p("v_lshrrev_b32 v244, 5, v254")
    p("v_lshlrev_b32 v251, 30, v244")
    p("v_lshlrev_b32 v244, 1, v244")
    p("v_and_b32 v245, 3, v254")
    p("v_xor_b32 v245, v245, v244")
    p("v_lshlrev_b32 v245, 4, v245")
    p("v_lshrrev_b32 v244, 2, v254")
    p("v_lshl_add_u32 v241, v244, 13, v245")
    p("v_mul_u32_u24 v244, 3584, v244")
    p("v_add_u32 v242, v244, v245")
    p("v_bfe_u32 v245, v254, 2, 3")
    p("v_mul_u32_u24 v245, 3584, v245")
    p("v_and_b32 v244, 1, v254")
    p("v_lshl_add_u32 v245, v244, 7, v245")
    p("v_bfe_u32 v244, v254, 1, 1")
    p("v_lshl_add_u32 v245, v244, 11, v245")
    p("v_or_b32 v245, v245, v251")
    p("v_and_b32 v243, 15, v254")
    p("v_lshlrev_b32 v243, 2, v243")
    p("v_lshlrev_b32 v48, 7, v254")
    p("v_lshl_add_u32 v48, v255, 5, v48")
    p("v_lshl_add_u32 v49, v255, 11, v240")
    p("v_lshrrev_b32 v50, 3, v254")
    p("v_lshlrev_b32 v50, 8, v50")
    p("v_and_b32 v51, 7, v254")
    p("v_lshl_add_u32 v50, v51, 4, v50")
    p("s_waitcnt lgkmcnt(0)")
    p("s_cmp_eq_u32 s45, 0")
    p("s_cselect_b32 s40, s40, s42")
    p("s_cselect_b32 s41, s41, s43")
    p("s_mov_b32 s24, s98")
    p("s_mov_b32 s25, s99")
    p("s_mov_b32 s26, 256")
    p("s_lshl_b32 s56, s55, 10")
    p(f"s_add_u32 s56, s56, {128 * 1024}")
    p("s_add_u32 s98, s56, s32")
    p("s_add_u32 s99, s56, s33")
    p("s_lshl_b32 s63, s2, 7")
    p(f"s_add_u32 s63, s63, {WS_FLAG:#x}")
    p.wait_vm("ln")
    if DIAG and not DIAG2: p.items.append(stamp(3))
    emit_ln(p)
    p("ds_write_b128 v48, v[40:43]")
    p("ds_write_b128 v48, v[44:47] offset:16")
    p("s_lshr_b32 s58, s2, 1")
    p("s_lshl_b32 s58, s58, 14")
    p("s_and_b32 s59, s2, 1")
    p("s_lshl_b32 s59, s59, 7")
    p("s_add_u32 s58, s58, s59")
    p("s_add_u32 s58, s58, s49")
    if WS_XN: p(f"s_add_u32 s58, s58, {WS_XN:#x}")
    p("s_waitcnt lgkmcnt(0)")
    p("s_barrier")
    p("ds_read_b128 v[40:43], v49")
    p("ds_read_b128 v[44:47], v49 offset:1024")
    p("s_lshr_b32 s59, s2, 4")
    p("s_lshl_b32 s59, s59, 2")
    p("s_waitcnt lgkmcnt(0)")
    p(f"buffer_store_dwordx4 v[40:43], v50, s[20:23], s58 offen{STF}", "xnst")
    p(f"buffer_store_dwordx4 v[44:47], v50, s[20:23], s58 offen offset:2048{STF}", "xnst")
    p(f"buffer_store_dword v250, v248, s[20:23], s63 offen{STF}", "zf")
    p(f"buffer_store_dword v250, v248, s[20:23], s63 offen offset:4{STF}", "zf")
    p(f"buffer_store_dword v250, v248, s[20:23], s3 offen{STF}", "zf")
    p("s_barrier")

    BLK = [6, 7, 8, 9, 6, 7, 8, 9, 0, 1, 2, 3, 4, 5, 6, 7, 8, 9, 0, 1, 2, 3, 6, 7, 8, 9, 4, 5, 6, 7, 8, 9]
    def dma_A(s):
        ops = []
        for n in range(8):
            pre = []
            if n % 4 == 0:
                pre = [f"s_add_u32 m0, s48, {(s % 3) * 8192 + (n // 4) * 4096}", f"s_add_u32 s56, s31, {s * 128 + (n // 4) * 4096}"]
            ops.append((pre, f"buffer_load_dwordx4 v{224 + n}, s[8:11], s56 offen offset:{(n % 4) * 1024} lds", ("A", s)))
        return ops
    def dma_W(n):
        ops = []
        kq = n % 4
        for q in range(4):
            m0 = "s53"
            if n < 8:
                pre = [f"s_add_u32 s57, s54, {(kq * 128 + q * 16) * 8192 + (n // 4) * 128 - q * 1024}"]
                ins = f"buffer_load_dwordx4 v241, s[12:15], s57 offen offset:{q * 1024} lds"
            elif n < 16:
                pre = [f"s_add_u32 s57, s50, {((n - 8) * 64 + q * 16) * 8192 - q * 1024}"]; m0 = "s49"
                ins = f"buffer_load_dwordx4 v241, s[16:19], s57 offen offset:{q * 1024} lds"
            elif n < 24:
                pre = [f"s_add_u32 s57, s{35 if n < 20 else 64}, {(kq * 128 + q * 16) * 3584 - q * 1024}"]
                ins = f"buffer_load_dwordx4 v242, s[12:15], s57 offen offset:{q * 1024} lds"
            else:
                pre = [f"s_add_u32 s57, s65, {(kq * 128 + q * 16) * 8192 - q * 1024 + (128 if n >= 28 else 0)}"]
                ins = f"buffer_load_dwordx4 v241, s[8:11], s57 offen offset:{q * 1024} lds"
            if q == 0: pre = [f"s_add_u32 m0, {m0}, {BLK[n] * 16384}"] + pre
            ops.append((pre, ins, ("L", n)))
        return ops
    def kv_half(tile, part):
        ops = []
        for q in range(4):
            pre = []
            if q == 0: pre = [f"s_add_u32 m0, s49, {tile * 32768 + part * 16384}", f"s_add_u32 s57, s51, {tile * 32768 + part * 16384}"]
            ops.append((pre, f"buffer_load_dwordx4 v240, s[20:23], s57 offen offset:{q * 1024} sc1 lds", ("kv", tile, part)))
        return ops
    def now(ops):
        for pre, ins, tag in ops:
            for x in pre: p(x)
            p(ins, tag)
    now(dma_W(0) + dma_A(0) + dma_A(1) + dma_W(1) + dma_A(2))

    groups = []
    def accT(base, c, cf, rb): return base + (c * 4 + rb) * 8 + cf * 4
    def accV(base, c, cf, rb): return base + ((c * 2 + cf) * 2 + (rb >> 1)) * 8 + (rb & 1) * 4
    def add_double(seg0, bases):
        for s in range(8):
            for tt in range(2):
                for c in range(4):
                    for cf in range(2):
                        groups.append(dict(off=BLK[seg0 + s] * 16384 + c * 4096 + tt * 2048, cf=cf, t=2 * s + tt,
                                           acc=[accV(bases[c >> 1], c & 1, cf, rb) for rb in range(4)], vt=True))
    def add_single(seg0, base):
        for q in range(4):
            for tq in range(4):
                for c in range(2):
                    for cf in range(2):
                        groups.append(dict(off=BLK[seg0 + q] * 16384 + c * 8192 + tq * 2048, cf=cf, t=4 * q + tq,
                                           acc=[accT(base, c, cf, rb) for rb in range(4)], vt=False))
    add_single(0, 0); add_single(4, 64); add_double(8, [128, 0])
    add_single(16, 64); add_single(20, 128); add_single(24, 0); add_single(28, 64)
    NG = len(groups)
    mf = []
    for n, G in enumerate(groups):
        w = vr(192 + 4 * (n % 8))
        for rb in range(4):
            a = ar((rb * 16 + G["t"]) * 4)
            d = vr(G["acc"][rb])
            c = 0 if G["t"] == 0 else d
            mf.append(f"{MF} {d}, {a}, {w}, {c}" if G["vt"] else f"{MF} {d}, {w}, {a}, {c}")
    S = Sched16(mf)
    def w_reads(n):
        G = groups[n]
        out = []
        for hf in range(2):
            off = G["off"] + hf * 256
            d = 192 + 4 * (n % 8) + 2 * hf
            out.append(f"ds_read_b64_tr_b16 v[{d}:{d + 1}], v{234 + 3 * G['cf'] + (off >> 16)} offset:{off & 0xffff}")
        return out
    def a_reads(s):
        return [f"ds_read_b128 {ar((rb * 16 + 2 * s + tt) * 4)}, v{232 + tt} offset:{(s % 3) * 8192 + rb * 256}" for tt in range(2) for rb in range(4)]
    RA = 5
    if DIAG and not DIAG2: p.items.append(stamp(4))
    p.wait_vm(("A", 0))
    p("s_barrier")
    if DIAG and not DIAG2: p.items.append(stamp(5))
    for x in a_reads(0): p(x, ("Ar", 0))
    for n in range(RA):
        for x in w_reads(n): p(x, ("W", n))
    p.wait_lgkm(("W", 0))
    for n in range(RA, NG):
        k = n % 16
        if k <= 13: g = 4 * (n - RA)
        elif k == 14: g = 4 * (n - 6) + 2
        else: g = 4 * (n - 6)
        for i, x in enumerate(w_reads(n)): S.add_mem(g + i, x, ("W", n))
    for n in range(1, NG): S.add_first(4 * n - 1, Wait("lgkm", ("W", n)))
    for s in range(1, 8):
        g = 32 * s - 22
        S.add_first(g, Wait("vm", ("A", s)))
        for i, x in enumerate(a_reads(s)): S.add_mem(g + [0, 0, 1, 1, 4, 4, 5, 5][i], x, ("Ar", s))
        S.add_first(32 * s - 10, Wait("lgkm", ("Ar", s)))
    def gB(n): return 64 * n + 4 * 11
    for n in range(31):
        tags = [("L", n + 1)]
        if n == 0: tags += ["xnst", "zf"]
        if n == KVPUB: tags.append("kvst")
        S.add_first(gB(n) - 2, Ins("s_waitcnt lgkmcnt(0)"))
        S.add_first(gB(n), Wait("vm", tags))
        S.add_first(gB(n), "s_barrier")
    def win(n): return gB(n - 1) + 1
    LD = []
    def ld(ops, e, pace=1):
        for i, (pre, ins, tag) in enumerate(ops): LD.append(Op(ins, e + i * pace, 2040, pre=pre, tag=tag))
    one = lambda ins, tag, pre=(): [([], x, None) for x in pre] + [([], ins, tag)]
    ld(dma_A(3), 0); ld(dma_W(2), 8); ld(dma_A(4), 22)
    ld(dma_A(5), 54); ld(dma_W(3), 62); ld(dma_A(6), 86); ld(dma_A(7), 118); ld(dma_W(4), 126); ld(dma_W(5), 140, 4)
    ld(one("buffer_atomic_add v249, v248, s[24:27], s59 offen offset:128", "pub"), win(3))
    ld(one("buffer_load_dword v246, v253, s[16:19], s62 offen" + NTV, "pf"), win(3))
    ld(dma_W(6), win(3), 2); ld(dma_W(7), VW0 - 24, 4)
    for n in range(8, 13): ld(dma_W(n), VW0 + (n - 8) * 24, 5)
    ld(one("buffer_load_dword v250, v245, s[12:15], s61 offen", "pf", ["s_mov_b32 s12, s40", "s_mov_b32 s13, s41", f"s_mov_b32 s14, {512 * 3584}"]), win(8))
    print("ld1", schedule(S, [LD], 0, 511, base_cap=3), "last", LD[-1].g, [o.g for o in LD if o.tag in ("pf", "poll")])
    gc = XNC
    S.add_mem(gc - 50, "buffer_load_dword v244, v243, s[24:27], 0 offen offset:128 sc1", "poll")
    S.add_first(gc, Wait("vm", "poll"))
    S.add_valu(gc, "v_cmp_gt_u32 vcc, 16, v244")
    S.add_valu(gc, "v_add_u32 v247, 0x4000, v240")
    S.add_last(gc + 2, "s_cbranch_vccnz L_xnwait")
    S.add_last(gc + 2, "L_xnok:")
    LD = []
    for n in range(13, 24): ld(dma_W(n), max(win(9) + (n - 13) * 44, win({22: 15, 23: 16}.get(n, 9))), 10)
    S.add_valu(64 * 12, "v_and_b32 v253, 0xfffffbff, v253")
    S.add_valu(64 * 12 + 1, "v_bfe_u32 v246, v254, 3, 1")
    S.add_valu(64 * 12 + 2, "v_lshl_or_b32 v253, v246, 30, v253")
    ld(one("buffer_load_dword v244, v253, s[8:11], s52 offen", "pf", ["s_mov_b32 s8, s36", "s_mov_b32 s9, s37", "s_mov_b32 s10, 0x400000"]), win(17))
    for n in range(24, 32): ld(dma_W(n), win(n - 5), WP)
    S.add_valu(64 * 26, "v_and_b32 v243, 0x380, v252")
    ld(one("buffer_load_dword v244, v243, s[20:23], s59 offen sc1", "poll2", ["s_lshl_b32 s59, s29, 10", f"s_add_u32 s59, s59, {WS_FLAG + 0x10000:#x}"]), 64 * 27)
    gc = win(28) + 1
    ld(kv_half(0, 0) + kv_half(0, 1) + kv_half(1, 0) + kv_half(1, 1) + kv_half(2, 0) + kv_half(2, 1), gc + 4, 4)
    ld(kv_half(3, 0), win(29), 4)
    S.add_first(gc, Wait("vm", "poll2"))
    S.add_valu(gc, "v_cmp_ne_u32 vcc, 1, v244")
    S.add_last(gc + 2, "s_cbranch_vccnz L_kvwait")
    S.add_last(gc + 2, "L_kvok:")
    print("ld2", schedule(S, [LD], 512, 2046, base_cap=3), "last", LD[-1].g)
    XL = []
    for t in range(16):
        for rb in range(4):
            pre = []
            if t % 4 == 0 and rb % 2 == 0: pre = [f"s_add_u32 s{62 + rb // 2}, s{46 + rb // 2}, {WS_XN + t * 1024}"]
            vo = 240 if rb % 2 == 0 else 247
            XL.append(Op(f"buffer_load_dwordx4 {ar((rb * 16 + t) * 4)}, v{vo}, s[20:23], s{62 + rb // 2} offen offset:{(t % 4) * 1024} sc1",
                         max(512 + 32 * t + 32 + (6 * rb if t < 15 else 0), XNC + 4 + 5 * (4 * t + rb)), 1024 + 16 * t - 60 if t < 10 else 512 + 32 * t + 64, pre=pre, tag=("X", t)))
    for t in range(16): S.add_first(1024 + 16 * t - 2, Wait("vm", ("X", t)))
    def kv_epi(kind, u, base, g0, g1, st0):
        ops = []
        for k8 in range(8):
            R = base + 8 * k8
            if kind == "K":
                c, rb = k8 // 4, k8 % 4
                off = rb * 4096 + (2 * u + c) * 1024
                for r in range(8): ops.append(Op(f"v_mul_f32 v{R + r}, {f2u(KSCALE):#x}, v{R + r}", g0, g1))
            else:
                db, s = 4 * u + k8 // 2, k8 % 2
                off = 16384 + s * 8192 + db * 1024
            cv = [Op(f"v_cvt_pk_bf16_f32 v{R + k}, v{R + 2 * k}, v{R + 2 * k + 1}", g0, g1) for k in range(4)]
            ops += cv
            ops.append(Op(f"buffer_store_dwordx4 {vr(R)}, v240, s[20:23], s95 offen offset:{off & 4095}{STF}", max(g0, st0[0] + int(k8 * st0[1])), g1, [cv[-1]],
                          pre=[f"s_add_u32 s95, s94, {off & ~4095}"], tag="kvst"))
        return ops
    C0 = -2.0 * math.sqrt(2.0 / math.pi) * LOG2E
    C1 = C0 * 0.044715
    S.add_valu(64 * 17, f"v_mov_b32 v232, {f2u(C0):#x}")
    S.add_valu(64 * 17 + 1, f"v_mov_b32 v233, {f2u(C1):#x}")
    S.add_valu(64 * 17 + 2, f"v_add_u32 v246, {ACT_ROW}, v240")
    def gu_epi(base, psg, g0, g1, gst):
        st = [[], []]; sto = []
        for rb in range(4):
            G = base + rb * 8; U = base + 32 + rb * 8
            L = st[rb & 1]
            for r in range(8):
                t = 224 + (r % 4) + 4 * (rb & 1)
                o4 = Op(f"v_exp_f32 v{t}, v{t}", g0, g1)
                o7 = Op(f"v_rcp_f32 v{t}, v{t}", g0, g1)
                L += [Op(f"v_mul_f32 v{t}, v{G + r}, v{G + r}", g0, g1), Op(f"v_fma_f32 v{t}, v{t}, v233, v232", g0, g1),
                      Op(f"v_mul_f32 v{t}, v{t}, v{G + r}", g0, g1), o4, Op(f"v_mul_f32 v{G + r}, v{G + r}, v{U + r}", g0, g1),
                      Op(f"v_add_f32 v{t}, 1.0, v{t}", g0, g1), o7, Op(f"v_mul_f32 v{G + r}, v{G + r}, v{t}", g0, g1, [o7])]
            cv = [Op(f"v_cvt_pk_bf16_f32 v{G + k}, v{G + 2 * k}, v{G + 2 * k + 1}", g0, g1 - 2) for k in range(4)]
            L += cv
            sto.append(Op(f"buffer_store_dwordx4 {vr(G)}, v{240 if rb % 2 == 0 else 246}, s[20:23], s{psg + rb // 2} offen{STF}", gst + 30 * rb, g1, [cv[-1]], tag="hst"))
        return st, sto
    def q_epi(base, u, g0, g1, gmove):
        cvs = []; mv = []
        for c in range(2):
            for qb in range(4):
                R = base + (c * 4 + qb) * 8
                for k in range(4):
                    o = Op(f"v_cvt_pk_bf16_f32 v{R + k}, v{R + 2 * k}, v{R + 2 * k + 1}", g0, g1)
                    cvs.append(o)
                    mv.append(Op(f"v_accvgpr_write_b32 a{Qreg(qb, 2 * u + c) + k}, v{R + k}", gmove, g1, [o]))
        return cvs, mv
    PH = [256 * k for k in range(9)]
    PE = 2048
    kvs = kv_epi("K", 0, 0, PH[1] + 6, PH[2] - 3, (PH[1] + 16, STP)) + kv_epi("K", 1, 64, PH[2] + 6, PH[4] - 3, (PH[2] + 16, STPK1)) + \
          kv_epi("V", 0, 128, PH[4] + 6, PH[5] - 3, (PH[4] + 12, STP)) + kv_epi("V", 1, 0, PH[4] + 6, PH[6] - 3, (PH[4] + 12 + 8 * STP, STP))
    print("kv epi", schedule(S, [XL, kvs], PH[1], PH[6]), "last store", kvs[-1].g, "pub at", gB(KVPUB))
    assert kvs[-1].g < gB(KVPUB)
    st0, so0 = gu_epi(64, 100, PH[5] + 6, PH[7] - 3, PH[6])
    st1, so1 = gu_epi(128, 98, PH[6] + 6, PE - 2, PH[6] + 130)
    q0c, q0m = q_epi(0, 0, PH[7] + 6, PE - 2, PH[7] + 130)
    print("gu epi", schedule(S, [st0[0] + st1[0], st0[1] + st1[1], so0 + so1, q0c, q0m], PH[5], PE - 1))
    S.add_mem(gB(KVPUB) + 2, f"buffer_store_dword v249, v248, s[20:23], s3 offen{STF}", "pub")
    if DIAG and not DIAG2:
        S.add_first(512, stamp(6)); S.add_first(1024, stamp(7)); S.add_first(PE - 1, stamp(8))
    if DIAG2:
        for k, g in enumerate(DIAG2): S.add_first(g, stamp(2 + k))
    print(S.report("gemm")[:600])
    its = S.items()
    DROP = os.environ.get("DROP", "").split(",")
    def keep(i):
        if isinstance(i, Ins):
            tg = i.tag[0] if isinstance(i.tag, tuple) else i.tag
            if tg in DROP and tg: return False
        if isinstance(i, Wait):
            tags = i.tag if isinstance(i.tag, list) else [i.tag]
            tags = [t for t in tags if (t[0] if isinstance(t, tuple) else t) not in DROP]
            if not tags: return False
            i.tag = tags
        return True
    p.extend([i for i in its if keep(i)])
    p("v_and_b32 v252, 0xfff, v252")
    p("v_or_b32 v252, v252, v251")
    p("s_mov_b32 s4, s38")
    p("s_mov_b32 s5, s39")
    p("s_mov_b32 s6, 0x400000")
    p("s_mov_b32 s7, 0x20000")
    p("s_lshl_b32 s59, s2, 2")
    p("s_add_u32 s59, s59, s28")
    p("s_lshl_b32 s50, s59, 12")
    p("buffer_load_dword v250, v252, s[4:7], s50 offen", "pf")
    p("s_mov_b32 s4, s96")
    p("s_mov_b32 s5, s97")
    p(f"s_mov_b32 s6, {1792 * 1024}")
    p("buffer_load_dword v251, v252, s[4:7], s50 offen", "pf")

    p(f"v_mov_b32 v{VCUR}, v240")
    p(f"v_add_u32 v{VPREV}, 0x10000, v240")
    p("v_and_b32 v241, 15, v254")
    p("v_lshl_add_u32 v241, v255, 5, v241")
    p("v_lshrrev_b32 v242, 4, v254")
    p("v_lshlrev_b32 v242, 2, v242")
    p("v_sub_u32 v241, v241, v242")
    p("v_cvt_f32_i32 v241, v241")
    p("v_add_f32 v241, 0.5, v241")
    p(f"v_mul_f32 v{VTM}, {f2u(BIG):#x}, v241")
    p(f"s_mov_b32 s{S_THR}, {f2u(THR):#x}")
    p("s_mov_b32 s52, s49")
    p(f"s_add_u32 s53, s49, {3 * 32768 + 16384}")
    p(f"s_add_u32 s54, s51, {4 * 32768}")
    p(f"s_add_u32 s55, s51, {3 * 32768 + 16384}")
    p.wait_vm(("kv", 1, 0))
    p("s_barrier")
    order = [kb * 4 + t for t in range(4) for kb in range(4)]
    for f in order: p(f"ds_read_b128 {ar(Fbuf(f))}, v{VCUR} offset:{f * 1024}", ("K0", f))
    for k in range(4): p(f"v_mov_b32 v{ONES + k}, 0x3f803f80")
    p(f"s_mov_b32 s26, {f2u(-2.0 ** 120):#x}")
    p(f"s_mov_b32 s27, {f2u(2.0 ** 120):#x}")
    p("s_cmp_eq_u32 s30, 0")
    p("s_cselect_b32 s60, s26, s27")
    p(f"v_max_f32 v{VTMASK}, s60, v{VTM}")
    p.wait_lgkm(("K0", 0))
    mf = []
    for f in order:
        kb, t = f // 4, f % 4
        for qb in range(4):
            d = Sreg(0, qb, kb)
            mf.append(f"{MF} {vr(d)}, {ar(Fbuf(f))}, {ar(Qreg(qb, t))}, {0 if t == 0 else vr(d)}")
    S = Sched16(mf)
    for i, f in enumerate(order[1:]): S.add_first(4 * i + 3, Wait("lgkm", ("K0", f)))
    q1c, q1m = q_epi(64, 1, 0, 29, 0)
    for o in q1c[16:] + q1m[16:]: o.d = 45
    schedule(S, [q1c, q1m], 0, 63)
    p.extend(S.items())
    p("s_barrier")
    p("s_mov_b32 m0, s52")
    for f, ins in enumerate(tail_reads(VCUR, 32768)): p(ins)
    for qq_ in range(4): p(f"buffer_load_dwordx4 v240, s[20:23], s54 offen offset:{qq_ * 1024} sc1 lds", "kv")
    p("s_mov_b32 m0, s53")
    for qb in (2, 3):
        for kb in range(4):
            b = Sreg(0, qb, kb)
            for r in range(4):
                kk = 16 * kb + r - 16 * (qb & 1)
                p(f"v_subrev_f32 v{TMP[r % 2]}, {f2u(kk * BIG):#x}, v{VTMASK}")
                p(f"v_min_f32 v{b + r}, v{b + r}, v{TMP[r % 2]}")
    for qb in range(4):
        rowmax(p, 0, qb)
        for r in range(4): p(f"v_sub_f32 v{NEGM(qb) + r}, 0, v{TMP[0]}")
        for r in range(16): p(f"v_sub_f32 v{Sreg(0, qb, 0) + r}, v{Sreg(0, qb, 0) + r}, v{TMP[0]}")
    p("s_waitcnt lgkmcnt(0)")
    pro = [i.t for i in resolve(p.items)]

    stubs = []
    def check(site, par, dual):
        stubs.append((site, par, dual))
        return [f"s_cbranch_vccnz L_stub_{site}", f"L_ret_{site}:"]
    def it_odd(name, tq, tp, masked):
        return gen_iter(name, tq, tp, 0, masked, 0, VCUR, 0, VPREV, 49152, VCUR, 32768, end_ops=check(name, 0, tq == "D"))
    def it_even(name, tq, tp, masked, extra_end=(), first_pv=False):
        return gen_iter(name, tq, tp, 1, masked, 1, VCUR, 32768, VCUR, 16384, VPREV, 0, first_pv=first_pv,
                        end_ops=check(name, 1, tq == "D") + list(extra_end[2:]), swap=True, mid_ops=extra_end[:2])
    seg = {}
    seg["P"] = pro + it_even("it0", "D", "D", True, first_pv=True)
    seg["UDD"] = it_odd("uddA", "D", "D", False) + it_even("uddB", "D", "D", False, ["s_sub_u32 s24, s24, 1", "s_cmp_lg_u32 s24, 0", "s_cbranch_scc1 L_udd"])
    seg["UDDm"] = it_odd("uddmA", "D", "D", True) + it_even("uddmB", "D", "D", True)
    seg["UDSm"] = it_odd("udsA", "S", "D", True) + it_even("udsB", "S", "S", True)
    seg["USS"] = it_odd("ussA", "S", "S", False) + it_even("ussB", "S", "S", False, ["s_sub_u32 s24, s24, 1", "s_cmp_lg_u32 s24, 0", "s_cbranch_scc1 L_uss"])
    seg["USSm"] = it_odd("ussmA", "S", "S", True) + it_even("ussmB", "S", "S", True)
    q = Prog()
    for f in range(16): q(f"ds_read_b128 {ar(Fbuf(16 + f))}, v{VPREV} offset:{49152 + f * 1024}", ("VE", f))
    if OPF:
        q("s_lshr_b32 s56, s2, 3")
        q("s_lshl_b32 s56, s56, 2")
        q("s_add_u32 s56, s56, s28")
        q("s_lshr_b32 s57, s34, 1")
        q(f"s_mul_i32 s58, s57, {448 * 1024}")
        q(f"s_mul_i32 s59, s56, 3584")
        q("s_add_u32 s58, s58, s59")
        q("buffer_load_dword v250, v252, s[4:7], s58 offen")
        q("v_lshlrev_b32 v253, 7, v254")
        q("s_lshl_b32 s58, s57, 20")
        q("s_lshl_b32 s59, s56, 13")
        q("s_add_u32 s58, s58, s59")
        q("s_mov_b32 s4, s38")
        q("s_mov_b32 s5, s39")
        q("s_mov_b32 s6, 0x400000")
        q("buffer_load_dword v251, v253, s[4:7], s58 offen")
    for qb in range(2):
        b = Sreg(1, qb, 0)
        for r in range(16): q(f"v_exp_f32 v{b + r}, v{b + r}")
    for qb in range(2):
        b = Sreg(1, qb, 0)
        for k in range(8): q(f"v_cvt_pk_bf16_f32 v{Preg(qb, 0) + k}, v{b + 2 * k}, v{b + 2 * k + 1}")
    q("s_waitcnt lgkmcnt(0)")
    mf = []
    for s in range(2):
        for qb in range(2): mf.append(f"{MF} {vr(LACC(qb))}, {vr(ONES)}, {vr(Preg(qb, s))}, {vr(LACC(qb))}")
        for db in range(8):
            for qb in range(2):
                mf.append(f"{MF} {ar(Oreg(qb, db))}, {ar(Fbuf(16 + s * 8 + db))}, {vr(Preg(qb, s))}, {ar(Oreg(qb, db))}")
    def o_epi(qb):
        ops = [f"v_rcp_f32 v{TMP[qb]}, v{LACC(qb)}"]
        for t in range(4):
            R = (qb * 4 + t) * 8
            a = Oreg(qb, 2 * t)
            ops += [f"v_accvgpr_read_b32 v{R + k}, a{a + k}" for k in range(8)]
            ops += [f"v_mul_f32 v{R + k}, v{R + k}, v{TMP[qb]}" for k in range(8)]
            ops += [f"v_cvt_pk_bf16_f32 v{R + k}, v{R + 2 * k}, v{R + 2 * k + 1}" for k in range(4)]
            ops.append(f"buffer_store_dwordx4 {vr(R)}, v{240 if qb % 2 == 0 else 246}, s[20:23], s{100 + qb // 2} offen offset:{t * 1024}{STF}")
        return ops
    q("s_lshl_b32 s56, s29, 12")
    q("s_add_u32 s100, s56, s32")
    q("s_add_u32 s101, s56, s33")
    S = Sched16(mf)
    eo = o_epi(2) + o_epi(3)
    ne = 0
    for g in range(len(mf)):
        while ne < len(eo) and S.load(g) + cost(eo[ne]) <= 2:
            if is_vm(eo[ne]):
                if S.valu[g]: break
                S.add_mem(g, eo[ne])
            else: S.add_valu(g, eo[ne])
            ne += 1
    q.extend(S.items())
    if DIAG and not DIAG2: q.items.append(stamp(10))
    for x in eo[ne:] + o_epi(0) + o_epi(1): q(x)
    if DIAG:
        if not DIAG2: q.items.append(stamp(11))
        q("s_waitcnt vmcnt(0)")
        q.items.append(stamp(12)); q.items.append(stamp(13, True))
        dump_stamps(q, 0, 28, 20)
        if os.environ.get("DBGOUT"):
            wg = int(os.environ["DBGOUT"])
            q("s_load_dwordx2 s[24:25], s[0:1], 88")
            q("s_waitcnt lgkmcnt(0)")
            q("s_mov_b32 s26, 256")
            q("s_mov_b32 s27, 0x20000")
            q(f"s_cmp_eq_u32 s2, {wg}")
            q("s_cselect_b32 s64, 0, 0x1000")
            for k in range(1, 14): q(f"v_subrev_u32 v{k}, s66, v{k}")
            for qq in range(4): q(f"buffer_store_dwordx4 v[{4 * qq}:{4 * qq + 3}], v248, s[24:27], s64 offen offset:{16 * qq}")
    seg["E"] = [i.t for i in resolve(q.items)]

    out = list(seg["P"])
    if DIAG and not DIAG2: out.append(stamp(9).t)
    out += ["s_cmp_eq_u32 s30, 0", "s_cbranch_scc1 L_uds", "s_sub_u32 s24, s30, 1", "s_cmp_eq_u32 s24, 0", "s_cbranch_scc1 L_uddm"]
    out += [".p2align 3", "L_udd:"] + seg["UDD"]
    out += ["L_uddm:", f"v_mov_b32 v{VTMASK}, v{VTM}"] + seg["UDDm"]
    out += ["L_uds:", "s_cmp_eq_u32 s30, 7", "s_cselect_b32 s60, s26, s27", f"v_max_f32 v{VTMASK}, s60, v{VTM}"] + seg["UDSm"]
    out += ["s_cmp_eq_u32 s30, 7", "s_cbranch_scc1 L_fin", "s_lshl_b32 s24, s30, 1", "s_sub_u32 s24, 13, s24"]
    out += [".p2align 3", "L_uss:"] + seg["USS"]
    out += [f"v_mov_b32 v{VTMASK}, v{VTM}"] + seg["USSm"]
    out += ["L_fin:"] + seg["E"]
    out += ["L_f_end:", "s_endpgm"]
    out += ["L_xnwait:", "s_mov_b32 s44, 0x40000", "L_xnspin:", "s_sub_u32 s44, s44, 1", "s_cbranch_scc1 L_xnok", "s_sleep 2",
            "buffer_load_dword v244, v243, s[24:27], 0 offen offset:128 sc1", "s_waitcnt vmcnt(0)",
            "v_cmp_gt_u32 vcc, 16, v244", "s_cbranch_vccnz L_xnspin", "s_branch L_xnok"]
    out += ["L_kvwait:", "s_mov_b32 s44, 0x40000", "L_kvspin:", "s_sub_u32 s44, s44, 1", "s_cbranch_scc1 L_kvok", "s_sleep 2",
            "buffer_load_dword v244, v243, s[20:23], s59 offen sc1", "s_waitcnt vmcnt(0)",
            "v_cmp_ne_u32 vcc, 1, v244", "s_cbranch_vccnz L_kvspin", "s_branch L_kvok"]
    for site, par, dual in stubs:
        out += [f"L_stub_{site}:", f"s_call_b64 s[62:63], L_rare_{par}{'d' if dual else 's'}", f"s_branch L_ret_{site}"]
    for par in range(2):
        for dual in (True, False):
            out += [f"L_rare_{par}{'d' if dual else 's'}:"] + gen_rare(par, [0, 1, 2, 3] if dual else [0, 1])
    for path in (["P", "UDD", "UDD", "UDDm", "UDSm", "USS", "USS", "USSm", "E"], ["UDDm", "UDSm", "E"]):
        tx = []
        for k in path: tx += seg[k]
        for e in lint(tx, "f")[:40]: print(e)
    return out

KVPUB = int(os.environ.get("KVPUB", "24"))
STP = float(os.environ.get("STP", "29"))
STPK1 = float(os.environ.get("STPK1", "50"))
VW0 = int(os.environ.get("VW0", "350"))
WP = int(os.environ.get("WP", "14"))
XNC = int(os.environ.get("XNC", "640"))
CPF = int(os.environ.get("CPF", "1"))
if __name__ == "__main__":
    print(len(gen_f_kernel()))
```

```python
from asmlib import *
from sched16 import *
from gen_f import MF, WS_ACT, WS_PART, WS_FLAG, ACT_ROW, LOG2E, vr, ar, srd
import os

GPUB = int(os.environ.get('GPUB', '15'))
GPOLL = int(os.environ.get('GPOLL', '19'))
def gen_o_kernel():
    p = Prog()
    p("s_cmp_ge_u32 s2, 256")
    p("s_cbranch_scc1 L_o_end")
    if DIAG:
        for k in range(14): p(f"s_mov_b32 s{66 + 2 * k}, 0")
        p.items.append(stamp(0, True)); p.items.append(stamp(1))
    p("s_load_dwordx2 s[36:37], s[0:1], 0")
    p("s_load_dwordx2 s[38:39], s[0:1], 40")
    p("s_load_dwordx4 s[40:43], s[0:1], 72")
    p("s_load_dwordx2 s[44:45], s[0:1], 96")
    p("v_and_b32 v254, 63, v0")
    p("v_lshrrev_b32 v255, 6, v0")
    p("v_lshlrev_b32 v240, 4, v254")
    p("v_readfirstlane_b32 s28, v255")
    p("v_cmp_eq_u32 vcc, 0, v0")
    p("v_mov_b32 v248, 0x7ffff000")
    p("s_and_b32 s34, s2, 7")
    p("v_cndmask_b32_e64 v248, v248, 0, vcc")
    p("s_lshr_b32 s35, s2, 3")
    p("s_lshr_b32 s29, s34, 1")
    p("s_and_b32 s30, s34, 1")
    p("s_lshl_b32 s30, s30, 3")
    p("s_lshr_b32 s46, s35, 2")
    p("s_add_u32 s30, s30, s46")
    p("s_and_b32 s31, s35, 3")
    p("s_lshl_b32 s46, s30, 3")
    p("s_lshl_b32 s47, s28, 1")
    p("s_add_u32 s46, s46, s47")
    p(f"s_mul_i32 s46, s46, {ACT_ROW}")
    p(f"s_add_u32 s46, s46, {WS_ACT:#x}")
    p(f"s_mul_i32 s47, s29, {14 * 1024}")
    p("s_add_u32 s32, s46, s47")
    p(f"s_add_u32 s32, s32, {128 * 1024}")
    p("s_lshl_b32 s47, s29, 15")
    p("s_add_u32 s33, s46, s47")
    p(f"v_add_u32 v241, {ACT_ROW}, v240")
    p("s_lshl_b32 s46, s31, 8")
    p("s_lshl_b32 s47, s28, 13")
    p("s_add_u32 s46, s46, s47")
    p(f"s_mul_i32 s47, s29, {14 * 32 * 1024}")
    p("s_add_u32 s48, s46, s47")
    p("s_lshl_b32 s47, s29, 20")
    p("s_add_u32 s49, s46, s47")
    p("s_lshl_b32 s50, s28, 11")
    p("v_lshrrev_b32 v244, 4, v254")
    p("v_and_b32 v245, 15, v254")
    p("v_lshlrev_b32 v246, 1, v244")
    p("v_xor_b32 v245, v245, v246")
    p("v_lshlrev_b32 v244, 10, v244")
    p("v_lshl_add_u32 v242, v245, 4, v244")
    p("v_xor_b32 v243, 0x80, v242")
    p(f"v_add_u32 v243, {4096 - 1024}, v243")
    p("v_lshrrev_b32 v244, 2, v254")
    p("v_and_b32 v245, 7, v244")
    p("v_lshlrev_b32 v244, 8, v244")
    p("v_and_b32 v246, 3, v254")
    p("v_lshl_add_u32 v244, v246, 3, v244")
    for c in range(8):
        p(f"v_xor_b32 v246, {c}, v245")
        p(f"v_lshl_add_u32 v{208 + c}, v246, 5, v244")
        p(f"v_add_u32 v{216 + c}, 0x10000, v{208 + c}")
    p("s_lshl_b32 s51, s30, 2")
    p("s_add_u32 s51, s51, s31")
    p("s_lshl_b32 s52, s51, 18")
    p(f"s_add_u32 s52, s52, {WS_PART:#x}")
    p("s_lshl_b32 s46, s28, 16")
    p("s_lshl_b32 s47, s29, 13")
    p("s_add_u32 s53, s52, s46")
    p("s_add_u32 s53, s53, s47")
    p("s_lshl_b32 s46, s29, 16")
    p("s_lshl_b32 s47, s28, 11")
    p("s_add_u32 s54, s52, s46")
    p("s_add_u32 s54, s54, s47")
    p("s_cmp_eq_u32 s28, s29")
    p("s_cselect_b32 s53, 0x7ff00000, s53")
    p("s_mov_b32 s46, 0x24000")
    p("s_cselect_b32 s46, 0x20000, s46")
    p("v_add_u32 v236, s46, v240")
    p("v_lshl_add_u32 v237, v255, 11, v240")
    p("v_add_u32 v237, 0x20000, v237")
    for k in range(3):
        p(f"s_add_u32 s46, s29, {k + 1}")
        p("s_and_b32 s46, s46, 3")
        p("s_lshl_b32 s46, s46, 13")
        p(f"s_add_u32 s{61 + k}, s54, s46")
    p("s_lshl_b32 s55, s51, 9")
    p(f"s_add_u32 s55, s55, {WS_FLAG:#x}")
    p("s_lshl_b32 s46, s29, 7")
    p("s_add_u32 s56, s55, s46")
    p("v_and_b32 v247, 3, v254")
    p("v_lshlrev_b32 v247, 7, v247")
    p("v_and_b32 v244, 15, v254")
    p("v_lshlrev_b32 v244, 10, v244")
    p("v_lshrrev_b32 v245, 4, v254")
    p("v_lshl_add_u32 v238, v245, 3, v244")
    p("v_add_u32 v239, 0x4000, v238")
    p("s_lshl_b32 s46, s30, 17")
    p("s_lshl_b32 s47, s29, 15")
    p("s_add_u32 s46, s46, s47")
    p("s_lshl_b32 s47, s31, 8")
    p("s_add_u32 s46, s46, s47")
    p("s_lshl_b32 s47, s28, 6")
    p("s_add_u32 s57, s46, s47")
    p("s_waitcnt lgkmcnt(0)")
    srd(p, 24, 36, 0x200000)
    srd(p, 8, 38, 0x400000)
    srd(p, 12, 40, 1792 * 1024)
    srd(p, 16, 42, 0x200000)
    srd(p, 20, 44, 0x10000000)
    NK = 46; NC = 23
    PD = int(os.environ.get("OPD", "6"))
    def vm_ops(n):
        gp = n < 14
        j = n if gp else n - 14
        ops = []
        pre = [f"s_add_u32 m0, s50, {(n % 16) * 8192}", f"s_add_u32 s58, s{48 if gp else 49}, {j * 32768}"]
        wsrd = "s[12:15]" if gp else "s[8:11]"
        ops.append((pre, f"buffer_load_dwordx4 v242, {wsrd}, s58 offen lds", ("c", n // 2)))
        ops.append(([], f"buffer_load_dwordx4 v243, {wsrd}, s58 offen offset:1024 lds", ("c", n // 2)))
        pre = [f"s_add_u32 s59, s{32 if gp else 33}, {j * 1024}"] if j % 2 == 0 else []
        a = (n % 16) * 8
        ops.append((pre, f"buffer_load_dwordx4 {ar(a)}, v240, s[20:23], s59 offen offset:{(j % 2) * 1024}", ("c", n // 2)))
        ops.append(([], f"buffer_load_dwordx4 {ar(a + 4)}, v241, s[20:23], s59 offen offset:{(j % 2) * 1024}", ("c", n // 2)))
        return ops
    def w_reads(gi):
        n, c = gi // 8, gi % 8
        off = (n % 16) * 8192
        d = 128 + 4 * (gi % 16)
        return [f"ds_read_b64_tr_b16 v[{d + 2 * hf}:{d + 2 * hf + 1}], v{208 + 8 * (off >> 16) + c} offset:{(off & 0xffff) + hf * 4096}" for hf in range(2)]
    for n in range(2 * min(PD, 3)):
        for pre, ins, tag in vm_ops(n):
            for x in pre: p(x)
            p(ins, tag)
    if DIAG: p.items.append(stamp(2))
    p.wait_vm(("c", 0))
    p("s_barrier")
    if DIAG: p.items.append(stamp(3))
    RA = 8
    for gi in range(RA):
        for x in w_reads(gi): p(x, ("W", gi))
    p.wait_lgkm(("W", 0))
    mf = []
    for n in range(NK):
        base = 0 if n < 14 else 64
        first = n in (0, 14)
        for c in range(8):
            for tb in range(2):
                acc = base + ((c >> 1) * 2 + tb) * 8 + (c & 1) * 4
                mf.append(f"{MF} {vr(acc)}, {vr(128 + 4 * ((n * 8 + c) % 16))}, {ar((n % 16) * 8 + 4 * tb)}, {0 if first else vr(acc)}")
    S = Sched16(mf)
    NG = NK * 8
    for gi in range(RA, NG):
        ch, k = gi // 16, gi % 16
        for hf, x in enumerate(w_reads(gi)):
            g = 32 * ch - 16 + ((2 * k + hf) * 27) // 31
            S.add_mem(max(g, 0), x, ("W", gi))
    for gi in range(1, NG): S.add_first(2 * gi - 1, Wait("lgkm", ("W", gi)))
    def gB(ch): return 32 * ch + 16
    for ch in range(NC - 1):
        S.add_first(gB(ch) - 2, Ins("s_waitcnt lgkmcnt(0)"))
        S.add_first(gB(ch), Wait("vm", [("c", ch + 1)] + (["pub"] if ch == GPUB else [])))
        S.add_first(gB(ch), "s_barrier")
    nxt = min(PD, 3)
    for ch in range(NC):
        ops = []
        cnt = 0
        while nxt < NC and nxt <= ch + PD and cnt < 2:
            ops += vm_ops(2 * nxt) + vm_ops(2 * nxt + 1); nxt += 1; cnt += 1
        g = 32 * ch
        st = 4 if len(ops) <= 8 else 2
        for pre, ins, tag in ops:
            for x in pre: S.add_first(g, x)
            S.add_mem(g, ins, tag); g += st
    assert PD <= 6
    def pub(base, kind, g0, g1, pace=0):
        ops = []
        for k8 in range(8):
            R = base + 8 * k8
            cv = [Op(f"v_cvt_pk_bf16_f32 v{R + k}, v{R + 2 * k}, v{R + 2 * k + 1}", g0, g1) for k in range(4)]
            ops += cv
            pre = [f"s_add_u32 s60, s53, {kind * 32768 + (k8 // 4) * 4096}"] if k8 % 4 == 0 else []
            ops.append(Op(f"buffer_store_dwordx4 {vr(R)}, v240, s[20:23], s60 offen offset:{(k8 % 4) * 1024} sc1", g0 + k8 * pace, g1, [cv[-1]], pre=pre, tag="pub"))
            ops.append(Op(f"ds_write_b128 v236, {vr(R)} offset:{kind * 8192 + k8 * 1024}", g0, g1, tag="own"))
        return ops
    NM = len(mf)
    schedule(S, [pub(0, 0, 14 * 16 + 6, gB(GPUB) - 20, 20)], 14 * 16, NM - 1, base_cap=3)
    S.add_valu(200, "v_mov_b32 v249, 1")
    S.add_mem(gB(GPUB) + 1, "buffer_store_dword v249, v248, s[20:23], s56 offen offset:4 sc1", "flag")
    for k in range(4):
        S.add_mem(gB(GPUB) + 5 + 4 * k, f"buffer_load_dwordx2 v[{192 + 2 * k}:{193 + 2 * k}], v{238 + k // 2}, s[24:27], s57 offen offset:{32 * (k % 2)}", "x")
    gp = 32 * GPOLL
    S.add_mem(gp + 1, "buffer_load_dword v250, v247, s[20:23], s55 offen offset:4 sc1", "gpoll")
    gc = gp + 33
    S.add_first(gc + 1, Wait("vm", "gpoll"))
    S.add_valu(gc + 1, "v_cmp_ne_u32 vcc, 1, v250")
    S.add_last(gc + 2, "s_cbranch_vccnz L_o_gwait")
    S.add_last(gc + 2, "L_o_gok:")
    for k in range(3):
        for tb in range(2):
            S.add_mem(gc + 3 + 2 * (2 * k + tb), f"buffer_load_dwordx4 {vr(8 * k + 4 * tb)}, v240, s[20:23], s{61 + k} offen offset:{tb * 1024} sc1", "gg")
    for tb in range(2): S.add_mem(gc + 4 + 2 * tb, f"ds_read_b128 {vr(24 + 4 * tb)}, v237 offset:{tb * 1024}", "gown")
    if DIAG:
        S.add_first(14 * 16, stamp(4)); S.add_first(30 * 16, stamp(5)); S.add_first(NM - 1, stamp(6))
    print(S.report("out")[:300])
    OD = os.environ.get("ODROP", "").split(",")
    def keep(i):
        if isinstance(i, Ins):
            if "dma" in OD and i.t.endswith(" lds"): return False
            if "act" in OD and i.t.startswith("buffer_load_dwordx4 a["): return False
            if "tr" in OD and i.t.startswith("ds_read_b64_tr"): return False
            if "bar" in OD and i.t == "s_barrier": return False
        if isinstance(i, Wait):
            tags = i.tag if isinstance(i.tag, list) else [i.tag]
            if "dma" in OD and "act" in OD: tags = [t for t in tags if not (isinstance(t, tuple) and t[0] == "c")]
            if "tr" in OD: tags = [t for t in tags if not (isinstance(t, tuple) and t[0] == "W")]
            if not tags: return False
            i.tag = tags
        return True
    p.extend([i for i in S.items() if keep(i)])
    p("s_nop 5")
    for o in pub(64, 1, 0, 0):
        for x in o.pre: p(x)
        p(o.t, o.tag)
    if DIAG: p.items.append(stamp(7))
    def unpack(dst, src, n=8):
        for k in range(n):
            p(f"v_lshlrev_b32 v{dst + 2 * k}, 16, v{src + k}")
            p(f"v_and_b32 v{dst + 2 * k + 1}, 0xffff0000, v{src + k}")
    def summ(D, T):
        unpack(D, 24)
        for k in range(3):
            unpack(T, 8 * k)
            for e in range(16): p(f"v_add_f32 v{D + e}, v{D + e}, v{T + e}")
    def rnd(b, T):
        for k in range(0, 16, 2): p(f"v_cvt_pk_bf16_f32 v{T + k // 2}, v{b + k}, v{b + k + 1}")
        unpack(b, T)
    p.wait_vm("gg"); p.wait_lgkm("gown")
    summ(32, 48)
    rnd(32, 48)
    for k in range(16): p(f"v_mul_f32 v{48 + k}, {f2u(-LOG2E):#x}, v{32 + k}")
    for k in range(16): p(f"v_exp_f32 v{48 + k}, v{48 + k}")
    for k in range(16): p(f"v_add_f32 v{48 + k}, 1.0, v{48 + k}")
    for k in range(16): p(f"v_rcp_f32 v{48 + k}, v{48 + k}")
    for k in range(16): p(f"v_mul_f32 v{32 + k}, v{32 + k}, v{48 + k}")
    rnd(32, 48)
    unpack(128, 192)
    p("s_waitcnt vmcnt(0) lgkmcnt(0)")
    p("s_barrier")
    if DIAG: p.items.append(stamp(8))
    p("buffer_store_dword v249, v248, s[20:23], s56 offen sc1")
    for tb in range(2): p(f"ds_read_b128 {vr(24 + 4 * tb)}, v237 offset:{8192 + tb * 1024}")
    for k in range(3): p(f"s_add_u32 s{61 + k}, s{61 + k}, 32768")
    p("s_mov_b32 s44, 0x40000")
    p.label("L_o_poll")
    p("buffer_load_dword v250, v247, s[20:23], s55 offen sc1")
    p("s_waitcnt vmcnt(0)")
    p("v_cmp_ne_u32 vcc, 1, v250")
    p("s_cbranch_vccz L_o_go")
    p("s_sub_u32 s44, s44, 1")
    p("s_cbranch_scc0 L_o_poll")
    p.label("L_o_go")
    if DIAG: p.items.append(stamp(9))
    for k in range(3):
        for tb in range(2):
            p(f"buffer_load_dwordx4 {vr(8 * k + 4 * tb)}, v240, s[20:23], s{61 + k} offen offset:{tb * 1024} sc1", ("gs", k))
    p("s_waitcnt lgkmcnt(0)")
    unpack(64, 24)
    for k in range(3):
        p.wait_vm(("gs", k))
        unpack(80, 8 * k)
        for e in range(16): p(f"v_add_f32 v{64 + e}, v{64 + e}, v{80 + e}")
    if DIAG: p.items.append(stamp(10))
    rnd(64, 80)
    for k in range(16): p(f"v_mul_f32 v{64 + k}, v{64 + k}, v{32 + k}")
    rnd(64, 80)
    for k in range(16): p(f"v_add_f32 v{64 + k}, v{64 + k}, v{128 + k}")
    for k in range(0, 16, 2): p(f"v_cvt_pk_bf16_f32 v{96 + k // 2}, v{64 + k}, v{65 + k}")
    for k in range(4):
        p(f"buffer_store_dwordx2 v[{96 + 2 * k}:{97 + 2 * k}], v{238 + k // 2}, s[16:19], s57 offen offset:{32 * (k % 2)}")
    if DIAG:
        p.items.append(stamp(11))
        p("s_waitcnt vmcnt(0)")
        p.items.append(stamp(12)); p.items.append(stamp(13, True))
        dump_stamps(p, 1, 28, 20)
    p.label("L_o_end")
    p("s_endpgm")
    for x in ["L_o_gwait:", "s_mov_b32 s44, 0x40000", "L_o_gspin:", "s_sub_u32 s44, s44, 1", "s_cbranch_scc1 L_o_gok", "s_sleep 1",
              "buffer_load_dword v250, v247, s[20:23], s55 offen offset:4 sc1", "s_waitcnt vmcnt(0)", "v_cmp_ne_u32 vcc, 1, v250",
              "s_cbranch_vccnz L_o_gspin", "s_branch L_o_gok"]: p(x)
    texts = [i.t for i in resolve(p.items)]
    for e in lint(texts, "out")[:20]: print(e)
    return texts
if __name__ == "__main__":
    print(len(gen_o_kernel()))
```

```python
from asmlib import *
from sched16 import *
import math, os, re
MF = "v_mfma_f32_16x16x32_bf16"
WSB = int(os.environ.get("WSB", "0"), 0)
WS_XN = WSB + 0x0
WS_KV = WSB + 0x200000
WS_ACT = WSB + 0x2200000
WS_PART = WSB + 0x4000000
WS_FLAG = WSB + 0x5000000
ACT_ROW = 184 * 1024
LOG2E = 1.4426950408889634
KSCALE = LOG2E / math.sqrt(128.0)
BIG = 2.0 ** 100
THR = float(os.environ.get("THR", "40"))
STF = " sc1"
NT = os.environ.get("NT", " nt")
NTV = os.environ.get("NTV", "")
OPF = int(os.environ.get("OPF", "1"))
WSB = int(os.environ.get("WSB", "0"), 0)
DIAG2 = [int(x) for x in os.environ.get("DIAG2", "").split(",") if x]
def vr(b, n=4): return f"v[{b}:{b + n - 1}]"
def ar(b, n=4): return f"a[{b}:{b + n - 1}]"
def srd(p, d, lo, size):
    p(f"s_mov_b32 s{d}, s{lo}")
    p(f"s_mov_b32 s{d + 1}, s{lo + 1}")
    p(f"s_mov_b32 s{d + 2}, {size:#x}")
    p(f"s_mov_b32 s{d + 3}, 0x20000")

def wave_reduce(p, regs_):
    steps = ["quad_perm:[1,0,3,2] row_mask:0xf bank_mask:0xf", "quad_perm:[2,3,0,1] row_mask:0xf bank_mask:0xf",
             "row_half_mirror row_mask:0xf bank_mask:0xf", "row_mirror row_mask:0xf bank_mask:0xf",
             "row_bcast:15 row_mask:0xa bank_mask:0xf", "row_bcast:31 row_mask:0xc bank_mask:0xf"]
    for st in steps:
        p("s_nop 1")
        for r in regs_: p(f"v_add_f32_dpp v{r}, v{r}, v{r} {st}")
    p("s_nop 1")
def round_bf16(p, dst, src):
    p(f"v_cvt_pk_bf16_f32 v{dst}, v{src}, v{src}")
    p(f"v_and_b32 v{dst}, 0xffff0000, v{dst}")

def emit_ln(p):
    for r in range(2):
        for k in range(4):
            p(f"v_lshlrev_b32 v{8 + 8 * r + 2 * k}, 16, v{4 * r + k}")
            p(f"v_and_b32 v{9 + 8 * r + 2 * k}, 0xffff0000, v{4 * r + k}")
    for r in range(2):
        b = 8 + 8 * r
        p(f"v_add_f32 v{24 + r}, v{b}, v{b + 1}")
        for k in range(2, 8): p(f"v_add_f32 v{24 + r}, v{24 + r}, v{b + k}")
    wave_reduce(p, [24, 25])
    p("v_readlane_b32 s58, v24, 63")
    p("v_readlane_b32 s59, v25, 63")
    p(f"v_mov_b32 v30, {f2u(1.0 / 512):#x}")
    p("s_nop 1")
    for r in range(2): p(f"v_mul_f32 v{26 + r}, s{58 + r}, v30")
    for r in range(2):
        b = 8 + 8 * r
        for k in range(8): p(f"v_sub_f32 v{32 + k}, v{b + k}, v{26 + r}")
        p(f"v_mul_f32 v{24 + r}, v32, v32")
        for k in range(1, 8): p(f"v_fmac_f32 v{24 + r}, v{32 + k}, v{32 + k}")
    wave_reduce(p, [24, 25])
    p("v_readlane_b32 s58, v24, 63")
    p("v_readlane_b32 s59, v25, 63")
    p("s_nop 1")
    for r in range(2):
        p(f"v_mul_f32 v{28 + r}, s{58 + r}, v30")
        round_bf16(p, 28 + r, 28 + r)
        p(f"v_add_f32 v{28 + r}, {f2u(1e-5):#x}, v{28 + r}")
        round_bf16(p, 28 + r, 28 + r)
        p(f"v_sqrt_f32 v{28 + r}, v{28 + r}")
        p("s_nop 0")
        round_bf16(p, 28 + r, 28 + r)
        p(f"v_rcp_f32 v{28 + r}, v{28 + r}")
        round_bf16(p, 26 + r, 26 + r)
    for r in range(2):
        b = 8 + 8 * r
        for k in range(8): p(f"v_sub_f32 v{b + k}, v{b + k}, v{26 + r}")
        for k in range(4): p(f"v_cvt_pk_bf16_f32 v{32 + k}, v{b + 2 * k}, v{b + 2 * k + 1}")
        for k in range(4):
            p(f"v_lshlrev_b32 v{b + 2 * k}, 16, v{32 + k}")
            p(f"v_and_b32 v{b + 2 * k + 1}, 0xffff0000, v{32 + k}")
        for k in range(8): p(f"v_mul_f32 v{b + k}, v{b + k}, v{28 + r}")
        for k in range(4): p(f"v_cvt_pk_bf16_f32 v{40 + 4 * r + k}, v{b + 2 * k}, v{b + 2 * k + 1}")

def ln_ops(g0, g1):
    p = Prog(); emit_ln(p)
    ops = []; lag = False
    for it in p.items:
        t = it.t
        if t.startswith("s_nop"): lag = True; continue
        t = re.sub(r"\bv(\d+)\b", lambda m: "v%d" % (int(m.group(1)) + 176 if int(m.group(1)) < 8 else int(m.group(1)) + 128), t)
        ops.append(Op(t, g0, g1, [ops[-1]] if lag else [], lag=2)); lag = False
    return ops

def Sreg(par, qb, kb): return par * 64 + qb * 16 + kb * 4
def Preg(qb, s): return 128 + qb * 8 + s * 4
def NEGM(qb): return 160 + 4 * qb
def LACC(qb): return 176 + 4 * qb
ONES = 192
MX = [196, 197]; VTM = 198; VTMASK = 199; VCUR, VPREV = 200, 201; TMP = [202, 203, 204, 205]
def Qreg(qb, t): return (t // 2) * 32 + qb * 8 + (t % 2) * 4
def Oreg(qb, db): return 64 + qb * 32 + db * 4
def Fbuf(f): return 192 + (f % 16) * 4
S_THR = 61
NPRE = 6

def tail_reads(base_reg, off):
    return [f"ds_read_b128 {ar(Fbuf(f))}, v{base_reg} offset:{off + f * 1024}" for f in range(NPRE)]

def gen_iter(name, tq, tp, parq, masked, odd_q, kreg, koff, vreg, voff, nreg, noff, first_pv=False, end_ops=(), swap=False, mid_ops=()):
    qq = {"D": [0, 1, 2, 3], "S": [0, 1]}[tq]
    qp = {"D": [0, 1, 2, 3], "S": [0, 1]}[tp]
    parp = 1 - parq
    mf = []; use = {}; lastq = {}; lastuse = {}
    for kb in range(4):
        for t in range(4):
            f = kb * 4 + t
            use[f] = len(mf)
            for qb in qq:
                d = Sreg(parq, qb, kb)
                mf.append(f"{MF} {vr(d)}, {ar(Fbuf(f))}, {ar(Qreg(qb, t))}, {vr(NEGM(qb)) if t == 0 else vr(d)}")
                lastq[(qb, kb)] = len(mf) - 1
            lastuse[f] = len(mf) - 1
    firstp = {}
    for s in range(2):
        for db in range(8):
            f = 16 + s * 8 + db
            use[f] = len(mf)
            for qb in qp:
                o = Oreg(qb, db)
                firstp.setdefault((qb, s), len(mf))
                mf.append(f"{MF} {ar(o)}, {ar(Fbuf(f))}, {vr(Preg(qb, s))}, {0 if (first_pv and s == 0) else ar(o)}")
            lastuse[f] = len(mf) - 1
        for qb in qp:
            mf.append(f"{MF} {vr(LACC(qb))}, {vr(ONES)}, {vr(Preg(qb, s))}, {0 if (first_pv and s == 0) else vr(LACC(qb))}")
    n = len(mf)
    S = Sched16(mf)
    gB = n - (16 if len(qp) == 2 else 22)
    LEAD = 14
    for f in range(32):
        tag = ("F", "n", f) if f < NPRE else ("F", "c", f)
        if use[f] > 0: S.add_first(use[f] - 1, Wait("lgkm", tag))
    S.add_first(gB, Ins("s_waitcnt vmcnt(16) lgkmcnt(0)"))
    S.add_first(gB + 1, "s_barrier")
    S.add_first(n - 1, Wait("lgkm", ("F", "x", 0)))
    R = []
    todo = list(range(NPRE, 32))
    for k, f in enumerate(todo):
        e = lastuse[f - 16] if f >= 16 else 0
        dl = min(use[f] - LEAD + 4, gB - 5 - (31 - f))
        e = max(e, min(use[f] - LEAD - 8, dl - 4))
        assert dl >= e, (name, f, dl, e)
        if f < 16: ins = f"ds_read_b128 {ar(Fbuf(f))}, v{kreg} offset:{koff + f * 1024}"
        else: ins = f"ds_read_b128 {ar(Fbuf(f))}, v{vreg} offset:{voff + (f - 16) * 1024}"
        R.append(Op(ins, max(e, 0), max(dl, 0), tag=("F", "c", f)))
    for f, ins in enumerate(tail_reads(nreg, noff)):
        R.append(Op(ins, max(gB + 1, lastuse[f + 16]), min(n - 2, gB + 3 + 2 * f), tag=("F", "x", f)))
    D = []
    span = gB - 8
    for q in range(4):
        D.append(Op(f"buffer_load_dwordx4 v240, s[20:23], s55 offen offset:{q * 1024} sc1 lds", 2 + q * span // 4, 2 + (q + 1) * span // 4 - 1, tag="kv"))
    for x in ["s_add_u32 s54, s54, 0x8000", "s_add_u32 s52, s52, 0x8000", "s_and_b32 s52, s52, 0x1ffff", "s_mov_b32 m0, s52"]:
        D.append(Op(x, 0, gB))
    tl = n - 3 - (gB + 1)
    for q in range(4):
        D.append(Op(f"buffer_load_dwordx4 v240, s[20:23], s54 offen offset:{q * 1024} sc1 lds", gB + 1 + q * tl // 4, gB + 1 + (q + 1) * tl // 4, tag="kv"))
    D.append(Op("s_mov_b32 m0, s53", 0, n - 1))
    E = []; C = []
    for s in range(2):
        for qb in qp:
            b = Sreg(parp, qb, 2 * s)
            dl = firstp[(qb, s)] - 2
            es = [Op(f"v_exp_f32 v{b + r}, v{b + r}", 0, dl - 1) for r in range(8)]
            E += es
            C += [Op(f"v_cvt_pk_bf16_f32 v{Preg(qb, s) + k}, v{b + 2 * k}, v{b + 2 * k + 1}", 0, dl, [es[2 * k], es[2 * k + 1]]) for k in range(4)]
    M = []
    vals = []
    mq = qq[-2:]
    first = True
    for kb in range(4):
        for qb in qq:
            b = Sreg(parq, qb, kb)
            e0 = lastq[(qb, kb)] + 5
            if masked and qb in mq:
                for r in range(4):
                    kk = 64 * odd_q + 16 * kb + r - 16 * (qb & 1)
                    tm = TMP[r % 2]
                    M.append(Op(f"v_subrev_f32 v{tm}, {f2u(kk * BIG):#x}, v{VTMASK}", 0, n - 3))
                    M.append(Op(f"v_min_f32 v{b + r}, v{b + r}, v{tm}", e0, n - 3))
            if first:
                M.append(Op(f"v_max_f32 v{MX[0]}, v{b}, v{b + 1}", e0, n - 3)); first = False
            else:
                M.append(Op(f"v_max3_f32 v{MX[0]}, v{MX[0]}, v{b}, v{b + 1}", e0, n - 3))
            M.append(Op(f"v_max3_f32 v{MX[0]}, v{MX[0]}, v{b + 2}, v{b + 3}", e0, n - 3))
    M.append(Op(f"v_cmp_lt_f32 vcc, s{S_THR}, v{MX[0]}", 0, n - 2))
    X = []
    if swap:
        X = [Op(f"v_xor_b32 v{VCUR}, 0x10000, v{VCUR}", gB, n - 1), Op(f"v_xor_b32 v{VPREV}, 0x10000, v{VPREV}", gB, n - 1, [R[-1]])]
    k = schedule(S, [R, D, E, C, M, X], 0, n - 1, name=name)
    g = D[7].g + 1
    for x in ["s_add_u32 s55, s55, 0x8000", "s_add_u32 s53, s53, 0x8000", "s_and_b32 s53, s53, 0x1ffff"] + list(mid_ops):
        while S.first[g]: g += 1
        S.add_first(g, x); g += 1
    assert g <= D[-1].g, (name, g, D[-1].g)
    for x in end_ops: S.add_last(n - 1, x)
    print(S.report(f"{name}(k={k})"))
    pre = [Ins(f"ds_read_b128 {ar(Fbuf(f))}, v0", ("F", "n", f)) for f in range(NPRE)] + [Wait("lgkm", ("F", "n", 0))]
    return [i.t for i in resolve(S.items(), pre)]

def allreduce4(p, op, src, t0, t1):
    p(f"v_mov_b32 v{t0}, v{src}")
    p(f"v_mov_b32 v{t1}, v{src}")
    p("s_nop 1")
    p(f"v_permlane32_swap_b32 v{t0}, v{t1}")
    p("s_nop 1")
    p(f"{op} v{t0}, v{t0}, v{t1}")
    p(f"v_mov_b32 v{t1}, v{t0}")
    p("s_nop 1")
    p(f"v_permlane16_swap_b32 v{t0}, v{t1}")
    p("s_nop 1")
    p(f"{op} v{t0}, v{t0}, v{t1}")

def rowmax(p, par, qb):
    b = Sreg(par, qb, 0)
    p(f"v_max3_f32 v{MX[1]}, v{b}, v{b + 1}, v{b + 2}")
    for k in range(3, 15, 2): p(f"v_max3_f32 v{MX[1]}, v{MX[1]}, v{b + k}, v{b + k + 1}")
    p(f"v_max_f32 v{MX[1]}, v{MX[1]}, v{b + 15}")
    allreduce4(p, "v_max_f32", MX[1], TMP[0], TMP[1])

def gen_rare(par, qbs):
    p = Prog()
    p("s_nop 15")
    for qb in qbs:
        rowmax(p, par, qb)
        p(f"v_max_f32 v{TMP[0]}, 0, v{TMP[0]}")
        p(f"v_sub_f32 v{TMP[1]}, 0, v{TMP[0]}")
        p(f"v_exp_f32 v{TMP[1]}, v{TMP[1]}")
        for r in range(4): p(f"v_sub_f32 v{NEGM(qb) + r}, v{NEGM(qb) + r}, v{TMP[0]}")
        for r in range(16): p(f"v_sub_f32 v{Sreg(par, qb, 0) + r}, v{Sreg(par, qb, 0) + r}, v{TMP[0]}")
        for r in range(4): p(f"v_mul_f32 v{LACC(qb) + r}, v{LACC(qb) + r}, v{TMP[1]}")
        for r in range(0, 32, 2):
            a = Oreg(qb, 0) + r
            p(f"v_accvgpr_read_b32 v{TMP[2]}, a{a}")
            p(f"v_accvgpr_read_b32 v{TMP[3]}, a{a + 1}")
            p(f"v_mul_f32 v{TMP[2]}, v{TMP[2]}, v{TMP[1]}")
            p(f"v_mul_f32 v{TMP[3]}, v{TMP[3]}, v{TMP[1]}")
            p(f"v_accvgpr_write_b32 a{a}, v{TMP[2]}")
            p(f"v_accvgpr_write_b32 a{a + 1}, v{TMP[3]}")
    p("s_nop 1")
    p("s_setpc_b64 s[62:63]")
    return [i.t for i in p.items]

def gen_f_kernel():
    p = Prog()
    p("s_cmp_ge_u32 s2, 256")
    p("s_cbranch_scc1 L_f_end")
    if DIAG:
        for k in range(14): p(f"s_mov_b32 s{66 + 2 * k}, 0")
        p.items.append(stamp(0, True)); p.items.append(stamp(1))
    p("s_load_dwordx4 s[36:39], s[0:1], 0")
    p("s_load_dwordx4 s[40:43], s[0:1], 24")
    p("s_load_dwordx2 s[44:45], s[0:1], 96")
    p("v_and_b32 v254, 63, v0")
    p("v_lshrrev_b32 v255, 6, v0")
    p("s_and_b32 s34, s2, 7")
    p("v_readfirstlane_b32 s28, v255")
    p("s_lshr_b32 s35, s2, 3")
    p("v_lshlrev_b32 v252, 7, v254")
    if CPF:
        p("s_getpc_b64 s[4:5]")
        p("L_pc0:")
        p("s_sub_u32 s4, s4, L_pc0-f_kernel")
        p("s_subb_u32 s5, s5, 0")
        p("s_mov_b32 s6, L_code_end-f_kernel")
        p("s_mov_b32 s7, 0x20000")
        p("v_lshrrev_b32 v244, 3, v254")
        p("v_lshl_or_b32 v244, v244, 27, v252")
        p("v_lshl_add_u32 v244, v255, 15, v244")
        p("s_lshl_b32 s63, s35, 10")
        p("buffer_load_dword v52, v244, s[4:7], s63 offen", "pf")
    p("v_lshlrev_b32 v240, 4, v254")
    p("v_lshrrev_b32 v244, 4, v254")
    p("v_and_b32 v245, 15, v254")
    p("v_lshlrev_b32 v245, 7, v245")
    p("v_lshl_add_u32 v253, v244, 13, v245")
    p("s_lshl_b32 s60, s35, 2")
    p("s_add_u32 s60, s60, s28")
    p("s_and_b32 s61, s34, 1")
    p("s_lshl_b32 s61, s61, 20")
    p("s_lshl_b32 s63, s60, 13")
    p("s_add_u32 s61, s61, s63")
    p("s_lshr_b32 s62, s34, 1")
    p("s_lshl_b32 s62, s62, 11")
    p("s_lshl_b32 s63, s60, 15")
    p("s_add_u32 s62, s62, s63")
    p("s_lshl_b32 s47, s2, 13")
    p("s_lshl_b32 s46, s28, 11")
    p("s_add_u32 s47, s47, s46")
    for r, v in ((10, 0x200000), (11, 0x20000), (14, 0x400000), (15, 0x20000), (26, 0x200000), (27, 0x20000)): p(f"s_mov_b32 s{r}, {v:#x}")
    p("s_waitcnt lgkmcnt(0)")
    if DIAG and not DIAG2: p.items.append(stamp(2))
    for d, sr in ((24, 36), (25, 37), (8, 38), (9, 39), (12, 40), (13, 41)): p(f"s_mov_b32 s{d}, s{sr}")
    p("buffer_load_dwordx4 v[0:3], v240, s[24:27], s47 offen" + NT, "ln")
    p("buffer_load_dwordx4 v[4:7], v240, s[24:27], s47 offen offset:1024" + NT, "ln")
    p("buffer_load_dword v246, v252, s[8:11], s61 offen" + NT, "pf")
    p("buffer_load_dword v247, v253, s[12:15], s62 offen" + NT, "pf")
    srd(p, 16, 42, 0x400000)
    srd(p, 20, 44, 0x10000000)
    p("s_load_dwordx2 s[36:37], s[0:1], 16")
    p("s_load_dwordx2 s[38:39], s[0:1], 40")
    p("s_load_dwordx4 s[40:43], s[0:1], 56")
    p("s_load_dwordx2 s[96:97], s[0:1], 72")
    p("s_load_dwordx2 s[98:99], s[0:1], 88")
    p("v_lshl_add_u32 v244, v255, 6, v254")
    p("v_cmp_eq_u32 vcc, 0, v244")
    p("v_mov_b32 v248, 0x7ffff000")
    p("v_mov_b32 v249, 1")
    p("v_mov_b32 v250, 0")
    p("v_cndmask_b32_e64 v248, v248, 0, vcc")
    p("s_and_b32 s47, s34, 1")
    p("s_lshl_b32 s47, s47, 2")
    p("s_and_b32 s46, s35, 3")
    p("s_add_u32 s47, s47, s46")
    p("s_lshr_b32 s3, s34, 1")
    p("s_lshl_b32 s3, s3, 3")
    p("s_lshr_b32 s46, s35, 2")
    p("s_add_u32 s3, s3, s46")
    p("s_lshl_b32 s45, s3, 3")
    p("s_add_u32 s45, s45, s47")
    p("s_lshl_b32 s46, s47, 2")
    p("s_add_u32 s46, s46, s28")
    p("s_lshl_b32 s31, s46, 16")
    p("s_lshl_b32 s94, s46, 15")
    p("s_lshl_b32 s47, s3, 20")
    p("s_add_u32 s94, s94, s47")
    p(f"s_add_u32 s94, s94, {WS_KV:#x}")
    p("s_lshl_b32 s95, s3, 8")
    p("s_lshl_b32 s3, s45, 7")
    p(f"s_add_u32 s3, s3, {WS_FLAG + 0x10000:#x}")
    p("s_lshl_b32 s29, s34, 2")
    p("s_lshr_b32 s46, s35, 3")
    p("s_add_u32 s29, s29, s46")
    p("s_and_b32 s30, s35, 7")
    p(f"s_mul_i32 s48, s28, 24576")
    p("s_lshl_b32 s49, s28, 12")
    p("s_lshl_b32 s50, s28, 6")
    p("s_add_u32 s50, s50, s95")
    p("s_and_b32 s45, s28, 1")
    p("s_lshr_b32 s52, s28, 1")
    p("s_lshl_b32 s53, s45, 13")
    p("s_lshl_b32 s54, s52, 12")
    p("s_add_u32 s53, s53, s54")
    p("s_lshl_b32 s54, s45, 6")
    p("s_lshl_b32 s55, s52, 19")
    p("s_add_u32 s55, s54, s55")
    p("s_add_u32 s54, s55, s95")
    p("s_lshl_b32 s56, s29, 8")
    p("s_add_u32 s65, s55, s56")
    p("s_sub_u32 s56, 15, s30")
    p("s_lshl_b32 s32, s56, 3")
    p("s_lshl_b32 s63, s28, 1")
    p("s_add_u32 s32, s32, s63")
    p("s_lshl_b32 s33, s30, 3")
    p("s_add_u32 s33, s33, s63")
    p("s_lshl_b32 s46, s32, 14")
    p("s_lshl_b32 s47, s33, 14")
    p(f"s_mul_i32 s32, s32, {ACT_ROW}")
    p(f"s_add_u32 s32, s32, {WS_ACT:#x}")
    p(f"s_mul_i32 s33, s33, {ACT_ROW}")
    p(f"s_add_u32 s33, s33, {WS_ACT:#x}")
    p("s_add_u32 s55, s29, 32")
    p("s_cmp_lt_u32 s29, 24")
    p("s_cselect_b32 s55, s55, s29")
    p(f"s_mul_i32 s64, s52, {64 * 3584}")
    p("s_lshl_b32 s63, s29, 6")
    p("s_add_u32 s35, s64, s63")
    p("s_lshl_b32 s63, s55, 6")
    p("s_add_u32 s64, s64, s63")
    p("s_lshl_b32 s51, s29, 20")
    p("s_add_u32 s51, s51, s49")
    p(f"s_add_u32 s51, s51, {WS_KV:#x}")
    p("s_lshl_b32 s56, s29, 10")
    p(f"s_add_u32 s56, s56, {128 * 1024}")
    p("s_add_u32 s100, s56, s32")
    p("s_add_u32 s101, s56, s33")
    p("s_lshl_b32 s61, s34, 8")
    p("s_lshr_b32 s63, s60, 1")
    p(f"s_mul_i32 s63, s63, {8 * 3584}")
    p("s_add_u32 s61, s61, s63")
    p("s_lshl_b32 s52, s34, 10")
    p("s_lshl_b32 s63, s60, 15")
    p("s_add_u32 s52, s52, s63")
    p("v_lshrrev_b32 v241, 3, v254")
    p("v_lshlrev_b32 v241, 13, v241")
    p("v_and_b32 v242, 7, v254")
    for n in range(8):
        p(f"v_xor_b32 v243, {n}, v242")
        p(f"v_lshl_add_u32 v{224 + n}, v243, 4, v241")
    p("v_and_b32 v241, 7, v254")
    p("v_bfe_u32 v242, v254, 3, 1")
    p("v_lshlrev_b32 v242, 7, v242")
    p("v_lshl_add_u32 v242, v241, 10, v242")
    p("v_add_u32 v242, s48, v242")
    p("v_lshrrev_b32 v243, 4, v254")
    for tt in range(2):
        p(f"v_add_u32 v244, {4 * tt}, v243")
        p("v_xor_b32 v244, v244, v241")
        p(f"v_lshl_add_u32 v{232 + tt}, v244, 4, v242")
    p("v_lshlrev_b32 v241, 9, v243")
    p("v_bfe_u32 v242, v254, 2, 2")
    p("v_lshl_add_u32 v241, v242, 6, v241")
    p("v_and_b32 v242, 3, v254")
    p("v_lshl_add_u32 v241, v242, 3, v241")
    p("v_and_b32 v242, 1, v243")
    p("v_lshl_add_u32 v234, v242, 5, v241")
    p("v_xor_b32 v237, 32, v234")
    for cf in range(2):
        p(f"v_add_u32 v{235 + 3 * cf}, 0x10000, v{234 + 3 * cf}")
        p(f"v_add_u32 v{236 + 3 * cf}, 0x20000, v{234 + 3 * cf}")
    p("v_lshrrev_b32 v244, 5, v254")
    p("v_lshlrev_b32 v251, 30, v244")
    p("v_lshlrev_b32 v244, 1, v244")
    p("v_and_b32 v245, 3, v254")
    p("v_xor_b32 v245, v245, v244")
    p("v_lshlrev_b32 v245, 4, v245")
    p("v_lshrrev_b32 v244, 2, v254")
    p("v_lshl_add_u32 v241, v244, 13, v245")
    p("v_mul_u32_u24 v244, 3584, v244")
    p("v_add_u32 v242, v244, v245")
    p("v_bfe_u32 v245, v254, 2, 3")
    p("v_mul_u32_u24 v245, 3584, v245")
    p("v_and_b32 v244, 1, v254")
    p("v_lshl_add_u32 v245, v244, 7, v245")
    p("v_bfe_u32 v244, v254, 1, 1")
    p("v_lshl_add_u32 v245, v244, 11, v245")
    p("v_or_b32 v245, v245, v251")
    p("v_and_b32 v243, 15, v254")
    p("v_lshlrev_b32 v243, 2, v243")
    p("v_lshlrev_b32 v48, 7, v254")
    p("v_lshl_add_u32 v48, v255, 5, v48")
    p("v_lshl_add_u32 v49, v255, 11, v240")
    p("v_lshrrev_b32 v50, 3, v254")
    p("v_lshlrev_b32 v50, 8, v50")
    p("v_and_b32 v51, 7, v254")
    p("v_lshl_add_u32 v50, v51, 4, v50")
    p("s_waitcnt lgkmcnt(0)")
    p("s_cmp_eq_u32 s45, 0")
    p("s_cselect_b32 s40, s40, s42")
    p("s_cselect_b32 s41, s41, s43")
    p("s_mov_b32 s24, s98")
    p("s_mov_b32 s25, s99")
    p("s_mov_b32 s26, 256")
    p("s_lshl_b32 s56, s55, 10")
    p(f"s_add_u32 s56, s56, {128 * 1024}")
    p("s_add_u32 s98, s56, s32")
    p("s_add_u32 s99, s56, s33")
    p("s_lshl_b32 s63, s2, 7")
    p(f"s_add_u32 s63, s63, {WS_FLAG:#x}")
    p.wait_vm("ln")
    if DIAG and not DIAG2: p.items.append(stamp(3))
    emit_ln(p)
    p("ds_write_b128 v48, v[40:43]")
    p("ds_write_b128 v48, v[44:47] offset:16")
    p("s_lshr_b32 s58, s2, 1")
    p("s_lshl_b32 s58, s58, 14")
    p("s_and_b32 s59, s2, 1")
    p("s_lshl_b32 s59, s59, 7")
    p("s_add_u32 s58, s58, s59")
    p("s_add_u32 s58, s58, s49")
    if WS_XN: p(f"s_add_u32 s58, s58, {WS_XN:#x}")
    p("s_waitcnt lgkmcnt(0)")
    p("s_barrier")
    p("ds_read_b128 v[40:43], v49")
    p("ds_read_b128 v[44:47], v49 offset:1024")
    p("s_lshr_b32 s59, s2, 4")
    p("s_lshl_b32 s59, s59, 2")
    p("s_waitcnt lgkmcnt(0)")
    p(f"buffer_store_dwordx4 v[40:43], v50, s[20:23], s58 offen{STF}", "xnst")
    p(f"buffer_store_dwordx4 v[44:47], v50, s[20:23], s58 offen offset:2048{STF}", "xnst")
    p(f"buffer_store_dword v250, v248, s[20:23], s63 offen{STF}", "zf")
    p(f"buffer_store_dword v250, v248, s[20:23], s63 offen offset:4{STF}", "zf")
    p(f"buffer_store_dword v250, v248, s[20:23], s3 offen{STF}", "zf")
    p("s_barrier")

    BLK = [6, 7, 8, 9, 6, 7, 8, 9, 0, 1, 2, 3, 4, 5, 6, 7, 8, 9, 0, 1, 2, 3, 6, 7, 8, 9, 4, 5, 6, 7, 8, 9]
    def dma_A(s):
        ops = []
        for n in range(8):
            pre = []
            if n % 4 == 0:
                pre = [f"s_add_u32 m0, s48, {(s % 3) * 8192 + (n // 4) * 4096}", f"s_add_u32 s56, s31, {s * 128 + (n // 4) * 4096}"]
            ops.append((pre, f"buffer_load_dwordx4 v{224 + n}, s[8:11], s56 offen offset:{(n % 4) * 1024} lds", ("A", s)))
        return ops
    def dma_W(n):
        ops = []
        kq = n % 4
        for q in range(4):
            m0 = "s53"
            if n < 8:
                pre = [f"s_add_u32 s57, s54, {(kq * 128 + q * 16) * 8192 + (n // 4) * 128 - q * 1024}"]
                ins = f"buffer_load_dwordx4 v241, s[12:15], s57 offen offset:{q * 1024} lds"
            elif n < 16:
                pre = [f"s_add_u32 s57, s50, {((n - 8) * 64 + q * 16) * 8192 - q * 1024}"]; m0 = "s49"
                ins = f"buffer_load_dwordx4 v241, s[16:19], s57 offen offset:{q * 1024} lds"
            elif n < 24:
                pre = [f"s_add_u32 s57, s{35 if n < 20 else 64}, {(kq * 128 + q * 16) * 3584 - q * 1024}"]
                ins = f"buffer_load_dwordx4 v242, s[12:15], s57 offen offset:{q * 1024} lds"
            else:
                pre = [f"s_add_u32 s57, s65, {(kq * 128 + q * 16) * 8192 - q * 1024 + (128 if n >= 28 else 0)}"]
                ins = f"buffer_load_dwordx4 v241, s[8:11], s57 offen offset:{q * 1024} lds"
            if q == 0: pre = [f"s_add_u32 m0, {m0}, {BLK[n] * 16384}"] + pre
            ops.append((pre, ins, ("L", n)))
        return ops
    def kv_half(tile, part):
        ops = []
        for q in range(4):
            pre = []
            if q == 0: pre = [f"s_add_u32 m0, s49, {tile * 32768 + part * 16384}", f"s_add_u32 s57, s51, {tile * 32768 + part * 16384}"]
            ops.append((pre, f"buffer_load_dwordx4 v240, s[20:23], s57 offen offset:{q * 1024} sc1 lds", ("kv", tile, part)))
        return ops
    def now(ops):
        for pre, ins, tag in ops:
            for x in pre: p(x)
            p(ins, tag)
    now(dma_W(0) + dma_A(0) + dma_A(1) + dma_W(1) + dma_A(2))

    groups = []
    def accT(base, c, cf, rb): return base + (c * 4 + rb) * 8 + cf * 4
    def accV(base, c, cf, rb): return base + ((c * 2 + cf) * 2 + (rb >> 1)) * 8 + (rb & 1) * 4
    def add_double(seg0, bases):
        for s in range(8):
            for tt in range(2):
                for c in range(4):
                    for cf in range(2):
                        groups.append(dict(off=BLK[seg0 + s] * 16384 + c * 4096 + tt * 2048, cf=cf, t=2 * s + tt,
                                           acc=[accV(bases[c >> 1], c & 1, cf, rb) for rb in range(4)], vt=True))
    def add_single(seg0, base):
        for q in range(4):
            for tq in range(4):
                for c in range(2):
                    for cf in range(2):
                        groups.append(dict(off=BLK[seg0 + q] * 16384 + c * 8192 + tq * 2048, cf=cf, t=4 * q + tq,
                                           acc=[accT(base, c, cf, rb) for rb in range(4)], vt=False))
    add_single(0, 0); add_single(4, 64); add_double(8, [128, 0])
    add_single(16, 64); add_single(20, 128); add_single(24, 0); add_single(28, 64)
    NG = len(groups)
    mf = []
    for n, G in enumerate(groups):
        w = vr(192 + 4 * (n % 8))
        for rb in range(4):
            a = ar((rb * 16 + G["t"]) * 4)
            d = vr(G["acc"][rb])
            c = 0 if G["t"] == 0 else d
            mf.append(f"{MF} {d}, {a}, {w}, {c}" if G["vt"] else f"{MF} {d}, {w}, {a}, {c}")
    S = Sched16(mf)
    def w_reads(n):
        G = groups[n]
        out = []
        for hf in range(2):
            off = G["off"] + hf * 256
            d = 192 + 4 * (n % 8) + 2 * hf
            out.append(f"ds_read_b64_tr_b16 v[{d}:{d + 1}], v{234 + 3 * G['cf'] + (off >> 16)} offset:{off & 0xffff}")
        return out
    def a_reads(s):
        return [f"ds_read_b128 {ar((rb * 16 + 2 * s + tt) * 4)}, v{232 + tt} offset:{(s % 3) * 8192 + rb * 256}" for tt in range(2) for rb in range(4)]
    RA = 5
    if DIAG and not DIAG2: p.items.append(stamp(4))
    p.wait_vm(("A", 0))
    p("s_barrier")
    if DIAG and not DIAG2: p.items.append(stamp(5))
    for x in a_reads(0): p(x, ("Ar", 0))
    for n in range(RA):
        for x in w_reads(n): p(x, ("W", n))
    p.wait_lgkm(("W", 0))
    for n in range(RA, NG):
        k = n % 16
        if k <= 13: g = 4 * (n - RA)
        elif k == 14: g = 4 * (n - 6) + 2
        else: g = 4 * (n - 6)
        for i, x in enumerate(w_reads(n)): S.add_mem(g + i, x, ("W", n))
    for n in range(1, NG): S.add_first(4 * n - 1, Wait("lgkm", ("W", n)))
    for s in range(1, 8):
        g = 32 * s - 22
        S.add_first(g, Wait("vm", ("A", s)))
        for i, x in enumerate(a_reads(s)): S.add_mem(g + [0, 0, 1, 1, 4, 4, 5, 5][i], x, ("Ar", s))
        S.add_first(32 * s - 10, Wait("lgkm", ("Ar", s)))
    def gB(n): return 64 * n + 4 * 11
    for n in range(31):
        tags = [("L", n + 1)]
        if n == 0: tags += ["xnst", "zf"]
        if n == KVPUB: tags.append("kvst")
        S.add_first(gB(n) - 2, Ins("s_waitcnt lgkmcnt(0)"))
        S.add_first(gB(n), Wait("vm", tags))
        S.add_first(gB(n), "s_barrier")
    def win(n): return gB(n - 1) + 1
    LD = []
    def ld(ops, e, pace=1):
        for i, (pre, ins, tag) in enumerate(ops): LD.append(Op(ins, e + i * pace, 2040, pre=pre, tag=tag))
    one = lambda ins, tag, pre=(): [([], x, None) for x in pre] + [([], ins, tag)]
    ld(dma_A(3), 0); ld(dma_W(2), 8); ld(dma_A(4), 22)
    ld(dma_A(5), 54); ld(dma_W(3), 62); ld(dma_A(6), 86); ld(dma_A(7), 118); ld(dma_W(4), 126); ld(dma_W(5), 140, 4)
    ld(one("buffer_atomic_add v249, v248, s[24:27], s59 offen offset:128", "pub"), win(3))
    ld(one("buffer_load_dword v246, v253, s[16:19], s62 offen" + NTV, "pf"), win(3))
    ld(dma_W(6), win(3), 2); ld(dma_W(7), VW0 - 24, 4)
    for n in range(8, 13): ld(dma_W(n), VW0 + (n - 8) * 24, 5)
    ld(one("buffer_load_dword v250, v245, s[12:15], s61 offen", "pf", ["s_mov_b32 s12, s40", "s_mov_b32 s13, s41", f"s_mov_b32 s14, {512 * 3584}"]), win(8))
    print("ld1", schedule(S, [LD], 0, 511, base_cap=3), "last", LD[-1].g, [o.g for o in LD if o.tag in ("pf", "poll")])
    gc = XNC
    S.add_mem(gc - 50, "buffer_load_dword v244, v243, s[24:27], 0 offen offset:128 sc1", "poll")
    S.add_first(gc, Wait("vm", "poll"))
    S.add_valu(gc, "v_cmp_gt_u32 vcc, 16, v244")
    S.add_valu(gc, "v_add_u32 v247, 0x4000, v240")
    S.add_last(gc + 2, "s_cbranch_vccnz L_xnwait")
    S.add_last(gc + 2, "L_xnok:")
    LD = []
    for n in range(13, 24): ld(dma_W(n), max(win(9) + (n - 13) * 44, win({22: 15, 23: 16}.get(n, 9))), 10)
    S.add_valu(64 * 12, "v_and_b32 v253, 0xfffffbff, v253")
    S.add_valu(64 * 12 + 1, "v_bfe_u32 v246, v254, 3, 1")
    S.add_valu(64 * 12 + 2, "v_lshl_or_b32 v253, v246, 30, v253")
    ld(one("buffer_load_dword v244, v253, s[8:11], s52 offen", "pf", ["s_mov_b32 s8, s36", "s_mov_b32 s9, s37", "s_mov_b32 s10, 0x400000"]), win(17))
    for n in range(24, 32): ld(dma_W(n), win(n - 5), WP)
    S.add_valu(64 * 26, "v_and_b32 v243, 0x380, v252")
    ld(one("buffer_load_dword v244, v243, s[20:23], s59 offen sc1", "poll2", ["s_lshl_b32 s59, s29, 10", f"s_add_u32 s59, s59, {WS_FLAG + 0x10000:#x}"]), 64 * 27)
    gc = win(28) + 1
    ld(kv_half(0, 0) + kv_half(0, 1) + kv_half(1, 0) + kv_half(1, 1) + kv_half(2, 0) + kv_half(2, 1), gc + 4, 4)
    ld(kv_half(3, 0), win(29), 4)
    S.add_first(gc, Wait("vm", "poll2"))
    S.add_valu(gc, "v_cmp_ne_u32 vcc, 1, v244")
    S.add_last(gc + 2, "s_cbranch_vccnz L_kvwait")
    S.add_last(gc + 2, "L_kvok:")
    print("ld2", schedule(S, [LD], 512, 2046, base_cap=3), "last", LD[-1].g)
    XL = []
    for t in range(16):
        for rb in range(4):
            pre = []
            if t % 4 == 0 and rb % 2 == 0: pre = [f"s_add_u32 s{62 + rb // 2}, s{46 + rb // 2}, {WS_XN + t * 1024}"]
            vo = 240 if rb % 2 == 0 else 247
            XL.append(Op(f"buffer_load_dwordx4 {ar((rb * 16 + t) * 4)}, v{vo}, s[20:23], s{62 + rb // 2} offen offset:{(t % 4) * 1024} sc1",
                         max(512 + 32 * t + 32 + (6 * rb if t < 15 else 0), XNC + 4 + 5 * (4 * t + rb)), 1024 + 16 * t - 60 if t < 10 else 512 + 32 * t + 64, pre=pre, tag=("X", t)))
    for t in range(16): S.add_first(1024 + 16 * t - 2, Wait("vm", ("X", t)))
    def kv_epi(kind, u, base, g0, g1, st0):
        ops = []
        for k8 in range(8):
            R = base + 8 * k8
            if kind == "K":
                c, rb = k8 // 4, k8 % 4
                off = rb * 4096 + (2 * u + c) * 1024
                for r in range(8): ops.append(Op(f"v_mul_f32 v{R + r}, {f2u(KSCALE):#x}, v{R + r}", g0, g1))
            else:
                db, s = 4 * u + k8 // 2, k8 % 2
                off = 16384 + s * 8192 + db * 1024
            cv = [Op(f"v_cvt_pk_bf16_f32 v{R + k}, v{R + 2 * k}, v{R + 2 * k + 1}", g0, g1) for k in range(4)]
            ops += cv
            ops.append(Op(f"buffer_store_dwordx4 {vr(R)}, v240, s[20:23], s95 offen offset:{off & 4095}{STF}", max(g0, st0[0] + int(k8 * st0[1])), g1, [cv[-1]],
                          pre=[f"s_add_u32 s95, s94, {off & ~4095}"], tag="kvst"))
        return ops
    C0 = -2.0 * math.sqrt(2.0 / math.pi) * LOG2E
    C1 = C0 * 0.044715
    S.add_valu(64 * 17, f"v_mov_b32 v232, {f2u(C0):#x}")
    S.add_valu(64 * 17 + 1, f"v_mov_b32 v233, {f2u(C1):#x}")
    S.add_valu(64 * 17 + 2, f"v_add_u32 v246, {ACT_ROW}, v240")
    def gu_epi(base, psg, g0, g1, gst):
        st = [[], []]; sto = []
        for rb in range(4):
            G = base + rb * 8; U = base + 32 + rb * 8
            L = st[rb & 1]
            for r in range(8):
                t = 224 + (r % 4) + 4 * (rb & 1)
                o4 = Op(f"v_exp_f32 v{t}, v{t}", g0, g1)
                o7 = Op(f"v_rcp_f32 v{t}, v{t}", g0, g1)
                L += [Op(f"v_mul_f32 v{t}, v{G + r}, v{G + r}", g0, g1), Op(f"v_fma_f32 v{t}, v{t}, v233, v232", g0, g1),
                      Op(f"v_mul_f32 v{t}, v{t}, v{G + r}", g0, g1), o4, Op(f"v_mul_f32 v{G + r}, v{G + r}, v{U + r}", g0, g1),
                      Op(f"v_add_f32 v{t}, 1.0, v{t}", g0, g1), o7, Op(f"v_mul_f32 v{G + r}, v{G + r}, v{t}", g0, g1, [o7])]
            cv = [Op(f"v_cvt_pk_bf16_f32 v{G + k}, v{G + 2 * k}, v{G + 2 * k + 1}", g0, g1 - 2) for k in range(4)]
            L += cv
            sto.append(Op(f"buffer_store_dwordx4 {vr(G)}, v{240 if rb % 2 == 0 else 246}, s[20:23], s{psg + rb // 2} offen{STF}", gst + 30 * rb, g1, [cv[-1]], tag="hst"))
        return st, sto
    def q_epi(base, u, g0, g1, gmove):
        cvs = []; mv = []
        for c in range(2):
            for qb in range(4):
                R = base + (c * 4 + qb) * 8
                for k in range(4):
                    o = Op(f"v_cvt_pk_bf16_f32 v{R + k}, v{R + 2 * k}, v{R + 2 * k + 1}", g0, g1)
                    cvs.append(o)
                    mv.append(Op(f"v_accvgpr_write_b32 a{Qreg(qb, 2 * u + c) + k}, v{R + k}", gmove, g1, [o]))
        return cvs, mv
    PH = [256 * k for k in range(9)]
    PE = 2048
    kvs = kv_epi("K", 0, 0, PH[1] + 6, PH[2] - 3, (PH[1] + 16, STP)) + kv_epi("K", 1, 64, PH[2] + 6, PH[4] - 3, (PH[2] + 16, STPK1)) + \
          kv_epi("V", 0, 128, PH[4] + 6, PH[5] - 3, (PH[4] + 12, STP)) + kv_epi("V", 1, 0, PH[4] + 6, PH[6] - 3, (PH[4] + 12 + 8 * STP, STP))
    print("kv epi", schedule(S, [XL, kvs], PH[1], PH[6]), "last store", kvs[-1].g, "pub at", gB(KVPUB))
    assert kvs[-1].g < gB(KVPUB)
    st0, so0 = gu_epi(64, 100, PH[5] + 6, PH[7] - 3, PH[6])
    st1, so1 = gu_epi(128, 98, PH[6] + 6, PE - 2, PH[6] + 130)
    q0c, q0m = q_epi(0, 0, PH[7] + 6, PE - 2, PH[7] + 130)
    print("gu epi", schedule(S, [st0[0] + st1[0], st0[1] + st1[1], so0 + so1, q0c, q0m], PH[5], PE - 1))
    S.add_mem(gB(KVPUB) + 2, f"buffer_store_dword v249, v248, s[20:23], s3 offen{STF}", "pub")
    if DIAG and not DIAG2:
        S.add_first(512, stamp(6)); S.add_first(1024, stamp(7)); S.add_first(PE - 1, stamp(8))
    if DIAG2:
        for k, g in enumerate(DIAG2): S.add_first(g, stamp(2 + k))
    print(S.report("gemm")[:600])
    its = S.items()
    DROP = os.environ.get("DROP", "").split(",")
    def keep(i):
        if isinstance(i, Ins):
            tg = i.tag[0] if isinstance(i.tag, tuple) else i.tag
            if tg in DROP and tg: return False
        if isinstance(i, Wait):
            tags = i.tag if isinstance(i.tag, list) else [i.tag]
            tags = [t for t in tags if (t[0] if isinstance(t, tuple) else t) not in DROP]
            if not tags: return False
            i.tag = tags
        return True
    p.extend([i for i in its if keep(i)])
    p("v_and_b32 v252, 0xfff, v252")
    p("v_or_b32 v252, v252, v251")
    p("s_mov_b32 s4, s38")
    p("s_mov_b32 s5, s39")
    p("s_mov_b32 s6, 0x400000")
    p("s_mov_b32 s7, 0x20000")
    p("s_lshl_b32 s59, s2, 2")
    p("s_add_u32 s59, s59, s28")
    p("s_lshl_b32 s50, s59, 12")
    p("buffer_load_dword v250, v252, s[4:7], s50 offen", "pf")
    p("s_mov_b32 s4, s96")
    p("s_mov_b32 s5, s97")
    p(f"s_mov_b32 s6, {1792 * 1024}")
    p("buffer_load_dword v251, v252, s[4:7], s50 offen", "pf")

    p(f"v_mov_b32 v{VCUR}, v240")
    p(f"v_add_u32 v{VPREV}, 0x10000, v240")
    p("v_and_b32 v241, 15, v254")
    p("v_lshl_add_u32 v241, v255, 5, v241")
    p("v_lshrrev_b32 v242, 4, v254")
    p("v_lshlrev_b32 v242, 2, v242")
    p("v_sub_u32 v241, v241, v242")
    p("v_cvt_f32_i32 v241, v241")
    p("v_add_f32 v241, 0.5, v241")
    p(f"v_mul_f32 v{VTM}, {f2u(BIG):#x}, v241")
    p(f"s_mov_b32 s{S_THR}, {f2u(THR):#x}")
    p("s_mov_b32 s52, s49")
    p(f"s_add_u32 s53, s49, {3 * 32768 + 16384}")
    p(f"s_add_u32 s54, s51, {4 * 32768}")
    p(f"s_add_u32 s55, s51, {3 * 32768 + 16384}")
    p.wait_vm(("kv", 1, 0))
    p("s_barrier")
    order = [kb * 4 + t for t in range(4) for kb in range(4)]
    for f in order: p(f"ds_read_b128 {ar(Fbuf(f))}, v{VCUR} offset:{f * 1024}", ("K0", f))
    for k in range(4): p(f"v_mov_b32 v{ONES + k}, 0x3f803f80")
    p(f"s_mov_b32 s26, {f2u(-2.0 ** 120):#x}")
    p(f"s_mov_b32 s27, {f2u(2.0 ** 120):#x}")
    p("s_cmp_eq_u32 s30, 0")
    p("s_cselect_b32 s60, s26, s27")
    p(f"v_max_f32 v{VTMASK}, s60, v{VTM}")
    p.wait_lgkm(("K0", 0))
    mf = []
    for f in order:
        kb, t = f // 4, f % 4
        for qb in range(4):
            d = Sreg(0, qb, kb)
            mf.append(f"{MF} {vr(d)}, {ar(Fbuf(f))}, {ar(Qreg(qb, t))}, {0 if t == 0 else vr(d)}")
    S = Sched16(mf)
    for i, f in enumerate(order[1:]): S.add_first(4 * i + 3, Wait("lgkm", ("K0", f)))
    q1c, q1m = q_epi(64, 1, 0, 29, 0)
    for o in q1c[16:] + q1m[16:]: o.d = 45
    schedule(S, [q1c, q1m], 0, 63)
    p.extend(S.items())
    p("s_barrier")
    p("s_mov_b32 m0, s52")
    for f, ins in enumerate(tail_reads(VCUR, 32768)): p(ins)
    for qq_ in range(4): p(f"buffer_load_dwordx4 v240, s[20:23], s54 offen offset:{qq_ * 1024} sc1 lds", "kv")
    p("s_mov_b32 m0, s53")
    for qb in (2, 3):
        for kb in range(4):
            b = Sreg(0, qb, kb)
            for r in range(4):
                kk = 16 * kb + r - 16 * (qb & 1)
                p(f"v_subrev_f32 v{TMP[r % 2]}, {f2u(kk * BIG):#x}, v{VTMASK}")
                p(f"v_min_f32 v{b + r}, v{b + r}, v{TMP[r % 2]}")
    for qb in range(4):
        rowmax(p, 0, qb)
        for r in range(4): p(f"v_sub_f32 v{NEGM(qb) + r}, 0, v{TMP[0]}")
        for r in range(16): p(f"v_sub_f32 v{Sreg(0, qb, 0) + r}, v{Sreg(0, qb, 0) + r}, v{TMP[0]}")
    p("s_waitcnt lgkmcnt(0)")
    pro = [i.t for i in resolve(p.items)]

    stubs = []
    def check(site, par, dual):
        stubs.append((site, par, dual))
        return [f"s_cbranch_vccnz L_stub_{site}", f"L_ret_{site}:"]
    def it_odd(name, tq, tp, masked):
        return gen_iter(name, tq, tp, 0, masked, 0, VCUR, 0, VPREV, 49152, VCUR, 32768, end_ops=check(name, 0, tq == "D"))
    def it_even(name, tq, tp, masked, extra_end=(), first_pv=False):
        return gen_iter(name, tq, tp, 1, masked, 1, VCUR, 32768, VCUR, 16384, VPREV, 0, first_pv=first_pv,
                        end_ops=check(name, 1, tq == "D") + list(extra_end[2:]), swap=True, mid_ops=extra_end[:2])
    seg = {}
    seg["P"] = pro + it_even("it0", "D", "D", True, first_pv=True)
    seg["UDD"] = it_odd("uddA", "D", "D", False) + it_even("uddB", "D", "D", False, ["s_sub_u32 s24, s24, 1", "s_cmp_lg_u32 s24, 0", "s_cbranch_scc1 L_udd"])
    seg["UDDm"] = it_odd("uddmA", "D", "D", True) + it_even("uddmB", "D", "D", True)
    seg["UDSm"] = it_odd("udsA", "S", "D", True) + it_even("udsB", "S", "S", True)
    seg["USS"] = it_odd("ussA", "S", "S", False) + it_even("ussB", "S", "S", False, ["s_sub_u32 s24, s24, 1", "s_cmp_lg_u32 s24, 0", "s_cbranch_scc1 L_uss"])
    seg["USSm"] = it_odd("ussmA", "S", "S", True) + it_even("ussmB", "S", "S", True)
    q = Prog()
    for f in range(16): q(f"ds_read_b128 {ar(Fbuf(16 + f))}, v{VPREV} offset:{49152 + f * 1024}", ("VE", f))
    if OPF:
        q("s_lshr_b32 s56, s2, 3")
        q("s_lshl_b32 s56, s56, 2")
        q("s_add_u32 s56, s56, s28")
        q("s_lshr_b32 s57, s34, 1")
        q(f"s_mul_i32 s58, s57, {448 * 1024}")
        q(f"s_mul_i32 s59, s56, 3584")
        q("s_add_u32 s58, s58, s59")
        q("buffer_load_dword v250, v252, s[4:7], s58 offen")
        q("v_lshlrev_b32 v253, 7, v254")
        q("s_lshl_b32 s58, s57, 20")
        q("s_lshl_b32 s59, s56, 13")
        q("s_add_u32 s58, s58, s59")
        q("s_mov_b32 s4, s38")
        q("s_mov_b32 s5, s39")
        q("s_mov_b32 s6, 0x400000")
        q("buffer_load_dword v251, v253, s[4:7], s58 offen")
    for qb in range(2):
        b = Sreg(1, qb, 0)
        for r in range(16): q(f"v_exp_f32 v{b + r}, v{b + r}")
    for qb in range(2):
        b = Sreg(1, qb, 0)
        for k in range(8): q(f"v_cvt_pk_bf16_f32 v{Preg(qb, 0) + k}, v{b + 2 * k}, v{b + 2 * k + 1}")
    q("s_waitcnt lgkmcnt(0)")
    mf = []
    for s in range(2):
        for qb in range(2): mf.append(f"{MF} {vr(LACC(qb))}, {vr(ONES)}, {vr(Preg(qb, s))}, {vr(LACC(qb))}")
        for db in range(8):
            for qb in range(2):
                mf.append(f"{MF} {ar(Oreg(qb, db))}, {ar(Fbuf(16 + s * 8 + db))}, {vr(Preg(qb, s))}, {ar(Oreg(qb, db))}")
    def o_epi(qb):
        ops = [f"v_rcp_f32 v{TMP[qb]}, v{LACC(qb)}"]
        for t in range(4):
            R = (qb * 4 + t) * 8
            a = Oreg(qb, 2 * t)
            ops += [f"v_accvgpr_read_b32 v{R + k}, a{a + k}" for k in range(8)]
            ops += [f"v_mul_f32 v{R + k}, v{R + k}, v{TMP[qb]}" for k in range(8)]
            ops += [f"v_cvt_pk_bf16_f32 v{R + k}, v{R + 2 * k}, v{R + 2 * k + 1}" for k in range(4)]
            ops.append(f"buffer_store_dwordx4 {vr(R)}, v{240 if qb % 2 == 0 else 246}, s[20:23], s{100 + qb // 2} offen offset:{t * 1024}{STF}")
        return ops
    q("s_lshl_b32 s56, s29, 12")
    q("s_add_u32 s100, s56, s32")
    q("s_add_u32 s101, s56, s33")
    S = Sched16(mf)
    eo = o_epi(2) + o_epi(3)
    ne = 0
    for g in range(len(mf)):
        while ne < len(eo) and S.load(g) + cost(eo[ne]) <= 2:
            if is_vm(eo[ne]):
                if S.valu[g]: break
                S.add_mem(g, eo[ne])
            else: S.add_valu(g, eo[ne])
            ne += 1
    q.extend(S.items())
    if DIAG and not DIAG2: q.items.append(stamp(10))
    for x in eo[ne:] + o_epi(0) + o_epi(1): q(x)
    if DIAG:
        if not DIAG2: q.items.append(stamp(11))
        q("s_waitcnt vmcnt(0)")
        q.items.append(stamp(12)); q.items.append(stamp(13, True))
        dump_stamps(q, 0, 28, 20)
    seg["E"] = [i.t for i in resolve(q.items)]

    out = list(seg["P"])
    if DIAG and not DIAG2: out.append(stamp(9).t)
    out += ["s_cmp_eq_u32 s30, 0", "s_cbranch_scc1 L_uds", "s_sub_u32 s24, s30, 1", "s_cmp_eq_u32 s24, 0", "s_cbranch_scc1 L_uddm"]
    out += [".p2align 3", "L_udd:"] + seg["UDD"]
    out += ["L_uddm:", f"v_mov_b32 v{VTMASK}, v{VTM}"] + seg["UDDm"]
    out += ["L_uds:", "s_cmp_eq_u32 s30, 7", "s_cselect_b32 s60, s26, s27", f"v_max_f32 v{VTMASK}, s60, v{VTM}"] + seg["UDSm"]
    out += ["s_cmp_eq_u32 s30, 7", "s_cbranch_scc1 L_fin", "s_lshl_b32 s24, s30, 1", "s_sub_u32 s24, 13, s24"]
    out += [".p2align 3", "L_uss:"] + seg["USS"]
    out += [f"v_mov_b32 v{VTMASK}, v{VTM}"] + seg["USSm"]
    out += ["L_fin:"] + seg["E"]
    out += ["L_f_end:", "s_endpgm"]
    out += ["L_xnwait:", "s_mov_b32 s44, 0x40000", "L_xnspin:", "s_sub_u32 s44, s44, 1", "s_cbranch_scc1 L_xnok", "s_sleep 2",
            "buffer_load_dword v244, v243, s[24:27], 0 offen offset:128 sc1", "s_waitcnt vmcnt(0)",
            "v_cmp_gt_u32 vcc, 16, v244", "s_cbranch_vccnz L_xnspin", "s_branch L_xnok"]
    out += ["L_kvwait:", "s_mov_b32 s44, 0x40000", "L_kvspin:", "s_sub_u32 s44, s44, 1", "s_cbranch_scc1 L_kvok", "s_sleep 2",
            "buffer_load_dword v244, v243, s[20:23], s59 offen sc1", "s_waitcnt vmcnt(0)",
            "v_cmp_ne_u32 vcc, 1, v244", "s_cbranch_vccnz L_kvspin", "s_branch L_kvok"]
    for site, par, dual in stubs:
        out += [f"L_stub_{site}:", f"s_call_b64 s[62:63], L_rare_{par}{'d' if dual else 's'}", f"s_branch L_ret_{site}"]
    for par in range(2):
        for dual in (True, False):
            out += [f"L_rare_{par}{'d' if dual else 's'}:"] + gen_rare(par, [0, 1, 2, 3] if dual else [0, 1])
    for path in (["P", "UDD", "UDD", "UDDm", "UDSm", "USS", "USS", "USSm", "E"], ["UDDm", "UDSm", "E"]):
        tx = []
        for k in path: tx += seg[k]
        for e in lint(tx, "f")[:40]: print(e)
    return out

KVPUB = int(os.environ.get("KVPUB", "24"))
STP = float(os.environ.get("STP", "29"))
STPK1 = float(os.environ.get("STPK1", "50"))
VW0 = int(os.environ.get("VW0", "350"))
WP = int(os.environ.get("WP", "14"))
XNC = int(os.environ.get("XNC", "640"))
CPF = int(os.environ.get("CPF", "1"))
if __name__ == "__main__":
    print(len(gen_f_kernel()))
```

```python
from asmlib import *
from sched16 import *
from gen_f import MF, WS_ACT, WS_PART, WS_FLAG, ACT_ROW, LOG2E, vr, ar, srd
import os

GPUB = int(os.environ.get('GPUB', '15'))
GPOLL = int(os.environ.get('GPOLL', '19'))
def gen_o_kernel():
    p = Prog()
    p("s_cmp_ge_u32 s2, 256")
    p("s_cbranch_scc1 L_o_end")
    if DIAG:
        for k in range(14): p(f"s_mov_b32 s{66 + 2 * k}, 0")
        p.items.append(stamp(0, True)); p.items.append(stamp(1))
    p("s_load_dwordx2 s[36:37], s[0:1], 0")
    p("s_load_dwordx2 s[38:39], s[0:1], 40")
    p("s_load_dwordx4 s[40:43], s[0:1], 72")
    p("s_load_dwordx2 s[44:45], s[0:1], 96")
    p("v_and_b32 v254, 63, v0")
    p("v_lshrrev_b32 v255, 6, v0")
    p("v_lshlrev_b32 v240, 4, v254")
    p("v_readfirstlane_b32 s28, v255")
    p("v_cmp_eq_u32 vcc, 0, v0")
    p("v_mov_b32 v248, 0x7ffff000")
    p("s_and_b32 s34, s2, 7")
    p("v_cndmask_b32_e64 v248, v248, 0, vcc")
    p("s_lshr_b32 s35, s2, 3")
    p("s_lshr_b32 s29, s34, 1")
    p("s_and_b32 s30, s34, 1")
    p("s_lshl_b32 s30, s30, 3")
    p("s_lshr_b32 s46, s35, 2")
    p("s_add_u32 s30, s30, s46")
    p("s_and_b32 s31, s35, 3")
    p("s_lshl_b32 s46, s30, 3")
    p("s_lshl_b32 s47, s28, 1")
    p("s_add_u32 s46, s46, s47")
    p(f"s_mul_i32 s46, s46, {ACT_ROW}")
    p(f"s_add_u32 s46, s46, {WS_ACT:#x}")
    p(f"s_mul_i32 s47, s29, {14 * 1024}")
    p("s_add_u32 s32, s46, s47")
    p(f"s_add_u32 s32, s32, {128 * 1024}")
    p("s_lshl_b32 s47, s29, 15")
    p("s_add_u32 s33, s46, s47")
    p(f"v_add_u32 v241, {ACT_ROW}, v240")
    p("s_lshl_b32 s46, s31, 8")
    p("s_lshl_b32 s47, s28, 13")
    p("s_add_u32 s46, s46, s47")
    p(f"s_mul_i32 s47, s29, {14 * 32 * 1024}")
    p("s_add_u32 s48, s46, s47")
    p("s_lshl_b32 s47, s29, 20")
    p("s_add_u32 s49, s46, s47")
    p("s_lshl_b32 s50, s28, 11")
    p("v_lshrrev_b32 v244, 4, v254")
    p("v_and_b32 v245, 15, v254")
    p("v_lshlrev_b32 v246, 1, v244")
    p("v_xor_b32 v245, v245, v246")
    p("v_lshlrev_b32 v244, 10, v244")
    p("v_lshl_add_u32 v242, v245, 4, v244")
    p("v_xor_b32 v243, 0x80, v242")
    p(f"v_add_u32 v243, {4096 - 1024}, v243")
    p("v_lshrrev_b32 v244, 2, v254")
    p("v_and_b32 v245, 7, v244")
    p("v_lshlrev_b32 v244, 8, v244")
    p("v_and_b32 v246, 3, v254")
    p("v_lshl_add_u32 v244, v246, 3, v244")
    for c in range(8):
        p(f"v_xor_b32 v246, {c}, v245")
        p(f"v_lshl_add_u32 v{208 + c}, v246, 5, v244")
        p(f"v_add_u32 v{216 + c}, 0x10000, v{208 + c}")
    p("s_lshl_b32 s51, s30, 2")
    p("s_add_u32 s51, s51, s31")
    p("s_lshl_b32 s52, s51, 18")
    p(f"s_add_u32 s52, s52, {WS_PART:#x}")
    p("s_lshl_b32 s46, s28, 16")
    p("s_lshl_b32 s47, s29, 13")
    p("s_add_u32 s53, s52, s46")
    p("s_add_u32 s53, s53, s47")
    p("s_lshl_b32 s46, s29, 16")
    p("s_lshl_b32 s47, s28, 11")
    p("s_add_u32 s54, s52, s46")
    p("s_add_u32 s54, s54, s47")
    p("s_cmp_eq_u32 s28, s29")
    p("s_cselect_b32 s53, 0x7ff00000, s53")
    p("s_mov_b32 s46, 0x24000")
    p("s_cselect_b32 s46, 0x20000, s46")
    p("v_add_u32 v236, s46, v240")
    p("v_lshl_add_u32 v237, v255, 11, v240")
    p("v_add_u32 v237, 0x20000, v237")
    for k in range(3):
        p(f"s_add_u32 s46, s29, {k + 1}")
        p("s_and_b32 s46, s46, 3")
        p("s_lshl_b32 s46, s46, 13")
        p(f"s_add_u32 s{61 + k}, s54, s46")
    p("s_lshl_b32 s55, s51, 9")
    p(f"s_add_u32 s55, s55, {WS_FLAG:#x}")
    p("s_lshl_b32 s46, s29, 7")
    p("s_add_u32 s56, s55, s46")
    p("v_and_b32 v247, 3, v254")
    p("v_lshlrev_b32 v247, 7, v247")
    p("v_and_b32 v244, 15, v254")
    p("v_lshlrev_b32 v244, 10, v244")
    p("v_lshrrev_b32 v245, 4, v254")
    p("v_lshl_add_u32 v238, v245, 3, v244")
    p("v_add_u32 v239, 0x4000, v238")
    p("s_lshl_b32 s46, s30, 17")
    p("s_lshl_b32 s47, s29, 15")
    p("s_add_u32 s46, s46, s47")
    p("s_lshl_b32 s47, s31, 8")
    p("s_add_u32 s46, s46, s47")
    p("s_lshl_b32 s47, s28, 6")
    p("s_add_u32 s57, s46, s47")
    p("s_waitcnt lgkmcnt(0)")
    srd(p, 24, 36, 0x200000)
    srd(p, 8, 38, 0x400000)
    srd(p, 12, 40, 1792 * 1024)
    srd(p, 16, 42, 0x200000)
    srd(p, 20, 44, 0x10000000)
    NK = 46; NC = 23
    PD = int(os.environ.get("OPD", "6"))
    def vm_ops(n):
        gp = n < 14
        j = n if gp else n - 14
        ops = []
        pre = [f"s_add_u32 m0, s50, {(n % 16) * 8192}", f"s_add_u32 s58, s{48 if gp else 49}, {j * 32768}"]
        wsrd = "s[12:15]" if gp else "s[8:11]"
        ops.append((pre, f"buffer_load_dwordx4 v242, {wsrd}, s58 offen lds", ("c", n // 2)))
        ops.append(([], f"buffer_load_dwordx4 v243, {wsrd}, s58 offen offset:1024 lds", ("c", n // 2)))
        pre = [f"s_add_u32 s59, s{32 if gp else 33}, {j * 1024}"] if j % 2 == 0 else []
        a = (n % 16) * 8
        ops.append((pre, f"buffer_load_dwordx4 {ar(a)}, v240, s[20:23], s59 offen offset:{(j % 2) * 1024}", ("c", n // 2)))
        ops.append(([], f"buffer_load_dwordx4 {ar(a + 4)}, v241, s[20:23], s59 offen offset:{(j % 2) * 1024}", ("c", n // 2)))
        return ops
    def w_reads(gi):
        n, c = gi // 8, gi % 8
        off = (n % 16) * 8192
        d = 128 + 4 * (gi % 16)
        return [f"ds_read_b64_tr_b16 v[{d + 2 * hf}:{d + 2 * hf + 1}], v{208 + 8 * (off >> 16) + c} offset:{(off & 0xffff) + hf * 4096}" for hf in range(2)]
    for n in range(2 * min(PD, 3)):
        for pre, ins, tag in vm_ops(n):
            for x in pre: p(x)
            p(ins, tag)
    if DIAG: p.items.append(stamp(2))
    p.wait_vm(("c", 0))
    p("s_barrier")
    if DIAG: p.items.append(stamp(3))
    RA = 8
    for gi in range(RA):
        for x in w_reads(gi): p(x, ("W", gi))
    p.wait_lgkm(("W", 0))
    mf = []
    for n in range(NK):
        base = 0 if n < 14 else 64
        first = n in (0, 14)
        for c in range(8):
            for tb in range(2):
                acc = base + ((c >> 1) * 2 + tb) * 8 + (c & 1) * 4
                mf.append(f"{MF} {vr(acc)}, {vr(128 + 4 * ((n * 8 + c) % 16))}, {ar((n % 16) * 8 + 4 * tb)}, {0 if first else vr(acc)}")
    S = Sched16(mf)
    NG = NK * 8
    for gi in range(RA, NG):
        ch, k = gi // 16, gi % 16
        for hf, x in enumerate(w_reads(gi)):
            g = 32 * ch - 16 + ((2 * k + hf) * 27) // 31
            S.add_mem(max(g, 0), x, ("W", gi))
    for gi in range(1, NG): S.add_first(2 * gi - 1, Wait("lgkm", ("W", gi)))
    def gB(ch): return 32 * ch + 16
    for ch in range(NC - 1):
        S.add_first(gB(ch) - 2, Ins("s_waitcnt lgkmcnt(0)"))
        S.add_first(gB(ch), Wait("vm", [("c", ch + 1)] + (["pub"] if ch == GPUB else [])))
        S.add_first(gB(ch), "s_barrier")
    nxt = min(PD, 3)
    for ch in range(NC):
        ops = []
        cnt = 0
        while nxt < NC and nxt <= ch + PD and cnt < 2:
            ops += vm_ops(2 * nxt) + vm_ops(2 * nxt + 1); nxt += 1; cnt += 1
        g = 32 * ch
        st = 4 if len(ops) <= 8 else 2
        for pre, ins, tag in ops:
            for x in pre: S.add_first(g, x)
            S.add_mem(g, ins, tag); g += st
    assert PD <= 6
    def pub(base, kind, g0, g1, pace=0):
        ops = []
        for k8 in range(8):
            R = base + 8 * k8
            cv = [Op(f"v_cvt_pk_bf16_f32 v{R + k}, v{R + 2 * k}, v{R + 2 * k + 1}", g0, g1) for k in range(4)]
            ops += cv
            pre = [f"s_add_u32 s60, s53, {kind * 32768 + (k8 // 4) * 4096}"] if k8 % 4 == 0 else []
            ops.append(Op(f"buffer_store_dwordx4 {vr(R)}, v240, s[20:23], s60 offen offset:{(k8 % 4) * 1024} sc1", g0 + k8 * pace, g1, [cv[-1]], pre=pre, tag="pub"))
            ops.append(Op(f"ds_write_b128 v236, {vr(R)} offset:{kind * 8192 + k8 * 1024}", g0, g1, tag="own"))
        return ops
    NM = len(mf)
    schedule(S, [pub(0, 0, 14 * 16 + 6, gB(GPUB) - 20, 20)], 14 * 16, NM - 1, base_cap=3)
    S.add_valu(200, "v_mov_b32 v249, 1")
    S.add_mem(gB(GPUB) + 1, "buffer_store_dword v249, v248, s[20:23], s56 offen offset:4 sc1", "flag")
    for k in range(4):
        S.add_mem(gB(GPUB) + 5 + 4 * k, f"buffer_load_dwordx2 v[{192 + 2 * k}:{193 + 2 * k}], v{238 + k // 2}, s[24:27], s57 offen offset:{32 * (k % 2)}", "x")
    gp = 32 * GPOLL
    S.add_mem(gp + 1, "buffer_load_dword v250, v247, s[20:23], s55 offen offset:4 sc1", "gpoll")
    gc = gp + 33
    S.add_first(gc + 1, Wait("vm", "gpoll"))
    S.add_valu(gc + 1, "v_cmp_ne_u32 vcc, 1, v250")
    S.add_last(gc + 2, "s_cbranch_vccnz L_o_gwait")
    S.add_last(gc + 2, "L_o_gok:")
    for k in range(3):
        for tb in range(2):
            S.add_mem(gc + 3 + 2 * (2 * k + tb), f"buffer_load_dwordx4 {vr(8 * k + 4 * tb)}, v240, s[20:23], s{61 + k} offen offset:{tb * 1024} sc1", "gg")
    for tb in range(2): S.add_mem(gc + 4 + 2 * tb, f"ds_read_b128 {vr(24 + 4 * tb)}, v237 offset:{tb * 1024}", "gown")
    if DIAG:
        S.add_first(14 * 16, stamp(4)); S.add_first(30 * 16, stamp(5)); S.add_first(NM - 1, stamp(6))
    print(S.report("out")[:300])
    OD = os.environ.get("ODROP", "").split(",")
    def keep(i):
        if isinstance(i, Ins):
            if "dma" in OD and i.t.endswith(" lds"): return False
            if "act" in OD and i.t.startswith("buffer_load_dwordx4 a["): return False
            if "tr" in OD and i.t.startswith("ds_read_b64_tr"): return False
            if "bar" in OD and i.t == "s_barrier": return False
        if isinstance(i, Wait):
            tags = i.tag if isinstance(i.tag, list) else [i.tag]
            if "dma" in OD and "act" in OD: tags = [t for t in tags if not (isinstance(t, tuple) and t[0] == "c")]
            if "tr" in OD: tags = [t for t in tags if not (isinstance(t, tuple) and t[0] == "W")]
            if not tags: return False
            i.tag = tags
        return True
    p.extend([i for i in S.items() if keep(i)])
    p("s_nop 5")
    for o in pub(64, 1, 0, 0):
        for x in o.pre: p(x)
        p(o.t, o.tag)
    if DIAG: p.items.append(stamp(7))
    def unpack(dst, src, n=8):
        for k in range(n):
            p(f"v_lshlrev_b32 v{dst + 2 * k}, 16, v{src + k}")
            p(f"v_and_b32 v{dst + 2 * k + 1}, 0xffff0000, v{src + k}")
    def summ(D, T):
        unpack(D, 24)
        for k in range(3):
            unpack(T, 8 * k)
            for e in range(16): p(f"v_add_f32 v{D + e}, v{D + e}, v{T + e}")
    def rnd(b, T):
        for k in range(0, 16, 2): p(f"v_cvt_pk_bf16_f32 v{T + k // 2}, v{b + k}, v{b + k + 1}")
        unpack(b, T)
    p.wait_vm("gg"); p.wait_lgkm("gown")
    summ(32, 48)
    rnd(32, 48)
    for k in range(16): p(f"v_mul_f32 v{48 + k}, {f2u(-LOG2E):#x}, v{32 + k}")
    for k in range(16): p(f"v_exp_f32 v{48 + k}, v{48 + k}")
    for k in range(16): p(f"v_add_f32 v{48 + k}, 1.0, v{48 + k}")
    for k in range(16): p(f"v_rcp_f32 v{48 + k}, v{48 + k}")
    for k in range(16): p(f"v_mul_f32 v{32 + k}, v{32 + k}, v{48 + k}")
    rnd(32, 48)
    unpack(128, 192)
    p("s_waitcnt vmcnt(0) lgkmcnt(0)")
    p("s_barrier")
    if DIAG: p.items.append(stamp(8))
    p("buffer_store_dword v249, v248, s[20:23], s56 offen sc1")
    for tb in range(2): p(f"ds_read_b128 {vr(24 + 4 * tb)}, v237 offset:{8192 + tb * 1024}")
    for k in range(3): p(f"s_add_u32 s{61 + k}, s{61 + k}, 32768")
    p("s_mov_b32 s44, 0x40000")
    p.label("L_o_poll")
    p("buffer_load_dword v250, v247, s[20:23], s55 offen sc1")
    p("s_waitcnt vmcnt(0)")
    p("v_cmp_ne_u32 vcc, 1, v250")
    p("s_cbranch_vccz L_o_go")
    p("s_sub_u32 s44, s44, 1")
    p("s_cbranch_scc0 L_o_poll")
    p.label("L_o_go")
    if DIAG: p.items.append(stamp(9))
    for k in range(3):
        for tb in range(2):
            p(f"buffer_load_dwordx4 {vr(8 * k + 4 * tb)}, v240, s[20:23], s{61 + k} offen offset:{tb * 1024} sc1", ("gs", k))
    p("s_waitcnt lgkmcnt(0)")
    unpack(64, 24)
    for k in range(3):
        p.wait_vm(("gs", k))
        unpack(80, 8 * k)
        for e in range(16): p(f"v_add_f32 v{64 + e}, v{64 + e}, v{80 + e}")
    if DIAG: p.items.append(stamp(10))
    rnd(64, 80)
    for k in range(16): p(f"v_mul_f32 v{64 + k}, v{64 + k}, v{32 + k}")
    rnd(64, 80)
    for k in range(16): p(f"v_add_f32 v{64 + k}, v{64 + k}, v{128 + k}")
    for k in range(0, 16, 2): p(f"v_cvt_pk_bf16_f32 v{96 + k // 2}, v{64 + k}, v{65 + k}")
    for k in range(4):
        p(f"buffer_store_dwordx2 v[{96 + 2 * k}:{97 + 2 * k}], v{238 + k // 2}, s[16:19], s57 offen offset:{32 * (k % 2)}")
    if DIAG:
        p.items.append(stamp(11))
        p("s_waitcnt vmcnt(0)")
        p.items.append(stamp(12)); p.items.append(stamp(13, True))
        dump_stamps(p, 1, 28, 20)
        if os.environ.get("DBGOUT"):
            wg = int(os.environ["DBGOUT"])
            p("s_load_dwordx2 s[24:25], s[0:1], 88")
            p(f"s_mov_b32 s64, {WS_DIAG + wg * 256:#x}")
            p("s_waitcnt vmcnt(0)")
            for qq in range(4): p(f"buffer_load_dwordx4 v[{20 + 4 * qq}:{23 + 4 * qq}], v16, s[20:23], s64 offen offset:{16 * qq}")
            p("s_waitcnt lgkmcnt(0) vmcnt(0)")
            p("s_mov_b32 s26, 256")
            p("s_mov_b32 s27, 0x20000")
            p(f"s_cmp_eq_u32 s2, {wg}")
            p("s_cselect_b32 s64, 0, 0x1000")
            p("v_mov_b32 v21, v34")
            p("v_mov_b32 v34, v0")
            p("v_mov_b32 v35, v13")
            for k in range(2, 16): p(f"v_sub_u32 v{20 + k}, v{20 + k}, v20")
            for qq in range(4): p(f"buffer_store_dwordx4 v[{20 + 4 * qq}:{23 + 4 * qq}], v248, s[24:27], s64 offen offset:{16 * qq}")
    p.label("L_o_end")
    p("s_endpgm")
    for x in ["L_o_gwait:", "s_mov_b32 s44, 0x40000", "L_o_gspin:", "s_sub_u32 s44, s44, 1", "s_cbranch_scc1 L_o_gok", "s_sleep 1",
              "buffer_load_dword v250, v247, s[20:23], s55 offen offset:4 sc1", "s_waitcnt vmcnt(0)", "v_cmp_ne_u32 vcc, 1, v250",
              "s_cbranch_vccnz L_o_gspin", "s_branch L_o_gok"]: p(x)
    texts = [i.t for i in resolve(p.items)]
    for e in lint(texts, "out")[:20]: print(e)
    return texts
if __name__ == "__main__":
    print(len(gen_o_kernel()))
```

```python
from asmlib import *
from sched16 import *
import math, os, re
MF = "v_mfma_f32_16x16x32_bf16"
KNAME = "recurrent_scan__compressed_kv_cla__glu_gated_geglu__prompt_kernel"
WSB = int(os.environ.get("WSB", "0"), 0)
WS_XN = WSB + 0x0
WS_KV = WSB + 0x200000
WS_ACT = WSB + 0x2200000
WS_PART = WSB + 0x4000000
WS_FLAG = WSB + 0x5000000
ACT_ROW = 184 * 1024
LOG2E = 1.4426950408889634
KSCALE = LOG2E / math.sqrt(128.0)
BIG = 2.0 ** 100
THR = float(os.environ.get("THR", "40"))
STF = " sc1"
NT = os.environ.get("NT", " nt")
NTV = os.environ.get("NTV", "")
OPF = int(os.environ.get("OPF", "1"))
WSB = int(os.environ.get("WSB", "0"), 0)
DIAG3 = bool(os.environ.get("DIAG3"))
DIAG2 = [int(x) for x in os.environ.get("DIAG2", "").split(",") if x]
def vr(b, n=4): return f"v[{b}:{b + n - 1}]"
def ar(b, n=4): return f"a[{b}:{b + n - 1}]"
def srd(p, d, lo, size):
    p(f"s_mov_b32 s{d}, s{lo}")
    p(f"s_mov_b32 s{d + 1}, s{lo + 1}")
    p(f"s_mov_b32 s{d + 2}, {size:#x}")
    p(f"s_mov_b32 s{d + 3}, 0x20000")

def wave_reduce(p, regs_):
    steps = ["quad_perm:[1,0,3,2] row_mask:0xf bank_mask:0xf", "quad_perm:[2,3,0,1] row_mask:0xf bank_mask:0xf",
             "row_half_mirror row_mask:0xf bank_mask:0xf", "row_mirror row_mask:0xf bank_mask:0xf",
             "row_bcast:15 row_mask:0xa bank_mask:0xf", "row_bcast:31 row_mask:0xc bank_mask:0xf"]
    for st in steps:
        p("s_nop 1")
        for r in regs_: p(f"v_add_f32_dpp v{r}, v{r}, v{r} {st}")
    p("s_nop 1")
def round_bf16(p, dst, src):
    p(f"v_cvt_pk_bf16_f32 v{dst}, v{src}, v{src}")
    p(f"v_and_b32 v{dst}, 0xffff0000, v{dst}")

def emit_ln(p):
    for r in range(2):
        for k in range(4):
            p(f"v_lshlrev_b32 v{8 + 8 * r + 2 * k}, 16, v{4 * r + k}")
            p(f"v_and_b32 v{9 + 8 * r + 2 * k}, 0xffff0000, v{4 * r + k}")
    for r in range(2):
        b = 8 + 8 * r
        p(f"v_add_f32 v{24 + r}, v{b}, v{b + 1}")
        for k in range(2, 8): p(f"v_add_f32 v{24 + r}, v{24 + r}, v{b + k}")
    wave_reduce(p, [24, 25])
    p("v_readlane_b32 s58, v24, 63")
    p("v_readlane_b32 s59, v25, 63")
    p(f"v_mov_b32 v30, {f2u(1.0 / 512):#x}")
    p("s_nop 1")
    for r in range(2): p(f"v_mul_f32 v{26 + r}, s{58 + r}, v30")
    for r in range(2):
        b = 8 + 8 * r
        for k in range(8): p(f"v_sub_f32 v{32 + k}, v{b + k}, v{26 + r}")
        p(f"v_mul_f32 v{24 + r}, v32, v32")
        for k in range(1, 8): p(f"v_fmac_f32 v{24 + r}, v{32 + k}, v{32 + k}")
    wave_reduce(p, [24, 25])
    p("v_readlane_b32 s58, v24, 63")
    p("v_readlane_b32 s59, v25, 63")
    p("s_nop 1")
    for r in range(2):
        p(f"v_mul_f32 v{28 + r}, s{58 + r}, v30")
        round_bf16(p, 28 + r, 28 + r)
        p(f"v_add_f32 v{28 + r}, {f2u(1e-5):#x}, v{28 + r}")
        round_bf16(p, 28 + r, 28 + r)
        p(f"v_sqrt_f32 v{28 + r}, v{28 + r}")
        p("s_nop 0")
        round_bf16(p, 28 + r, 28 + r)
        p(f"v_rcp_f32 v{28 + r}, v{28 + r}")
        round_bf16(p, 26 + r, 26 + r)
    for r in range(2):
        b = 8 + 8 * r
        for k in range(8): p(f"v_sub_f32 v{b + k}, v{b + k}, v{26 + r}")
        for k in range(4): p(f"v_cvt_pk_bf16_f32 v{32 + k}, v{b + 2 * k}, v{b + 2 * k + 1}")
        for k in range(4):
            p(f"v_lshlrev_b32 v{b + 2 * k}, 16, v{32 + k}")
            p(f"v_and_b32 v{b + 2 * k + 1}, 0xffff0000, v{32 + k}")
        for k in range(8): p(f"v_mul_f32 v{b + k}, v{b + k}, v{28 + r}")
        for k in range(4): p(f"v_cvt_pk_bf16_f32 v{40 + 4 * r + k}, v{b + 2 * k}, v{b + 2 * k + 1}")

def ln_ops(g0, g1):
    p = Prog(); emit_ln(p)
    ops = []; lag = False
    for it in p.items:
        t = it.t
        if t.startswith("s_nop"): lag = True; continue
        t = re.sub(r"\bv(\d+)\b", lambda m: "v%d" % (int(m.group(1)) + 176 if int(m.group(1)) < 8 else int(m.group(1)) + 128), t)
        ops.append(Op(t, g0, g1, [ops[-1]] if lag else [], lag=2)); lag = False
    return ops

def Sreg(par, qb, kb): return par * 64 + qb * 16 + kb * 4
def Preg(qb, s): return 128 + qb * 8 + s * 4
def NEGM(qb): return 160 + 4 * qb
def LACC(qb): return 176 + 4 * qb
ONES = 192
MX = [196, 197]; VTM = 198; VTMASK = 199; VCUR, VPREV = 200, 201; TMP = [202, 203, 204, 205]
def Qreg(qb, t): return (t // 2) * 32 + qb * 8 + (t % 2) * 4
def Oreg(qb, db): return 64 + qb * 32 + db * 4
def Fbuf(f): return 192 + (f % 16) * 4
S_THR = 61
NPRE = 6

def tail_reads(base_reg, off):
    return [f"ds_read_b128 {ar(Fbuf(f))}, v{base_reg} offset:{off + f * 1024}" for f in range(NPRE)]

def gen_iter(name, tq, tp, parq, masked, odd_q, kreg, koff, vreg, voff, nreg, noff, first_pv=False, end_ops=(), swap=False, mid_ops=(), vmn=16):
    qq = {"D": [0, 1, 2, 3], "S": [0, 1]}[tq]
    qp = {"D": [0, 1, 2, 3], "S": [0, 1]}[tp]
    parp = 1 - parq
    mf = []; use = {}; lastq = {}; lastuse = {}
    for kb in range(4):
        for t in range(4):
            f = kb * 4 + t
            use[f] = len(mf)
            for qb in qq:
                d = Sreg(parq, qb, kb)
                mf.append(f"{MF} {vr(d)}, {ar(Fbuf(f))}, {ar(Qreg(qb, t))}, {vr(NEGM(qb)) if t == 0 else vr(d)}")
                lastq[(qb, kb)] = len(mf) - 1
            lastuse[f] = len(mf) - 1
    firstp = {}
    for s in range(2):
        for db in range(8):
            f = 16 + s * 8 + db
            use[f] = len(mf)
            for qb in qp:
                o = Oreg(qb, db)
                firstp.setdefault((qb, s), len(mf))
                mf.append(f"{MF} {ar(o)}, {ar(Fbuf(f))}, {vr(Preg(qb, s))}, {0 if (first_pv and s == 0) else ar(o)}")
            lastuse[f] = len(mf) - 1
        for qb in qp:
            mf.append(f"{MF} {vr(LACC(qb))}, {vr(ONES)}, {vr(Preg(qb, s))}, {0 if (first_pv and s == 0) else vr(LACC(qb))}")
    n = len(mf)
    S = Sched16(mf)
    gB = n - (16 if len(qp) == 2 else 22)
    LEAD = 14
    for f in range(32):
        tag = ("F", "n", f) if f < NPRE else ("F", "c", f)
        if use[f] > 0: S.add_first(use[f] - 1, Wait("lgkm", tag))
    S.add_first(gB, Ins(f"s_waitcnt vmcnt({vmn}) lgkmcnt(0)"))
    S.add_first(gB + 1, "s_barrier")
    S.add_first(n - 1, Wait("lgkm", ("F", "x", 0)))
    R = []
    todo = list(range(NPRE, 32))
    for k, f in enumerate(todo):
        e = lastuse[f - 16] if f >= 16 else 0
        dl = min(use[f] - LEAD + 4, gB - 5 - (31 - f))
        e = max(e, min(use[f] - LEAD - 8, dl - 4))
        assert dl >= e, (name, f, dl, e)
        if f < 16: ins = f"ds_read_b128 {ar(Fbuf(f))}, v{kreg} offset:{koff + f * 1024}"
        else: ins = f"ds_read_b128 {ar(Fbuf(f))}, v{vreg} offset:{voff + (f - 16) * 1024}"
        R.append(Op(ins, max(e, 0), max(dl, 0), tag=("F", "c", f)))
    for f, ins in enumerate(tail_reads(nreg, noff)):
        R.append(Op(ins, max(gB + 1, lastuse[f + 16]), min(n - 2, gB + 3 + 2 * f), tag=("F", "x", f)))
    D = []
    span = gB - 8
    for q in range(4):
        D.append(Op(f"buffer_load_dwordx4 v240, s[16:19], s55 offen offset:{q * 1024} sc1 lds", 2 + q * span // 4, 2 + (q + 1) * span // 4 - 1, tag="kv"))
    for x in ["s_add_u32 s54, s54, 0x8000", "s_add_u32 s52, s52, 0x8000", "s_and_b32 s52, s52, 0x1ffff", "s_mov_b32 m0, s52"]:
        D.append(Op(x, 0, gB))
    tl = n - 3 - (gB + 1)
    for q in range(4):
        D.append(Op(f"buffer_load_dwordx4 v240, s[16:19], s54 offen offset:{q * 1024} sc1 lds", gB + 1 + q * tl // 4, gB + 1 + (q + 1) * tl // 4, tag="kv"))
    D.append(Op("s_mov_b32 m0, s53", 0, n - 1))
    E = []; C = []
    for s in range(2):
        for qb in qp:
            b = Sreg(parp, qb, 2 * s)
            dl = firstp[(qb, s)] - 2
            es = [Op(f"v_exp_f32 v{b + r}, v{b + r}", 0, dl - 1) for r in range(8)]
            E += es
            C += [Op(f"v_cvt_pk_bf16_f32 v{Preg(qb, s) + k}, v{b + 2 * k}, v{b + 2 * k + 1}", 0, dl, [es[2 * k], es[2 * k + 1]]) for k in range(4)]
    M = []
    vals = []
    mq = qq[-2:]
    first = True
    for kb in range(4):
        for qb in qq:
            b = Sreg(parq, qb, kb)
            e0 = lastq[(qb, kb)] + 5
            if masked and qb in mq:
                for r in range(4):
                    kk = 64 * odd_q + 16 * kb + r - 16 * (qb & 1)
                    tm = TMP[r % 2]
                    M.append(Op(f"v_subrev_f32 v{tm}, {f2u(kk * BIG):#x}, v{VTMASK}", 0, n - 3))
                    M.append(Op(f"v_min_f32 v{b + r}, v{b + r}, v{tm}", e0, n - 3))
            if first:
                M.append(Op(f"v_max_f32 v{MX[0]}, v{b}, v{b + 1}", e0, n - 3)); first = False
            else:
                M.append(Op(f"v_max3_f32 v{MX[0]}, v{MX[0]}, v{b}, v{b + 1}", e0, n - 3))
            M.append(Op(f"v_max3_f32 v{MX[0]}, v{MX[0]}, v{b + 2}, v{b + 3}", e0, n - 3))
    M.append(Op(f"v_cmp_lt_f32 vcc, s{S_THR}, v{MX[0]}", 0, n - 2))
    X = []
    if swap:
        X = [Op(f"v_xor_b32 v{VCUR}, 0x10000, v{VCUR}", gB, n - 1), Op(f"v_xor_b32 v{VPREV}, 0x10000, v{VPREV}", gB, n - 1, [R[-1]])]
    k = schedule(S, [R, D, E, C, M, X], 0, n - 1, name=name)
    g = D[7].g + 1
    for x in ["s_add_u32 s55, s55, 0x8000", "s_add_u32 s53, s53, 0x8000", "s_and_b32 s53, s53, 0x1ffff"] + list(mid_ops):
        while S.first[g]: g += 1
        S.add_first(g, x); g += 1
    assert g <= D[-1].g, (name, g, D[-1].g)
    for x in end_ops: S.add_last(n - 1, x)
    print(S.report(f"{name}(k={k})"))
    pre = [Ins(f"ds_read_b128 {ar(Fbuf(f))}, v0", ("F", "n", f)) for f in range(NPRE)] + [Wait("lgkm", ("F", "n", 0))]
    return [i.t for i in resolve(S.items(), pre)]

def allreduce4(p, op, src, t0, t1):
    p(f"v_mov_b32 v{t0}, v{src}")
    p(f"v_mov_b32 v{t1}, v{src}")
    p("s_nop 1")
    p(f"v_permlane32_swap_b32 v{t0}, v{t1}")
    p("s_nop 1")
    p(f"{op} v{t0}, v{t0}, v{t1}")
    p(f"v_mov_b32 v{t1}, v{t0}")
    p("s_nop 1")
    p(f"v_permlane16_swap_b32 v{t0}, v{t1}")
    p("s_nop 1")
    p(f"{op} v{t0}, v{t0}, v{t1}")

def rowmax(p, par, qb):
    b = Sreg(par, qb, 0)
    p(f"v_max3_f32 v{MX[1]}, v{b}, v{b + 1}, v{b + 2}")
    for k in range(3, 15, 2): p(f"v_max3_f32 v{MX[1]}, v{MX[1]}, v{b + k}, v{b + k + 1}")
    p(f"v_max_f32 v{MX[1]}, v{MX[1]}, v{b + 15}")
    allreduce4(p, "v_max_f32", MX[1], TMP[0], TMP[1])

def gen_rare(par, qbs):
    p = Prog()
    p("s_nop 15")
    for qb in qbs:
        rowmax(p, par, qb)
        p(f"v_max_f32 v{TMP[0]}, 0, v{TMP[0]}")
        p(f"v_sub_f32 v{TMP[1]}, 0, v{TMP[0]}")
        p(f"v_exp_f32 v{TMP[1]}, v{TMP[1]}")
        for r in range(4): p(f"v_sub_f32 v{NEGM(qb) + r}, v{NEGM(qb) + r}, v{TMP[0]}")
        for r in range(16): p(f"v_sub_f32 v{Sreg(par, qb, 0) + r}, v{Sreg(par, qb, 0) + r}, v{TMP[0]}")
        for r in range(4): p(f"v_mul_f32 v{LACC(qb) + r}, v{LACC(qb) + r}, v{TMP[1]}")
        for r in range(0, 32, 2):
            a = Oreg(qb, 0) + r
            p(f"v_accvgpr_read_b32 v{TMP[2]}, a{a}")
            p(f"v_accvgpr_read_b32 v{TMP[3]}, a{a + 1}")
            p(f"v_mul_f32 v{TMP[2]}, v{TMP[2]}, v{TMP[1]}")
            p(f"v_mul_f32 v{TMP[3]}, v{TMP[3]}, v{TMP[1]}")
            p(f"v_accvgpr_write_b32 a{a}, v{TMP[2]}")
            p(f"v_accvgpr_write_b32 a{a + 1}, v{TMP[3]}")
    p("s_nop 1")
    p("s_setpc_b64 s[62:63]")
    return [i.t for i in p.items]


GPUB = int(os.environ.get("GPUB", "15"))
GPOLL = int(os.environ.get("GPOLL", "19"))
CPUB = int(os.environ.get("CPUB", "2"))
CPOLL = int(os.environ.get("CPOLL", "150"))
CCHK = int(os.environ.get("CCHK", "186"))
def spin(name, load, cmp):
    return [f"L_{name}wait:", "s_mov_b32 s44, 0x40000", f"L_{name}spin:", "s_sub_u32 s44, s44, 1", f"s_cbranch_scc1 L_{name}ok", "s_sleep 1",
            load, "s_waitcnt vmcnt(0)", cmp, f"s_cbranch_vccnz L_{name}spin", f"s_branch L_{name}ok"]

def gen_tail():
    p = Prog()
    slow = []
    for f in range(16): p(f"ds_read_b128 {ar(Fbuf(16 + f))}, v{VPREV} offset:{49152 + f * 1024}", ("VE", f))
    p("s_load_dwordx2 s[24:25], s[0:1], 0")
    p("s_load_dwordx2 s[4:5], s[0:1], 80")
    for qb in range(2):
        b = Sreg(1, qb, 0)
        for r in range(16): p(f"v_exp_f32 v{b + r}, v{b + r}")
    for x in ["s_lshr_b32 s35, s34, 1", "s_sub_u32 s31, 15, s30", "s_bitcmp1_b32 s34, 0", "s_cselect_b32 s31, s31, s30", "s_and_b32 s45, s29, 3",
              "s_lshl_b32 s46, s31, 3", "s_lshl_b32 s47, s28, 1", "s_add_u32 s46, s46, s47", f"s_mul_i32 s46, s46, {ACT_ROW}",
              f"s_add_u32 s46, s46, {WS_ACT:#x}", f"s_mul_i32 s47, s35, {14 * 1024}", "s_add_u32 s64, s46, s47", f"s_add_u32 s64, s64, {128 * 1024}",
              "s_lshl_b32 s47, s35, 15", "s_add_u32 s65, s46, s47",
              "s_lshl_b32 s46, s45, 8", "s_lshl_b32 s47, s28, 13", "s_add_u32 s46, s46, s47", f"s_mul_i32 s47, s35, {14 * 32 * 1024}",
              "s_add_u32 s48, s46, s47", "s_lshl_b32 s47, s35, 20", "s_add_u32 s49, s46, s47", "s_lshl_b32 s50, s28, 11",
              "s_mov_b32 s8, s38", "s_mov_b32 s9, s39", "s_mov_b32 s10, 0x400000",
              "s_mov_b32 s12, s96", "s_mov_b32 s13, s97", f"s_mov_b32 s14, {1792 * 1024}",
              "s_lshl_b32 s56, s29, 12", "s_add_u32 s100, s56, s32", "s_add_u32 s101, s56, s33"]: p(x)
    p("v_lshrrev_b32 v244, 4, v254")
    p("v_and_b32 v245, 15, v254")
    p("v_lshlrev_b32 v243, 1, v244")
    p("v_xor_b32 v245, v245, v243")
    p("v_lshlrev_b32 v244, 10, v244")
    p("v_lshl_add_u32 v242, v245, 4, v244")
    p("v_xor_b32 v243, 0x80, v242")
    p(f"v_add_u32 v243, {4096 - 1024}, v243")
    p("s_waitcnt vmcnt(0)")
    p("v_cmp_ne_u32 vcc, 1, v207")
    for qb in range(2):
        b = Sreg(1, qb, 0)
        for k in range(8): p(f"v_cvt_pk_bf16_f32 v{Preg(qb, 0) + k}, v{b + 2 * k}, v{b + 2 * k + 1}")
    p("s_cbranch_vccnz L_hwait")
    p.label("L_hok")
    slow += spin("h", "buffer_load_dword v207, v206, s[20:23], s99 offen sc1", "v_cmp_ne_u32 vcc, 1, v207")
    NK = 46; NC = 23
    SL = [8, 9, 0, 1, 2, 3, 4, 5]
    def wofs(n): return SL[(n // 2) % 8] * 16384 + (n % 2) * 8192
    def areg(n): return (n % 8) * 8 + (192 if (n % 16) >= 8 else 0)
    def w_ops(n):
        gp = n < 14
        j = n if gp else n - 14
        pre = [f"s_add_u32 m0, s50, {wofs(n)}", f"s_add_u32 s58, s{48 if gp else 49}, {j * 32768}"]
        wsrd = "s[12:15]" if gp else "s[8:11]"
        return [(pre, f"buffer_load_dwordx4 v242, {wsrd}, s58 offen lds", ("cw", n // 2)),
                ([], f"buffer_load_dwordx4 v243, {wsrd}, s58 offen offset:1024 lds", ("cw", n // 2))]
    def a_ops(n):
        gp = n < 14
        j = n if gp else n - 14
        pre = [f"s_add_u32 s59, s{64 if gp else 65}, {j * 1024}"] if j % 2 == 0 else []
        return [(pre, f"buffer_load_dwordx4 {ar(areg(n))}, v240, s[20:23], s59 offen offset:{(j % 2) * 1024} sc1", ("ca", n // 2)),
                ([], f"buffer_load_dwordx4 {ar(areg(n) + 4)}, v246, s[20:23], s59 offen offset:{(j % 2) * 1024} sc1", ("ca", n // 2))]
    def chunk(ch, w=True, a=True):
        return (w_ops(2 * ch) + w_ops(2 * ch + 1) if w else []) + (a_ops(2 * ch) + a_ops(2 * ch + 1) if a else [])
    p("s_waitcnt lgkmcnt(0)")
    p("s_barrier")
    for x in ["s_mov_b32 s26, 0x200000", "s_mov_b32 s27, 0x20000", "s_mov_b32 s6, 0x200000", "s_mov_b32 s7, 0x20000"]: p(x)
    mf = []
    for s in range(2):
        for qb in range(2): mf.append(f"{MF} {vr(LACC(qb))}, {vr(ONES)}, {vr(Preg(qb, s))}, {vr(LACC(qb))}")
        for db in range(8):
            for qb in range(2):
                mf.append(f"{MF} {ar(Oreg(qb, db))}, {ar(Fbuf(16 + s * 8 + db))}, {vr(Preg(qb, s))}, {ar(Oreg(qb, db))}")
    def o_epi(qb):
        ops = [f"v_rcp_f32 v{TMP[qb]}, v{LACC(qb)}"]
        for t in range(4):
            R = (qb * 4 + t) * 8
            a = Oreg(qb, 2 * t)
            ops += [f"v_accvgpr_read_b32 v{R + k}, a{a + k}" for k in range(8)]
            ops += [f"v_mul_f32 v{R + k}, v{R + k}, v{TMP[qb]}" for k in range(8)]
            ops += [f"v_cvt_pk_bf16_f32 v{R + k}, v{R + 2 * k}, v{R + 2 * k + 1}" for k in range(4)]
            ops.append(f"buffer_store_dwordx4 {vr(R)}, v{240 if qb % 2 == 0 else 246}, s[20:23], s{100 + qb // 2} offen offset:{t * 1024}{STF}")
        return ops
    S = Sched16(mf)
    early = chunk(0) + chunk(1)
    for i, (pre, ins, tag) in enumerate(early[:9]):
        for x in pre: S.add_first(4 * i, x)
        S.add_mem(4 * i, ins, tag)
    eo = o_epi(2) + o_epi(3)
    ne = 0
    for g in range(len(mf)):
        while ne < len(eo) and S.load(g) + cost(eo[ne]) <= 2:
            if is_vm(eo[ne]):
                if S.valu[g]: break
                S.add_mem(g, eo[ne], "ctxst")
            else: S.add_valu(g, eo[ne])
            ne += 1
    p.extend(S.items())
    if DIAG and not DIAG2: p.items.append(stamp(10))
    rest = early[9:] + chunk(2) + chunk(3) + chunk(4)
    ops = eo[ne:] + o_epi(0) + o_epi(1)
    every = max(1, len(ops) // (len(rest) + 1))
    for i, x in enumerate(ops):
        p(x, "ctxst" if is_vm(x) else None)
        if i % every == every - 1 and rest:
            pre, ins, tag = rest.pop(0)
            for y in pre: p(y)
            p(ins, tag)
    for pre, ins, tag in rest:
        for y in pre: p(y)
        p(ins, tag)
    p("v_lshrrev_b32 v244, 2, v254")
    p("v_and_b32 v245, 7, v244")
    p("v_lshlrev_b32 v244, 8, v244")
    p("v_and_b32 v241, 3, v254")
    p("v_lshl_add_u32 v244, v241, 3, v244")
    for c in range(8):
        p(f"v_xor_b32 v241, {c}, v245")
        p(f"v_lshl_add_u32 v{208 + c}, v241, 5, v244")
        p(f"v_add_u32 v{216 + c}, 0x10000, v{208 + c}")
        p(f"v_add_u32 v{224 + c}, 0x20000, v{208 + c}")
    if DIAG and not DIAG2: p.items.append(stamp(11))
    def w_reads(gi):
        n, c = gi // 8, gi % 8
        off = wofs(n)
        d = 128 + 4 * (gi % 16)
        return [f"ds_read_b64_tr_b16 v[{d + 2 * hf}:{d + 2 * hf + 1}], v{208 + 8 * (off >> 16) + c} offset:{(off & 0xffff) + hf * 4096}" for hf in range(2)]
    p.wait_vm([("cw", 0), ("ca", 0)])
    p("s_barrier")
    RA = 8
    for gi in range(RA):
        for x in w_reads(gi): p(x, ("W", gi))
    KEEP = 6 * 16384
    for x in ["s_lshl_b32 s51, s31, 2", "s_add_u32 s51, s51, s45", "s_lshl_b32 s52, s51, 18", f"s_add_u32 s52, s52, {WS_PART:#x}",
              "s_lshl_b32 s46, s28, 16", "s_lshl_b32 s47, s35, 13", "s_add_u32 s53, s52, s46", "s_add_u32 s53, s53, s47",
              "s_lshl_b32 s46, s35, 16", "s_lshl_b32 s47, s28, 11", "s_add_u32 s54, s52, s46", "s_add_u32 s54, s54, s47",
              "s_cmp_eq_u32 s28, s35", "s_cselect_b32 s53, 0x7ff00000, s53", f"s_mov_b32 s46, {KEEP + 16384}", f"s_cselect_b32 s46, {KEEP}, s46",
              "v_add_u32 v236, s46, v240", "v_lshl_add_u32 v237, v255, 11, v240", f"v_add_u32 v237, {KEEP}, v237"]: p(x)
    p.wait_lgkm(("W", 0))
    mf = []
    for n in range(NK):
        base = 0 if n < 14 else 64
        first = n in (0, 14)
        for c in range(8):
            for tb in range(2):
                acc = base + ((c >> 1) * 2 + tb) * 8 + (c & 1) * 4
                mf.append(f"{MF} {vr(acc)}, {vr(128 + 4 * ((n * 8 + c) % 16))}, {ar(areg(n) + 4 * tb)}, {0 if first else vr(acc)}")
    S = Sched16(mf)
    NG = NK * 8; NM = len(mf)
    for gi in range(RA, NG):
        ch, k = gi // 16, gi % 16
        for hf, x in enumerate(w_reads(gi)):
            S.add_mem(max(32 * ch - 16 + ((2 * k + hf) * 27) // 31, 0), x, ("W", gi))
    for gi in range(1, NG): S.add_first(2 * gi - 1, Wait("lgkm", ("W", gi)))
    def gB(ch): return 32 * ch + 16
    for ch in range(NC - 1):
        S.add_first(gB(ch) - 2, Ins("s_waitcnt lgkmcnt(0)"))
        S.add_first(gB(ch), Wait("vm", [("cw", ch + 1)] + (["pub"] if ch == GPUB else []) + (["ctxst"] if ch == CPUB else [])))
        S.add_first(gB(ch), "s_barrier")
        S.add_first(32 * (ch + 1) - 2, Wait("vm", ("ca", ch + 1)))
    misc = []
    for k in range(3): misc += [f"s_add_u32 s46, s35, {k + 1}", "s_and_b32 s46, s46, 3", "s_lshl_b32 s46, s46, 13", f"s_add_u32 s{61 + k}, s54, s46"]
    misc += ["s_lshl_b32 s55, s51, 9", f"s_add_u32 s55, s55, {WS_FLAG:#x}", "s_lshl_b32 s46, s35, 7", "s_add_u32 s56, s55, s46",
             "s_lshl_b32 s46, s31, 17", "s_lshl_b32 s47, s35, 15", "s_add_u32 s46, s46, s47", "s_lshl_b32 s47, s45, 8", "s_add_u32 s46, s46, s47",
             "s_lshl_b32 s47, s28, 6", "s_add_u32 s57, s46, s47", "s_lshl_b32 s46, s35, 13", "s_add_u32 s99, s99, s46"]
    mv = ["v_and_b32 v247, 3, v254", "v_lshlrev_b32 v247, 7, v247", "v_and_b32 v244, 15, v254", "v_lshlrev_b32 v244, 10, v244",
          "v_lshrrev_b32 v245, 4, v254", "v_lshl_add_u32 v238, v245, 3, v244", "v_add_u32 v239, 0x4000, v238", "v_and_b32 v206, 0x1c00, v206"]
    schedule(S, [[Op(x, 0, 70) for x in misc], [Op(x, 0, 70) for x in mv]], 0, 80)
    S.add_mem(gB(CPUB) + 1, f"buffer_store_dword v249, v248, s[20:23], s98 offen offset:4{STF}", "flag")
    LD = []
    def ld(ops, e, pace):
        for i, (pre, ins, tag) in enumerate(ops): LD.append(Op(ins, e + i * pace, NM - 1, pre=pre, tag=tag))
    ld(chunk(5), 0, 4); ld(chunk(6), 32, 4); ld(chunk(7, a=False), 64, 4); ld(chunk(8, a=False), 84, 4); ld(chunk(9, a=False), 104, 4)
    ld(chunk(10, a=False), 124, 4)
    ld([([], "buffer_load_dword v207, v206, s[20:23], s99 offen offset:4 sc1", "cpoll")], CPOLL, 1)
    S.add_first(CCHK, Wait("vm", "cpoll"))
    S.add_valu(CCHK, "v_cmp_ne_u32 vcc, 1, v207")
    S.add_last(CCHK + 1, "s_cbranch_vccnz L_cwait")
    S.add_last(CCHK + 1, "L_cok:")
    slow += spin("c", "buffer_load_dword v207, v206, s[20:23], s99 offen offset:4 sc1", "v_cmp_ne_u32 vcc, 1, v207")
    for ch in range(7, 11): ld(chunk(ch, w=False), CCHK + 2, 1)
    for ch in range(11, NC): ld(chunk(ch), max(CCHK + 2, 32 * (ch - 6)), 4 if ch > 12 else 2)
    print("tail ld", schedule(S, [LD], 0, NM - 1, base_cap=4), [o.g for o in LD][::8])
    def pub(base, kind, g0, g1, pace=0):
        ops = []
        for k8 in range(8):
            R = base + 8 * k8
            cv = [Op(f"v_cvt_pk_bf16_f32 v{R + k}, v{R + 2 * k}, v{R + 2 * k + 1}", g0, g1) for k in range(4)]
            ops += cv
            pre = [f"s_add_u32 s60, s53, {kind * 32768 + (k8 // 4) * 4096}"] if k8 % 4 == 0 else []
            ops.append(Op(f"buffer_store_dwordx4 {vr(R)}, v240, s[20:23], s60 offen offset:{(k8 % 4) * 1024} sc1", g0 + k8 * pace, g1, [cv[-1]], pre=pre, tag="pub"))
            ops.append(Op(f"ds_write_b128 v236, {vr(R)} offset:{kind * 8192 + k8 * 1024}", g0, g1, tag="own"))
        return ops
    schedule(S, [pub(0, 0, 14 * 16 + 40, gB(GPUB) - 20, 20)], 14 * 16, NM - 1, base_cap=3)
    S.add_mem(gB(GPUB) + 1, "buffer_store_dword v249, v248, s[20:23], s56 offen offset:4 sc1", "flag")
    gx = 32 * 17 + 20
    for k in range(4):
        S.add_mem(gx + 4 * k, f"buffer_load_dwordx2 v[{192 + 2 * k}:{193 + 2 * k}], v{238 + k // 2}, s[24:27], s57 offen offset:{32 * (k % 2)}", "x")
    gp = 32 * GPOLL
    S.add_mem(gp + 1, "buffer_load_dword v250, v247, s[20:23], s55 offen offset:4 sc1", "gpoll")
    gc = gp + 33
    S.add_first(gc + 1, Wait("vm", "gpoll"))
    S.add_valu(gc + 1, "v_cmp_ne_u32 vcc, 1, v250")
    S.add_last(gc + 2, "s_cbranch_vccnz L_gwait")
    S.add_last(gc + 2, "L_gok:")
    slow += spin("g", "buffer_load_dword v250, v247, s[20:23], s55 offen offset:4 sc1", "v_cmp_ne_u32 vcc, 1, v250")
    for k in range(3):
        for tb in range(2):
            S.add_mem(gc + 3 + 2 * (2 * k + tb), f"buffer_load_dwordx4 {vr(8 * k + 4 * tb)}, v240, s[20:23], s{61 + k} offen offset:{tb * 1024} sc1", "gg")
    for tb in range(2): S.add_mem(gc + 4 + 2 * tb, f"ds_read_b128 {vr(24 + 4 * tb)}, v237 offset:{tb * 1024}", "gown")
    if DIAG3:
        for k, g in enumerate([0, CCHK, CCHK + 4, 14 * 16, 30 * 16, NM - 1]): S.add_first(g, stamp(2 + k))
    print(S.report("tail")[:400])
    p.extend(S.items())
    p("s_nop 5")
    for o in pub(64, 1, 0, 0):
        for x in o.pre: p(x)
        p(o.t, o.tag)
    def unpack(dst, src, n=8):
        for k in range(n):
            p(f"v_lshlrev_b32 v{dst + 2 * k}, 16, v{src + k}")
            p(f"v_and_b32 v{dst + 2 * k + 1}, 0xffff0000, v{src + k}")
    def rnd(b, T):
        for k in range(0, 16, 2): p(f"v_cvt_pk_bf16_f32 v{T + k // 2}, v{b + k}, v{b + k + 1}")
        unpack(b, T)
    p.wait_vm("gg"); p.wait_lgkm("gown")
    unpack(32, 24)
    for k in range(3):
        unpack(48, 8 * k)
        for e in range(16): p(f"v_add_f32 v{32 + e}, v{32 + e}, v{48 + e}")
    rnd(32, 48)
    for k in range(16): p(f"v_mul_f32 v{48 + k}, {f2u(-LOG2E):#x}, v{32 + k}")
    for k in range(16): p(f"v_exp_f32 v{48 + k}, v{48 + k}")
    for k in range(16): p(f"v_add_f32 v{48 + k}, 1.0, v{48 + k}")
    for k in range(16): p(f"v_rcp_f32 v{48 + k}, v{48 + k}")
    for k in range(16): p(f"v_mul_f32 v{32 + k}, v{32 + k}, v{48 + k}")
    rnd(32, 48)
    unpack(128, 192)
    p("s_waitcnt vmcnt(0) lgkmcnt(0)")
    p("s_barrier")
    if DIAG3: p.items.append(stamp(8))
    p("buffer_store_dword v249, v248, s[20:23], s56 offen sc1")
    for tb in range(2): p(f"ds_read_b128 {vr(24 + 4 * tb)}, v237 offset:{8192 + tb * 1024}")
    for k in range(3): p(f"s_add_u32 s{61 + k}, s{61 + k}, 32768")
    p("s_mov_b32 s44, 0x40000")
    p.label("L_o_poll")
    p("buffer_load_dword v250, v247, s[20:23], s55 offen sc1")
    p("s_waitcnt vmcnt(0)")
    p("v_cmp_ne_u32 vcc, 1, v250")
    p("s_cbranch_vccz L_o_go")
    p("s_sub_u32 s44, s44, 1")
    p("s_cbranch_scc0 L_o_poll")
    p.label("L_o_go")
    if DIAG3: p.items.append(stamp(9))
    for k in range(3):
        for tb in range(2):
            p(f"buffer_load_dwordx4 {vr(8 * k + 4 * tb)}, v240, s[20:23], s{61 + k} offen offset:{tb * 1024} sc1", ("gs", k))
    p("s_waitcnt lgkmcnt(0)")
    unpack(64, 24)
    for k in range(3):
        p.wait_vm(("gs", k))
        unpack(80, 8 * k)
        for e in range(16): p(f"v_add_f32 v{64 + e}, v{64 + e}, v{80 + e}")
    rnd(64, 80)
    for k in range(16): p(f"v_mul_f32 v{64 + k}, v{64 + k}, v{32 + k}")
    rnd(64, 80)
    for k in range(16): p(f"v_add_f32 v{64 + k}, v{64 + k}, v{128 + k}")
    for k in range(0, 16, 2): p(f"v_cvt_pk_bf16_f32 v{96 + k // 2}, v{64 + k}, v{65 + k}")
    for k in range(4):
        p(f"buffer_store_dwordx2 v[{96 + 2 * k}:{97 + 2 * k}], v{238 + k // 2}, s[4:7], s57 offen offset:{32 * (k % 2)}")
    if DIAG:
        p("s_waitcnt vmcnt(0)")
        p.items.append(stamp(12)); p.items.append(stamp(13, True))
        dump_stamps(p, 0, 28, 20)
    return [i.t for i in resolve(p.items)], slow

def gen_f_kernel():
    p = Prog()
    p("s_cmp_ge_u32 s2, 256")
    p("s_cbranch_scc1 L_f_end")
    if DIAG:
        for k in range(14): p(f"s_mov_b32 s{66 + 2 * k}, 0")
        p.items.append(stamp(0, True)); p.items.append(stamp(1))
    p("s_load_dwordx4 s[36:39], s[0:1], 0")
    p("s_load_dwordx4 s[40:43], s[0:1], 24")
    p("s_load_dwordx2 s[44:45], s[0:1], 96")
    p("v_and_b32 v254, 63, v0")
    p("v_lshrrev_b32 v255, 6, v0")
    p("s_and_b32 s34, s2, 7")
    p("v_readfirstlane_b32 s28, v255")
    p("s_lshr_b32 s35, s2, 3")
    p("v_lshlrev_b32 v252, 7, v254")
    if CPF:
        p("s_getpc_b64 s[4:5]")
        p("L_pc0:")
        p(f"s_sub_u32 s4, s4, L_pc0-{KNAME}")
        p("s_subb_u32 s5, s5, 0")
        p(f"s_mov_b32 s6, L_code_end-{KNAME}")
        p("s_mov_b32 s7, 0x20000")
        p("v_lshrrev_b32 v244, 3, v254")
        p("v_lshl_or_b32 v244, v244, 27, v252")
        p("v_lshl_add_u32 v244, v255, 15, v244")
        p("s_lshl_b32 s63, s35, 10")
        p("buffer_load_dword v52, v244, s[4:7], s63 offen", "pf")
    p("v_lshlrev_b32 v240, 4, v254")
    p("v_lshrrev_b32 v244, 4, v254")
    p("v_and_b32 v245, 15, v254")
    p("v_lshlrev_b32 v245, 7, v245")
    p("v_lshl_add_u32 v253, v244, 13, v245")
    p("s_lshl_b32 s60, s35, 2")
    p("s_add_u32 s60, s60, s28")
    p("s_and_b32 s61, s34, 1")
    p("s_lshl_b32 s61, s61, 20")
    p("s_lshl_b32 s63, s60, 13")
    p("s_add_u32 s61, s61, s63")
    p("s_lshr_b32 s62, s34, 1")
    p("s_lshl_b32 s62, s62, 11")
    p("s_lshl_b32 s63, s60, 15")
    p("s_add_u32 s62, s62, s63")
    p("s_lshl_b32 s47, s2, 13")
    p("s_lshl_b32 s46, s28, 11")
    p("s_add_u32 s47, s47, s46")
    for r, v in ((10, 0x200000), (11, 0x20000), (14, 0x400000), (15, 0x20000), (26, 0x200000), (27, 0x20000)): p(f"s_mov_b32 s{r}, {v:#x}")
    p("s_waitcnt lgkmcnt(0)")
    if DIAG and not DIAG2: p.items.append(stamp(2))
    for d, sr in ((24, 36), (25, 37), (8, 38), (9, 39), (12, 40), (13, 41)): p(f"s_mov_b32 s{d}, s{sr}")
    p("buffer_load_dwordx4 v[0:3], v240, s[24:27], s47 offen", "ln")
    p("buffer_load_dwordx4 v[4:7], v240, s[24:27], s47 offen offset:1024", "ln")
    p("buffer_load_dword v246, v252, s[8:11], s61 offen" + NT, "pf")
    p("buffer_load_dword v247, v253, s[12:15], s62 offen" + NT, "pf")
    srd(p, 16, 42, 0x400000)
    srd(p, 20, 44, 0x10000000)
    p("s_load_dwordx2 s[36:37], s[0:1], 16")
    p("s_load_dwordx2 s[38:39], s[0:1], 40")
    p("s_load_dwordx4 s[40:43], s[0:1], 56")
    p("s_load_dwordx2 s[96:97], s[0:1], 72")
    p("s_load_dwordx2 s[98:99], s[0:1], 88")
    p("v_lshl_add_u32 v244, v255, 6, v254")
    p("v_cmp_eq_u32 vcc, 0, v244")
    p("v_mov_b32 v248, 0x7ffff000")
    p("v_mov_b32 v249, 1")
    p("v_mov_b32 v250, 0")
    p("v_cndmask_b32_e64 v248, v248, 0, vcc")
    p("s_and_b32 s47, s34, 1")
    p("s_lshl_b32 s47, s47, 2")
    p("s_and_b32 s46, s35, 3")
    p("s_add_u32 s47, s47, s46")
    p("s_lshr_b32 s3, s34, 1")
    p("s_lshl_b32 s3, s3, 3")
    p("s_lshr_b32 s46, s35, 2")
    p("s_add_u32 s3, s3, s46")
    p("s_lshl_b32 s45, s3, 3")
    p("s_add_u32 s45, s45, s47")
    p("s_lshl_b32 s46, s47, 2")
    p("s_add_u32 s46, s46, s28")
    p("s_lshl_b32 s31, s46, 16")
    p("s_lshl_b32 s94, s46, 15")
    p("s_lshl_b32 s47, s3, 20")
    p("s_add_u32 s94, s94, s47")
    p(f"s_add_u32 s94, s94, {WS_KV:#x}")
    p("s_lshl_b32 s95, s3, 8")
    p("s_lshl_b32 s3, s45, 7")
    p(f"s_add_u32 s3, s3, {WS_FLAG + 0x10000:#x}")
    p("s_lshl_b32 s29, s34, 2")
    p("s_lshr_b32 s46, s35, 3")
    p("s_add_u32 s29, s29, s46")
    p("s_and_b32 s30, s35, 7")
    p(f"s_mul_i32 s48, s28, 24576")
    p("s_lshl_b32 s49, s28, 12")
    p("s_lshl_b32 s50, s28, 6")
    p("s_add_u32 s50, s50, s95")
    p("s_and_b32 s45, s28, 1")
    p("s_lshr_b32 s52, s28, 1")
    p("s_lshl_b32 s53, s45, 13")
    p("s_lshl_b32 s54, s52, 12")
    p("s_add_u32 s53, s53, s54")
    p("s_lshl_b32 s54, s45, 6")
    p("s_lshl_b32 s55, s52, 19")
    p("s_add_u32 s55, s54, s55")
    p("s_add_u32 s54, s55, s95")
    p("s_lshl_b32 s56, s29, 8")
    p("s_add_u32 s65, s55, s56")
    p("s_sub_u32 s56, 15, s30")
    p("s_lshl_b32 s32, s56, 3")
    p("s_lshl_b32 s63, s28, 1")
    p("s_add_u32 s32, s32, s63")
    p("s_lshl_b32 s33, s30, 3")
    p("s_add_u32 s33, s33, s63")
    p("s_lshl_b32 s46, s32, 14")
    p("s_lshl_b32 s47, s33, 14")
    p(f"s_mul_i32 s32, s32, {ACT_ROW}")
    p(f"s_add_u32 s32, s32, {WS_ACT:#x}")
    p(f"s_mul_i32 s33, s33, {ACT_ROW}")
    p(f"s_add_u32 s33, s33, {WS_ACT:#x}")
    p("s_add_u32 s55, s29, 32")
    p("s_cmp_lt_u32 s29, 24")
    p("s_cselect_b32 s55, s55, s29")
    p(f"s_mul_i32 s64, s52, {64 * 3584}")
    p("s_lshl_b32 s63, s29, 6")
    p("s_add_u32 s35, s64, s63")
    p("s_lshl_b32 s63, s55, 6")
    p("s_add_u32 s64, s64, s63")
    p("s_lshl_b32 s51, s29, 20")
    p(f"s_add_u32 s51, s51, {WS_KV:#x}")
    p("s_lshl_b32 s56, s29, 10")
    p(f"s_add_u32 s56, s56, {128 * 1024}")
    p("s_add_u32 s100, s56, s32")
    p("s_add_u32 s101, s56, s33")
    p("s_lshl_b32 s61, s34, 8")
    p("s_lshr_b32 s63, s60, 1")
    p(f"s_mul_i32 s63, s63, {8 * 3584}")
    p("s_add_u32 s61, s61, s63")
    p("s_lshl_b32 s52, s34, 10")
    p("s_lshl_b32 s63, s60, 15")
    p("s_add_u32 s52, s52, s63")
    p("v_lshrrev_b32 v241, 3, v254")
    p("v_lshlrev_b32 v241, 13, v241")
    p("v_and_b32 v242, 7, v254")
    for n in range(8):
        p(f"v_xor_b32 v243, {n}, v242")
        p(f"v_lshl_add_u32 v{224 + n}, v243, 4, v241")
    p("v_and_b32 v241, 7, v254")
    p("v_bfe_u32 v242, v254, 3, 1")
    p("v_lshlrev_b32 v242, 7, v242")
    p("v_lshl_add_u32 v242, v241, 10, v242")
    p("v_add_u32 v242, s48, v242")
    p("v_lshrrev_b32 v243, 4, v254")
    for tt in range(2):
        p(f"v_add_u32 v244, {4 * tt}, v243")
        p("v_xor_b32 v244, v244, v241")
        p(f"v_lshl_add_u32 v{232 + tt}, v244, 4, v242")
    p("v_lshlrev_b32 v241, 9, v243")
    p("v_bfe_u32 v242, v254, 2, 2")
    p("v_lshl_add_u32 v241, v242, 6, v241")
    p("v_and_b32 v242, 3, v254")
    p("v_lshl_add_u32 v241, v242, 3, v241")
    p("v_and_b32 v242, 1, v243")
    p("v_lshl_add_u32 v234, v242, 5, v241")
    p("v_xor_b32 v237, 32, v234")
    for cf in range(2):
        p(f"v_add_u32 v{235 + 3 * cf}, 0x10000, v{234 + 3 * cf}")
        p(f"v_add_u32 v{236 + 3 * cf}, 0x20000, v{234 + 3 * cf}")
    p("v_lshrrev_b32 v244, 5, v254")
    p("v_lshlrev_b32 v251, 30, v244")
    p("v_lshlrev_b32 v244, 1, v244")
    p("v_and_b32 v245, 3, v254")
    p("v_xor_b32 v245, v245, v244")
    p("v_lshlrev_b32 v245, 4, v245")
    p("v_lshrrev_b32 v244, 2, v254")
    p("v_lshl_add_u32 v241, v244, 13, v245")
    p("v_mul_u32_u24 v244, 3584, v244")
    p("v_add_u32 v242, v244, v245")
    p("v_bfe_u32 v245, v254, 2, 3")
    p("v_mul_u32_u24 v245, 3584, v245")
    p("v_and_b32 v244, 1, v254")
    p("v_lshl_add_u32 v245, v244, 7, v245")
    p("v_bfe_u32 v244, v254, 1, 1")
    p("v_lshl_add_u32 v245, v244, 11, v245")
    p("v_or_b32 v245, v245, v251")
    p("v_and_b32 v243, 15, v254")
    p("v_lshlrev_b32 v243, 2, v243")
    p("v_lshlrev_b32 v48, 7, v254")
    p("v_lshl_add_u32 v48, v255, 5, v48")
    p("v_lshl_add_u32 v49, v255, 11, v240")
    p("v_lshrrev_b32 v50, 3, v254")
    p("v_lshlrev_b32 v50, 8, v50")
    p("v_and_b32 v51, 7, v254")
    p("v_lshl_add_u32 v50, v51, 4, v50")
    p("s_waitcnt lgkmcnt(0)")
    p("s_cmp_eq_u32 s45, 0")
    p("s_cselect_b32 s40, s40, s42")
    p("s_cselect_b32 s41, s41, s43")
    p("s_mov_b32 s24, s98")
    p("s_mov_b32 s25, s99")
    p("s_mov_b32 s26, 256")
    p("s_lshl_b32 s56, s55, 10")
    p(f"s_add_u32 s56, s56, {128 * 1024}")
    p("s_add_u32 s98, s56, s32")
    p("s_add_u32 s99, s56, s33")
    p("s_lshl_b32 s63, s2, 7")
    p(f"s_add_u32 s63, s63, {WS_FLAG:#x}")
    p.wait_vm("ln")
    if DIAG and not DIAG2: p.items.append(stamp(3))
    emit_ln(p)
    p("ds_write_b128 v48, v[40:43]")
    p("ds_write_b128 v48, v[44:47] offset:16")
    p("s_lshr_b32 s58, s2, 1")
    p("s_lshl_b32 s58, s58, 14")
    p("s_and_b32 s59, s2, 1")
    p("s_lshl_b32 s59, s59, 7")
    p("s_add_u32 s58, s58, s59")
    p("s_add_u32 s58, s58, s49")
    if WS_XN: p(f"s_add_u32 s58, s58, {WS_XN:#x}")
    p("s_waitcnt lgkmcnt(0)")
    p("s_barrier")
    p("ds_read_b128 v[40:43], v49")
    p("ds_read_b128 v[44:47], v49 offset:1024")
    p("s_lshr_b32 s59, s2, 4")
    p("s_lshl_b32 s59, s59, 2")
    p("s_waitcnt lgkmcnt(0)")
    p(f"buffer_store_dwordx4 v[40:43], v50, s[20:23], s58 offen{STF}", "xnst")
    p(f"buffer_store_dwordx4 v[44:47], v50, s[20:23], s58 offen offset:2048{STF}", "xnst")
    p(f"buffer_store_dword v250, v248, s[20:23], s63 offen{STF}", "zf")
    p(f"buffer_store_dword v250, v248, s[20:23], s63 offen offset:4{STF}", "zf")
    p(f"buffer_store_dword v250, v248, s[20:23], s3 offen{STF}", "zf")
    p(f"s_add_u32 s63, s63, 0x20000")
    p(f"buffer_store_dword v250, v248, s[20:23], s63 offen{STF}", "zf")
    p(f"buffer_store_dword v250, v248, s[20:23], s63 offen offset:4{STF}", "zf")
    p("s_barrier")

    BLK = [6, 7, 8, 9, 6, 7, 8, 9, 0, 1, 2, 3, 4, 5, 6, 7, 8, 9, 0, 1, 2, 3, 6, 7, 8, 9, 4, 5, 6, 7, 8, 9]
    def dma_A(s):
        ops = []
        for n in range(8):
            pre = []
            if n % 4 == 0:
                pre = [f"s_add_u32 m0, s48, {(s % 3) * 8192 + (n // 4) * 4096}", f"s_add_u32 s56, s31, {s * 128 + (n // 4) * 4096}"]
            ops.append((pre, f"buffer_load_dwordx4 v{224 + n}, s[8:11], s56 offen offset:{(n % 4) * 1024} lds", ("A", s)))
        return ops
    def dma_W(n):
        ops = []
        kq = n % 4
        for q in range(4):
            m0 = "s53"
            if n < 8:
                pre = [f"s_add_u32 s57, s54, {(kq * 128 + q * 16) * 8192 + (n // 4) * 128 - q * 1024}"]
                ins = f"buffer_load_dwordx4 v241, s[12:15], s57 offen offset:{q * 1024} lds"
            elif n < 16:
                pre = [f"s_add_u32 s57, s50, {((n - 8) * 64 + q * 16) * 8192 - q * 1024}"]; m0 = "s49"
                ins = f"buffer_load_dwordx4 v241, s[16:19], s57 offen offset:{q * 1024} lds"
            elif n < 24:
                pre = [f"s_add_u32 s57, s{35 if n < 20 else 64}, {(kq * 128 + q * 16) * 3584 - q * 1024}"]
                ins = f"buffer_load_dwordx4 v242, s[12:15], s57 offen offset:{q * 1024} lds"
            else:
                pre = [f"s_add_u32 s57, s65, {(kq * 128 + q * 16) * 8192 - q * 1024 + (128 if n >= 28 else 0)}"]
                ins = f"buffer_load_dwordx4 v241, s[8:11], s57 offen offset:{q * 1024} lds"
            if q == 0: pre = [f"s_add_u32 m0, {m0}, {BLK[n] * 16384}"] + pre
            ops.append((pre, ins, ("L", n)))
        return ops
    def kv_half(tile, part):
        ops = []
        for q in range(4):
            pre = []
            if q == 0: pre = [f"s_add_u32 m0, s49, {tile * 32768 + part * 16384}", f"s_add_u32 s57, s49, {tile * 32768 + part * 16384}"]
            ops.append((pre, f"buffer_load_dwordx4 v240, s[16:19], s57 offen offset:{q * 1024} sc1 lds", ("kv", tile, part)))
        return ops
    def now(ops):
        for pre, ins, tag in ops:
            for x in pre: p(x)
            p(ins, tag)
    now(dma_W(0) + dma_A(0) + dma_A(1) + dma_W(1) + dma_A(2))

    groups = []
    def accT(base, c, cf, rb): return base + (c * 4 + rb) * 8 + cf * 4
    def accV(base, c, cf, rb): return base + ((c * 2 + cf) * 2 + (rb >> 1)) * 8 + (rb & 1) * 4
    def add_double(seg0, bases):
        for s in range(8):
            for tt in range(2):
                for c in range(4):
                    for cf in range(2):
                        groups.append(dict(off=BLK[seg0 + s] * 16384 + c * 4096 + tt * 2048, cf=cf, t=2 * s + tt,
                                           acc=[accV(bases[c >> 1], c & 1, cf, rb) for rb in range(4)], vt=True))
    def add_single(seg0, base):
        for q in range(4):
            for tq in range(4):
                for c in range(2):
                    for cf in range(2):
                        groups.append(dict(off=BLK[seg0 + q] * 16384 + c * 8192 + tq * 2048, cf=cf, t=4 * q + tq,
                                           acc=[accT(base, c, cf, rb) for rb in range(4)], vt=False))
    add_single(0, 0); add_single(4, 64); add_double(8, [128, 0])
    add_single(16, 64); add_single(20, 128); add_single(24, 0); add_single(28, 64)
    NG = len(groups)
    mf = []
    for n, G in enumerate(groups):
        w = vr(192 + 4 * (n % 8))
        for rb in range(4):
            a = ar((rb * 16 + G["t"]) * 4)
            d = vr(G["acc"][rb])
            c = 0 if G["t"] == 0 else d
            mf.append(f"{MF} {d}, {a}, {w}, {c}" if G["vt"] else f"{MF} {d}, {w}, {a}, {c}")
    S = Sched16(mf)
    def w_reads(n):
        G = groups[n]
        out = []
        for hf in range(2):
            off = G["off"] + hf * 256
            d = 192 + 4 * (n % 8) + 2 * hf
            out.append(f"ds_read_b64_tr_b16 v[{d}:{d + 1}], v{234 + 3 * G['cf'] + (off >> 16)} offset:{off & 0xffff}")
        return out
    def a_reads(s):
        return [f"ds_read_b128 {ar((rb * 16 + 2 * s + tt) * 4)}, v{232 + tt} offset:{(s % 3) * 8192 + rb * 256}" for tt in range(2) for rb in range(4)]
    RA = 5
    if DIAG and not DIAG2: p.items.append(stamp(4))
    p.wait_vm(("A", 0))
    p("s_barrier")
    if DIAG and not DIAG2: p.items.append(stamp(5))
    for x in a_reads(0): p(x, ("Ar", 0))
    for n in range(RA):
        for x in w_reads(n): p(x, ("W", n))
    p.wait_lgkm(("W", 0))
    for n in range(RA, NG):
        k = n % 16
        if k <= 13: g = 4 * (n - RA)
        elif k == 14: g = 4 * (n - 6) + 2
        else: g = 4 * (n - 6)
        for i, x in enumerate(w_reads(n)): S.add_mem(g + i, x, ("W", n))
    for n in range(1, NG): S.add_first(4 * n - 1, Wait("lgkm", ("W", n)))
    for s in range(1, 8):
        g = 32 * s - 22
        S.add_first(g, Wait("vm", ("A", s)))
        for i, x in enumerate(a_reads(s)): S.add_mem(g + [0, 0, 1, 1, 4, 4, 5, 5][i], x, ("Ar", s))
        S.add_first(32 * s - 10, Wait("lgkm", ("Ar", s)))
    def gB(n): return 64 * n + 4 * 11
    for n in range(31):
        tags = [("L", n + 1)]
        if n == 0: tags += ["xnst", "zf"]
        if n == KVPUB: tags.append("kvst")
        S.add_first(gB(n) - 2, Ins("s_waitcnt lgkmcnt(0)"))
        S.add_first(gB(n), Wait("vm", tags))
        S.add_first(gB(n), "s_barrier")
    def win(n): return gB(n - 1) + 1
    LD = []
    def ld(ops, e, pace=1):
        for i, (pre, ins, tag) in enumerate(ops): LD.append(Op(ins, e + i * pace, 2040, pre=pre, tag=tag))
    one = lambda ins, tag, pre=(): [([], x, None) for x in pre] + [([], ins, tag)]
    ld(dma_A(3), 0); ld(dma_W(2), 8); ld(dma_A(4), 22)
    ld(dma_A(5), 54); ld(dma_W(3), 62); ld(dma_A(6), 86); ld(dma_A(7), 118); ld(dma_W(4), 126); ld(dma_W(5), 140, 4)
    ld(one("buffer_atomic_add v249, v248, s[24:27], s59 offen offset:128", "pub"), win(3))
    ld(one("buffer_load_dword v246, v253, s[16:19], s62 offen" + NTV, "pf"), win(3))
    ld(dma_W(6), win(3), 2); ld(dma_W(7), VW0 - 24, 4)
    for n in range(8, 13): ld(dma_W(n), VW0 + (n - 8) * 24, 5)
    ld(one("buffer_load_dword v250, v245, s[12:15], s61 offen", "pf", ["s_mov_b32 s12, s40", "s_mov_b32 s13, s41", f"s_mov_b32 s14, {512 * 3584}"]), win(8))
    print("ld1", schedule(S, [LD], 0, 511, base_cap=3), "last", LD[-1].g, [o.g for o in LD if o.tag in ("pf", "poll")])
    gc = XNC
    S.add_mem(gc - 50, "buffer_load_dword v244, v243, s[24:27], 0 offen offset:128 sc1", "poll")
    S.add_first(gc, Wait("vm", "poll"))
    S.add_valu(gc, "v_cmp_gt_u32 vcc, 16, v244")
    S.add_valu(gc, "v_add_u32 v247, 0x4000, v240")
    S.add_last(gc + 2, "s_cbranch_vccnz L_xnwait")
    S.add_last(gc + 2, "L_xnok:")
    LD = []
    for n in range(13, 24): ld(dma_W(n), max(win(9) + (n - 13) * 44, win({22: 15, 23: 16}.get(n, 9))), 10)
    S.add_valu(64 * 12, "v_and_b32 v253, 0xfffffbff, v253")
    S.add_valu(64 * 12 + 1, "v_bfe_u32 v246, v254, 3, 1")
    S.add_valu(64 * 12 + 2, "v_lshl_or_b32 v253, v246, 30, v253")
    ld(one("buffer_load_dword v244, v253, s[8:11], s52 offen", "pf", ["s_mov_b32 s8, s36", "s_mov_b32 s9, s37", "s_mov_b32 s10, 0x400000"]), win(17))
    for n in range(24, 32): ld(dma_W(n), win(n - 5), WP)
    S.add_valu(64 * 26, "v_and_b32 v243, 0x380, v252")
    for x in ["s_add_u32 s16, s20, s51", "s_addc_u32 s17, s21, 0"]: S.add_last(64 * 26, x)
    for x in ["s_sub_u32 s18, 16, s30", "s_lshl_b32 s18, s18, 16"]: S.add_last(64 * 26 + 1, x)
    ld(one("buffer_load_dword v244, v243, s[20:23], s59 offen sc1", "poll2", ["s_lshl_b32 s59, s29, 10", f"s_add_u32 s59, s59, {WS_FLAG + 0x10000:#x}"]), 64 * 27)
    gc = win(28) + 1
    ld(kv_half(0, 0) + kv_half(0, 1) + kv_half(1, 0) + kv_half(1, 1) + kv_half(2, 0) + kv_half(2, 1), gc + 4, 4)
    ld(kv_half(3, 0), win(29), 4)
    S.add_first(gc, Wait("vm", "poll2"))
    S.add_valu(gc, "v_cmp_ne_u32 vcc, 1, v244")
    S.add_last(gc + 2, "s_cbranch_vccnz L_kvwait")
    S.add_last(gc + 2, "L_kvok:")
    print("ld2", schedule(S, [LD], 512, 2046, base_cap=3), "last", LD[-1].g)
    XL = []
    for t in range(16):
        for rb in range(4):
            pre = []
            if t % 4 == 0 and rb % 2 == 0: pre = [f"s_add_u32 s{62 + rb // 2}, s{46 + rb // 2}, {WS_XN + t * 1024}"]
            vo = 240 if rb % 2 == 0 else 247
            XL.append(Op(f"buffer_load_dwordx4 {ar((rb * 16 + t) * 4)}, v{vo}, s[20:23], s{62 + rb // 2} offen offset:{(t % 4) * 1024} sc1",
                         max(512 + 32 * t + 32 + (6 * rb if t < 15 else 0), XNC + 4 + 5 * (4 * t + rb)), 1024 + 16 * t - 60 if t < 10 else 512 + 32 * t + 64, pre=pre, tag=("X", t)))
    for t in range(16): S.add_first(1024 + 16 * t - 2, Wait("vm", ("X", t)))
    def kv_epi(kind, u, base, g0, g1, st0):
        ops = []
        for k8 in range(8):
            R = base + 8 * k8
            if kind == "K":
                c, rb = k8 // 4, k8 % 4
                off = rb * 4096 + (2 * u + c) * 1024
                for r in range(8): ops.append(Op(f"v_mul_f32 v{R + r}, {f2u(KSCALE):#x}, v{R + r}", g0, g1))
            else:
                db, s = 4 * u + k8 // 2, k8 % 2
                off = 16384 + s * 8192 + db * 1024
            cv = [Op(f"v_cvt_pk_bf16_f32 v{R + k}, v{R + 2 * k}, v{R + 2 * k + 1}", g0, g1) for k in range(4)]
            ops += cv
            ops.append(Op(f"buffer_store_dwordx4 {vr(R)}, v240, s[20:23], s95 offen offset:{off & 4095}{STF}", max(g0, st0[0] + int(k8 * st0[1])), g1, [cv[-1]],
                          pre=[f"s_add_u32 s95, s94, {off & ~4095}"], tag="kvst"))
        return ops
    C0 = -2.0 * math.sqrt(2.0 / math.pi) * LOG2E
    C1 = C0 * 0.044715
    S.add_valu(64 * 17, f"v_mov_b32 v232, {f2u(C0):#x}")
    S.add_valu(64 * 17 + 1, f"v_mov_b32 v233, {f2u(C1):#x}")
    S.add_valu(64 * 17 + 2, f"v_add_u32 v246, {ACT_ROW}, v240")
    def gu_epi(base, psg, g0, g1, gst):
        st = [[], []]; sto = []
        for rb in range(4):
            G = base + rb * 8; U = base + 32 + rb * 8
            L = st[rb & 1]
            for r in range(8):
                t = 224 + (r % 4) + 4 * (rb & 1)
                o4 = Op(f"v_exp_f32 v{t}, v{t}", g0, g1)
                o7 = Op(f"v_rcp_f32 v{t}, v{t}", g0, g1)
                L += [Op(f"v_mul_f32 v{t}, v{G + r}, v{G + r}", g0, g1), Op(f"v_fma_f32 v{t}, v{t}, v233, v232", g0, g1),
                      Op(f"v_mul_f32 v{t}, v{t}, v{G + r}", g0, g1), o4, Op(f"v_mul_f32 v{G + r}, v{G + r}, v{U + r}", g0, g1),
                      Op(f"v_add_f32 v{t}, 1.0, v{t}", g0, g1), o7, Op(f"v_mul_f32 v{G + r}, v{G + r}, v{t}", g0, g1, [o7])]
            cv = [Op(f"v_cvt_pk_bf16_f32 v{G + k}, v{G + 2 * k}, v{G + 2 * k + 1}", g0, g1 - 2) for k in range(4)]
            L += cv
            sto.append(Op(f"buffer_store_dwordx4 {vr(G)}, v{240 if rb % 2 == 0 else 246}, s[20:23], s{psg + rb // 2} offen{STF}", gst + 30 * rb, g1, [cv[-1]], tag="hst"))
        return st, sto
    def q_epi(base, u, g0, g1, gmove):
        cvs = []; mv = []
        for c in range(2):
            for qb in range(4):
                R = base + (c * 4 + qb) * 8
                for k in range(4):
                    o = Op(f"v_cvt_pk_bf16_f32 v{R + k}, v{R + 2 * k}, v{R + 2 * k + 1}", g0, g1)
                    cvs.append(o)
                    mv.append(Op(f"v_accvgpr_write_b32 a{Qreg(qb, 2 * u + c) + k}, v{R + k}", gmove, g1, [o]))
        return cvs, mv
    PH = [256 * k for k in range(9)]
    PE = 2048
    kvs = kv_epi("K", 0, 0, PH[1] + 6, PH[2] - 3, (PH[1] + 16, STP)) + kv_epi("K", 1, 64, PH[2] + 6, PH[4] - 3, (PH[2] + 16, STPK1)) + \
          kv_epi("V", 0, 128, PH[4] + 6, PH[5] - 3, (PH[4] + 12, STP)) + kv_epi("V", 1, 0, PH[4] + 6, PH[6] - 3, (PH[4] + 12 + 8 * STP, STP))
    print("kv epi", schedule(S, [XL, kvs], PH[1], PH[6]), "last store", kvs[-1].g, "pub at", gB(KVPUB))
    assert kvs[-1].g < gB(KVPUB)
    st0, so0 = gu_epi(64, 100, PH[5] + 6, PH[7] - 3, PH[6])
    st1, so1 = gu_epi(128, 98, PH[6] + 6, PE - 2, PH[6] + 130)
    q0c, q0m = q_epi(0, 0, PH[7] + 6, PE - 2, PH[7] + 130)
    print("gu epi", schedule(S, [st0[0] + st1[0], st0[1] + st1[1], so0 + so1, q0c, q0m], PH[5], PE - 1))
    S.add_mem(gB(KVPUB) + 2, f"buffer_store_dword v249, v248, s[20:23], s3 offen{STF}", "pub")
    if DIAG and not DIAG2:
        S.add_first(512, stamp(6)); S.add_first(1024, stamp(7)); S.add_first(PE - 1, stamp(8))
    if DIAG2:
        for k, g in enumerate(DIAG2): S.add_first(g, stamp(2 + k))
    print(S.report("gemm")[:600])
    its = S.items()
    DROP = os.environ.get("DROP", "").split(",")
    def keep(i):
        if isinstance(i, Ins):
            tg = i.tag[0] if isinstance(i.tag, tuple) else i.tag
            if tg in DROP and tg: return False
        if isinstance(i, Wait):
            tags = i.tag if isinstance(i.tag, list) else [i.tag]
            tags = [t for t in tags if (t[0] if isinstance(t, tuple) else t) not in DROP]
            if not tags: return False
            i.tag = tags
        return True
    p.extend([i for i in its if keep(i)])
    p("v_and_b32 v252, 0xfff, v252")
    p("v_or_b32 v252, v252, v251")
    p("s_mov_b32 s4, s38")
    p("s_mov_b32 s5, s39")
    p("s_mov_b32 s6, 0x400000")
    p("s_mov_b32 s7, 0x20000")
    p("s_lshl_b32 s59, s2, 2")
    p("s_add_u32 s59, s59, s28")
    p("s_lshl_b32 s50, s59, 12")
    p("buffer_load_dword v250, v252, s[4:7], s50 offen", "pf")
    p("s_mov_b32 s4, s96")
    p("s_mov_b32 s5, s97")
    p(f"s_mov_b32 s6, {1792 * 1024}")
    p("buffer_load_dword v251, v252, s[4:7], s50 offen", "pf")

    p(f"v_mov_b32 v{VCUR}, v240")
    p(f"v_add_u32 v{VPREV}, 0x10000, v240")
    p("v_and_b32 v241, 15, v254")
    p("v_lshl_add_u32 v241, v255, 5, v241")
    p("v_lshrrev_b32 v242, 4, v254")
    p("v_lshlrev_b32 v242, 2, v242")
    p("v_sub_u32 v241, v241, v242")
    p("v_cvt_f32_i32 v241, v241")
    p("v_add_f32 v241, 0.5, v241")
    p(f"v_mul_f32 v{VTM}, {f2u(BIG):#x}, v241")
    p(f"s_mov_b32 s{S_THR}, {f2u(THR):#x}")
    p("s_lshl_b32 s99, s30, 7")
    p(f"s_add_u32 s99, s99, {WS_FLAG + 0x20000:#x}")
    p("s_lshl_b32 s98, s29, 10")
    p("s_add_u32 s98, s98, s99")
    p("v_and_b32 v206, 31, v254")
    p("v_lshlrev_b32 v206, 10, v206")
    p("s_mov_b32 s52, s49")
    p(f"s_add_u32 s53, s49, {3 * 32768 + 16384}")
    p(f"s_add_u32 s54, s49, {4 * 32768}")
    p(f"s_add_u32 s55, s49, {3 * 32768 + 16384}")
    p.wait_vm(("kv", 1, 0))
    p("s_barrier")
    order = [kb * 4 + t for t in range(4) for kb in range(4)]
    for f in order: p(f"ds_read_b128 {ar(Fbuf(f))}, v{VCUR} offset:{f * 1024}", ("K0", f))
    for k in range(4): p(f"v_mov_b32 v{ONES + k}, 0x3f803f80")
    p(f"s_mov_b32 s26, {f2u(-2.0 ** 120):#x}")
    p(f"s_mov_b32 s27, {f2u(2.0 ** 120):#x}")
    p("s_cmp_eq_u32 s30, 0")
    p("s_cselect_b32 s60, s26, s27")
    p(f"v_max_f32 v{VTMASK}, s60, v{VTM}")
    p.wait_lgkm(("K0", 0))
    mf = []
    for f in order:
        kb, t = f // 4, f % 4
        for qb in range(4):
            d = Sreg(0, qb, kb)
            mf.append(f"{MF} {vr(d)}, {ar(Fbuf(f))}, {ar(Qreg(qb, t))}, {0 if t == 0 else vr(d)}")
    S = Sched16(mf)
    for i, f in enumerate(order[1:]): S.add_first(4 * i + 3, Wait("lgkm", ("K0", f)))
    q1c, q1m = q_epi(64, 1, 0, 29, 0)
    for o in q1c[16:] + q1m[16:]: o.d = 45
    schedule(S, [q1c, q1m], 0, 63)
    p.extend(S.items())
    p("s_barrier")
    p("s_mov_b32 m0, s52")
    for f, ins in enumerate(tail_reads(VCUR, 32768)): p(ins)
    for qq_ in range(4): p(f"buffer_load_dwordx4 v240, s[16:19], s54 offen offset:{qq_ * 1024} sc1 lds", "kv")
    p("s_mov_b32 m0, s53")
    for qb in (2, 3):
        for kb in range(4):
            b = Sreg(0, qb, kb)
            for r in range(4):
                kk = 16 * kb + r - 16 * (qb & 1)
                p(f"v_subrev_f32 v{TMP[r % 2]}, {f2u(kk * BIG):#x}, v{VTMASK}")
                p(f"v_min_f32 v{b + r}, v{b + r}, v{TMP[r % 2]}")
    for qb in range(4):
        rowmax(p, 0, qb)
        for r in range(4): p(f"v_sub_f32 v{NEGM(qb) + r}, 0, v{TMP[0]}")
        for r in range(16): p(f"v_sub_f32 v{Sreg(0, qb, 0) + r}, v{Sreg(0, qb, 0) + r}, v{TMP[0]}")
    p("s_waitcnt lgkmcnt(0)")
    pro = [i.t for i in resolve(p.items)]

    stubs = []
    def check(site, par, dual):
        stubs.append((site, par, dual))
        return [f"s_cbranch_vccnz L_stub_{site}", f"L_ret_{site}:"]
    def it_odd(name, tq, tp, masked):
        return gen_iter(name, tq, tp, 0, masked, 0, VCUR, 0, VPREV, 49152, VCUR, 32768, end_ops=check(name, 0, tq == "D"))
    def it_even(name, tq, tp, masked, extra_end=(), first_pv=False):
        return gen_iter(name, tq, tp, 1, masked, 1, VCUR, 32768, VCUR, 16384, VPREV, 0, first_pv=first_pv,
                        end_ops=check(name, 1, tq == "D") + list(extra_end[2:]), swap=True, mid_ops=extra_end[:2], vmn=10 if first_pv else 16)
    seg = {}
    seg["P"] = pro + it_even("it0", "D", "D", True, first_pv=True)
    seg["UDD"] = it_odd("uddA", "D", "D", False) + it_even("uddB", "D", "D", False, ["s_sub_u32 s24, s24, 1", "s_cmp_lg_u32 s24, 0", "s_cbranch_scc1 L_udd"])
    seg["UDDm"] = it_odd("uddmA", "D", "D", True) + it_even("uddmB", "D", "D", True)
    seg["UDSm"] = it_odd("udsA", "S", "D", True) + it_even("udsB", "S", "S", True)
    seg["USS"] = it_odd("ussA", "S", "S", False) + it_even("ussB", "S", "S", False, ["s_sub_u32 s24, s24, 1", "s_cmp_lg_u32 s24, 0", "s_cbranch_scc1 L_uss"])
    seg["USSm"] = it_odd("ussmA", "S", "S", True) + it_even("ussmB", "S", "S", True)
    seg["E"], tail_slow = gen_tail()

    out = list(seg["P"])
    if DIAG and not DIAG2: out.append(stamp(9).t)
    out += [f"buffer_store_dword v249, v248, s[20:23], s98 offen{STF}"]
    out += ["s_cmp_eq_u32 s30, 0", "s_cbranch_scc1 L_uds", "s_sub_u32 s24, s30, 1", "s_cmp_eq_u32 s24, 0", "s_cbranch_scc1 L_uddm"]
    out += [".p2align 3", "L_udd:"] + seg["UDD"]
    out += ["L_uddm:", f"v_mov_b32 v{VTMASK}, v{VTM}"] + seg["UDDm"]
    out += ["L_uds:", "buffer_load_dword v207, v206, s[20:23], s99 offen sc1", "s_cmp_eq_u32 s30, 7", "s_cselect_b32 s60, s26, s27", f"v_max_f32 v{VTMASK}, s60, v{VTM}"] + seg["UDSm"]
    out += ["s_cmp_eq_u32 s30, 7", "s_cbranch_scc1 L_fin", "s_lshl_b32 s24, s30, 1", "s_sub_u32 s24, 13, s24"]
    out += [".p2align 3", "L_uss:"] + seg["USS"]
    out += ["buffer_load_dword v207, v206, s[20:23], s99 offen sc1", f"v_mov_b32 v{VTMASK}, v{VTM}"] + seg["USSm"]
    out += ["L_fin:"] + seg["E"]
    out += ["L_f_end:", "s_endpgm"]
    out += tail_slow
    out += ["L_xnwait:", "s_mov_b32 s44, 0x40000", "L_xnspin:", "s_sub_u32 s44, s44, 1", "s_cbranch_scc1 L_xnok", "s_sleep 2",
            "buffer_load_dword v244, v243, s[24:27], 0 offen offset:128 sc1", "s_waitcnt vmcnt(0)",
            "v_cmp_gt_u32 vcc, 16, v244", "s_cbranch_vccnz L_xnspin", "s_branch L_xnok"]
    out += ["L_kvwait:", "s_mov_b32 s44, 0x40000", "L_kvspin:", "s_sub_u32 s44, s44, 1", "s_cbranch_scc1 L_kvok", "s_sleep 2",
            "buffer_load_dword v244, v243, s[20:23], s59 offen sc1", "s_waitcnt vmcnt(0)",
            "v_cmp_ne_u32 vcc, 1, v244", "s_cbranch_vccnz L_kvspin", "s_branch L_kvok"]
    for site, par, dual in stubs:
        out += [f"L_stub_{site}:", f"s_call_b64 s[62:63], L_rare_{par}{'d' if dual else 's'}", f"s_branch L_ret_{site}"]
    for par in range(2):
        for dual in (True, False):
            out += [f"L_rare_{par}{'d' if dual else 's'}:"] + gen_rare(par, [0, 1, 2, 3] if dual else [0, 1])
    for path in (["P", "UDD", "UDD", "UDDm", "UDSm", "USS", "USS", "USSm", "E"], ["UDDm", "UDSm", "E"]):
        tx = []
        for k in path: tx += seg[k]
        for e in lint(tx, "f")[:40]: print(e)
    return out

KVPUB = int(os.environ.get("KVPUB", "24"))
STP = float(os.environ.get("STP", "29"))
STPK1 = float(os.environ.get("STPK1", "50"))
VW0 = int(os.environ.get("VW0", "350"))
WP = int(os.environ.get("WP", "14"))
XNC = int(os.environ.get("XNC", "640"))
CPF = int(os.environ.get("CPF", "1"))
if __name__ == "__main__":
    print(len(gen_f_kernel()))
```

```python
from asmlib import *
from sched16 import *
import math, os, re
MF = "v_mfma_f32_16x16x32_bf16"
KNAME = "recurrent_scan__compressed_kv_cla__glu_gated_geglu__prompt_kernel"
WSB = int(os.environ.get("WSB", "0"), 0)
WS_XN = WSB + 0x0
WS_KV = WSB + 0x200000
WS_ACT = WSB + 0x2200000
WS_PART = WSB + 0x4000000
WS_FLAG = WSB + 0x5000000
ACT_ROW = 184 * 1024
LOG2E = 1.4426950408889634
KSCALE = LOG2E / math.sqrt(128.0)
BIG = 2.0 ** 100
THR = float(os.environ.get("THR", "40"))
STF = " sc1"
ASC = os.environ.get("ASC", " sc1")
XSC = os.environ.get("XSC", " sc1")
KSC = os.environ.get("KSC", " sc1")
NT = os.environ.get("NT", " nt")
NTV = os.environ.get("NTV", "")
PFA = int(os.environ.get("PFA", "1"))
PFW = os.environ.get("PFW", "vgq")
NTD = os.environ.get("NTD", "")
NTA = " nt" if "a" in NTD else ""
ALEAD = int(os.environ.get("ALEAD", "2"))
EARLY = int(os.environ.get("EARLY", "0"))
OPF = int(os.environ.get("OPF", "0"))
WSB = int(os.environ.get("WSB", "0"), 0)
DIAG3 = bool(os.environ.get("DIAG3"))
DIAG2 = [int(x) for x in os.environ.get("DIAG2", "").split(",") if x]
def vr(b, n=4): return f"v[{b}:{b + n - 1}]"
def ar(b, n=4): return f"a[{b}:{b + n - 1}]"
def srd(p, d, lo, size):
    p(f"s_mov_b32 s{d}, s{lo}")
    p(f"s_mov_b32 s{d + 1}, s{lo + 1}")
    p(f"s_mov_b32 s{d + 2}, {size:#x}")
    p(f"s_mov_b32 s{d + 3}, 0x20000")

def wave_reduce(p, regs_):
    steps = ["quad_perm:[1,0,3,2] row_mask:0xf bank_mask:0xf", "quad_perm:[2,3,0,1] row_mask:0xf bank_mask:0xf",
             "row_half_mirror row_mask:0xf bank_mask:0xf", "row_mirror row_mask:0xf bank_mask:0xf",
             "row_bcast:15 row_mask:0xa bank_mask:0xf", "row_bcast:31 row_mask:0xc bank_mask:0xf"]
    for st in steps:
        p("s_nop 1")
        for r in regs_: p(f"v_add_f32_dpp v{r}, v{r}, v{r} {st}")
    p("s_nop 1")
def round_bf16(p, dst, src):
    p(f"v_cvt_pk_bf16_f32 v{dst}, v{src}, v{src}")
    p(f"v_and_b32 v{dst}, 0xffff0000, v{dst}")

def emit_ln(p):
    for r in range(2):
        for k in range(4):
            p(f"v_lshlrev_b32 v{8 + 8 * r + 2 * k}, 16, v{4 * r + k}")
            p(f"v_and_b32 v{9 + 8 * r + 2 * k}, 0xffff0000, v{4 * r + k}")
    for r in range(2):
        b = 8 + 8 * r
        p(f"v_add_f32 v{24 + r}, v{b}, v{b + 1}")
        for k in range(2, 8): p(f"v_add_f32 v{24 + r}, v{24 + r}, v{b + k}")
    wave_reduce(p, [24, 25])
    p("v_readlane_b32 s58, v24, 63")
    p("v_readlane_b32 s59, v25, 63")
    p(f"v_mov_b32 v30, {f2u(1.0 / 512):#x}")
    p("s_nop 1")
    for r in range(2): p(f"v_mul_f32 v{26 + r}, s{58 + r}, v30")
    for r in range(2):
        b = 8 + 8 * r
        for k in range(8): p(f"v_sub_f32 v{32 + k}, v{b + k}, v{26 + r}")
        p(f"v_mul_f32 v{24 + r}, v32, v32")
        for k in range(1, 8): p(f"v_fmac_f32 v{24 + r}, v{32 + k}, v{32 + k}")
    wave_reduce(p, [24, 25])
    p("v_readlane_b32 s58, v24, 63")
    p("v_readlane_b32 s59, v25, 63")
    p("s_nop 1")
    for r in range(2):
        p(f"v_mul_f32 v{28 + r}, s{58 + r}, v30")
        round_bf16(p, 28 + r, 28 + r)
        p(f"v_add_f32 v{28 + r}, {f2u(1e-5):#x}, v{28 + r}")
        round_bf16(p, 28 + r, 28 + r)
        p(f"v_sqrt_f32 v{28 + r}, v{28 + r}")
        p("s_nop 0")
        round_bf16(p, 28 + r, 28 + r)
        p(f"v_rcp_f32 v{28 + r}, v{28 + r}")
        round_bf16(p, 26 + r, 26 + r)
    for r in range(2):
        b = 8 + 8 * r
        for k in range(8): p(f"v_sub_f32 v{b + k}, v{b + k}, v{26 + r}")
        for k in range(4): p(f"v_cvt_pk_bf16_f32 v{32 + k}, v{b + 2 * k}, v{b + 2 * k + 1}")
        for k in range(4):
            p(f"v_lshlrev_b32 v{b + 2 * k}, 16, v{32 + k}")
            p(f"v_and_b32 v{b + 2 * k + 1}, 0xffff0000, v{32 + k}")
        for k in range(8): p(f"v_mul_f32 v{b + k}, v{b + k}, v{28 + r}")
        for k in range(4): p(f"v_cvt_pk_bf16_f32 v{40 + 4 * r + k}, v{b + 2 * k}, v{b + 2 * k + 1}")

def ln_ops(g0, g1):
    p = Prog(); emit_ln(p)
    ops = []; lag = False
    for it in p.items:
        t = it.t
        if t.startswith("s_nop"): lag = True; continue
        t = re.sub(r"\bv(\d+)\b", lambda m: "v%d" % (int(m.group(1)) + 176 if int(m.group(1)) < 8 else int(m.group(1)) + 128), t)
        ops.append(Op(t, g0, g1, [ops[-1]] if lag else [], lag=2)); lag = False
    return ops

def Sreg(par, qb, kb): return par * 64 + qb * 16 + kb * 4
def Preg(qb, s): return 128 + qb * 8 + s * 4
def NEGM(qb): return 160 + 4 * qb
def LACC(qb): return 176 + 4 * qb
ONES = 192
MX = [196, 197]; VTM = 198; VTMASK = 199; VCUR, VPREV = 200, 201; TMP = [202, 203, 204, 205]
def Qreg(qb, t): return (t // 2) * 64 + qb * 8 + (t % 2) * 4
def Oreg(qb, db): return [32, 96, 128, 160][qb] + db * 4
def Fbuf(f): return 192 + (f % 16) * 4
S_THR = 61
NPRE = 6

def tail_reads(base_reg, off):
    return [f"ds_read_b128 {ar(Fbuf(f))}, v{base_reg} offset:{off + f * 1024}" for f in range(NPRE)]

def gen_iter(name, tq, tp, parq, masked, odd_q, kreg, koff, vreg, voff, nreg, noff, first_pv=False, end_ops=(), swap=False, mid_ops=(), vmn=16, extra=None, raw=False, salu=()):
    qq = {"D": [0, 1, 2, 3], "S": [0, 1]}[tq]
    qp = {"D": [0, 1, 2, 3], "S": [0, 1]}[tp]
    parp = 1 - parq
    mf = []; use = {}; lastq = {}; lastuse = {}
    for kb in range(4):
        for t in range(4):
            f = kb * 4 + t
            use[f] = len(mf)
            for qb in qq:
                d = Sreg(parq, qb, kb)
                mf.append(f"{MF} {vr(d)}, {ar(Fbuf(f))}, {ar(Qreg(qb, t))}, {vr(NEGM(qb)) if t == 0 else vr(d)}")
                lastq[(qb, kb)] = len(mf) - 1
            lastuse[f] = len(mf) - 1
    firstp = {}
    for s in range(2):
        for db in range(8):
            f = 16 + s * 8 + db
            use[f] = len(mf)
            for qb in qp:
                o = Oreg(qb, db)
                firstp.setdefault((qb, s), len(mf))
                mf.append(f"{MF} {ar(o)}, {ar(Fbuf(f))}, {vr(Preg(qb, s))}, {0 if (first_pv and s == 0) else ar(o)}")
            lastuse[f] = len(mf) - 1
        for qb in qp:
            mf.append(f"{MF} {vr(LACC(qb))}, {vr(ONES)}, {vr(Preg(qb, s))}, {0 if (first_pv and s == 0) else vr(LACC(qb))}")
    n = len(mf)
    S = Sched16(mf)
    gB = n - (16 if len(qp) == 2 else 22)
    LEAD = 14
    for f in range(32):
        tag = ("F", "n", f) if f < NPRE else ("F", "c", f)
        if use[f] > 0: S.add_first(use[f] - 1, Wait("lgkm", tag))
    if isinstance(vmn, int): S.add_first(gB, Ins(f"s_waitcnt vmcnt({vmn}) lgkmcnt(0)"))
    else:
        S.add_first(gB, Ins("s_waitcnt lgkmcnt(0)")); S.add_first(gB + 1, Wait("vm", vmn))
    S.add_first(gB + 1, "s_barrier")
    S.add_first(n - 1, Wait("lgkm", ("F", "x", 0)))
    R = []
    todo = list(range(NPRE, 32))
    for k, f in enumerate(todo):
        e = lastuse[f - 16] if f >= 16 else 0
        dl = min(use[f] - LEAD + 4, gB - 5 - (31 - f))
        e = max(e, min(use[f] - LEAD - 8, dl - 4))
        assert dl >= e, (name, f, dl, e)
        if f < 16: ins = f"ds_read_b128 {ar(Fbuf(f))}, v{kreg} offset:{koff + f * 1024}"
        else: ins = f"ds_read_b128 {ar(Fbuf(f))}, v{vreg} offset:{voff + (f - 16) * 1024}"
        R.append(Op(ins, max(e, 0), max(dl, 0), tag=("F", "c", f)))
    for f, ins in enumerate(tail_reads(nreg, noff)):
        R.append(Op(ins, max(gB + 1, lastuse[f + 16]), min(n - 2, gB + 3 + 2 * f), tag=("F", "x", f)))
    D = []
    span = gB - 8
    for q in range(4):
        D.append(Op(f"buffer_load_dwordx4 v240, s[16:19], s55 offen offset:{q * 1024}{KSC} lds", 2 + q * span // 4, 2 + (q + 1) * span // 4 - 1, tag="kv"))
    for x in ["s_add_u32 s54, s54, 0x8000", "s_add_u32 s52, s52, 0x8000", "s_and_b32 s52, s52, 0x1ffff", "s_mov_b32 m0, s52"]:
        D.append(Op(x, 0, gB))
    tl = n - 3 - (gB + 1)
    for q in range(4):
        D.append(Op(f"buffer_load_dwordx4 v240, s[16:19], s54 offen offset:{q * 1024}{KSC} lds", gB + 1 + q * tl // 4, gB + 1 + (q + 1) * tl // 4, tag="kv"))
    D.append(Op("s_mov_b32 m0, s53", 0, n - 1))
    if extra is not None:
        D = []
        nv = len(extra)
        for i, (pre, ins, tag) in enumerate(extra):
            for x in pre: D.append(Op(x, 0, n - 3))
            D.append(Op(ins, 1 + i * (n - 6) // nv, 1 + (i + 1) * (n - 6) // nv + 2, tag=tag, deps=[D[-1]] if pre else []))
    E = []; C = []
    for s in range(2):
        for qb in qp:
            b = Sreg(parp, qb, 2 * s)
            dl = firstp[(qb, s)] - 2
            es = [Op(f"v_exp_f32 v{b + r}, v{b + r}", 0, dl - 1) for r in range(8)]
            E += es
            C += [Op(f"v_cvt_pk_bf16_f32 v{Preg(qb, s) + k}, v{b + 2 * k}, v{b + 2 * k + 1}", 0, dl, [es[2 * k], es[2 * k + 1]]) for k in range(4)]
    M = []
    vals = []
    mq = qq[-2:]
    first = True
    for kb in range(4):
        for qb in qq:
            b = Sreg(parq, qb, kb)
            e0 = lastq[(qb, kb)] + 5
            if masked and qb in mq:
                for r in range(4):
                    kk = 64 * odd_q + 16 * kb + r - 16 * (qb & 1)
                    tm = TMP[r % 2]
                    M.append(Op(f"v_subrev_f32 v{tm}, {f2u(kk * BIG):#x}, v{VTMASK}", 0, n - 3))
                    M.append(Op(f"v_min_f32 v{b + r}, v{b + r}, v{tm}", e0, n - 3))
            if first:
                M.append(Op(f"v_max_f32 v{MX[0]}, v{b}, v{b + 1}", e0, n - 3)); first = False
            else:
                M.append(Op(f"v_max3_f32 v{MX[0]}, v{MX[0]}, v{b}, v{b + 1}", e0, n - 3))
            M.append(Op(f"v_max3_f32 v{MX[0]}, v{MX[0]}, v{b + 2}, v{b + 3}", e0, n - 3))
    M.append(Op(f"v_cmp_lt_f32 vcc, s{S_THR}, v{MX[0]}", 0, n - 2))
    X = []
    if swap:
        X = [Op(f"v_xor_b32 v{VCUR}, 0x10000, v{VCUR}", gB, n - 1), Op(f"v_xor_b32 v{VPREV}, 0x10000, v{VPREV}", gB, n - 1, [R[-1]])]
    k = schedule(S, [R, D, E, C, M, X], 0, n - 1, name=name)
    if extra is None:
        g = D[7].g + 1
        for x in ["s_add_u32 s55, s55, 0x8000", "s_add_u32 s53, s53, 0x8000", "s_and_b32 s53, s53, 0x1ffff"] + list(mid_ops):
            while S.first[g]: g += 1
            S.add_first(g, x); g += 1
        assert g <= D[-1].g, (name, g, D[-1].g)
    g = 0
    for x in salu:
        while S.first[g]: g += 1
        for y in (x if isinstance(x, list) else [x]): S.add_first(g, y)
        g += 1
    for x in end_ops: S.add_last(n - 1, x)
    print(S.report(f"{name}(k={k})"))
    pre = [Ins(f"ds_read_b128 {ar(Fbuf(f))}, v0", ("F", "n", f)) for f in range(NPRE)] + [Wait("lgkm", ("F", "n", 0))]
    if raw: pre = list(raw) + pre
    return [i.t for i in resolve(S.items(), pre)]

def allreduce4(p, op, src, t0, t1):
    p(f"v_mov_b32 v{t0}, v{src}")
    p(f"v_mov_b32 v{t1}, v{src}")
    p("s_nop 1")
    p(f"v_permlane32_swap_b32 v{t0}, v{t1}")
    p("s_nop 1")
    p(f"{op} v{t0}, v{t0}, v{t1}")
    p(f"v_mov_b32 v{t1}, v{t0}")
    p("s_nop 1")
    p(f"v_permlane16_swap_b32 v{t0}, v{t1}")
    p("s_nop 1")
    p(f"{op} v{t0}, v{t0}, v{t1}")

def rowmax(p, par, qb):
    b = Sreg(par, qb, 0)
    p(f"v_max3_f32 v{MX[1]}, v{b}, v{b + 1}, v{b + 2}")
    for k in range(3, 15, 2): p(f"v_max3_f32 v{MX[1]}, v{MX[1]}, v{b + k}, v{b + k + 1}")
    p(f"v_max_f32 v{MX[1]}, v{MX[1]}, v{b + 15}")
    allreduce4(p, "v_max_f32", MX[1], TMP[0], TMP[1])

def gen_rare(par, qbs):
    p = Prog()
    p("s_nop 15")
    for qb in qbs:
        rowmax(p, par, qb)
        p(f"v_max_f32 v{TMP[0]}, 0, v{TMP[0]}")
        p(f"v_sub_f32 v{TMP[1]}, 0, v{TMP[0]}")
        p(f"v_exp_f32 v{TMP[1]}, v{TMP[1]}")
        for r in range(4): p(f"v_sub_f32 v{NEGM(qb) + r}, v{NEGM(qb) + r}, v{TMP[0]}")
        for r in range(16): p(f"v_sub_f32 v{Sreg(par, qb, 0) + r}, v{Sreg(par, qb, 0) + r}, v{TMP[0]}")
        for r in range(4): p(f"v_mul_f32 v{LACC(qb) + r}, v{LACC(qb) + r}, v{TMP[1]}")
        for r in range(0, 32, 2):
            a = Oreg(qb, 0) + r
            p(f"v_accvgpr_read_b32 v{TMP[2]}, a{a}")
            p(f"v_accvgpr_read_b32 v{TMP[3]}, a{a + 1}")
            p(f"v_mul_f32 v{TMP[2]}, v{TMP[2]}, v{TMP[1]}")
            p(f"v_mul_f32 v{TMP[3]}, v{TMP[3]}, v{TMP[1]}")
            p(f"v_accvgpr_write_b32 a{a}, v{TMP[2]}")
            p(f"v_accvgpr_write_b32 a{a + 1}, v{TMP[3]}")
    p("s_nop 1")
    p("s_setpc_b64 s[62:63]")
    return [i.t for i in p.items]


GPUB = int(os.environ.get("GPUB", "16"))
OB = int(os.environ.get("OB", "2"))
GB2 = int(os.environ.get("GB2", "1"))
GPOLL = int(os.environ.get("GPOLL", "20"))
CPUB = int(os.environ.get("CPUB", "2"))
CTXPF = int(os.environ.get("CTXPF", "0"))
PUB0 = int(os.environ.get("PUB0", "8"))
PUBP = int(os.environ.get("PUBP", "12"))
LST = int(os.environ.get("LST", "8"))
LSP = int(os.environ.get("LSP", "10"))
CPOLL = int(os.environ.get("CPOLL", "100"))
CCHK = int(os.environ.get("CCHK", "136"))
def spin(name, load, cmp):
    return [f"L_{name}wait:", "s_mov_b32 s44, 0x40000", f"L_{name}spin:", "s_sub_u32 s44, s44, 1", f"s_cbranch_scc1 L_{name}ok", "s_sleep 1",
            load, "s_waitcnt vmcnt(0)", cmp, f"s_cbranch_vccnz L_{name}spin", f"s_branch L_{name}ok"]

def o_epi(qb, scr, pk):
    out = []
    for t in range(4):
        R = scr(t); P = pk(t)
        a = Oreg(qb, 2 * t)
        ops = [f"v_rcp_f32 v{TMP[qb]}, v{LACC(qb)}"] if t == 0 else []
        ops += [f"v_accvgpr_read_b32 v{R + k}, a{a + k}" for k in range(8)]
        ops += [f"v_mul_f32 v{R + k}, v{R + k}, v{TMP[qb]}" for k in range(8)]
        ops += [f"v_cvt_pk_bf16_f32 v{P + k}, v{R + 2 * k}, v{R + 2 * k + 1}" for k in range(4)]
        out.append((ops, f"buffer_store_dwordx4 {vr(P)}, v{240 if qb % 2 == 0 else 246}, s[20:23], s{100 + qb // 2} offen offset:{t * 1024}{STF}"))
    return out

NK = 46; NC = 23
SL = [8, 9, 0, 1, 2, 3, 4, 5]
def wofs(n): return SL[(n // 2) % 8] * 16384 + (n % 2) * 8192
def areg(n): return 128 + (n % 8) * 8 if (n % 16) < 8 else (n % 4) * 8 + (64 if (n % 8) >= 4 else 0)
def w_ops(n):
    gp = n < 14
    j = n if gp else n - 14
    pre = [f"s_add_u32 m0, s50, {wofs(n)}", f"s_add_u32 s58, s{48 if gp else 49}, {j * 32768}"]
    wsrd = "s[12:15]" if gp else "s[8:11]"
    return [(pre, f"buffer_load_dwordx4 v242, {wsrd}, s58 offen lds", ("cw", n // 2)),
            ([], f"buffer_load_dwordx4 v243, {wsrd}, s58 offen offset:1024 lds", ("cw", n // 2))]
def a_ops(n):
    gp = n < 14
    j = n if gp else n - 14
    pre = [f"s_add_u32 s59, s{64 if gp else 65}, {j * 1024}"] if j % 2 == 0 else []
    return [(pre, f"buffer_load_dwordx4 {ar(areg(n))}, v240, s[20:23], s59 offen offset:{(j % 2) * 1024}{ASC}", ("ca", n // 2)),
            ([], f"buffer_load_dwordx4 {ar(areg(n) + 4)}, v246, s[20:23], s59 offen offset:{(j % 2) * 1024}{ASC}", ("ca", n // 2))]
def chunk(ch, w=True, a=True):
    return (w_ops(2 * ch) + w_ops(2 * ch + 1) if w else []) + (a_ops(2 * ch) + a_ops(2 * ch + 1) if a else [])
KEEP = 6 * 16384

def tail_setup():
    sa = ["s_lshr_b32 s35, s34, 1", "s_sub_u32 s31, 15, s30", ["s_bitcmp1_b32 s34, 0", "s_cselect_b32 s31, s31, s30"], "s_and_b32 s45, s29, 3",
          "s_lshl_b32 s46, s31, 3", "s_lshl_b32 s47, s28, 1", "s_add_u32 s46, s46, s47", f"s_mul_i32 s46, s46, {ACT_ROW}",
          f"s_add_u32 s46, s46, {WS_ACT:#x}", f"s_mul_i32 s47, s35, {14 * 1024}", "s_add_u32 s64, s46, s47", f"s_add_u32 s64, s64, {128 * 1024}",
          "s_lshl_b32 s47, s35, 15", "s_add_u32 s65, s46, s47",
          "s_lshl_b32 s46, s45, 8", "s_lshl_b32 s47, s28, 13", "s_add_u32 s46, s46, s47", f"s_mul_i32 s47, s35, {14 * 32 * 1024}",
          "s_add_u32 s48, s46, s47", "s_lshl_b32 s47, s35, 20", "s_add_u32 s49, s46, s47", "s_lshl_b32 s50, s28, 11",
          "s_mov_b32 s8, s38", "s_mov_b32 s9, s39", "s_mov_b32 s12, s96", "s_mov_b32 s13, s97", f"s_mov_b32 s14, {1792 * 1024}",
          "s_and_b32 s46, s34, 1", "s_lshl_b32 s46, s46, 2", "s_add_u32 s3, s99, s46", "s_lshl_b32 s46, s35, 13", "s_add_u32 s3, s3, s46",
          "s_lshl_b32 s51, s31, 2", "s_add_u32 s51, s51, s45", "s_lshl_b32 s56, s51, 18", f"s_add_u32 s56, s56, {WS_PART:#x}",
          "s_lshl_b32 s46, s28, 16", "s_lshl_b32 s47, s35, 13", "s_add_u32 s40, s56, s46", "s_add_u32 s40, s40, s47",
          "s_lshl_b32 s46, s35, 16", "s_add_u32 s56, s56, s46", "s_add_u32 s56, s56, s50", f"s_mov_b32 s25, {KEEP + 16384}",
          ["s_cmp_eq_u32 s28, s35", "s_cselect_b32 s40, 0x7ff00000, s40", f"s_cselect_b32 s25, {KEEP}, s25"]]
    for k in range(3): sa += [f"s_add_u32 s46, s35, {k + 1}", "s_and_b32 s46, s46, 3", "s_lshl_b32 s46, s46, 13", f"s_add_u32 s{41 + k}, s56, s46"]
    sa += ["s_lshl_b32 s94, s51, 9", f"s_add_u32 s94, s94, {WS_FLAG:#x}", "s_lshl_b32 s46, s35, 7", "s_add_u32 s95, s94, s46",
           "s_lshl_b32 s46, s31, 17", "s_lshl_b32 s47, s35, 15", "s_add_u32 s46, s46, s47", "s_lshl_b32 s47, s45, 8", "s_add_u32 s46, s46, s47",
           "s_lshl_b32 s47, s28, 6", "s_add_u32 s57, s46, s47", "s_lshl_b32 s46, s29, 12", "s_add_u32 s100, s46, s32", "s_add_u32 s101, s46, s33"]
    va = ["v_lshrrev_b32 v244, 4, v254", "v_and_b32 v245, 15, v254", "v_lshlrev_b32 v243, 1, v244", "v_xor_b32 v245, v245, v243",
          "v_lshlrev_b32 v244, 10, v244", "v_lshl_add_u32 v242, v245, 4, v244", "v_xor_b32 v243, 0x80, v242", f"v_add_u32 v243, {4096 - 1024}, v243",
          "v_lshrrev_b32 v244, 2, v254", "v_and_b32 v245, 7, v244", "v_lshlrev_b32 v244, 8, v244", "v_and_b32 v241, 3, v254", "v_lshl_add_u32 v244, v241, 3, v244"]
    for c in range(8):
        va += [f"v_xor_b32 v241, {c}, v245", f"v_lshl_add_u32 v{208 + c}, v241, 5, v244", f"v_add_u32 v{216 + c}, 0x10000, v{208 + c}", f"v_add_u32 v{224 + c}, 0x20000, v{208 + c}"]
    va += ["v_lshl_add_u32 v237, v255, 11, v240", f"v_add_u32 v237, {KEEP}, v237",
           "v_and_b32 v247, 3, v254", "v_lshlrev_b32 v247, 7, v247", "v_and_b32 v244, 15, v254", "v_lshlrev_b32 v244, 10, v244",
           "v_lshrrev_b32 v245, 4, v254", "v_lshl_add_u32 v238, v245, 3, v244", "v_add_u32 v239, 0x4000, v238"]
    va += [f"v_mov_b32 v{232 + k}, -1" for k in range(4)]
    return sa, va
HPOLL = "buffer_load_dword v207, v206, s[20:23], s99 offen sc1"
def gpre(): return chunk(0) + chunk(1) + chunk(2, w=False) + chunk(3, w=False)

def opf():
    if not OPF: return []
    return ["s_lshr_b32 s56, s2, 3", "s_lshl_b32 s56, s56, 2", "s_add_u32 s56, s56, s28", "s_lshr_b32 s57, s34, 1",
            f"s_mul_i32 s58, s57, {448 * 1024}", "s_mul_i32 s59, s56, 3584", "s_add_u32 s58, s58, s59",
            "buffer_load_dword v250, v252, s[4:7], s58 offen",
            "s_lshl_b32 s58, s57, 20", "s_lshl_b32 s59, s56, 13", "s_add_u32 s58, s58, s59",
            "buffer_load_dword v251, v253, s[8:11], s58 offen"]

def gen_early_epi():
    out = ["v_add_u32 v236, s25, v240"]
    k8 = 0
    for qb in (2, 3):
        base = 32 if qb == 2 else 96
        for ops, st in o_epi(qb, lambda t: base + 8 * t, lambda t: base + 8 * t):
            out += ops[:10]
            if k8 % 4 == 0: out.append(f"s_add_u32 s60, s40, {32768 + (k8 // 4) * 4096}")
            out.append(f"buffer_store_dwordx4 v[232:235], v240, s[20:23], s60 offen offset:{(k8 % 4) * 1024} sc1")
            out += ops[10:] + [st]
            k8 += 1
    return out + [HPOLL]

def gen_tail():
    p = Prog()
    slow = []
    for f in range(16): p(f"ds_read_b128 {ar(Fbuf(16 + f))}, v{VPREV} offset:{49152 + f * 1024}", ("VE", f))
    p("s_load_dwordx2 s[24:25], s[0:1], 0")
    p("s_load_dwordx2 s[4:5], s[0:1], 80")
    for qb in range(2):
        b = Sreg(1, qb, 0)
        for r in range(16): p(f"v_exp_f32 v{b + r}, v{b + r}")
    for qb in range(2):
        b = Sreg(1, qb, 0)
        for k in range(8): p(f"v_cvt_pk_bf16_f32 v{Preg(qb, 0) + k}, v{b + 2 * k}, v{b + 2 * k + 1}")
    p("v_and_b32 v206, 0x1c00, v206")
    p.wait_vm(("cw", 0))
    p("s_waitcnt lgkmcnt(0)")
    p("s_barrier")
    for x in ["s_mov_b32 s26, 0x200000", "s_mov_b32 s27, 0x20000", "s_mov_b32 s6, 0x200000", "s_mov_b32 s7, 0x20000"]: p(x)
    mf = []
    for s in range(2):
        for qb in range(2): mf.append(f"{MF} {vr(LACC(qb))}, {vr(ONES)}, {vr(Preg(qb, s))}, {vr(LACC(qb))}")
        for db in range(8):
            for qb in range(2):
                mf.append(f"{MF} {ar(Oreg(qb, db))}, {ar(Fbuf(16 + s * 8 + db))}, {vr(Preg(qb, s))}, {ar(Oreg(qb, db))}")
    p(f"buffer_store_dword v249, v248, s[20:23], s98 offen offset:4{STF}", "flag")
    S = Sched16(mf)
    early = chunk(2, a=False) + chunk(3, a=False) + chunk(4)
    for i, (pre, ins, tag) in enumerate(early[:8]):
        for x in pre: S.add_first(4 * i + 1, x)
        S.add_mem(4 * i + 2, ins, tag)
    schedule(S, [[Op(x, 0, 35) for x in tail_setup()[1][8:-4]]], 0, 35)
    p.extend(S.items())
    if DIAG and not DIAG2: p.items.append(stamp(10))
    rest = early[8:]
    p("s_nop 7")
    late = o_epi(0, lambda t: 8 * t, lambda t: 64 + 4 * t) + o_epi(1, lambda t: 32 + 8 * t, lambda t: 80 + 4 * t)
    for i, (ops, st) in enumerate(late):
        for x in ops[:10]: p(x)
        for pre, ins, tag in rest[i:i + 1]:
            for y in pre: p(y)
            p(ins, tag)
        for x in ops[10:]: p(x)
        if i < LST: p(st, "ctxst")
    if DIAG and not DIAG2: p.items.append(stamp(11))
    def w_reads(gi):
        n, c = gi // 8, gi % 8
        off = wofs(n)
        d = 128 + 4 * (gi % 16)
        return [f"ds_read_b64_tr_b16 v[{d + 2 * hf}:{d + 2 * hf + 1}], v{208 + 8 * (off >> 16) + c} offset:{(off & 0xffff) + hf * 4096}" for hf in range(2)]
    RA = 8
    for gi in range(RA):
        for x in w_reads(gi): p(x, ("W", gi))
    p.wait_vm(("ca", 0))
    p.wait_lgkm(("W", 0))
    mf = []
    for n in range(NK):
        base = 0 if n < 14 else 64
        first = n in (0, 14)
        for c in range(8):
            for tb in range(2):
                acc = base + ((c >> 1) * 2 + tb) * 8 + (c & 1) * 4
                mf.append(f"{MF} {vr(acc)}, {vr(128 + 4 * ((n * 8 + c) % 16))}, {ar(areg(n) + 4 * tb)}, {0 if first else vr(acc)}")
    S = Sched16(mf)
    NG = NK * 8; NM = len(mf)
    BS = [ch for ch in range(NC - 1) if ch % OB == 0]
    def gB(ch): return 32 * ch + 16
    for gi in range(RA, NG):
        ch, k = gi // 16, gi % 16
        g = 2 * (gi - RA)
        if ch in BS and k >= 12: g -= [1, 2, 3, 4][k - 12]
        for x in w_reads(gi): S.add_mem(g, x, ("W", gi))
    for gi in range(1, NG): S.add_first(2 * gi - 1, Wait("lgkm", ("W", gi)))
    assert GPUB in BS and CPUB in BS
    for ch in range(NC - 1):
        if ch in BS:
            S.add_first(gB(ch) - 2, Ins("s_waitcnt lgkmcnt(0)"))
            S.add_first(gB(ch), Wait("vm", [("cw", min(ch + OB, NC - 1))] + (["pub"] if ch == GPUB else []) + (["ctxst"] if ch == CPUB else [])))
            S.add_first(gB(ch), "s_barrier")
        S.add_first(32 * (ch + 1) - 2, Wait("vm", ("ca", ch + 1)))
    def wfree(ch):
        return 0 if ch < 8 else gB(min(x for x in BS if x >= ch - 8)) + 1
    S.add_mem(gB(CPUB) + 1, f"buffer_store_dword v249, v248, s[20:23], s98 offen offset:8{STF}", "flag")
    for i, (ops, st) in enumerate(late[LST:]): S.add_mem(2 + LSP * i, st, "ctxst")
    assert 2 + LSP * (8 - LST) < gB(CPUB)
    LD = []
    def ld(ops, e, pace):
        for i, (pre, ins, tag) in enumerate(ops):
            for x in pre: LD.append(Op(x, e + i * pace - 2, NM - 1))
            LD.append(Op(ins, e + i * pace, NM - 1, tag=tag, deps=[LD[-1]] if pre else []))
    ld(chunk(5), 2, 4); ld(chunk(6), 34, 4)
    nw = 7
    while 64 + 16 * (nw - 7) + 16 <= CCHK and nw < 11:
        ld(chunk(nw, a=False), max(64 + 16 * (nw - 7), wfree(nw)), 4); nw += 1
    S.add_mem(CPOLL, "buffer_load_dword v207, v206, s[20:23], s3 offen offset:4 sc1", "cpoll")
    S.add_first(CCHK, Wait("vm", "cpoll"))
    S.add_valu(CCHK, "v_cmp_ne_u32 vcc, 1, v207")
    S.add_last(CCHK + 1, "s_cbranch_vccnz L_cwait")
    S.add_last(CCHK + 1, "L_cok:")
    slow += spin("c", "buffer_load_dword v207, v206, s[20:23], s3 offen offset:4 sc1", "v_cmp_ne_u32 vcc, 1, v207")
    if CTXPF:
        S.add_valu(40, "v_lshlrev_b32 v252, 7, v254")
        S.add_valu(41, f"v_add_u32 v253, {ACT_ROW}, v252")
        ld(chunk(7, w=False), CCHK + 2, 1)
        ld([(["s_lshl_b32 s60, s45, 13"], "s_add_u32 s60, s60, s65", None), ([], "buffer_load_dword v250, v252, s[20:23], s60 offen sc1", "pf"),
            ([], "buffer_load_dword v251, v253, s[20:23], s60 offen sc1", "pf")], CCHK + 2, 1)
    for ch in range(8 if CTXPF else 7, nw): ld(chunk(ch, w=False), max(CCHK + 2, 32 * (ch - 7)), 1)
    for ch in range(nw, NC): ld(chunk(ch), max(CCHK + 2, 32 * (ch - 6), wfree(ch)), 4 if 32 * (ch - 6) > CCHK + 40 else 2)
    print("tail ld", schedule(S, [LD], 0, NM - 1, base_cap=2), [o.g for o in LD if o.mem][::8])
    def pub(base, kind, g0, g1, pace=0):
        ops = []
        for k8 in range(8):
            R = base + 8 * k8
            if k8 % 4 == 0: ops.append(Op(f"s_add_u32 s60, s40, {kind * 32768 + (k8 // 4) * 4096}", g0, g1))
            cv = [Op(f"v_cvt_pk_bf16_f32 v{R + k}, v{R + 2 * k}, v{R + 2 * k + 1}", g0, g1) for k in range(4)]
            ops += cv
            ops.append(Op(f"buffer_store_dwordx4 {vr(R)}, v240, s[20:23], s60 offen offset:{(k8 % 4) * 1024} sc1", g0 + k8 * pace, g1, [cv[-1]], tag="pub"))
            ops.append(Op(f"ds_write_b128 v236, {vr(R)} offset:{kind * 8192 + k8 * 1024}", g0, g1, tag="own"))
        return ops
    pb = pub(0, 0, 14 * 16 + PUB0, gB(GPUB) - 20, PUBP)
    print('pub', schedule(S, [pb], 14 * 16, NM - 1, base_cap=2), [o.g for o in pb if o.tag == 'pub'])
    S.add_mem(gB(GPUB) + 1, "buffer_store_dword v249, v248, s[20:23], s95 offen offset:4 sc1", "flag")
    gx = 32 * 17 + 21
    for k in range(4):
        S.add_mem(gx + 4 * k, f"buffer_load_dwordx2 v[{192 + 2 * k}:{193 + 2 * k}], v{238 + k // 2}, s[24:27], s57 offen offset:{32 * (k % 2)}", "x")
    gp = 32 * GPOLL
    S.add_mem(gp + 1, "buffer_load_dword v250, v247, s[20:23], s94 offen offset:4 sc1", "gpoll")
    gc = gp + 33
    S.add_first(gc + 1, Wait("vm", "gpoll"))
    S.add_valu(gc + 1, "v_cmp_ne_u32 vcc, 1, v250")
    S.add_last(gc + 2, "s_cbranch_vccnz L_gwait")
    S.add_last(gc + 2, "L_gok:")
    slow += spin("g", "buffer_load_dword v250, v247, s[20:23], s94 offen offset:4 sc1", "v_cmp_ne_u32 vcc, 1, v250")
    for k in range(3):
        for tb in range(2):
            S.add_mem(gc + 4 + 2 * (2 * k + tb), f"buffer_load_dwordx4 {vr(8 * k + 4 * tb)}, v240, s[20:23], s{41 + k} offen offset:{tb * 1024} sc1", "gg")
    for tb in range(2): S.add_mem(gc + 18, f"ds_read_b128 {vr(24 + 4 * tb)}, v237 offset:{tb * 1024}", "gown")
    if DIAG3:
        for k, g in enumerate([0, CCHK, CCHK + 4, 14 * 16, 30 * 16, NM - 1]): S.add_first(g, stamp(2 + k))
    print(S.report("tail")[:400])
    OD = os.environ.get("ODROP", "").split(",")
    def keep(i):
        tg = i.tag if isinstance(i, (Ins, Wait)) else None
        if isinstance(i, Ins):
            if isinstance(tg, tuple) and tg[0] in OD: return False
            if tg in OD and tg: return False
        if isinstance(i, Wait):
            tags = tg if isinstance(tg, list) else [tg]
            tags = [t for t in tags if (t[0] if isinstance(t, tuple) else t) not in OD]
            if not tags: return False
            i.tag = tags
        return True
    p.extend([i for i in S.items() if keep(i)])
    p("s_nop 5")
    for o in pub(64, 1, 0, 0):
        for x in o.pre: p(x)
        p(o.t, o.tag)
    def unpack(dst, src, n=8):
        for k in range(n):
            p(f"v_lshlrev_b32 v{dst + 2 * k}, 16, v{src + k}")
            p(f"v_and_b32 v{dst + 2 * k + 1}, 0xffff0000, v{src + k}")
    def rnd(b, T):
        for k in range(0, 16, 2): p(f"v_cvt_pk_bf16_f32 v{T + k // 2}, v{b + k}, v{b + k + 1}")
        unpack(b, T)
    if DIAG3: p.items.append(stamp(8))
    p.wait_vm("gg"); p.wait_lgkm("gown")
    unpack(32, 24)
    for k in range(3):
        unpack(48, 8 * k)
        for e in range(16): p(f"v_add_f32 v{32 + e}, v{32 + e}, v{48 + e}")
    rnd(32, 48)
    for k in range(16): p(f"v_mul_f32 v{48 + k}, {f2u(-LOG2E):#x}, v{32 + k}")
    for k in range(16): p(f"v_exp_f32 v{48 + k}, v{48 + k}")
    for k in range(16): p(f"v_add_f32 v{48 + k}, 1.0, v{48 + k}")
    for k in range(16): p(f"v_rcp_f32 v{48 + k}, v{48 + k}")
    for k in range(16): p(f"v_mul_f32 v{32 + k}, v{32 + k}, v{48 + k}")
    rnd(32, 48)
    unpack(128, 192)
    for k in range(3): p(f"s_add_u32 s{41 + k}, s{41 + k}, 32768")
    p("s_mov_b32 s44, 0x40000")
    p("s_waitcnt lgkmcnt(0)")
    p("s_barrier")
    for tb in range(2): p(f"ds_read_b128 {vr(24 + 4 * tb)}, v237 offset:{8192 + tb * 1024}")
    p.label("L_o_poll")
    for k in range(3):
        for tb in range(2):
            p(f"buffer_load_dwordx4 {vr(8 * k + 4 * tb)}, v240, s[20:23], s{41 + k} offen offset:{tb * 1024} sc1")
    p("s_waitcnt vmcnt(0)")
    p("v_max3_u32 v48, v0, v1, v2")
    p("v_max3_u32 v49, v3, v4, v5")
    for k in range(6, 22, 4):
        p(f"v_max3_u32 v48, v48, v{k}, v{k + 1}")
        p(f"v_max3_u32 v49, v49, v{k + 2}, v{k + 3}")
    p("v_max3_u32 v48, v48, v22, v23")
    p("v_max_u32 v48, v48, v49")
    p("v_cmp_eq_u32 vcc, -1, v48")
    p("s_cbranch_vccz L_o_go")
    p("s_sub_u32 s44, s44, 1")
    p("s_cbranch_scc0 L_o_poll")
    p.label("L_o_go")
    if DIAG3: p.items.append(stamp(9))
    p("s_waitcnt lgkmcnt(0)")
    unpack(64, 24)
    for k in range(3):
        unpack(80, 8 * k)
        for e in range(16): p(f"v_add_f32 v{64 + e}, v{64 + e}, v{80 + e}")
    rnd(64, 80)
    for k in range(16): p(f"v_mul_f32 v{64 + k}, v{64 + k}, v{32 + k}")
    rnd(64, 80)
    for k in range(16): p(f"v_add_f32 v{64 + k}, v{64 + k}, v{128 + k}")
    for k in range(0, 16, 2): p(f"v_cvt_pk_bf16_f32 v{96 + k // 2}, v{64 + k}, v{65 + k}")
    for k in range(4):
        p(f"buffer_store_dwordx2 v[{96 + 2 * k}:{97 + 2 * k}], v{238 + k // 2}, s[4:7], s57 offen offset:{32 * (k % 2)}")
    if DIAG:
        p("s_waitcnt vmcnt(0)")
        p.items.append(stamp(12)); p.items.append(stamp(13, True))
        dump_stamps(p, 0, 28, 20)
    return [i.t for i in resolve(p.items, [Ins(ins, tag) for pre, ins, tag in gpre()])], slow

def gen_f_kernel():
    p = Prog()
    p("s_cmp_ge_u32 s2, 256")
    p("s_cbranch_scc1 L_f_end")
    if DIAG:
        for k in range(14): p(f"s_mov_b32 s{66 + 2 * k}, 0")
        p.items.append(stamp(0, True)); p.items.append(stamp(1))
    p("s_load_dwordx4 s[36:39], s[0:1], 0")
    p("s_load_dwordx4 s[40:43], s[0:1], 24")
    p("s_load_dwordx2 s[44:45], s[0:1], 96")
    p("v_and_b32 v254, 63, v0")
    p("v_lshrrev_b32 v255, 6, v0")
    p("s_and_b32 s34, s2, 7")
    p("v_readfirstlane_b32 s28, v255")
    p("s_lshr_b32 s35, s2, 3")
    p("v_lshlrev_b32 v252, 7, v254")
    if CPF:
        p("s_getpc_b64 s[4:5]")
        p("L_pc0:")
        p(f"s_sub_u32 s4, s4, L_pc0-{KNAME}")
        p("s_subb_u32 s5, s5, 0")
        p(f"s_mov_b32 s6, L_code_end-{KNAME}")
        p("s_mov_b32 s7, 0x20000")
        p("v_lshrrev_b32 v244, 3, v254")
        p("v_lshl_or_b32 v244, v244, 27, v252")
        p("v_lshl_add_u32 v244, v255, 15, v244")
        p("s_lshl_b32 s63, s35, 10")
        p("buffer_load_dword v52, v244, s[4:7], s63 offen", "pf")
    p("v_lshlrev_b32 v240, 4, v254")
    p("v_lshrrev_b32 v244, 4, v254")
    p("v_and_b32 v245, 15, v254")
    p("v_lshlrev_b32 v245, 7, v245")
    p("v_lshl_add_u32 v253, v244, 13, v245")
    p("s_lshl_b32 s60, s35, 2")
    p("s_add_u32 s60, s60, s28")
    p("s_and_b32 s61, s34, 1")
    p("s_lshl_b32 s61, s61, 20")
    p("s_lshl_b32 s63, s60, 13")
    p("s_add_u32 s61, s61, s63")
    p("s_lshr_b32 s62, s34, 1")
    p("s_lshl_b32 s62, s62, 11")
    p("s_lshl_b32 s63, s60, 15")
    p("s_add_u32 s62, s62, s63")
    p("s_lshl_b32 s47, s2, 13")
    p("s_lshl_b32 s46, s28, 11")
    p("s_add_u32 s47, s47, s46")
    for r, v in ((10, 0x200000), (11, 0x20000), (14, 0x400000), (15, 0x20000), (26, 0x200000), (27, 0x20000)): p(f"s_mov_b32 s{r}, {v:#x}")
    p("s_waitcnt lgkmcnt(0)")
    if DIAG and not DIAG2: p.items.append(stamp(2))
    for d, sr in ((24, 36), (25, 37), (8, 38), (9, 39), (12, 40), (13, 41)): p(f"s_mov_b32 s{d}, s{sr}")
    p("buffer_load_dwordx4 v[0:3], v240, s[24:27], s47 offen", "ln")
    p("buffer_load_dwordx4 v[4:7], v240, s[24:27], s47 offen offset:1024", "ln")
    if PFA:
        p("buffer_load_dword v246, v252, s[8:11], s61 offen" + NT, "pf")
        p("buffer_load_dword v247, v253, s[12:15], s62 offen" + NT, "pf")
    srd(p, 16, 42, 0x400000)
    srd(p, 20, 44, 0x10000000)
    p("s_load_dwordx2 s[36:37], s[0:1], 16")
    p("s_load_dwordx2 s[38:39], s[0:1], 40")
    p("s_load_dwordx4 s[40:43], s[0:1], 56")
    p("s_load_dwordx2 s[96:97], s[0:1], 72")
    p("s_load_dwordx2 s[98:99], s[0:1], 88")
    p("v_lshl_add_u32 v244, v255, 6, v254")
    p("v_cmp_eq_u32 vcc, 0, v244")
    p("v_mov_b32 v248, 0x7ffff000")
    p("v_mov_b32 v249, 1")
    p("v_mov_b32 v250, 0")
    p("v_cndmask_b32_e64 v248, v248, 0, vcc")
    p("s_and_b32 s47, s34, 1")
    p("s_lshl_b32 s47, s47, 2")
    p("s_and_b32 s46, s35, 3")
    p("s_add_u32 s47, s47, s46")
    p("s_lshr_b32 s3, s34, 1")
    p("s_lshl_b32 s3, s3, 3")
    p("s_lshr_b32 s46, s35, 2")
    p("s_add_u32 s3, s3, s46")
    p("s_lshl_b32 s45, s3, 3")
    p("s_add_u32 s45, s45, s47")
    p("s_lshl_b32 s46, s47, 2")
    p("s_add_u32 s46, s46, s28")
    p("s_lshl_b32 s31, s46, 16")
    p("s_lshl_b32 s94, s46, 15")
    p("s_lshl_b32 s47, s3, 20")
    p("s_add_u32 s94, s94, s47")
    p(f"s_add_u32 s94, s94, {WS_KV:#x}")
    p("s_lshl_b32 s95, s3, 8")
    p("s_lshl_b32 s3, s45, 7")
    p(f"s_add_u32 s3, s3, {WS_FLAG + 0x10000:#x}")
    p("s_lshl_b32 s29, s34, 2")
    p("s_lshr_b32 s46, s35, 3")
    p("s_add_u32 s29, s29, s46")
    p("s_and_b32 s30, s35, 7")
    p(f"s_mul_i32 s48, s28, 24576")
    p("s_lshl_b32 s49, s28, 12")
    p("s_lshl_b32 s50, s28, 6")
    p("s_add_u32 s50, s50, s95")
    p("s_and_b32 s45, s28, 1")
    p("s_lshr_b32 s52, s28, 1")
    p("s_lshl_b32 s53, s45, 13")
    p("s_lshl_b32 s54, s52, 12")
    p("s_add_u32 s53, s53, s54")
    p("s_lshl_b32 s54, s45, 6")
    p("s_lshl_b32 s55, s52, 19")
    p("s_add_u32 s55, s54, s55")
    p("s_add_u32 s54, s55, s95")
    p("s_lshl_b32 s56, s29, 8")
    p("s_add_u32 s65, s55, s56")
    p("s_sub_u32 s56, 15, s30")
    p("s_lshl_b32 s32, s56, 3")
    p("s_lshl_b32 s63, s28, 1")
    p("s_add_u32 s32, s32, s63")
    p("s_lshl_b32 s33, s30, 3")
    p("s_add_u32 s33, s33, s63")
    p("s_lshl_b32 s46, s32, 14")
    p("s_lshl_b32 s47, s33, 14")
    p(f"s_mul_i32 s32, s32, {ACT_ROW}")
    p(f"s_add_u32 s32, s32, {WS_ACT:#x}")
    p(f"s_mul_i32 s33, s33, {ACT_ROW}")
    p(f"s_add_u32 s33, s33, {WS_ACT:#x}")
    p("s_add_u32 s55, s29, 32")
    p("s_cmp_lt_u32 s29, 24")
    p("s_cselect_b32 s55, s55, s29")
    p(f"s_mul_i32 s64, s52, {64 * 3584}")
    p("s_lshl_b32 s63, s29, 6")
    p("s_add_u32 s35, s64, s63")
    p("s_lshl_b32 s63, s55, 6")
    p("s_add_u32 s64, s64, s63")
    p("s_lshl_b32 s51, s29, 20")
    p(f"s_add_u32 s51, s51, {WS_KV:#x}")
    p("s_lshl_b32 s56, s29, 10")
    p(f"s_add_u32 s56, s56, {128 * 1024}")
    p("s_add_u32 s100, s56, s32")
    p("s_add_u32 s101, s56, s33")
    p("s_lshl_b32 s61, s34, 8")
    p("s_lshr_b32 s63, s60, 1")
    p(f"s_mul_i32 s63, s63, {8 * 3584}")
    p("s_add_u32 s61, s61, s63")
    p("s_lshl_b32 s52, s34, 10")
    p("s_lshl_b32 s63, s60, 15")
    p("s_add_u32 s52, s52, s63")
    p("v_lshrrev_b32 v241, 3, v254")
    p("v_lshlrev_b32 v241, 13, v241")
    p("v_and_b32 v242, 7, v254")
    for n in range(8):
        p(f"v_xor_b32 v243, {n}, v242")
        p(f"v_lshl_add_u32 v{224 + n}, v243, 4, v241")
    p("v_and_b32 v241, 7, v254")
    p("v_bfe_u32 v242, v254, 3, 1")
    p("v_lshlrev_b32 v242, 7, v242")
    p("v_lshl_add_u32 v242, v241, 10, v242")
    p("v_add_u32 v242, s48, v242")
    p("v_lshrrev_b32 v243, 4, v254")
    for tt in range(2):
        p(f"v_add_u32 v244, {4 * tt}, v243")
        p("v_xor_b32 v244, v244, v241")
        p(f"v_lshl_add_u32 v{232 + tt}, v244, 4, v242")
    p("v_lshlrev_b32 v241, 9, v243")
    p("v_bfe_u32 v242, v254, 2, 2")
    p("v_lshl_add_u32 v241, v242, 6, v241")
    p("v_and_b32 v242, 3, v254")
    p("v_lshl_add_u32 v241, v242, 3, v241")
    p("v_and_b32 v242, 1, v243")
    p("v_lshl_add_u32 v234, v242, 5, v241")
    p("v_xor_b32 v237, 32, v234")
    for cf in range(2):
        p(f"v_add_u32 v{235 + 3 * cf}, 0x10000, v{234 + 3 * cf}")
        p(f"v_add_u32 v{236 + 3 * cf}, 0x20000, v{234 + 3 * cf}")
    p("v_lshrrev_b32 v244, 5, v254")
    p("v_lshlrev_b32 v251, 30, v244")
    p("v_lshlrev_b32 v244, 1, v244")
    p("v_and_b32 v245, 3, v254")
    p("v_xor_b32 v245, v245, v244")
    p("v_lshlrev_b32 v245, 4, v245")
    p("v_lshrrev_b32 v244, 2, v254")
    p("v_lshl_add_u32 v241, v244, 13, v245")
    p("v_mul_u32_u24 v244, 3584, v244")
    p("v_add_u32 v242, v244, v245")
    p("v_bfe_u32 v245, v254, 2, 3")
    p("v_mul_u32_u24 v245, 3584, v245")
    p("v_and_b32 v244, 1, v254")
    p("v_lshl_add_u32 v245, v244, 7, v245")
    p("v_bfe_u32 v244, v254, 1, 1")
    p("v_lshl_add_u32 v245, v244, 11, v245")
    p("v_or_b32 v245, v245, v251")
    p("v_and_b32 v243, 15, v254")
    p("v_lshlrev_b32 v243, 2, v243")
    p("v_lshlrev_b32 v48, 7, v254")
    p("v_lshl_add_u32 v48, v255, 5, v48")
    p("v_add_u32 v48, 0x24000, v48")
    p("v_lshl_add_u32 v49, v255, 11, v240")
    p("v_add_u32 v49, 0x24000, v49")
    p("v_lshrrev_b32 v50, 3, v254")
    p("v_lshlrev_b32 v50, 8, v50")
    p("v_and_b32 v51, 7, v254")
    p("v_lshl_add_u32 v50, v51, 4, v50")
    p("s_waitcnt lgkmcnt(0)")
    p("s_cmp_eq_u32 s45, 0")
    p("s_cselect_b32 s40, s40, s42")
    p("s_cselect_b32 s41, s41, s43")
    p("s_mov_b32 s24, s98")
    p("s_mov_b32 s25, s99")
    p("s_mov_b32 s26, 256")
    p("s_lshl_b32 s56, s55, 10")
    p(f"s_add_u32 s56, s56, {128 * 1024}")
    p("s_add_u32 s98, s56, s32")
    p("s_add_u32 s99, s56, s33")
    p("s_lshl_b32 s63, s2, 7")
    p(f"s_add_u32 s63, s63, {WS_FLAG:#x}")
    BLK = [6, 7, 8, 9, 6, 7, 8, 9, 0, 1, 2, 3, 4, 5, 6, 7, 8, 9, 0, 1, 2, 3, 6, 7, 8, 9, 4, 5, 6, 7, 8, 9]
    def dma_A(s):
        ops = []
        for n in range(8):
            pre = []
            if n % 4 == 0:
                pre = [f"s_add_u32 m0, s48, {(s % 3) * 8192 + (n // 4) * 4096}", f"s_add_u32 s56, s31, {s * 128 + (n // 4) * 4096}"]
            ops.append((pre, f"buffer_load_dwordx4 v{224 + n}, s[8:11], s56 offen offset:{(n % 4) * 1024}{NTA} lds", ("A", s)))
        return ops
    def dma_W(n):
        ops = []
        kq = n % 4
        for q in range(4):
            m0 = "s53"
            if n < 8:
                pre = [f"s_add_u32 s57, s54, {(kq * 128 + q * 16) * 8192 + (n // 4) * 128 - q * 1024}"]
                ins = f"buffer_load_dwordx4 v241, s[12:15], s57 offen offset:{q * 1024} lds"
            elif n < 16:
                pre = [f"s_add_u32 s57, s50, {((n - 8) * 64 + q * 16) * 8192 - q * 1024}"]; m0 = "s49"
                ins = f"buffer_load_dwordx4 v241, s[16:19], s57 offen offset:{q * 1024} lds"
            elif n < 24:
                pre = [f"s_add_u32 s57, s{35 if n < 20 else 64}, {(kq * 128 + q * 16) * 3584 - q * 1024}"]
                ins = f"buffer_load_dwordx4 v242, s[12:15], s57 offen offset:{q * 1024} lds"
            else:
                pre = [f"s_add_u32 s57, s65, {(kq * 128 + q * 16) * 8192 - q * 1024 + (128 if n >= 28 else 0)}"]
                ins = f"buffer_load_dwordx4 v241, s[8:11], s57 offen offset:{q * 1024} lds"
            if "kkvvggqq"[n // 4] in NTD: ins = ins.replace(" lds", " nt lds")
            if q == 0: pre = [f"s_add_u32 m0, {m0}, {BLK[n] * 16384}"] + pre
            ops.append((pre, ins, ("L", n)))
        return ops
    def kv_half(tile, part):
        ops = []
        for q in range(4):
            pre = []
            if q == 0: pre = [f"s_add_u32 m0, s49, {tile * 32768 + part * 16384}", f"s_add_u32 s57, s49, {tile * 32768 + part * 16384}"]
            ops.append((pre, f"buffer_load_dwordx4 v240, s[16:19], s57 offen offset:{q * 1024}{KSC} lds", ("kv", tile, part)))
        return ops
    def now(ops):
        for pre, ins, tag in ops:
            for x in pre: p(x)
            p(ins, tag)
    first = dma_W(0) + dma_A(0) + dma_A(1) + (dma_W(1) + dma_A(2) if ALEAD == 3 else [])
    now(first[:EARLY])
    p.wait_vm("ln")
    if DIAG and not DIAG2: p.items.append(stamp(3))
    emit_ln(p)
    p("ds_write_b128 v48, v[40:43]")
    p("ds_write_b128 v48, v[44:47] offset:16")
    p("s_lshr_b32 s58, s2, 1")
    p("s_lshl_b32 s58, s58, 14")
    p("s_and_b32 s59, s2, 1")
    p("s_lshl_b32 s59, s59, 7")
    p("s_add_u32 s58, s58, s59")
    p("s_add_u32 s58, s58, s49")
    if WS_XN: p(f"s_add_u32 s58, s58, {WS_XN:#x}")
    p("s_waitcnt lgkmcnt(0)")
    p("s_barrier")
    p("ds_read_b128 v[40:43], v49")
    p("ds_read_b128 v[44:47], v49 offset:1024")
    p("s_lshr_b32 s59, s2, 4")
    p("s_lshl_b32 s59, s59, 2")
    p("s_waitcnt lgkmcnt(0)")
    p(f"buffer_store_dwordx4 v[40:43], v50, s[20:23], s58 offen{STF}", "xnst")
    p(f"buffer_store_dwordx4 v[44:47], v50, s[20:23], s58 offen offset:2048{STF}", "xnst")
    p(f"buffer_store_dword v250, v248, s[20:23], s63 offen{STF}", "zf")
    p(f"buffer_store_dword v250, v248, s[20:23], s63 offen offset:4{STF}", "zf")
    p(f"buffer_store_dword v250, v248, s[20:23], s3 offen{STF}", "zf")
    p(f"s_add_u32 s63, s63, 0x20000")
    p(f"buffer_store_dword v250, v248, s[20:23], s63 offen offset:8{STF}", "zf")
    p(f"buffer_store_dword v250, v248, s[20:23], s63 offen{STF}", "zf")
    p(f"buffer_store_dword v250, v248, s[20:23], s63 offen offset:4{STF}", "zf")

    now(first[EARLY:])

    groups = []
    def accT(base, c, cf, rb): return base + (c * 4 + rb) * 8 + cf * 4
    def accV(base, c, cf, rb): return base + ((c * 2 + cf) * 2 + (rb >> 1)) * 8 + (rb & 1) * 4
    def add_double(seg0, bases):
        for s in range(8):
            for tt in range(2):
                for c in range(4):
                    for cf in range(2):
                        groups.append(dict(off=BLK[seg0 + s] * 16384 + c * 4096 + tt * 2048, cf=cf, t=2 * s + tt,
                                           acc=[accV(bases[c >> 1], c & 1, cf, rb) for rb in range(4)], vt=True))
    def add_single(seg0, base):
        for q in range(4):
            for tq, c in ([(tq, c) for c in range(2) for tq in range(4)] if seg0 + q == 31 else [(tq, c) for tq in range(4) for c in range(2)]):
                if True:
                    for cf in range(2):
                        groups.append(dict(off=BLK[seg0 + q] * 16384 + c * 8192 + tq * 2048, cf=cf, t=4 * q + tq,
                                           acc=[accT(base, c, cf, rb) for rb in range(4)], vt=False))
    add_single(0, 0); add_single(4, 64); add_double(8, [128, 0])
    add_single(16, 64); add_single(20, 128); add_single(24, 0); add_single(28, 64)
    NG = len(groups)
    mf = []
    for n, G in enumerate(groups):
        w = vr(192 + 4 * (n % 8))
        for rb in range(4):
            a = ar((rb * 16 + G["t"]) * 4)
            d = vr(G["acc"][rb])
            c = 0 if G["t"] == 0 else d
            mf.append(f"{MF} {d}, {a}, {w}, {c}" if G["vt"] else f"{MF} {d}, {w}, {a}, {c}")
    S = Sched16(mf)
    def w_reads(n):
        G = groups[n]
        out = []
        for hf in range(2):
            off = G["off"] + hf * 256
            d = 192 + 4 * (n % 8) + 2 * hf
            out.append(f"ds_read_b64_tr_b16 v[{d}:{d + 1}], v{234 + 3 * G['cf'] + (off >> 16)} offset:{off & 0xffff}")
        return out
    def a_reads(s):
        return [f"ds_read_b128 {ar((rb * 16 + 2 * s + tt) * 4)}, v{232 + tt} offset:{(s % 3) * 8192 + rb * 256}" for tt in range(2) for rb in range(4)]
    RA = 5
    if DIAG and not DIAG2: p.items.append(stamp(4))
    p.wait_vm(("A", 0))
    p("s_barrier")
    if DIAG and not DIAG2: p.items.append(stamp(5))
    for x in a_reads(0): p(x, ("Ar", 0))
    for n in range(RA):
        for x in w_reads(n): p(x, ("W", n))
    p.wait_lgkm(("W", 0))
    for n in range(RA, NG):
        k = n % 16
        if k <= 13: g = 4 * (n - RA)
        elif k == 14: g = 4 * (n - 6) + 2
        else: g = 4 * (n - 6)
        for i, x in enumerate(w_reads(n)): S.add_mem(g + i, x, ("W", n))
    for n in range(1, NG): S.add_first(4 * n - 1, Wait("lgkm", ("W", n)))
    for s in range(1, 8):
        g = 32 * s - 22
        S.add_first(g, Wait("vm", ("A", s)))
        for i, x in enumerate(a_reads(s)): S.add_mem(g + [0, 0, 1, 1, 4, 4, 5, 5][i], x, ("Ar", s))
        S.add_first(32 * s - 10, Wait("lgkm", ("Ar", s)))
    def gB(n): return 64 * n + 4 * 11
    GBS = [n for n in range(31) if n < 8 or not GB2 or n % 2 == 1]
    for n in GBS:
        nxt = min([x for x in GBS if x > n] + [31])
        tags = [("L", nxt)]
        if n == 0: tags += ["xnst", "zf"]
        if n == KVPUB: tags.append("kvst")
        if n == 29: tags.append(("kv", 0, 0))
        S.add_first(gB(n) - 2, Ins("s_waitcnt lgkmcnt(0)"))
        S.add_first(gB(n), Wait("vm", tags))
        S.add_first(gB(n), "s_barrier")
    assert KVPUB in GBS
    def win(n): return gB(n - 1) + 1
    def freed(seg): return gB(min(x for x in GBS if x >= seg)) + 1
    def lfree(n):
        prev = [m for m in range(n) if BLK[m] == BLK[n]]
        return freed(prev[-1]) if prev else freed(3)
    def bfree(blk): return freed(max(m for m in range(32) if BLK[m] == blk))
    LD = []
    def ld(ops, e, pace=1):
        for i, (pre, ins, tag) in enumerate(ops): LD.append(Op(ins, e + i * pace, 2040, pre=pre, tag=tag))
    one = lambda ins, tag, pre=(): [([], x, None) for x in pre] + [([], ins, tag)]
    if ALEAD == 3:
        ld(dma_A(3), 0); ld(dma_W(2), 8); ld(dma_A(4), 22)
        ld(dma_A(5), 54); ld(dma_W(3), 62); ld(dma_A(6), 86); ld(dma_A(7), 118); ld(dma_W(4), 126); ld(dma_W(5), 140, 4)
    else:
        ld(dma_W(1), 0); ld(dma_A(2), 0); ld(dma_A(3), 20); ld(dma_W(2), 40); ld(dma_A(4), 52); ld(dma_A(5), 84); ld(dma_W(3), 100)
        ld(dma_A(6), 116); ld(dma_A(7), 144); ld(dma_W(4), 156); ld(dma_W(5), 160)
    ld(one("buffer_atomic_add v249, v248, s[24:27], s59 offen offset:128", "pub"), win(3))
    if "v" in PFW: ld(one("buffer_load_dword v246, v253, s[16:19], s62 offen" + NTV, "pf"), win(3))
    ld(dma_W(6), win(3), 2); ld(dma_W(7), VW0 - 24, 4)
    for n in range(8, 13): ld(dma_W(n), VW0 + (n - 8) * 24, 5)
    ld(one("buffer_load_dword v250, v245, s[12:15], s61 offen", "pf", ["s_mov_b32 s12, s40", "s_mov_b32 s13, s41", f"s_mov_b32 s14, {512 * 3584}"])[:4 if "g" in PFW else 3], win(8))
    print("ld1", schedule(S, [LD], 0, 511, base_cap=3), "last", LD[-1].g, [o.g for o in LD if o.tag in ("pf", "poll")])
    gc = XNC
    S.add_mem(gc - 50, "buffer_load_dword v244, v243, s[24:27], 0 offen offset:128 sc1", "poll")
    S.add_first(gc, Wait("vm", "poll"))
    S.add_valu(gc, "v_cmp_gt_u32 vcc, 16, v244")
    S.add_valu(gc, "v_add_u32 v247, 0x4000, v240")
    S.add_last(gc + 2, "s_cbranch_vccnz L_xnwait")
    S.add_last(gc + 2, "L_xnok:")
    LD = []
    for n in range(13, 24): ld(dma_W(n), max(win(9) + (n - 13) * 44, lfree(n)), 10)
    S.add_valu(64 * 12, "v_and_b32 v253, 0xfffffbff, v253")
    S.add_valu(64 * 12 + 1, "v_bfe_u32 v246, v254, 3, 1")
    S.add_valu(64 * 12 + 2, "v_lshl_or_b32 v253, v246, 30, v253")
    ld(one("buffer_load_dword v244, v253, s[8:11], s52 offen", "pf", ["s_mov_b32 s8, s36", "s_mov_b32 s9, s37", "s_mov_b32 s10, 0x400000"])[:4 if "q" in PFW else 3], win(17))
    for n in range(24, 32): ld(dma_W(n), max(win(19) + (n - 24) * 50, lfree(n)), 8)
    S.add_valu(64 * 26, "v_and_b32 v243, 0x380, v252")
    for x in ["s_add_u32 s16, s20, s51", "s_addc_u32 s17, s21, 0"]: S.add_last(64 * 26, x)
    for x in ["s_sub_u32 s18, 16, s30", "s_lshl_b32 s18, s18, 16"]: S.add_last(64 * 26 + 1, x)
    ld(one("buffer_load_dword v244, v243, s[20:23], s59 offen sc1", "poll2", ["s_lshl_b32 s59, s29, 10", f"s_add_u32 s59, s59, {WS_FLAG + 0x10000:#x}"]), 64 * 27)
    gc = win(28) + 1
    for k in range(7): ld(kv_half(k // 2, k % 2), max(gc + 4 + 16 * k, bfree(k)), 4)
    S.add_first(gc, Wait("vm", "poll2"))
    S.add_valu(gc, "v_cmp_ne_u32 vcc, 1, v244")
    S.add_last(gc + 2, "s_cbranch_vccnz L_kvwait")
    S.add_last(gc + 2, "L_kvok:")
    print("ld2", schedule(S, [LD], 512, 2046, base_cap=3), "last", LD[-1].g, [(o.tag, o.g) for o in LD if o.pre and len(o.pre) == 2])
    XL = []
    for t in range(16):
        for rb in range(4):
            pre = []
            if t % 4 == 0 and rb % 2 == 0: pre = [f"s_add_u32 s{62 + rb // 2}, s{46 + rb // 2}, {WS_XN + t * 1024}"]
            vo = 240 if rb % 2 == 0 else 247
            XL.append(Op(f"buffer_load_dwordx4 {ar((rb * 16 + t) * 4)}, v{vo}, s[20:23], s{62 + rb // 2} offen offset:{(t % 4) * 1024}{XSC}",
                         max(512 + 32 * t + 32 + (6 * rb if t < 15 else 0), XNC + 4 + 5 * (4 * t + rb)), 1024 + 16 * t - 60 if t < 10 else 512 + 32 * t + 64, pre=pre, tag=("X", t)))
    for t in range(16): S.add_first(1024 + 16 * t - 2, Wait("vm", ("X", t)))
    def kv_epi(kind, u, base, g0, g1, st0):
        ops = []
        for k8 in range(8):
            R = base + 8 * k8
            if kind == "K":
                c, rb = k8 // 4, k8 % 4
                off = rb * 4096 + (2 * u + c) * 1024
                for r in range(8): ops.append(Op(f"v_mul_f32 v{R + r}, {f2u(KSCALE):#x}, v{R + r}", g0, g1))
            else:
                db, s = 4 * u + k8 // 2, k8 % 2
                off = 16384 + s * 8192 + db * 1024
            cv = [Op(f"v_cvt_pk_bf16_f32 v{R + k}, v{R + 2 * k}, v{R + 2 * k + 1}", g0, g1) for k in range(4)]
            ops += cv
            ops.append(Op(f"buffer_store_dwordx4 {vr(R)}, v240, s[20:23], s95 offen offset:{off & 4095}{STF}", max(g0, st0[0] + int(k8 * st0[1])), g1, [cv[-1]],
                          pre=[f"s_add_u32 s95, s94, {off & ~4095}"], tag="kvst"))
        return ops
    C0 = -2.0 * math.sqrt(2.0 / math.pi) * LOG2E
    C1 = C0 * 0.044715
    S.add_valu(64 * 17, f"v_mov_b32 v232, {f2u(C0):#x}")
    S.add_valu(64 * 17 + 1, f"v_mov_b32 v233, {f2u(C1):#x}")
    S.add_valu(64 * 17 + 2, f"v_add_u32 v246, {ACT_ROW}, v240")
    def gu_epi(base, psg, g0, g1, gst):
        st = [[], []]; sto = []
        for rb in range(4):
            G = base + rb * 8; U = base + 32 + rb * 8
            L = st[rb & 1]
            for r in range(8):
                t = 224 + (r % 4) + 4 * (rb & 1)
                o4 = Op(f"v_exp_f32 v{t}, v{t}", g0, g1)
                o7 = Op(f"v_rcp_f32 v{t}, v{t}", g0, g1)
                L += [Op(f"v_mul_f32 v{t}, v{G + r}, v{G + r}", g0, g1), Op(f"v_fma_f32 v{t}, v{t}, v233, v232", g0, g1),
                      Op(f"v_mul_f32 v{t}, v{t}, v{G + r}", g0, g1), o4, Op(f"v_mul_f32 v{G + r}, v{G + r}, v{U + r}", g0, g1),
                      Op(f"v_add_f32 v{t}, 1.0, v{t}", g0, g1), o7, Op(f"v_mul_f32 v{G + r}, v{G + r}, v{t}", g0, g1, [o7])]
            cv = [Op(f"v_cvt_pk_bf16_f32 v{G + k}, v{G + 2 * k}, v{G + 2 * k + 1}", g0, g1 - 2) for k in range(4)]
            L += cv
            sto.append(Op(f"buffer_store_dwordx4 {vr(G)}, v{240 if rb % 2 == 0 else 246}, s[20:23], s{psg + rb // 2} offen{STF}", gst + 30 * rb, g1, [cv[-1]], tag="hst"))
        return st, sto
    def q_epi(base, u, g0, g1, gmove):
        cvs = []; mv = []
        for c in range(2):
            for qb in range(4):
                R = base + (c * 4 + qb) * 8
                for k in range(4):
                    o = Op(f"v_cvt_pk_bf16_f32 v{R + k}, v{R + 2 * k}, v{R + 2 * k + 1}", g0, g1)
                    cvs.append(o)
                    mv.append(Op(f"v_accvgpr_write_b32 a{Qreg(qb, 2 * u + c) + k}, v{R + k}", gmove, g1, [o]))
        return cvs, mv
    PH = [256 * k for k in range(9)]
    PE = 2048
    kvs = kv_epi("K", 0, 0, PH[1] + 6, PH[2] - 3, (PH[1] + 16, STP)) + kv_epi("K", 1, 64, PH[2] + 6, PH[4] - 3, (PH[2] + 16, STPK1)) + \
          kv_epi("V", 0, 128, PH[4] + 6, PH[5] - 3, (PH[4] + 12, STPV)) + kv_epi("V", 1, 0, PH[4] + 6, PH[6] - 3, (PH[4] + 12 + 8 * STPV, STPV))
    print("kv epi", schedule(S, [XL, kvs], PH[1], PH[6]), "last store", kvs[-1].g, "pub at", gB(KVPUB))
    assert kvs[-1].g < gB(KVPUB)
    st0, so0 = gu_epi(64, 100, PH[5] + 6, PH[7] - 3, PH[6])
    st1, so1 = gu_epi(128, 98, PH[6] + 6, PE - 2, PH[6] + 130)
    q0c, q0m = q_epi(0, 0, PH[7] + 6, PE - 2, PH[7] + 130)
    q1c, q1m = q_epi(64, 1, PE - 32 + 5, PE - 1, PE - 32 + 5)
    k0r = [Op(f"ds_read_b128 {ar(Fbuf(f))}, v240 offset:{f * 1024}", max(gB(29) + 1, PH[7] + 16 * f + 16), PE - 2, tag=("K0", f)) for f in range(12)]
    print("gu epi", schedule(S, [st0[0] + st1[0], st0[1] + st1[1], so0 + so1, q0c + q1c[:16], q0m + q1m[:16], k0r], PH[5], PE - 1))
    S.add_mem(gB(KVPUB) + 2, f"buffer_store_dword v249, v248, s[20:23], s3 offen{STF}", "pub")
    if DIAG and not DIAG2:
        S.add_first(512, stamp(6)); S.add_first(1024, stamp(7)); S.add_first(PE - 1, stamp(8))
    if DIAG2:
        for k, g in enumerate(DIAG2): S.add_first(g, stamp(2 + k))
    print(S.report("gemm")[:600])
    its = S.items()
    DROP = os.environ.get("DROP", "").split(",")
    def keep(i):
        if isinstance(i, Ins):
            tg = i.tag[0] if isinstance(i.tag, tuple) else i.tag
            if tg in DROP and tg: return False
        if isinstance(i, Wait):
            tags = i.tag if isinstance(i.tag, list) else [i.tag]
            tags = [t for t in tags if (t[0] if isinstance(t, tuple) else t) not in DROP]
            if not tags: return False
            i.tag = tags
        return True
    p.extend([i for i in its if keep(i)])
    gemm_items = list(p.items)
    n_gemm = len(resolve(gemm_items))
    sa, va = tail_setup()
    def gen_qk0(masked):
        mf = []; last = {}
        for kb in range(4):
            for t in range(4):
                for qb in range(4):
                    d = Sreg(0, qb, kb)
                    c = vr(d) if t else (0 if kb < 2 else vr(NEGM(qb)))
                    mf.append(f"{MF} {vr(d)}, {ar(Fbuf(kb * 4 + t))}, {ar(Qreg(qb, t))}, {c}")
                    last[(qb, kb)] = len(mf) - 1
        S = Sched16(mf)
        for f in range(1, 16): S.add_first(4 * f - 1, Wait("lgkm", ("K0", f)))
        for f in range(12, 16): S.add_mem(f - 12, f"ds_read_b128 {ar(Fbuf(f))}, v240 offset:{f * 1024}", ("K0", f))
        c1, m1 = q_epi(64, 1, 4, 9, 4)
        c1 = c1[16:]; m1 = m1[16:]
        su = ["v_and_b32 v241, 15, v254", "v_lshl_add_u32 v241, v255, 5, v241", "v_lshrrev_b32 v245, 4, v254", "v_lshlrev_b32 v245, 2, v245",
              "v_sub_u32 v241, v241, v245", "v_cvt_f32_i32 v241, v241", "v_add_f32 v241, 0.5, v241", f"v_mul_f32 v{VTMASK}, {f2u(BIG):#x}, v241"]
        SU = [Op(x, 0, 18) for x in su]
        su2 = [f"v_mov_b32 v{VCUR}, v240", f"v_add_u32 v{VPREV}, 0x10000, v240", "v_and_b32 v206, 31, v254", "v_lshlrev_b32 v206, 10, v206",
               "v_and_b32 v252, 0xfff, v252", "v_or_b32 v252, v252, v251"] + [f"v_mov_b32 v{ONES + k}, 0x3f803f80" for k in range(4)] + va[:8] + va[-4:]
        SU += [Op(x, 0, 63) for x in su2]
        ss = [f"s_mov_b32 s{S_THR}, {f2u(THR):#x}", "s_lshl_b32 s99, s30, 7", f"s_add_u32 s99, s99, {WS_FLAG + 0x20000:#x}", "s_lshl_b32 s98, s29, 10",
              "s_add_u32 s98, s98, s99", "s_mov_b32 s52, s49", f"s_add_u32 s53, s49, {3 * 32768 + 16384}", f"s_add_u32 s54, s49, {4 * 32768}",
              f"s_add_u32 s55, s49, {3 * 32768 + 16384}", "s_mov_b32 s4, s38", "s_mov_b32 s5, s39", "s_mov_b32 s6, 0x400000", "s_mov_b32 s7, 0x20000",
              "s_lshl_b32 s59, s2, 2", "s_add_u32 s59, s59, s28", "s_lshl_b32 s50, s59, 12", "s_mov_b32 s12, s96", "s_mov_b32 s13, s97",
              f"s_mov_b32 s14, {1792 * 1024}", "s_mov_b32 m0, s52"]
        SS = [Op(x, 0, 60) for x in ss]
        def mask_ops(kb, e0, dl):
            out = []
            if not masked: return out
            for qb in (2, 3):
                for r in range(4):
                    kk = 16 * kb + r - 16 * (qb & 1)
                    out.append(Op(f"v_subrev_f32 v{TMP[r % 2]}, {f2u(kk * BIG):#x}, v{VTMASK}", 19, dl))
                    out.append(Op(f"v_min_f32 v{Sreg(0, qb, kb) + r}, v{Sreg(0, qb, kb) + r}, v{TMP[r % 2]}", e0, dl))
            return out
        T0 = [128 + 2 * q for q in range(4)]
        dl = 29
        I = mask_ops(0, 20, dl)
        for q in range(4):
            b = Sreg(0, q, 0)
            I += [Op(f"v_max3_f32 v{T0[q]}, v{b}, v{b + 1}, v{b + 2}", 20, dl), Op(f"v_max_f32 v{T0[q]}, v{T0[q]}, v{b + 3}", 20, dl)]
        for sw in ("v_permlane32_swap_b32", "v_permlane16_swap_b32"):
            I += [Op(f"v_mov_b32 v{T0[q] + 1}, v{T0[q]}", 20, dl) for q in range(4)]
            I += [Op(f"{sw} v{T0[q]}, v{T0[q] + 1}", 20, dl) for q in range(4)]
            I += [Op(f"v_max_f32 v{T0[q]}, v{T0[q]}, v{T0[q] + 1}", 20, dl) for q in range(4)]
        for q in range(4): I += [Op(f"v_sub_f32 v{NEGM(q) + r}, 0, v{T0[q]}", 20, dl) for r in range(4)]
        post = []
        for kb in range(2):
            if kb: I += mask_ops(1, 36, 63)
            for q in range(4): I += [Op(f"v_sub_f32 v{Sreg(0, q, kb) + r}, v{Sreg(0, q, kb) + r}, v{T0[q]}", 36 if kb else 20, 63) for r in range(4)]
        first = True
        for kb in range(1, 4):
            ops = mask_ops(kb, 16 * kb + 20, 63) if kb > 1 else []
            for q in range(4):
                b = Sreg(0, q, kb)
                ops.append(Op(f"v_max_f32 v{MX[0]}, v{b}, v{b + 1}" if first else f"v_max3_f32 v{MX[0]}, v{MX[0]}, v{b}, v{b + 1}", 16 * kb + 20, 63)); first = False
                ops.append(Op(f"v_max3_f32 v{MX[0]}, v{MX[0]}, v{b + 2}, v{b + 3}", 16 * kb + 20, 63))
            if kb < 3: I += ops
            else: post = [o.t for o in ops]
        print("qk0", schedule(S, [c1, m1, SU, SS, I], 0, 63), S.report("qk0")[:140])
        q = Prog()
        q.wait_lgkm(("K0", 0))
        q.extend(S.items())
        q.wait_vm(("kv", 1, 0))
        q("s_barrier")
        for ins in tail_reads(VCUR, 32768): q(ins)
        q("buffer_load_dword v250, v252, s[4:7], s50 offen", "pf")
        q("buffer_load_dword v251, v252, s[12:15], s50 offen", "pf")
        for k in range(4): q(f"buffer_load_dwordx4 v240, s[16:19], s54 offen offset:{k * 1024}{KSC} lds", "kv")
        q("s_mov_b32 m0, s53")
        for x in post: q(x)
        q(f"v_cmp_lt_f32 vcc, s{S_THR}, v{MX[0]}")
        q(f"s_waitcnt lgkmcnt({NPRE - 1})")
        return [i.t for i in resolve(gemm_items + q.items)][n_gemm:]
    pro = [i.t for i in resolve(gemm_items)]

    stubs = []
    def check(site, par, dual):
        stubs.append((site, par, dual))
        return [f"s_cbranch_vccnz L_stub_{site}", f"L_ret_{site}:"]
    def it_odd(name, tq, tp, masked, **kw):
        return gen_iter(name, tq, tp, 0, masked, 0, VCUR, 0, VPREV, 49152, VCUR, 32768, end_ops=check(name, 0, tq == "D"), **kw)
    def it_even(name, tq, tp, masked, extra_end=(), first_pv=False, **kw):
        if first_pv: kw["vmn"] = 10
        return gen_iter(name, tq, tp, 1, masked, 1, VCUR, 32768, VCUR, 16384, VPREV, 0, first_pv=first_pv,
                        end_ops=check(name, 1, tq == "D") + list(extra_end[2:]), swap=True, mid_ops=extra_end[:2], **kw)
    seg = {}
    seg["G"] = pro
    for m in (False, True):
        nm = "m" if m else "u"
        seg["P" + nm] = gen_qk0(m) + check("qk0" + nm, 0, True) + it_even("it0" + nm, "D", "D", m, first_pv=True, salu=sa)
    seg["UDD"] = it_odd("uddA", "D", "D", False) + it_even("uddB", "D", "D", False, ["s_sub_u32 s24, s24, 1", "s_cmp_lg_u32 s24, 0", "s_cbranch_scc1 L_udd"])
    seg["UDDm"] = it_odd("uddmA", "D", "D", True) + it_even("uddmB", "D", "D", True)
    seg["UDS"] = it_odd("udsA", "S", "D", False) + it_even("udsB", "S", "S", False)
    seg["UDSm"] = it_odd("udsmA", "S", "D", True) + it_even("udsmB", "S", "S", True)
    seg["USS"] = it_odd("ussA", "S", "S", False) + it_even("ussB", "S", "S", False, ["s_sub_u32 s24, s24, 1", "s_cmp_lg_u32 s24, 0", "s_cbranch_scc1 L_uss"])
    gp = gpre()
    fake = lambda tag, n: [Ins("buffer_load_dwordx4 v240, s[16:19], s55 offen lds", tag) for _ in range(n)]
    seg["USSm"] = it_odd("ussmA", "S", "S", True, extra=gp[:12], vmn="need", raw=fake("need", 4) + fake("x", 12)) + \
                  it_even("ussmB", "S", "S", True, extra=gp[12:], vmn="need", raw=fake("need", 4) + fake("x", 4 + 12))
    seg["E"], tail_slow = gen_tail()
    seg["EE"] = gen_early_epi()
    HC = ["v_cmp_ne_u32 vcc, 1, v207", "s_nop 0"]
    gpl = []
    for pre, ins, tag in gp: gpl += list(pre) + [ins]
    hpub = [f"buffer_store_dword v249, v248, s[20:23], s98 offen{STF}"]

    out = list(seg["G"])
    out += ["s_cmp_eq_u32 s30, 0", "s_cbranch_scc1 L_pm"] + seg["Pu"]
    if DIAG and not DIAG2: out.append(stamp(9).t)
    out += hpub + ["s_sub_u32 s24, s30, 1", "s_cmp_eq_u32 s24, 0", "s_cbranch_scc1 L_uddm"]
    out += [".p2align 3", "L_udd:"] + seg["UDD"]
    out += ["L_uddm:"] + seg["UDDm"]
    out += ["s_cmp_eq_u32 s30, 7", "s_cbranch_scc1 L_last7"]
    out += ["L_uds:"] + seg["UDS"] + seg["EE"]
    out += ["s_lshl_b32 s24, s30, 1", "s_sub_u32 s24, 13, s24"]
    out += [".p2align 3", "L_uss:"] + seg["USS"]
    out += ["s_waitcnt vmcnt(16)"] + HC + ["s_cbranch_vccnz L_hwait", "L_hok:"] + seg["USSm"]
    out += ["L_fin:"] + seg["E"]
    out += ["L_f_end:", "s_endpgm"]
    out += ["L_pm:"] + seg["Pm"] + ([stamp(9).t] if DIAG and not DIAG2 else []) + hpub + ["s_branch L_uds"]
    out += ["L_last7:", HPOLL] + seg["UDSm"] + seg["EE"][:-1] + ["s_waitcnt vmcnt(32)"] + HC + ["s_cbranch_vccnz L_h2wait", "L_h2ok:"] + gpl + ["s_branch L_fin"]
    out += spin("h", HPOLL, HC[0]) + spin("h2", HPOLL, HC[0])
    out += tail_slow
    out += ["L_xnwait:", "s_mov_b32 s44, 0x40000", "L_xnspin:", "s_sub_u32 s44, s44, 1", "s_cbranch_scc1 L_xnok", "s_sleep 2",
            "buffer_load_dword v244, v243, s[24:27], 0 offen offset:128 sc1", "s_waitcnt vmcnt(0)",
            "v_cmp_gt_u32 vcc, 16, v244", "s_cbranch_vccnz L_xnspin", "s_branch L_xnok"]
    out += ["L_kvwait:", "s_mov_b32 s44, 0x40000", "L_kvspin:", "s_sub_u32 s44, s44, 1", "s_cbranch_scc1 L_kvok", "s_sleep 2",
            "buffer_load_dword v244, v243, s[20:23], s59 offen sc1", "s_waitcnt vmcnt(0)",
            "v_cmp_ne_u32 vcc, 1, v244", "s_cbranch_vccnz L_kvspin", "s_branch L_kvok"]
    for site, par, dual in stubs:
        out += [f"L_stub_{site}:", f"s_call_b64 s[62:63], L_rare_{par}{'d' if dual else 's'}", f"s_branch L_ret_{site}"]
    for par in range(2):
        for dual in (True, False):
            out += [f"L_rare_{par}{'d' if dual else 's'}:"] + gen_rare(par, [0, 1, 2, 3] if dual else [0, 1])
    for path in (["G", "Pu", "UDD", "UDD", "UDDm", "UDS", "EE", "USS", "USS", "USSm", "E"], ["G", "Pm", "UDS"], ["UDDm", "UDSm", "EE", "E"]):
        tx = []
        for k in path: tx += seg[k]
        for e in lint(tx, "f")[:40]: print(e)
    return out

KVPUB = int(os.environ.get("KVPUB", "23"))
STPV = float(os.environ.get("STPV", "26"))
STP = float(os.environ.get("STP", "29"))
STPK1 = float(os.environ.get("STPK1", "50"))
VW0 = int(os.environ.get("VW0", "350"))
WP = int(os.environ.get("WP", "14"))
XNC = int(os.environ.get("XNC", "640"))
CPF = int(os.environ.get("CPF", "1"))
if __name__ == "__main__":
    print(len(gen_f_kernel()))
```

```python
from asmlib import *
from sched16 import *
import math, os, re
MF = "v_mfma_f32_16x16x32_bf16"
KNAME = "recurrent_scan__compressed_kv_cla__glu_gated_geglu__prompt_kernel"
WSB = int(os.environ.get("WSB", "0"), 0)
WS_XN = WSB + 0x0
WS_KV = WSB + 0x200000
WS_ACT = WSB + 0x2200000
WS_PART = WSB + 0x4000000
WS_FLAG = WSB + 0x5000000
ACT_ROW = 184 * 1024
LOG2E = 1.4426950408889634
KSCALE = LOG2E / math.sqrt(128.0)
BIG = 2.0 ** 100
THR = float(os.environ.get("THR", "40"))
STF = " sc1"
BYTEF = int(os.environ.get("BYTEF", "0"))
XPOLL = "buffer_load_dword v244, v243, s[4:7], 0 offen" + " sc1"
XSH = int(os.environ.get("XSH", "4"))
XCMP = "v_cmp_ne_u32 vcc, 0x01010101, v244" if BYTEF else "v_cmp_gt_u32 vcc, 16, v244"
XPL = int(os.environ.get("XPL", "418"))
VWP = int(os.environ.get("VWP", "14"))
GPW = int(os.environ.get("GPW", "7"))
ASC = os.environ.get("ASC", " sc1")
XSC = os.environ.get("XSC", " sc1")
KSC = os.environ.get("KSC", " sc1")
NT = os.environ.get("NT", " nt")
NTV = os.environ.get("NTV", "")
PFA = int(os.environ.get("PFA", "1"))
PFW = os.environ.get("PFW", "vgq")
NTD = os.environ.get("NTD", "")
NTA = " nt" if "a" in NTD else ""
ALEAD = int(os.environ.get("ALEAD", "2"))
EARLY = int(os.environ.get("EARLY", "0"))
OPF = int(os.environ.get("OPF", "0"))
WSB = int(os.environ.get("WSB", "0"), 0)
DIAG4 = bool(os.environ.get("DIAG4"))
st4 = lambda k: [stamp(k).t] if DIAG4 else []
LEADP = int(os.environ.get("LEADP", "14"))
GBS_ = int(os.environ.get("GBS_", "20"))
GBD_ = int(os.environ.get("GBD_", "22"))
DIAG3 = bool(os.environ.get("DIAG3"))
DIAG2 = [int(x) for x in os.environ.get("DIAG2", "").split(",") if x]
def vr(b, n=4): return f"v[{b}:{b + n - 1}]"
def ar(b, n=4): return f"a[{b}:{b + n - 1}]"
def srd(p, d, lo, size):
    p(f"s_mov_b32 s{d}, s{lo}")
    p(f"s_mov_b32 s{d + 1}, s{lo + 1}")
    p(f"s_mov_b32 s{d + 2}, {size:#x}")
    p(f"s_mov_b32 s{d + 3}, 0x20000")

def wave_reduce(p, regs_):
    steps = ["quad_perm:[1,0,3,2] row_mask:0xf bank_mask:0xf", "quad_perm:[2,3,0,1] row_mask:0xf bank_mask:0xf",
             "row_half_mirror row_mask:0xf bank_mask:0xf", "row_mirror row_mask:0xf bank_mask:0xf",
             "row_bcast:15 row_mask:0xa bank_mask:0xf", "row_bcast:31 row_mask:0xc bank_mask:0xf"]
    for st in steps:
        p("s_nop 1")
        for r in regs_: p(f"v_add_f32_dpp v{r}, v{r}, v{r} {st}")
    p("s_nop 1")
def round_bf16(p, dst, src):
    p(f"v_cvt_pk_bf16_f32 v{dst}, v{src}, v{src}")
    p(f"v_and_b32 v{dst}, 0xffff0000, v{dst}")

def emit_ln(p):
    for r in range(2):
        for k in range(4):
            p(f"v_lshlrev_b32 v{8 + 8 * r + 2 * k}, 16, v{4 * r + k}")
            p(f"v_and_b32 v{9 + 8 * r + 2 * k}, 0xffff0000, v{4 * r + k}")
    for r in range(2):
        b = 8 + 8 * r
        p(f"v_add_f32 v{24 + r}, v{b}, v{b + 1}")
        for k in range(2, 8): p(f"v_add_f32 v{24 + r}, v{24 + r}, v{b + k}")
    wave_reduce(p, [24, 25])
    p("v_readlane_b32 s58, v24, 63")
    p("v_readlane_b32 s59, v25, 63")
    p(f"v_mov_b32 v30, {f2u(1.0 / 512):#x}")
    p("s_nop 1")
    for r in range(2): p(f"v_mul_f32 v{26 + r}, s{58 + r}, v30")
    for r in range(2):
        b = 8 + 8 * r
        for k in range(8): p(f"v_sub_f32 v{32 + k}, v{b + k}, v{26 + r}")
        p(f"v_mul_f32 v{24 + r}, v32, v32")
        for k in range(1, 8): p(f"v_fmac_f32 v{24 + r}, v{32 + k}, v{32 + k}")
    wave_reduce(p, [24, 25])
    p("v_readlane_b32 s58, v24, 63")
    p("v_readlane_b32 s59, v25, 63")
    p("s_nop 1")
    for r in range(2):
        p(f"v_mul_f32 v{28 + r}, s{58 + r}, v30")
        round_bf16(p, 28 + r, 28 + r)
        p(f"v_add_f32 v{28 + r}, {f2u(1e-5):#x}, v{28 + r}")
        round_bf16(p, 28 + r, 28 + r)
        p(f"v_sqrt_f32 v{28 + r}, v{28 + r}")
        p("s_nop 0")
        round_bf16(p, 28 + r, 28 + r)
        p(f"v_rcp_f32 v{28 + r}, v{28 + r}")
        round_bf16(p, 26 + r, 26 + r)
    for r in range(2):
        b = 8 + 8 * r
        for k in range(8): p(f"v_sub_f32 v{b + k}, v{b + k}, v{26 + r}")
        for k in range(4): p(f"v_cvt_pk_bf16_f32 v{32 + k}, v{b + 2 * k}, v{b + 2 * k + 1}")
        for k in range(4):
            p(f"v_lshlrev_b32 v{b + 2 * k}, 16, v{32 + k}")
            p(f"v_and_b32 v{b + 2 * k + 1}, 0xffff0000, v{32 + k}")
        for k in range(8): p(f"v_mul_f32 v{b + k}, v{b + k}, v{28 + r}")
        for k in range(4): p(f"v_cvt_pk_bf16_f32 v{40 + 4 * r + k}, v{b + 2 * k}, v{b + 2 * k + 1}")

def ln_ops(g0, g1):
    p = Prog(); emit_ln(p)
    ops = []; lag = False
    for it in p.items:
        t = it.t
        if t.startswith("s_nop"): lag = True; continue
        t = re.sub(r"\bv(\d+)\b", lambda m: "v%d" % (int(m.group(1)) + 176 if int(m.group(1)) < 8 else int(m.group(1)) + 128), t)
        ops.append(Op(t, g0, g1, [ops[-1]] if lag else [], lag=2)); lag = False
    return ops

def Sreg(par, qb, kb): return par * 64 + qb * 16 + kb * 4
def Preg(qb, s): return 128 + qb * 8 + s * 4
def NEGM(qb): return 160 + 4 * qb
def LACC(qb): return 176 + 4 * qb
ONES = 192
MX = [196, 197]; VTM = 198; VTMASK = 199; VCUR, VPREV = 200, 201; TMP = [202, 203, 204, 205]
def Qreg(qb, t): return (t // 2) * 64 + qb * 8 + (t % 2) * 4
def Oreg(qb, db): return [32, 96, 128, 160][qb] + db * 4
def Fbuf(f): return 192 + (f % 16) * 4
S_THR = 61
NPRE = int(os.environ.get("NPRE", "8"))

def tail_reads(base_reg, off):
    return [f"ds_read_b128 {ar(Fbuf(f))}, v{base_reg} offset:{off + f * 1024}" for f in range(NPRE)]

QSET = {'D': [0, 1, 2, 3], 'S': [0, 1], 'D1': [0, 1, 3], 'S1': [1]}
def gen_iter(name, tq, tp, parq, masked, odd_q, kreg, koff, vreg, voff, nreg, noff, first_pv=False, end_ops=(), swap=False, mid_ops=(), vmn=16, extra=None, raw=False, salu=(), xops=()):
    qq = QSET[tq]
    qp = QSET[tp]
    parp = 1 - parq
    mf = []; use = {}; lastq = {}; lastuse = {}
    for kb in range(4):
        for t in range(4):
            f = kb * 4 + t
            use[f] = len(mf)
            for qb in qq:
                d = Sreg(parq, qb, kb)
                mf.append(f"{MF} {vr(d)}, {ar(Fbuf(f))}, {ar(Qreg(qb, t))}, {vr(NEGM(qb)) if t == 0 else vr(d)}")
                lastq[(qb, kb)] = len(mf) - 1
            lastuse[f] = len(mf) - 1
    firstp = {}
    for s in range(2):
        for db in range(8):
            f = 16 + s * 8 + db
            use[f] = len(mf)
            for qb in qp:
                o = Oreg(qb, db)
                firstp.setdefault((qb, s), len(mf))
                mf.append(f"{MF} {ar(o)}, {ar(Fbuf(f))}, {vr(Preg(qb, s))}, {0 if (first_pv and s == 0) else ar(o)}")
            lastuse[f] = len(mf) - 1
        for qb in qp:
            mf.append(f"{MF} {vr(LACC(qb))}, {vr(ONES)}, {vr(Preg(qb, s))}, {0 if (first_pv and s == 0) else vr(LACC(qb))}")
    n = len(mf)
    S = Sched16(mf)
    gB = n - (GBS_ if len(qp) == 2 else GBD_)
    LEAD = LEADP
    for f in range(32):
        tag = ("F", "n", f) if f < NPRE else ("F", "c", f)
        if use[f] > 0: S.add_first(use[f] - 1, Wait("lgkm", tag))
    if isinstance(vmn, int): S.add_first(gB, Ins(f"s_waitcnt vmcnt({vmn}) lgkmcnt(0)"))
    else:
        S.add_first(gB, Ins("s_waitcnt lgkmcnt(0)")); S.add_first(gB + 1, Wait("vm", vmn))
    S.add_first(gB + 1, "s_barrier")
    S.add_first(n - 1, Wait("lgkm", ("F", "x", 0)))
    R = []
    todo = list(range(NPRE, 32))
    for k, f in enumerate(todo):
        e = lastuse[f - 16] if f >= 16 else 0
        dl = min(use[f] - LEAD + 4, gB - 5 - (31 - f))
        e = max(e, min(use[f] - LEAD - 8, dl - 4), 0)
        dl = max(dl, e)
        assert dl < use[f] - 1, (name, f, dl, e)
        if f < 16: ins = f"ds_read_b128 {ar(Fbuf(f))}, v{kreg} offset:{koff + f * 1024}"
        else: ins = f"ds_read_b128 {ar(Fbuf(f))}, v{vreg} offset:{voff + (f - 16) * 1024}"
        R.append(Op(ins, max(e, 0), max(dl, 0), tag=("F", "c", f)))
    for f, ins in enumerate(tail_reads(nreg, noff)):
        R.append(Op(ins, max(gB + 1, lastuse[f + 16]), min(n - 2, gB + 3 + 2 * f), tag=("F", "x", f)))
    D = []
    span = gB - 8
    for q in range(4):
        D.append(Op(f"buffer_load_dwordx4 v240, s[16:19], s55 offen offset:{q * 1024}{KSC} lds", 2 + q * span // 4, 2 + (q + 1) * span // 4 - 1, tag="kv"))
    for x in ["s_add_u32 s54, s54, 0x8000", "s_add_u32 s52, s52, 0x8000", "s_and_b32 s52, s52, 0x1ffff", "s_mov_b32 m0, s52"]:
        D.append(Op(x, 0, gB))
    tl = n - 3 - (gB + 1)
    for q in range(4):
        D.append(Op(f"buffer_load_dwordx4 v240, s[16:19], s54 offen offset:{q * 1024}{KSC} lds", gB + 1 + q * tl // 4, gB + 1 + (q + 1) * tl // 4, tag="kv"))
    D.append(Op("s_mov_b32 m0, s53", 0, n - 1))
    if extra is not None:
        D = []
        nv = len(extra)
        for i, (pre, ins, tag) in enumerate(extra):
            for x in pre: D.append(Op(x, 0, n - 3))
            D.append(Op(ins, 1 + i * (n - 6) // nv, 1 + (i + 1) * (n - 6) // nv + 2, tag=tag, deps=[D[-1]] if pre else []))
    E = []; C = []
    for s in range(2):
        for qb in qp:
            b = Sreg(parp, qb, 2 * s)
            dl = firstp[(qb, s)] - 2
            es = [Op(f"v_exp_f32 v{b + r}, v{b + r}", 0, dl - 1) for r in range(8)]
            E += es
            C += [Op(f"v_cvt_pk_bf16_f32 v{Preg(qb, s) + k}, v{b + 2 * k}, v{b + 2 * k + 1}", 0, dl, [es[2 * k], es[2 * k + 1]]) for k in range(4)]
    M = []
    vals = []
    mq = [qq[-1] if odd_q else qq[-2]]
    first = True
    for kb in range(4):
        for qb in qq:
            b = Sreg(parq, qb, kb)
            e0 = lastq[(qb, kb)] + (5 if len(qq) > 1 else 8)
            if masked and qb in mq:
                for r in range(4):
                    kk = 16 * kb + r
                    tm = TMP[r % 2]
                    M.append(Op(f"v_subrev_f32 v{tm}, {f2u(kk * BIG):#x}, v{VTMASK}", 0, n - 3))
                    M.append(Op(f"v_min_f32 v{b + r}, v{b + r}, v{tm}", e0, n - 3))
            if first:
                M.append(Op(f"v_max_f32 v{MX[0]}, v{b}, v{b + 1}", e0, n - 3)); first = False
            else:
                M.append(Op(f"v_max3_f32 v{MX[0]}, v{MX[0]}, v{b}, v{b + 1}", e0, n - 3))
            M.append(Op(f"v_max3_f32 v{MX[0]}, v{MX[0]}, v{b + 2}, v{b + 3}", e0, n - 3))
    M.append(Op(f"v_cmp_lt_f32 vcc, s{S_THR}, v{MX[0]}", 0, n - 2))
    X = []
    if swap:
        X = [Op(f"v_xor_b32 v{VCUR}, 0x10000, v{VCUR}", gB, n - 1), Op(f"v_xor_b32 v{VPREV}, 0x10000, v{VPREV}", gB, n - 1, [R[-1]])]
    XO = []
    for i, x in enumerate(xops):
        prev_trans = XO and XO[-1].t.startswith(TRANS)
        XO.append(Op(x, 5 + (i * (n - 12)) // len(xops), min(n - 2, 5 + (i * (n - 12)) // len(xops) + 4), tag="xo"))
    k = schedule(S, [R, D, E, C, M, X, XO], 0, n - 1, name=name)
    if extra is None:
        g = D[7].g + 1
        for x in ["s_add_u32 s55, s55, 0x8000", "s_add_u32 s53, s53, 0x8000", "s_and_b32 s53, s53, 0x1ffff"] + list(mid_ops):
            while S.first[g]: g += 1
            S.add_first(g, x); g += 1
        assert g <= D[-1].g, (name, g, D[-1].g)
    g = 0
    for x in salu:
        while S.first[g]: g += 1
        for y in (x if isinstance(x, list) else [x]): S.add_first(g, y)
        g += 1
    for x in end_ops: S.add_last(n - 1, x)
    print(S.report(f"{name}(k={k})"))
    pre = [Ins(f"ds_read_b128 {ar(Fbuf(f))}, v0", ("F", "n", f)) for f in range(NPRE)] + [Wait("lgkm", ("F", "n", 0))]
    if raw: pre = list(raw) + pre
    return [i.t for i in resolve(S.items(), pre)]

def allreduce4(p, op, src, t0, t1):
    p(f"v_mov_b32 v{t0}, v{src}")
    p(f"v_mov_b32 v{t1}, v{src}")
    p("s_nop 1")
    p(f"v_permlane32_swap_b32 v{t0}, v{t1}")
    p("s_nop 1")
    p(f"{op} v{t0}, v{t0}, v{t1}")
    p(f"v_mov_b32 v{t1}, v{t0}")
    p("s_nop 1")
    p(f"v_permlane16_swap_b32 v{t0}, v{t1}")
    p("s_nop 1")
    p(f"{op} v{t0}, v{t0}, v{t1}")

def rowmax(p, par, qb):
    b = Sreg(par, qb, 0)
    p(f"v_max3_f32 v{MX[1]}, v{b}, v{b + 1}, v{b + 2}")
    for k in range(3, 15, 2): p(f"v_max3_f32 v{MX[1]}, v{MX[1]}, v{b + k}, v{b + k + 1}")
    p(f"v_max_f32 v{MX[1]}, v{MX[1]}, v{b + 15}")
    allreduce4(p, "v_max_f32", MX[1], TMP[0], TMP[1])

def gen_rare(par, qbs):
    p = Prog()
    p("s_nop 15")
    for qb in qbs:
        rowmax(p, par, qb)
        p(f"v_max_f32 v{TMP[0]}, 0, v{TMP[0]}")
        p(f"v_sub_f32 v{TMP[1]}, 0, v{TMP[0]}")
        p(f"v_exp_f32 v{TMP[1]}, v{TMP[1]}")
        for r in range(4): p(f"v_sub_f32 v{NEGM(qb) + r}, v{NEGM(qb) + r}, v{TMP[0]}")
        for r in range(16): p(f"v_sub_f32 v{Sreg(par, qb, 0) + r}, v{Sreg(par, qb, 0) + r}, v{TMP[0]}")
        for r in range(4): p(f"v_mul_f32 v{LACC(qb) + r}, v{LACC(qb) + r}, v{TMP[1]}")
        for r in range(0, 32, 2):
            a = Oreg(qb, 0) + r
            p(f"v_accvgpr_read_b32 v{TMP[2]}, a{a}")
            p(f"v_accvgpr_read_b32 v{TMP[3]}, a{a + 1}")
            p(f"v_mul_f32 v{TMP[2]}, v{TMP[2]}, v{TMP[1]}")
            p(f"v_mul_f32 v{TMP[3]}, v{TMP[3]}, v{TMP[1]}")
            p(f"v_accvgpr_write_b32 a{a}, v{TMP[2]}")
            p(f"v_accvgpr_write_b32 a{a + 1}, v{TMP[3]}")
    p("s_nop 1")
    p("s_setpc_b64 s[62:63]")
    return [i.t for i in p.items]


GPUB = int(os.environ.get("GPUB", "16"))
OB = int(os.environ.get("OB", "2"))
GB2 = int(os.environ.get("GB2", "1"))
GPOLL = int(os.environ.get("GPOLL", "20"))
CPUB = int(os.environ.get("CPUB", "2"))
CTXPF = int(os.environ.get("CTXPF", "0"))
PUB0 = int(os.environ.get("PUB0", "8"))
PUBP = int(os.environ.get("PUBP", "12"))
LST = int(os.environ.get("LST", "8"))
LSP = int(os.environ.get("LSP", "10"))
CPOLL = int(os.environ.get("CPOLL", "100"))
CCHK = int(os.environ.get("CCHK", "136"))
def spin(name, load, cmp):
    return [f"L_{name}wait:", "s_mov_b32 s44, 0x40000", f"L_{name}spin:", "s_sub_u32 s44, s44, 1", f"s_cbranch_scc1 L_{name}ok", "s_sleep 1",
            load, "s_waitcnt vmcnt(0)", cmp, f"s_cbranch_vccnz L_{name}spin", f"s_branch L_{name}ok"]

def o_epi(qb, scr, pk):
    out = []
    for t in range(4):
        R = scr(t); P = pk(t)
        a = Oreg(qb, 2 * t)
        ops = [f"v_rcp_f32 v{TMP[qb]}, v{LACC(qb)}"] if t == 0 else []
        ops += [f"v_accvgpr_read_b32 v{R + k}, a{a + k}" for k in range(8)]
        ops += [f"v_mul_f32 v{R + k}, v{R + k}, v{TMP[qb]}" for k in range(8)]
        ops += [f"v_cvt_pk_bf16_f32 v{P + k}, v{R + 2 * k}, v{R + 2 * k + 1}" for k in range(4)]
        out.append((ops, f"buffer_store_dwordx4 {vr(P)}, v{240 if qb % 2 == 0 else 246}, s[20:23], s{100 + qb // 2} offen offset:{t * 1024}{STF}"))
    return out

NK = 46; NC = 23
SL = [8, 9, 0, 1, 2, 3, 4, 5]
def wofs(n): return SL[(n // 2) % 8] * 16384 + (n % 2) * 8192
def areg(n): return 128 + (n % 8) * 8 if (n % 16) < 8 else (n % 4) * 8 + (64 if (n % 8) >= 4 else 0)
def w_ops(n):
    gp = n < 14
    j = n if gp else n - 14
    pre = [f"s_add_u32 m0, s50, {wofs(n)}", f"s_add_u32 s58, s{48 if gp else 49}, {j * 32768}"]
    wsrd = "s[12:15]" if gp else "s[8:11]"
    return [(pre, f"buffer_load_dwordx4 v242, {wsrd}, s58 offen lds", ("cw", n // 2)),
            ([], f"buffer_load_dwordx4 v243, {wsrd}, s58 offen offset:1024 lds", ("cw", n // 2))]
def a_ops(n):
    gp = n < 14
    j = n if gp else n - 14
    pre = [f"s_add_u32 s59, s{64 if gp else 65}, {j * 1024}"] if j % 2 == 0 else []
    return [(pre, f"buffer_load_dwordx4 {ar(areg(n))}, v240, s[20:23], s59 offen offset:{(j % 2) * 1024}{ASC}", ("ca", n // 2)),
            ([], f"buffer_load_dwordx4 {ar(areg(n) + 4)}, v246, s[20:23], s59 offen offset:{(j % 2) * 1024}{ASC}", ("ca", n // 2))]
def chunk(ch, w=True, a=True):
    return (w_ops(2 * ch) + w_ops(2 * ch + 1) if w else []) + (a_ops(2 * ch) + a_ops(2 * ch + 1) if a else [])
KEEP = 6 * 16384
GB = [36, 37, 41]

def tail_setup():
    sa = ["s_lshr_b32 s35, s34, 1", "s_sub_u32 s31, 15, s30", ["s_bitcmp1_b32 s34, 0", "s_cselect_b32 s31, s31, s30"], "s_and_b32 s45, s29, 3",
          "s_lshl_b32 s46, s31, 3", "s_add_u32 s46, s46, s28", f"s_mul_i32 s46, s46, {ACT_ROW}",
          f"s_add_u32 s46, s46, {WS_ACT:#x}", f"s_mul_i32 s47, s35, {14 * 1024}", "s_add_u32 s64, s46, s47", f"s_add_u32 s64, s64, {128 * 1024}",
          "s_lshl_b32 s47, s35, 15", "s_add_u32 s65, s46, s47",
          "s_lshl_b32 s46, s45, 8", "s_lshl_b32 s47, s28, 13", "s_add_u32 s46, s46, s47", f"s_mul_i32 s47, s35, {14 * 32 * 1024}",
          "s_add_u32 s48, s46, s47", "s_lshl_b32 s47, s35, 20", "s_add_u32 s49, s46, s47", "s_lshl_b32 s50, s28, 11",
          "s_mov_b32 s8, s4", "s_mov_b32 s9, s5", "s_mov_b32 s12, s96", "s_mov_b32 s13, s97", f"s_mov_b32 s14, {1792 * 1024}",
          "s_and_b32 s46, s34, 1", "s_lshl_b32 s46, s46, 2", "s_add_u32 s3, s99, s46", "s_lshl_b32 s46, s35, 13", "s_add_u32 s3, s3, s46",
          "s_lshl_b32 s51, s31, 2", "s_add_u32 s51, s51, s45", "s_lshl_b32 s56, s51, 18", f"s_add_u32 s56, s56, {WS_PART:#x}",
          "s_lshl_b32 s46, s28, 16", "s_lshl_b32 s47, s35, 13", "s_add_u32 s40, s56, s46", "s_add_u32 s40, s40, s47",
          "s_lshl_b32 s46, s35, 16", "s_add_u32 s56, s56, s46", "s_add_u32 s56, s56, s50", f"s_mov_b32 s58, {KEEP + 16384}",
          ["s_cmp_eq_u32 s28, s35", "s_cselect_b32 s40, 0x7ff00000, s40", f"s_cselect_b32 s58, {KEEP}, s58"]]
    for k in range(3): sa += [f"s_add_u32 s46, s35, {k + 1}", "s_and_b32 s46, s46, 3", "s_lshl_b32 s46, s46, 13", f"s_add_u32 s{GB[k]}, s56, s46"]
    sa += ["s_lshl_b32 s94, s51, 9", f"s_add_u32 s94, s94, {WS_FLAG:#x}", "s_lshl_b32 s46, s35, 7", "s_add_u32 s95, s94, s46",
           "s_lshl_b32 s46, s31, 17", "s_lshl_b32 s47, s35, 14", "s_add_u32 s46, s46, s47", "s_lshl_b32 s47, s45, 8", "s_add_u32 s46, s46, s47",
           "s_lshl_b32 s47, s28, 6", "s_add_u32 s57, s46, s47", "s_lshl_b32 s46, s29, 12", "s_add_u32 s100, s46, s32", "s_add_u32 s101, s46, s33"]
    va = ["v_lshrrev_b32 v244, 4, v254", "v_and_b32 v245, 15, v254", "v_lshlrev_b32 v243, 1, v244", "v_xor_b32 v245, v245, v243",
          "v_lshlrev_b32 v244, 10, v244", "v_lshl_add_u32 v242, v245, 4, v244", "v_xor_b32 v243, 0x80, v242", f"v_add_u32 v243, {4096 - 1024}, v243",
          "v_lshrrev_b32 v244, 2, v254", "v_and_b32 v245, 7, v244", "v_lshlrev_b32 v244, 8, v244", "v_and_b32 v241, 3, v254", "v_lshl_add_u32 v244, v241, 3, v244"]
    for c in range(8):
        va += [f"v_xor_b32 v241, {c}, v245", f"v_lshl_add_u32 v{208 + c}, v241, 5, v244", f"v_add_u32 v{216 + c}, 0x10000, v{208 + c}", f"v_add_u32 v{224 + c}, 0x20000, v{208 + c}"]
    va += ["v_lshl_add_u32 v237, v255, 11, v240", f"v_add_u32 v237, {KEEP}, v237",
           "v_and_b32 v247, 3, v254", "v_lshlrev_b32 v247, 7, v247", "v_and_b32 v244, 15, v254", "v_lshlrev_b32 v244, 10, v244",
           "v_lshrrev_b32 v245, 4, v254", "v_lshl_add_u32 v238, v245, 3, v244", "v_add_u32 v239, 0x10000, v238"]
    va += [f"v_mov_b32 v{232 + k}, -1" for k in range(4)]
    return sa, va
HPOLL = "buffer_load_dword v207, v206, s[20:23], s99 offen sc1"
def gpre(): return chunk(0) + chunk(1) + chunk(2, w=False) + chunk(3, w=False)

def opf():
    if not OPF: return []
    return ["s_lshr_b32 s56, s2, 3", "s_lshl_b32 s56, s56, 2", "s_add_u32 s56, s56, s28", "s_lshr_b32 s57, s34, 1",
            f"s_mul_i32 s58, s57, {448 * 1024}", "s_mul_i32 s59, s56, 3584", "s_add_u32 s58, s58, s59",
            "buffer_load_dword v250, v252, s[4:7], s58 offen",
            "s_lshl_b32 s58, s57, 20", "s_lshl_b32 s59, s56, 13", "s_add_u32 s58, s58, s59",
            "buffer_load_dword v251, v253, s[8:11], s58 offen"]

def gen_early_epi():
    out = ["v_add_u32 v236, s58, v240"]
    k8 = 0
    for qb in (2, 3):
        base = 32 if qb == 2 else 96
        for ops, st in o_epi(qb, lambda t: base + 8 * t, lambda t: base + 8 * t):
            out += ops[:10]
            if k8 % 4 == 0: out.append(f"s_add_u32 s60, s40, {32768 + (k8 // 4) * 4096}")
            out.append(f"buffer_store_dwordx4 v[232:235], v240, s[20:23], s60 offen offset:{(k8 % 4) * 1024} sc1")
            out += ops[10:] + [st]
            k8 += 1
    return out + [HPOLL]

def gen_tail():
    p = Prog()
    slow = []
    for f in range(NPRE, 16): p(f"ds_read_b128 {ar(Fbuf(16 + f))}, v{VCUR} offset:{49152 + f * 1024}", ("VE", f))
    b = Sreg(1, 1, 0)
    for r in range(16): p(f"v_exp_f32 v{b + r}, v{b + r}")
    for k in range(8): p(f"v_cvt_pk_bf16_f32 v{Preg(1, 0) + k}, v{b + 2 * k}, v{b + 2 * k + 1}")
    p("v_and_b32 v206, 0x1c00, v206")
    p.wait_vm(("cw", 0))
    p("s_waitcnt lgkmcnt(0)")
    p("s_barrier")
    for x in ["s_mov_b32 s4, s42", "s_mov_b32 s5, s43", "s_mov_b32 s6, 0x200000", "s_mov_b32 s7, 0x20000"]: p(x)
    mf = []
    for s in range(2):
        mf.append(f"{MF} {vr(LACC(1))}, {vr(ONES)}, {vr(Preg(1, s))}, {vr(LACC(1))}")
        for db in range(8): mf.append(f"{MF} {ar(Oreg(1, db))}, {ar(Fbuf(16 + s * 8 + db))}, {vr(Preg(1, s))}, {ar(Oreg(1, db))}")
    p(f"buffer_store_dword v249, v248, s[20:23], s98 offen offset:4{STF}", "flag")
    S = Sched16(mf)
    late = o_epi(0, lambda t: 8 * t, lambda t: 64 + 4 * t) + o_epi(1, lambda t: 32 + 8 * t, lambda t: 80 + 4 * t)
    seq = []
    rest = chunk(2, a=False) + chunk(3, a=False) + chunk(4)
    for i, (ops, st) in enumerate(late):
        seq += [(x, None) for x in ops[:10]]
        if i < 4:
            for pre, ins, tag in rest[i:i + 1]: seq += [(y, None) for y in pre] + [(ins, tag)]
        seq += [(x, None) for x in ops[10:]]
        if i < LST: seq.append((st, "ctxst"))
    vs = tail_setup()[1][8:-4]
    for i, (pre, ins, tag) in enumerate(rest[4:]):
        seq += [(x, None) for x in vs[4 * i:4 * i + 4]] + [(y, None) for y in pre] + [(ins, tag)]
    seq += [(x, None) for x in vs[48:]]
    ne = 0
    for g in range(len(mf)):
        while S.load(g) + cost(seq[ne][0]) <= 2:
            S.add_last(g, Ins(*seq[ne])); ne += 1
    p.extend(S.items())
    if DIAG and not DIAG2: p.items.append(stamp(10))
    for x, tag in seq[ne:]: p(x, tag)
    if DIAG and not DIAG2: p.items.append(stamp(11))
    GO = [(n, c) for n in range(NK - 2) for c in range(8)] + [(n, 2 * cp + cf) for cp in range(4) for n in (NK - 2, NK - 1) for cf in range(2)]
    def w_reads(gi):
        n, c = GO[gi]
        off = wofs(n)
        d = 128 + 4 * (gi % 16)
        return [f"ds_read_b64_tr_b16 v[{d + 2 * hf}:{d + 2 * hf + 1}], v{208 + 8 * (off >> 16) + c} offset:{(off & 0xffff) + hf * 4096}" for hf in range(2)]
    RA = 8
    for gi in range(RA):
        for x in w_reads(gi): p(x, ("W", gi))
    p.wait_vm(("ca", 0))
    p.wait_lgkm(("W", 0))
    mf = []
    for gi, (n, c) in enumerate(GO):
        base = 0 if n < 14 else 64
        first = n in (0, 14)
        for tb in range(2):
            acc = base + ((c >> 1) * 2 + tb) * 8 + (c & 1) * 4
            mf.append(f"{MF} {vr(acc)}, {vr(128 + 4 * (gi % 16))}, {ar(areg(n) + 4 * tb)}, {0 if first else vr(acc)}")
    S = Sched16(mf)
    NG = NK * 8; NM = len(mf)
    BS = [ch for ch in range(NC - 1) if ch % OB == 0]
    def gB(ch): return 32 * ch + 16
    for gi in range(RA, NG):
        ch, k = gi // 16, gi % 16
        g = 2 * (gi - RA)
        if ch in BS and k >= 12: g -= [1, 2, 3, 4][k - 12]
        for x in w_reads(gi): S.add_mem(g, x, ("W", gi))
    for gi in range(1, NG): S.add_first(2 * gi - 1, Wait("lgkm", ("W", gi)))
    assert GPUB in BS and CPUB in BS
    for ch in range(NC - 1):
        if ch in BS:
            S.add_first(gB(ch) - 2, Ins("s_waitcnt lgkmcnt(0)"))
            S.add_first(gB(ch), Wait("vm", [("cw", min(ch + OB, NC - 1))] + (["pub"] if ch == GPUB else []) + (["ctxst"] if ch == CPUB else [])))
            S.add_first(gB(ch), "s_barrier")
        S.add_first(32 * (ch + 1) - 2, Wait("vm", ("ca", ch + 1)))
    def wfree(ch):
        return 0 if ch < 8 else gB(min(x for x in BS if x >= ch - 8)) + 1
    S.add_mem(gB(CPUB) + 1, f"buffer_store_dword v249, v248, s[20:23], s98 offen offset:8{STF}", "flag")
    for i, (ops, st) in enumerate(late[LST:]): S.add_mem(2 + LSP * i, st, "ctxst")
    assert 2 + LSP * (8 - LST) < gB(CPUB)
    LD = []
    def ld(ops, e, pace):
        for i, (pre, ins, tag) in enumerate(ops):
            for x in pre: LD.append(Op(x, e + i * pace - 2, NM - 1))
            LD.append(Op(ins, e + i * pace, NM - 1, tag=tag, deps=[LD[-1]] if pre else []))
    ld(chunk(5), 2, 4); ld(chunk(6), 34, 4)
    nw = 7
    while 64 + 16 * (nw - 7) + 16 <= CCHK and nw < 11:
        ld(chunk(nw, a=False), max(64 + 16 * (nw - 7), wfree(nw)), 4); nw += 1
    S.add_mem(CPOLL, "buffer_load_dword v207, v206, s[20:23], s3 offen offset:4 sc1", "cpoll")
    S.add_first(CCHK, Wait("vm", "cpoll"))
    S.add_valu(CCHK, "v_cmp_ne_u32 vcc, 1, v207")
    S.add_last(CCHK + 1, "s_cbranch_vccnz L_cwait")
    S.add_last(CCHK + 1, "L_cok:")
    slow += spin("c", "buffer_load_dword v207, v206, s[20:23], s3 offen offset:4 sc1", "v_cmp_ne_u32 vcc, 1, v207")
    if CTXPF:
        S.add_valu(40, "v_lshlrev_b32 v252, 7, v254")
        S.add_valu(41, f"v_add_u32 v253, {ACT_ROW}, v252")
        ld(chunk(7, w=False), CCHK + 2, 1)
        ld([(["s_lshl_b32 s60, s45, 13"], "s_add_u32 s60, s60, s65", None), ([], "buffer_load_dword v250, v252, s[20:23], s60 offen sc1", "pf"),
            ([], "buffer_load_dword v251, v253, s[20:23], s60 offen sc1", "pf")], CCHK + 2, 1)
    for ch in range(8 if CTXPF else 7, nw): ld(chunk(ch, w=False), max(CCHK + 2, 32 * (ch - 7)), 1)
    for ch in range(nw, NC): ld(chunk(ch), max(CCHK + 2, 32 * (ch - 6), wfree(ch)), 4 if 32 * (ch - 6) > CCHK + 40 else 2)
    print("tail ld", schedule(S, [LD], 0, NM - 1, base_cap=2), [o.g for o in LD if o.mem][::8])
    def pub(base, kind, g0, g1, pace=0):
        ops = []
        for k8 in range(8):
            R = base + 8 * k8
            if k8 % 4 == 0: ops.append(Op(f"s_add_u32 s60, s40, {kind * 32768 + (k8 // 4) * 4096}", g0, g1))
            cv = [Op(f"v_cvt_pk_bf16_f32 v{R + k}, v{R + 2 * k}, v{R + 2 * k + 1}", g0, g1) for k in range(4)]
            ops += cv
            ops.append(Op(f"buffer_store_dwordx4 {vr(R)}, v240, s[20:23], s60 offen offset:{(k8 % 4) * 1024} sc1", g0 + k8 * pace, g1, [cv[-1]], tag="pub"))
            ops.append(Op(f"ds_write_b128 v236, {vr(R)} offset:{kind * 8192 + k8 * 1024}", g0, g1, tag="own"))
        return ops
    pb = pub(0, 0, 14 * 16 + PUB0, gB(GPUB) - 20, PUBP)
    print('pub', schedule(S, [pb], 14 * 16, NM - 1, base_cap=2), [o.g for o in pb if o.tag == 'pub'])
    S.add_mem(gB(GPUB) + 1, "buffer_store_dword v249, v248, s[20:23], s95 offen offset:4 sc1", "flag")
    gx = 32 * 17 + 21
    for k in range(4):
        S.add_mem(gx + 4 * k, f"buffer_load_dwordx2 v[{192 + 2 * k}:{193 + 2 * k}], v{238 + k // 2}, s[24:27], s57 offen offset:{32 * (k % 2)}", "x")
    gp = 32 * GPOLL
    S.add_mem(gp + 1, "buffer_load_dword v250, v247, s[20:23], s94 offen offset:4 sc1", "gpoll")
    gc = gp + 33
    S.add_first(gc + 1, Wait("vm", "gpoll"))
    S.add_valu(gc + 1, "v_cmp_ne_u32 vcc, 1, v250")
    S.add_last(gc + 2, "s_cbranch_vccnz L_gwait")
    S.add_last(gc + 2, "L_gok:")
    slow += spin("g", "buffer_load_dword v250, v247, s[20:23], s94 offen offset:4 sc1", "v_cmp_ne_u32 vcc, 1, v250")
    for k in range(3):
        for tb in range(2):
            S.add_mem(gc + 4 + 2 * (2 * k + tb), f"buffer_load_dwordx4 {vr(8 * k + 4 * tb)}, v240, s[20:23], s{GB[k]} offen offset:{tb * 1024} sc1", "gg")
    for tb in range(2): S.add_mem(gc + 18, f"ds_read_b128 {vr(24 + 4 * tb)}, v237 offset:{tb * 1024}", "gown")
    ps = pub(64, 1, 0, NM - 1)
    k8 = -1; inside = []
    for o in ps:
        if o.t.startswith("v_cvt") and (int(re.findall(r"v(\d+)", o.t)[0]) - 64) % 8 == 0: k8 += 1
        o.e = NM - 32 + 8 * (max(k8, 0) // 2) + 8 + 5
    inside = [o for o in ps if o.e < NM - 4]
    print("pub s inside", schedule(S, [inside], NM - 32, NM - 1, base_cap=3), len(inside), len(ps))
    for k in range(3): S.add_first(gc + 20 + 2 * k, f"s_add_u32 s{GB[k]}, s{GB[k]}, 32768")
    if DIAG3:
        for k, g in enumerate([0, CCHK, CCHK + 4, 14 * 16, 30 * 16, NM - 1]): S.add_first(g, stamp(2 + k))
    print(S.report("tail")[:400])
    OD = os.environ.get("ODROP", "").split(",")
    def keep(i):
        tg = i.tag if isinstance(i, (Ins, Wait)) else None
        if isinstance(i, Ins):
            if isinstance(tg, tuple) and tg[0] in OD: return False
            if tg in OD and tg: return False
        if isinstance(i, Wait):
            tags = tg if isinstance(tg, list) else [tg]
            tags = [t for t in tags if (t[0] if isinstance(t, tuple) else t) not in OD]
            if not tags: return False
            i.tag = tags
        return True
    p.extend([i for i in S.items() if keep(i)])
    GS = 144
    def gather():
        for k in range(3):
            for tb in range(2):
                p(f"buffer_load_dwordx4 {vr(GS + 8 * k + 4 * tb)}, v240, s[20:23], s{GB[k]} offen offset:{tb * 1024} sc1", "gs")
    p("s_nop 3")
    for o in ps[len(inside):]: p(o.t, o.tag)
    gather()
    def unpack(dst, src, n=8):
        for k in range(n):
            p(f"v_lshlrev_b32 v{dst + 2 * k}, 16, v{src + k}")
            p(f"v_and_b32 v{dst + 2 * k + 1}, 0xffff0000, v{src + k}")
    def rnd(b, T):
        for k in range(0, 16, 2): p(f"v_cvt_pk_bf16_f32 v{T + k // 2}, v{b + k}, v{b + k + 1}")
        unpack(b, T)
    def accum(D, src):
        for k in range(8):
            p(f"v_dot2c_f32_bf16 v{D + 2 * k}, s46, v{src + k}")
            p(f"v_dot2c_f32_bf16 v{D + 2 * k + 1}, s47, v{src + k}")
    p("s_mov_b32 s46, 0x00003f80")
    p("s_mov_b32 s47, 0x3f800000")
    p("s_mov_b32 s44, 0x40000")
    if DIAG3: p.items.append(stamp(8))
    p("s_waitcnt lgkmcnt(0)")
    p("s_barrier")
    for tb in range(2): p(f"ds_read_b128 {vr(168 + 4 * tb)}, v237 offset:{8192 + tb * 1024}", "sown")
    p.wait_vm("gg")
    unpack(32, 24)
    for k in range(3): accum(32, 8 * k)
    p("s_nop 2")
    rnd(32, 48)
    for k in range(16): p(f"v_mul_f32 v{48 + k}, {f2u(-LOG2E):#x}, v{32 + k}")
    for k in range(16): p(f"v_exp_f32 v{48 + k}, v{48 + k}")
    for k in range(16): p(f"v_add_f32 v{48 + k}, 1.0, v{48 + k}")
    for k in range(16): p(f"v_rcp_f32 v{48 + k}, v{48 + k}")
    for k in range(16): p(f"v_mul_f32 v{32 + k}, v{32 + k}, v{48 + k}")
    rnd(32, 48)
    unpack(128, 192)
    p.wait_lgkm("sown")
    unpack(0, 168)
    p("s_branch L_o_chk")
    p.label("L_o_poll")
    gather()
    p.label("L_o_chk")
    p("s_waitcnt vmcnt(0)")
    p(f"v_max3_u32 v48, v{GS}, v{GS + 1}, v{GS + 2}")
    p(f"v_max3_u32 v49, v{GS + 3}, v{GS + 4}, v{GS + 5}")
    for k in range(6, 22, 4):
        p(f"v_max3_u32 v48, v48, v{GS + k}, v{GS + k + 1}")
        p(f"v_max3_u32 v49, v49, v{GS + k + 2}, v{GS + k + 3}")
    p(f"v_max3_u32 v48, v48, v{GS + 22}, v{GS + 23}")
    p("v_max_u32 v48, v48, v49")
    p("v_cmp_eq_u32 vcc, -1, v48")
    p("s_cbranch_vccz L_o_go")
    p("s_sub_u32 s44, s44, 1")
    p("s_cbranch_scc0 L_o_poll")
    p.label("L_o_go")
    if DIAG3: p.items.append(stamp(9))
    for k in range(3): accum(0, GS + 8 * k)
    p("s_nop 2")
    for k in range(16): p(f"v_fmac_f32 v{128 + k}, v{k}, v{32 + k}")
    for k in range(0, 16, 2): p(f"v_cvt_pk_bf16_f32 v{96 + k // 2}, v{128 + k}, v{129 + k}")
    for k in range(4):
        p(f"buffer_store_dwordx2 v[{96 + 2 * k}:{97 + 2 * k}], v{238 + k // 2}, s[4:7], s57 offen offset:{32 * (k % 2)}")
    if DIAG:
        p("s_waitcnt vmcnt(0)")
        p.items.append(stamp(12)); p.items.append(stamp(13, True))
        dump_stamps(p, 0, 28, 20)
    return [i.t for i in resolve(p.items, [Ins(ins, tag) for pre, ins, tag in gpre()])], slow

def gen_f_kernel():
    p = Prog()
    p("s_cmp_ge_u32 s2, 256")
    p("s_cbranch_scc1 L_f_end")
    if DIAG:
        for k in range(14): p(f"s_mov_b32 s{66 + 2 * k}, 0")
        p.items.append(stamp(0, True)); p.items.append(stamp(1))
    p("s_load_dwordx4 s[36:39], s[0:1], 0")
    p("s_load_dwordx4 s[40:43], s[0:1], 24")
    p("s_load_dwordx2 s[44:45], s[0:1], 96")
    p("v_and_b32 v254, 63, v0")
    p("v_lshrrev_b32 v255, 6, v0")
    p("s_and_b32 s34, s2, 7")
    p("v_readfirstlane_b32 s28, v255")
    p("s_lshr_b32 s35, s2, 3")
    p("v_lshlrev_b32 v252, 7, v254")
    if CPF:
        p("s_getpc_b64 s[4:5]")
        p("L_pc0:")
        p(f"s_sub_u32 s4, s4, L_pc0-{KNAME}")
        p("s_subb_u32 s5, s5, 0")
        p(f"s_mov_b32 s6, L_code_end-{KNAME}")
        p("s_mov_b32 s7, 0x20000")
        p("v_lshrrev_b32 v244, 3, v254")
        p("v_lshl_or_b32 v244, v244, 27, v252")
        p("v_lshl_add_u32 v244, v255, 15, v244")
        p("s_lshl_b32 s63, s35, 10")
        p("buffer_load_dword v52, v244, s[4:7], s63 offen", "pf")
    p("v_lshlrev_b32 v240, 4, v254")
    p("v_lshrrev_b32 v244, 4, v254")
    p("v_and_b32 v245, 15, v254")
    p("v_lshlrev_b32 v245, 7, v245")
    p("v_lshl_add_u32 v253, v244, 13, v245")
    p("s_lshl_b32 s60, s35, 2")
    p("s_add_u32 s60, s60, s28")
    p("s_and_b32 s61, s34, 1")
    p("s_lshl_b32 s61, s61, 20")
    p("s_lshl_b32 s63, s60, 13")
    p("s_add_u32 s61, s61, s63")
    p("s_lshr_b32 s62, s34, 1")
    p("s_lshl_b32 s62, s62, 11")
    p("s_lshl_b32 s63, s60, 15")
    p("s_add_u32 s62, s62, s63")
    p("s_lshl_b32 s47, s2, 13")
    p("s_lshl_b32 s46, s28, 11")
    p("s_add_u32 s47, s47, s46")
    for r, v in ((10, 0x200000), (11, 0x20000), (14, 0x400000), (15, 0x20000), (26, 0x200000), (27, 0x20000)): p(f"s_mov_b32 s{r}, {v:#x}")
    p("s_waitcnt lgkmcnt(0)")
    if DIAG and not DIAG2: p.items.append(stamp(2))
    for d, sr in ((24, 36), (25, 37), (8, 38), (9, 39), (12, 40), (13, 41)): p(f"s_mov_b32 s{d}, s{sr}")
    p("buffer_load_dwordx4 v[0:3], v240, s[24:27], s47 offen" + NTX, "ln")
    p("buffer_load_dwordx4 v[4:7], v240, s[24:27], s47 offen offset:1024" + NTX, "ln")
    if XBAR: p("s_barrier")
    if PFA:
        p("buffer_load_dword v246, v252, s[8:11], s61 offen" + os.environ.get("NTPA", ""), "pf")
        p("buffer_load_dword v247, v253, s[12:15], s62 offen" + NT, "pf")
    srd(p, 16, 42, 0x400000)
    srd(p, 20, 44, 0x10000000)
    p("s_load_dwordx2 s[36:37], s[0:1], 16")
    p("s_load_dwordx2 s[38:39], s[0:1], 40")
    p("s_load_dwordx4 s[40:43], s[0:1], 56")
    p("s_load_dwordx2 s[96:97], s[0:1], 72")
    p("s_load_dwordx2 s[98:99], s[0:1], 88")
    p("v_lshl_add_u32 v244, v255, 6, v254")
    p("v_cmp_eq_u32 vcc, 0, v244")
    p("v_mov_b32 v248, 0x7ffff000")
    p("v_mov_b32 v249, 1")
    p("v_mov_b32 v250, 0")
    p("v_cndmask_b32_e64 v248, v248, 0, vcc")
    p("s_and_b32 s47, s34, 1")
    p("s_lshl_b32 s47, s47, 2")
    p("s_and_b32 s46, s35, 3")
    p("s_add_u32 s47, s47, s46")
    p("s_lshr_b32 s3, s34, 1")
    p("s_lshl_b32 s3, s3, 3")
    p("s_lshr_b32 s46, s35, 2")
    p("s_add_u32 s3, s3, s46")
    p("s_lshl_b32 s45, s3, 3")
    p("s_add_u32 s45, s45, s47")
    p("s_lshl_b32 s46, s47, 2")
    p("s_add_u32 s46, s46, s28")
    p("s_lshl_b32 s31, s46, 16")
    p("s_lshl_b32 s94, s46, 15")
    p("s_lshl_b32 s47, s3, 20")
    p("s_add_u32 s94, s94, s47")
    p(f"s_add_u32 s94, s94, {WS_KV:#x}")
    p("s_lshl_b32 s95, s3, 8")
    p("s_lshl_b32 s3, s45, 7")
    p(f"s_add_u32 s3, s3, {WS_FLAG + 0x10000:#x}")
    p("s_lshl_b32 s29, s34, 2")
    p("s_lshr_b32 s46, s35, 3")
    p("s_add_u32 s29, s29, s46")
    p("s_and_b32 s30, s35, 7")
    p(f"s_mul_i32 s48, s28, 24576")
    p("s_lshl_b32 s49, s28, 12")
    p("s_lshl_b32 s50, s28, 6")
    p("s_add_u32 s50, s50, s95")
    p("s_and_b32 s45, s28, 1")
    p("s_lshr_b32 s52, s28, 1")
    p("s_lshl_b32 s53, s45, 13")
    p("s_lshl_b32 s54, s52, 12")
    p("s_add_u32 s53, s53, s54")
    p("s_lshl_b32 s54, s45, 6")
    p("s_lshl_b32 s55, s52, 19")
    p("s_add_u32 s55, s54, s55")
    p("s_add_u32 s54, s55, s95")
    p("s_lshl_b32 s56, s29, 8")
    p("s_add_u32 s65, s55, s56")
    p("s_sub_u32 s56, 15, s30")
    p("s_lshl_b32 s32, s56, 3")
    p("s_add_u32 s32, s32, s28")
    p("s_lshl_b32 s33, s30, 3")
    p("s_add_u32 s33, s33, s28")
    p("s_lshl_b32 s46, s32, 14")
    p("s_lshl_b32 s47, s33, 14")
    p(f"s_mul_i32 s32, s32, {ACT_ROW}")
    p(f"s_add_u32 s32, s32, {WS_ACT:#x}")
    p(f"s_mul_i32 s33, s33, {ACT_ROW}")
    p(f"s_add_u32 s33, s33, {WS_ACT:#x}")
    p("s_add_u32 s55, s29, 32")
    p("s_cmp_lt_u32 s29, 24")
    p("s_cselect_b32 s55, s55, s29")
    p(f"s_mul_i32 s64, s52, {64 * 3584}")
    p("s_lshl_b32 s63, s29, 6")
    p("s_add_u32 s35, s64, s63")
    p("s_lshl_b32 s63, s55, 6")
    p("s_add_u32 s64, s64, s63")
    p("s_lshl_b32 s51, s29, 20")
    p(f"s_add_u32 s51, s51, {WS_KV:#x}")
    p("s_lshl_b32 s56, s29, 10")
    p(f"s_add_u32 s56, s56, {128 * 1024}")
    p("s_add_u32 s100, s56, s32")
    p("s_add_u32 s101, s56, s33")
    p("s_lshl_b32 s61, s34, 8")
    p("s_lshr_b32 s63, s60, 1")
    p(f"s_mul_i32 s63, s63, {8 * 3584}")
    p("s_add_u32 s61, s61, s63")
    p("s_lshl_b32 s52, s34, 10")
    p("s_lshl_b32 s63, s60, 15")
    p("s_add_u32 s52, s52, s63")
    p("v_lshrrev_b32 v241, 3, v254")
    p("v_lshlrev_b32 v241, 13, v241")
    p("v_and_b32 v242, 7, v254")
    for n in range(8):
        p(f"v_xor_b32 v243, {n}, v242")
        p(f"v_lshl_add_u32 v{224 + n}, v243, 4, v241")
    p("v_and_b32 v241, 7, v254")
    p("v_bfe_u32 v242, v254, 3, 1")
    p("v_lshlrev_b32 v242, 7, v242")
    p("v_lshl_add_u32 v242, v241, 10, v242")
    p("v_add_u32 v242, s48, v242")
    p("v_lshrrev_b32 v243, 4, v254")
    for tt in range(2):
        p(f"v_add_u32 v244, {4 * tt}, v243")
        p("v_xor_b32 v244, v244, v241")
        p(f"v_lshl_add_u32 v{232 + tt}, v244, 4, v242")
    p("v_lshlrev_b32 v241, 9, v243")
    p("v_bfe_u32 v242, v254, 2, 2")
    p("v_lshl_add_u32 v241, v242, 6, v241")
    p("v_and_b32 v242, 3, v254")
    p("v_lshl_add_u32 v241, v242, 3, v241")
    p("v_and_b32 v242, 1, v243")
    p("v_lshl_add_u32 v234, v242, 5, v241")
    p("v_xor_b32 v237, 32, v234")
    for cf in range(2):
        p(f"v_add_u32 v{235 + 3 * cf}, 0x10000, v{234 + 3 * cf}")
        p(f"v_add_u32 v{236 + 3 * cf}, 0x20000, v{234 + 3 * cf}")
    p("v_lshrrev_b32 v244, 5, v254")
    p("v_lshlrev_b32 v251, 30, v244")
    p("v_lshlrev_b32 v244, 1, v244")
    p("v_and_b32 v245, 3, v254")
    p("v_xor_b32 v245, v245, v244")
    p("v_lshlrev_b32 v245, 4, v245")
    p("v_lshrrev_b32 v244, 2, v254")
    p("v_lshl_add_u32 v241, v244, 13, v245")
    p("v_mul_u32_u24 v244, 3584, v244")
    p("v_add_u32 v242, v244, v245")
    p("v_bfe_u32 v245, v254, 2, 3")
    p("v_mul_u32_u24 v245, 3584, v245")
    p("v_and_b32 v244, 1, v254")
    p("v_lshl_add_u32 v245, v244, 7, v245")
    p("v_bfe_u32 v244, v254, 1, 1")
    p("v_lshl_add_u32 v245, v244, 11, v245")
    p("v_or_b32 v245, v245, v251")
    p("v_and_b32 v243, 15, v254" if not BYTEF else "v_mov_b32 v243, v254")
    p(f"v_lshlrev_b32 v243, {2 if BYTEF else XSH}, v243")
    p("v_lshlrev_b32 v48, 7, v254")
    p("v_lshl_add_u32 v48, v255, 5, v48")
    p("v_add_u32 v48, 0x24000, v48")
    p("v_lshl_add_u32 v49, v255, 11, v240")
    p("v_add_u32 v49, 0x24000, v49")
    p("v_lshrrev_b32 v50, 3, v254")
    p("v_lshlrev_b32 v50, 8, v50")
    p("v_and_b32 v51, 7, v254")
    p("v_lshl_add_u32 v50, v51, 4, v50")
    p("s_waitcnt lgkmcnt(0)")
    p("s_cmp_eq_u32 s45, 0")
    p("s_cselect_b32 s40, s40, s42")
    p("s_cselect_b32 s41, s41, s43")
    p("s_mov_b32 s4, s98")
    p("s_mov_b32 s5, s99")
    p("s_mov_b32 s6, 256")
    p("s_mov_b32 s7, 0x20000")
    p("s_load_dwordx2 s[42:43], s[0:1], 80")
    p("s_lshl_b32 s56, s55, 10")
    p(f"s_add_u32 s56, s56, {128 * 1024}")
    p("s_add_u32 s98, s56, s32")
    p("s_add_u32 s99, s56, s33")
    p("s_lshl_b32 s63, s2, 7")
    p(f"s_add_u32 s63, s63, {WS_FLAG:#x}")
    BLK = [6, 7, 8, 9, 6, 7, 8, 9, 0, 1, 2, 3, 4, 5, 6, 7, 8, 9, 0, 1, 2, 3, 6, 7, 8, 9, 4, 5, 6, 7, 8, 9]
    def dma_A(s):
        ops = []
        for n in range(8):
            pre = []
            if n % 4 == 0:
                pre = [f"s_add_u32 m0, s48, {(s % 3) * 8192 + (n // 4) * 4096}", f"s_add_u32 s56, s31, {s * 128 + (n // 4) * 4096}"]
            ops.append((pre, f"buffer_load_dwordx4 v{224 + n}, s[8:11], s56 offen offset:{(n % 4) * 1024}{NTA} lds", ("A", s)))
        return ops
    def dma_W(n):
        ops = []
        kq = n % 4
        for q in range(4):
            m0 = "s53"
            if n < 8:
                pre = [f"s_add_u32 s57, s54, {(kq * 128 + q * 16) * 8192 + (n // 4) * 128 - q * 1024}"]
                ins = f"buffer_load_dwordx4 v241, s[12:15], s57 offen offset:{q * 1024} lds"
            elif n < 16:
                pre = [f"s_add_u32 s57, s50, {((n - 8) * 64 + q * 16) * 8192 - q * 1024}"]; m0 = "s49"
                ins = f"buffer_load_dwordx4 v241, s[16:19], s57 offen offset:{q * 1024} lds"
            elif n < 24:
                pre = [f"s_add_u32 s57, s{35 if n < 20 else 64}, {(kq * 128 + q * 16) * 3584 - q * 1024}"]
                ins = f"buffer_load_dwordx4 v242, s[12:15], s57 offen offset:{q * 1024} lds"
            else:
                pre = [f"s_add_u32 s57, s65, {(kq * 128 + q * 16) * 8192 - q * 1024 + (128 if n >= 28 else 0)}"]
                ins = f"buffer_load_dwordx4 v241, s[8:11], s57 offen offset:{q * 1024} lds"
            if "kkvvggqq"[n // 4] in NTD: ins = ins.replace(" lds", " nt lds")
            if q == 0: pre = [f"s_add_u32 m0, {m0}, {BLK[n] * 16384}"] + pre
            ops.append((pre, ins, ("L", n)))
        return ops
    def kv_half(tile, part):
        ops = []
        for q in range(4):
            pre = []
            if q == 0: pre = [f"s_add_u32 m0, s49, {tile * 32768 + part * 16384}", f"s_add_u32 s57, s49, {tile * 32768 + part * 16384}"]
            ops.append((pre, f"buffer_load_dwordx4 v240, s[16:19], s57 offen offset:{q * 1024}{KSC} lds", ("kv", tile, part)))
        return ops
    def now(ops):
        for pre, ins, tag in ops:
            for x in pre: p(x)
            p(ins, tag)
    first = dma_W(0) + dma_A(0) + dma_A(1) + (dma_W(1) + dma_A(2) if ALEAD == 3 else [])
    now(first[:EARLY])
    p.wait_vm("ln")
    if DIAG and not DIAG2: p.items.append(stamp(3))
    emit_ln(p)
    p("ds_write_b128 v48, v[40:43]")
    p("ds_write_b128 v48, v[44:47] offset:16")
    p("s_lshr_b32 s58, s2, 1")
    p("s_lshl_b32 s58, s58, 14")
    p("s_and_b32 s59, s2, 1")
    p("s_lshl_b32 s59, s59, 7")
    p("s_add_u32 s58, s58, s59")
    p("s_add_u32 s58, s58, s49")
    if WS_XN: p(f"s_add_u32 s58, s58, {WS_XN:#x}")
    p("s_waitcnt lgkmcnt(0)")
    p("s_barrier")
    p("ds_read_b128 v[40:43], v49")
    p("ds_read_b128 v[44:47], v49 offset:1024")
    p("s_lshr_b32 s59, s2, 4")
    p(f"s_lshl_b32 s59, s59, {XSH}")
    p("s_waitcnt lgkmcnt(0)")
    p(f"buffer_store_dwordx4 v[40:43], v50, s[20:23], s58 offen{STF}", "xnst")
    p(f"buffer_store_dwordx4 v[44:47], v50, s[20:23], s58 offen offset:2048{STF}", "xnst")
    p(f"buffer_store_dword v250, v248, s[20:23], s63 offen{STF}", "zf")
    p(f"buffer_store_dword v250, v248, s[20:23], s63 offen offset:4{STF}", "zf")
    p(f"buffer_store_dword v250, v248, s[20:23], s3 offen{STF}", "zf")
    p(f"s_add_u32 s63, s63, 0x20000")
    p(f"buffer_store_dword v250, v248, s[20:23], s63 offen offset:8{STF}", "zf")
    p(f"buffer_store_dword v250, v248, s[20:23], s63 offen{STF}", "zf")
    p(f"buffer_store_dword v250, v248, s[20:23], s63 offen offset:4{STF}", "zf")

    if os.environ.get('PFW8'):
        p('s_waitcnt vmcnt(0)'); p.items.append(stamp(2))
    now(first[EARLY:])

    groups = []
    def accT(base, c, cf, rb): return base + (c * 4 + rb) * 8 + cf * 4
    def accV(base, c, cf, rb): return base + ((c * 2 + cf) * 2 + (rb >> 1)) * 8 + (rb & 1) * 4
    def add_double(seg0, bases):
        for s in range(8):
            for tt in range(2):
                for c in range(4):
                    for cf in range(2):
                        groups.append(dict(off=BLK[seg0 + s] * 16384 + c * 4096 + tt * 2048, cf=cf, t=2 * s + tt,
                                           acc=[accV(bases[c >> 1], c & 1, cf, rb) for rb in range(4)], vt=True))
    def add_single(seg0, base):
        for q in range(4):
            for tq, c in ([(tq, c) for c in range(2) for tq in range(4)] if seg0 + q == 31 else [(tq, c) for tq in range(4) for c in range(2)]):
                if True:
                    for cf in range(2):
                        groups.append(dict(off=BLK[seg0 + q] * 16384 + c * 8192 + tq * 2048, cf=cf, t=4 * q + tq,
                                           acc=[accT(base, c, cf, rb) for rb in range(4)], vt=False))
    add_single(0, 0); add_single(4, 64); add_double(8, [128, 0])
    add_single(16, 64); add_single(20, 128); add_single(24, 0); add_single(28, 64)
    NG = len(groups)
    mf = []
    for n, G in enumerate(groups):
        w = vr(192 + 4 * (n % 8))
        for rb in range(4):
            a = ar((rb * 16 + G["t"]) * 4)
            d = vr(G["acc"][rb])
            c = 0 if G["t"] == 0 else d
            mf.append(f"{MF} {d}, {a}, {w}, {c}" if G["vt"] else f"{MF} {d}, {w}, {a}, {c}")
    S = Sched16(mf)
    def w_reads(n):
        G = groups[n]
        out = []
        for hf in range(2):
            off = G["off"] + hf * 256
            d = 192 + 4 * (n % 8) + 2 * hf
            out.append(f"ds_read_b64_tr_b16 v[{d}:{d + 1}], v{234 + 3 * G['cf'] + (off >> 16)} offset:{off & 0xffff}")
        return out
    def a_reads(s):
        return [f"ds_read_b128 {ar((rb * 16 + 2 * s + tt) * 4)}, v{232 + tt} offset:{(s % 3) * 8192 + rb * 256}" for tt in range(2) for rb in range(4)]
    RA = 5
    if DIAG and not DIAG2: p.items.append(stamp(4))
    p.wait_vm(("A", 0))
    p("s_barrier")
    if DIAG and not DIAG2: p.items.append(stamp(5))
    for x in a_reads(0): p(x, ("Ar", 0))
    for n in range(RA):
        for x in w_reads(n): p(x, ("W", n))
    p.wait_lgkm(("W", 0))
    for n in range(RA, NG):
        k = n % 16
        if k <= 13: g = 4 * (n - RA)
        elif k == 14: g = 4 * (n - 6) + 2
        else: g = 4 * (n - 6)
        for i, x in enumerate(w_reads(n)): S.add_mem(g + i, x, ("W", n))
    for n in range(1, NG): S.add_first(4 * n - 1, Wait("lgkm", ("W", n)))
    for s in range(1, 8):
        g = 32 * s - 22
        S.add_first(g, Wait("vm", ("A", s)))
        for i, x in enumerate(a_reads(s)): S.add_mem(g + [0, 0, 1, 1, 4, 4, 5, 5][i], x, ("Ar", s))
        S.add_first(32 * s - 10, Wait("lgkm", ("Ar", s)))
    def gB(n): return 64 * n + 4 * 11
    GBS = [n for n in range(31) if n < 8 or not GB2 or n % 2 == 1]
    for n in GBS:
        nxt = min([x for x in GBS if x > n] + [31])
        tags = [("L", nxt)]
        if n == 0: tags += ["xnst", "zf"]
        if n == KVPUB: tags.append("kvst")
        if n == 29: tags.append(("kv", 0, 0))
        S.add_first(gB(n) - 2, Ins("s_waitcnt lgkmcnt(0)"))
        S.add_first(gB(n), Wait("vm", tags))
        S.add_first(gB(n), "s_barrier")
    assert KVPUB in GBS
    def win(n): return gB(n - 1) + 1
    def freed(seg): return gB(min(x for x in GBS if x >= seg)) + 1
    def lfree(n):
        prev = [m for m in range(n) if BLK[m] == BLK[n]]
        return freed(prev[-1]) if prev else freed(3)
    def bfree(blk): return freed(max(m for m in range(32) if BLK[m] == blk))
    LD = []
    def ld(ops, e, pace=1):
        for i, (pre, ins, tag) in enumerate(ops):
            for x in pre: LD.append(Op(x, e + i * pace - 3, 2040))
            LD.append(Op(ins, e + i * pace, 2040, tag=tag, deps=[LD[-2]] if len(pre) == 2 else []))
    one = lambda ins, tag, pre=(): [([], x, None) for x in pre] + [([], ins, tag)]
    if ALEAD == 3:
        ld(dma_A(3), 0); ld(dma_W(2), 8); ld(dma_A(4), 22)
        ld(dma_A(5), 54); ld(dma_W(3), 62); ld(dma_A(6), 86); ld(dma_A(7), 118); ld(dma_W(4), 126); ld(dma_W(5), 140, 4)
    else:
        ld(dma_W(1), 0); ld(dma_A(2), 0); ld(dma_A(3), 20); ld(dma_W(2), 40); ld(dma_A(4), 52); ld(dma_A(5), 84); ld(dma_W(3), 100)
        ld(dma_A(6), 116); ld(dma_A(7), 144); ld(dma_W(4), 156); ld(dma_W(5), 160)
    if not BYTEF: ld(one("buffer_atomic_add v249, v248, s[4:7], s59 offen", "pub"), win(3))
    else: S.add_mem(win(BYTEF), "buffer_store_byte v249, v248, s[4:7], s2 offen sc1", "pub")
    if "v" in PFW: ld(one("buffer_load_dword v246, v253, s[16:19], s62 offen" + NTV, "pf"), win(3))
    ld(dma_W(6), win(3), 2)
    ld(dma_W(7), VW0 - 24, 4)
    for n in range(8, 13): ld(dma_W(n), VW0 + (n - 8) * VWP, 3)
    ld(one("buffer_load_dword v250, v245, s[12:15], s61 offen", "pf", ["s_mov_b32 s12, s40", "s_mov_b32 s13, s41", f"s_mov_b32 s14, {512 * 3584}"])[:4 if "g" in PFW else 3], win(GPW))
    print("ld1", schedule(S, [LD], 0, 511, base_cap=LCAP), "last", LD[-1].g, [o.g for o in LD if o.tag in ("pf", "poll")])
    gc = XNC
    S.add_mem(XPL if XPL else gc - 50, XPOLL, "poll")
    S.add_first(gc, Wait("vm", "poll"))
    S.add_valu(gc, XCMP)
    S.add_valu(gc, "v_add_u32 v247, 0x10000, v240")
    S.add_last(gc + 2, "s_cbranch_vccnz L_xnwait")
    S.add_last(gc + 2, "L_xnok:")
    LD = []
    for n in range(13, 24): ld(dma_W(n), max(win(9) + (n - 13) * 44 if n < WSH else win(n - 4), lfree(n)), 10)
    S.add_valu(64 * 12, "v_and_b32 v253, 0xfffffbff, v253")
    S.add_valu(64 * 12 + 1, "v_bfe_u32 v246, v254, 3, 1")
    S.add_valu(64 * 12 + 2, "v_lshl_or_b32 v253, v246, 30, v253")
    ld(one("buffer_load_dword v244, v253, s[8:11], s52 offen", "pf", ["s_mov_b32 s8, s36", "s_mov_b32 s9, s37", "s_mov_b32 s10, 0x400000"])[:4 if "q" in PFW else 3], win(17 if WSH > 20 else 20))
    for n in range(24, 32):
        if n == 28 and PFOG:
            S.add_valu(1400, "v_and_b32 v245, 0xfff, v252")
            S.add_valu(1401, "v_or_b32 v245, v245, v251")
            ld(one("buffer_load_dword v250, v245, s[4:7], s50 offen", "pf", ["s_mov_b32 s4, s38", "s_mov_b32 s5, s39", "s_mov_b32 s6, 0x400000", "s_mov_b32 s7, 0x20000",
                   "s_lshl_b32 s50, s2, 2", "s_add_u32 s50, s50, s28", "s_lshl_b32 s50, s50, 12"]), PFOG - 8)
            ld(one("buffer_load_dword v253, v245, s[12:15], s50 offen", "pf", ["s_mov_b32 s12, s96", "s_mov_b32 s13, s97", f"s_mov_b32 s14, {1792 * 1024}"]), PFOG - 8)
            if NTX: ld(one("buffer_load_dword v244, v245, s[24:27], s50 offen", "pf"), PFOG - 8)
        ld(dma_W(n), max((win(19) if WSH > 20 else win(21) + 20) + (n - 24) * (50 if WSH > 20 else 36), lfree(n), PFOG + 120 + 20 * (n - 28) if PFOG and n >= 28 else 0), 8 if n < 28 or not PFOG else 4)
    S.add_valu(64 * 26, "v_and_b32 v243, 0x380, v252")
    for x in ["s_add_u32 s16, s20, s51", "s_addc_u32 s17, s21, 0"]: S.add_last(64 * 26, x)
    for x in ["s_sub_u32 s18, 16, s30", "s_lshl_b32 s18, s18, 16"]: S.add_last(64 * 26 + 1, x)
    ld(one("buffer_load_dword v244, v243, s[20:23], s59 offen sc1", "poll2", ["s_lshl_b32 s59, s29, 10", f"s_add_u32 s59, s59, {WS_FLAG + 0x10000:#x}"]), 64 * 27)
    gc = win(28) + 1
    for k in range(7): ld(kv_half(k // 2, k % 2), max(gc + 4 + 16 * k, bfree(k)), 4)
    S.add_first(gc, Wait("vm", "poll2"))
    S.add_valu(gc, "v_cmp_ne_u32 vcc, 1, v244")
    S.add_last(gc + 2, "s_cbranch_vccnz L_kvwait")
    S.add_last(gc + 2, "L_kvok:")
    print("ld2", schedule(S, [LD], 512, 2046, base_cap=2), "last", LD[-1].g, [(o.tag, o.g) for o in LD if o.mem][::4])
    XL = []
    for t in range(16):
        for rb in range(4):
            pre = []
            if t % 4 == 0 and rb % 2 == 0: pre = [f"s_add_u32 s{62 + rb // 2}, s{46 + rb // 2}, {WS_XN + t * 1024}"]
            vo = 240 if rb % 2 == 0 else 247
            XL.append(Op(f"buffer_load_dwordx4 {ar((rb * 16 + t) * 4)}, v{vo}, s[20:23], s{62 + rb // 2} offen offset:{(t % 4) * 1024}{XSC}",
                         max(512 + 32 * t + 32 + (6 * rb if t < 15 else 0), XNC + 4 + int(XP * (4 * t + rb))), 1024 + 16 * t - 60 if t < 10 else 512 + 32 * t + 64, pre=pre, tag=("X", t)))
    for t in range(16): S.add_first(1024 + 16 * t - 2, Wait("vm", ("X", t)))
    def kv_epi(kind, u, base, g0, g1, st0):
        ops = []
        for k8 in range(8):
            R = base + 8 * k8
            if kind == "K":
                c, rb = k8 // 4, k8 % 4
                off = rb * 4096 + (2 * u + c) * 1024
                for r in range(8): ops.append(Op(f"v_mul_f32 v{R + r}, {f2u(KSCALE):#x}, v{R + r}", g0, g1))
            else:
                db, s = 4 * u + k8 // 2, k8 % 2
                off = 16384 + s * 8192 + db * 1024
            cv = [Op(f"v_cvt_pk_bf16_f32 v{R + k}, v{R + 2 * k}, v{R + 2 * k + 1}", g0, g1) for k in range(4)]
            ops += cv
            ops.append(Op(f"s_add_u32 s95, s94, {off & ~4095}", g0, g1))
            ops.append(Op(f"buffer_store_dwordx4 {vr(R)}, v240, s[20:23], s95 offen offset:{off & 4095}{STF}", max(g0, st0[0] + int(k8 * st0[1])), g1, [cv[-1]], tag="kvst"))
        return ops
    C0 = -2.0 * math.sqrt(2.0 / math.pi) * LOG2E
    C1 = C0 * 0.044715
    S.add_valu(64 * 17, f"v_mov_b32 v232, {f2u(C0):#x}")
    S.add_valu(64 * 17 + 1, f"v_mov_b32 v233, {f2u(C1):#x}")
    S.add_valu(64 * 17 + 2, f"v_add_u32 v246, {4 * ACT_ROW}, v240")
    def gu_epi(base, psg, g0, g1, gst):
        st = [[], []]; sto = []
        for rb in range(4):
            G = base + rb * 8; U = base + 32 + rb * 8
            L = st[rb & 1]
            for r in range(8):
                t = 224 + (r % 4) + 4 * (rb & 1)
                o4 = Op(f"v_exp_f32 v{t}, v{t}", g0, g1)
                o7 = Op(f"v_rcp_f32 v{t}, v{t}", g0, g1)
                L += [Op(f"v_mul_f32 v{t}, v{G + r}, v{G + r}", g0, g1), Op(f"v_fma_f32 v{t}, v{t}, v233, v232", g0, g1),
                      Op(f"v_mul_f32 v{t}, v{t}, v{G + r}", g0, g1), o4, Op(f"v_mul_f32 v{G + r}, v{G + r}, v{U + r}", g0, g1),
                      Op(f"v_add_f32 v{t}, 1.0, v{t}", g0, g1), o7, Op(f"v_mul_f32 v{G + r}, v{G + r}, v{t}", g0, g1, [o7])]
            cv = [Op(f"v_cvt_pk_bf16_f32 v{G + k}, v{G + 2 * k}, v{G + 2 * k + 1}", g0, g1 - 2) for k in range(4)]
            L += cv
            sto.append(Op(f"buffer_store_dwordx4 {vr(G)}, v{240 if rb % 2 == 0 else 246}, s[20:23], s{psg + rb // 2} offen{STF}", gst + 30 * rb, g1, [cv[-1]], tag="hst"))
        return st, sto
    def q_epi(base, u, g0, g1, gmove):
        cvs = []; mv = []
        for c in range(2):
            for qb in range(4):
                R = base + (c * 4 + qb) * 8
                for k in range(4):
                    o = Op(f"v_cvt_pk_bf16_f32 v{R + k}, v{R + 2 * k}, v{R + 2 * k + 1}", g0, g1)
                    cvs.append(o)
                    mv.append(Op(f"v_accvgpr_write_b32 a{Qreg(qb, 2 * u + c) + k}, v{R + k}", gmove, g1, [o]))
        return cvs, mv
    PH = [256 * k for k in range(9)]
    PE = 2048
    kvs = kv_epi("K", 0, 0, PH[1] + 6, PH[2] - 3, (PH[1] + 16, STP)) + kv_epi("K", 1, 64, PH[2] + 6, PH[4] - 3, (PH[2] + 16, STPK1)) + \
          kv_epi("V", 0, 128, PH[4] + 6, PH[5] - 3, (PH[4] + 12, STPV)) + kv_epi("V", 1, 0, PH[4] + 6, PH[6] - 3, (PH[4] + 12 + 8 * STPV, STPV))
    print("kv epi", schedule(S, [XL, kvs], PH[1], PH[6]), "last store", kvs[-1].g, "pub at", gB(KVPUB))
    assert kvs[-1].g < gB(KVPUB)
    st0, so0 = gu_epi(64, 100, PH[5] + 6, PH[7] - 3, PH[6])
    st1, so1 = gu_epi(128, 98, PH[6] + 6, PE - 2, PH[6] + 130)
    q0c, q0m = q_epi(0, 0, PH[7] + 6, PE - 2, PH[7] + 130)
    q1c, q1m = q_epi(64, 1, PE - 32 + 5, PE - 1, PE - 32 + 5)
    k0r = [Op(f"ds_read_b128 {ar(Fbuf(f))}, v240 offset:{f * 1024}", max(gB(29) + 1, PH[7] + 16 * f + 16), PE - 2, tag=("K0", f)) for f in range(12)]
    print("gu epi", schedule(S, [st0[0] + st1[0], st0[1] + st1[1], so0 + so1, q0c + q1c[:16], q0m + q1m[:16], k0r], PH[5], PE - 1))
    S.add_mem(gB(KVPUB) + 2, f"buffer_store_dword v249, v248, s[20:23], s3 offen{STF}", "pub")
    if DIAG and not DIAG2:
        S.add_first(512, stamp(6)); S.add_first(1024, stamp(7)); S.add_first(PE - 1, stamp(8))
    if DIAG2:
        for k, g in enumerate(DIAG2): S.add_first(g, stamp(2 + k))
    print(S.report("gemm")[:600])
    its = S.items()
    DROP = os.environ.get("DROP", "").split(",")
    def keep(i):
        if isinstance(i, Ins):
            tg = i.tag[0] if isinstance(i.tag, tuple) else i.tag
            if tg in DROP and tg: return False
        if isinstance(i, Wait):
            tags = i.tag if isinstance(i.tag, list) else [i.tag]
            tags = [t for t in tags if (t[0] if isinstance(t, tuple) else t) not in DROP]
            if not tags: return False
            i.tag = tags
        return True
    p.extend([i for i in its if keep(i)])
    gemm_items = list(p.items)
    n_gemm = len(resolve(gemm_items))
    sa, va = tail_setup()
    def gen_qk0(masked):
        mf = []; last = {}
        for kb in range(4):
            for t in range(4):
                for qb in range(4):
                    d = Sreg(0, qb, kb)
                    c = vr(d) if t else (0 if kb < 2 else vr(NEGM(qb)))
                    mf.append(f"{MF} {vr(d)}, {ar(Fbuf(kb * 4 + t))}, {ar(Qreg(qb, t))}, {c}")
                    last[(qb, kb)] = len(mf) - 1
        S = Sched16(mf)
        for f in range(1, 16): S.add_first(4 * f - 1, Wait("lgkm", ("K0", f)))
        for f in range(12, 16): S.add_mem(f - 12, f"ds_read_b128 {ar(Fbuf(f))}, v240 offset:{f * 1024}", ("K0", f))
        c1, m1 = q_epi(64, 1, 4, 9, 4)
        c1 = c1[16:]; m1 = m1[16:]
        su = ["v_and_b32 v241, 15, v254", "v_lshl_add_u32 v241, v255, 4, v241", "v_lshrrev_b32 v245, 4, v254", "v_lshlrev_b32 v245, 2, v245",
              "v_sub_u32 v241, v241, v245", "v_cvt_f32_i32 v241, v241", "v_add_f32 v241, 0.5, v241", f"v_mul_f32 v{VTMASK}, {f2u(BIG):#x}, v241"]
        SU = [Op(x, 0, 18) for x in su]
        su2 = [f"v_mov_b32 v{VCUR}, v240", f"v_add_u32 v{VPREV}, 0x10000, v240", "v_and_b32 v206, 31, v254", "v_lshlrev_b32 v206, 10, v206",
               "v_and_b32 v252, 0xfff, v252", "v_or_b32 v252, v252, v251"] + [f"v_mov_b32 v{ONES + k}, 0x3f803f80" for k in range(4)] + va[:8] + va[-4:]
        SU += [Op(x, 0, 63) for x in su2]
        ss = [f"s_mov_b32 s{S_THR}, {f2u(THR):#x}", "s_lshl_b32 s99, s30, 7", f"s_add_u32 s99, s99, {WS_FLAG + 0x20000:#x}", "s_lshl_b32 s98, s29, 10",
              "s_add_u32 s98, s98, s99", "s_mov_b32 s52, s49", f"s_add_u32 s53, s49, {3 * 32768 + 16384}", f"s_add_u32 s54, s49, {4 * 32768}",
              f"s_add_u32 s55, s49, {3 * 32768 + 16384}", "s_mov_b32 s4, s38", "s_mov_b32 s5, s39", "s_mov_b32 s6, 0x400000", "s_mov_b32 s7, 0x20000",
              "s_lshl_b32 s59, s2, 2", "s_add_u32 s59, s59, s28", "s_lshl_b32 s50, s59, 12", "s_mov_b32 s12, s96", "s_mov_b32 s13, s97",
              f"s_mov_b32 s14, {1792 * 1024}", "s_mov_b32 m0, s52"]
        SS = [Op(x, 0, 60) for x in ss]
        def mask_ops(kb, e0, dl):
            out = []
            if not masked: return out
            for qb in (2,):
                for r in range(4):
                    kk = 16 * kb + r
                    out.append(Op(f"v_subrev_f32 v{TMP[r % 2]}, {f2u(kk * BIG):#x}, v{VTMASK}", 19, dl))
                    out.append(Op(f"v_min_f32 v{Sreg(0, qb, kb) + r}, v{Sreg(0, qb, kb) + r}, v{TMP[r % 2]}", e0, dl))
            return out
        T0 = [128 + 2 * q for q in range(4)]
        dl = 29
        I = mask_ops(0, 20, dl)
        for q in range(4):
            b = Sreg(0, q, 0)
            I += [Op(f"v_max3_f32 v{T0[q]}, v{b}, v{b + 1}, v{b + 2}", 20, dl), Op(f"v_max_f32 v{T0[q]}, v{T0[q]}, v{b + 3}", 20, dl)]
        for sw in ("v_permlane32_swap_b32", "v_permlane16_swap_b32"):
            I += [Op(f"v_mov_b32 v{T0[q] + 1}, v{T0[q]}", 20, dl) for q in range(4)]
            I += [Op(f"{sw} v{T0[q]}, v{T0[q] + 1}", 20, dl) for q in range(4)]
            I += [Op(f"v_max_f32 v{T0[q]}, v{T0[q]}, v{T0[q] + 1}", 20, dl) for q in range(4)]
        for q in range(4): I += [Op(f"v_sub_f32 v{NEGM(q) + r}, 0, v{T0[q]}", 20, dl) for r in range(4)]
        post = []
        for kb in range(2):
            if kb: I += mask_ops(1, 36, 63)
            for q in range(4): I += [Op(f"v_sub_f32 v{Sreg(0, q, kb) + r}, v{Sreg(0, q, kb) + r}, v{T0[q]}", 36 if kb else 20, 63) for r in range(4)]
        first = True
        for kb in range(1, 4):
            ops = mask_ops(kb, 16 * kb + 20, 63) if kb > 1 else []
            for q in range(4):
                b = Sreg(0, q, kb)
                ops.append(Op(f"v_max_f32 v{MX[0]}, v{b}, v{b + 1}" if first else f"v_max3_f32 v{MX[0]}, v{MX[0]}, v{b}, v{b + 1}", 16 * kb + 20, 63)); first = False
                ops.append(Op(f"v_max3_f32 v{MX[0]}, v{MX[0]}, v{b + 2}, v{b + 3}", 16 * kb + 20, 63))
            if kb < 3: I += ops
            else: post = [o.t for o in ops]
        print("qk0", schedule(S, [c1, m1, SU, SS, I], 0, 63), S.report("qk0")[:140])
        q = Prog()
        q.wait_lgkm(("K0", 0))
        q.extend(S.items())
        q.wait_vm(("kv", 1, 0))
        q("s_barrier")
        for ins in tail_reads(VCUR, 32768): q(ins)
        if not PFOG:
            q("buffer_load_dword v250, v252, s[4:7], s50 offen", "pf")
            q("s_mov_b32 s39, s50")
        for k in range(4): q(f"buffer_load_dwordx4 v240, s[16:19], s54 offen offset:{k * 1024}{KSC} lds", "kv")
        q("s_mov_b32 m0, s53")
        for x in post: q(x)
        q(f"v_cmp_lt_f32 vcc, s{S_THR}, v{MX[0]}")
        q(f"s_waitcnt lgkmcnt({NPRE - 1})")
        return [i.t for i in resolve(gemm_items + q.items)][n_gemm:]
    pro = [i.t for i in resolve(gemm_items)]

    stubs = []
    def check(site, par, dual):
        stubs.append((site, par, dual))
        return [f"s_cbranch_vccnz L_stub_{site}", f"L_ret_{site}:"]
    def it_odd(name, tq, tp, masked, **kw):
        return gen_iter(name, tq, tp, 0, masked, 0, VCUR, 0, VPREV, 49152, VCUR, 32768, end_ops=check(name, 0, tq), **kw)
    def it_even(name, tq, tp, masked, extra_end=(), first_pv=False, **kw):
        if first_pv: kw["vmn"] = 8 if PFOG else 9
        last = tq == "S1"
        return gen_iter(name, tq, tp, 1, masked, 1, VCUR, 32768, VCUR, 16384, VCUR if last else VPREV, 49152 if last else 0, first_pv=first_pv,
                        end_ops=check(name, 1, tq) + list(extra_end[2:]), swap=not last, mid_ops=extra_end[:2], **kw)
    seg = {}
    seg["G"] = pro
    for m in (False, True):
        nm = "m" if m else "u"
        seg["P" + nm] = gen_qk0(m) + check("qk0" + nm, 0, "D") + it_even("it0" + nm, "D1" if m else "D", "D", m, first_pv=True, salu=sa)
    seg["UDD"] = it_odd("uddA", "D", "D", False) + it_even("uddB", "D", "D", False, ["s_sub_u32 s47, s47, 1", "s_cmp_lg_u32 s47, 0", "s_cbranch_scc1 L_udd"])
    seg["UDDm"] = it_odd("uddmA", "D", "D", True) + it_even("uddmB", "D1", "D", True)
    fake = lambda tag, n: [Ins("buffer_load_dwordx4 v240, s[16:19], s55 offen lds", tag) for _ in range(n)]
    ee = gen_early_epi()
    seg["UDS"] = it_odd("udsA", "S", "D1", False) + it_even("udsB", "S", "S", False, xops=ee, vmn="need", raw=fake("need", 4) + fake("x", 12))
    seg["UDSm"] = it_odd("udsmA", "S", "D1", True) + it_even("udsmB", "S1", "S", True, xops=ee[:-1], vmn="need", raw=fake("need", 4) + fake("x", 12))
    seg["USS"] = it_odd("ussA", "S", "S", False) + it_even("ussB", "S", "S", False, ["s_sub_u32 s47, s47, 1", "s_cmp_lg_u32 s47, 0", "s_cbranch_scc1 L_uss"])
    gp = gpre()
    fake = lambda tag, n: [Ins("buffer_load_dwordx4 v240, s[16:19], s55 offen lds", tag) for _ in range(n)]
    seg["USSm"] = it_odd("ussmA", "S", "S", True, extra=gp[:12], vmn="need", raw=fake("need", 4) + fake("x", 12)) + \
                  it_even("ussmB", "S1", "S", True, extra=gp[12:], vmn="need", raw=fake("need", 4) + fake("x", 4 + 12))
    seg["E"], tail_slow = gen_tail()
    seg["EE"] = []
    HC = ["v_cmp_ne_u32 vcc, 1, v207", "s_nop 0"]
    gpl = []
    for pre, ins, tag in gp: gpl += list(pre) + [ins]
    pf2 = [] if PFOG else ["buffer_load_dword v251, v252, s[12:15], s39 offen", "buffer_load_dword v250, v252, s[24:27], s39 offen"]
    hpub = [f"buffer_store_dword v249, v248, s[20:23], s98 offen{STF}"]

    out = list(seg["G"])
    out += ["s_cmp_eq_u32 s30, 0", "s_cbranch_scc1 L_pm"] + seg["Pu"]
    if DIAG and not DIAG2: out.append(stamp(9).t)
    out += (hpub + st4(2) if os.environ.get("HS") else st4(2) + hpub) + ["s_sub_u32 s47, s30, 1", "s_cmp_eq_u32 s47, 0", "s_cbranch_scc1 L_uddm"]
    out += [f".p2align {AL}", "L_udd:"] + seg["UDD"]
    out += ["L_uddm:"] + pf2 + st4(3) + seg["UDDm"]
    out += ["s_cmp_eq_u32 s30, 7", "s_cbranch_scc1 L_last7"]
    out += ["L_uds:"] + pf2 + st4(4) + seg["UDS"] + st4(5) + seg["EE"] + st4(6)
    out += ["s_lshl_b32 s47, s30, 1", "s_sub_u32 s47, 13, s47"]
    out += [f".p2align {AL}", "L_uss:"] + seg["USS"]
    out += st4(7) + ["s_waitcnt vmcnt(16)"] + HC + ["s_cbranch_vccnz L_hwait", "L_hok:"] + seg["USSm"]
    out += ["L_fin:"] + st4(8) + seg["E"]
    out += ["L_f_end:", "s_endpgm"]
    out += ["L_pm:"] + seg["Pm"] + ([stamp(9).t] if DIAG and not DIAG2 else []) + hpub + ["s_branch L_uds"]
    out += ["L_last7:", HPOLL] + seg["UDSm"] + ["s_waitcnt vmcnt(32)"] + HC + ["s_cbranch_vccnz L_h2wait", "L_h2ok:"] + gpl + ["s_branch L_fin"]
    out += spin("h", HPOLL, HC[0]) + spin("h2", HPOLL, HC[0])
    out += tail_slow
    out += ["L_xnwait:", "s_mov_b32 s44, 0x40000", "L_xnspin:", "s_sub_u32 s44, s44, 1", "s_cbranch_scc1 L_xnok", "s_sleep 2",
            XPOLL, "s_waitcnt vmcnt(0)",
            XCMP, "s_cbranch_vccnz L_xnspin", "s_branch L_xnok"]
    out += ["L_kvwait:", "s_mov_b32 s44, 0x40000", "L_kvspin:", "s_sub_u32 s44, s44, 1", "s_cbranch_scc1 L_kvok", "s_sleep 2",
            "buffer_load_dword v244, v243, s[20:23], s59 offen sc1", "s_waitcnt vmcnt(0)",
            "v_cmp_ne_u32 vcc, 1, v244", "s_cbranch_vccnz L_kvspin", "s_branch L_kvok"]
    for site, par, tq in stubs:
        out += [f"L_stub_{site}:", f"s_call_b64 s[62:63], L_rare_{par}{tq}", f"s_branch L_ret_{site}"]
    for par, tq in sorted({(par, tq) for _, par, tq in stubs}):
        out += [f"L_rare_{par}{tq}:"] + gen_rare(par, QSET[tq])
    for path in (["G", "Pu", "UDD", "UDD", "UDDm", "UDS", "EE", "USS", "USS", "USSm", "E"], ["G", "Pm", "UDS"], ["UDDm", "UDSm", "EE", "E"]):
        tx = []
        for k in path: tx += seg[k]
        for e in lint(tx, "f")[:40]: print(e)
    return out

KVPUB = int(os.environ.get("KVPUB", "23"))
STPV = float(os.environ.get("STPV", "26"))
STP = float(os.environ.get("STP", "29"))
STPK1 = float(os.environ.get("STPK1", "50"))
VW0 = int(os.environ.get("VW0", "340"))
WP = int(os.environ.get("WP", "14"))
XNC = int(os.environ.get("XNC", "540"))
LCAP = int(os.environ.get("LCAP", "3"))
WSH = int(os.environ.get("WSH", "18"))
XP = float(os.environ.get("XP", "5"))
PFOG = int(os.environ.get("PFOG", "0"))
AL = int(os.environ.get("AL", "3"))
XBAR = int(os.environ.get("XBAR", "1"))
NTX = os.environ.get("NTX", " nt")
CPF = int(os.environ.get("CPF", "1"))
if __name__ == "__main__":
    print(len(gen_f_kernel()))
```

```python
from asmlib import *
from sched16 import *
import math, os, re
MF = "v_mfma_f32_16x16x32_bf16"
KNAME = "recurrent_scan__compressed_kv_cla__glu_gated_geglu__prompt_kernel"
WSB = int(os.environ.get("WSB", "0"), 0)
WS_XN = WSB + 0x0
WS_KV = WSB + 0x200000
WS_ACT = WSB + 0x2200000
WS_PART = WSB + 0x4000000
WS_FLAG = WSB + 0x5000000
ACT_ROW = 184 * 1024
LOG2E = 1.4426950408889634
KSCALE = LOG2E / math.sqrt(128.0)
BIG = 2.0 ** 100
THR = float(os.environ.get("THR", "40"))
FAST = int(os.environ.get("FAST", "1"))
NX = int(os.environ.get("NX", "8")) if FAST else 0
SH = float(os.environ.get("SH", "64"))
LMAX = 2.0 ** float(os.environ.get("LMAXE", "60"))
STF = " sc1"
BYTEF = int(os.environ.get("BYTEF", "0"))
XPOLL = "buffer_load_dword v244, v243, s[4:7], 0 offen" + " sc1"
XSH = int(os.environ.get("XSH", "4"))
XCMP = "v_cmp_ne_u32 vcc, 0x01010101, v244" if BYTEF else "v_cmp_gt_u32 vcc, 16, v244"
XPL = int(os.environ.get("XPL", "418"))
VWP = int(os.environ.get("VWP", "14"))
GPW = int(os.environ.get("GPW", "7"))
ASC = os.environ.get("ASC", " sc1")
XSC = os.environ.get("XSC", " sc1")
KSC = os.environ.get("KSC", " sc1")
NT = os.environ.get("NT", " nt")
NTV = os.environ.get("NTV", "")
PFA = int(os.environ.get("PFA", "1"))
PFW = os.environ.get("PFW", "vgq")
NTD = os.environ.get("NTD", "")
NTA = " nt" if "a" in NTD else ""
ALEAD = int(os.environ.get("ALEAD", "2"))
EARLY = int(os.environ.get("EARLY", "0"))
OPF = int(os.environ.get("OPF", "0"))
WSB = int(os.environ.get("WSB", "0"), 0)
DIAG4 = bool(os.environ.get("DIAG4"))
st4 = lambda k: [stamp(k).t] if DIAG4 else []
LEADP = int(os.environ.get("LEADP", "14"))
GBS_ = int(os.environ.get("GBS_", "20"))
GBD_ = int(os.environ.get("GBD_", "22"))
DIAG3 = bool(os.environ.get("DIAG3"))
DIAG2 = [int(x) for x in os.environ.get("DIAG2", "").split(",") if x]
def vr(b, n=4): return f"v[{b}:{b + n - 1}]"
def ar(b, n=4): return f"a[{b}:{b + n - 1}]"
def srd(p, d, lo, size):
    p(f"s_mov_b32 s{d}, s{lo}")
    p(f"s_mov_b32 s{d + 1}, s{lo + 1}")
    p(f"s_mov_b32 s{d + 2}, {size:#x}")
    p(f"s_mov_b32 s{d + 3}, 0x20000")

def wave_reduce(p, regs_):
    steps = ["quad_perm:[1,0,3,2] row_mask:0xf bank_mask:0xf", "quad_perm:[2,3,0,1] row_mask:0xf bank_mask:0xf",
             "row_half_mirror row_mask:0xf bank_mask:0xf", "row_mirror row_mask:0xf bank_mask:0xf",
             "row_bcast:15 row_mask:0xa bank_mask:0xf", "row_bcast:31 row_mask:0xc bank_mask:0xf"]
    for st in steps:
        p("s_nop 1")
        for r in regs_: p(f"v_add_f32_dpp v{r}, v{r}, v{r} {st}")
    p("s_nop 1")
def round_bf16(p, dst, src):
    p(f"v_cvt_pk_bf16_f32 v{dst}, v{src}, v{src}")
    p(f"v_and_b32 v{dst}, 0xffff0000, v{dst}")

def emit_ln(p):
    for r in range(2):
        for k in range(4):
            p(f"v_lshlrev_b32 v{8 + 8 * r + 2 * k}, 16, v{4 * r + k}")
            p(f"v_and_b32 v{9 + 8 * r + 2 * k}, 0xffff0000, v{4 * r + k}")
    for r in range(2):
        b = 8 + 8 * r
        p(f"v_add_f32 v{24 + r}, v{b}, v{b + 1}")
        for k in range(2, 8): p(f"v_add_f32 v{24 + r}, v{24 + r}, v{b + k}")
    wave_reduce(p, [24, 25])
    p("v_readlane_b32 s58, v24, 63")
    p("v_readlane_b32 s59, v25, 63")
    p(f"v_mov_b32 v30, {f2u(1.0 / 512):#x}")
    p("s_nop 1")
    for r in range(2): p(f"v_mul_f32 v{26 + r}, s{58 + r}, v30")
    for r in range(2):
        b = 8 + 8 * r
        for k in range(8): p(f"v_sub_f32 v{32 + k}, v{b + k}, v{26 + r}")
        p(f"v_mul_f32 v{24 + r}, v32, v32")
        for k in range(1, 8): p(f"v_fmac_f32 v{24 + r}, v{32 + k}, v{32 + k}")
    wave_reduce(p, [24, 25])
    p("v_readlane_b32 s58, v24, 63")
    p("v_readlane_b32 s59, v25, 63")
    p("s_nop 1")
    for r in range(2):
        p(f"v_mul_f32 v{28 + r}, s{58 + r}, v30")
        round_bf16(p, 28 + r, 28 + r)
        p(f"v_add_f32 v{28 + r}, {f2u(1e-5):#x}, v{28 + r}")
        round_bf16(p, 28 + r, 28 + r)
        p(f"v_sqrt_f32 v{28 + r}, v{28 + r}")
        p("s_nop 0")
        round_bf16(p, 28 + r, 28 + r)
        p(f"v_rcp_f32 v{28 + r}, v{28 + r}")
        round_bf16(p, 26 + r, 26 + r)
    for r in range(2):
        b = 8 + 8 * r
        for k in range(8): p(f"v_sub_f32 v{b + k}, v{b + k}, v{26 + r}")
        for k in range(4): p(f"v_cvt_pk_bf16_f32 v{32 + k}, v{b + 2 * k}, v{b + 2 * k + 1}")
        for k in range(4):
            p(f"v_lshlrev_b32 v{b + 2 * k}, 16, v{32 + k}")
            p(f"v_and_b32 v{b + 2 * k + 1}, 0xffff0000, v{32 + k}")
        for k in range(8): p(f"v_mul_f32 v{b + k}, v{b + k}, v{28 + r}")
        for k in range(4): p(f"v_cvt_pk_bf16_f32 v{40 + 4 * r + k}, v{b + 2 * k}, v{b + 2 * k + 1}")

def ln_ops(g0, g1):
    p = Prog(); emit_ln(p)
    ops = []; lag = False
    for it in p.items:
        t = it.t
        if t.startswith("s_nop"): lag = True; continue
        t = re.sub(r"\bv(\d+)\b", lambda m: "v%d" % (int(m.group(1)) + 176 if int(m.group(1)) < 8 else int(m.group(1)) + 128), t)
        ops.append(Op(t, g0, g1, [ops[-1]] if lag else [], lag=2)); lag = False
    return ops

def Sreg(par, qb, kb): return par * 64 + qb * 16 + kb * 4
def Preg(qb, s): return 128 + qb * 8 + s * 4
def NEGM(qb): return 160 + 4 * qb
def LACC(qb): return 176 + 4 * qb
ONES = 192
MX = [196, 197]; VTM = 198; VTMASK = 199; VCUR, VPREV = 200, 201; TMP = [202, 203, 204, 205]
def Qreg(qb, t): return (t // 2) * 64 + qb * 8 + (t % 2) * 4
def Oreg(qb, db): return [32, 96, 128, 160][qb] + db * 4
def Fbuf(f): return 192 + (f % 16) * 4
S_THR = 61
NPRE = int(os.environ.get("NPRE", "8"))

def tail_reads(base_reg, off):
    return [f"ds_read_b128 {ar(Fbuf(f))}, v{base_reg} offset:{off + f * 1024}" for f in range(NPRE)]

QSET = {'D': [0, 1, 2, 3], 'S': [0, 1], 'D1': [0, 1, 3], 'S1': [1]}
def gen_iter(name, tq, tp, parq, masked, odd_q, kreg, koff, vreg, voff, nreg, noff, first_pv=False, end_ops=(), swap=False, mid_ops=(), vmn=16, extra=None, raw=False, salu=(), xops=()):
    qq = QSET[tq]
    qp = QSET[tp]
    parp = 1 - parq
    mf = []; use = {}; lastq = {}; lastuse = {}
    for kb in range(4):
        for t in range(4):
            f = kb * 4 + t
            use[f] = len(mf)
            for qb in qq:
                d = Sreg(parq, qb, kb)
                mf.append(f"{MF} {vr(d)}, {ar(Fbuf(f))}, {ar(Qreg(qb, t))}, {vr(NEGM(qb)) if t == 0 else vr(d)}")
                lastq[(qb, kb)] = len(mf) - 1
            lastuse[f] = len(mf) - 1
    firstp = {}
    for s in range(2):
        for db in range(8):
            f = 16 + s * 8 + db
            use[f] = len(mf)
            for qb in qp:
                o = Oreg(qb, db)
                firstp.setdefault((qb, s), len(mf))
                mf.append(f"{MF} {ar(o)}, {ar(Fbuf(f))}, {vr(Preg(qb, s))}, {0 if (first_pv and s == 0) else ar(o)}")
            lastuse[f] = len(mf) - 1
        for qb in qp:
            mf.append(f"{MF} {vr(LACC(qb))}, {vr(ONES)}, {vr(Preg(qb, s))}, {0 if (first_pv and s == 0) else vr(LACC(qb))}")
    n = len(mf)
    S = Sched16(mf)
    gB = n - (GBS_ if len(qp) == 2 else GBD_)
    LEAD = LEADP
    for f in range(32):
        tag = ("F", "n", f) if f < NPRE else ("F", "c", f)
        if use[f] > 0: S.add_first(use[f] - 1, Wait("lgkm", tag))
    if isinstance(vmn, int): S.add_first(gB, Ins(f"s_waitcnt vmcnt({vmn}) lgkmcnt(0)"))
    else:
        S.add_first(gB, Ins("s_waitcnt lgkmcnt(0)")); S.add_first(gB + 1, Wait("vm", vmn))
    S.add_first(gB + 1, "s_barrier")
    S.add_first(n - 1, Wait("lgkm", ("F", "x", 0)))
    R = []
    todo = list(range(NPRE, 32))
    for k, f in enumerate(todo):
        e = lastuse[f - 16] if f >= 16 else 0
        dl = min(use[f] - LEAD + 4, gB - 5 - (31 - f))
        e = max(e, min(use[f] - LEAD - 8, dl - 4), 0)
        dl = max(dl, e)
        assert dl < use[f] - 1, (name, f, dl, e)
        if f < 16: ins = f"ds_read_b128 {ar(Fbuf(f))}, v{kreg} offset:{koff + f * 1024}"
        else: ins = f"ds_read_b128 {ar(Fbuf(f))}, v{vreg} offset:{voff + (f - 16) * 1024}"
        R.append(Op(ins, max(e, 0), max(dl, 0), tag=("F", "c", f)))
    for f, ins in enumerate(tail_reads(nreg, noff)):
        R.append(Op(ins, max(gB + 1, lastuse[f + 16]), min(n - 2, gB + 3 + 2 * f), tag=("F", "x", f)))
    D = []
    span = gB - 8
    for q in range(4):
        D.append(Op(f"buffer_load_dwordx4 v240, s[16:19], s55 offen offset:{q * 1024}{KSC} lds", 2 + q * span // 4, 2 + (q + 1) * span // 4 - 1, tag="kv"))
    for x in ["s_add_u32 s54, s54, 0x8000", "s_add_u32 s52, s52, 0x8000", "s_and_b32 s52, s52, 0x1ffff", "s_mov_b32 m0, s52"]:
        D.append(Op(x, 0, gB))
    tl = n - 3 - (gB + 1)
    for q in range(4):
        D.append(Op(f"buffer_load_dwordx4 v240, s[16:19], s54 offen offset:{q * 1024}{KSC} lds", gB + 1 + q * tl // 4, gB + 1 + (q + 1) * tl // 4, tag="kv"))
    D.append(Op("s_mov_b32 m0, s53", 0, n - 1))
    if extra is not None:
        D = []
        nv = len(extra)
        for i, (pre, ins, tag) in enumerate(extra):
            for x in pre: D.append(Op(x, 0, n - 3))
            D.append(Op(ins, 1 + i * (n - 6) // nv, 1 + (i + 1) * (n - 6) // nv + 2, tag=tag, deps=[D[-1]] if pre else []))
    E = []; C = []
    for s in range(2):
        for qb in qp:
            b = Sreg(parp, qb, 2 * s)
            dl = firstp[(qb, s)] - 2
            es = [Op(f"v_exp_f32 v{b + r}, v{b + r}", 0, dl - 1) for r in range(8)]
            done = NX if (s == 0 and qb == qp[0]) else 0
            E += es[done:]
            C += [Op(f"v_cvt_pk_bf16_f32 v{Preg(qb, s) + k}, v{b + 2 * k}, v{b + 2 * k + 1}", 0, dl, [e for i, e in enumerate(es) if i // 2 == k and i >= done]) for k in range(4)]
    M = []
    mins = {}
    vals = []
    mq = [qq[-1] if odd_q else qq[-2]]
    first = True
    for kb in range(4):
        for qb in qq:
            b = Sreg(parq, qb, kb)
            e0 = lastq[(qb, kb)] + (5 if len(qq) > 1 else 8)
            if masked and qb in mq:
                for r in range(4):
                    kk = 16 * kb + r
                    tm = TMP[r % 2]
                    M.append(Op(f"v_subrev_f32 v{tm}, {f2u(kk * BIG):#x}, v{VTMASK}", 0, n - 3))
                    M.append(Op(f"v_min_f32 v{b + r}, v{b + r}, v{tm}", e0, n - 3))
                    mins[b + r] = M[-1]
            if FAST: continue
            if first:
                M.append(Op(f"v_max_f32 v{MX[0]}, v{b}, v{b + 1}", e0, n - 3)); first = False
            else:
                M.append(Op(f"v_max3_f32 v{MX[0]}, v{MX[0]}, v{b}, v{b + 1}", e0, n - 3))
            M.append(Op(f"v_max3_f32 v{MX[0]}, v{MX[0]}, v{b + 2}, v{b + 3}", e0, n - 3))
    if not FAST: M.append(Op(f"v_cmp_lt_f32 vcc, s{S_THR}, v{MX[0]}", 0, n - 2))
    for r in range(NX):
        b = Sreg(parq, qq[0], 0) + r
        E.append(Op(f"v_exp_f32 v{b}, v{b}", lastq[(qq[0], r // 4)] + 8, n - 1, [mins[b]] if b in mins else []))
    X = []
    if swap:
        X = [Op(f"v_xor_b32 v{VCUR}, 0x10000, v{VCUR}", gB, n - 1), Op(f"v_xor_b32 v{VPREV}, 0x10000, v{VPREV}", gB, n - 1, [R[-1]])]
    XO = []
    for i, x in enumerate(xops):
        prev_trans = XO and XO[-1].t.startswith(TRANS)
        XO.append(Op(x, 5 + (i * (n - 12)) // len(xops), min(n - 2, 5 + (i * (n - 12)) // len(xops) + 4), tag="xo"))
    k = schedule(S, [R, D, E, C, M, X, XO], 0, n - 1, name=name)
    if extra is None:
        g = D[7].g + 1
        for x in ["s_add_u32 s55, s55, 0x8000", "s_add_u32 s53, s53, 0x8000", "s_and_b32 s53, s53, 0x1ffff"] + list(mid_ops):
            while S.first[g]: g += 1
            S.add_first(g, x); g += 1
        assert g <= D[-1].g, (name, g, D[-1].g)
    g = 0
    for x in salu:
        while S.first[g]: g += 1
        for y in (x if isinstance(x, list) else [x]): S.add_first(g, y)
        g += 1
    for x in end_ops: S.add_last(n - 1, x)
    print(S.report(f"{name}(k={k})"))
    pre = [Ins(f"ds_read_b128 {ar(Fbuf(f))}, v0", ("F", "n", f)) for f in range(NPRE)] + [Wait("lgkm", ("F", "n", 0))]
    if raw: pre = list(raw) + pre
    return [i.t for i in resolve(S.items(), pre)]

def allreduce4(p, op, src, t0, t1):
    p(f"v_mov_b32 v{t0}, v{src}")
    p(f"v_mov_b32 v{t1}, v{src}")
    p("s_nop 1")
    p(f"v_permlane32_swap_b32 v{t0}, v{t1}")
    p("s_nop 1")
    p(f"{op} v{t0}, v{t0}, v{t1}")
    p(f"v_mov_b32 v{t1}, v{t0}")
    p("s_nop 1")
    p(f"v_permlane16_swap_b32 v{t0}, v{t1}")
    p("s_nop 1")
    p(f"{op} v{t0}, v{t0}, v{t1}")

def rowmax(p, par, qb):
    b = Sreg(par, qb, 0)
    p(f"v_max3_f32 v{MX[1]}, v{b}, v{b + 1}, v{b + 2}")
    for k in range(3, 15, 2): p(f"v_max3_f32 v{MX[1]}, v{MX[1]}, v{b + k}, v{b + k + 1}")
    p(f"v_max_f32 v{MX[1]}, v{MX[1]}, v{b + 15}")
    allreduce4(p, "v_max_f32", MX[1], TMP[0], TMP[1])

def gen_rare(par, qbs):
    p = Prog()
    p("s_nop 15")
    for qb in qbs:
        rowmax(p, par, qb)
        p(f"v_max_f32 v{TMP[0]}, 0, v{TMP[0]}")
        p(f"v_sub_f32 v{TMP[1]}, 0, v{TMP[0]}")
        p(f"v_exp_f32 v{TMP[1]}, v{TMP[1]}")
        for r in range(4): p(f"v_sub_f32 v{NEGM(qb) + r}, v{NEGM(qb) + r}, v{TMP[0]}")
        for r in range(16): p(f"v_sub_f32 v{Sreg(par, qb, 0) + r}, v{Sreg(par, qb, 0) + r}, v{TMP[0]}")
        for r in range(4): p(f"v_mul_f32 v{LACC(qb) + r}, v{LACC(qb) + r}, v{TMP[1]}")
        for r in range(0, 32, 2):
            a = Oreg(qb, 0) + r
            p(f"v_accvgpr_read_b32 v{TMP[2]}, a{a}")
            p(f"v_accvgpr_read_b32 v{TMP[3]}, a{a + 1}")
            p(f"v_mul_f32 v{TMP[2]}, v{TMP[2]}, v{TMP[1]}")
            p(f"v_mul_f32 v{TMP[3]}, v{TMP[3]}, v{TMP[1]}")
            p(f"v_accvgpr_write_b32 a{a}, v{TMP[2]}")
            p(f"v_accvgpr_write_b32 a{a + 1}, v{TMP[3]}")
    p("s_nop 1")
    p("s_setpc_b64 s[62:63]")
    return [i.t for i in p.items]


GPUB = int(os.environ.get("GPUB", "16"))
OB = int(os.environ.get("OB", "2"))
GB2 = int(os.environ.get("GB2", "1"))
GPOLL = int(os.environ.get("GPOLL", "20"))
CPUB = int(os.environ.get("CPUB", "2"))
CTXPF = int(os.environ.get("CTXPF", "0"))
PUB0 = int(os.environ.get("PUB0", "8"))
PUBP = int(os.environ.get("PUBP", "12"))
TP = float(os.environ.get("TP", "4.25"))
TP0 = float(os.environ.get("TP0", "4"))
LST = int(os.environ.get("LST", "8"))
LSP = int(os.environ.get("LSP", "10"))
CPOLL = int(os.environ.get("CPOLL", "100"))
CCHK = int(os.environ.get("CCHK", "136"))
def spin(name, load, cmp):
    return [f"L_{name}wait:", "s_mov_b32 s44, 0x40000", f"L_{name}spin:", "s_sub_u32 s44, s44, 1", f"s_cbranch_scc1 L_{name}ok", "s_sleep 1",
            load, "s_waitcnt vmcnt(0)", cmp, f"s_cbranch_vccnz L_{name}spin", f"s_branch L_{name}ok"]

def o_epi(qb, scr, pk):
    out = []
    for t in range(4):
        R = scr(t); P = pk(t)
        a = Oreg(qb, 2 * t)
        L = LACC(qb)
        rd = [f"v_accvgpr_read_b32 v{R + k}, a{a + k}" for k in range(8)]
        if t: ops = rd
        elif not ONE1: ops = [f"v_rcp_f32 v{TMP[qb]}, v{L}"] + rd
        else:
            ops = [f"v_mov_b32 v{L + 1}, v{L}"] + rd[:2] + [f"v_permlane32_swap_b32 v{L}, v{L + 1}"] + rd[2:3] + [f"v_mov_b32 v{L + 1}, v{L}"] + rd[3:5] + \
                  [f"v_permlane16_swap_b32 v{L}, v{L + 1}"] + rd[5:7] + [f"v_rcp_f32 v{TMP[qb]}, v{L}"] + rd[7:]
        ops += [f"v_mul_f32 v{R + k}, v{R + k}, v{TMP[qb]}" for k in range(8)]
        ops += [f"v_cvt_pk_bf16_f32 v{P + k}, v{R + 2 * k}, v{R + 2 * k + 1}" for k in range(4)]
        out.append((ops, f"buffer_store_dwordx4 {vr(P)}, v{240 if qb % 2 == 0 else 246}, s[20:23], s{100 + qb // 2} offen offset:{t * 1024}{STF}"))
    return out

NK = 46; NC = 23
SL = [8, 9, 0, 1, 2, 3, 4, 5]
def wofs(n): return SL[(n // 2) % 8] * 16384 + (n % 2) * 8192
def areg(n): return 128 + (n % 16) * 8
def areg2(n, tb): return vr(96 + (n - 8) * 8 + 4 * tb) if 8 <= n < 12 else ar(areg(n) + 4 * tb)
def w_ops(n):
    gp = n < 14
    j = n if gp else n - 14
    pre = [f"s_add_u32 m0, s{[51, 56, 50][wofs(n) >> 16]}, {wofs(n) & 0xffff if wofs(n) < 0x20000 else wofs(n)}", f"s_add_u32 s58, s{48 if gp else 49}, {j * 32768}"]
    wsrd = "s[12:15]" if gp else "s[8:11]"
    return [(pre, f"buffer_load_dwordx4 v242, {wsrd}, s58 offen lds", ("cw", n // 2)),
            ([], f"buffer_load_dwordx4 v243, {wsrd}, s58 offen offset:1024 lds", ("cw", n // 2))]
def a_ops(n):
    gp = n < 14
    j = n if gp else n - 14
    pre = [f"s_add_u32 s59, s{64 if gp else 65}, {j * 1024}"] if j % 2 == 0 else []
    return [(pre, f"buffer_load_dwordx4 {areg2(n, 0)}, v240, s[20:23], s59 offen offset:{(j % 2) * 1024}{ASC}", ("ca", n // 2)),
            ([], f"buffer_load_dwordx4 {areg2(n, 1)}, v246, s[20:23], s59 offen offset:{(j % 2) * 1024}{ASC}", ("ca", n // 2))]
def chunk(ch, w=True, a=True):
    return (w_ops(2 * ch) + w_ops(2 * ch + 1) if w else []) + (a_ops(2 * ch) + a_ops(2 * ch + 1) if a else [])
KEEP = 6 * 16384
GB = [36, 37, 41]

def tail_setup():
    sa = ["s_lshr_b32 s35, s34, 1", "s_sub_u32 s31, 15, s30", ["s_bitcmp1_b32 s34, 0", "s_cselect_b32 s31, s31, s30"], "s_and_b32 s45, s29, 3",
          "s_lshl_b32 s46, s31, 3", "s_add_u32 s46, s46, s28", f"s_mul_i32 s46, s46, {ACT_ROW}",
          f"s_add_u32 s46, s46, {WS_ACT:#x}", f"s_mul_i32 s47, s35, {14 * 1024}", "s_add_u32 s64, s46, s47", f"s_add_u32 s64, s64, {128 * 1024}",
          "s_lshl_b32 s47, s35, 15", "s_add_u32 s65, s46, s47",
          "s_lshl_b32 s46, s45, 8", "s_lshl_b32 s47, s28, 13", "s_add_u32 s46, s46, s47", f"s_mul_i32 s47, s35, {14 * 32 * 1024}",
          "s_add_u32 s48, s46, s47", "s_lshl_b32 s47, s35, 20", "s_add_u32 s49, s46, s47", "s_lshl_b32 s50, s28, 11",
          "s_mov_b32 s8, s4", "s_mov_b32 s9, s5", "s_mov_b32 s38, 0", "s_mov_b32 s12, s96", "s_mov_b32 s13, s97", f"s_mov_b32 s14, {1792 * 1024}",
          "s_and_b32 s46, s34, 1", "s_lshl_b32 s46, s46, 2", "s_add_u32 s3, s99, s46", "s_lshl_b32 s46, s35, 13", "s_add_u32 s3, s3, s46",
          "s_lshl_b32 s51, s31, 2", "s_add_u32 s51, s51, s45", "s_lshl_b32 s56, s51, 18", f"s_add_u32 s56, s56, {WS_PART:#x}",
          "s_lshl_b32 s46, s28, 16", "s_lshl_b32 s47, s35, 13", "s_add_u32 s40, s56, s46", "s_add_u32 s40, s40, s47",
          "s_lshl_b32 s46, s35, 16", "s_add_u32 s56, s56, s46", "s_add_u32 s56, s56, s50", f"s_mov_b32 s58, {KEEP + 16384 - 0x10000}",
          ["s_cmp_eq_u32 s28, s35", "s_cselect_b32 s40, 0x7ff00000, s40", f"s_cselect_b32 s58, {KEEP - 0x10000}, s58"]]
    for k in range(3): sa += [f"s_add_u32 s46, s35, {k + 1}", "s_and_b32 s46, s46, 3", "s_lshl_b32 s46, s46, 13", f"s_add_u32 s{GB[k]}, s56, s46"]
    sa += ["s_lshl_b32 s94, s51, 9", f"s_add_u32 s94, s94, {WS_FLAG:#x}", "s_lshl_b32 s46, s35, 7", "s_add_u32 s95, s94, s46",
           "s_lshl_b32 s46, s31, 17", "s_lshl_b32 s47, s35, 14", "s_add_u32 s46, s46, s47", "s_lshl_b32 s47, s45, 8", "s_add_u32 s46, s46, s47",
           "s_lshl_b32 s47, s28, 6", "s_add_u32 s57, s46, s47", "s_lshl_b32 s46, s29, 12", "s_add_u32 s100, s46, s32", "s_add_u32 s101, s46, s33",
           "s_and_b32 s32, s30, 1", "s_lshl_b32 s32, s32, 16", "s_xor_b32 s33, s32, 0x10000", "s_add_u32 s51, s50, s32", "s_add_u32 s56, s50, s33",
           "s_add_u32 s58, s58, s33"]
    va = ["v_lshrrev_b32 v244, 4, v254", "v_and_b32 v245, 15, v254", "v_lshlrev_b32 v243, 1, v244", "v_xor_b32 v245, v245, v243",
          "v_lshlrev_b32 v244, 10, v244", "v_lshl_add_u32 v242, v245, 4, v244", "v_xor_b32 v243, 0x80, v242", f"v_add_u32 v243, {4096 - 1024}, v243",
          "v_lshrrev_b32 v244, 2, v254", "v_and_b32 v245, 7, v244", "v_lshlrev_b32 v244, 8, v244", "v_and_b32 v241, 3, v254", "v_lshl_add_u32 v244, v241, 3, v244",
          "v_add_u32 v244, s32, v244", "s_sub_u32 s46, 0x20000, s32"]
    for c in range(8):
        va += [f"v_xor_b32 v241, {c}, v245", f"v_lshl_add_u32 v{208 + c}, v241, 5, v244", f"v_xor_b32 v{216 + c}, 0x10000, v{208 + c}", f"v_add_u32 v{224 + c}, s46, v{208 + c}"]
    va += ["v_lshl_add_u32 v237, v255, 11, v240", f"v_add_u32 v237, {KEEP - 0x10000}, v237", "v_add_u32 v237, s33, v237",
           "v_and_b32 v247, 3, v254", "v_lshlrev_b32 v247, 7, v247", "v_and_b32 v244, 15, v254", "v_lshlrev_b32 v244, 10, v244",
           "v_lshrrev_b32 v245, 4, v254", "v_lshl_add_u32 v238, v245, 3, v244", "v_add_u32 v239, 0x10000, v238"]
    va += [f"v_mov_b32 v{232 + k}, -1" for k in range(4)]
    return sa, va
HPOLL = "buffer_load_dword v207, v206, s[20:23], s99 offen sc1"
def gp1(): return chunk(0) + chunk(1) + sum([chunk(c, w=False) for c in range(2, 6)], [])
def gp2(): return sum([chunk(c, a=False) for c in range(2, 7)], [])
PRE_SPLIT = (12, 24, 28)
def gpre(): return gp1()[:PRE_SPLIT[2]] + gp2()[:12] + gp1()[PRE_SPLIT[2]:] + gp2()[12:]

def opf():
    if not OPF: return []
    return ["s_lshr_b32 s46, s2, 3", "s_lshl_b32 s46, s46, 2", "s_add_u32 s46, s46, s28", "v_lshlrev_b32 v241, 7, v254",
            "s_lshl_b32 s59, s35, 20", "s_lshl_b32 s46, s46, 13", "s_add_u32 s59, s59, s46",
            "buffer_load_dword v251, v241, s[8:11], s59 offen"]

def lchk(qa, qb_, first):
    if not FAST: return []
    return [f"v_cmp_ngt_f32 vcc, s{S_THR}, v{LACC(qa)}", "v_nop", "s_mov_b64 s[62:63], vcc" if first else "s_or_b64 s[62:63], s[62:63], vcc",
            f"v_cmp_ngt_f32 vcc, s{S_THR}, v{LACC(qb_)}", "v_nop", "s_or_b64 s[62:63], s[62:63], vcc"]

def gen_early_epi(safe=False):
    out = lchk(2, 3, True)
    k8 = 0
    for qb in (2, 3):
        base = 32 if qb == 2 else 96
        for ops, st in o_epi(qb, lambda t: base + 8 * t, lambda t: base + 8 * t):
            out += ops[:10]
            if k8 % 4 == 0: out.append(f"s_add_u32 s60, s40, {32768 + (k8 // 4) * 4096}")
            out.append(f"buffer_store_dwordx4 v[232:235], v240, s[20:23], s60 offen offset:{(k8 % 4) * 1024} sc1")
            out += ops[10:] + [st]
            k8 += 1
    return [HPOLL] + out


def gen_safe():
    p = Prog()
    M_ = [NEGM(q) for q in range(4)]; TQ = [NEGM(q) + 1 for q in range(4)]
    p("s_waitcnt vmcnt(0) lgkmcnt(0)")
    p("s_nop 15")
    p("s_barrier")
    for q in range(4):
        for r in range(32): p(f"v_accvgpr_write_b32 a{Oreg(q, 0) + r}, 0")
        for r in range(4): p(f"v_mov_b32 v{LACC(q) + r}, 0")
        p(f"v_mov_b32 v{M_[q]}, {f2u(-2.0 ** 120):#x}")
    p("s_sub_u32 s46, 15, s30")
    p("s_lshl_b32 s47, s46, 7")
    p("s_lshl_b32 s52, s30, 7")
    for q in range(4):
        p(f"v_cvt_f32_u32 v{TMP[0]}, s{47 if q < 2 else 52}")
        if q & 1: p(f"v_add_f32 v{TMP[0]}, {f2u(64.0):#x}, v{TMP[0]}")
        p(f"v_mul_f32 v{TMP[0]}, {f2u(BIG):#x}, v{TMP[0]}")
        p(f"v_add_f32 v{TQ[q]}, v{VTMASK}, v{TMP[0]}")
    p(f"v_add_u32 v{VCUR}, s33, v240")
    p("s_lshl_b32 s47, s46, 1")
    p("s_add_u32 s47, s47, 2")
    p("s_lshl_b32 s54, s28, 12")
    p("s_add_u32 s52, s54, s33")
    p("s_add_u32 s53, s52, 49152")
    p("s_add_u32 s52, s52, 32768")
    p.label("L_safe_loop")
    p("s_mov_b32 m0, s52")
    p("s_add_u32 s55, s54, 16384")
    for k in range(4): p(f"buffer_load_dwordx4 v240, s[16:19], s54 offen offset:{k * 1024} sc1 lds")
    p("s_mov_b32 m0, s53")
    p("s_nop 0")
    for k in range(4): p(f"buffer_load_dwordx4 v240, s[16:19], s55 offen offset:{k * 1024} sc1 lds")
    p("s_waitcnt vmcnt(0)")
    p("s_barrier")
    for f in range(16): p(f"ds_read_b128 {ar(Fbuf(f))}, v{VCUR} offset:{32768 + f * 1024}")
    p("s_waitcnt lgkmcnt(0)")
    for kb in range(4):
        for t in range(4):
            for q in range(4):
                d = Sreg(0, q, kb)
                p(f"{MF} {vr(d)}, {ar(Fbuf(kb * 4 + t))}, {ar(Qreg(q, t))}, {vr(d) if t else 0}")
    for f in range(16): p(f"ds_read_b128 {ar(Fbuf(f))}, v{VCUR} offset:{49152 + f * 1024}")
    for q in range(4):
        b = Sreg(0, q, 0)
        for r in range(16):
            p(f"v_subrev_f32 v{TMP[r % 2]}, {f2u((16 * (r // 4) + r % 4) * BIG):#x}, v{TQ[q]}")
            p(f"v_min_f32 v{b + r}, v{b + r}, v{TMP[r % 2]}")
        p(f"v_subrev_f32 v{TQ[q]}, {f2u(64 * BIG):#x}, v{TQ[q]}")
        rowmax(p, 0, q)
        p(f"v_max_f32 v{TMP[0]}, v{TMP[0]}, v{M_[q]}")
        p(f"v_sub_f32 v{TMP[1]}, v{M_[q]}, v{TMP[0]}")
        p(f"v_exp_f32 v{TMP[1]}, v{TMP[1]}")
        p(f"v_mov_b32 v{M_[q]}, v{TMP[0]}")
        for r in range(16): p(f"v_sub_f32 v{b + r}, v{b + r}, v{TMP[0]}")
        for r in range(16): p(f"v_exp_f32 v{b + r}, v{b + r}")
        for r in range(4): p(f"v_mul_f32 v{LACC(q) + r}, v{LACC(q) + r}, v{TMP[1]}")
        for k in range(8): p(f"v_cvt_pk_bf16_f32 v{Preg(q, 0) + k}, v{b + 2 * k}, v{b + 2 * k + 1}")
        for r in range(0, 32, 2):
            a = Oreg(q, 0) + r
            p(f"v_accvgpr_read_b32 v{TMP[2]}, a{a}")
            p(f"v_accvgpr_read_b32 v{TMP[3]}, a{a + 1}")
            p(f"v_mul_f32 v{TMP[2]}, v{TMP[2]}, v{TMP[1]}")
            p(f"v_mul_f32 v{TMP[3]}, v{TMP[3]}, v{TMP[1]}")
            p(f"v_accvgpr_write_b32 a{a}, v{TMP[2]}")
            p(f"v_accvgpr_write_b32 a{a + 1}, v{TMP[3]}")
    p("s_waitcnt lgkmcnt(0)")
    p("s_barrier")
    for s in range(2):
        for db in range(8):
            for q in range(4): p(f"{MF} {ar(Oreg(q, db))}, {ar(Fbuf(s * 8 + db))}, {vr(Preg(q, s))}, {ar(Oreg(q, db))}")
        for q in range(4): p(f"{MF} {vr(LACC(q))}, {vr(ONES)}, {vr(Preg(q, s))}, {vr(LACC(q))}")
    p("s_add_u32 s54, s54, 32768")
    p("s_sub_u32 s47, s47, 1")
    p("s_cmp_lg_u32 s47, 0")
    p("s_cbranch_scc1 L_safe_loop")
    p("s_nop 15")
    p(f"s_mov_b32 s{S_THR}, 0x7f800000")
    for x in gen_early_epi(True)[1:]: p(x)
    for r in range(16): p(f"v_mov_b32 v{Sreg(1, 1, 0) + r}, {f2u(-2.0 ** 100) if r >= NX else 0:#x}")
    for pre, ins, tag in gpre():
        for x in pre: p(x)
        p(ins)
    p("s_mov_b32 s38, 1")
    p("s_branch L_fin")
    tx = [i.t for i in p.items]
    a = tx.index("L_safe_loop:"); b = tx.index("s_cbranch_scc1 L_safe_loop")
    for e in lint(tx[:b] + tx[a + 1:], "safe")[:20]: print(e)
    return ["L_safe:", "s_cmp_eq_u32 s38, 1", "s_cbranch_scc1 L_safe_ret"] + tx

def tail_pre():
    pa = [tag for pre, ins, tag in gpre()]
    pb = [tag for c in range(7) for pre, ins, tag in chunk(c, a=False)] + [tag for c in range(6) for pre, ins, tag in chunk(c, w=False)]
    n = len(pa); slots = [set() for _ in range(n)]
    for tg in set(pa):
        d = min(n - 1 - max(i for i, x in enumerate(pa) if x == tg), len(pb) - 1 - max(i for i, x in enumerate(pb) if x == tg))
        slots[n - 1 - d].add(tg)
    return [Ins("buffer_load_dwordx4 v240, s[16:19], s55 offen lds", frozenset(x)) for x in slots]

def gen_tail():
    p = Prog()
    slow = []
    for f in range(NPRE, 16): p(f"ds_read_b128 {ar(Fbuf(16 + f))}, v{VCUR} offset:{49152 + f * 1024}", ("VE", f))
    b = Sreg(1, 1, 0)
    for r in range(NX, 16): p(f"v_exp_f32 v{b + r}, v{b + r}")
    for k in range(8): p(f"v_cvt_pk_bf16_f32 v{Preg(1, 0) + k}, v{b + 2 * k}, v{b + 2 * k + 1}")
    p("v_and_b32 v206, 0x1c00, v206")
    p.wait_vm(("cw", 0))
    p("s_waitcnt lgkmcnt(0)")
    p("s_barrier")
    for x in ["s_mov_b32 s4, s42", "s_mov_b32 s5, s43", "s_mov_b32 s6, 0x200000", "s_mov_b32 s7, 0x20000"]: p(x)
    mf = []
    for s in range(2):
        mf.append(f"{MF} {vr(LACC(1))}, {vr(ONES)}, {vr(Preg(1, s))}, {vr(LACC(1))}")
        for db in range(8): mf.append(f"{MF} {ar(Oreg(1, db))}, {ar(Fbuf(16 + s * 8 + db))}, {vr(Preg(1, s))}, {ar(Oreg(1, db))}")
    if not FAST: p(f"buffer_store_dword v249, v248, s[20:23], s98 offen offset:4{STF}", "flag")
    S = Sched16(mf)
    late = o_epi(0, lambda t: 8 * t, lambda t: 64 + 4 * t) + o_epi(1, lambda t: 32 + 8 * t, lambda t: 80 + 4 * t)
    seq = []
    rest = chunk(7, a=False) + chunk(6, w=False)
    for i, (ops, st) in enumerate(late):
        seq += [(x, None) for x in ops[:10]]
        if i < 4:
            for pre, ins, tag in rest[i:i + 1]: seq += [(y, None) for y in pre] + [(ins, tag)]
        seq += [(x, None) for x in ops[10:]]
        if i < LST: seq.append((st, "ctxst"))
    vs = tail_setup()[1][8:-4]
    for i, (pre, ins, tag) in enumerate(rest[4:]):
        seq += [(x, None) for x in vs[4 * i:4 * i + 4]] + [(y, None) for y in pre] + [(ins, tag)]
    seq += [(x, None) for x in vs[4 * len(rest[4:]):]]
    if FAST:
        seq += [(x, None) for x in lchk(0, 1, False) + ["s_or_b32 s62, s62, s63", "v_mov_b32 v244, s62", "v_lshlrev_b32 v245, 2, v255", f"s_add_u32 s46, s33, {KEEP + 16384 - 0x10000}", "v_add_u32 v245, s46, v245",
                                                         "ds_write_b32 v245, v244", "v_mov_b32 v245, s46"]]
    ne = 0
    for g in range(len(mf)):
        while S.load(g) + cost(seq[ne][0]) <= 2:
            S.add_last(g, Ins(*seq[ne])); ne += 1
    p.extend(S.items())
    if DIAG and not DIAG2: p.items.append(stamp(10))
    for x, tag in seq[ne:]: p(x, tag)
    if DIAG and not DIAG2: p.items.append(stamp(11))
    GO = [(n, c) for n in range(NK - 2) for c in range(8)] + [(n, 2 * cp + cf) for cp in range(4) for n in (NK - 2, NK - 1) for cf in range(2)]
    def w_reads(gi):
        n, c = GO[gi]
        off = wofs(n)
        d = 128 + 4 * (gi % 16)
        return [f"ds_read_b64_tr_b16 v[{d + 2 * hf}:{d + 2 * hf + 1}], v{208 + 8 * (off >> 16) + c} offset:{(off & 0xffff) + hf * 4096}" for hf in range(2)]
    RA = 8
    for gi in range(RA):
        for x in w_reads(gi): p(x, ("W", gi))
    p.wait_vm(("ca", 0))
    p.wait_lgkm(("W", 0))
    mf = []
    for gi, (n, c) in enumerate(GO):
        base = 0 if n < 14 else 64
        first = n in (0, 14)
        for tb in range(2):
            acc = base + ((c >> 1) * 2 + tb) * 8 + (c & 1) * 4
            mf.append(f"{MF} {vr(acc)}, {vr(128 + 4 * (gi % 16))}, {areg2(n, tb)}, {0 if first else vr(acc)}")
    S = Sched16(mf)
    NG = NK * 8; NM = len(mf)
    BS = [ch for ch in range(NC - 1) if ch % OB == 0]
    def gB(ch): return 32 * ch + 16
    for gi in range(RA, NG):
        ch, k = gi // 16, gi % 16
        g = 2 * (gi - RA)
        if ch in BS and k >= 12: g -= [1, 2, 3, 4][k - 12]
        for x in w_reads(gi): S.add_mem(g, x, ("W", gi))
    for gi in range(1, NG): S.add_first(2 * gi - 1, Wait("lgkm", ("W", gi)))
    assert GPUB in BS and CPUB in BS
    for ch in range(NC - 1):
        if ch in BS:
            S.add_first(gB(ch) - 2, Ins("s_waitcnt lgkmcnt(0)"))
            S.add_first(gB(ch), Wait("vm", [("cw", min(ch + OB, NC - 1))] + (["pub"] if ch == GPUB else []) + (["ctxst"] if ch == CPUB else [])))
            S.add_first(gB(ch), "s_barrier")
        S.add_first(32 * (ch + 1) - 2, Wait("vm", ("ca", ch + 1)))
    def wfree(ch):
        return 0 if ch < 8 else gB(min(x for x in BS if x >= ch - 8)) + 1
    S.add_mem(gB(CPUB) + 1, f"buffer_store_dword v249, v248, s[20:23], s98 offen offset:8{STF}", "flag")
    if FAST:
        S.add_mem(gB(CPUB) + 3, f"buffer_store_dword v249, v248, s[20:23], s98 offen offset:4{STF}", "flag")
        S.add_mem(gB(0) + 1, "ds_read_b128 v[200:203], v245", "bad")
        S.add_first(gB(0) + 10, Wait("lgkm", "bad"))
        S.add_valu(gB(0) + 11, "v_or3_b32 v200, v200, v201, v202")
        S.add_valu(gB(0) + 11, "v_or_b32 v200, v200, v203")
        S.add_valu(gB(0) + 13, "v_cmp_ne_u32 vcc, 0, v200")
        S.add_last(gB(0) + 15, "s_cbranch_vccnz L_safe")
        S.add_last(gB(0) + 15, "L_safe_ret:")
    for i, (ops, st) in enumerate(late[LST:]): S.add_mem(2 + LSP * i, st, "ctxst")
    assert 2 + LSP * (8 - LST) < gB(CPUB)
    LD = []
    def ld(ops, e, pace):
        for i, (pre, ins, tag) in enumerate(ops):
            for x in pre: LD.append(Op(x, e + i * pace - 2, NM - 1))
            LD.append(Op(ins, e + i * pace, NM - 1, tag=tag, deps=[LD[-1]] if pre else []))
    nw = 8
    while wfree(nw) + 16 <= CCHK:
        ld(chunk(nw, a=False), wfree(nw), 4); nw += 1
    S.add_mem(CPOLL, "buffer_load_dword v207, v206, s[20:23], s3 offen offset:4 sc1", "cpoll")
    S.add_first(CCHK, Wait("vm", "cpoll"))
    S.add_valu(CCHK, "v_cmp_ne_u32 vcc, 1, v207")
    S.add_last(CCHK + 1, "s_cbranch_vccnz L_cwait")
    S.add_last(CCHK + 1, "L_cok:")
    slow += spin("c", "buffer_load_dword v207, v206, s[20:23], s3 offen offset:4 sc1", "v_cmp_ne_u32 vcc, 1, v207")
    if CTXPF:
        S.add_valu(40, "v_lshlrev_b32 v252, 7, v254")
        S.add_valu(41, f"v_add_u32 v253, {4 * ACT_ROW}, v252")
        ld(chunk(7, w=False), CCHK + 2, 1)
        ld([(["s_lshl_b32 s60, s45, 13"], "s_add_u32 s60, s60, s65", None), ([], "buffer_load_dword v250, v252, s[20:23], s60 offen sc1", "pf"),
            ([], "buffer_load_dword v251, v253, s[20:23], s60 offen sc1", "pf")], CCHK + 2, 1)
    seqo = [("a", ch) for ch in range(7, nw)]
    for ch in range(nw, NC): seqo += [("w", ch), ("a", ch)]
    t = float(CCHK + 2)
    for k, (kind, ch) in enumerate(seqo):
        t = max(t, 32 * (ch - 7) if kind == "a" else wfree(ch))
        pace = TP0 if k < 2 else TP
        for op in chunk(ch, w=(kind == "w"), a=(kind == "a")):
            ld([op], int(t), 0); t += pace
    print("tail ld", schedule(S, [LD], 0, NM - 1, base_cap=2), [o.g for o in LD if o.mem][::8])
    def pub(base, kind, g0, g1, pace=0):
        ops = []
        for k8 in range(8):
            R = base + 8 * k8
            if k8 % 4 == 0: ops.append(Op(f"s_add_u32 s60, s40, {kind * 32768 + (k8 // 4) * 4096}", g0, g1))
            cv = [Op(f"v_cvt_pk_bf16_f32 v{R + k}, v{R + 2 * k}, v{R + 2 * k + 1}", g0, g1) for k in range(4)]
            ops += cv
            ops.append(Op(f"buffer_store_dwordx4 {vr(R)}, v240, s[20:23], s60 offen offset:{(k8 % 4) * 1024} sc1", g0 + k8 * pace, g1, [cv[-1]], tag="pub"))
            ops.append(Op(f"ds_write_b128 v236, {vr(R)} offset:{kind * 8192 + k8 * 1024}", g0, g1, tag="own"))
        return ops
    pb = pub(0, 0, 14 * 16 + PUB0, gB(GPUB) - 20, PUBP)
    print('pub', schedule(S, [pb], 14 * 16, NM - 1, base_cap=2), [o.g for o in pb if o.tag == 'pub'])
    S.add_mem(gB(GPUB) + 1, "buffer_store_dword v249, v248, s[20:23], s95 offen offset:4 sc1", "flag")
    gx = 32 * 17 + 21
    for k in range(4):
        S.add_mem(gx + 4 * k, f"buffer_load_dwordx2 v[{192 + 2 * k}:{193 + 2 * k}], v{238 + k // 2}, s[24:27], s57 offen offset:{32 * (k % 2)}", "x")
    gp = 32 * GPOLL
    S.add_mem(gp + 1, "buffer_load_dword v250, v247, s[20:23], s94 offen offset:4 sc1", "gpoll")
    gc = gp + 33
    S.add_first(gc + 1, Wait("vm", "gpoll"))
    S.add_valu(gc + 1, "v_cmp_ne_u32 vcc, 1, v250")
    S.add_last(gc + 2, "s_cbranch_vccnz L_gwait")
    S.add_last(gc + 2, "L_gok:")
    slow += spin("g", "buffer_load_dword v250, v247, s[20:23], s94 offen offset:4 sc1", "v_cmp_ne_u32 vcc, 1, v250")
    for k in range(3):
        for tb in range(2):
            S.add_mem(gc + 4 + 2 * (2 * k + tb), f"buffer_load_dwordx4 {vr(8 * k + 4 * tb)}, v240, s[20:23], s{GB[k]} offen offset:{tb * 1024} sc1", "gg")
    for tb in range(2): S.add_mem(gc + 18, f"ds_read_b128 {vr(24 + 4 * tb)}, v237 offset:{tb * 1024}", "gown")
    ps = pub(64, 1, 0, NM - 1)
    k8 = -1; inside = []
    for o in ps:
        if o.t.startswith("v_cvt") and (int(re.findall(r"v(\d+)", o.t)[0]) - 64) % 8 == 0: k8 += 1
        o.e = NM - 32 + 8 * (max(k8, 0) // 2) + 8 + 5
    inside = [o for o in ps if o.e < NM - 4]
    print("pub s inside", schedule(S, [inside], NM - 32, NM - 1, base_cap=3), len(inside), len(ps))
    for k in range(3): S.add_first(gc + 20 + 2 * k, f"s_add_u32 s{GB[k]}, s{GB[k]}, 32768")
    if DIAG3:
        for k, g in enumerate([int(x) for x in os.environ.get('D3', '').split(',') if x] or [0, CCHK, CCHK + 4, 14 * 16, 30 * 16, NM - 1]): S.add_first(g, stamp(2 + k))
    print(S.report("tail")[:400])
    OD = os.environ.get("ODROP", "").split(",")
    def keep(i):
        tg = i.tag if isinstance(i, (Ins, Wait)) else None
        if isinstance(i, Ins):
            if isinstance(tg, tuple) and tg[0] in OD: return False
            if tg in OD and tg: return False
        if isinstance(i, Wait):
            tags = tg if isinstance(tg, list) else [tg]
            tags = [t for t in tags if (t[0] if isinstance(t, tuple) else t) not in OD]
            if not tags: return False
            i.tag = tags
        return True
    p.extend([i for i in S.items() if keep(i)])
    GS = 144
    def gather():
        for k in range(3):
            for tb in range(2):
                p(f"buffer_load_dwordx4 {vr(GS + 8 * k + 4 * tb)}, v240, s[20:23], s{GB[k]} offen offset:{tb * 1024} sc1", "gs")
    p("s_nop 3")
    for o in ps[len(inside):]: p(o.t, o.tag)
    gather()
    def unpack(dst, src, n=8):
        for k in range(n):
            p(f"v_lshlrev_b32 v{dst + 2 * k}, 16, v{src + k}")
            p(f"v_and_b32 v{dst + 2 * k + 1}, 0xffff0000, v{src + k}")
    def rnd(b, T):
        for k in range(0, 16, 2): p(f"v_cvt_pk_bf16_f32 v{T + k // 2}, v{b + k}, v{b + k + 1}")
        unpack(b, T)
    def accum(D, src):
        for k in range(8):
            p(f"v_dot2c_f32_bf16 v{D + 2 * k}, s46, v{src + k}")
            p(f"v_dot2c_f32_bf16 v{D + 2 * k + 1}, s47, v{src + k}")
    p("s_mov_b32 s46, 0x00003f80")
    p("s_mov_b32 s47, 0x3f800000")
    p("s_mov_b32 s44, 0x40000")
    if DIAG3: p.items.append(stamp(8))
    p("s_waitcnt lgkmcnt(0)")
    p("s_barrier")
    for tb in range(2): p(f"ds_read_b128 {vr(168 + 4 * tb)}, v237 offset:{8192 + tb * 1024}", "sown")
    p.wait_vm("gg")
    unpack(32, 24)
    for k in range(3): accum(32, 8 * k)
    p("s_nop 2")
    rnd(32, 48)
    for k in range(16): p(f"v_mul_f32 v{48 + k}, {f2u(-LOG2E):#x}, v{32 + k}")
    for k in range(16): p(f"v_exp_f32 v{48 + k}, v{48 + k}")
    for k in range(16): p(f"v_add_f32 v{48 + k}, 1.0, v{48 + k}")
    for k in range(16): p(f"v_rcp_f32 v{48 + k}, v{48 + k}")
    for k in range(16): p(f"v_mul_f32 v{32 + k}, v{32 + k}, v{48 + k}")
    rnd(32, 48)
    unpack(128, 192)
    p.wait_lgkm("sown")
    unpack(0, 168)
    p("s_branch L_o_chk")
    p.label("L_o_poll")
    gather()
    p.label("L_o_chk")
    p("s_waitcnt vmcnt(0)")
    p(f"v_max3_u32 v48, v{GS}, v{GS + 1}, v{GS + 2}")
    p(f"v_max3_u32 v49, v{GS + 3}, v{GS + 4}, v{GS + 5}")
    for k in range(6, 22, 4):
        p(f"v_max3_u32 v48, v48, v{GS + k}, v{GS + k + 1}")
        p(f"v_max3_u32 v49, v49, v{GS + k + 2}, v{GS + k + 3}")
    p(f"v_max3_u32 v48, v48, v{GS + 22}, v{GS + 23}")
    p("v_max_u32 v48, v48, v49")
    p("v_cmp_eq_u32 vcc, -1, v48")
    p("s_cbranch_vccz L_o_go")
    p("s_sub_u32 s44, s44, 1")
    p("s_cbranch_scc0 L_o_poll")
    p.label("L_o_go")
    if DIAG3: p.items.append(stamp(9))
    for k in range(3): accum(0, GS + 8 * k)
    p("s_nop 2")
    for k in range(16): p(f"v_fmac_f32 v{128 + k}, v{k}, v{32 + k}")
    for k in range(0, 16, 2): p(f"v_cvt_pk_bf16_f32 v{96 + k // 2}, v{128 + k}, v{129 + k}")
    for k in range(4):
        p(f"buffer_store_dwordx2 v[{96 + 2 * k}:{97 + 2 * k}], v{238 + k // 2}, s[4:7], s57 offen offset:{32 * (k % 2)}")
    if DIAG:
        p("s_waitcnt vmcnt(0)")
        p.items.append(stamp(12)); p.items.append(stamp(13, True))
        dump_stamps(p, 0, 28, 20)
    return [i.t for i in resolve(p.items, tail_pre())], slow

def gen_f_kernel():
    p = Prog()
    p("s_cmp_ge_u32 s2, 256")
    p("s_cbranch_scc1 L_f_end")
    if DIAG:
        for k in range(14): p(f"s_mov_b32 s{66 + 2 * k}, 0")
        p.items.append(stamp(0, True)); p.items.append(stamp(1))
    p("s_load_dwordx4 s[36:39], s[0:1], 0")
    p("s_load_dwordx4 s[40:43], s[0:1], 24")
    p("s_load_dwordx2 s[44:45], s[0:1], 96")
    p("v_and_b32 v254, 63, v0")
    p("v_lshrrev_b32 v255, 6, v0")
    p("s_and_b32 s34, s2, 7")
    p("v_readfirstlane_b32 s28, v255")
    p("s_lshr_b32 s35, s2, 3")
    p("v_lshlrev_b32 v252, 7, v254")
    if CPF:
        p("s_getpc_b64 s[4:5]")
        p("L_pc0:")
        p(f"s_sub_u32 s4, s4, L_pc0-{KNAME}")
        p("s_subb_u32 s5, s5, 0")
        p(f"s_mov_b32 s6, L_code_end-{KNAME}")
        p("s_mov_b32 s7, 0x20000")
        p("v_lshrrev_b32 v244, 3, v254")
        p("v_lshl_or_b32 v244, v244, 27, v252")
        p("v_lshl_add_u32 v244, v255, 15, v244")
        p("s_lshl_b32 s63, s35, 10")
        p("buffer_load_dword v52, v244, s[4:7], s63 offen", "pf")
    p("v_lshlrev_b32 v240, 4, v254")
    p("v_lshrrev_b32 v244, 4, v254")
    p("v_and_b32 v245, 15, v254")
    p("v_lshlrev_b32 v245, 7, v245")
    p("v_lshl_add_u32 v253, v244, 13, v245")
    p("s_lshl_b32 s60, s35, 2")
    p("s_add_u32 s60, s60, s28")
    p("s_and_b32 s61, s34, 1")
    p("s_lshl_b32 s61, s61, 20")
    p("s_lshl_b32 s63, s60, 13")
    p("s_add_u32 s61, s61, s63")
    p("s_lshr_b32 s62, s34, 1")
    p("s_lshl_b32 s62, s62, 11")
    p("s_lshl_b32 s63, s60, 15")
    p("s_add_u32 s62, s62, s63")
    p("s_lshl_b32 s47, s2, 13")
    p("s_lshl_b32 s46, s28, 11")
    p("s_add_u32 s47, s47, s46")
    for r, v in ((10, 0x200000), (11, 0x20000), (14, 0x400000), (15, 0x20000), (26, 0x200000), (27, 0x20000)): p(f"s_mov_b32 s{r}, {v:#x}")
    p("s_waitcnt lgkmcnt(0)")
    if DIAG and not DIAG2: p.items.append(stamp(2))
    for d, sr in ((24, 36), (25, 37), (8, 38), (9, 39), (12, 40), (13, 41)): p(f"s_mov_b32 s{d}, s{sr}")
    p("buffer_load_dwordx4 v[0:3], v240, s[24:27], s47 offen" + NTX, "ln")
    p("buffer_load_dwordx4 v[4:7], v240, s[24:27], s47 offen offset:1024" + NTX, "ln")
    if XBAR: p("s_barrier")
    if PFA:
        p("buffer_load_dword v246, v252, s[8:11], s61 offen" + os.environ.get("NTPA", ""), "pf")
        p("buffer_load_dword v247, v253, s[12:15], s62 offen" + NT, "pf")
    srd(p, 16, 42, 0x400000)
    srd(p, 20, 44, 0x10000000)
    p("s_load_dwordx2 s[36:37], s[0:1], 16")
    p("s_load_dwordx2 s[38:39], s[0:1], 40")
    p("s_load_dwordx4 s[40:43], s[0:1], 56")
    p("s_load_dwordx2 s[96:97], s[0:1], 72")
    p("s_load_dwordx2 s[98:99], s[0:1], 88")
    p("v_lshl_add_u32 v244, v255, 6, v254")
    p("v_cmp_eq_u32 vcc, 0, v244")
    p("v_mov_b32 v248, 0x7ffff000")
    p("v_mov_b32 v249, 1")
    p("v_mov_b32 v250, 0")
    p("v_cndmask_b32_e64 v248, v248, 0, vcc")
    p("s_and_b32 s47, s34, 1")
    p("s_lshl_b32 s47, s47, 2")
    p("s_and_b32 s46, s35, 3")
    p("s_add_u32 s47, s47, s46")
    p("s_lshr_b32 s3, s34, 1")
    p("s_lshl_b32 s3, s3, 3")
    p("s_lshr_b32 s46, s35, 2")
    p("s_add_u32 s3, s3, s46")
    p("s_lshl_b32 s45, s3, 3")
    p("s_add_u32 s45, s45, s47")
    p("s_lshl_b32 s46, s47, 2")
    p("s_add_u32 s46, s46, s28")
    p("s_lshl_b32 s31, s46, 16")
    p("s_lshl_b32 s94, s46, 15")
    p("s_lshl_b32 s47, s3, 20")
    p("s_add_u32 s94, s94, s47")
    p(f"s_add_u32 s94, s94, {WS_KV:#x}")
    p("s_lshl_b32 s95, s3, 8")
    p("s_lshl_b32 s3, s45, 7")
    p(f"s_add_u32 s3, s3, {WS_FLAG + 0x10000:#x}")
    p("s_lshl_b32 s29, s34, 2")
    p("s_lshr_b32 s46, s35, 3")
    p("s_add_u32 s29, s29, s46")
    p("s_and_b32 s30, s35, 7")
    p(f"s_mul_i32 s48, s28, 24576")
    p("s_lshl_b32 s49, s28, 12")
    p("s_lshl_b32 s50, s28, 6")
    p("s_add_u32 s50, s50, s95")
    p("s_and_b32 s45, s28, 1")
    p("s_lshr_b32 s52, s28, 1")
    p("s_lshl_b32 s53, s45, 13")
    p("s_lshl_b32 s54, s52, 12")
    p("s_add_u32 s53, s53, s54")
    p("s_lshl_b32 s54, s45, 6")
    p("s_lshl_b32 s55, s52, 19")
    p("s_add_u32 s55, s54, s55")
    p("s_add_u32 s54, s55, s95")
    p("s_lshl_b32 s56, s29, 8")
    p("s_add_u32 s65, s55, s56")
    p("s_sub_u32 s56, 15, s30")
    p("s_lshl_b32 s32, s56, 3")
    p("s_add_u32 s32, s32, s28")
    p("s_lshl_b32 s33, s30, 3")
    p("s_add_u32 s33, s33, s28")
    p("s_lshl_b32 s46, s32, 14")
    p("s_lshl_b32 s47, s33, 14")
    p(f"s_mul_i32 s32, s32, {ACT_ROW}")
    p(f"s_add_u32 s32, s32, {WS_ACT:#x}")
    p(f"s_mul_i32 s33, s33, {ACT_ROW}")
    p(f"s_add_u32 s33, s33, {WS_ACT:#x}")
    p("s_add_u32 s55, s29, 32")
    p("s_cmp_lt_u32 s29, 24")
    p("s_cselect_b32 s55, s55, s29")
    p(f"s_mul_i32 s64, s52, {64 * 3584}")
    p("s_lshl_b32 s63, s29, 6")
    p("s_add_u32 s35, s64, s63")
    p("s_lshl_b32 s63, s55, 6")
    p("s_add_u32 s64, s64, s63")
    p("s_lshl_b32 s51, s29, 20")
    p(f"s_add_u32 s51, s51, {WS_KV:#x}")
    p("s_lshl_b32 s56, s29, 10")
    p(f"s_add_u32 s56, s56, {128 * 1024}")
    p("s_add_u32 s100, s56, s32")
    p("s_add_u32 s101, s56, s33")
    p("s_lshl_b32 s61, s34, 8")
    p("s_lshr_b32 s63, s60, 1")
    p(f"s_mul_i32 s63, s63, {8 * 3584}")
    p("s_add_u32 s61, s61, s63")
    p("s_lshl_b32 s52, s34, 10")
    p("s_lshl_b32 s63, s60, 15")
    p("s_add_u32 s52, s52, s63")
    p("v_lshrrev_b32 v241, 3, v254")
    p("v_lshlrev_b32 v241, 13, v241")
    p("v_and_b32 v242, 7, v254")
    for n in range(8):
        p(f"v_xor_b32 v243, {n}, v242")
        p(f"v_lshl_add_u32 v{224 + n}, v243, 4, v241")
    p("v_and_b32 v241, 7, v254")
    p("v_bfe_u32 v242, v254, 3, 1")
    p("v_lshlrev_b32 v242, 7, v242")
    p("v_lshl_add_u32 v242, v241, 10, v242")
    p("v_add_u32 v242, s48, v242")
    p("v_lshrrev_b32 v243, 4, v254")
    for tt in range(2):
        p(f"v_add_u32 v244, {4 * tt}, v243")
        p("v_xor_b32 v244, v244, v241")
        p(f"v_lshl_add_u32 v{232 + tt}, v244, 4, v242")
    p("v_lshlrev_b32 v241, 9, v243")
    p("v_bfe_u32 v242, v254, 2, 2")
    p("v_lshl_add_u32 v241, v242, 6, v241")
    p("v_and_b32 v242, 3, v254")
    p("v_lshl_add_u32 v241, v242, 3, v241")
    p("v_and_b32 v242, 1, v243")
    p("v_lshl_add_u32 v234, v242, 5, v241")
    p("v_xor_b32 v237, 32, v234")
    for cf in range(2):
        p(f"v_add_u32 v{235 + 3 * cf}, 0x10000, v{234 + 3 * cf}")
        p(f"v_add_u32 v{236 + 3 * cf}, 0x20000, v{234 + 3 * cf}")
    p("v_lshrrev_b32 v244, 5, v254")
    p("v_lshlrev_b32 v251, 30, v244")
    p("v_lshlrev_b32 v244, 1, v244")
    p("v_and_b32 v245, 3, v254")
    p("v_xor_b32 v245, v245, v244")
    p("v_lshlrev_b32 v245, 4, v245")
    p("v_lshrrev_b32 v244, 2, v254")
    p("v_lshl_add_u32 v241, v244, 13, v245")
    p("v_mul_u32_u24 v244, 3584, v244")
    p("v_add_u32 v242, v244, v245")
    p("v_bfe_u32 v245, v254, 2, 3")
    p("v_mul_u32_u24 v245, 3584, v245")
    p("v_and_b32 v244, 1, v254")
    p("v_lshl_add_u32 v245, v244, 7, v245")
    p("v_bfe_u32 v244, v254, 1, 1")
    p("v_lshl_add_u32 v245, v244, 11, v245")
    p("v_or_b32 v245, v245, v251")
    p("v_and_b32 v243, 15, v254" if not BYTEF else "v_mov_b32 v243, v254")
    p(f"v_lshlrev_b32 v243, {2 if BYTEF else XSH}, v243")
    p("v_lshlrev_b32 v48, 7, v254")
    p("v_lshl_add_u32 v48, v255, 5, v48")
    p("v_add_u32 v48, 0x24000, v48")
    p("v_lshl_add_u32 v49, v255, 11, v240")
    p("v_add_u32 v49, 0x24000, v49")
    p("v_lshrrev_b32 v50, 3, v254")
    p("v_lshlrev_b32 v50, 8, v50")
    p("v_and_b32 v51, 7, v254")
    p("v_lshl_add_u32 v50, v51, 4, v50")
    p("s_waitcnt lgkmcnt(0)")
    p("s_cmp_eq_u32 s45, 0")
    p("s_cselect_b32 s40, s40, s42")
    p("s_cselect_b32 s41, s41, s43")
    p("s_mov_b32 s4, s98")
    p("s_mov_b32 s5, s99")
    p("s_mov_b32 s6, 256")
    p("s_mov_b32 s7, 0x20000")
    p("s_load_dwordx2 s[42:43], s[0:1], 80")
    p("s_lshl_b32 s56, s55, 10")
    p(f"s_add_u32 s56, s56, {128 * 1024}")
    p("s_add_u32 s98, s56, s32")
    p("s_add_u32 s99, s56, s33")
    p("s_lshl_b32 s63, s2, 7")
    p(f"s_add_u32 s63, s63, {WS_FLAG:#x}")
    BLK = [6, 7, 8, 9, 6, 7, 8, 9, 0, 1, 2, 3, 4, 5, 6, 7, 8, 9, 0, 1, 2, 3, 6, 7, 8, 9, 4, 5, 6, 7, 8, 9]
    def dma_A(s):
        ops = []
        for n in range(8):
            pre = []
            if n % 4 == 0:
                pre = [f"s_add_u32 m0, s48, {(s % 3) * 8192 + (n // 4) * 4096}", f"s_add_u32 s56, s31, {s * 128 + (n // 4) * 4096}"]
            ops.append((pre, f"buffer_load_dwordx4 v{224 + n}, s[8:11], s56 offen offset:{(n % 4) * 1024}{NTA} lds", ("A", s)))
        return ops
    def dma_W(n):
        ops = []
        kq = n % 4
        for q in range(4):
            m0 = "s53"
            if n < 8:
                pre = [f"s_add_u32 s57, s54, {(kq * 128 + q * 16) * 8192 + (n // 4) * 128 - q * 1024}"]
                ins = f"buffer_load_dwordx4 v241, s[12:15], s57 offen offset:{q * 1024} lds"
            elif n < 16:
                pre = [f"s_add_u32 s57, s50, {((n - 8) * 64 + q * 16) * 8192 - q * 1024}"]; m0 = "s49"
                ins = f"buffer_load_dwordx4 v241, s[16:19], s57 offen offset:{q * 1024} lds"
            elif n < 24:
                pre = [f"s_add_u32 s57, s{35 if n < 20 else 64}, {(kq * 128 + q * 16) * 3584 - q * 1024}"]
                ins = f"buffer_load_dwordx4 v242, s[12:15], s57 offen offset:{q * 1024} lds"
            else:
                pre = [f"s_add_u32 s57, s65, {(kq * 128 + q * 16) * 8192 - q * 1024 + (128 if n >= 28 else 0)}"]
                ins = f"buffer_load_dwordx4 v241, s[8:11], s57 offen offset:{q * 1024} lds"
            if "kkvvggqq"[n // 4] in NTD: ins = ins.replace(" lds", " nt lds")
            if q == 0: pre = [f"s_add_u32 m0, {m0}, {BLK[n] * 16384}"] + pre
            ops.append((pre, ins, ("L", n)))
        return ops
    def kv_half(tile, part):
        ops = []
        for q in range(4):
            pre = []
            if q == 0: pre = [f"s_add_u32 m0, s49, {tile * 32768 + part * 16384}", f"s_add_u32 s57, s49, {tile * 32768 + part * 16384}"]
            ops.append((pre, f"buffer_load_dwordx4 v240, s[16:19], s57 offen offset:{q * 1024}{KSC} lds", ("kv", tile, part)))
        return ops
    def now(ops):
        for pre, ins, tag in ops:
            for x in pre: p(x)
            p(ins, tag)
    first = dma_W(0) + dma_A(0) + dma_A(1) + (dma_W(1) + dma_A(2) if ALEAD == 3 else [])
    now(first[:EARLY])
    p.wait_vm("ln")
    if DIAG and not DIAG2: p.items.append(stamp(3))
    emit_ln(p)
    p("ds_write_b128 v48, v[40:43]")
    p("ds_write_b128 v48, v[44:47] offset:16")
    p("s_lshr_b32 s58, s2, 1")
    p("s_lshl_b32 s58, s58, 14")
    p("s_and_b32 s59, s2, 1")
    p("s_lshl_b32 s59, s59, 7")
    p("s_add_u32 s58, s58, s59")
    p("s_add_u32 s58, s58, s49")
    if WS_XN: p(f"s_add_u32 s58, s58, {WS_XN:#x}")
    p("s_waitcnt lgkmcnt(0)")
    p("s_barrier")
    p("ds_read_b128 v[40:43], v49")
    p("ds_read_b128 v[44:47], v49 offset:1024")
    p("s_lshr_b32 s59, s2, 4")
    p(f"s_lshl_b32 s59, s59, {XSH}")
    p("s_waitcnt lgkmcnt(0)")
    p(f"buffer_store_dwordx4 v[40:43], v50, s[20:23], s58 offen{STF}", "xnst")
    p(f"buffer_store_dwordx4 v[44:47], v50, s[20:23], s58 offen offset:2048{STF}", "xnst")
    p(f"buffer_store_dword v250, v248, s[20:23], s63 offen{STF}", "zf")
    p(f"buffer_store_dword v250, v248, s[20:23], s63 offen offset:4{STF}", "zf")
    p(f"buffer_store_dword v250, v248, s[20:23], s3 offen{STF}", "zf")
    p(f"s_add_u32 s63, s63, 0x20000")
    p(f"buffer_store_dword v250, v248, s[20:23], s63 offen offset:8{STF}", "zf")
    p(f"buffer_store_dword v250, v248, s[20:23], s63 offen{STF}", "zf")
    p(f"buffer_store_dword v250, v248, s[20:23], s63 offen offset:4{STF}", "zf")

    if os.environ.get('PFW8'):
        p('s_waitcnt vmcnt(0)'); p.items.append(stamp(2))
    now(first[EARLY:])

    groups = []
    def accT(base, c, cf, rb): return base + (c * 4 + rb) * 8 + cf * 4
    def accV(base, c, cf, rb): return base + ((c * 2 + cf) * 2 + (rb >> 1)) * 8 + (rb & 1) * 4
    def add_double(seg0, bases):
        for s in range(8):
            for tt in range(2):
                for c in range(4):
                    for cf in range(2):
                        groups.append(dict(off=BLK[seg0 + s] * 16384 + c * 4096 + tt * 2048, cf=cf, t=2 * s + tt,
                                           acc=[accV(bases[c >> 1], c & 1, cf, rb) for rb in range(4)], vt=True))
    def add_single(seg0, base):
        for q in range(4):
            for tq, c in ([(tq, c) for c in range(2) for tq in range(4)] if seg0 + q == 31 else [(tq, c) for tq in range(4) for c in range(2)]):
                if True:
                    for cf in range(2):
                        groups.append(dict(off=BLK[seg0 + q] * 16384 + c * 8192 + tq * 2048, cf=cf, t=4 * q + tq,
                                           acc=[accT(base, c, cf, rb) for rb in range(4)], vt=False))
    add_single(0, 0); add_single(4, 64); add_double(8, [128, 0])
    add_single(16, 64); add_single(20, 128); add_single(24, 0); add_single(28, 64)
    NG = len(groups)
    mf = []
    for n, G in enumerate(groups):
        w = vr(192 + 4 * (n % 8))
        for rb in range(4):
            a = ar((rb * 16 + G["t"]) * 4)
            d = vr(G["acc"][rb])
            c = 0 if G["t"] == 0 else d
            mf.append(f"{MF} {d}, {a}, {w}, {c}" if G["vt"] else f"{MF} {d}, {w}, {a}, {c}")
    S = Sched16(mf)
    def w_reads(n):
        G = groups[n]
        out = []
        for hf in range(2):
            off = G["off"] + hf * 256
            d = 192 + 4 * (n % 8) + 2 * hf
            out.append(f"ds_read_b64_tr_b16 v[{d}:{d + 1}], v{234 + 3 * G['cf'] + (off >> 16)} offset:{off & 0xffff}")
        return out
    def a_reads(s):
        return [f"ds_read_b128 {ar((rb * 16 + 2 * s + tt) * 4)}, v{232 + tt} offset:{(s % 3) * 8192 + rb * 256}" for tt in range(2) for rb in range(4)]
    RA = 5
    if DIAG and not DIAG2: p.items.append(stamp(4))
    p.wait_vm(("A", 0))
    p("s_barrier")
    if DIAG and not DIAG2: p.items.append(stamp(5))
    for x in a_reads(0): p(x, ("Ar", 0))
    for n in range(RA):
        for x in w_reads(n): p(x, ("W", n))
    p.wait_lgkm(("W", 0))
    for n in range(RA, NG):
        k = n % 16
        if k <= 13: g = 4 * (n - RA)
        elif k == 14: g = 4 * (n - 6) + 2
        else: g = 4 * (n - 6)
        for i, x in enumerate(w_reads(n)): S.add_mem(g + i, x, ("W", n))
    for n in range(1, NG): S.add_first(4 * n - 1, Wait("lgkm", ("W", n)))
    for s in range(1, 8):
        g = 32 * s - 22
        S.add_first(g, Wait("vm", ("A", s)))
        for i, x in enumerate(a_reads(s)): S.add_mem(g + [0, 0, 1, 1, 4, 4, 5, 5][i], x, ("Ar", s))
        S.add_first(32 * s - 10, Wait("lgkm", ("Ar", s)))
    def gB(n): return 64 * n + 4 * 11
    GBS = [n for n in range(31) if n < 8 or not GB2 or n % 2 == 1]
    for n in GBS:
        nxt = min([x for x in GBS if x > n] + [31])
        tags = [("L", nxt)]
        if n == 0: tags += ["xnst", "zf"]
        if n == KVPUB: tags.append("kvst")
        if n == 29: tags.append(("kv", 0, 0))
        S.add_first(gB(n) - 2, Ins("s_waitcnt lgkmcnt(0)"))
        S.add_first(gB(n), Wait("vm", tags))
        S.add_first(gB(n), "s_barrier")
    assert KVPUB in GBS
    def win(n): return gB(n - 1) + 1
    def freed(seg): return gB(min(x for x in GBS if x >= seg)) + 1
    def lfree(n):
        prev = [m for m in range(n) if BLK[m] == BLK[n]]
        return freed(prev[-1]) if prev else freed(3)
    def bfree(blk): return freed(max(m for m in range(32) if BLK[m] == blk))
    LD = []
    def ld(ops, e, pace=1):
        for i, (pre, ins, tag) in enumerate(ops):
            for x in pre: LD.append(Op(x, e + i * pace - 3, 2040))
            LD.append(Op(ins, e + i * pace, 2040, tag=tag, deps=[LD[-2]] if len(pre) == 2 else []))
    one = lambda ins, tag, pre=(): [([], x, None) for x in pre] + [([], ins, tag)]
    if ALEAD == 3:
        ld(dma_A(3), 0); ld(dma_W(2), 8); ld(dma_A(4), 22)
        ld(dma_A(5), 54); ld(dma_W(3), 62); ld(dma_A(6), 86); ld(dma_A(7), 118); ld(dma_W(4), 126); ld(dma_W(5), 140, 4)
    else:
        ld(dma_W(1), 0); ld(dma_A(2), 0); ld(dma_A(3), 20); ld(dma_W(2), 40); ld(dma_A(4), 52); ld(dma_A(5), 84); ld(dma_W(3), 100)
        ld(dma_A(6), 116); ld(dma_A(7), 144); ld(dma_W(4), 156); ld(dma_W(5), 160)
    if not BYTEF: ld(one("buffer_atomic_add v249, v248, s[4:7], s59 offen", "pub"), win(3))
    else: S.add_mem(win(BYTEF), "buffer_store_byte v249, v248, s[4:7], s2 offen sc1", "pub")
    if "v" in PFW: ld(one("buffer_load_dword v246, v253, s[16:19], s62 offen" + NTV, "pf"), win(3))
    ld(dma_W(6), win(3), 2)
    ld(dma_W(7), VW0 - 24, 4)
    for n in range(8, 13): ld(dma_W(n), VW0 + (n - 8) * VWP, 3)
    ld(one("buffer_load_dword v250, v245, s[12:15], s61 offen", "pf", ["s_mov_b32 s12, s40", "s_mov_b32 s13, s41", f"s_mov_b32 s14, {512 * 3584}"])[:4 if "g" in PFW else 3], win(GPW))
    print("ld1", schedule(S, [LD], 0, 511, base_cap=LCAP), "last", LD[-1].g, [o.g for o in LD if o.tag in ("pf", "poll")])
    gc = XNC
    S.add_mem(XPL if XPL else gc - 50, XPOLL, "poll")
    S.add_first(gc, Wait("vm", "poll"))
    S.add_valu(gc, XCMP)
    S.add_valu(gc, "v_add_u32 v247, 0x10000, v240")
    S.add_last(gc + 2, "s_cbranch_vccnz L_xnwait")
    S.add_last(gc + 2, "L_xnok:")
    LD = []
    for n in range(13, 24): ld(dma_W(n), max(win(9) + (n - 13) * 44 if n < WSH else win(n - 4), lfree(n)), 10)
    S.add_valu(64 * 12, "v_and_b32 v253, 0xfffffbff, v253")
    S.add_valu(64 * 12 + 1, "v_bfe_u32 v246, v254, 3, 1")
    S.add_valu(64 * 12 + 2, "v_lshl_or_b32 v253, v246, 30, v253")
    ld(one("buffer_load_dword v244, v253, s[8:11], s52 offen", "pf", ["s_mov_b32 s8, s36", "s_mov_b32 s9, s37", "s_mov_b32 s10, 0x400000"])[:4 if "q" in PFW else 3], win(17 if WSH > 20 else WQW))
    for n in range(24, 32):
        if n == 28 and PFOG:
            S.add_valu(1400, "v_and_b32 v245, 0xfff, v252")
            S.add_valu(1401, "v_or_b32 v245, v245, v251")
            ld(one("buffer_load_dword v250, v245, s[4:7], s50 offen", "pf", ["s_mov_b32 s4, s38", "s_mov_b32 s5, s39", "s_mov_b32 s6, 0x400000", "s_mov_b32 s7, 0x20000",
                   "s_lshl_b32 s50, s2, 2", "s_add_u32 s50, s50, s28", "s_lshl_b32 s50, s50, 12"]), PFOG - 8)
            ld(one("buffer_load_dword v253, v245, s[12:15], s50 offen", "pf", ["s_mov_b32 s12, s96", "s_mov_b32 s13, s97", f"s_mov_b32 s14, {1792 * 1024}"]), PFOG - 8)
            if NTX: ld(one("buffer_load_dword v244, v245, s[24:27], s50 offen", "pf"), PFOG - 8)
        ld(dma_W(n), max((win(19) if WSH > 20 else win(21) + 20) + (n - 24) * (50 if WSH > 20 else 36), lfree(n), PFOG + 120 + 20 * (n - 28) if PFOG and n >= 28 else 0), 8 if n < 28 or not PFOG else 4)
    S.add_valu(64 * 26, "v_and_b32 v243, 0x380, v252")
    for x in ["s_add_u32 s16, s20, s51", "s_addc_u32 s17, s21, 0"]: S.add_last(64 * 26, x)
    for x in ["s_sub_u32 s18, 16, s30", "s_lshl_b32 s18, s18, 16"]: S.add_last(64 * 26 + 1, x)
    ld(one("buffer_load_dword v244, v243, s[20:23], s59 offen sc1", "poll2", ["s_lshl_b32 s59, s29, 10", f"s_add_u32 s59, s59, {WS_FLAG + 0x10000:#x}"]), 64 * 27)
    gc = win(28) + 1
    for k in range(7): ld(kv_half(k // 2, k % 2), max(gc + 4 + 16 * k, bfree(k)), 4)
    S.add_first(gc, Wait("vm", "poll2"))
    S.add_valu(gc, "v_cmp_ne_u32 vcc, 1, v244")
    S.add_last(gc + 2, "s_cbranch_vccnz L_kvwait")
    S.add_last(gc + 2, "L_kvok:")
    print("ld2", schedule(S, [LD], 512, 2046, base_cap=2), "last", LD[-1].g, [(o.tag, o.g) for o in LD if o.mem][::4])
    XL = []
    for t in range(16):
        for rb in range(4):
            pre = []
            if t % 4 == 0 and rb % 2 == 0: pre = [f"s_add_u32 s{62 + rb // 2}, s{46 + rb // 2}, {WS_XN + t * 1024}"]
            vo = 240 if rb % 2 == 0 else 247
            XL.append(Op(f"buffer_load_dwordx4 {ar((rb * 16 + t) * 4)}, v{vo}, s[20:23], s{62 + rb // 2} offen offset:{(t % 4) * 1024}{XSC}",
                         max(512 + 32 * t + 32 + (6 * rb if t < 15 else 0), XNC + 4 + int(XP * (4 * t + rb))), 1024 + 16 * t - 60 if t < 10 else 512 + 32 * t + 64, pre=pre, tag=("X", t)))
    for t in range(16): S.add_first(1024 + 16 * t - 2, Wait("vm", ("X", t)))
    def kv_epi(kind, u, base, g0, g1, st0):
        ops = []
        for k8 in range(8):
            R = base + 8 * k8
            if kind == "K":
                c, rb = k8 // 4, k8 % 4
                off = rb * 4096 + (2 * u + c) * 1024
                for r in range(8): ops.append(Op(f"v_mul_f32 v{R + r}, s58, v{R + r}", g0, g1))
            else:
                db, s = 4 * u + k8 // 2, k8 % 2
                off = 16384 + s * 8192 + db * 1024
            cv = [Op(f"v_cvt_pk_bf16_f32 v{R + k}, v{R + 2 * k}, v{R + 2 * k + 1}", g0, g1) for k in range(4)]
            ops += cv
            ops.append(Op(f"s_add_u32 s95, s94, {off & ~4095}", g0, g1))
            ops.append(Op(f"buffer_store_dwordx4 {vr(R)}, v240, s[20:23], s95 offen offset:{off & 4095}{STF}", max(g0, st0[0] + int(k8 * st0[1])), g1, [cv[-1]], tag="kvst"))
        return ops
    S.add_first(250, f"s_mov_b32 s58, {f2u(KSCALE):#x}")
    C0 = -2.0 * math.sqrt(2.0 / math.pi) * LOG2E
    C1 = C0 * 0.044715
    S.add_valu(64 * 17, f"v_mov_b32 v232, {f2u(C0):#x}")
    S.add_valu(64 * 17 + 1, f"v_mov_b32 v233, {f2u(C1):#x}")
    S.add_valu(64 * 17 + 2, f"v_add_u32 v246, {4 * ACT_ROW}, v240")
    def gu_epi(base, psg, g0, g1, gst):
        st = [[], []]; sto = []
        for rb in range(4):
            G = base + rb * 8; U = base + 32 + rb * 8
            L = st[rb & 1]
            for r in range(8):
                t = 224 + (r % 4) + 4 * (rb & 1)
                o4 = Op(f"v_exp_f32 v{t}, v{t}", g0, g1)
                o7 = Op(f"v_rcp_f32 v{t}, v{t}", g0, g1)
                L += [Op(f"v_mul_f32 v{t}, v{G + r}, v{G + r}", g0, g1), Op(f"v_fma_f32 v{t}, v{t}, v233, v232", g0, g1),
                      Op(f"v_mul_f32 v{t}, v{t}, v{G + r}", g0, g1), o4, Op(f"v_mul_f32 v{G + r}, v{G + r}, v{U + r}", g0, g1),
                      Op(f"v_add_f32 v{t}, 1.0, v{t}", g0, g1), o7, Op(f"v_mul_f32 v{G + r}, v{G + r}, v{t}", g0, g1, [o7])]
            cv = [Op(f"v_cvt_pk_bf16_f32 v{G + k}, v{G + 2 * k}, v{G + 2 * k + 1}", g0, g1 - 2) for k in range(4)]
            L += cv
            sto.append(Op(f"buffer_store_dwordx4 {vr(G)}, v{240 if rb % 2 == 0 else 246}, s[20:23], s{psg + rb // 2} offen{STF}", gst + 30 * rb, g1, [cv[-1]], tag="hst"))
        return st, sto
    def q_epi(base, u, g0, g1, gmove):
        cvs = []; mv = []
        for c in range(2):
            for qb in range(4):
                R = base + (c * 4 + qb) * 8
                for k in range(4):
                    o = Op(f"v_cvt_pk_bf16_f32 v{R + k}, v{R + 2 * k}, v{R + 2 * k + 1}", g0, g1)
                    cvs.append(o)
                    mv.append(Op(f"v_accvgpr_write_b32 a{Qreg(qb, 2 * u + c) + k}, v{R + k}", gmove, g1, [o]))
        return cvs, mv
    PH = [256 * k for k in range(9)]
    PE = 2048
    kvs = kv_epi("K", 0, 0, PH[1] + 6, PH[2] - 3, (PH[1] + 16, STP)) + kv_epi("K", 1, 64, PH[2] + 6, PH[4] - 3, (PH[2] + 16, STPK1)) + \
          kv_epi("V", 0, 128, PH[4] + 6, PH[5] - 3, (PH[4] + 12, STPV)) + kv_epi("V", 1, 0, PH[4] + 6, PH[6] - 3, (PH[4] + 12 + 8 * STPV, STPV))
    print("kv epi", schedule(S, [XL, kvs], PH[1], PH[6]), "last store", kvs[-1].g, "pub at", gB(KVPUB))
    assert kvs[-1].g < gB(KVPUB)
    st0, so0 = gu_epi(64, 100, PH[5] + 6, PH[7] - 3, PH[6])
    st1, so1 = gu_epi(128, 98, PH[6] + 6, PE - 2, PH[6] + 130)
    q0c, q0m = q_epi(0, 0, PH[7] + 6, PE - 2, PH[7] + 130)
    q1c, q1m = q_epi(64, 1, PE - 32 + 5, PE - 1, PE - 32 + 5)
    k0r = [Op(f"ds_read_b128 {ar(Fbuf(f))}, v240 offset:{f * 1024}", max(gB(29) + 1, PH[7] + 16 * f + 16), PE - 2, tag=("K0", f)) for f in range(12)]
    print("gu epi", schedule(S, [st0[0] + st1[0], st0[1] + st1[1], so0 + so1, q0c + q1c[:16], q0m + q1m[:16], k0r], PH[5], PE - 1))
    S.add_mem(gB(KVPUB) + 2, f"buffer_store_dword v249, v248, s[20:23], s3 offen{STF}", "pub")
    if DIAG and not DIAG2:
        S.add_first(512, stamp(6)); S.add_first(1024, stamp(7)); S.add_first(PE - 1, stamp(8))
    if DIAG2:
        for k, g in enumerate(DIAG2): S.add_first(g, stamp(2 + k))
    print(S.report("gemm")[:600])
    its = S.items()
    DROP = os.environ.get("DROP", "").split(",")
    def keep(i):
        if isinstance(i, Ins):
            tg = i.tag[0] if isinstance(i.tag, tuple) else i.tag
            if tg in DROP and tg: return False
        if isinstance(i, Wait):
            tags = i.tag if isinstance(i.tag, list) else [i.tag]
            tags = [t for t in tags if (t[0] if isinstance(t, tuple) else t) not in DROP]
            if not tags: return False
            i.tag = tags
        return True
    p.extend([i for i in its if keep(i)])
    gemm_items = list(p.items)
    n_gemm = len(resolve(gemm_items))
    sa, va = tail_setup()
    def gen_qk0(masked):
        mf = []; last = {}
        for kb in range(4):
            for t in range(4):
                for qb in range(4):
                    d = Sreg(0, qb, kb)
                    c = vr(d) if t else (0 if kb < 2 else vr(NEGM(qb)))
                    mf.append(f"{MF} {vr(d)}, {ar(Fbuf(kb * 4 + t))}, {ar(Qreg(qb, t))}, {c}")
                    last[(qb, kb)] = len(mf) - 1
        S = Sched16(mf)
        for f in range(1, 16): S.add_first(4 * f - 1, Wait("lgkm", ("K0", f)))
        for f in range(12, 16): S.add_mem(f - 12, f"ds_read_b128 {ar(Fbuf(f))}, v240 offset:{f * 1024}", ("K0", f))
        c1, m1 = q_epi(64, 1, 4, 9, 4)
        c1 = c1[16:]; m1 = m1[16:]
        su = ["v_and_b32 v241, 15, v254", "v_lshl_add_u32 v241, v255, 4, v241", "v_lshrrev_b32 v245, 4, v254", "v_lshlrev_b32 v245, 2, v245",
              "v_sub_u32 v241, v241, v245", "v_cvt_f32_i32 v241, v241", "v_add_f32 v241, 0.5, v241", f"v_mul_f32 v{VTMASK}, {f2u(BIG):#x}, v241"]
        SU = [Op(x, 0, 18) for x in su]
        su2 = [f"v_mov_b32 v{VCUR}, v240", f"v_add_u32 v{VPREV}, 0x10000, v240", "v_and_b32 v206, 31, v254", "v_lshlrev_b32 v206, 10, v206",
               "v_and_b32 v252, 0xfff, v252", "v_or_b32 v252, v252, v251"] + ([f"v_mov_b32 v{ONES + k}, 0x3f803f80" for k in range(4)] if not ONE1 else
                 [f"v_and_b32 v{ONES}, 15, v254", f"v_min_u32 v{ONES}, 1, v{ONES}", f"v_subrev_u32 v{ONES}, 1, v{ONES}", f"v_and_b32 v{ONES}, 0x3f803f80, v{ONES}"] +
                 [f"v_mov_b32 v{ONES + k}, v{ONES}" for k in range(1, 4)]) + va[:8] + va[-4:]
        SU += [Op(x, 0, 63) for x in su2]
        ss = [f"s_mov_b32 s{S_THR}, {f2u(LMAX if FAST else THR):#x}", "s_lshl_b32 s99, s30, 7", f"s_add_u32 s99, s99, {WS_FLAG + 0x20000:#x}", "s_lshl_b32 s98, s29, 10",
              "s_add_u32 s98, s98, s99", "s_mov_b32 s52, s49", f"s_add_u32 s53, s49, {3 * 32768 + 16384}", f"s_add_u32 s54, s49, {4 * 32768}",
              f"s_add_u32 s55, s49, {3 * 32768 + 16384}", "s_mov_b32 s4, s38", "s_mov_b32 s5, s39", "s_mov_b32 s6, 0x400000", "s_mov_b32 s7, 0x20000",
              "s_lshl_b32 s59, s2, 2", "s_add_u32 s59, s59, s28", "s_lshl_b32 s50, s59, 12", "s_mov_b32 s12, s96", "s_mov_b32 s13, s97",
              f"s_mov_b32 s14, {1792 * 1024}", "s_mov_b32 m0, s52"]
        SS = [Op(x, 0, 60) for x in ss]
        def mask_ops(kb, e0, dl):
            out = []
            if not masked: return out
            for qb in (2,):
                for r in range(4):
                    kk = 16 * kb + r
                    out.append(Op(f"v_subrev_f32 v{TMP[r % 2]}, {f2u(kk * BIG):#x}, v{VTMASK}", 19, dl))
                    out.append(Op(f"v_min_f32 v{Sreg(0, qb, kb) + r}, v{Sreg(0, qb, kb) + r}, v{TMP[r % 2]}", e0, dl))
            return out
        T0 = [128 + 2 * q for q in range(4)]
        dl = 29
        I = mask_ops(0, 20, dl)
        for q in range(4):
            b = Sreg(0, q, 0)
            I += [Op(f"v_max3_f32 v{T0[q]}, v{b}, v{b + 1}, v{b + 2}", 20, dl), Op(f"v_max_f32 v{T0[q]}, v{T0[q]}, v{b + 3}", 20, dl)]
        for sw in ("v_permlane32_swap_b32", "v_permlane16_swap_b32"):
            I += [Op(f"v_mov_b32 v{T0[q] + 1}, v{T0[q]}", 20, dl) for q in range(4)]
            I += [Op(f"{sw} v{T0[q]}, v{T0[q] + 1}", 20, dl) for q in range(4)]
            I += [Op(f"v_max_f32 v{T0[q]}, v{T0[q]}, v{T0[q] + 1}", 20, dl) for q in range(4)]
        if FAST: I += [Op(f"v_add_f32 v{T0[q]}, {f2u(SH):#x}, v{T0[q]}", 20, dl) for q in range(4)]
        for q in range(4): I += [Op(f"v_sub_f32 v{NEGM(q) + r}, 0, v{T0[q]}", 20, dl) for r in range(4)]
        post = []
        for kb in range(2):
            if kb: I += mask_ops(1, 36, 63)
            for q in range(4): I += [Op(f"v_sub_f32 v{Sreg(0, q, kb) + r}, v{Sreg(0, q, kb) + r}, v{T0[q]}", 36 if kb else 20, 63) for r in range(4)]
        first = True
        for kb in range(1, 4):
            ops = mask_ops(kb, 16 * kb + 20, 63) if kb > 1 else []
            for q in range(0 if FAST else 4):
                b = Sreg(0, q, kb)
                ops.append(Op(f"v_max_f32 v{MX[0]}, v{b}, v{b + 1}" if first else f"v_max3_f32 v{MX[0]}, v{MX[0]}, v{b}, v{b + 1}", 16 * kb + 20, 63)); first = False
                ops.append(Op(f"v_max3_f32 v{MX[0]}, v{MX[0]}, v{b + 2}, v{b + 3}", 16 * kb + 20, 63))
            if kb < 3: I += ops
            else: post = [o.t for o in ops]
        I += [Op(f"v_exp_f32 v{Sreg(0, 0, 0) + r}, v{Sreg(0, 0, 0) + r}", 36, 63) for r in range(NX)]
        print("qk0", schedule(S, [c1, m1, SU, SS, I], 0, 63), S.report("qk0")[:140])
        q = Prog()
        q.wait_lgkm(("K0", 0))
        q.extend(S.items())
        q.wait_vm(("kv", 1, 0))
        q("s_barrier")
        for ins in tail_reads(VCUR, 32768): q(ins)
        if not PFOG:
            for x in PFL[:PFM]: q(x.replace("s39", "s50"), "pf")
            q("s_mov_b32 s39, s50")
        for k in range(4): q(f"buffer_load_dwordx4 v240, s[16:19], s54 offen offset:{k * 1024}{KSC} lds", "kv")
        q("s_mov_b32 m0, s53")
        for x in post: q(x)
        if not FAST: q(f"v_cmp_lt_f32 vcc, s{S_THR}, v{MX[0]}")
        q(f"s_waitcnt lgkmcnt({NPRE - 1})")
        return [i.t for i in resolve(gemm_items + q.items)][n_gemm:]
    pro = [i.t for i in resolve(gemm_items)]

    stubs = []
    def check(site, par, dual):
        if FAST: return []
        stubs.append((site, par, dual))
        return [f"s_cbranch_vccnz L_stub_{site}", f"L_ret_{site}:"]
    def it_odd(name, tq, tp, masked, **kw):
        return gen_iter(name, tq, tp, 0, masked, 0, VCUR, 0, VPREV, 49152, VCUR, 32768, end_ops=check(name, 0, tq), **kw)
    def it_even(name, tq, tp, masked, extra_end=(), first_pv=False, **kw):
        if first_pv: kw["vmn"] = 8 if PFOG else 8 + PFM
        last = tq == "S1"
        return gen_iter(name, tq, tp, 1, masked, 1, VCUR, 32768, VCUR, 16384, VCUR if last else VPREV, 49152 if last else 0, first_pv=first_pv,
                        end_ops=check(name, 1, tq) + list(extra_end[2:]), swap=not last, mid_ops=extra_end[:2], **kw)
    seg = {}
    seg["G"] = pro
    for m in (False, True):
        nm = "m" if m else "u"
        seg["P" + nm] = gen_qk0(m) + check("qk0" + nm, 0, "D") + it_even("it0" + nm, "D1" if m else "D", "D", m, first_pv=True, salu=sa)
    seg["UDD"] = it_odd("uddA", "D", "D", False) + it_even("uddB", "D", "D", False, ["s_sub_u32 s47, s47, 1", "s_cmp_lg_u32 s47, 0", "s_cbranch_scc1 L_udd"])
    seg["UDDm"] = it_odd("uddmA", "D", "D", True) + it_even("uddmB", "D1", "D", True)
    fake = lambda tag, n: [Ins("buffer_load_dwordx4 v240, s[16:19], s55 offen lds", tag) for _ in range(n)]
    ee = gen_early_epi()
    seg["UDS"] = it_odd("udsA", "S", "D1", False) + it_even("udsB", "S", "S", False, xops=ee, vmn="need", raw=fake("need", 4) + fake("x", 12))
    seg["USS"] = it_odd("ussA", "S", "S", False) + it_even("ussB", "S", "S", False, ["s_sub_u32 s47, s47, 1", "s_cmp_lg_u32 s47, 0", "s_cbranch_scc1 L_uss"])
    g1, g2 = gp1(), gp2()
    vd = lambda adv: [(["s_mov_b32 m0, s53"] if q == 0 else [], f"buffer_load_dwordx4 v240, s[16:19], s55 offen offset:{q * 1024}{KSC} lds", "v") for q in range(4)]
    advv = ["s_add_u32 s55, s55, 0x8000", "s_add_u32 s53, s53, 0x8000", "s_and_b32 s53, s53, 0x1ffff"]
    n1, n2, n3 = PRE_SPLIT
    g1a = [(advv + list(g1[0][0]), g1[0][1], g1[0][2])] + g1[1:n1]
    xa, xb, xc, xd = vd(0) + g1a, vd(0) + g1[n1:n2], g1[n2:n3] + g2[:12], g1[n3:] + g2[12:]
    seg["USSp"] = it_odd("usspA", "S", "S", False, extra=xa, vmn="need", raw=fake("need", 4) + fake("x", 12)) + \
                  it_even("usspB", "S", "S", False, extra=xb, vmn="need", raw=fake("need", 4) + fake("x", 4 + len(xa)))
    seg["USSm"] = it_odd("ussmA", "S", "S", True, extra=xc, vmn="need", raw=fake("need", 4) + fake("x", len(xa) - 4 + len(xb))) + \
                  it_even("ussmB", "S1", "S", True, extra=xd, vmn="need", raw=fake("need", 4) + fake("x", len(xb) - 4 + len(xc)))
    w01 = chunk(0, a=False) + chunk(1, a=False)
    seg["UDSm"] = it_odd("udsmA", "S", "D1", True, extra=w01, vmn="need", raw=fake("need", 1)) + \
                  it_even("udsmB", "S1", "S", True, extra=g2, xops=ee[1:], vmn="need", raw=fake("need", 1) + fake("x", 8))
    seg["E"], tail_slow = gen_tail()
    seg["EE"] = []
    HC = ["v_cmp_ne_u32 vcc, 1, v207", "s_nop 0"]
    gpl = []
    for c in range(6):
        for pre, ins, tag in chunk(c, w=False): gpl += list(pre) + [ins]
    pf2 = [] if PFOG else PFL[PFM:]
    hpub = ["v_add_u32 v236, s58, v240", f"buffer_store_dword v249, v248, s[20:23], s98 offen{STF}"]

    out = list(seg["G"])
    out += ["s_cmp_eq_u32 s30, 0", "s_cbranch_scc1 L_pm"] + seg["Pu"]
    if DIAG and not DIAG2: out.append(stamp(9).t)
    out += (hpub + st4(2) if os.environ.get("HS") else st4(2) + hpub) + ["s_sub_u32 s47, s30, 1", "s_cmp_eq_u32 s47, 0", "s_cbranch_scc1 L_uddm"]
    out += [f".p2align {AL}", "L_udd:"] + seg["UDD"]
    out += ["L_uddm:"] + pf2 + st4(3) + seg["UDDm"]
    out += ["s_cmp_eq_u32 s30, 7", "s_cbranch_scc1 L_last7"]
    out += ["L_uds:"] + pf2 + st4(4) + seg["UDS"] + st4(5) + seg["EE"] + st4(6)
    out += ["s_lshl_b32 s47, s30, 1", "s_sub_u32 s47, 12, s47", "s_cmp_eq_u32 s47, 0", "s_cbranch_scc1 L_ussp"]
    out += [f".p2align {AL}", "L_uss:"] + seg["USS"]
    out += ["L_ussp:"] + st4(7) + ["s_waitcnt vmcnt(20)"] + HC + ["s_cbranch_vccnz L_hwait", "L_hok:"] + seg["USSp"] + seg["USSm"]
    out += ["L_fin:"] + st4(8) + seg["E"]
    out += ["L_f_end:", "s_endpgm"]
    out += ["L_pm:"] + seg["Pm"] + ([stamp(9).t] if DIAG and not DIAG2 else []) + hpub + ["s_branch L_uds"]
    out += ["L_last7:", HPOLL] + opf() + seg["UDSm"] + HC + ["s_cbranch_vccnz L_h2wait", "L_h2ok:"] + gpl + ["s_branch L_fin"]
    out += spin("h", HPOLL, HC[0]) + spin("h2", HPOLL, HC[0])
    out += tail_slow
    if FAST: out += gen_safe()
    out += ["L_xnwait:", "s_mov_b32 s44, 0x40000", "L_xnspin:", "s_sub_u32 s44, s44, 1", "s_cbranch_scc1 L_xnok", "s_sleep 2",
            XPOLL, "s_waitcnt vmcnt(0)",
            XCMP, "s_cbranch_vccnz L_xnspin", "s_branch L_xnok"]
    out += ["L_kvwait:", "s_mov_b32 s44, 0x40000", "L_kvspin:", "s_sub_u32 s44, s44, 1", "s_cbranch_scc1 L_kvok", "s_sleep 2",
            "buffer_load_dword v244, v243, s[20:23], s59 offen sc1", "s_waitcnt vmcnt(0)",
            "v_cmp_ne_u32 vcc, 1, v244", "s_cbranch_vccnz L_kvspin", "s_branch L_kvok"]
    for site, par, tq in stubs:
        out += [f"L_stub_{site}:", f"s_call_b64 s[62:63], L_rare_{par}{tq}", f"s_branch L_ret_{site}"]
    for par, tq in sorted({(par, tq) for _, par, tq in stubs}):
        out += [f"L_rare_{par}{tq}:"] + gen_rare(par, QSET[tq])
    for path in (["G", "Pu", "UDD", "UDD", "UDDm", "UDS", "EE", "USS", "USS", "USSp", "USSm", "E"], ["G", "Pm", "UDS"], ["UDDm", "UDSm", "EE", "E"]):
        tx = []
        for k in path: tx += seg[k]
        for e in lint(tx, "f")[:40]: print(e)
    return out

KVPUB = int(os.environ.get("KVPUB", "23"))
STPV = float(os.environ.get("STPV", "26"))
STP = float(os.environ.get("STP", "29"))
STPK1 = float(os.environ.get("STPK1", "50"))
VW0 = int(os.environ.get("VW0", "340"))
WP = int(os.environ.get("WP", "14"))
XNC = int(os.environ.get("XNC", "540"))
LCAP = int(os.environ.get("LCAP", "3"))
WSH = int(os.environ.get("WSH", "18"))
XP = float(os.environ.get("XP", "5"))
PFOG = int(os.environ.get("PFOG", "0"))
AL = int(os.environ.get("AL", "3"))
XBAR = int(os.environ.get("XBAR", "1"))
NTX = os.environ.get("NTX", " nt")
PFM = int(os.environ.get("PFM", "1"))
PFL = ["buffer_load_dword v253, v252, s[4:7], s39 offen", "buffer_load_dword v251, v252, s[12:15], s39 offen", "buffer_load_dword v250, v252, s[24:27], s39 offen"]
WQW = int(os.environ.get("WQW", "20"))
ONE1 = int(os.environ.get("ONE1", "0"))
CPF = int(os.environ.get("CPF", "1"))
if __name__ == "__main__":
    print(len(gen_f_kernel()))
```

```python
from asmlib import *
from sched16 import *
import math, os, re
MF = "v_mfma_f32_16x16x32_bf16"
KNAME = "recurrent_scan__compressed_kv_cla__glu_gated_geglu__prompt_kernel"
WSB = int(os.environ.get("WSB", "0"), 0)
WS_XN = WSB + 0x0
WS_KV = WSB + 0x200000
WS_ACT = WSB + 0x2200000
WS_PART = WSB + 0x4000000
WS_FLAG = WSB + 0x5000000
ACT_ROW = 184 * 1024
LOG2E = 1.4426950408889634
KSCALE = LOG2E / math.sqrt(128.0)
BIG = 2.0 ** 100
THR = float(os.environ.get("THR", "40"))
FAST = int(os.environ.get("FAST", "1"))
NX = int(os.environ.get("NX", "8")) if FAST else 0
SH = float(os.environ.get("SH", "64"))
LMAX = 2.0 ** float(os.environ.get("LMAXE", "60"))
STF = " sc1"
BYTEF = int(os.environ.get("BYTEF", "0"))
XPOLL = "buffer_load_dword v244, v243, s[4:7], 0 offen" + " sc1"
XSH = int(os.environ.get("XSH", "4"))
XCMP = "v_cmp_ne_u32 vcc, 0x01010101, v244" if BYTEF else "v_cmp_gt_u32 vcc, 16, v244"
XPL = int(os.environ.get("XPL", "418"))
VWP = int(os.environ.get("VWP", "14"))
GPW = int(os.environ.get("GPW", "7"))
ASC = os.environ.get("ASC", " sc1")
XSC = os.environ.get("XSC", " sc1")
KSC = os.environ.get("KSC", " sc1")
NT = os.environ.get("NT", " nt")
NTV = os.environ.get("NTV", "")
PFA = int(os.environ.get("PFA", "1"))
PFW = os.environ.get("PFW", "vgq")
NTD = os.environ.get("NTD", "")
NTA = " nt" if "a" in NTD else ""
ALEAD = int(os.environ.get("ALEAD", "2"))
EARLY = int(os.environ.get("EARLY", "0"))
OPF = int(os.environ.get("OPF", "0"))
WSB = int(os.environ.get("WSB", "0"), 0)
DIAG4 = bool(os.environ.get("DIAG4"))
st4 = lambda k: [stamp(k).t] if DIAG4 else []
LEADP = int(os.environ.get("LEADP", "14"))
GBS_ = int(os.environ.get("GBS_", "20"))
GBD_ = int(os.environ.get("GBD_", "22"))
DIAG3 = bool(os.environ.get("DIAG3"))
DIAG2 = [int(x) for x in os.environ.get("DIAG2", "").split(",") if x]
def vr(b, n=4): return f"v[{b}:{b + n - 1}]"
def ar(b, n=4): return f"a[{b}:{b + n - 1}]"
def srd(p, d, lo, size):
    p(f"s_mov_b32 s{d}, s{lo}")
    p(f"s_mov_b32 s{d + 1}, s{lo + 1}")
    p(f"s_mov_b32 s{d + 2}, {size:#x}")
    p(f"s_mov_b32 s{d + 3}, 0x20000")

def wave_reduce(p, regs_):
    steps = ["quad_perm:[1,0,3,2] row_mask:0xf bank_mask:0xf", "quad_perm:[2,3,0,1] row_mask:0xf bank_mask:0xf",
             "row_half_mirror row_mask:0xf bank_mask:0xf", "row_mirror row_mask:0xf bank_mask:0xf",
             "row_bcast:15 row_mask:0xa bank_mask:0xf", "row_bcast:31 row_mask:0xc bank_mask:0xf"]
    for st in steps:
        p("s_nop 1")
        for r in regs_: p(f"v_add_f32_dpp v{r}, v{r}, v{r} {st}")
    p("s_nop 1")
def round_bf16(p, dst, src):
    p(f"v_cvt_pk_bf16_f32 v{dst}, v{src}, v{src}")
    p(f"v_and_b32 v{dst}, 0xffff0000, v{dst}")

def emit_ln(p):
    for r in range(2):
        for k in range(4):
            p(f"v_lshlrev_b32 v{8 + 8 * r + 2 * k}, 16, v{4 * r + k}")
            p(f"v_and_b32 v{9 + 8 * r + 2 * k}, 0xffff0000, v{4 * r + k}")
    for r in range(2):
        b = 8 + 8 * r
        p(f"v_add_f32 v{24 + r}, v{b}, v{b + 1}")
        for k in range(2, 8): p(f"v_add_f32 v{24 + r}, v{24 + r}, v{b + k}")
    wave_reduce(p, [24, 25])
    p("v_readlane_b32 s58, v24, 63")
    p("v_readlane_b32 s59, v25, 63")
    p(f"v_mov_b32 v30, {f2u(1.0 / 512):#x}")
    p("s_nop 1")
    for r in range(2): p(f"v_mul_f32 v{26 + r}, s{58 + r}, v30")
    for r in range(2):
        b = 8 + 8 * r
        for k in range(8): p(f"v_sub_f32 v{32 + k}, v{b + k}, v{26 + r}")
        p(f"v_mul_f32 v{24 + r}, v32, v32")
        for k in range(1, 8): p(f"v_fmac_f32 v{24 + r}, v{32 + k}, v{32 + k}")
    wave_reduce(p, [24, 25])
    p("v_readlane_b32 s58, v24, 63")
    p("v_readlane_b32 s59, v25, 63")
    p("s_nop 1")
    for r in range(2):
        p(f"v_mul_f32 v{28 + r}, s{58 + r}, v30")
        round_bf16(p, 28 + r, 28 + r)
        p(f"v_add_f32 v{28 + r}, {f2u(1e-5):#x}, v{28 + r}")
        round_bf16(p, 28 + r, 28 + r)
        p(f"v_sqrt_f32 v{28 + r}, v{28 + r}")
        p("s_nop 0")
        round_bf16(p, 28 + r, 28 + r)
        p(f"v_rcp_f32 v{28 + r}, v{28 + r}")
        round_bf16(p, 26 + r, 26 + r)
    for r in range(2):
        b = 8 + 8 * r
        for k in range(8): p(f"v_sub_f32 v{b + k}, v{b + k}, v{26 + r}")
        for k in range(4): p(f"v_cvt_pk_bf16_f32 v{32 + k}, v{b + 2 * k}, v{b + 2 * k + 1}")
        for k in range(4):
            p(f"v_lshlrev_b32 v{b + 2 * k}, 16, v{32 + k}")
            p(f"v_and_b32 v{b + 2 * k + 1}, 0xffff0000, v{32 + k}")
        for k in range(8): p(f"v_mul_f32 v{b + k}, v{b + k}, v{28 + r}")
        for k in range(4): p(f"v_cvt_pk_bf16_f32 v{40 + 4 * r + k}, v{b + 2 * k}, v{b + 2 * k + 1}")

def ln_ops(g0, g1):
    p = Prog(); emit_ln(p)
    ops = []; lag = False
    for it in p.items:
        t = it.t
        if t.startswith("s_nop"): lag = True; continue
        t = re.sub(r"\bv(\d+)\b", lambda m: "v%d" % (int(m.group(1)) + 176 if int(m.group(1)) < 8 else int(m.group(1)) + 128), t)
        ops.append(Op(t, g0, g1, [ops[-1]] if lag else [], lag=2)); lag = False
    return ops

def Sreg(par, qb, kb): return par * 64 + qb * 16 + kb * 4
def Preg(qb, s): return 128 + qb * 8 + s * 4
def NEGM(qb): return 160 + 4 * qb
def LACC(qb): return 176 + 4 * qb
ONES = 192
MX = [196, 197]; VTM = 198; VTMASK = 199; VCUR, VPREV = 200, 201; TMP = [202, 203, 204, 205]
def Qreg(qb, t): return (t // 2) * 64 + qb * 8 + (t % 2) * 4
def Oreg(qb, db): return [32, 96, 128, 160][qb] + db * 4
def Fbuf(f): return 192 + (f % 16) * 4
S_THR = 61
NPRE = int(os.environ.get("NPRE", "8"))

def tail_reads(base_reg, off):
    return [f"ds_read_b128 {ar(Fbuf(f))}, v{base_reg} offset:{off + f * 1024}" for f in range(NPRE)]

QSET = {'D': [0, 1, 2, 3], 'S': [0, 1], 'D1': [0, 1, 3], 'S1': [1]}
def gen_iter(name, tq, tp, parq, masked, odd_q, kreg, koff, vreg, voff, nreg, noff, first_pv=False, end_ops=(), swap=False, mid_ops=(), vmn=16, extra=None, raw=False, salu=(), xops=()):
    qq = QSET[tq]
    qp = QSET[tp]
    parp = 1 - parq
    mf = []; use = {}; lastq = {}; lastuse = {}
    for kb in range(4):
        for t in range(4):
            f = kb * 4 + t
            use[f] = len(mf)
            for qb in qq:
                d = Sreg(parq, qb, kb)
                mf.append(f"{MF} {vr(d)}, {ar(Fbuf(f))}, {ar(Qreg(qb, t))}, {vr(NEGM(qb)) if t == 0 else vr(d)}")
                lastq[(qb, kb)] = len(mf) - 1
            lastuse[f] = len(mf) - 1
    firstp = {}
    for s in range(2):
        for db in range(8):
            f = 16 + s * 8 + db
            use[f] = len(mf)
            for qb in qp:
                o = Oreg(qb, db)
                firstp.setdefault((qb, s), len(mf))
                mf.append(f"{MF} {ar(o)}, {ar(Fbuf(f))}, {vr(Preg(qb, s))}, {0 if (first_pv and s == 0) else ar(o)}")
            lastuse[f] = len(mf) - 1
        for qb in qp:
            mf.append(f"{MF} {vr(LACC(qb))}, {vr(ONES)}, {vr(Preg(qb, s))}, {0 if (first_pv and s == 0) else vr(LACC(qb))}")
    n = len(mf)
    S = Sched16(mf)
    gB = n - (GBS_ if len(qp) == 2 else GBD_)
    LEAD = LEADP
    for f in range(32):
        tag = ("F", "n", f) if f < NPRE else ("F", "c", f)
        if use[f] > 0: S.add_first(use[f] - 1, Wait("lgkm", tag))
    if isinstance(vmn, int): S.add_first(gB, Ins(f"s_waitcnt vmcnt({vmn}) lgkmcnt(0)"))
    else:
        S.add_first(gB, Ins("s_waitcnt lgkmcnt(0)")); S.add_first(gB + 1, Wait("vm", vmn))
    S.add_first(gB + 1, "s_barrier")
    S.add_first(n - 1, Wait("lgkm", ("F", "x", 0)))
    R = []
    todo = list(range(NPRE, 32))
    for k, f in enumerate(todo):
        e = lastuse[f - 16] if f >= 16 else 0
        dl = min(use[f] - LEAD + 4, gB - 5 - (31 - f))
        e = max(e, min(use[f] - LEAD - 8, dl - 4), 0)
        dl = max(dl, e)
        assert dl < use[f] - 1, (name, f, dl, e)
        if f < 16: ins = f"ds_read_b128 {ar(Fbuf(f))}, v{kreg} offset:{koff + f * 1024}"
        else: ins = f"ds_read_b128 {ar(Fbuf(f))}, v{vreg} offset:{voff + (f - 16) * 1024}"
        R.append(Op(ins, max(e, 0), max(dl, 0), tag=("F", "c", f)))
    for f, ins in enumerate(tail_reads(nreg, noff)):
        R.append(Op(ins, max(gB + 1, lastuse[f + 16]), min(n - 2, gB + 3 + 2 * f), tag=("F", "x", f)))
    D = []
    span = gB - 8
    for q in range(4):
        D.append(Op(f"buffer_load_dwordx4 v240, s[16:19], s55 offen offset:{q * 1024}{KSC} lds", 2 + q * span // 4, 2 + (q + 1) * span // 4 - 1, tag="kv"))
    for x in ["s_add_u32 s54, s54, 0x8000", "s_add_u32 s52, s52, 0x8000", "s_and_b32 s52, s52, 0x1ffff", "s_mov_b32 m0, s52"]:
        D.append(Op(x, 0, gB))
    tl = n - 3 - (gB + 1)
    for q in range(4):
        D.append(Op(f"buffer_load_dwordx4 v240, s[16:19], s54 offen offset:{q * 1024}{KSC} lds", gB + 1 + q * tl // 4, gB + 1 + (q + 1) * tl // 4, tag="kv"))
    D.append(Op("s_mov_b32 m0, s53", 0, n - 1))
    if extra is not None:
        D = []
        nv = len(extra)
        for i, (pre, ins, tag) in enumerate(extra):
            for x in pre: D.append(Op(x, 0, n - 3))
            D.append(Op(ins, 1 + i * (n - 6) // nv, 1 + (i + 1) * (n - 6) // nv + 2, tag=tag, deps=[D[-1]] if pre else []))
    E = []; C = []
    for s in range(2):
        for qb in qp:
            b = Sreg(parp, qb, 2 * s)
            dl = firstp[(qb, s)] - 2
            es = [Op(f"v_exp_f32 v{b + r}, v{b + r}", 0, dl - 1) for r in range(8)]
            done = NX if (s == 0 and qb == qp[0]) else 0
            E += es[done:]
            C += [Op(f"v_cvt_pk_bf16_f32 v{Preg(qb, s) + k}, v{b + 2 * k}, v{b + 2 * k + 1}", 0, dl, [e for i, e in enumerate(es) if i // 2 == k and i >= done]) for k in range(4)]
    M = []
    mins = {}
    vals = []
    mq = [qq[-1] if odd_q else qq[-2]]
    first = True
    for kb in range(4):
        for qb in qq:
            b = Sreg(parq, qb, kb)
            e0 = lastq[(qb, kb)] + (5 if len(qq) > 1 else 8)
            if masked and qb in mq:
                for r in range(4):
                    kk = 16 * kb + r
                    tm = TMP[r % 2]
                    M.append(Op(f"v_subrev_f32 v{tm}, {f2u(kk * BIG):#x}, v{VTMASK}", 0, n - 3))
                    M.append(Op(f"v_min_f32 v{b + r}, v{b + r}, v{tm}", e0, n - 3))
                    mins[b + r] = M[-1]
            if FAST: continue
            if first:
                M.append(Op(f"v_max_f32 v{MX[0]}, v{b}, v{b + 1}", e0, n - 3)); first = False
            else:
                M.append(Op(f"v_max3_f32 v{MX[0]}, v{MX[0]}, v{b}, v{b + 1}", e0, n - 3))
            M.append(Op(f"v_max3_f32 v{MX[0]}, v{MX[0]}, v{b + 2}, v{b + 3}", e0, n - 3))
    if not FAST: M.append(Op(f"v_cmp_lt_f32 vcc, s{S_THR}, v{MX[0]}", 0, n - 2))
    for r in range(NX):
        b = Sreg(parq, qq[0], 0) + r
        E.append(Op(f"v_exp_f32 v{b}, v{b}", lastq[(qq[0], r // 4)] + 8, n - 1, [mins[b]] if b in mins else []))
    X = []
    if swap:
        X = [Op(f"v_xor_b32 v{VCUR}, 0x10000, v{VCUR}", gB, n - 1), Op(f"v_xor_b32 v{VPREV}, 0x10000, v{VPREV}", gB, n - 1, [R[-1]])]
    XO = []
    for i, x in enumerate(xops):
        prev_trans = XO and XO[-1].t.startswith(TRANS)
        XO.append(Op(x, 5 + (i * (n - 12)) // len(xops), min(n - 2, 5 + (i * (n - 12)) // len(xops) + 4), tag="xo"))
    k = schedule(S, [R, D, E, C, M, X, XO], 0, n - 1, name=name)
    if extra is None:
        g = D[7].g + 1
        for x in ["s_add_u32 s55, s55, 0x8000", "s_add_u32 s53, s53, 0x8000", "s_and_b32 s53, s53, 0x1ffff"] + list(mid_ops):
            while S.first[g]: g += 1
            S.add_first(g, x); g += 1
        assert g <= D[-1].g, (name, g, D[-1].g)
    g = 0
    for x in salu:
        while S.first[g]: g += 1
        for y in (x if isinstance(x, list) else [x]): S.add_first(g, y)
        g += 1
    for x in end_ops: S.add_last(n - 1, x)
    print(S.report(f"{name}(k={k})"))
    pre = [Ins(f"ds_read_b128 {ar(Fbuf(f))}, v0", ("F", "n", f)) for f in range(NPRE)] + [Wait("lgkm", ("F", "n", 0))]
    if raw: pre = list(raw) + pre
    return [i.t for i in resolve(S.items(), pre)]

def allreduce4(p, op, src, t0, t1):
    p(f"v_mov_b32 v{t0}, v{src}")
    p(f"v_mov_b32 v{t1}, v{src}")
    p("s_nop 1")
    p(f"v_permlane32_swap_b32 v{t0}, v{t1}")
    p("s_nop 1")
    p(f"{op} v{t0}, v{t0}, v{t1}")
    p(f"v_mov_b32 v{t1}, v{t0}")
    p("s_nop 1")
    p(f"v_permlane16_swap_b32 v{t0}, v{t1}")
    p("s_nop 1")
    p(f"{op} v{t0}, v{t0}, v{t1}")

def rowmax(p, par, qb):
    b = Sreg(par, qb, 0)
    p(f"v_max3_f32 v{MX[1]}, v{b}, v{b + 1}, v{b + 2}")
    for k in range(3, 15, 2): p(f"v_max3_f32 v{MX[1]}, v{MX[1]}, v{b + k}, v{b + k + 1}")
    p(f"v_max_f32 v{MX[1]}, v{MX[1]}, v{b + 15}")
    allreduce4(p, "v_max_f32", MX[1], TMP[0], TMP[1])

def gen_rare(par, qbs):
    p = Prog()
    p("s_nop 15")
    for qb in qbs:
        rowmax(p, par, qb)
        p(f"v_max_f32 v{TMP[0]}, 0, v{TMP[0]}")
        p(f"v_sub_f32 v{TMP[1]}, 0, v{TMP[0]}")
        p(f"v_exp_f32 v{TMP[1]}, v{TMP[1]}")
        for r in range(4): p(f"v_sub_f32 v{NEGM(qb) + r}, v{NEGM(qb) + r}, v{TMP[0]}")
        for r in range(16): p(f"v_sub_f32 v{Sreg(par, qb, 0) + r}, v{Sreg(par, qb, 0) + r}, v{TMP[0]}")
        for r in range(4): p(f"v_mul_f32 v{LACC(qb) + r}, v{LACC(qb) + r}, v{TMP[1]}")
        for r in range(0, 32, 2):
            a = Oreg(qb, 0) + r
            p(f"v_accvgpr_read_b32 v{TMP[2]}, a{a}")
            p(f"v_accvgpr_read_b32 v{TMP[3]}, a{a + 1}")
            p(f"v_mul_f32 v{TMP[2]}, v{TMP[2]}, v{TMP[1]}")
            p(f"v_mul_f32 v{TMP[3]}, v{TMP[3]}, v{TMP[1]}")
            p(f"v_accvgpr_write_b32 a{a}, v{TMP[2]}")
            p(f"v_accvgpr_write_b32 a{a + 1}, v{TMP[3]}")
    p("s_nop 1")
    p("s_setpc_b64 s[62:63]")
    return [i.t for i in p.items]


GPUB = int(os.environ.get("GPUB", "16"))
OB = int(os.environ.get("OB", "2"))
GB2 = int(os.environ.get("GB2", "1"))
GPOLL = int(os.environ.get("GPOLL", "20"))
CPUB = int(os.environ.get("CPUB", "2"))
CTXPF = int(os.environ.get("CTXPF", "0"))
PUB0 = int(os.environ.get("PUB0", "8"))
PUBP = int(os.environ.get("PUBP", "12"))
LST = int(os.environ.get("LST", "8"))
LSP = int(os.environ.get("LSP", "10"))
CPOLL = int(os.environ.get("CPOLL", "100"))
CCHK = int(os.environ.get("CCHK", "136"))
def spin(name, load, cmp):
    return [f"L_{name}wait:", "s_mov_b32 s44, 0x40000", f"L_{name}spin:", "s_sub_u32 s44, s44, 1", f"s_cbranch_scc1 L_{name}ok", "s_sleep 1",
            load, "s_waitcnt vmcnt(0)", cmp, f"s_cbranch_vccnz L_{name}spin", f"s_branch L_{name}ok"]

def o_epi(qb, scr, pk):
    out = []
    for t in range(4):
        R = scr(t); P = pk(t)
        a = Oreg(qb, 2 * t)
        L = LACC(qb)
        rd = [f"v_accvgpr_read_b32 v{R + k}, a{a + k}" for k in range(8)]
        if t: ops = rd
        elif not ONE1: ops = [f"v_rcp_f32 v{TMP[qb]}, v{L}"] + rd
        else:
            ops = [f"v_mov_b32 v{L + 1}, v{L}"] + rd[:2] + [f"v_permlane32_swap_b32 v{L}, v{L + 1}"] + rd[2:3] + [f"v_mov_b32 v{L + 1}, v{L}"] + rd[3:5] + \
                  [f"v_permlane16_swap_b32 v{L}, v{L + 1}"] + rd[5:7] + [f"v_rcp_f32 v{TMP[qb]}, v{L}"] + rd[7:]
        ops += [f"v_mul_f32 v{R + k}, v{R + k}, v{TMP[qb]}" for k in range(8)]
        ops += [f"v_cvt_pk_bf16_f32 v{P + k}, v{R + 2 * k}, v{R + 2 * k + 1}" for k in range(4)]
        out.append((ops, f"buffer_store_dwordx4 {vr(P)}, v{240 if qb % 2 == 0 else 246}, s[20:23], s{100 + qb // 2} offen offset:{t * 1024}{STF}"))
    return out

NK = 46; NC = 23
SL = [8, 9, 0, 1, 2, 3, 4, 5]
def wofs(n): return SL[(n // 2) % 8] * 16384 + (n % 2) * 8192
def areg(n): return 128 + (n % 16) * 8
def w_ops(n):
    gp = n < 14
    j = n if gp else n - 14
    pre = [f"s_add_u32 m0, s50, {wofs(n)}", f"s_add_u32 s58, s{48 if gp else 49}, {j * 32768}"]
    wsrd = "s[12:15]" if gp else "s[8:11]"
    return [(pre, f"buffer_load_dwordx4 v242, {wsrd}, s58 offen lds", ("cw", n // 2)),
            ([], f"buffer_load_dwordx4 v243, {wsrd}, s58 offen offset:1024 lds", ("cw", n // 2))]
def a_ops(n):
    gp = n < 14
    j = n if gp else n - 14
    pre = [f"s_add_u32 s59, s{64 if gp else 65}, {j * 1024}"] if j % 2 == 0 else []
    return [(pre, f"buffer_load_dwordx4 {ar(areg(n))}, v240, s[20:23], s59 offen offset:{(j % 2) * 1024}{ASC}", ("ca", n // 2)),
            ([], f"buffer_load_dwordx4 {ar(areg(n) + 4)}, v246, s[20:23], s59 offen offset:{(j % 2) * 1024}{ASC}", ("ca", n // 2))]
def chunk(ch, w=True, a=True):
    return (w_ops(2 * ch) + w_ops(2 * ch + 1) if w else []) + (a_ops(2 * ch) + a_ops(2 * ch + 1) if a else [])
KEEP = 6 * 16384
GB = [36, 37, 41]

def tail_setup():
    sa = ["s_lshr_b32 s35, s34, 1", "s_sub_u32 s31, 15, s30", ["s_bitcmp1_b32 s34, 0", "s_cselect_b32 s31, s31, s30"], "s_and_b32 s45, s29, 3",
          "s_lshl_b32 s46, s31, 3", "s_add_u32 s46, s46, s28", f"s_mul_i32 s46, s46, {ACT_ROW}",
          f"s_add_u32 s46, s46, {WS_ACT:#x}", f"s_mul_i32 s47, s35, {14 * 1024}", "s_add_u32 s64, s46, s47", f"s_add_u32 s64, s64, {128 * 1024}",
          "s_lshl_b32 s47, s35, 15", "s_add_u32 s65, s46, s47",
          "s_lshl_b32 s46, s45, 8", "s_lshl_b32 s47, s28, 13", "s_add_u32 s46, s46, s47", f"s_mul_i32 s47, s35, {14 * 32 * 1024}",
          "s_add_u32 s48, s46, s47", "s_lshl_b32 s47, s35, 20", "s_add_u32 s49, s46, s47", "s_lshl_b32 s50, s28, 11",
          "s_mov_b32 s8, s4", "s_mov_b32 s9, s5", "s_mov_b32 s38, 0", "s_mov_b32 s12, s96", "s_mov_b32 s13, s97", f"s_mov_b32 s14, {1792 * 1024}",
          "s_and_b32 s46, s34, 1", "s_lshl_b32 s46, s46, 2", "s_add_u32 s3, s99, s46", "s_lshl_b32 s46, s35, 13", "s_add_u32 s3, s3, s46",
          "s_lshl_b32 s51, s31, 2", "s_add_u32 s51, s51, s45", "s_lshl_b32 s56, s51, 18", f"s_add_u32 s56, s56, {WS_PART:#x}",
          "s_lshl_b32 s46, s28, 16", "s_lshl_b32 s47, s35, 13", "s_add_u32 s40, s56, s46", "s_add_u32 s40, s40, s47",
          "s_lshl_b32 s46, s35, 16", "s_add_u32 s56, s56, s46", "s_add_u32 s56, s56, s50", f"s_mov_b32 s58, {KEEP + 16384}",
          ["s_cmp_eq_u32 s28, s35", "s_cselect_b32 s40, 0x7ff00000, s40", f"s_cselect_b32 s58, {KEEP}, s58"]]
    for k in range(3): sa += [f"s_add_u32 s46, s35, {k + 1}", "s_and_b32 s46, s46, 3", "s_lshl_b32 s46, s46, 13", f"s_add_u32 s{GB[k]}, s56, s46"]
    sa += ["s_lshl_b32 s94, s51, 9", f"s_add_u32 s94, s94, {WS_FLAG:#x}", "s_lshl_b32 s46, s35, 7", "s_add_u32 s95, s94, s46",
           "s_lshl_b32 s46, s31, 17", "s_lshl_b32 s47, s35, 14", "s_add_u32 s46, s46, s47", "s_lshl_b32 s47, s45, 8", "s_add_u32 s46, s46, s47",
           "s_lshl_b32 s47, s28, 6", "s_add_u32 s57, s46, s47", "s_lshl_b32 s46, s29, 12", "s_add_u32 s100, s46, s32", "s_add_u32 s101, s46, s33"]
    va = ["v_lshrrev_b32 v244, 4, v254", "v_and_b32 v245, 15, v254", "v_lshlrev_b32 v243, 1, v244", "v_xor_b32 v245, v245, v243",
          "v_lshlrev_b32 v244, 10, v244", "v_lshl_add_u32 v242, v245, 4, v244", "v_xor_b32 v243, 0x80, v242", f"v_add_u32 v243, {4096 - 1024}, v243",
          "v_lshrrev_b32 v244, 2, v254", "v_and_b32 v245, 7, v244", "v_lshlrev_b32 v244, 8, v244", "v_and_b32 v241, 3, v254", "v_lshl_add_u32 v244, v241, 3, v244"]
    for c in range(8):
        va += [f"v_xor_b32 v241, {c}, v245", f"v_lshl_add_u32 v{208 + c}, v241, 5, v244", f"v_add_u32 v{216 + c}, 0x10000, v{208 + c}", f"v_add_u32 v{224 + c}, 0x20000, v{208 + c}"]
    va += ["v_lshl_add_u32 v237, v255, 11, v240", f"v_add_u32 v237, {KEEP}, v237",
           "v_and_b32 v247, 3, v254", "v_lshlrev_b32 v247, 7, v247", "v_and_b32 v244, 15, v254", "v_lshlrev_b32 v244, 10, v244",
           "v_lshrrev_b32 v245, 4, v254", "v_lshl_add_u32 v238, v245, 3, v244", "v_add_u32 v239, 0x10000, v238"]
    va += [f"v_mov_b32 v{232 + k}, -1" for k in range(4)]
    return sa, va
HPOLL = "buffer_load_dword v207, v206, s[20:23], s99 offen sc1"
def gpre(): return chunk(0) + chunk(1) + chunk(2, w=False) + chunk(3, w=False)

def opf():
    if not OPF: return []
    return ["s_lshr_b32 s56, s2, 3", "s_lshl_b32 s56, s56, 2", "s_add_u32 s56, s56, s28", "s_lshr_b32 s57, s34, 1",
            f"s_mul_i32 s58, s57, {448 * 1024}", "s_mul_i32 s59, s56, 3584", "s_add_u32 s58, s58, s59",
            "buffer_load_dword v250, v252, s[4:7], s58 offen",
            "s_lshl_b32 s58, s57, 20", "s_lshl_b32 s59, s56, 13", "s_add_u32 s58, s58, s59",
            "buffer_load_dword v251, v253, s[8:11], s58 offen"]

def lchk(qa, qb_, first):
    if not FAST: return []
    return [f"v_cmp_ngt_f32 vcc, s{S_THR}, v{LACC(qa)}", "v_nop", "s_mov_b64 s[62:63], vcc" if first else "s_or_b64 s[62:63], s[62:63], vcc",
            f"v_cmp_ngt_f32 vcc, s{S_THR}, v{LACC(qb_)}", "v_nop", "s_or_b64 s[62:63], s[62:63], vcc"]

def gen_early_epi(safe=False):
    out = ([] if safe else ["v_add_u32 v236, s58, v240"]) + lchk(2, 3, True)
    k8 = 0
    for qb in (2, 3):
        base = 32 if qb == 2 else 96
        for ops, st in o_epi(qb, lambda t: base + 8 * t, lambda t: base + 8 * t):
            out += ops[:10]
            if k8 % 4 == 0: out.append(f"s_add_u32 s60, s40, {32768 + (k8 // 4) * 4096}")
            out.append(f"buffer_store_dwordx4 v[232:235], v240, s[20:23], s60 offen offset:{(k8 % 4) * 1024} sc1")
            out += ops[10:] + [st]
            k8 += 1
    return out + [HPOLL]


def gen_safe():
    p = Prog()
    M_ = [NEGM(q) for q in range(4)]; TQ = [NEGM(q) + 1 for q in range(4)]
    p("s_waitcnt vmcnt(0) lgkmcnt(0)")
    p("s_nop 15")
    p("s_barrier")
    for q in range(4):
        for r in range(32): p(f"v_accvgpr_write_b32 a{Oreg(q, 0) + r}, 0")
        for r in range(4): p(f"v_mov_b32 v{LACC(q) + r}, 0")
        p(f"v_mov_b32 v{M_[q]}, {f2u(-2.0 ** 120):#x}")
    p("s_sub_u32 s46, 15, s30")
    p("s_lshl_b32 s47, s46, 7")
    p("s_lshl_b32 s52, s30, 7")
    for q in range(4):
        p(f"v_cvt_f32_u32 v{TMP[0]}, s{47 if q < 2 else 52}")
        if q & 1: p(f"v_add_f32 v{TMP[0]}, {f2u(64.0):#x}, v{TMP[0]}")
        p(f"v_mul_f32 v{TMP[0]}, {f2u(BIG):#x}, v{TMP[0]}")
        p(f"v_add_f32 v{TQ[q]}, v{VTMASK}, v{TMP[0]}")
    p(f"v_mov_b32 v{VCUR}, v240")
    p("s_lshl_b32 s47, s46, 1")
    p("s_add_u32 s47, s47, 2")
    p("s_lshl_b32 s54, s28, 12")
    p("s_add_u32 s52, s54, 32768")
    p("s_add_u32 s53, s54, 49152")
    p.label("L_safe_loop")
    p("s_mov_b32 m0, s52")
    p("s_add_u32 s55, s54, 16384")
    for k in range(4): p(f"buffer_load_dwordx4 v240, s[16:19], s54 offen offset:{k * 1024} sc1 lds")
    p("s_mov_b32 m0, s53")
    p("s_nop 0")
    for k in range(4): p(f"buffer_load_dwordx4 v240, s[16:19], s55 offen offset:{k * 1024} sc1 lds")
    p("s_waitcnt vmcnt(0)")
    p("s_barrier")
    for f in range(16): p(f"ds_read_b128 {ar(Fbuf(f))}, v240 offset:{32768 + f * 1024}")
    p("s_waitcnt lgkmcnt(0)")
    for kb in range(4):
        for t in range(4):
            for q in range(4):
                d = Sreg(0, q, kb)
                p(f"{MF} {vr(d)}, {ar(Fbuf(kb * 4 + t))}, {ar(Qreg(q, t))}, {vr(d) if t else 0}")
    for f in range(16): p(f"ds_read_b128 {ar(Fbuf(f))}, v240 offset:{49152 + f * 1024}")
    for q in range(4):
        b = Sreg(0, q, 0)
        for r in range(16):
            p(f"v_subrev_f32 v{TMP[r % 2]}, {f2u((16 * (r // 4) + r % 4) * BIG):#x}, v{TQ[q]}")
            p(f"v_min_f32 v{b + r}, v{b + r}, v{TMP[r % 2]}")
        p(f"v_subrev_f32 v{TQ[q]}, {f2u(64 * BIG):#x}, v{TQ[q]}")
        rowmax(p, 0, q)
        p(f"v_max_f32 v{TMP[0]}, v{TMP[0]}, v{M_[q]}")
        p(f"v_sub_f32 v{TMP[1]}, v{M_[q]}, v{TMP[0]}")
        p(f"v_exp_f32 v{TMP[1]}, v{TMP[1]}")
        p(f"v_mov_b32 v{M_[q]}, v{TMP[0]}")
        for r in range(16): p(f"v_sub_f32 v{b + r}, v{b + r}, v{TMP[0]}")
        for r in range(16): p(f"v_exp_f32 v{b + r}, v{b + r}")
        for r in range(4): p(f"v_mul_f32 v{LACC(q) + r}, v{LACC(q) + r}, v{TMP[1]}")
        for k in range(8): p(f"v_cvt_pk_bf16_f32 v{Preg(q, 0) + k}, v{b + 2 * k}, v{b + 2 * k + 1}")
        for r in range(0, 32, 2):
            a = Oreg(q, 0) + r
            p(f"v_accvgpr_read_b32 v{TMP[2]}, a{a}")
            p(f"v_accvgpr_read_b32 v{TMP[3]}, a{a + 1}")
            p(f"v_mul_f32 v{TMP[2]}, v{TMP[2]}, v{TMP[1]}")
            p(f"v_mul_f32 v{TMP[3]}, v{TMP[3]}, v{TMP[1]}")
            p(f"v_accvgpr_write_b32 a{a}, v{TMP[2]}")
            p(f"v_accvgpr_write_b32 a{a + 1}, v{TMP[3]}")
    p("s_waitcnt lgkmcnt(0)")
    p("s_barrier")
    for s in range(2):
        for db in range(8):
            for q in range(4): p(f"{MF} {ar(Oreg(q, db))}, {ar(Fbuf(s * 8 + db))}, {vr(Preg(q, s))}, {ar(Oreg(q, db))}")
        for q in range(4): p(f"{MF} {vr(LACC(q))}, {vr(ONES)}, {vr(Preg(q, s))}, {vr(LACC(q))}")
    p("s_add_u32 s54, s54, 32768")
    p("s_sub_u32 s47, s47, 1")
    p("s_cmp_lg_u32 s47, 0")
    p("s_cbranch_scc1 L_safe_loop")
    p("s_nop 15")
    p(f"s_mov_b32 s{S_THR}, 0x7f800000")
    for x in gen_early_epi(True)[:-1]: p(x)
    for r in range(16): p(f"v_mov_b32 v{Sreg(1, 1, 0) + r}, {f2u(-2.0 ** 100) if r >= NX else 0:#x}")
    for pre, ins, tag in gpre():
        for x in pre: p(x)
        p(ins)
    p("s_mov_b32 s38, 1")
    p("s_branch L_fin")
    tx = [i.t for i in p.items]
    a = tx.index("L_safe_loop:"); b = tx.index("s_cbranch_scc1 L_safe_loop")
    for e in lint(tx[:b] + tx[a + 1:], "safe")[:20]: print(e)
    return ["L_safe:", "s_cmp_eq_u32 s38, 1", "s_cbranch_scc1 L_safe_ret"] + tx

def gen_tail():
    p = Prog()
    slow = []
    for f in range(NPRE, 16): p(f"ds_read_b128 {ar(Fbuf(16 + f))}, v{VCUR} offset:{49152 + f * 1024}", ("VE", f))
    b = Sreg(1, 1, 0)
    for r in range(NX, 16): p(f"v_exp_f32 v{b + r}, v{b + r}")
    for k in range(8): p(f"v_cvt_pk_bf16_f32 v{Preg(1, 0) + k}, v{b + 2 * k}, v{b + 2 * k + 1}")
    p("v_and_b32 v206, 0x1c00, v206")
    p.wait_vm(("cw", 0))
    p("s_waitcnt lgkmcnt(0)")
    p("s_barrier")
    for x in ["s_mov_b32 s4, s42", "s_mov_b32 s5, s43", "s_mov_b32 s6, 0x200000", "s_mov_b32 s7, 0x20000"]: p(x)
    mf = []
    for s in range(2):
        mf.append(f"{MF} {vr(LACC(1))}, {vr(ONES)}, {vr(Preg(1, s))}, {vr(LACC(1))}")
        for db in range(8): mf.append(f"{MF} {ar(Oreg(1, db))}, {ar(Fbuf(16 + s * 8 + db))}, {vr(Preg(1, s))}, {ar(Oreg(1, db))}")
    if not FAST: p(f"buffer_store_dword v249, v248, s[20:23], s98 offen offset:4{STF}", "flag")
    S = Sched16(mf)
    late = o_epi(0, lambda t: 8 * t, lambda t: 64 + 4 * t) + o_epi(1, lambda t: 32 + 8 * t, lambda t: 80 + 4 * t)
    seq = []
    rest = chunk(2, a=False) + chunk(3, a=False) + chunk(4)
    for i, (ops, st) in enumerate(late):
        seq += [(x, None) for x in ops[:10]]
        if i < 4:
            for pre, ins, tag in rest[i:i + 1]: seq += [(y, None) for y in pre] + [(ins, tag)]
        seq += [(x, None) for x in ops[10:]]
        if i < LST: seq.append((st, "ctxst"))
    vs = tail_setup()[1][8:-4]
    for i, (pre, ins, tag) in enumerate(rest[4:]):
        seq += [(x, None) for x in vs[4 * i:4 * i + 4]] + [(y, None) for y in pre] + [(ins, tag)]
    seq += [(x, None) for x in vs[48:]]
    if FAST:
        seq += [(x, None) for x in lchk(0, 1, False) + ["s_or_b32 s62, s62, s63", "v_mov_b32 v244, s62", "v_lshlrev_b32 v245, 2, v255", f"v_add_u32 v245, {KEEP + 16384}, v245",
                                                         "ds_write_b32 v245, v244", f"v_mov_b32 v245, {KEEP + 16384}"]]
    ne = 0
    for g in range(len(mf)):
        while S.load(g) + cost(seq[ne][0]) <= 2:
            S.add_last(g, Ins(*seq[ne])); ne += 1
    p.extend(S.items())
    if DIAG and not DIAG2: p.items.append(stamp(10))
    for x, tag in seq[ne:]: p(x, tag)
    if DIAG and not DIAG2: p.items.append(stamp(11))
    GO = [(n, c) for n in range(NK - 2) for c in range(8)] + [(n, 2 * cp + cf) for cp in range(4) for n in (NK - 2, NK - 1) for cf in range(2)]
    def w_reads(gi):
        n, c = GO[gi]
        off = wofs(n)
        d = 128 + 4 * (gi % 16)
        return [f"ds_read_b64_tr_b16 v[{d + 2 * hf}:{d + 2 * hf + 1}], v{208 + 8 * (off >> 16) + c} offset:{(off & 0xffff) + hf * 4096}" for hf in range(2)]
    RA = 8
    for gi in range(RA):
        for x in w_reads(gi): p(x, ("W", gi))
    p.wait_vm(("ca", 0))
    p.wait_lgkm(("W", 0))
    mf = []
    for gi, (n, c) in enumerate(GO):
        base = 0 if n < 14 else 64
        first = n in (0, 14)
        for tb in range(2):
            acc = base + ((c >> 1) * 2 + tb) * 8 + (c & 1) * 4
            mf.append(f"{MF} {vr(acc)}, {vr(128 + 4 * (gi % 16))}, {ar(areg(n) + 4 * tb)}, {0 if first else vr(acc)}")
    S = Sched16(mf)
    NG = NK * 8; NM = len(mf)
    BS = [ch for ch in range(NC - 1) if ch % OB == 0]
    def gB(ch): return 32 * ch + 16
    for gi in range(RA, NG):
        ch, k = gi // 16, gi % 16
        g = 2 * (gi - RA)
        if ch in BS and k >= 12: g -= [1, 2, 3, 4][k - 12]
        for x in w_reads(gi): S.add_mem(g, x, ("W", gi))
    for gi in range(1, NG): S.add_first(2 * gi - 1, Wait("lgkm", ("W", gi)))
    assert GPUB in BS and CPUB in BS
    for ch in range(NC - 1):
        if ch in BS:
            S.add_first(gB(ch) - 2, Ins("s_waitcnt lgkmcnt(0)"))
            S.add_first(gB(ch), Wait("vm", [("cw", min(ch + OB, NC - 1))] + (["pub"] if ch == GPUB else []) + (["ctxst"] if ch == CPUB else [])))
            S.add_first(gB(ch), "s_barrier")
        S.add_first(32 * (ch + 1) - 2, Wait("vm", ("ca", ch + 1)))
    def wfree(ch):
        return 0 if ch < 8 else gB(min(x for x in BS if x >= ch - 8)) + 1
    S.add_mem(gB(CPUB) + 1, f"buffer_store_dword v249, v248, s[20:23], s98 offen offset:8{STF}", "flag")
    if FAST:
        S.add_mem(gB(CPUB) + 3, f"buffer_store_dword v249, v248, s[20:23], s98 offen offset:4{STF}", "flag")
        S.add_mem(gB(0) + 1, "ds_read_b128 v[200:203], v245", "bad")
        S.add_first(gB(0) + 10, Wait("lgkm", "bad"))
        S.add_valu(gB(0) + 11, "v_or3_b32 v200, v200, v201, v202")
        S.add_valu(gB(0) + 11, "v_or_b32 v200, v200, v203")
        S.add_valu(gB(0) + 13, "v_cmp_ne_u32 vcc, 0, v200")
        S.add_last(gB(0) + 15, "s_cbranch_vccnz L_safe")
        S.add_last(gB(0) + 15, "L_safe_ret:")
    for i, (ops, st) in enumerate(late[LST:]): S.add_mem(2 + LSP * i, st, "ctxst")
    assert 2 + LSP * (8 - LST) < gB(CPUB)
    LD = []
    def ld(ops, e, pace):
        for i, (pre, ins, tag) in enumerate(ops):
            for x in pre: LD.append(Op(x, e + i * pace - 2, NM - 1))
            LD.append(Op(ins, e + i * pace, NM - 1, tag=tag, deps=[LD[-1]] if pre else []))
    ld(chunk(5), 2, 4); ld(chunk(6), 34, 4)
    nw = 7
    while 64 + 16 * (nw - 7) + 16 <= CCHK and nw < 11:
        ld(chunk(nw, a=False), max(64 + 16 * (nw - 7), wfree(nw)), 4); nw += 1
    S.add_mem(CPOLL, "buffer_load_dword v207, v206, s[20:23], s3 offen offset:4 sc1", "cpoll")
    S.add_first(CCHK, Wait("vm", "cpoll"))
    S.add_valu(CCHK, "v_cmp_ne_u32 vcc, 1, v207")
    S.add_last(CCHK + 1, "s_cbranch_vccnz L_cwait")
    S.add_last(CCHK + 1, "L_cok:")
    slow += spin("c", "buffer_load_dword v207, v206, s[20:23], s3 offen offset:4 sc1", "v_cmp_ne_u32 vcc, 1, v207")
    if CTXPF:
        S.add_valu(40, "v_lshlrev_b32 v252, 7, v254")
        S.add_valu(41, f"v_add_u32 v253, {ACT_ROW}, v252")
        ld(chunk(7, w=False), CCHK + 2, 1)
        ld([(["s_lshl_b32 s60, s45, 13"], "s_add_u32 s60, s60, s65", None), ([], "buffer_load_dword v250, v252, s[20:23], s60 offen sc1", "pf"),
            ([], "buffer_load_dword v251, v253, s[20:23], s60 offen sc1", "pf")], CCHK + 2, 1)
    for ch in range(8 if CTXPF else 7, nw): ld(chunk(ch, w=False), max(CCHK + 2, 32 * (ch - 7)), 1)
    for ch in range(nw, NC): ld(chunk(ch), max(CCHK + 2, 32 * (ch - 6), wfree(ch)), 4 if 32 * (ch - 6) > CCHK + 40 else 2)
    print("tail ld", schedule(S, [LD], 0, NM - 1, base_cap=2), [o.g for o in LD if o.mem][::8])
    def pub(base, kind, g0, g1, pace=0):
        ops = []
        for k8 in range(8):
            R = base + 8 * k8
            if k8 % 4 == 0: ops.append(Op(f"s_add_u32 s60, s40, {kind * 32768 + (k8 // 4) * 4096}", g0, g1))
            cv = [Op(f"v_cvt_pk_bf16_f32 v{R + k}, v{R + 2 * k}, v{R + 2 * k + 1}", g0, g1) for k in range(4)]
            ops += cv
            ops.append(Op(f"buffer_store_dwordx4 {vr(R)}, v240, s[20:23], s60 offen offset:{(k8 % 4) * 1024} sc1", g0 + k8 * pace, g1, [cv[-1]], tag="pub"))
            ops.append(Op(f"ds_write_b128 v236, {vr(R)} offset:{kind * 8192 + k8 * 1024}", g0, g1, tag="own"))
        return ops
    pb = pub(0, 0, 14 * 16 + PUB0, gB(GPUB) - 20, PUBP)
    print('pub', schedule(S, [pb], 14 * 16, NM - 1, base_cap=2), [o.g for o in pb if o.tag == 'pub'])
    S.add_mem(gB(GPUB) + 1, "buffer_store_dword v249, v248, s[20:23], s95 offen offset:4 sc1", "flag")
    gx = 32 * 17 + 21
    for k in range(4):
        S.add_mem(gx + 4 * k, f"buffer_load_dwordx2 v[{192 + 2 * k}:{193 + 2 * k}], v{238 + k // 2}, s[24:27], s57 offen offset:{32 * (k % 2)}", "x")
    gp = 32 * GPOLL
    S.add_mem(gp + 1, "buffer_load_dword v250, v247, s[20:23], s94 offen offset:4 sc1", "gpoll")
    gc = gp + 33
    S.add_first(gc + 1, Wait("vm", "gpoll"))
    S.add_valu(gc + 1, "v_cmp_ne_u32 vcc, 1, v250")
    S.add_last(gc + 2, "s_cbranch_vccnz L_gwait")
    S.add_last(gc + 2, "L_gok:")
    slow += spin("g", "buffer_load_dword v250, v247, s[20:23], s94 offen offset:4 sc1", "v_cmp_ne_u32 vcc, 1, v250")
    for k in range(3):
        for tb in range(2):
            S.add_mem(gc + 4 + 2 * (2 * k + tb), f"buffer_load_dwordx4 {vr(8 * k + 4 * tb)}, v240, s[20:23], s{GB[k]} offen offset:{tb * 1024} sc1", "gg")
    for tb in range(2): S.add_mem(gc + 18, f"ds_read_b128 {vr(24 + 4 * tb)}, v237 offset:{tb * 1024}", "gown")
    ps = pub(64, 1, 0, NM - 1)
    k8 = -1; inside = []
    for o in ps:
        if o.t.startswith("v_cvt") and (int(re.findall(r"v(\d+)", o.t)[0]) - 64) % 8 == 0: k8 += 1
        o.e = NM - 32 + 8 * (max(k8, 0) // 2) + 8 + 5
    inside = [o for o in ps if o.e < NM - 4]
    print("pub s inside", schedule(S, [inside], NM - 32, NM - 1, base_cap=3), len(inside), len(ps))
    for k in range(3): S.add_first(gc + 20 + 2 * k, f"s_add_u32 s{GB[k]}, s{GB[k]}, 32768")
    if DIAG3:
        for k, g in enumerate([0, CCHK, CCHK + 4, 14 * 16, 30 * 16, NM - 1]): S.add_first(g, stamp(2 + k))
    print(S.report("tail")[:400])
    OD = os.environ.get("ODROP", "").split(",")
    def keep(i):
        tg = i.tag if isinstance(i, (Ins, Wait)) else None
        if isinstance(i, Ins):
            if isinstance(tg, tuple) and tg[0] in OD: return False
            if tg in OD and tg: return False
        if isinstance(i, Wait):
            tags = tg if isinstance(tg, list) else [tg]
            tags = [t for t in tags if (t[0] if isinstance(t, tuple) else t) not in OD]
            if not tags: return False
            i.tag = tags
        return True
    p.extend([i for i in S.items() if keep(i)])
    GS = 144
    def gather():
        for k in range(3):
            for tb in range(2):
                p(f"buffer_load_dwordx4 {vr(GS + 8 * k + 4 * tb)}, v240, s[20:23], s{GB[k]} offen offset:{tb * 1024} sc1", "gs")
    p("s_nop 3")
    for o in ps[len(inside):]: p(o.t, o.tag)
    gather()
    def unpack(dst, src, n=8):
        for k in range(n):
            p(f"v_lshlrev_b32 v{dst + 2 * k}, 16, v{src + k}")
            p(f"v_and_b32 v{dst + 2 * k + 1}, 0xffff0000, v{src + k}")
    def rnd(b, T):
        for k in range(0, 16, 2): p(f"v_cvt_pk_bf16_f32 v{T + k // 2}, v{b + k}, v{b + k + 1}")
        unpack(b, T)
    def accum(D, src):
        for k in range(8):
            p(f"v_dot2c_f32_bf16 v{D + 2 * k}, s46, v{src + k}")
            p(f"v_dot2c_f32_bf16 v{D + 2 * k + 1}, s47, v{src + k}")
    p("s_mov_b32 s46, 0x00003f80")
    p("s_mov_b32 s47, 0x3f800000")
    p("s_mov_b32 s44, 0x40000")
    if DIAG3: p.items.append(stamp(8))
    p("s_waitcnt lgkmcnt(0)")
    p("s_barrier")
    for tb in range(2): p(f"ds_read_b128 {vr(168 + 4 * tb)}, v237 offset:{8192 + tb * 1024}", "sown")
    p.wait_vm("gg")
    unpack(32, 24)
    for k in range(3): accum(32, 8 * k)
    p("s_nop 2")
    rnd(32, 48)
    for k in range(16): p(f"v_mul_f32 v{48 + k}, {f2u(-LOG2E):#x}, v{32 + k}")
    for k in range(16): p(f"v_exp_f32 v{48 + k}, v{48 + k}")
    for k in range(16): p(f"v_add_f32 v{48 + k}, 1.0, v{48 + k}")
    for k in range(16): p(f"v_rcp_f32 v{48 + k}, v{48 + k}")
    for k in range(16): p(f"v_mul_f32 v{32 + k}, v{32 + k}, v{48 + k}")
    rnd(32, 48)
    unpack(128, 192)
    p.wait_lgkm("sown")
    unpack(0, 168)
    p("s_branch L_o_chk")
    p.label("L_o_poll")
    gather()
    p.label("L_o_chk")
    p("s_waitcnt vmcnt(0)")
    p(f"v_max3_u32 v48, v{GS}, v{GS + 1}, v{GS + 2}")
    p(f"v_max3_u32 v49, v{GS + 3}, v{GS + 4}, v{GS + 5}")
    for k in range(6, 22, 4):
        p(f"v_max3_u32 v48, v48, v{GS + k}, v{GS + k + 1}")
        p(f"v_max3_u32 v49, v49, v{GS + k + 2}, v{GS + k + 3}")
    p(f"v_max3_u32 v48, v48, v{GS + 22}, v{GS + 23}")
    p("v_max_u32 v48, v48, v49")
    p("v_cmp_eq_u32 vcc, -1, v48")
    p("s_cbranch_vccz L_o_go")
    p("s_sub_u32 s44, s44, 1")
    p("s_cbranch_scc0 L_o_poll")
    p.label("L_o_go")
    if DIAG3: p.items.append(stamp(9))
    for k in range(3): accum(0, GS + 8 * k)
    p("s_nop 2")
    for k in range(16): p(f"v_fmac_f32 v{128 + k}, v{k}, v{32 + k}")
    for k in range(0, 16, 2): p(f"v_cvt_pk_bf16_f32 v{96 + k // 2}, v{128 + k}, v{129 + k}")
    for k in range(4):
        p(f"buffer_store_dwordx2 v[{96 + 2 * k}:{97 + 2 * k}], v{238 + k // 2}, s[4:7], s57 offen offset:{32 * (k % 2)}")
    if DIAG:
        p("s_waitcnt vmcnt(0)")
        p.items.append(stamp(12)); p.items.append(stamp(13, True))
        dump_stamps(p, 0, 28, 20)
    return [i.t for i in resolve(p.items, [Ins(ins, tag) for pre, ins, tag in gpre()])], slow

def gen_f_kernel():
    p = Prog()
    p("s_cmp_ge_u32 s2, 256")
    p("s_cbranch_scc1 L_f_end")
    if DIAG:
        for k in range(14): p(f"s_mov_b32 s{66 + 2 * k}, 0")
        p.items.append(stamp(0, True)); p.items.append(stamp(1))
    p("s_load_dwordx4 s[36:39], s[0:1], 0")
    p("s_load_dwordx4 s[40:43], s[0:1], 24")
    p("s_load_dwordx2 s[44:45], s[0:1], 96")
    p("v_and_b32 v254, 63, v0")
    p("v_lshrrev_b32 v255, 6, v0")
    p("s_and_b32 s34, s2, 7")
    p("v_readfirstlane_b32 s28, v255")
    p("s_lshr_b32 s35, s2, 3")
    p("v_lshlrev_b32 v252, 7, v254")
    if CPF:
        p("s_getpc_b64 s[4:5]")
        p("L_pc0:")
        p(f"s_sub_u32 s4, s4, L_pc0-{KNAME}")
        p("s_subb_u32 s5, s5, 0")
        p(f"s_mov_b32 s6, L_code_end-{KNAME}")
        p("s_mov_b32 s7, 0x20000")
        p("v_lshrrev_b32 v244, 3, v254")
        p("v_lshl_or_b32 v244, v244, 27, v252")
        p("v_lshl_add_u32 v244, v255, 15, v244")
        p("s_lshl_b32 s63, s35, 10")
        p("buffer_load_dword v52, v244, s[4:7], s63 offen", "pf")
    p("v_lshlrev_b32 v240, 4, v254")
    p("v_lshrrev_b32 v244, 4, v254")
    p("v_and_b32 v245, 15, v254")
    p("v_lshlrev_b32 v245, 7, v245")
    p("v_lshl_add_u32 v253, v244, 13, v245")
    p("s_lshl_b32 s60, s35, 2")
    p("s_add_u32 s60, s60, s28")
    p("s_and_b32 s61, s34, 1")
    p("s_lshl_b32 s61, s61, 20")
    p("s_lshl_b32 s63, s60, 13")
    p("s_add_u32 s61, s61, s63")
    p("s_lshr_b32 s62, s34, 1")
    p("s_lshl_b32 s62, s62, 11")
    p("s_lshl_b32 s63, s60, 15")
    p("s_add_u32 s62, s62, s63")
    p("s_lshl_b32 s47, s2, 13")
    p("s_lshl_b32 s46, s28, 11")
    p("s_add_u32 s47, s47, s46")
    for r, v in ((10, 0x200000), (11, 0x20000), (14, 0x400000), (15, 0x20000), (26, 0x200000), (27, 0x20000)): p(f"s_mov_b32 s{r}, {v:#x}")
    p("s_waitcnt lgkmcnt(0)")
    if DIAG and not DIAG2: p.items.append(stamp(2))
    for d, sr in ((24, 36), (25, 37), (8, 38), (9, 39), (12, 40), (13, 41)): p(f"s_mov_b32 s{d}, s{sr}")
    p("buffer_load_dwordx4 v[0:3], v240, s[24:27], s47 offen" + NTX, "ln")
    p("buffer_load_dwordx4 v[4:7], v240, s[24:27], s47 offen offset:1024" + NTX, "ln")
    if XBAR: p("s_barrier")
    if PFA:
        p("buffer_load_dword v246, v252, s[8:11], s61 offen" + os.environ.get("NTPA", ""), "pf")
        p("buffer_load_dword v247, v253, s[12:15], s62 offen" + NT, "pf")
    srd(p, 16, 42, 0x400000)
    srd(p, 20, 44, 0x10000000)
    p("s_load_dwordx2 s[36:37], s[0:1], 16")
    p("s_load_dwordx2 s[38:39], s[0:1], 40")
    p("s_load_dwordx4 s[40:43], s[0:1], 56")
    p("s_load_dwordx2 s[96:97], s[0:1], 72")
    p("s_load_dwordx2 s[98:99], s[0:1], 88")
    p("v_lshl_add_u32 v244, v255, 6, v254")
    p("v_cmp_eq_u32 vcc, 0, v244")
    p("v_mov_b32 v248, 0x7ffff000")
    p("v_mov_b32 v249, 1")
    p("v_mov_b32 v250, 0")
    p("v_cndmask_b32_e64 v248, v248, 0, vcc")
    p("s_and_b32 s47, s34, 1")
    p("s_lshl_b32 s47, s47, 2")
    p("s_and_b32 s46, s35, 3")
    p("s_add_u32 s47, s47, s46")
    p("s_lshr_b32 s3, s34, 1")
    p("s_lshl_b32 s3, s3, 3")
    p("s_lshr_b32 s46, s35, 2")
    p("s_add_u32 s3, s3, s46")
    p("s_lshl_b32 s45, s3, 3")
    p("s_add_u32 s45, s45, s47")
    p("s_lshl_b32 s46, s47, 2")
    p("s_add_u32 s46, s46, s28")
    p("s_lshl_b32 s31, s46, 16")
    p("s_lshl_b32 s94, s46, 15")
    p("s_lshl_b32 s47, s3, 20")
    p("s_add_u32 s94, s94, s47")
    p(f"s_add_u32 s94, s94, {WS_KV:#x}")
    p("s_lshl_b32 s95, s3, 8")
    p("s_lshl_b32 s3, s45, 7")
    p(f"s_add_u32 s3, s3, {WS_FLAG + 0x10000:#x}")
    p("s_lshl_b32 s29, s34, 2")
    p("s_lshr_b32 s46, s35, 3")
    p("s_add_u32 s29, s29, s46")
    p("s_and_b32 s30, s35, 7")
    p(f"s_mul_i32 s48, s28, 24576")
    p("s_lshl_b32 s49, s28, 12")
    p("s_lshl_b32 s50, s28, 6")
    p("s_add_u32 s50, s50, s95")
    p("s_and_b32 s45, s28, 1")
    p("s_lshr_b32 s52, s28, 1")
    p("s_lshl_b32 s53, s45, 13")
    p("s_lshl_b32 s54, s52, 12")
    p("s_add_u32 s53, s53, s54")
    p("s_lshl_b32 s54, s45, 6")
    p("s_lshl_b32 s55, s52, 19")
    p("s_add_u32 s55, s54, s55")
    p("s_add_u32 s54, s55, s95")
    p("s_lshl_b32 s56, s29, 8")
    p("s_add_u32 s65, s55, s56")
    p("s_sub_u32 s56, 15, s30")
    p("s_lshl_b32 s32, s56, 3")
    p("s_add_u32 s32, s32, s28")
    p("s_lshl_b32 s33, s30, 3")
    p("s_add_u32 s33, s33, s28")
    p("s_lshl_b32 s46, s32, 14")
    p("s_lshl_b32 s47, s33, 14")
    p(f"s_mul_i32 s32, s32, {ACT_ROW}")
    p(f"s_add_u32 s32, s32, {WS_ACT:#x}")
    p(f"s_mul_i32 s33, s33, {ACT_ROW}")
    p(f"s_add_u32 s33, s33, {WS_ACT:#x}")
    p("s_add_u32 s55, s29, 32")
    p("s_cmp_lt_u32 s29, 24")
    p("s_cselect_b32 s55, s55, s29")
    p(f"s_mul_i32 s64, s52, {64 * 3584}")
    p("s_lshl_b32 s63, s29, 6")
    p("s_add_u32 s35, s64, s63")
    p("s_lshl_b32 s63, s55, 6")
    p("s_add_u32 s64, s64, s63")
    p("s_lshl_b32 s51, s29, 20")
    p(f"s_add_u32 s51, s51, {WS_KV:#x}")
    p("s_lshl_b32 s56, s29, 10")
    p(f"s_add_u32 s56, s56, {128 * 1024}")
    p("s_add_u32 s100, s56, s32")
    p("s_add_u32 s101, s56, s33")
    p("s_lshl_b32 s61, s34, 8")
    p("s_lshr_b32 s63, s60, 1")
    p(f"s_mul_i32 s63, s63, {8 * 3584}")
    p("s_add_u32 s61, s61, s63")
    p("s_lshl_b32 s52, s34, 10")
    p("s_lshl_b32 s63, s60, 15")
    p("s_add_u32 s52, s52, s63")
    p("v_lshrrev_b32 v241, 3, v254")
    p("v_lshlrev_b32 v241, 13, v241")
    p("v_and_b32 v242, 7, v254")
    for n in range(8):
        p(f"v_xor_b32 v243, {n}, v242")
        p(f"v_lshl_add_u32 v{224 + n}, v243, 4, v241")
    p("v_and_b32 v241, 7, v254")
    p("v_bfe_u32 v242, v254, 3, 1")
    p("v_lshlrev_b32 v242, 7, v242")
    p("v_lshl_add_u32 v242, v241, 10, v242")
    p("v_add_u32 v242, s48, v242")
    p("v_lshrrev_b32 v243, 4, v254")
    for tt in range(2):
        p(f"v_add_u32 v244, {4 * tt}, v243")
        p("v_xor_b32 v244, v244, v241")
        p(f"v_lshl_add_u32 v{232 + tt}, v244, 4, v242")
    p("v_lshlrev_b32 v241, 9, v243")
    p("v_bfe_u32 v242, v254, 2, 2")
    p("v_lshl_add_u32 v241, v242, 6, v241")
    p("v_and_b32 v242, 3, v254")
    p("v_lshl_add_u32 v241, v242, 3, v241")
    p("v_and_b32 v242, 1, v243")
    p("v_lshl_add_u32 v234, v242, 5, v241")
    p("v_xor_b32 v237, 32, v234")
    for cf in range(2):
        p(f"v_add_u32 v{235 + 3 * cf}, 0x10000, v{234 + 3 * cf}")
        p(f"v_add_u32 v{236 + 3 * cf}, 0x20000, v{234 + 3 * cf}")
    p("v_lshrrev_b32 v244, 5, v254")
    p("v_lshlrev_b32 v251, 30, v244")
    p("v_lshlrev_b32 v244, 1, v244")
    p("v_and_b32 v245, 3, v254")
    p("v_xor_b32 v245, v245, v244")
    p("v_lshlrev_b32 v245, 4, v245")
    p("v_lshrrev_b32 v244, 2, v254")
    p("v_lshl_add_u32 v241, v244, 13, v245")
    p("v_mul_u32_u24 v244, 3584, v244")
    p("v_add_u32 v242, v244, v245")
    p("v_bfe_u32 v245, v254, 2, 3")
    p("v_mul_u32_u24 v245, 3584, v245")
    p("v_and_b32 v244, 1, v254")
    p("v_lshl_add_u32 v245, v244, 7, v245")
    p("v_bfe_u32 v244, v254, 1, 1")
    p("v_lshl_add_u32 v245, v244, 11, v245")
    p("v_or_b32 v245, v245, v251")
    p("v_and_b32 v243, 15, v254" if not BYTEF else "v_mov_b32 v243, v254")
    p(f"v_lshlrev_b32 v243, {2 if BYTEF else XSH}, v243")
    p("v_lshlrev_b32 v48, 7, v254")
    p("v_lshl_add_u32 v48, v255, 5, v48")
    p("v_add_u32 v48, 0x24000, v48")
    p("v_lshl_add_u32 v49, v255, 11, v240")
    p("v_add_u32 v49, 0x24000, v49")
    p("v_lshrrev_b32 v50, 3, v254")
    p("v_lshlrev_b32 v50, 8, v50")
    p("v_and_b32 v51, 7, v254")
    p("v_lshl_add_u32 v50, v51, 4, v50")
    p("s_waitcnt lgkmcnt(0)")
    p("s_cmp_eq_u32 s45, 0")
    p("s_cselect_b32 s40, s40, s42")
    p("s_cselect_b32 s41, s41, s43")
    p("s_mov_b32 s4, s98")
    p("s_mov_b32 s5, s99")
    p("s_mov_b32 s6, 256")
    p("s_mov_b32 s7, 0x20000")
    p("s_load_dwordx2 s[42:43], s[0:1], 80")
    p("s_lshl_b32 s56, s55, 10")
    p(f"s_add_u32 s56, s56, {128 * 1024}")
    p("s_add_u32 s98, s56, s32")
    p("s_add_u32 s99, s56, s33")
    p("s_lshl_b32 s63, s2, 7")
    p(f"s_add_u32 s63, s63, {WS_FLAG:#x}")
    BLK = [6, 7, 8, 9, 6, 7, 8, 9, 0, 1, 2, 3, 4, 5, 6, 7, 8, 9, 0, 1, 2, 3, 6, 7, 8, 9, 4, 5, 6, 7, 8, 9]
    def dma_A(s):
        ops = []
        for n in range(8):
            pre = []
            if n % 4 == 0:
                pre = [f"s_add_u32 m0, s48, {(s % 3) * 8192 + (n // 4) * 4096}", f"s_add_u32 s56, s31, {s * 128 + (n // 4) * 4096}"]
            ops.append((pre, f"buffer_load_dwordx4 v{224 + n}, s[8:11], s56 offen offset:{(n % 4) * 1024}{NTA} lds", ("A", s)))
        return ops
    def dma_W(n):
        ops = []
        kq = n % 4
        for q in range(4):
            m0 = "s53"
            if n < 8:
                pre = [f"s_add_u32 s57, s54, {(kq * 128 + q * 16) * 8192 + (n // 4) * 128 - q * 1024}"]
                ins = f"buffer_load_dwordx4 v241, s[12:15], s57 offen offset:{q * 1024} lds"
            elif n < 16:
                pre = [f"s_add_u32 s57, s50, {((n - 8) * 64 + q * 16) * 8192 - q * 1024}"]; m0 = "s49"
                ins = f"buffer_load_dwordx4 v241, s[16:19], s57 offen offset:{q * 1024} lds"
            elif n < 24:
                pre = [f"s_add_u32 s57, s{35 if n < 20 else 64}, {(kq * 128 + q * 16) * 3584 - q * 1024}"]
                ins = f"buffer_load_dwordx4 v242, s[12:15], s57 offen offset:{q * 1024} lds"
            else:
                pre = [f"s_add_u32 s57, s65, {(kq * 128 + q * 16) * 8192 - q * 1024 + (128 if n >= 28 else 0)}"]
                ins = f"buffer_load_dwordx4 v241, s[8:11], s57 offen offset:{q * 1024} lds"
            if "kkvvggqq"[n // 4] in NTD: ins = ins.replace(" lds", " nt lds")
            if q == 0: pre = [f"s_add_u32 m0, {m0}, {BLK[n] * 16384}"] + pre
            ops.append((pre, ins, ("L", n)))
        return ops
    def kv_half(tile, part):
        ops = []
        for q in range(4):
            pre = []
            if q == 0: pre = [f"s_add_u32 m0, s49, {tile * 32768 + part * 16384}", f"s_add_u32 s57, s49, {tile * 32768 + part * 16384}"]
            ops.append((pre, f"buffer_load_dwordx4 v240, s[16:19], s57 offen offset:{q * 1024}{KSC} lds", ("kv", tile, part)))
        return ops
    def now(ops):
        for pre, ins, tag in ops:
            for x in pre: p(x)
            p(ins, tag)
    first = dma_W(0) + dma_A(0) + dma_A(1) + (dma_W(1) + dma_A(2) if ALEAD == 3 else [])
    now(first[:EARLY])
    p.wait_vm("ln")
    if DIAG and not DIAG2: p.items.append(stamp(3))
    emit_ln(p)
    p("ds_write_b128 v48, v[40:43]")
    p("ds_write_b128 v48, v[44:47] offset:16")
    p("s_lshr_b32 s58, s2, 1")
    p("s_lshl_b32 s58, s58, 14")
    p("s_and_b32 s59, s2, 1")
    p("s_lshl_b32 s59, s59, 7")
    p("s_add_u32 s58, s58, s59")
    p("s_add_u32 s58, s58, s49")
    if WS_XN: p(f"s_add_u32 s58, s58, {WS_XN:#x}")
    p("s_waitcnt lgkmcnt(0)")
    p("s_barrier")
    p("ds_read_b128 v[40:43], v49")
    p("ds_read_b128 v[44:47], v49 offset:1024")
    p("s_lshr_b32 s59, s2, 4")
    p(f"s_lshl_b32 s59, s59, {XSH}")
    p("s_waitcnt lgkmcnt(0)")
    p(f"buffer_store_dwordx4 v[40:43], v50, s[20:23], s58 offen{STF}", "xnst")
    p(f"buffer_store_dwordx4 v[44:47], v50, s[20:23], s58 offen offset:2048{STF}", "xnst")
    p(f"buffer_store_dword v250, v248, s[20:23], s63 offen{STF}", "zf")
    p(f"buffer_store_dword v250, v248, s[20:23], s63 offen offset:4{STF}", "zf")
    p(f"buffer_store_dword v250, v248, s[20:23], s3 offen{STF}", "zf")
    p(f"s_add_u32 s63, s63, 0x20000")
    p(f"buffer_store_dword v250, v248, s[20:23], s63 offen offset:8{STF}", "zf")
    p(f"buffer_store_dword v250, v248, s[20:23], s63 offen{STF}", "zf")
    p(f"buffer_store_dword v250, v248, s[20:23], s63 offen offset:4{STF}", "zf")

    if os.environ.get('PFW8'):
        p('s_waitcnt vmcnt(0)'); p.items.append(stamp(2))
    now(first[EARLY:])

    groups = []
    def accT(base, c, cf, rb): return base + (c * 4 + rb) * 8 + cf * 4
    def accV(base, c, cf, rb): return base + ((c * 2 + cf) * 2 + (rb >> 1)) * 8 + (rb & 1) * 4
    def add_double(seg0, bases):
        for s in range(8):
            for tt in range(2):
                for c in range(4):
                    for cf in range(2):
                        groups.append(dict(off=BLK[seg0 + s] * 16384 + c * 4096 + tt * 2048, cf=cf, t=2 * s + tt,
                                           acc=[accV(bases[c >> 1], c & 1, cf, rb) for rb in range(4)], vt=True))
    def add_single(seg0, base):
        for q in range(4):
            for tq, c in ([(tq, c) for c in range(2) for tq in range(4)] if seg0 + q == 31 else [(tq, c) for tq in range(4) for c in range(2)]):
                if True:
                    for cf in range(2):
                        groups.append(dict(off=BLK[seg0 + q] * 16384 + c * 8192 + tq * 2048, cf=cf, t=4 * q + tq,
                                           acc=[accT(base, c, cf, rb) for rb in range(4)], vt=False))
    add_single(0, 0); add_single(4, 64); add_double(8, [128, 0])
    add_single(16, 64); add_single(20, 128); add_single(24, 0); add_single(28, 64)
    NG = len(groups)
    mf = []
    for n, G in enumerate(groups):
        w = vr(192 + 4 * (n % 8))
        for rb in range(4):
            a = ar((rb * 16 + G["t"]) * 4)
            d = vr(G["acc"][rb])
            c = 0 if G["t"] == 0 else d
            mf.append(f"{MF} {d}, {a}, {w}, {c}" if G["vt"] else f"{MF} {d}, {w}, {a}, {c}")
    S = Sched16(mf)
    def w_reads(n):
        G = groups[n]
        out = []
        for hf in range(2):
            off = G["off"] + hf * 256
            d = 192 + 4 * (n % 8) + 2 * hf
            out.append(f"ds_read_b64_tr_b16 v[{d}:{d + 1}], v{234 + 3 * G['cf'] + (off >> 16)} offset:{off & 0xffff}")
        return out
    def a_reads(s):
        return [f"ds_read_b128 {ar((rb * 16 + 2 * s + tt) * 4)}, v{232 + tt} offset:{(s % 3) * 8192 + rb * 256}" for tt in range(2) for rb in range(4)]
    RA = 5
    if DIAG and not DIAG2: p.items.append(stamp(4))
    p.wait_vm(("A", 0))
    p("s_barrier")
    if DIAG and not DIAG2: p.items.append(stamp(5))
    for x in a_reads(0): p(x, ("Ar", 0))
    for n in range(RA):
        for x in w_reads(n): p(x, ("W", n))
    p.wait_lgkm(("W", 0))
    for n in range(RA, NG):
        k = n % 16
        if k <= 13: g = 4 * (n - RA)
        elif k == 14: g = 4 * (n - 6) + 2
        else: g = 4 * (n - 6)
        for i, x in enumerate(w_reads(n)): S.add_mem(g + i, x, ("W", n))
    for n in range(1, NG): S.add_first(4 * n - 1, Wait("lgkm", ("W", n)))
    for s in range(1, 8):
        g = 32 * s - 22
        S.add_first(g, Wait("vm", ("A", s)))
        for i, x in enumerate(a_reads(s)): S.add_mem(g + [0, 0, 1, 1, 4, 4, 5, 5][i], x, ("Ar", s))
        S.add_first(32 * s - 10, Wait("lgkm", ("Ar", s)))
    def gB(n): return 64 * n + 4 * 11
    GBS = [n for n in range(31) if n < 8 or not GB2 or n % 2 == 1]
    for n in GBS:
        nxt = min([x for x in GBS if x > n] + [31])
        tags = [("L", nxt)]
        if n == 0: tags += ["xnst", "zf"]
        if n == KVPUB: tags.append("kvst")
        if n == 29: tags.append(("kv", 0, 0))
        S.add_first(gB(n) - 2, Ins("s_waitcnt lgkmcnt(0)"))
        S.add_first(gB(n), Wait("vm", tags))
        S.add_first(gB(n), "s_barrier")
    assert KVPUB in GBS
    def win(n): return gB(n - 1) + 1
    def freed(seg): return gB(min(x for x in GBS if x >= seg)) + 1
    def lfree(n):
        prev = [m for m in range(n) if BLK[m] == BLK[n]]
        return freed(prev[-1]) if prev else freed(3)
    def bfree(blk): return freed(max(m for m in range(32) if BLK[m] == blk))
    LD = []
    def ld(ops, e, pace=1):
        for i, (pre, ins, tag) in enumerate(ops):
            for x in pre: LD.append(Op(x, e + i * pace - 3, 2040))
            LD.append(Op(ins, e + i * pace, 2040, tag=tag, deps=[LD[-2]] if len(pre) == 2 else []))
    one = lambda ins, tag, pre=(): [([], x, None) for x in pre] + [([], ins, tag)]
    if ALEAD == 3:
        ld(dma_A(3), 0); ld(dma_W(2), 8); ld(dma_A(4), 22)
        ld(dma_A(5), 54); ld(dma_W(3), 62); ld(dma_A(6), 86); ld(dma_A(7), 118); ld(dma_W(4), 126); ld(dma_W(5), 140, 4)
    else:
        ld(dma_W(1), 0); ld(dma_A(2), 0); ld(dma_A(3), 20); ld(dma_W(2), 40); ld(dma_A(4), 52); ld(dma_A(5), 84); ld(dma_W(3), 100)
        ld(dma_A(6), 116); ld(dma_A(7), 144); ld(dma_W(4), 156); ld(dma_W(5), 160)
    if not BYTEF: ld(one("buffer_atomic_add v249, v248, s[4:7], s59 offen", "pub"), win(3))
    else: S.add_mem(win(BYTEF), "buffer_store_byte v249, v248, s[4:7], s2 offen sc1", "pub")
    if "v" in PFW: ld(one("buffer_load_dword v246, v253, s[16:19], s62 offen" + NTV, "pf"), win(3))
    ld(dma_W(6), win(3), 2)
    ld(dma_W(7), VW0 - 24, 4)
    for n in range(8, 13): ld(dma_W(n), VW0 + (n - 8) * VWP, 3)
    ld(one("buffer_load_dword v250, v245, s[12:15], s61 offen", "pf", ["s_mov_b32 s12, s40", "s_mov_b32 s13, s41", f"s_mov_b32 s14, {512 * 3584}"])[:4 if "g" in PFW else 3], win(GPW))
    print("ld1", schedule(S, [LD], 0, 511, base_cap=LCAP), "last", LD[-1].g, [o.g for o in LD if o.tag in ("pf", "poll")])
    gc = XNC
    S.add_mem(XPL if XPL else gc - 50, XPOLL, "poll")
    S.add_first(gc, Wait("vm", "poll"))
    S.add_valu(gc, XCMP)
    S.add_valu(gc, "v_add_u32 v247, 0x10000, v240")
    S.add_last(gc + 2, "s_cbranch_vccnz L_xnwait")
    S.add_last(gc + 2, "L_xnok:")
    LD = []
    for n in range(13, 24): ld(dma_W(n), max(win(9) + (n - 13) * 44 if n < WSH else win(n - 4), lfree(n)), 10)
    S.add_valu(64 * 12, "v_and_b32 v253, 0xfffffbff, v253")
    S.add_valu(64 * 12 + 1, "v_bfe_u32 v246, v254, 3, 1")
    S.add_valu(64 * 12 + 2, "v_lshl_or_b32 v253, v246, 30, v253")
    ld(one("buffer_load_dword v244, v253, s[8:11], s52 offen", "pf", ["s_mov_b32 s8, s36", "s_mov_b32 s9, s37", "s_mov_b32 s10, 0x400000"])[:4 if "q" in PFW else 3], win(17 if WSH > 20 else WQW))
    for n in range(24, 32):
        if n == 28 and PFOG:
            S.add_valu(1400, "v_and_b32 v245, 0xfff, v252")
            S.add_valu(1401, "v_or_b32 v245, v245, v251")
            ld(one("buffer_load_dword v250, v245, s[4:7], s50 offen", "pf", ["s_mov_b32 s4, s38", "s_mov_b32 s5, s39", "s_mov_b32 s6, 0x400000", "s_mov_b32 s7, 0x20000",
                   "s_lshl_b32 s50, s2, 2", "s_add_u32 s50, s50, s28", "s_lshl_b32 s50, s50, 12"]), PFOG - 8)
            ld(one("buffer_load_dword v253, v245, s[12:15], s50 offen", "pf", ["s_mov_b32 s12, s96", "s_mov_b32 s13, s97", f"s_mov_b32 s14, {1792 * 1024}"]), PFOG - 8)
            if NTX: ld(one("buffer_load_dword v244, v245, s[24:27], s50 offen", "pf"), PFOG - 8)
        ld(dma_W(n), max((win(19) if WSH > 20 else win(21) + 20) + (n - 24) * (50 if WSH > 20 else 36), lfree(n), PFOG + 120 + 20 * (n - 28) if PFOG and n >= 28 else 0), 8 if n < 28 or not PFOG else 4)
    S.add_valu(64 * 26, "v_and_b32 v243, 0x380, v252")
    for x in ["s_add_u32 s16, s20, s51", "s_addc_u32 s17, s21, 0"]: S.add_last(64 * 26, x)
    for x in ["s_sub_u32 s18, 16, s30", "s_lshl_b32 s18, s18, 16"]: S.add_last(64 * 26 + 1, x)
    ld(one("buffer_load_dword v244, v243, s[20:23], s59 offen sc1", "poll2", ["s_lshl_b32 s59, s29, 10", f"s_add_u32 s59, s59, {WS_FLAG + 0x10000:#x}"]), 64 * 27)
    gc = win(28) + 1
    for k in range(7): ld(kv_half(k // 2, k % 2), max(gc + 4 + 16 * k, bfree(k)), 4)
    S.add_first(gc, Wait("vm", "poll2"))
    S.add_valu(gc, "v_cmp_ne_u32 vcc, 1, v244")
    S.add_last(gc + 2, "s_cbranch_vccnz L_kvwait")
    S.add_last(gc + 2, "L_kvok:")
    print("ld2", schedule(S, [LD], 512, 2046, base_cap=2), "last", LD[-1].g, [(o.tag, o.g) for o in LD if o.mem][::4])
    XL = []
    for t in range(16):
        for rb in range(4):
            pre = []
            if t % 4 == 0 and rb % 2 == 0: pre = [f"s_add_u32 s{62 + rb // 2}, s{46 + rb // 2}, {WS_XN + t * 1024}"]
            vo = 240 if rb % 2 == 0 else 247
            XL.append(Op(f"buffer_load_dwordx4 {ar((rb * 16 + t) * 4)}, v{vo}, s[20:23], s{62 + rb // 2} offen offset:{(t % 4) * 1024}{XSC}",
                         max(512 + 32 * t + 32 + (6 * rb if t < 15 else 0), XNC + 4 + int(XP * (4 * t + rb))), 1024 + 16 * t - 60 if t < 10 else 512 + 32 * t + 64, pre=pre, tag=("X", t)))
    for t in range(16): S.add_first(1024 + 16 * t - 2, Wait("vm", ("X", t)))
    def kv_epi(kind, u, base, g0, g1, st0):
        ops = []
        for k8 in range(8):
            R = base + 8 * k8
            if kind == "K":
                c, rb = k8 // 4, k8 % 4
                off = rb * 4096 + (2 * u + c) * 1024
                for r in range(8): ops.append(Op(f"v_mul_f32 v{R + r}, s58, v{R + r}", g0, g1))
            else:
                db, s = 4 * u + k8 // 2, k8 % 2
                off = 16384 + s * 8192 + db * 1024
            cv = [Op(f"v_cvt_pk_bf16_f32 v{R + k}, v{R + 2 * k}, v{R + 2 * k + 1}", g0, g1) for k in range(4)]
            ops += cv
            ops.append(Op(f"s_add_u32 s95, s94, {off & ~4095}", g0, g1))
            ops.append(Op(f"buffer_store_dwordx4 {vr(R)}, v240, s[20:23], s95 offen offset:{off & 4095}{STF}", max(g0, st0[0] + int(k8 * st0[1])), g1, [cv[-1]], tag="kvst"))
        return ops
    S.add_first(250, f"s_mov_b32 s58, {f2u(KSCALE):#x}")
    C0 = -2.0 * math.sqrt(2.0 / math.pi) * LOG2E
    C1 = C0 * 0.044715
    S.add_valu(64 * 17, f"v_mov_b32 v232, {f2u(C0):#x}")
    S.add_valu(64 * 17 + 1, f"v_mov_b32 v233, {f2u(C1):#x}")
    S.add_valu(64 * 17 + 2, f"v_add_u32 v246, {4 * ACT_ROW}, v240")
    def gu_epi(base, psg, g0, g1, gst):
        st = [[], []]; sto = []
        for rb in range(4):
            G = base + rb * 8; U = base + 32 + rb * 8
            L = st[rb & 1]
            for r in range(8):
                t = 224 + (r % 4) + 4 * (rb & 1)
                o4 = Op(f"v_exp_f32 v{t}, v{t}", g0, g1)
                o7 = Op(f"v_rcp_f32 v{t}, v{t}", g0, g1)
                L += [Op(f"v_mul_f32 v{t}, v{G + r}, v{G + r}", g0, g1), Op(f"v_fma_f32 v{t}, v{t}, v233, v232", g0, g1),
                      Op(f"v_mul_f32 v{t}, v{t}, v{G + r}", g0, g1), o4, Op(f"v_mul_f32 v{G + r}, v{G + r}, v{U + r}", g0, g1),
                      Op(f"v_add_f32 v{t}, 1.0, v{t}", g0, g1), o7, Op(f"v_mul_f32 v{G + r}, v{G + r}, v{t}", g0, g1, [o7])]
            cv = [Op(f"v_cvt_pk_bf16_f32 v{G + k}, v{G + 2 * k}, v{G + 2 * k + 1}", g0, g1 - 2) for k in range(4)]
            L += cv
            sto.append(Op(f"buffer_store_dwordx4 {vr(G)}, v{240 if rb % 2 == 0 else 246}, s[20:23], s{psg + rb // 2} offen{STF}", gst + 30 * rb, g1, [cv[-1]], tag="hst"))
        return st, sto
    def q_epi(base, u, g0, g1, gmove):
        cvs = []; mv = []
        for c in range(2):
            for qb in range(4):
                R = base + (c * 4 + qb) * 8
                for k in range(4):
                    o = Op(f"v_cvt_pk_bf16_f32 v{R + k}, v{R + 2 * k}, v{R + 2 * k + 1}", g0, g1)
                    cvs.append(o)
                    mv.append(Op(f"v_accvgpr_write_b32 a{Qreg(qb, 2 * u + c) + k}, v{R + k}", gmove, g1, [o]))
        return cvs, mv
    PH = [256 * k for k in range(9)]
    PE = 2048
    kvs = kv_epi("K", 0, 0, PH[1] + 6, PH[2] - 3, (PH[1] + 16, STP)) + kv_epi("K", 1, 64, PH[2] + 6, PH[4] - 3, (PH[2] + 16, STPK1)) + \
          kv_epi("V", 0, 128, PH[4] + 6, PH[5] - 3, (PH[4] + 12, STPV)) + kv_epi("V", 1, 0, PH[4] + 6, PH[6] - 3, (PH[4] + 12 + 8 * STPV, STPV))
    print("kv epi", schedule(S, [XL, kvs], PH[1], PH[6]), "last store", kvs[-1].g, "pub at", gB(KVPUB))
    assert kvs[-1].g < gB(KVPUB)
    st0, so0 = gu_epi(64, 100, PH[5] + 6, PH[7] - 3, PH[6])
    st1, so1 = gu_epi(128, 98, PH[6] + 6, PE - 2, PH[6] + 130)
    q0c, q0m = q_epi(0, 0, PH[7] + 6, PE - 2, PH[7] + 130)
    q1c, q1m = q_epi(64, 1, PE - 32 + 5, PE - 1, PE - 32 + 5)
    k0r = [Op(f"ds_read_b128 {ar(Fbuf(f))}, v240 offset:{f * 1024}", max(gB(29) + 1, PH[7] + 16 * f + 16), PE - 2, tag=("K0", f)) for f in range(12)]
    print("gu epi", schedule(S, [st0[0] + st1[0], st0[1] + st1[1], so0 + so1, q0c + q1c[:16], q0m + q1m[:16], k0r], PH[5], PE - 1))
    S.add_mem(gB(KVPUB) + 2, f"buffer_store_dword v249, v248, s[20:23], s3 offen{STF}", "pub")
    if DIAG and not DIAG2:
        S.add_first(512, stamp(6)); S.add_first(1024, stamp(7)); S.add_first(PE - 1, stamp(8))
    if DIAG2:
        for k, g in enumerate(DIAG2): S.add_first(g, stamp(2 + k))
    print(S.report("gemm")[:600])
    its = S.items()
    DROP = os.environ.get("DROP", "").split(",")
    def keep(i):
        if isinstance(i, Ins):
            tg = i.tag[0] if isinstance(i.tag, tuple) else i.tag
            if tg in DROP and tg: return False
        if isinstance(i, Wait):
            tags = i.tag if isinstance(i.tag, list) else [i.tag]
            tags = [t for t in tags if (t[0] if isinstance(t, tuple) else t) not in DROP]
            if not tags: return False
            i.tag = tags
        return True
    p.extend([i for i in its if keep(i)])
    gemm_items = list(p.items)
    n_gemm = len(resolve(gemm_items))
    sa, va = tail_setup()
    def gen_qk0(masked):
        mf = []; last = {}
        for kb in range(4):
            for t in range(4):
                for qb in range(4):
                    d = Sreg(0, qb, kb)
                    c = vr(d) if t else (0 if kb < 2 else vr(NEGM(qb)))
                    mf.append(f"{MF} {vr(d)}, {ar(Fbuf(kb * 4 + t))}, {ar(Qreg(qb, t))}, {c}")
                    last[(qb, kb)] = len(mf) - 1
        S = Sched16(mf)
        for f in range(1, 16): S.add_first(4 * f - 1, Wait("lgkm", ("K0", f)))
        for f in range(12, 16): S.add_mem(f - 12, f"ds_read_b128 {ar(Fbuf(f))}, v240 offset:{f * 1024}", ("K0", f))
        c1, m1 = q_epi(64, 1, 4, 9, 4)
        c1 = c1[16:]; m1 = m1[16:]
        su = ["v_and_b32 v241, 15, v254", "v_lshl_add_u32 v241, v255, 4, v241", "v_lshrrev_b32 v245, 4, v254", "v_lshlrev_b32 v245, 2, v245",
              "v_sub_u32 v241, v241, v245", "v_cvt_f32_i32 v241, v241", "v_add_f32 v241, 0.5, v241", f"v_mul_f32 v{VTMASK}, {f2u(BIG):#x}, v241"]
        SU = [Op(x, 0, 18) for x in su]
        su2 = [f"v_mov_b32 v{VCUR}, v240", f"v_add_u32 v{VPREV}, 0x10000, v240", "v_and_b32 v206, 31, v254", "v_lshlrev_b32 v206, 10, v206",
               "v_and_b32 v252, 0xfff, v252", "v_or_b32 v252, v252, v251"] + ([f"v_mov_b32 v{ONES + k}, 0x3f803f80" for k in range(4)] if not ONE1 else
                 [f"v_and_b32 v{ONES}, 15, v254", f"v_min_u32 v{ONES}, 1, v{ONES}", f"v_subrev_u32 v{ONES}, 1, v{ONES}", f"v_and_b32 v{ONES}, 0x3f803f80, v{ONES}"] +
                 [f"v_mov_b32 v{ONES + k}, v{ONES}" for k in range(1, 4)]) + va[:8] + va[-4:]
        SU += [Op(x, 0, 63) for x in su2]
        ss = [f"s_mov_b32 s{S_THR}, {f2u(LMAX if FAST else THR):#x}", "s_lshl_b32 s99, s30, 7", f"s_add_u32 s99, s99, {WS_FLAG + 0x20000:#x}", "s_lshl_b32 s98, s29, 10",
              "s_add_u32 s98, s98, s99", "s_mov_b32 s52, s49", f"s_add_u32 s53, s49, {3 * 32768 + 16384}", f"s_add_u32 s54, s49, {4 * 32768}",
              f"s_add_u32 s55, s49, {3 * 32768 + 16384}", "s_mov_b32 s4, s38", "s_mov_b32 s5, s39", "s_mov_b32 s6, 0x400000", "s_mov_b32 s7, 0x20000",
              "s_lshl_b32 s59, s2, 2", "s_add_u32 s59, s59, s28", "s_lshl_b32 s50, s59, 12", "s_mov_b32 s12, s96", "s_mov_b32 s13, s97",
              f"s_mov_b32 s14, {1792 * 1024}", "s_mov_b32 m0, s52"]
        SS = [Op(x, 0, 60) for x in ss]
        def mask_ops(kb, e0, dl):
            out = []
            if not masked: return out
            for qb in (2,):
                for r in range(4):
                    kk = 16 * kb + r
                    out.append(Op(f"v_subrev_f32 v{TMP[r % 2]}, {f2u(kk * BIG):#x}, v{VTMASK}", 19, dl))
                    out.append(Op(f"v_min_f32 v{Sreg(0, qb, kb) + r}, v{Sreg(0, qb, kb) + r}, v{TMP[r % 2]}", e0, dl))
            return out
        T0 = [128 + 2 * q for q in range(4)]
        dl = 29
        I = mask_ops(0, 20, dl)
        for q in range(4):
            b = Sreg(0, q, 0)
            I += [Op(f"v_max3_f32 v{T0[q]}, v{b}, v{b + 1}, v{b + 2}", 20, dl), Op(f"v_max_f32 v{T0[q]}, v{T0[q]}, v{b + 3}", 20, dl)]
        for sw in ("v_permlane32_swap_b32", "v_permlane16_swap_b32"):
            I += [Op(f"v_mov_b32 v{T0[q] + 1}, v{T0[q]}", 20, dl) for q in range(4)]
            I += [Op(f"{sw} v{T0[q]}, v{T0[q] + 1}", 20, dl) for q in range(4)]
            I += [Op(f"v_max_f32 v{T0[q]}, v{T0[q]}, v{T0[q] + 1}", 20, dl) for q in range(4)]
        if FAST: I += [Op(f"v_add_f32 v{T0[q]}, {f2u(SH):#x}, v{T0[q]}", 20, dl) for q in range(4)]
        for q in range(4): I += [Op(f"v_sub_f32 v{NEGM(q) + r}, 0, v{T0[q]}", 20, dl) for r in range(4)]
        post = []
        for kb in range(2):
            if kb: I += mask_ops(1, 36, 63)
            for q in range(4): I += [Op(f"v_sub_f32 v{Sreg(0, q, kb) + r}, v{Sreg(0, q, kb) + r}, v{T0[q]}", 36 if kb else 20, 63) for r in range(4)]
        first = True
        for kb in range(1, 4):
            ops = mask_ops(kb, 16 * kb + 20, 63) if kb > 1 else []
            for q in range(0 if FAST else 4):
                b = Sreg(0, q, kb)
                ops.append(Op(f"v_max_f32 v{MX[0]}, v{b}, v{b + 1}" if first else f"v_max3_f32 v{MX[0]}, v{MX[0]}, v{b}, v{b + 1}", 16 * kb + 20, 63)); first = False
                ops.append(Op(f"v_max3_f32 v{MX[0]}, v{MX[0]}, v{b + 2}, v{b + 3}", 16 * kb + 20, 63))
            if kb < 3: I += ops
            else: post = [o.t for o in ops]
        I += [Op(f"v_exp_f32 v{Sreg(0, 0, 0) + r}, v{Sreg(0, 0, 0) + r}", 36, 63) for r in range(NX)]
        print("qk0", schedule(S, [c1, m1, SU, SS, I], 0, 63), S.report("qk0")[:140])
        q = Prog()
        q.wait_lgkm(("K0", 0))
        q.extend(S.items())
        q.wait_vm(("kv", 1, 0))
        q("s_barrier")
        for ins in tail_reads(VCUR, 32768): q(ins)
        if not PFOG:
            for x in PFL[:PFM]: q(x.replace("s39", "s50"), "pf")
            q("s_mov_b32 s39, s50")
        for k in range(4): q(f"buffer_load_dwordx4 v240, s[16:19], s54 offen offset:{k * 1024}{KSC} lds", "kv")
        q("s_mov_b32 m0, s53")
        for x in post: q(x)
        if not FAST: q(f"v_cmp_lt_f32 vcc, s{S_THR}, v{MX[0]}")
        q(f"s_waitcnt lgkmcnt({NPRE - 1})")
        return [i.t for i in resolve(gemm_items + q.items)][n_gemm:]
    pro = [i.t for i in resolve(gemm_items)]

    stubs = []
    def check(site, par, dual):
        if FAST: return []
        stubs.append((site, par, dual))
        return [f"s_cbranch_vccnz L_stub_{site}", f"L_ret_{site}:"]
    def it_odd(name, tq, tp, masked, **kw):
        return gen_iter(name, tq, tp, 0, masked, 0, VCUR, 0, VPREV, 49152, VCUR, 32768, end_ops=check(name, 0, tq), **kw)
    def it_even(name, tq, tp, masked, extra_end=(), first_pv=False, **kw):
        if first_pv: kw["vmn"] = 8 if PFOG else 8 + PFM
        last = tq == "S1"
        return gen_iter(name, tq, tp, 1, masked, 1, VCUR, 32768, VCUR, 16384, VCUR if last else VPREV, 49152 if last else 0, first_pv=first_pv,
                        end_ops=check(name, 1, tq) + list(extra_end[2:]), swap=not last, mid_ops=extra_end[:2], **kw)
    seg = {}
    seg["G"] = pro
    for m in (False, True):
        nm = "m" if m else "u"
        seg["P" + nm] = gen_qk0(m) + check("qk0" + nm, 0, "D") + it_even("it0" + nm, "D1" if m else "D", "D", m, first_pv=True, salu=sa)
    seg["UDD"] = it_odd("uddA", "D", "D", False) + it_even("uddB", "D", "D", False, ["s_sub_u32 s47, s47, 1", "s_cmp_lg_u32 s47, 0", "s_cbranch_scc1 L_udd"])
    seg["UDDm"] = it_odd("uddmA", "D", "D", True) + it_even("uddmB", "D1", "D", True)
    fake = lambda tag, n: [Ins("buffer_load_dwordx4 v240, s[16:19], s55 offen lds", tag) for _ in range(n)]
    ee = gen_early_epi()
    seg["UDS"] = it_odd("udsA", "S", "D1", False) + it_even("udsB", "S", "S", False, xops=ee, vmn="need", raw=fake("need", 4) + fake("x", 12))
    seg["UDSm"] = it_odd("udsmA", "S", "D1", True) + it_even("udsmB", "S1", "S", True, xops=ee[:-1], vmn="need", raw=fake("need", 4) + fake("x", 12))
    seg["USS"] = it_odd("ussA", "S", "S", False) + it_even("ussB", "S", "S", False, ["s_sub_u32 s47, s47, 1", "s_cmp_lg_u32 s47, 0", "s_cbranch_scc1 L_uss"])
    gp = gpre()
    fake = lambda tag, n: [Ins("buffer_load_dwordx4 v240, s[16:19], s55 offen lds", tag) for _ in range(n)]
    seg["USSm"] = it_odd("ussmA", "S", "S", True, extra=gp[:12], vmn="need", raw=fake("need", 4) + fake("x", 12)) + \
                  it_even("ussmB", "S1", "S", True, extra=gp[12:], vmn="need", raw=fake("need", 4) + fake("x", 4 + 12))
    seg["E"], tail_slow = gen_tail()
    seg["EE"] = []
    HC = ["v_cmp_ne_u32 vcc, 1, v207", "s_nop 0"]
    gpl = []
    for pre, ins, tag in gp: gpl += list(pre) + [ins]
    pf2 = [] if PFOG else PFL[PFM:]
    hpub = [f"buffer_store_dword v249, v248, s[20:23], s98 offen{STF}"]

    out = list(seg["G"])
    out += ["s_cmp_eq_u32 s30, 0", "s_cbranch_scc1 L_pm"] + seg["Pu"]
    if DIAG and not DIAG2: out.append(stamp(9).t)
    out += (hpub + st4(2) if os.environ.get("HS") else st4(2) + hpub) + ["s_sub_u32 s47, s30, 1", "s_cmp_eq_u32 s47, 0", "s_cbranch_scc1 L_uddm"]
    out += [f".p2align {AL}", "L_udd:"] + seg["UDD"]
    out += ["L_uddm:"] + pf2 + st4(3) + seg["UDDm"]
    out += ["s_cmp_eq_u32 s30, 7", "s_cbranch_scc1 L_last7"]
    out += ["L_uds:"] + pf2 + st4(4) + seg["UDS"] + st4(5) + seg["EE"] + st4(6)
    out += ["s_lshl_b32 s47, s30, 1", "s_sub_u32 s47, 13, s47"]
    out += [f".p2align {AL}", "L_uss:"] + seg["USS"]
    out += st4(7) + ["s_waitcnt vmcnt(16)"] + HC + ["s_cbranch_vccnz L_hwait", "L_hok:"] + seg["USSm"]
    out += ["L_fin:"] + st4(8) + seg["E"]
    out += ["L_f_end:", "s_endpgm"]
    out += ["L_pm:"] + seg["Pm"] + ([stamp(9).t] if DIAG and not DIAG2 else []) + hpub + ["s_branch L_uds"]
    out += ["L_last7:", HPOLL] + seg["UDSm"] + ["s_waitcnt vmcnt(32)"] + HC + ["s_cbranch_vccnz L_h2wait", "L_h2ok:"] + gpl + ["s_branch L_fin"]
    out += spin("h", HPOLL, HC[0]) + spin("h2", HPOLL, HC[0])
    out += tail_slow
    if FAST: out += gen_safe()
    out += ["L_xnwait:", "s_mov_b32 s44, 0x40000", "L_xnspin:", "s_sub_u32 s44, s44, 1", "s_cbranch_scc1 L_xnok", "s_sleep 2",
            XPOLL, "s_waitcnt vmcnt(0)",
            XCMP, "s_cbranch_vccnz L_xnspin", "s_branch L_xnok"]
    out += ["L_kvwait:", "s_mov_b32 s44, 0x40000", "L_kvspin:", "s_sub_u32 s44, s44, 1", "s_cbranch_scc1 L_kvok", "s_sleep 2",
            "buffer_load_dword v244, v243, s[20:23], s59 offen sc1", "s_waitcnt vmcnt(0)",
            "v_cmp_ne_u32 vcc, 1, v244", "s_cbranch_vccnz L_kvspin", "s_branch L_kvok"]
    for site, par, tq in stubs:
        out += [f"L_stub_{site}:", f"s_call_b64 s[62:63], L_rare_{par}{tq}", f"s_branch L_ret_{site}"]
    for par, tq in sorted({(par, tq) for _, par, tq in stubs}):
        out += [f"L_rare_{par}{tq}:"] + gen_rare(par, QSET[tq])
    for path in (["G", "Pu", "UDD", "UDD", "UDDm", "UDS", "EE", "USS", "USS", "USSm", "E"], ["G", "Pm", "UDS"], ["UDDm", "UDSm", "EE", "E"]):
        tx = []
        for k in path: tx += seg[k]
        for e in lint(tx, "f")[:40]: print(e)
    return out

KVPUB = int(os.environ.get("KVPUB", "23"))
STPV = float(os.environ.get("STPV", "26"))
STP = float(os.environ.get("STP", "29"))
STPK1 = float(os.environ.get("STPK1", "50"))
VW0 = int(os.environ.get("VW0", "340"))
WP = int(os.environ.get("WP", "14"))
XNC = int(os.environ.get("XNC", "540"))
LCAP = int(os.environ.get("LCAP", "3"))
WSH = int(os.environ.get("WSH", "18"))
XP = float(os.environ.get("XP", "5"))
PFOG = int(os.environ.get("PFOG", "0"))
AL = int(os.environ.get("AL", "3"))
XBAR = int(os.environ.get("XBAR", "1"))
NTX = os.environ.get("NTX", " nt")
PFM = int(os.environ.get("PFM", "1"))
PFL = ["buffer_load_dword v253, v252, s[4:7], s39 offen", "buffer_load_dword v251, v252, s[12:15], s39 offen", "buffer_load_dword v250, v252, s[24:27], s39 offen"]
WQW = int(os.environ.get("WQW", "20"))
ONE1 = int(os.environ.get("ONE1", "0"))
CPF = int(os.environ.get("CPF", "1"))
if __name__ == "__main__":
    print(len(gen_f_kernel()))
```

```python
from asmlib import *
from sched16 import *
import math, os, re
MF = "v_mfma_f32_16x16x32_bf16"
KNAME = "recurrent_scan__compressed_kv_cla__glu_gated_geglu__prompt_kernel"
WSB = int(os.environ.get("WSB", "0"), 0)
WS_XN = WSB + 0x0
WS_KV = WSB + 0x200000
WS_ACT = WSB + 0x2200000
WS_PART = WSB + 0x4000000
WS_FLAG = WSB + 0x5000000
ACT_ROW = 184 * 1024
LOG2E = 1.4426950408889634
KSCALE = LOG2E / math.sqrt(128.0)
BIG = 2.0 ** 100
THR = float(os.environ.get("THR", "40"))
FAST = int(os.environ.get("FAST", "1"))
NX = int(os.environ.get("NX", "8")) if FAST else 0
SH = float(os.environ.get("SH", "64"))
LMAX = 2.0 ** float(os.environ.get("LMAXE", "60"))
STF = " sc1"
BYTEF = int(os.environ.get("BYTEF", "0"))
XPOLL = "buffer_load_dword v244, v243, s[4:7], 0 offen" + " sc1"
XSH = int(os.environ.get("XSH", "4"))
XCMP = "v_cmp_ne_u32 vcc, 0x01010101, v244" if BYTEF else "v_cmp_gt_u32 vcc, 16, v244"
XPL = int(os.environ.get("XPL", "418"))
VWP = int(os.environ.get("VWP", "14"))
GPW = int(os.environ.get("GPW", "7"))
ASC = os.environ.get("ASC", " sc1")
XSC = os.environ.get("XSC", " sc1")
KSC = os.environ.get("KSC", " sc1")
NT = os.environ.get("NT", " nt")
NTV = os.environ.get("NTV", "")
PFA = int(os.environ.get("PFA", "1"))
PFW = os.environ.get("PFW", "vgq")
NTD = os.environ.get("NTD", "")
NTA = " nt" if "a" in NTD else ""
ALEAD = int(os.environ.get("ALEAD", "2"))
EARLY = int(os.environ.get("EARLY", "0"))
OPF = int(os.environ.get("OPF", "0"))
WSB = int(os.environ.get("WSB", "0"), 0)
DIAG4 = bool(os.environ.get("DIAG4"))
st4 = lambda k: [stamp(k).t] if DIAG4 else []
LEADP = int(os.environ.get("LEADP", "14"))
GBS_ = int(os.environ.get("GBS_", "20"))
GBD_ = int(os.environ.get("GBD_", "22"))
DIAG3 = bool(os.environ.get("DIAG3"))
DIAG2 = [int(x) for x in os.environ.get("DIAG2", "").split(",") if x]
def vr(b, n=4): return f"v[{b}:{b + n - 1}]"
def ar(b, n=4): return f"a[{b}:{b + n - 1}]"
def srd(p, d, lo, size):
    p(f"s_mov_b32 s{d}, s{lo}")
    p(f"s_mov_b32 s{d + 1}, s{lo + 1}")
    p(f"s_mov_b32 s{d + 2}, {size:#x}")
    p(f"s_mov_b32 s{d + 3}, 0x20000")

def wave_reduce(p, regs_):
    steps = ["quad_perm:[1,0,3,2] row_mask:0xf bank_mask:0xf", "quad_perm:[2,3,0,1] row_mask:0xf bank_mask:0xf",
             "row_half_mirror row_mask:0xf bank_mask:0xf", "row_mirror row_mask:0xf bank_mask:0xf",
             "row_bcast:15 row_mask:0xa bank_mask:0xf", "row_bcast:31 row_mask:0xc bank_mask:0xf"]
    for st in steps:
        p("s_nop 1")
        for r in regs_: p(f"v_add_f32_dpp v{r}, v{r}, v{r} {st}")
    p("s_nop 1")
def round_bf16(p, dst, src):
    p(f"v_cvt_pk_bf16_f32 v{dst}, v{src}, v{src}")
    p(f"v_and_b32 v{dst}, 0xffff0000, v{dst}")

def emit_ln(p):
    for r in range(2):
        for k in range(4):
            p(f"v_lshlrev_b32 v{8 + 8 * r + 2 * k}, 16, v{4 * r + k}")
            p(f"v_and_b32 v{9 + 8 * r + 2 * k}, 0xffff0000, v{4 * r + k}")
    for r in range(2):
        b = 8 + 8 * r
        p(f"v_add_f32 v{24 + r}, v{b}, v{b + 1}")
        for k in range(2, 8): p(f"v_add_f32 v{24 + r}, v{24 + r}, v{b + k}")
    wave_reduce(p, [24, 25])
    p("v_readlane_b32 s58, v24, 63")
    p("v_readlane_b32 s59, v25, 63")
    p(f"v_mov_b32 v30, {f2u(1.0 / 512):#x}")
    p("s_nop 1")
    for r in range(2): p(f"v_mul_f32 v{26 + r}, s{58 + r}, v30")
    for r in range(2):
        b = 8 + 8 * r
        for k in range(8): p(f"v_sub_f32 v{32 + k}, v{b + k}, v{26 + r}")
        p(f"v_mul_f32 v{24 + r}, v32, v32")
        for k in range(1, 8): p(f"v_fmac_f32 v{24 + r}, v{32 + k}, v{32 + k}")
    wave_reduce(p, [24, 25])
    p("v_readlane_b32 s58, v24, 63")
    p("v_readlane_b32 s59, v25, 63")
    p("s_nop 1")
    for r in range(2):
        p(f"v_mul_f32 v{28 + r}, s{58 + r}, v30")
        round_bf16(p, 28 + r, 28 + r)
        p(f"v_add_f32 v{28 + r}, {f2u(1e-5):#x}, v{28 + r}")
        round_bf16(p, 28 + r, 28 + r)
        p(f"v_sqrt_f32 v{28 + r}, v{28 + r}")
        p("s_nop 0")
        round_bf16(p, 28 + r, 28 + r)
        p(f"v_rcp_f32 v{28 + r}, v{28 + r}")
        round_bf16(p, 26 + r, 26 + r)
    for r in range(2):
        b = 8 + 8 * r
        for k in range(8): p(f"v_sub_f32 v{b + k}, v{b + k}, v{26 + r}")
        for k in range(4): p(f"v_cvt_pk_bf16_f32 v{32 + k}, v{b + 2 * k}, v{b + 2 * k + 1}")
        for k in range(4):
            p(f"v_lshlrev_b32 v{b + 2 * k}, 16, v{32 + k}")
            p(f"v_and_b32 v{b + 2 * k + 1}, 0xffff0000, v{32 + k}")
        for k in range(8): p(f"v_mul_f32 v{b + k}, v{b + k}, v{28 + r}")
        for k in range(4): p(f"v_cvt_pk_bf16_f32 v{40 + 4 * r + k}, v{b + 2 * k}, v{b + 2 * k + 1}")

def ln_ops(g0, g1):
    p = Prog(); emit_ln(p)
    ops = []; lag = False
    for it in p.items:
        t = it.t
        if t.startswith("s_nop"): lag = True; continue
        t = re.sub(r"\bv(\d+)\b", lambda m: "v%d" % (int(m.group(1)) + 176 if int(m.group(1)) < 8 else int(m.group(1)) + 128), t)
        ops.append(Op(t, g0, g1, [ops[-1]] if lag else [], lag=2)); lag = False
    return ops

def Sreg(par, qb, kb): return par * 64 + qb * 16 + kb * 4
def Preg(qb, s): return 128 + qb * 8 + s * 4
def NEGM(qb): return 160 + 4 * qb
def LACC(qb): return 176 + 4 * qb
ONES = 192
MX = [196, 197]; VTM = 198; VTMASK = 199; VCUR, VPREV = 200, 201; TMP = [202, 203, 204, 205]
def Qreg(qb, t): return (t // 2) * 64 + qb * 8 + (t % 2) * 4
def Oreg(qb, db): return [32, 96, 128, 160][qb] + db * 4
def Fbuf(f): return 192 + (f % 16) * 4
S_THR = 61
NPRE = int(os.environ.get("NPRE", "8"))

def tail_reads(base_reg, off):
    return [f"ds_read_b128 {ar(Fbuf(f))}, v{base_reg} offset:{off + f * 1024}" for f in range(NPRE)]

QSET = {'D': [0, 1, 2, 3], 'S': [0, 1], 'D1': [0, 1, 3], 'S1': [1]}
def gen_iter(name, tq, tp, parq, masked, odd_q, kreg, koff, vreg, voff, nreg, noff, first_pv=False, end_ops=(), swap=False, mid_ops=(), vmn=16, extra=None, raw=False, salu=(), xops=()):
    qq = QSET[tq]
    qp = QSET[tp]
    parp = 1 - parq
    mf = []; use = {}; lastq = {}; lastuse = {}
    for kb in range(4):
        for t in range(4):
            f = kb * 4 + t
            use[f] = len(mf)
            for qb in qq:
                d = Sreg(parq, qb, kb)
                mf.append(f"{MF} {vr(d)}, {ar(Fbuf(f))}, {ar(Qreg(qb, t))}, {vr(NEGM(qb)) if t == 0 else vr(d)}")
                lastq[(qb, kb)] = len(mf) - 1
            lastuse[f] = len(mf) - 1
    firstp = {}
    for s in range(2):
        for db in range(8):
            f = 16 + s * 8 + db
            use[f] = len(mf)
            for qb in qp:
                o = Oreg(qb, db)
                firstp.setdefault((qb, s), len(mf))
                mf.append(f"{MF} {ar(o)}, {ar(Fbuf(f))}, {vr(Preg(qb, s))}, {0 if (first_pv and s == 0) else ar(o)}")
            lastuse[f] = len(mf) - 1
        for qb in qp:
            mf.append(f"{MF} {vr(LACC(qb))}, {vr(ONES)}, {vr(Preg(qb, s))}, {0 if (first_pv and s == 0) else vr(LACC(qb))}")
    n = len(mf)
    S = Sched16(mf)
    gB = n - (GBS_ if len(qp) == 2 else GBD_)
    LEAD = LEADP
    for f in range(32):
        tag = ("F", "n", f) if f < NPRE else ("F", "c", f)
        if use[f] > 0: S.add_first(use[f] - 1, Wait("lgkm", tag))
    if isinstance(vmn, int): S.add_first(gB, Ins(f"s_waitcnt vmcnt({vmn}) lgkmcnt(0)"))
    else:
        S.add_first(gB, Ins("s_waitcnt lgkmcnt(0)")); S.add_first(gB + 1, Wait("vm", vmn))
    S.add_first(gB + 1, "s_barrier")
    S.add_first(n - 1, Wait("lgkm", ("F", "x", 0)))
    R = []
    todo = list(range(NPRE, 32))
    for k, f in enumerate(todo):
        e = lastuse[f - 16] if f >= 16 else 0
        dl = min(use[f] - LEAD + 4, gB - 5 - (31 - f))
        e = max(e, min(use[f] - LEAD - 8, dl - 4), 0)
        dl = max(dl, e)
        assert dl < use[f] - 1, (name, f, dl, e)
        if f < 16: ins = f"ds_read_b128 {ar(Fbuf(f))}, v{kreg} offset:{koff + f * 1024}"
        else: ins = f"ds_read_b128 {ar(Fbuf(f))}, v{vreg} offset:{voff + (f - 16) * 1024}"
        R.append(Op(ins, max(e, 0), max(dl, 0), tag=("F", "c", f)))
    for f, ins in enumerate(tail_reads(nreg, noff)):
        R.append(Op(ins, max(gB + 1, lastuse[f + 16]), min(n - 2, gB + 3 + 2 * f), tag=("F", "x", f)))
    D = []
    span = gB - 8
    for q in range(4):
        D.append(Op(f"buffer_load_dwordx4 v240, s[16:19], s55 offen offset:{q * 1024}{KSC} lds", 2 + q * span // 4, 2 + (q + 1) * span // 4 - 1, tag="kv"))
    for x in ["s_add_u32 s54, s54, 0x8000", "s_add_u32 s52, s52, 0x8000", "s_and_b32 s52, s52, 0x1ffff", "s_mov_b32 m0, s52"]:
        D.append(Op(x, 0, gB))
    tl = n - 3 - (gB + 1)
    for q in range(4):
        D.append(Op(f"buffer_load_dwordx4 v240, s[16:19], s54 offen offset:{q * 1024}{KSC} lds", gB + 1 + q * tl // 4, gB + 1 + (q + 1) * tl // 4, tag="kv"))
    D.append(Op("s_mov_b32 m0, s53", 0, n - 1))
    if extra is not None:
        D = []
        nv = len(extra)
        for i, (pre, ins, tag) in enumerate(extra):
            for x in pre: D.append(Op(x, 0, n - 3))
            D.append(Op(ins, 1 + i * (n - 6) // nv, 1 + (i + 1) * (n - 6) // nv + 2, tag=tag, deps=[D[-1]] if pre else []))
    E = []; C = []
    for s in range(2):
        for qb in qp:
            b = Sreg(parp, qb, 2 * s)
            dl = firstp[(qb, s)] - 2
            es = [Op(f"v_exp_f32 v{b + r}, v{b + r}", 0, dl - 1) for r in range(8)]
            done = NX if (s == 0 and qb == qp[0]) else 0
            E += es[done:]
            C += [Op(f"v_cvt_pk_bf16_f32 v{Preg(qb, s) + k}, v{b + 2 * k}, v{b + 2 * k + 1}", 0, dl, [e for i, e in enumerate(es) if i // 2 == k and i >= done]) for k in range(4)]
    M = []
    mins = {}
    vals = []
    mq = [qq[-1] if odd_q else qq[-2]]
    first = True
    for kb in range(4):
        for qb in qq:
            b = Sreg(parq, qb, kb)
            e0 = lastq[(qb, kb)] + (5 if len(qq) > 1 else 8)
            if masked and qb in mq:
                for r in range(4):
                    kk = 16 * kb + r
                    tm = TMP[r % 2]
                    M.append(Op(f"v_subrev_f32 v{tm}, {f2u(kk * BIG):#x}, v{VTMASK}", 0, n - 3))
                    M.append(Op(f"v_min_f32 v{b + r}, v{b + r}, v{tm}", e0, n - 3))
                    mins[b + r] = M[-1]
            if FAST: continue
            if first:
                M.append(Op(f"v_max_f32 v{MX[0]}, v{b}, v{b + 1}", e0, n - 3)); first = False
            else:
                M.append(Op(f"v_max3_f32 v{MX[0]}, v{MX[0]}, v{b}, v{b + 1}", e0, n - 3))
            M.append(Op(f"v_max3_f32 v{MX[0]}, v{MX[0]}, v{b + 2}, v{b + 3}", e0, n - 3))
    if not FAST: M.append(Op(f"v_cmp_lt_f32 vcc, s{S_THR}, v{MX[0]}", 0, n - 2))
    for r in range(NX):
        b = Sreg(parq, qq[0], 0) + r
        E.append(Op(f"v_exp_f32 v{b}, v{b}", lastq[(qq[0], r // 4)] + 8, n - 1, [mins[b]] if b in mins else []))
    X = []
    if swap:
        X = [Op(f"v_xor_b32 v{VCUR}, 0x10000, v{VCUR}", gB, n - 1), Op(f"v_xor_b32 v{VPREV}, 0x10000, v{VPREV}", gB, n - 1, [R[-1]])]
    XO = []
    for i, x in enumerate(xops):
        prev_trans = XO and XO[-1].t.startswith(TRANS)
        XO.append(Op(x, 5 + (i * (n - 12)) // len(xops), min(n - 2, 5 + (i * (n - 12)) // len(xops) + 4), tag="xo"))
    k = schedule(S, [R, D, E, C, M, X, XO], 0, n - 1, name=name)
    if extra is None:
        g = D[7].g + 1
        for x in ["s_add_u32 s55, s55, 0x8000", "s_add_u32 s53, s53, 0x8000", "s_and_b32 s53, s53, 0x1ffff"] + list(mid_ops):
            while S.first[g]: g += 1
            S.add_first(g, x); g += 1
        assert g <= D[-1].g, (name, g, D[-1].g)
    g = 0
    for x in salu:
        while S.first[g]: g += 1
        for y in (x if isinstance(x, list) else [x]): S.add_first(g, y)
        g += 1
    for x in end_ops: S.add_last(n - 1, x)
    print(S.report(f"{name}(k={k})"))
    pre = [Ins(f"ds_read_b128 {ar(Fbuf(f))}, v0", ("F", "n", f)) for f in range(NPRE)] + [Wait("lgkm", ("F", "n", 0))]
    if raw: pre = list(raw) + pre
    return [i.t for i in resolve(S.items(), pre)]

def allreduce4(p, op, src, t0, t1):
    p(f"v_mov_b32 v{t0}, v{src}")
    p(f"v_mov_b32 v{t1}, v{src}")
    p("s_nop 1")
    p(f"v_permlane32_swap_b32 v{t0}, v{t1}")
    p("s_nop 1")
    p(f"{op} v{t0}, v{t0}, v{t1}")
    p(f"v_mov_b32 v{t1}, v{t0}")
    p("s_nop 1")
    p(f"v_permlane16_swap_b32 v{t0}, v{t1}")
    p("s_nop 1")
    p(f"{op} v{t0}, v{t0}, v{t1}")

def rowmax(p, par, qb):
    b = Sreg(par, qb, 0)
    p(f"v_max3_f32 v{MX[1]}, v{b}, v{b + 1}, v{b + 2}")
    for k in range(3, 15, 2): p(f"v_max3_f32 v{MX[1]}, v{MX[1]}, v{b + k}, v{b + k + 1}")
    p(f"v_max_f32 v{MX[1]}, v{MX[1]}, v{b + 15}")
    allreduce4(p, "v_max_f32", MX[1], TMP[0], TMP[1])

def gen_rare(par, qbs):
    p = Prog()
    p("s_nop 15")
    for qb in qbs:
        rowmax(p, par, qb)
        p(f"v_max_f32 v{TMP[0]}, 0, v{TMP[0]}")
        p(f"v_sub_f32 v{TMP[1]}, 0, v{TMP[0]}")
        p(f"v_exp_f32 v{TMP[1]}, v{TMP[1]}")
        for r in range(4): p(f"v_sub_f32 v{NEGM(qb) + r}, v{NEGM(qb) + r}, v{TMP[0]}")
        for r in range(16): p(f"v_sub_f32 v{Sreg(par, qb, 0) + r}, v{Sreg(par, qb, 0) + r}, v{TMP[0]}")
        for r in range(4): p(f"v_mul_f32 v{LACC(qb) + r}, v{LACC(qb) + r}, v{TMP[1]}")
        for r in range(0, 32, 2):
            a = Oreg(qb, 0) + r
            p(f"v_accvgpr_read_b32 v{TMP[2]}, a{a}")
            p(f"v_accvgpr_read_b32 v{TMP[3]}, a{a + 1}")
            p(f"v_mul_f32 v{TMP[2]}, v{TMP[2]}, v{TMP[1]}")
            p(f"v_mul_f32 v{TMP[3]}, v{TMP[3]}, v{TMP[1]}")
            p(f"v_accvgpr_write_b32 a{a}, v{TMP[2]}")
            p(f"v_accvgpr_write_b32 a{a + 1}, v{TMP[3]}")
    p("s_nop 1")
    p("s_setpc_b64 s[62:63]")
    return [i.t for i in p.items]


GPUB = int(os.environ.get("GPUB", "16"))
OB = int(os.environ.get("OB", "2"))
GB2 = int(os.environ.get("GB2", "1"))
GPOLL = int(os.environ.get("GPOLL", "20"))
CPUB = int(os.environ.get("CPUB", "2"))
CTXPF = int(os.environ.get("CTXPF", "0"))
PUB0 = int(os.environ.get("PUB0", "8"))
PUBP = int(os.environ.get("PUBP", "12"))
TP = float(os.environ.get("TP", "4.25"))
TP0 = float(os.environ.get("TP0", "4"))
LST = int(os.environ.get("LST", "8"))
LSP = int(os.environ.get("LSP", "10"))
CPOLL = int(os.environ.get("CPOLL", "100"))
CCHK = int(os.environ.get("CCHK", "136"))
def spin(name, load, cmp):
    return [f"L_{name}wait:", "s_mov_b32 s44, 0x40000", f"L_{name}spin:", "s_sub_u32 s44, s44, 1", f"s_cbranch_scc1 L_{name}ok", "s_sleep 1",
            load, "s_waitcnt vmcnt(0)", cmp, f"s_cbranch_vccnz L_{name}spin", f"s_branch L_{name}ok"]

def o_epi(qb, scr, pk):
    out = []
    for t in range(4):
        R = scr(t); P = pk(t)
        a = Oreg(qb, 2 * t)
        L = LACC(qb)
        rd = [f"v_accvgpr_read_b32 v{R + k}, a{a + k}" for k in range(8)]
        if t: ops = rd
        elif not ONE1: ops = [f"v_rcp_f32 v{TMP[qb]}, v{L}"] + rd
        else:
            ops = [f"v_mov_b32 v{L + 1}, v{L}"] + rd[:2] + [f"v_permlane32_swap_b32 v{L}, v{L + 1}"] + rd[2:3] + [f"v_mov_b32 v{L + 1}, v{L}"] + rd[3:5] + \
                  [f"v_permlane16_swap_b32 v{L}, v{L + 1}"] + rd[5:7] + [f"v_rcp_f32 v{TMP[qb]}, v{L}"] + rd[7:]
        ops += [f"v_mul_f32 v{R + k}, v{R + k}, v{TMP[qb]}" for k in range(8)]
        ops += [f"v_cvt_pk_bf16_f32 v{P + k}, v{R + 2 * k}, v{R + 2 * k + 1}" for k in range(4)]
        out.append((ops, f"buffer_store_dwordx4 {vr(P)}, v{240 if qb % 2 == 0 else 246}, s[20:23], s{100 + qb // 2} offen offset:{t * 1024}{STF}"))
    return out

NK = 46; NC = 23
SL = [8, 9, 0, 1, 2, 3, 4, 5]
def wofs(n): return SL[(n // 2) % 8] * 16384 + (n % 2) * 8192
def areg(n): return 128 + (n % 16) * 8
def areg2(n, tb): return vr(96 + (n - 8) * 8 + 4 * tb) if 8 <= n < 12 else ar(areg(n) + 4 * tb)
def w_ops(n):
    gp = n < 14
    j = n if gp else n - 14
    pre = [f"s_add_u32 m0, s{[51, 56, 50][wofs(n) >> 16]}, {wofs(n) & 0xffff if wofs(n) < 0x20000 else wofs(n)}", f"s_add_u32 s58, s{48 if gp else 49}, {j * 32768}"]
    wsrd = "s[12:15]" if gp else "s[8:11]"
    return [(pre, f"buffer_load_dwordx4 v242, {wsrd}, s58 offen lds", ("cw", n // 2)),
            ([], f"buffer_load_dwordx4 v243, {wsrd}, s58 offen offset:1024 lds", ("cw", n // 2))]
def a_ops(n):
    gp = n < 14
    j = n if gp else n - 14
    pre = [f"s_add_u32 s59, s{64 if gp else 65}, {j * 1024}"] if j % 2 == 0 else []
    return [(pre, f"buffer_load_dwordx4 {areg2(n, 0)}, v240, s[20:23], s59 offen offset:{(j % 2) * 1024}{ASC}", ("ca", n // 2)),
            ([], f"buffer_load_dwordx4 {areg2(n, 1)}, v246, s[20:23], s59 offen offset:{(j % 2) * 1024}{ASC}", ("ca", n // 2))]
def chunk(ch, w=True, a=True):
    return (w_ops(2 * ch) + w_ops(2 * ch + 1) if w else []) + (a_ops(2 * ch) + a_ops(2 * ch + 1) if a else [])
KEEP = 6 * 16384
GB = [36, 37, 41]

def tail_setup():
    sa = ["s_lshr_b32 s35, s34, 1", "s_sub_u32 s31, 15, s30", ["s_bitcmp1_b32 s34, 0", "s_cselect_b32 s31, s31, s30"], "s_and_b32 s45, s29, 3",
          "s_lshl_b32 s46, s31, 3", "s_add_u32 s46, s46, s28", f"s_mul_i32 s46, s46, {ACT_ROW}",
          f"s_add_u32 s46, s46, {WS_ACT:#x}", f"s_mul_i32 s47, s35, {14 * 1024}", "s_add_u32 s64, s46, s47", f"s_add_u32 s64, s64, {128 * 1024}",
          "s_lshl_b32 s47, s35, 15", "s_add_u32 s65, s46, s47",
          "s_lshl_b32 s46, s45, 8", "s_lshl_b32 s47, s28, 13", "s_add_u32 s46, s46, s47", f"s_mul_i32 s47, s35, {14 * 32 * 1024}",
          "s_add_u32 s48, s46, s47", "s_lshl_b32 s47, s35, 20", "s_add_u32 s49, s46, s47", "s_lshl_b32 s50, s28, 11",
          "s_mov_b32 s8, s4", "s_mov_b32 s9, s5", "s_mov_b32 s38, 0", "s_mov_b32 s12, s96", "s_mov_b32 s13, s97", f"s_mov_b32 s14, {1792 * 1024}",
          "s_and_b32 s46, s34, 1", "s_lshl_b32 s46, s46, 2", "s_add_u32 s3, s99, s46", "s_lshl_b32 s46, s35, 13", "s_add_u32 s3, s3, s46",
          "s_lshl_b32 s51, s31, 2", "s_add_u32 s51, s51, s45", "s_lshl_b32 s56, s51, 18", f"s_add_u32 s56, s56, {WS_PART:#x}",
          "s_lshl_b32 s46, s28, 16", "s_lshl_b32 s47, s35, 13", "s_add_u32 s40, s56, s46", "s_add_u32 s40, s40, s47",
          "s_lshl_b32 s46, s35, 16", "s_add_u32 s56, s56, s46", "s_add_u32 s56, s56, s50", f"s_mov_b32 s58, {KEEP + 16384 - 0x10000}",
          ["s_cmp_eq_u32 s28, s35", "s_cselect_b32 s40, 0x7ff00000, s40", f"s_cselect_b32 s58, {KEEP - 0x10000}, s58"]]
    for k in range(3): sa += [f"s_add_u32 s46, s35, {k + 1}", "s_and_b32 s46, s46, 3", "s_lshl_b32 s46, s46, 13", f"s_add_u32 s{GB[k]}, s56, s46"]
    sa += ["s_lshl_b32 s94, s51, 9", f"s_add_u32 s94, s94, {WS_FLAG:#x}", "s_lshl_b32 s46, s35, 7", "s_add_u32 s95, s94, s46",
           "s_lshl_b32 s46, s31, 17", "s_lshl_b32 s47, s35, 14", "s_add_u32 s46, s46, s47", "s_lshl_b32 s47, s45, 8", "s_add_u32 s46, s46, s47",
           "s_lshl_b32 s47, s28, 6", "s_add_u32 s57, s46, s47", "s_lshl_b32 s46, s29, 12", "s_add_u32 s100, s46, s32", "s_add_u32 s101, s46, s33",
           "s_and_b32 s32, s30, 1", "s_lshl_b32 s32, s32, 16", "s_xor_b32 s33, s32, 0x10000", "s_add_u32 s51, s50, s32", "s_add_u32 s56, s50, s33",
           "s_add_u32 s58, s58, s33"]
    va = ["v_lshrrev_b32 v244, 4, v254", "v_and_b32 v245, 15, v254", "v_lshlrev_b32 v243, 1, v244", "v_xor_b32 v245, v245, v243",
          "v_lshlrev_b32 v244, 10, v244", "v_lshl_add_u32 v242, v245, 4, v244", "v_xor_b32 v243, 0x80, v242", f"v_add_u32 v243, {4096 - 1024}, v243",
          "v_lshrrev_b32 v244, 2, v254", "v_and_b32 v245, 7, v244", "v_lshlrev_b32 v244, 8, v244", "v_and_b32 v241, 3, v254", "v_lshl_add_u32 v244, v241, 3, v244",
          "v_add_u32 v244, s32, v244", "s_sub_u32 s46, 0x20000, s32"]
    for c in range(8):
        va += [f"v_xor_b32 v241, {c}, v245", f"v_lshl_add_u32 v{208 + c}, v241, 5, v244", f"v_xor_b32 v{216 + c}, 0x10000, v{208 + c}", f"v_add_u32 v{224 + c}, s46, v{208 + c}"]
    va += ["v_lshl_add_u32 v237, v255, 11, v240", f"v_add_u32 v237, {KEEP - 0x10000}, v237", "v_add_u32 v237, s33, v237",
           "v_and_b32 v247, 3, v254", "v_lshlrev_b32 v247, 7, v247", "v_and_b32 v244, 15, v254", "v_lshlrev_b32 v244, 10, v244",
           "v_lshrrev_b32 v245, 4, v254", "v_lshl_add_u32 v238, v245, 3, v244", "v_add_u32 v239, 0x10000, v238"]
    va += [f"v_mov_b32 v{232 + k}, -1" for k in range(4)]
    return sa, va
HPOLL = "buffer_load_dword v207, v206, s[20:23], s99 offen sc1"
def gp1(): return chunk(0) + chunk(1) + sum([chunk(c, w=False) for c in range(2, 6)], [])
def gp2(): return sum([chunk(c, a=False) for c in range(2, 7)], [])
PRE_SPLIT = (12, 24, 28)
def gpre(): return gp1()[:PRE_SPLIT[2]] + gp2()[:12] + gp1()[PRE_SPLIT[2]:] + gp2()[12:]

def opf():
    if not OPF: return []
    return ["s_lshr_b32 s46, s2, 3", "s_lshl_b32 s46, s46, 2", "s_add_u32 s46, s46, s28", "v_lshlrev_b32 v241, 7, v254",
            "s_lshl_b32 s59, s35, 20", "s_lshl_b32 s46, s46, 13", "s_add_u32 s59, s59, s46",
            "buffer_load_dword v251, v241, s[8:11], s59 offen"]

def lchk(qa, qb_, first):
    if not FAST: return []
    return [f"v_cmp_ngt_f32 vcc, s{S_THR}, v{LACC(qa)}", "v_nop", "s_mov_b64 s[62:63], vcc" if first else "s_or_b64 s[62:63], s[62:63], vcc",
            f"v_cmp_ngt_f32 vcc, s{S_THR}, v{LACC(qb_)}", "v_nop", "s_or_b64 s[62:63], s[62:63], vcc"]

def gen_early_epi(safe=False):
    out = lchk(2, 3, True)
    k8 = 0
    for qb in (2, 3):
        base = 32 if qb == 2 else 96
        for ops, st in o_epi(qb, lambda t: base + 8 * t, lambda t: base + 8 * t):
            out += ops[:10]
            if k8 % 4 == 0: out.append(f"s_add_u32 s60, s40, {32768 + (k8 // 4) * 4096}")
            out.append(f"buffer_store_dwordx4 v[232:235], v240, s[20:23], s60 offen offset:{(k8 % 4) * 1024} sc1")
            out += ops[10:] + [st]
            k8 += 1
    return [HPOLL] + out


def gen_safe():
    p = Prog()
    M_ = [NEGM(q) for q in range(4)]; TQ = [NEGM(q) + 1 for q in range(4)]
    p("s_waitcnt vmcnt(0) lgkmcnt(0)")
    p("s_nop 15")
    p("s_barrier")
    for q in range(4):
        for r in range(32): p(f"v_accvgpr_write_b32 a{Oreg(q, 0) + r}, 0")
        for r in range(4): p(f"v_mov_b32 v{LACC(q) + r}, 0")
        p(f"v_mov_b32 v{M_[q]}, {f2u(-2.0 ** 120):#x}")
    p("s_sub_u32 s46, 15, s30")
    p("s_lshl_b32 s47, s46, 7")
    p("s_lshl_b32 s52, s30, 7")
    for q in range(4):
        p(f"v_cvt_f32_u32 v{TMP[0]}, s{47 if q < 2 else 52}")
        if q & 1: p(f"v_add_f32 v{TMP[0]}, {f2u(64.0):#x}, v{TMP[0]}")
        p(f"v_mul_f32 v{TMP[0]}, {f2u(BIG):#x}, v{TMP[0]}")
        p(f"v_add_f32 v{TQ[q]}, v{VTMASK}, v{TMP[0]}")
    p(f"v_add_u32 v{VCUR}, s33, v240")
    p("s_lshl_b32 s47, s46, 1")
    p("s_add_u32 s47, s47, 2")
    p("s_lshl_b32 s54, s28, 12")
    p("s_add_u32 s52, s54, s33")
    p("s_add_u32 s53, s52, 49152")
    p("s_add_u32 s52, s52, 32768")
    p.label("L_safe_loop")
    p("s_mov_b32 m0, s52")
    p("s_add_u32 s55, s54, 16384")
    for k in range(4): p(f"buffer_load_dwordx4 v240, s[16:19], s54 offen offset:{k * 1024} sc1 lds")
    p("s_mov_b32 m0, s53")
    p("s_nop 0")
    for k in range(4): p(f"buffer_load_dwordx4 v240, s[16:19], s55 offen offset:{k * 1024} sc1 lds")
    p("s_waitcnt vmcnt(0)")
    p("s_barrier")
    for f in range(16): p(f"ds_read_b128 {ar(Fbuf(f))}, v{VCUR} offset:{32768 + f * 1024}")
    p("s_waitcnt lgkmcnt(0)")
    for kb in range(4):
        for t in range(4):
            for q in range(4):
                d = Sreg(0, q, kb)
                p(f"{MF} {vr(d)}, {ar(Fbuf(kb * 4 + t))}, {ar(Qreg(q, t))}, {vr(d) if t else 0}")
    for f in range(16): p(f"ds_read_b128 {ar(Fbuf(f))}, v{VCUR} offset:{49152 + f * 1024}")
    for q in range(4):
        b = Sreg(0, q, 0)
        for r in range(16):
            p(f"v_subrev_f32 v{TMP[r % 2]}, {f2u((16 * (r // 4) + r % 4) * BIG):#x}, v{TQ[q]}")
            p(f"v_min_f32 v{b + r}, v{b + r}, v{TMP[r % 2]}")
        p(f"v_subrev_f32 v{TQ[q]}, {f2u(64 * BIG):#x}, v{TQ[q]}")
        rowmax(p, 0, q)
        p(f"v_max_f32 v{TMP[0]}, v{TMP[0]}, v{M_[q]}")
        p(f"v_sub_f32 v{TMP[1]}, v{M_[q]}, v{TMP[0]}")
        p(f"v_exp_f32 v{TMP[1]}, v{TMP[1]}")
        p(f"v_mov_b32 v{M_[q]}, v{TMP[0]}")
        for r in range(16): p(f"v_sub_f32 v{b + r}, v{b + r}, v{TMP[0]}")
        for r in range(16): p(f"v_exp_f32 v{b + r}, v{b + r}")
        for r in range(4): p(f"v_mul_f32 v{LACC(q) + r}, v{LACC(q) + r}, v{TMP[1]}")
        for k in range(8): p(f"v_cvt_pk_bf16_f32 v{Preg(q, 0) + k}, v{b + 2 * k}, v{b + 2 * k + 1}")
        for r in range(0, 32, 2):
            a = Oreg(q, 0) + r
            p(f"v_accvgpr_read_b32 v{TMP[2]}, a{a}")
            p(f"v_accvgpr_read_b32 v{TMP[3]}, a{a + 1}")
            p(f"v_mul_f32 v{TMP[2]}, v{TMP[2]}, v{TMP[1]}")
            p(f"v_mul_f32 v{TMP[3]}, v{TMP[3]}, v{TMP[1]}")
            p(f"v_accvgpr_write_b32 a{a}, v{TMP[2]}")
            p(f"v_accvgpr_write_b32 a{a + 1}, v{TMP[3]}")
    p("s_waitcnt lgkmcnt(0)")
    p("s_barrier")
    for s in range(2):
        for db in range(8):
            for q in range(4): p(f"{MF} {ar(Oreg(q, db))}, {ar(Fbuf(s * 8 + db))}, {vr(Preg(q, s))}, {ar(Oreg(q, db))}")
        for q in range(4): p(f"{MF} {vr(LACC(q))}, {vr(ONES)}, {vr(Preg(q, s))}, {vr(LACC(q))}")
    p("s_add_u32 s54, s54, 32768")
    p("s_sub_u32 s47, s47, 1")
    p("s_cmp_lg_u32 s47, 0")
    p("s_cbranch_scc1 L_safe_loop")
    p("s_nop 15")
    p(f"s_mov_b32 s{S_THR}, 0x7f800000")
    for x in gen_early_epi(True)[1:]: p(x)
    for r in range(16): p(f"v_mov_b32 v{Sreg(1, 1, 0) + r}, {f2u(-2.0 ** 100) if r >= NX else 0:#x}")
    for pre, ins, tag in gpre():
        for x in pre: p(x)
        p(ins)
    p("s_mov_b32 s38, 1")
    p("s_branch L_fin")
    tx = [i.t for i in p.items]
    a = tx.index("L_safe_loop:"); b = tx.index("s_cbranch_scc1 L_safe_loop")
    for e in lint(tx[:b] + tx[a + 1:], "safe")[:20]: print(e)
    return ["L_safe:", "s_cmp_eq_u32 s38, 1", "s_cbranch_scc1 L_safe_ret"] + tx

def tail_pre():
    pa = [tag for pre, ins, tag in gpre()]
    pb = [tag for c in range(7) for pre, ins, tag in chunk(c, a=False)] + [tag for c in range(6) for pre, ins, tag in chunk(c, w=False)]
    n = len(pa); slots = [set() for _ in range(n)]
    for tg in set(pa):
        d = min(n - 1 - max(i for i, x in enumerate(pa) if x == tg), len(pb) - 1 - max(i for i, x in enumerate(pb) if x == tg))
        slots[n - 1 - d].add(tg)
    return [Ins("buffer_load_dwordx4 v240, s[16:19], s55 offen lds", frozenset(x)) for x in slots]

def gen_tail():
    p = Prog()
    slow = []
    for f in range(NPRE, 16): p(f"ds_read_b128 {ar(Fbuf(16 + f))}, v{VCUR} offset:{49152 + f * 1024}", ("VE", f))
    b = Sreg(1, 1, 0)
    for r in range(NX, 16): p(f"v_exp_f32 v{b + r}, v{b + r}")
    for k in range(8): p(f"v_cvt_pk_bf16_f32 v{Preg(1, 0) + k}, v{b + 2 * k}, v{b + 2 * k + 1}")
    p("v_and_b32 v206, 0x1c00, v206")
    p.wait_vm(("cw", 0))
    p("s_waitcnt lgkmcnt(0)")
    p("s_barrier")
    for x in ["s_mov_b32 s4, s42", "s_mov_b32 s5, s43", "s_mov_b32 s6, 0x200000", "s_mov_b32 s7, 0x20000"]: p(x)
    mf = []
    for s in range(2):
        mf.append(f"{MF} {vr(LACC(1))}, {vr(ONES)}, {vr(Preg(1, s))}, {vr(LACC(1))}")
        for db in range(8): mf.append(f"{MF} {ar(Oreg(1, db))}, {ar(Fbuf(16 + s * 8 + db))}, {vr(Preg(1, s))}, {ar(Oreg(1, db))}")
    if not FAST: p(f"buffer_store_dword v249, v248, s[20:23], s98 offen offset:4{STF}", "flag")
    S = Sched16(mf)
    late = o_epi(0, lambda t: 8 * t, lambda t: 64 + 4 * t) + o_epi(1, lambda t: 32 + 8 * t, lambda t: 80 + 4 * t)
    seq = []
    rest = chunk(7, a=False) + chunk(6, w=False)
    for i, (ops, st) in enumerate(late):
        seq += [(x, None) for x in ops[:10]]
        if i < 4:
            for pre, ins, tag in rest[i:i + 1]: seq += [(y, None) for y in pre] + [(ins, tag)]
        seq += [(x, None) for x in ops[10:]]
        if i < LST: seq.append((st, "ctxst"))
    vs = tail_setup()[1][8:-4]
    for i, (pre, ins, tag) in enumerate(rest[4:]):
        seq += [(x, None) for x in vs[4 * i:4 * i + 4]] + [(y, None) for y in pre] + [(ins, tag)]
    seq += [(x, None) for x in vs[4 * len(rest[4:]):]]
    if FAST:
        seq += [(x, None) for x in lchk(0, 1, False) + ["s_or_b32 s62, s62, s63", "v_mov_b32 v244, s62", "v_lshlrev_b32 v245, 2, v255", f"s_add_u32 s46, s33, {KEEP + 16384 - 0x10000}", "v_add_u32 v245, s46, v245",
                                                         "ds_write_b32 v245, v244", "v_mov_b32 v245, s46"]]
    ne = 0
    for g in range(len(mf)):
        while S.load(g) + cost(seq[ne][0]) <= 2:
            S.add_last(g, Ins(*seq[ne])); ne += 1
    p.extend(S.items())
    if DIAG and not DIAG2: p.items.append(stamp(10))
    for x, tag in seq[ne:]: p(x, tag)
    if DIAG and not DIAG2: p.items.append(stamp(11))
    GO = [(n, c) for n in range(NK - 2) for c in range(8)] + [(n, 2 * cp + cf) for cp in range(4) for n in (NK - 2, NK - 1) for cf in range(2)]
    def w_reads(gi):
        n, c = GO[gi]
        off = wofs(n)
        d = 128 + 4 * (gi % 16)
        return [f"ds_read_b64_tr_b16 v[{d + 2 * hf}:{d + 2 * hf + 1}], v{208 + 8 * (off >> 16) + c} offset:{(off & 0xffff) + hf * 4096}" for hf in range(2)]
    RA = 8
    for gi in range(RA):
        for x in w_reads(gi): p(x, ("W", gi))
    p.wait_vm(("ca", 0))
    p.wait_lgkm(("W", 0))
    mf = []
    for gi, (n, c) in enumerate(GO):
        base = 0 if n < 14 else 64
        first = n in (0, 14)
        for tb in range(2):
            acc = base + ((c >> 1) * 2 + tb) * 8 + (c & 1) * 4
            mf.append(f"{MF} {vr(acc)}, {vr(128 + 4 * (gi % 16))}, {areg2(n, tb)}, {0 if first else vr(acc)}")
    S = Sched16(mf)
    NG = NK * 8; NM = len(mf)
    BS = [ch for ch in range(NC - 1) if ch % OB == 0]
    def gB(ch): return 32 * ch + 16
    for gi in range(RA, NG):
        ch, k = gi // 16, gi % 16
        g = 2 * (gi - RA)
        if ch in BS and k >= 12: g -= [1, 2, 3, 4][k - 12]
        for x in w_reads(gi): S.add_mem(g, x, ("W", gi))
    for gi in range(1, NG): S.add_first(2 * gi - 1, Wait("lgkm", ("W", gi)))
    assert GPUB in BS and CPUB in BS
    for ch in range(NC - 1):
        if ch in BS:
            S.add_first(gB(ch) - 2, Ins("s_waitcnt lgkmcnt(0)"))
            S.add_first(gB(ch), Wait("vm", [("cw", min(ch + OB, NC - 1))] + (["pub"] if ch == GPUB else []) + (["ctxst"] if ch == CPUB else [])))
            S.add_first(gB(ch), "s_barrier")
        S.add_first(32 * (ch + 1) - 2, Wait("vm", ("ca", ch + 1)))
    def wfree(ch):
        return 0 if ch < 8 else gB(min(x for x in BS if x >= ch - 8)) + 1
    S.add_mem(gB(CPUB) + 1, f"buffer_store_dword v249, v248, s[20:23], s98 offen offset:8{STF}", "flag")
    if FAST:
        S.add_mem(gB(CPUB) + 3, f"buffer_store_dword v249, v248, s[20:23], s98 offen offset:4{STF}", "flag")
        S.add_mem(gB(0) + 1, "ds_read_b128 v[200:203], v245", "bad")
        S.add_first(gB(0) + 10, Wait("lgkm", "bad"))
        S.add_valu(gB(0) + 11, "v_or3_b32 v200, v200, v201, v202")
        S.add_valu(gB(0) + 11, "v_or_b32 v200, v200, v203")
        S.add_valu(gB(0) + 13, "v_cmp_ne_u32 vcc, 0, v200")
        S.add_last(gB(0) + 15, "s_cbranch_vccnz L_safe")
        S.add_last(gB(0) + 15, "L_safe_ret:")
    for i, (ops, st) in enumerate(late[LST:]): S.add_mem(2 + LSP * i, st, "ctxst")
    assert 2 + LSP * (8 - LST) < gB(CPUB)
    LD = []
    def ld(ops, e, pace):
        for i, (pre, ins, tag) in enumerate(ops):
            for x in pre: LD.append(Op(x, e + i * pace - 2, NM - 1))
            LD.append(Op(ins, e + i * pace, NM - 1, tag=tag, deps=[LD[-1]] if pre else []))
    nw = 8
    while wfree(nw) + 16 <= CCHK:
        ld(chunk(nw, a=False), wfree(nw), 4); nw += 1
    S.add_mem(CPOLL, "buffer_load_dword v207, v206, s[20:23], s3 offen offset:4 sc1", "cpoll")
    S.add_first(CCHK, Wait("vm", "cpoll"))
    S.add_valu(CCHK, "v_cmp_ne_u32 vcc, 1, v207")
    S.add_last(CCHK + 1, "s_cbranch_vccnz L_cwait")
    S.add_last(CCHK + 1, "L_cok:")
    slow += spin("c", "buffer_load_dword v207, v206, s[20:23], s3 offen offset:4 sc1", "v_cmp_ne_u32 vcc, 1, v207")
    if CTXPF:
        S.add_valu(40, "v_lshlrev_b32 v252, 7, v254")
        S.add_valu(41, f"v_add_u32 v253, {4 * ACT_ROW}, v252")
        ld(chunk(7, w=False), CCHK + 2, 1)
        ld([(["s_lshl_b32 s60, s45, 13"], "s_add_u32 s60, s60, s65", None), ([], "buffer_load_dword v250, v252, s[20:23], s60 offen sc1", "pf"),
            ([], "buffer_load_dword v251, v253, s[20:23], s60 offen sc1", "pf")], CCHK + 2, 1)
    seqo = [("a", ch) for ch in range(7, nw)]
    for ch in range(nw, NC): seqo += [("w", ch), ("a", ch)]
    t = float(CCHK + 2)
    for k, (kind, ch) in enumerate(seqo):
        t = max(t, 32 * (ch - 7) if kind == "a" else wfree(ch))
        pace = TP0 if k < 2 else TP
        for op in chunk(ch, w=(kind == "w"), a=(kind == "a")):
            ld([op], int(t), 0); t += pace
    print("tail ld", schedule(S, [LD], 0, NM - 1, base_cap=2), [o.g for o in LD if o.mem][::8])
    def pub(base, kind, g0, g1, pace=0):
        ops = []
        for k8 in range(8):
            R = base + 8 * k8
            if k8 % 4 == 0: ops.append(Op(f"s_add_u32 s60, s40, {kind * 32768 + (k8 // 4) * 4096}", g0, g1))
            cv = [Op(f"v_cvt_pk_bf16_f32 v{R + k}, v{R + 2 * k}, v{R + 2 * k + 1}", g0, g1) for k in range(4)]
            ops += cv
            ops.append(Op(f"buffer_store_dwordx4 {vr(R)}, v240, s[20:23], s60 offen offset:{(k8 % 4) * 1024} sc1", g0 + k8 * pace, g1, [cv[-1]], tag="pub"))
            ops.append(Op(f"ds_write_b128 v236, {vr(R)} offset:{kind * 8192 + k8 * 1024}", g0, g1, tag="own"))
        return ops
    pb = pub(0, 0, 14 * 16 + PUB0, gB(GPUB) - 20, PUBP)
    print('pub', schedule(S, [pb], 14 * 16, NM - 1, base_cap=2), [o.g for o in pb if o.tag == 'pub'])
    S.add_mem(gB(GPUB) + 1, "buffer_store_dword v249, v248, s[20:23], s95 offen offset:4 sc1", "flag")
    gx = 32 * 17 + 21
    for k in range(4):
        S.add_mem(gx + 4 * k, f"buffer_load_dwordx2 v[{192 + 2 * k}:{193 + 2 * k}], v{238 + k // 2}, s[24:27], s57 offen offset:{32 * (k % 2)}", "x")
    gp = 32 * GPOLL
    S.add_mem(gp + 1, "buffer_load_dword v250, v247, s[20:23], s94 offen offset:4 sc1", "gpoll")
    gc = gp + 33
    S.add_first(gc + 1, Wait("vm", "gpoll"))
    S.add_valu(gc + 1, "v_cmp_ne_u32 vcc, 1, v250")
    S.add_last(gc + 2, "s_cbranch_vccnz L_gwait")
    S.add_last(gc + 2, "L_gok:")
    slow += spin("g", "buffer_load_dword v250, v247, s[20:23], s94 offen offset:4 sc1", "v_cmp_ne_u32 vcc, 1, v250")
    for k in range(3):
        for tb in range(2):
            S.add_mem(gc + 4 + 2 * (2 * k + tb), f"buffer_load_dwordx4 {vr(8 * k + 4 * tb)}, v240, s[20:23], s{GB[k]} offen offset:{tb * 1024} sc1", "gg")
    for tb in range(2): S.add_mem(gc + 18, f"ds_read_b128 {vr(24 + 4 * tb)}, v237 offset:{tb * 1024}", "gown")
    ps = pub(64, 1, 0, NM - 1)
    k8 = -1; inside = []
    for o in ps:
        if o.t.startswith("v_cvt") and (int(re.findall(r"v(\d+)", o.t)[0]) - 64) % 8 == 0: k8 += 1
        o.e = NM - 32 + 8 * (max(k8, 0) // 2) + 8 + 5
    inside = [o for o in ps if o.e < NM - 4]
    print("pub s inside", schedule(S, [inside], NM - 32, NM - 1, base_cap=3), len(inside), len(ps))
    for k in range(3): S.add_first(gc + 20 + 2 * k, f"s_add_u32 s{GB[k]}, s{GB[k]}, 32768")
    if DIAG3:
        for k, g in enumerate([int(x) for x in os.environ.get('D3', '').split(',') if x] or [0, CCHK, CCHK + 4, 14 * 16, 30 * 16, NM - 1]): S.add_first(g, stamp(2 + k))
    print(S.report("tail")[:400])
    OD = os.environ.get("ODROP", "").split(",")
    def keep(i):
        tg = i.tag if isinstance(i, (Ins, Wait)) else None
        if isinstance(i, Ins):
            if isinstance(tg, tuple) and tg[0] in OD: return False
            if tg in OD and tg: return False
        if isinstance(i, Wait):
            tags = tg if isinstance(tg, list) else [tg]
            tags = [t for t in tags if (t[0] if isinstance(t, tuple) else t) not in OD]
            if not tags: return False
            i.tag = tags
        return True
    p.extend([i for i in S.items() if keep(i)])
    GS = 144
    def gather():
        for k in range(3):
            for tb in range(2):
                p(f"buffer_load_dwordx4 {vr(GS + 8 * k + 4 * tb)}, v240, s[20:23], s{GB[k]} offen offset:{tb * 1024} sc1", "gs")
    p("s_nop 3")
    for o in ps[len(inside):]: p(o.t, o.tag)
    gather()
    def unpack(dst, src, n=8):
        for k in range(n):
            p(f"v_lshlrev_b32 v{dst + 2 * k}, 16, v{src + k}")
            p(f"v_and_b32 v{dst + 2 * k + 1}, 0xffff0000, v{src + k}")
    def rnd(b, T):
        for k in range(0, 16, 2): p(f"v_cvt_pk_bf16_f32 v{T + k // 2}, v{b + k}, v{b + k + 1}")
        unpack(b, T)
    def accum(D, src):
        for k in range(8):
            p(f"v_dot2c_f32_bf16 v{D + 2 * k}, s46, v{src + k}")
            p(f"v_dot2c_f32_bf16 v{D + 2 * k + 1}, s47, v{src + k}")
    p("s_mov_b32 s46, 0x00003f80")
    p("s_mov_b32 s47, 0x3f800000")
    p("s_mov_b32 s44, 0x40000")
    if DIAG3: p.items.append(stamp(8))
    p("s_waitcnt lgkmcnt(0)")
    p("s_barrier")
    for tb in range(2): p(f"ds_read_b128 {vr(168 + 4 * tb)}, v237 offset:{8192 + tb * 1024}", "sown")
    p.wait_vm("gg")
    unpack(32, 24)
    for k in range(3): accum(32, 8 * k)
    p("s_nop 2")
    rnd(32, 48)
    for k in range(16): p(f"v_mul_f32 v{48 + k}, {f2u(-LOG2E):#x}, v{32 + k}")
    for k in range(16): p(f"v_exp_f32 v{48 + k}, v{48 + k}")
    for k in range(16): p(f"v_add_f32 v{48 + k}, 1.0, v{48 + k}")
    for k in range(16): p(f"v_rcp_f32 v{48 + k}, v{48 + k}")
    for k in range(16): p(f"v_mul_f32 v{32 + k}, v{32 + k}, v{48 + k}")
    rnd(32, 48)
    unpack(128, 192)
    p.wait_lgkm("sown")
    unpack(0, 168)
    p("s_branch L_o_chk")
    p.label("L_o_poll")
    gather()
    p.label("L_o_chk")
    p("s_waitcnt vmcnt(0)")
    p(f"v_max3_u32 v48, v{GS}, v{GS + 1}, v{GS + 2}")
    p(f"v_max3_u32 v49, v{GS + 3}, v{GS + 4}, v{GS + 5}")
    for k in range(6, 22, 4):
        p(f"v_max3_u32 v48, v48, v{GS + k}, v{GS + k + 1}")
        p(f"v_max3_u32 v49, v49, v{GS + k + 2}, v{GS + k + 3}")
    p(f"v_max3_u32 v48, v48, v{GS + 22}, v{GS + 23}")
    p("v_max_u32 v48, v48, v49")
    p("v_cmp_eq_u32 vcc, -1, v48")
    p("s_cbranch_vccz L_o_go")
    p("s_sub_u32 s44, s44, 1")
    p("s_cbranch_scc0 L_o_poll")
    p.label("L_o_go")
    if DIAG3: p.items.append(stamp(9))
    for k in range(3): accum(0, GS + 8 * k)
    p("s_nop 2")
    for k in range(16): p(f"v_fmac_f32 v{128 + k}, v{k}, v{32 + k}")
    for k in range(0, 16, 2): p(f"v_cvt_pk_bf16_f32 v{96 + k // 2}, v{128 + k}, v{129 + k}")
    for k in range(4):
        p(f"buffer_store_dwordx2 v[{96 + 2 * k}:{97 + 2 * k}], v{238 + k // 2}, s[4:7], s57 offen offset:{32 * (k % 2)}")
    if DIAG:
        p("s_waitcnt vmcnt(0)")
        p.items.append(stamp(12)); p.items.append(stamp(13, True))
        dump_stamps(p, 0, 28, 20)
    return [i.t for i in resolve(p.items, tail_pre())], slow

def gen_f_kernel():
    p = Prog()
    p("s_cmp_ge_u32 s2, 256")
    p("s_cbranch_scc1 L_f_end")
    if DIAG:
        for k in range(14): p(f"s_mov_b32 s{66 + 2 * k}, 0")
        p.items.append(stamp(0, True)); p.items.append(stamp(1))
    p("s_load_dwordx4 s[36:39], s[0:1], 0")
    p("s_load_dwordx4 s[40:43], s[0:1], 24")
    p("s_load_dwordx2 s[44:45], s[0:1], 96")
    p("v_and_b32 v254, 63, v0")
    p("v_lshrrev_b32 v255, 6, v0")
    p("s_and_b32 s34, s2, 7")
    p("v_readfirstlane_b32 s28, v255")
    p("s_lshr_b32 s35, s2, 3")
    p("v_lshlrev_b32 v252, 7, v254")
    if CPF:
        p("s_getpc_b64 s[4:5]")
        p("L_pc0:")
        p(f"s_sub_u32 s4, s4, L_pc0-{KNAME}")
        p("s_subb_u32 s5, s5, 0")
        p(f"s_mov_b32 s6, L_code_end-{KNAME}")
        p("s_mov_b32 s7, 0x20000")
        p("v_lshrrev_b32 v244, 3, v254")
        p("v_lshl_or_b32 v244, v244, 27, v252")
        p("v_lshl_add_u32 v244, v255, 15, v244")
        p("s_lshl_b32 s63, s35, 10")
        p("buffer_load_dword v52, v244, s[4:7], s63 offen", "pf")
    p("v_lshlrev_b32 v240, 4, v254")
    p("v_lshrrev_b32 v244, 4, v254")
    p("v_and_b32 v245, 15, v254")
    p("v_lshlrev_b32 v245, 7, v245")
    p("v_lshl_add_u32 v253, v244, 13, v245")
    p("s_lshl_b32 s60, s35, 2")
    p("s_add_u32 s60, s60, s28")
    p("s_and_b32 s61, s34, 1")
    p("s_lshl_b32 s61, s61, 20")
    p("s_lshl_b32 s63, s60, 13")
    p("s_add_u32 s61, s61, s63")
    p("s_lshr_b32 s62, s34, 1")
    p("s_lshl_b32 s62, s62, 11")
    p("s_lshl_b32 s63, s60, 15")
    p("s_add_u32 s62, s62, s63")
    p("s_lshl_b32 s47, s2, 13")
    p("s_lshl_b32 s46, s28, 11")
    p("s_add_u32 s47, s47, s46")
    for r, v in ((10, 0x200000), (11, 0x20000), (14, 0x400000), (15, 0x20000), (26, 0x200000), (27, 0x20000)): p(f"s_mov_b32 s{r}, {v:#x}")
    p("s_waitcnt lgkmcnt(0)")
    if DIAG and not DIAG2: p.items.append(stamp(2))
    for d, sr in ((24, 36), (25, 37), (8, 38), (9, 39), (12, 40), (13, 41)): p(f"s_mov_b32 s{d}, s{sr}")
    p("buffer_load_dwordx4 v[0:3], v240, s[24:27], s47 offen" + NTX, "ln")
    p("buffer_load_dwordx4 v[4:7], v240, s[24:27], s47 offen offset:1024" + NTX, "ln")
    if XBAR: p("s_barrier")
    if PFA:
        p("buffer_load_dword v246, v252, s[8:11], s61 offen" + os.environ.get("NTPA", ""), "pf")
        p("buffer_load_dword v247, v253, s[12:15], s62 offen" + NT, "pf")
    srd(p, 16, 42, 0x400000)
    srd(p, 20, 44, 0x10000000)
    p("s_load_dwordx2 s[36:37], s[0:1], 16")
    p("s_load_dwordx2 s[38:39], s[0:1], 40")
    p("s_load_dwordx4 s[40:43], s[0:1], 56")
    p("s_load_dwordx2 s[96:97], s[0:1], 72")
    p("s_load_dwordx2 s[98:99], s[0:1], 88")
    p("v_lshl_add_u32 v244, v255, 6, v254")
    p("v_cmp_eq_u32 vcc, 0, v244")
    p("v_mov_b32 v248, 0x7ffff000")
    p("v_mov_b32 v249, 1")
    p("v_mov_b32 v250, 0")
    p("v_cndmask_b32_e64 v248, v248, 0, vcc")
    p("s_and_b32 s47, s34, 1")
    p("s_lshl_b32 s47, s47, 2")
    p("s_and_b32 s46, s35, 3")
    p("s_add_u32 s47, s47, s46")
    p("s_lshr_b32 s3, s34, 1")
    p("s_lshl_b32 s3, s3, 3")
    p("s_lshr_b32 s46, s35, 2")
    p("s_add_u32 s3, s3, s46")
    p("s_lshl_b32 s45, s3, 3")
    p("s_add_u32 s45, s45, s47")
    p("s_lshl_b32 s46, s47, 2")
    p("s_add_u32 s46, s46, s28")
    p("s_lshl_b32 s31, s46, 16")
    p("s_lshl_b32 s94, s46, 15")
    p("s_lshl_b32 s47, s3, 20")
    p("s_add_u32 s94, s94, s47")
    p(f"s_add_u32 s94, s94, {WS_KV:#x}")
    p("s_lshl_b32 s95, s3, 8")
    p("s_lshl_b32 s3, s45, 7")
    p(f"s_add_u32 s3, s3, {WS_FLAG + 0x10000:#x}")
    p("s_lshl_b32 s29, s34, 2")
    p("s_lshr_b32 s46, s35, 3")
    p("s_add_u32 s29, s29, s46")
    p("s_and_b32 s30, s35, 7")
    p(f"s_mul_i32 s48, s28, 24576")
    p("s_lshl_b32 s49, s28, 12")
    p("s_lshl_b32 s50, s28, 6")
    p("s_add_u32 s50, s50, s95")
    p("s_and_b32 s45, s28, 1")
    p("s_lshr_b32 s52, s28, 1")
    p("s_lshl_b32 s53, s45, 13")
    p("s_lshl_b32 s54, s52, 12")
    p("s_add_u32 s53, s53, s54")
    p("s_lshl_b32 s54, s45, 6")
    p("s_lshl_b32 s55, s52, 19")
    p("s_add_u32 s55, s54, s55")
    p("s_add_u32 s54, s55, s95")
    p("s_lshl_b32 s56, s29, 8")
    p("s_add_u32 s65, s55, s56")
    p("s_sub_u32 s56, 15, s30")
    p("s_lshl_b32 s32, s56, 3")
    p("s_add_u32 s32, s32, s28")
    p("s_lshl_b32 s33, s30, 3")
    p("s_add_u32 s33, s33, s28")
    p("s_lshl_b32 s46, s32, 14")
    p("s_lshl_b32 s47, s33, 14")
    p(f"s_mul_i32 s32, s32, {ACT_ROW}")
    p(f"s_add_u32 s32, s32, {WS_ACT:#x}")
    p(f"s_mul_i32 s33, s33, {ACT_ROW}")
    p(f"s_add_u32 s33, s33, {WS_ACT:#x}")
    if GUZ:
        p("s_sub_u32 s55, s29, s34")
        p("s_add_u32 s55, s55, 32")
    else:
        p("s_add_u32 s55, s29, 32")
        p("s_cmp_lt_u32 s29, 24")
        p("s_cselect_b32 s55, s55, s29")
    p(f"s_mul_i32 s64, s52, {64 * 3584}")
    p("s_lshl_b32 s63, s29, 6")
    p("s_add_u32 s35, s64, s63")
    p("s_lshl_b32 s63, s55, 6")
    p("s_add_u32 s64, s64, s63")
    if GUZ:
        p("s_and_b32 s63, s29, 3")
        p("s_cmp_eq_u32 s63, 3")
        p("s_cselect_b32 s64, 0x7f000000, s64")
    p("s_lshl_b32 s51, s29, 20")
    p(f"s_add_u32 s51, s51, {WS_KV:#x}")
    p("s_lshl_b32 s56, s29, 10")
    p(f"s_add_u32 s56, s56, {128 * 1024}")
    p("s_add_u32 s100, s56, s32")
    p("s_add_u32 s101, s56, s33")
    p("s_lshl_b32 s61, s34, 8")
    p("s_lshr_b32 s63, s60, 1")
    p(f"s_mul_i32 s63, s63, {8 * 3584}")
    p("s_add_u32 s61, s61, s63")
    p("s_lshl_b32 s52, s34, 10")
    p("s_lshl_b32 s63, s60, 15")
    p("s_add_u32 s52, s52, s63")
    p("v_lshrrev_b32 v241, 3, v254")
    p("v_lshlrev_b32 v241, 13, v241")
    p("v_and_b32 v242, 7, v254")
    for n in range(8):
        p(f"v_xor_b32 v243, {n}, v242")
        p(f"v_lshl_add_u32 v{224 + n}, v243, 4, v241")
    p("v_and_b32 v241, 7, v254")
    p("v_bfe_u32 v242, v254, 3, 1")
    p("v_lshlrev_b32 v242, 7, v242")
    p("v_lshl_add_u32 v242, v241, 10, v242")
    p("v_add_u32 v242, s48, v242")
    p("v_lshrrev_b32 v243, 4, v254")
    for tt in range(2):
        p(f"v_add_u32 v244, {4 * tt}, v243")
        p("v_xor_b32 v244, v244, v241")
        p(f"v_lshl_add_u32 v{232 + tt}, v244, 4, v242")
    p("v_lshlrev_b32 v241, 9, v243")
    p("v_bfe_u32 v242, v254, 2, 2")
    p("v_lshl_add_u32 v241, v242, 6, v241")
    p("v_and_b32 v242, 3, v254")
    p("v_lshl_add_u32 v241, v242, 3, v241")
    p("v_and_b32 v242, 1, v243")
    p("v_lshl_add_u32 v234, v242, 5, v241")
    p("v_xor_b32 v237, 32, v234")
    for cf in range(2):
        p(f"v_add_u32 v{235 + 3 * cf}, 0x10000, v{234 + 3 * cf}")
        p(f"v_add_u32 v{236 + 3 * cf}, 0x20000, v{234 + 3 * cf}")
    p("v_lshrrev_b32 v244, 5, v254")
    p("v_lshlrev_b32 v251, 30, v244")
    p("v_lshlrev_b32 v244, 1, v244")
    p("v_and_b32 v245, 3, v254")
    p("v_xor_b32 v245, v245, v244")
    p("v_lshlrev_b32 v245, 4, v245")
    p("v_lshrrev_b32 v244, 2, v254")
    p("v_lshl_add_u32 v241, v244, 13, v245")
    p("v_mul_u32_u24 v244, 3584, v244")
    p("v_add_u32 v242, v244, v245")
    p("v_bfe_u32 v245, v254, 2, 3")
    p("v_mul_u32_u24 v245, 3584, v245")
    p("v_and_b32 v244, 1, v254")
    p("v_lshl_add_u32 v245, v244, 7, v245")
    p("v_bfe_u32 v244, v254, 1, 1")
    if GUZ:
        p("s_lshl_b32 s63, s34, 6")
        p("s_sub_u32 s63, 2048, s63")
        p("v_mad_u32_u24 v245, v244, s63, v245")
    else:
        p("v_lshl_add_u32 v245, v244, 11, v245")
    p("v_or_b32 v245, v245, v251")
    p("v_and_b32 v243, 15, v254" if not BYTEF else "v_mov_b32 v243, v254")
    p(f"v_lshlrev_b32 v243, {2 if BYTEF else XSH}, v243")
    p("v_lshlrev_b32 v48, 7, v254")
    p("v_lshl_add_u32 v48, v255, 5, v48")
    p("v_add_u32 v48, 0x24000, v48")
    p("v_lshl_add_u32 v49, v255, 11, v240")
    p("v_add_u32 v49, 0x24000, v49")
    p("v_lshrrev_b32 v50, 3, v254")
    p("v_lshlrev_b32 v50, 8, v50")
    p("v_and_b32 v51, 7, v254")
    p("v_lshl_add_u32 v50, v51, 4, v50")
    p("s_waitcnt lgkmcnt(0)")
    p("s_cmp_eq_u32 s45, 0")
    p("s_cselect_b32 s40, s40, s42")
    p("s_cselect_b32 s41, s41, s43")
    p("s_mov_b32 s4, s98")
    p("s_mov_b32 s5, s99")
    p("s_mov_b32 s6, 256")
    p("s_mov_b32 s7, 0x20000")
    p("s_load_dwordx2 s[42:43], s[0:1], 80")
    p("s_lshl_b32 s56, s55, 10")
    p(f"s_add_u32 s56, s56, {128 * 1024}")
    p("s_add_u32 s98, s56, s32")
    p("s_add_u32 s99, s56, s33")
    if GUZ:
        p("s_and_b32 s56, s29, 3")
        p("s_cmp_eq_u32 s56, 3")
        p("s_cselect_b32 s98, 0x7f000000, s98")
        p("s_cselect_b32 s99, 0x7f000000, s99")
    p("s_lshl_b32 s63, s2, 7")
    p(f"s_add_u32 s63, s63, {WS_FLAG:#x}")
    BLK = [6, 7, 8, 9, 6, 7, 8, 9, 0, 1, 2, 3, 4, 5, 6, 7, 8, 9, 0, 1, 2, 3, 6, 7, 8, 9, 4, 5, 6, 7, 8, 9]
    def dma_A(s):
        ops = []
        for n in range(8):
            pre = []
            if n % 4 == 0:
                pre = [f"s_add_u32 m0, s48, {(s % 3) * 8192 + (n // 4) * 4096}", f"s_add_u32 s56, s31, {s * 128 + (n // 4) * 4096}"]
            ops.append((pre, f"buffer_load_dwordx4 v{224 + n}, s[8:11], s56 offen offset:{(n % 4) * 1024}{NTA} lds", ("A", s)))
        return ops
    def dma_W(n):
        ops = []
        kq = n % 4
        for q in range(4):
            m0 = "s53"
            if n < 8:
                pre = [f"s_add_u32 s57, s54, {(kq * 128 + q * 16) * 8192 + (n // 4) * 128 - q * 1024}"]
                ins = f"buffer_load_dwordx4 v241, s[12:15], s57 offen offset:{q * 1024} lds"
            elif n < 16:
                pre = [f"s_add_u32 s57, s50, {((n - 8) * 64 + q * 16) * 8192 - q * 1024}"]; m0 = "s49"
                ins = f"buffer_load_dwordx4 v241, s[16:19], s57 offen offset:{q * 1024} lds"
            elif n < 24:
                pre = [f"s_add_u32 s57, s{35 if n < 20 else 64}, {(kq * 128 + q * 16) * 3584 - q * 1024}"]
                ins = f"buffer_load_dwordx4 v242, s[12:15], s57 offen offset:{q * 1024} lds"
            else:
                pre = [f"s_add_u32 s57, s65, {(kq * 128 + q * 16) * 8192 - q * 1024 + (128 if n >= 28 else 0)}"]
                ins = f"buffer_load_dwordx4 v241, s[8:11], s57 offen offset:{q * 1024} lds"
            if "kkvvggqq"[n // 4] in NTD: ins = ins.replace(" lds", " nt lds")
            if q == 0: pre = [f"s_add_u32 m0, {m0}, {BLK[n] * 16384}"] + pre
            ops.append((pre, ins, ("L", n)))
        return ops
    def kv_half(tile, part):
        ops = []
        for q in range(4):
            pre = []
            if q == 0: pre = [f"s_add_u32 m0, s49, {tile * 32768 + part * 16384}", f"s_add_u32 s57, s49, {tile * 32768 + part * 16384}"]
            ops.append((pre, f"buffer_load_dwordx4 v240, s[16:19], s57 offen offset:{q * 1024}{KSC} lds", ("kv", tile, part)))
        return ops
    def now(ops):
        for pre, ins, tag in ops:
            for x in pre: p(x)
            p(ins, tag)
    first = dma_W(0) + dma_A(0) + dma_A(1) + (dma_W(1) + dma_A(2) if ALEAD == 3 else [])
    now(first[:EARLY])
    p.wait_vm("ln")
    if DIAG and not DIAG2: p.items.append(stamp(3))
    emit_ln(p)
    p("ds_write_b128 v48, v[40:43]")
    p("ds_write_b128 v48, v[44:47] offset:16")
    p("s_lshr_b32 s58, s2, 1")
    p("s_lshl_b32 s58, s58, 14")
    p("s_and_b32 s59, s2, 1")
    p("s_lshl_b32 s59, s59, 7")
    p("s_add_u32 s58, s58, s59")
    p("s_add_u32 s58, s58, s49")
    if WS_XN: p(f"s_add_u32 s58, s58, {WS_XN:#x}")
    p("s_waitcnt lgkmcnt(0)")
    p("s_barrier")
    p("ds_read_b128 v[40:43], v49")
    p("ds_read_b128 v[44:47], v49 offset:1024")
    p("s_lshr_b32 s59, s2, 4")
    p(f"s_lshl_b32 s59, s59, {XSH}")
    p("s_waitcnt lgkmcnt(0)")
    p(f"buffer_store_dwordx4 v[40:43], v50, s[20:23], s58 offen{STF}", "xnst")
    p(f"buffer_store_dwordx4 v[44:47], v50, s[20:23], s58 offen offset:2048{STF}", "xnst")
    p(f"buffer_store_dword v250, v248, s[20:23], s63 offen{STF}", "zf")
    p(f"buffer_store_dword v250, v248, s[20:23], s63 offen offset:4{STF}", "zf")
    p(f"buffer_store_dword v250, v248, s[20:23], s3 offen{STF}", "zf")
    p(f"s_add_u32 s63, s63, 0x20000")
    p(f"buffer_store_dword v250, v248, s[20:23], s63 offen offset:8{STF}", "zf")
    p(f"buffer_store_dword v250, v248, s[20:23], s63 offen{STF}", "zf")
    p(f"buffer_store_dword v250, v248, s[20:23], s63 offen offset:4{STF}", "zf")

    if os.environ.get('PFW8'):
        p('s_waitcnt vmcnt(0)'); p.items.append(stamp(2))
    now(first[EARLY:])

    groups = []
    def accT(base, c, cf, rb): return base + (c * 4 + rb) * 8 + cf * 4
    def accV(base, c, cf, rb): return base + ((c * 2 + cf) * 2 + (rb >> 1)) * 8 + (rb & 1) * 4
    def add_double(seg0, bases):
        for s in range(8):
            for tt in range(2):
                for c in range(4):
                    for cf in range(2):
                        groups.append(dict(off=BLK[seg0 + s] * 16384 + c * 4096 + tt * 2048, cf=cf, t=2 * s + tt,
                                           acc=[accV(bases[c >> 1], c & 1, cf, rb) for rb in range(4)], vt=True))
    def add_single(seg0, base):
        for q in range(4):
            for tq, c in ([(tq, c) for c in range(2) for tq in range(4)] if seg0 + q == 31 else [(tq, c) for tq in range(4) for c in range(2)]):
                if True:
                    for cf in range(2):
                        groups.append(dict(off=BLK[seg0 + q] * 16384 + c * 8192 + tq * 2048, cf=cf, t=4 * q + tq,
                                           acc=[accT(base, c, cf, rb) for rb in range(4)], vt=False))
    add_single(0, 0); add_single(4, 64); add_double(8, [128, 0])
    add_single(16, 64); add_single(20, 128); add_single(24, 0); add_single(28, 64)
    NG = len(groups)
    mf = []
    for n, G in enumerate(groups):
        w = vr(192 + 4 * (n % 8))
        for rb in range(4):
            a = ar((rb * 16 + G["t"]) * 4)
            d = vr(G["acc"][rb])
            c = 0 if G["t"] == 0 else d
            mf.append(f"{MF} {d}, {a}, {w}, {c}" if G["vt"] else f"{MF} {d}, {w}, {a}, {c}")
    S = Sched16(mf)
    def w_reads(n):
        G = groups[n]
        out = []
        for hf in range(2):
            off = G["off"] + hf * 256
            d = 192 + 4 * (n % 8) + 2 * hf
            out.append(f"ds_read_b64_tr_b16 v[{d}:{d + 1}], v{234 + 3 * G['cf'] + (off >> 16)} offset:{off & 0xffff}")
        return out
    def a_reads(s):
        return [f"ds_read_b128 {ar((rb * 16 + 2 * s + tt) * 4)}, v{232 + tt} offset:{(s % 3) * 8192 + rb * 256}" for tt in range(2) for rb in range(4)]
    RA = 5
    if DIAG and not DIAG2: p.items.append(stamp(4))
    p.wait_vm(("A", 0))
    p("s_barrier")
    if DIAG and not DIAG2: p.items.append(stamp(5))
    for x in a_reads(0): p(x, ("Ar", 0))
    for n in range(RA):
        for x in w_reads(n): p(x, ("W", n))
    p.wait_lgkm(("W", 0))
    for n in range(RA, NG):
        k = n % 16
        if k <= 13: g = 4 * (n - RA)
        elif k == 14: g = 4 * (n - 6) + 2
        else: g = 4 * (n - 6)
        for i, x in enumerate(w_reads(n)): S.add_mem(g + i, x, ("W", n))
    for n in range(1, NG): S.add_first(4 * n - 1, Wait("lgkm", ("W", n)))
    for s in range(1, 8):
        g = 32 * s - 22
        S.add_first(g, Wait("vm", ("A", s)))
        for i, x in enumerate(a_reads(s)): S.add_mem(g + [0, 0, 1, 1, 4, 4, 5, 5][i], x, ("Ar", s))
        S.add_first(32 * s - 10, Wait("lgkm", ("Ar", s)))
    def gB(n): return 64 * n + 4 * 11
    GBS = [n for n in range(31) if n < 8 or not GB2 or n % 2 == 1]
    for n in GBS:
        nxt = min([x for x in GBS if x > n] + [31])
        tags = [("L", nxt)]
        if n == 0: tags += ["xnst", "zf"]
        if n == KVPUB: tags.append("kvst")
        if n == 29: tags.append(("kv", 0, 0))
        S.add_first(gB(n) - 2, Ins("s_waitcnt lgkmcnt(0)"))
        S.add_first(gB(n), Wait("vm", tags))
        S.add_first(gB(n), "s_barrier")
    assert KVPUB in GBS
    def win(n): return gB(n - 1) + 1
    def freed(seg): return gB(min(x for x in GBS if x >= seg)) + 1
    def lfree(n):
        prev = [m for m in range(n) if BLK[m] == BLK[n]]
        return freed(prev[-1]) if prev else freed(3)
    def bfree(blk): return freed(max(m for m in range(32) if BLK[m] == blk))
    LD = []
    def ld(ops, e, pace=1):
        for i, (pre, ins, tag) in enumerate(ops):
            for x in pre: LD.append(Op(x, e + i * pace - 3, 2040))
            LD.append(Op(ins, e + i * pace, 2040, tag=tag, deps=[LD[-2]] if len(pre) == 2 else []))
    one = lambda ins, tag, pre=(): [([], x, None) for x in pre] + [([], ins, tag)]
    if ALEAD == 3:
        ld(dma_A(3), 0); ld(dma_W(2), 8); ld(dma_A(4), 22)
        ld(dma_A(5), 54); ld(dma_W(3), 62); ld(dma_A(6), 86); ld(dma_A(7), 118); ld(dma_W(4), 126); ld(dma_W(5), 140, 4)
    else:
        ld(dma_W(1), 0); ld(dma_A(2), 0); ld(dma_A(3), 20); ld(dma_W(2), 40); ld(dma_A(4), 52); ld(dma_A(5), 84); ld(dma_W(3), 100)
        ld(dma_A(6), 116); ld(dma_A(7), 144); ld(dma_W(4), 156); ld(dma_W(5), 160)
    if not BYTEF: ld(one("buffer_atomic_add v249, v248, s[4:7], s59 offen", "pub"), win(3))
    else: S.add_mem(win(BYTEF), "buffer_store_byte v249, v248, s[4:7], s2 offen sc1", "pub")
    if "v" in PFW: ld(one("buffer_load_dword v246, v253, s[16:19], s62 offen" + NTV, "pf"), win(3))
    ld(dma_W(6), win(3), 2)
    ld(dma_W(7), VW0 - 24, 4)
    for n in range(8, 13): ld(dma_W(n), VW0 + (n - 8) * VWP, 3)
    ld(one("buffer_load_dword v250, v245, s[12:15], s61 offen", "pf", ["s_mov_b32 s12, s40", "s_mov_b32 s13, s41", f"s_mov_b32 s14, {512 * 3584}"])[:4 if "g" in PFW else 3], win(GPW))
    print("ld1", schedule(S, [LD], 0, 511, base_cap=LCAP), "last", LD[-1].g, [o.g for o in LD if o.tag in ("pf", "poll")])
    gc = XNC
    S.add_mem(XPL if XPL else gc - 50, XPOLL, "poll")
    S.add_first(gc, Wait("vm", "poll"))
    S.add_valu(gc, XCMP)
    S.add_valu(gc, "v_add_u32 v247, 0x10000, v240")
    S.add_last(gc + 2, "s_cbranch_vccnz L_xnwait")
    S.add_last(gc + 2, "L_xnok:")
    LD = []
    for n in range(13, 24): ld(dma_W(n), max(win(9) + (n - 13) * 44 if n < WSH else win(n - 4), lfree(n)), 10)
    S.add_valu(64 * 12, "v_and_b32 v253, 0xfffffbff, v253")
    S.add_valu(64 * 12 + 1, "v_bfe_u32 v246, v254, 3, 1")
    S.add_valu(64 * 12 + 2, "v_lshl_or_b32 v253, v246, 30, v253")
    ld(one("buffer_load_dword v244, v253, s[8:11], s52 offen", "pf", ["s_mov_b32 s8, s36", "s_mov_b32 s9, s37", "s_mov_b32 s10, 0x400000"])[:4 if "q" in PFW else 3], win(17 if WSH > 20 else WQW))
    for n in range(24, 32):
        if n == 28 and PFOG:
            S.add_valu(1400, "v_and_b32 v245, 0xfff, v252")
            S.add_valu(1401, "v_or_b32 v245, v245, v251")
            ld(one("buffer_load_dword v250, v245, s[4:7], s50 offen", "pf", ["s_mov_b32 s4, s38", "s_mov_b32 s5, s39", "s_mov_b32 s6, 0x400000", "s_mov_b32 s7, 0x20000",
                   "s_lshl_b32 s50, s2, 2", "s_add_u32 s50, s50, s28", "s_lshl_b32 s50, s50, 12"]), PFOG - 8)
            ld(one("buffer_load_dword v253, v245, s[12:15], s50 offen", "pf", ["s_mov_b32 s12, s96", "s_mov_b32 s13, s97", f"s_mov_b32 s14, {1792 * 1024}"]), PFOG - 8)
            if NTX: ld(one("buffer_load_dword v244, v245, s[24:27], s50 offen", "pf"), PFOG - 8)
        ld(dma_W(n), max((win(19) if WSH > 20 else win(21) + 20) + (n - 24) * (50 if WSH > 20 else 36), lfree(n), PFOG + 120 + 20 * (n - 28) if PFOG and n >= 28 else 0), 8 if n < 28 or not PFOG else 4)
    S.add_valu(64 * 26, "v_and_b32 v243, 0x380, v252")
    for x in ["s_add_u32 s16, s20, s51", "s_addc_u32 s17, s21, 0"]: S.add_last(64 * 26, x)
    for x in ["s_sub_u32 s18, 16, s30", "s_lshl_b32 s18, s18, 16"]: S.add_last(64 * 26 + 1, x)
    ld(one("buffer_load_dword v244, v243, s[20:23], s59 offen sc1", "poll2", ["s_lshl_b32 s59, s29, 10", f"s_add_u32 s59, s59, {WS_FLAG + 0x10000:#x}"]), 64 * 27)
    gc = win(28) + 1
    for k in range(7): ld(kv_half(k // 2, k % 2), max(gc + 4 + 16 * k, bfree(k)), 4)
    S.add_first(gc, Wait("vm", "poll2"))
    S.add_valu(gc, "v_cmp_ne_u32 vcc, 1, v244")
    S.add_last(gc + 2, "s_cbranch_vccnz L_kvwait")
    S.add_last(gc + 2, "L_kvok:")
    print("ld2", schedule(S, [LD], 512, 2046, base_cap=2), "last", LD[-1].g, [(o.tag, o.g) for o in LD if o.mem][::4])
    XL = []
    for t in range(16):
        for rb in range(4):
            pre = []
            if t % 4 == 0 and rb % 2 == 0: pre = [f"s_add_u32 s{62 + rb // 2}, s{46 + rb // 2}, {WS_XN + t * 1024}"]
            vo = 240 if rb % 2 == 0 else 247
            XL.append(Op(f"buffer_load_dwordx4 {ar((rb * 16 + t) * 4)}, v{vo}, s[20:23], s{62 + rb // 2} offen offset:{(t % 4) * 1024}{XSC}",
                         max(512 + 32 * t + 32 + (6 * rb if t < 15 else 0), XNC + 4 + int(XP * (4 * t + rb))), 1024 + 16 * t - 60 if t < 10 else 512 + 32 * t + 64, pre=pre, tag=("X", t)))
    for t in range(16): S.add_first(1024 + 16 * t - 2, Wait("vm", ("X", t)))
    def kv_epi(kind, u, base, g0, g1, st0):
        ops = []
        for k8 in range(8):
            R = base + 8 * k8
            if kind == "K":
                c, rb = k8 // 4, k8 % 4
                off = rb * 4096 + (2 * u + c) * 1024
                for r in range(8): ops.append(Op(f"v_mul_f32 v{R + r}, s58, v{R + r}", g0, g1))
            else:
                db, s = 4 * u + k8 // 2, k8 % 2
                off = 16384 + s * 8192 + db * 1024
            cv = [Op(f"v_cvt_pk_bf16_f32 v{R + k}, v{R + 2 * k}, v{R + 2 * k + 1}", g0, g1) for k in range(4)]
            ops += cv
            ops.append(Op(f"s_add_u32 s95, s94, {off & ~4095}", g0, g1))
            ops.append(Op(f"buffer_store_dwordx4 {vr(R)}, v240, s[20:23], s95 offen offset:{off & 4095}{STF}", max(g0, st0[0] + int(k8 * st0[1])), g1, [cv[-1]], tag="kvst"))
        return ops
    S.add_first(250, f"s_mov_b32 s58, {f2u(KSCALE):#x}")
    C0 = -2.0 * math.sqrt(2.0 / math.pi) * LOG2E
    C1 = C0 * 0.044715
    S.add_valu(64 * 17, f"v_mov_b32 v232, {f2u(C0):#x}")
    S.add_valu(64 * 17 + 1, f"v_mov_b32 v233, {f2u(C1):#x}")
    S.add_valu(64 * 17 + 2, f"v_add_u32 v246, {4 * ACT_ROW}, v240")
    def gu_epi(base, psg, g0, g1, gst):
        st = [[], []]; sto = []
        for rb in range(4):
            G = base + rb * 8; U = base + 32 + rb * 8
            L = st[rb & 1]
            for r in range(8):
                t = 224 + (r % 4) + 4 * (rb & 1)
                o4 = Op(f"v_exp_f32 v{t}, v{t}", g0, g1)
                o7 = Op(f"v_rcp_f32 v{t}, v{t}", g0, g1)
                L += [Op(f"v_mul_f32 v{t}, v{G + r}, v{G + r}", g0, g1), Op(f"v_fma_f32 v{t}, v{t}, v233, v232", g0, g1),
                      Op(f"v_mul_f32 v{t}, v{t}, v{G + r}", g0, g1), o4, Op(f"v_mul_f32 v{G + r}, v{G + r}, v{U + r}", g0, g1),
                      Op(f"v_add_f32 v{t}, 1.0, v{t}", g0, g1), o7, Op(f"v_mul_f32 v{G + r}, v{G + r}, v{t}", g0, g1, [o7])]
            cv = [Op(f"v_cvt_pk_bf16_f32 v{G + k}, v{G + 2 * k}, v{G + 2 * k + 1}", g0, g1 - 2) for k in range(4)]
            L += cv
            sto.append(Op(f"buffer_store_dwordx4 {vr(G)}, v{240 if rb % 2 == 0 else 246}, s[20:23], s{psg + rb // 2} offen{STF}", gst + 30 * rb, g1, [cv[-1]], tag="hst"))
        return st, sto
    def q_epi(base, u, g0, g1, gmove):
        cvs = []; mv = []
        for c in range(2):
            for qb in range(4):
                R = base + (c * 4 + qb) * 8
                for k in range(4):
                    o = Op(f"v_cvt_pk_bf16_f32 v{R + k}, v{R + 2 * k}, v{R + 2 * k + 1}", g0, g1)
                    cvs.append(o)
                    mv.append(Op(f"v_accvgpr_write_b32 a{Qreg(qb, 2 * u + c) + k}, v{R + k}", gmove, g1, [o]))
        return cvs, mv
    PH = [256 * k for k in range(9)]
    PE = 2048
    kvs = kv_epi("K", 0, 0, PH[1] + 6, PH[2] - 3, (PH[1] + 16, STP)) + kv_epi("K", 1, 64, PH[2] + 6, PH[4] - 3, (PH[2] + 16, STPK1)) + \
          kv_epi("V", 0, 128, PH[4] + 6, PH[5] - 3, (PH[4] + 12, STPV)) + kv_epi("V", 1, 0, PH[4] + 6, PH[6] - 3, (PH[4] + 12 + 8 * STPV, STPV))
    print("kv epi", schedule(S, [XL, kvs], PH[1], PH[6]), "last store", kvs[-1].g, "pub at", gB(KVPUB))
    assert kvs[-1].g < gB(KVPUB)
    st0, so0 = gu_epi(64, 100, PH[5] + 6, PH[7] - 3, PH[6])
    st1, so1 = gu_epi(128, 98, PH[6] + 6, PE - 2, PH[6] + 130)
    q0c, q0m = q_epi(0, 0, PH[7] + 6, PE - 2, PH[7] + 130)
    q1c, q1m = q_epi(64, 1, PE - 32 + 5, PE - 1, PE - 32 + 5)
    k0r = [Op(f"ds_read_b128 {ar(Fbuf(f))}, v240 offset:{f * 1024}", max(gB(29) + 1, PH[7] + 16 * f + 16), PE - 2, tag=("K0", f)) for f in range(12)]
    print("gu epi", schedule(S, [st0[0] + st1[0], st0[1] + st1[1], so0 + so1, q0c + q1c[:16], q0m + q1m[:16], k0r], PH[5], PE - 1))
    S.add_mem(gB(KVPUB) + 2, f"buffer_store_dword v249, v248, s[20:23], s3 offen{STF}", "pub")
    if DIAG and not DIAG2:
        S.add_first(512, stamp(6)); S.add_first(1024, stamp(7)); S.add_first(PE - 1, stamp(8))
    if DIAG2:
        for k, g in enumerate(DIAG2): S.add_first(g, stamp(2 + k))
    print(S.report("gemm")[:600])
    its = S.items()
    DROP = os.environ.get("DROP", "").split(",")
    def keep(i):
        if isinstance(i, Ins):
            tg = i.tag[0] if isinstance(i.tag, tuple) else i.tag
            if tg in DROP and tg: return False
        if isinstance(i, Wait):
            tags = i.tag if isinstance(i.tag, list) else [i.tag]
            tags = [t for t in tags if (t[0] if isinstance(t, tuple) else t) not in DROP]
            if not tags: return False
            i.tag = tags
        return True
    p.extend([i for i in its if keep(i)])
    gemm_items = list(p.items)
    n_gemm = len(resolve(gemm_items))
    sa, va = tail_setup()
    def gen_qk0(masked):
        mf = []; last = {}
        for kb in range(4):
            for t in range(4):
                for qb in range(4):
                    d = Sreg(0, qb, kb)
                    c = vr(d) if t else (0 if kb < 2 else vr(NEGM(qb)))
                    mf.append(f"{MF} {vr(d)}, {ar(Fbuf(kb * 4 + t))}, {ar(Qreg(qb, t))}, {c}")
                    last[(qb, kb)] = len(mf) - 1
        S = Sched16(mf)
        for f in range(1, 16): S.add_first(4 * f - 1, Wait("lgkm", ("K0", f)))
        for f in range(12, 16): S.add_mem(f - 12, f"ds_read_b128 {ar(Fbuf(f))}, v240 offset:{f * 1024}", ("K0", f))
        c1, m1 = q_epi(64, 1, 4, 9, 4)
        c1 = c1[16:]; m1 = m1[16:]
        su = ["v_and_b32 v241, 15, v254", "v_lshl_add_u32 v241, v255, 4, v241", "v_lshrrev_b32 v245, 4, v254", "v_lshlrev_b32 v245, 2, v245",
              "v_sub_u32 v241, v241, v245", "v_cvt_f32_i32 v241, v241", "v_add_f32 v241, 0.5, v241", f"v_mul_f32 v{VTMASK}, {f2u(BIG):#x}, v241"]
        SU = [Op(x, 0, 18) for x in su]
        su2 = [f"v_mov_b32 v{VCUR}, v240", f"v_add_u32 v{VPREV}, 0x10000, v240", "v_and_b32 v206, 31, v254", "v_lshlrev_b32 v206, 10, v206",
               "v_and_b32 v252, 0xfff, v252", "v_or_b32 v252, v252, v251"] + ([f"v_mov_b32 v{ONES + k}, 0x3f803f80" for k in range(4)] if not ONE1 else
                 [f"v_and_b32 v{ONES}, 15, v254", f"v_min_u32 v{ONES}, 1, v{ONES}", f"v_subrev_u32 v{ONES}, 1, v{ONES}", f"v_and_b32 v{ONES}, 0x3f803f80, v{ONES}"] +
                 [f"v_mov_b32 v{ONES + k}, v{ONES}" for k in range(1, 4)]) + va[:8] + va[-4:]
        SU += [Op(x, 0, 63) for x in su2]
        ss = [f"s_mov_b32 s{S_THR}, {f2u(LMAX if FAST else THR):#x}", "s_lshl_b32 s99, s30, 7", f"s_add_u32 s99, s99, {WS_FLAG + 0x20000:#x}", "s_lshl_b32 s98, s29, 10",
              "s_add_u32 s98, s98, s99", "s_mov_b32 s52, s49", f"s_add_u32 s53, s49, {3 * 32768 + 16384}", f"s_add_u32 s54, s49, {4 * 32768}",
              f"s_add_u32 s55, s49, {3 * 32768 + 16384}", "s_mov_b32 s4, s38", "s_mov_b32 s5, s39", "s_mov_b32 s6, 0x400000", "s_mov_b32 s7, 0x20000",
              "s_lshl_b32 s59, s2, 2", "s_add_u32 s59, s59, s28", "s_lshl_b32 s50, s59, 12", "s_mov_b32 s12, s96", "s_mov_b32 s13, s97",
              f"s_mov_b32 s14, {1792 * 1024}", "s_mov_b32 m0, s52"]
        SS = [Op(x, 0, 60) for x in ss]
        def mask_ops(kb, e0, dl):
            out = []
            if not masked: return out
            for qb in (2,):
                for r in range(4):
                    kk = 16 * kb + r
                    out.append(Op(f"v_subrev_f32 v{TMP[r % 2]}, {f2u(kk * BIG):#x}, v{VTMASK}", 19, dl))
                    out.append(Op(f"v_min_f32 v{Sreg(0, qb, kb) + r}, v{Sreg(0, qb, kb) + r}, v{TMP[r % 2]}", e0, dl))
            return out
        T0 = [128 + 2 * q for q in range(4)]
        dl = 29
        I = mask_ops(0, 20, dl)
        for q in range(4):
            b = Sreg(0, q, 0)
            I += [Op(f"v_max3_f32 v{T0[q]}, v{b}, v{b + 1}, v{b + 2}", 20, dl), Op(f"v_max_f32 v{T0[q]}, v{T0[q]}, v{b + 3}", 20, dl)]
        for sw in ("v_permlane32_swap_b32", "v_permlane16_swap_b32"):
            I += [Op(f"v_mov_b32 v{T0[q] + 1}, v{T0[q]}", 20, dl) for q in range(4)]
            I += [Op(f"{sw} v{T0[q]}, v{T0[q] + 1}", 20, dl) for q in range(4)]
            I += [Op(f"v_max_f32 v{T0[q]}, v{T0[q]}, v{T0[q] + 1}", 20, dl) for q in range(4)]
        if FAST: I += [Op(f"v_add_f32 v{T0[q]}, {f2u(SH):#x}, v{T0[q]}", 20, dl) for q in range(4)]
        for q in range(4): I += [Op(f"v_sub_f32 v{NEGM(q) + r}, 0, v{T0[q]}", 20, dl) for r in range(4)]
        post = []
        for kb in range(2):
            if kb: I += mask_ops(1, 36, 63)
            for q in range(4): I += [Op(f"v_sub_f32 v{Sreg(0, q, kb) + r}, v{Sreg(0, q, kb) + r}, v{T0[q]}", 36 if kb else 20, 63) for r in range(4)]
        first = True
        for kb in range(1, 4):
            ops = mask_ops(kb, 16 * kb + 20, 63) if kb > 1 else []
            for q in range(0 if FAST else 4):
                b = Sreg(0, q, kb)
                ops.append(Op(f"v_max_f32 v{MX[0]}, v{b}, v{b + 1}" if first else f"v_max3_f32 v{MX[0]}, v{MX[0]}, v{b}, v{b + 1}", 16 * kb + 20, 63)); first = False
                ops.append(Op(f"v_max3_f32 v{MX[0]}, v{MX[0]}, v{b + 2}, v{b + 3}", 16 * kb + 20, 63))
            if kb < 3: I += ops
            else: post = [o.t for o in ops]
        I += [Op(f"v_exp_f32 v{Sreg(0, 0, 0) + r}, v{Sreg(0, 0, 0) + r}", 36, 63) for r in range(NX)]
        print("qk0", schedule(S, [c1, m1, SU, SS, I], 0, 63), S.report("qk0")[:140])
        q = Prog()
        q.wait_lgkm(("K0", 0))
        q.extend(S.items())
        q.wait_vm(("kv", 1, 0))
        q("s_barrier")
        for ins in tail_reads(VCUR, 32768): q(ins)
        if not PFOG:
            for x in PFL[:PFM]: q(x.replace("s39", "s50"), "pf")
            q("s_mov_b32 s39, s50")
        for k in range(4): q(f"buffer_load_dwordx4 v240, s[16:19], s54 offen offset:{k * 1024}{KSC} lds", "kv")
        q("s_mov_b32 m0, s53")
        for x in post: q(x)
        if not FAST: q(f"v_cmp_lt_f32 vcc, s{S_THR}, v{MX[0]}")
        q(f"s_waitcnt lgkmcnt({NPRE - 1})")
        return [i.t for i in resolve(gemm_items + q.items)][n_gemm:]
    pro = [i.t for i in resolve(gemm_items)]

    stubs = []
    def check(site, par, dual):
        if FAST: return []
        stubs.append((site, par, dual))
        return [f"s_cbranch_vccnz L_stub_{site}", f"L_ret_{site}:"]
    def it_odd(name, tq, tp, masked, **kw):
        return gen_iter(name, tq, tp, 0, masked, 0, VCUR, 0, VPREV, 49152, VCUR, 32768, end_ops=check(name, 0, tq), **kw)
    def it_even(name, tq, tp, masked, extra_end=(), first_pv=False, **kw):
        if first_pv: kw["vmn"] = 8 if PFOG else 8 + PFM
        last = tq == "S1"
        return gen_iter(name, tq, tp, 1, masked, 1, VCUR, 32768, VCUR, 16384, VCUR if last else VPREV, 49152 if last else 0, first_pv=first_pv,
                        end_ops=check(name, 1, tq) + list(extra_end[2:]), swap=not last, mid_ops=extra_end[:2], **kw)
    seg = {}
    seg["G"] = pro
    for m in (False, True):
        nm = "m" if m else "u"
        seg["P" + nm] = gen_qk0(m) + check("qk0" + nm, 0, "D") + it_even("it0" + nm, "D1" if m else "D", "D", m, first_pv=True, salu=sa)
    seg["UDD"] = it_odd("uddA", "D", "D", False) + it_even("uddB", "D", "D", False, ["s_sub_u32 s47, s47, 1", "s_cmp_lg_u32 s47, 0", "s_cbranch_scc1 L_udd"])
    seg["UDDm"] = it_odd("uddmA", "D", "D", True) + it_even("uddmB", "D1", "D", True)
    fake = lambda tag, n: [Ins("buffer_load_dwordx4 v240, s[16:19], s55 offen lds", tag) for _ in range(n)]
    ee = gen_early_epi()
    seg["UDS"] = it_odd("udsA", "S", "D1", False) + it_even("udsB", "S", "S", False, xops=ee, vmn="need", raw=fake("need", 4) + fake("x", 12))
    seg["USS"] = it_odd("ussA", "S", "S", False) + it_even("ussB", "S", "S", False, ["s_sub_u32 s47, s47, 1", "s_cmp_lg_u32 s47, 0", "s_cbranch_scc1 L_uss"])
    g1, g2 = gp1(), gp2()
    vd = lambda adv: [(["s_mov_b32 m0, s53"] if q == 0 else [], f"buffer_load_dwordx4 v240, s[16:19], s55 offen offset:{q * 1024}{KSC} lds", "v") for q in range(4)]
    advv = ["s_add_u32 s55, s55, 0x8000", "s_add_u32 s53, s53, 0x8000", "s_and_b32 s53, s53, 0x1ffff"]
    n1, n2, n3 = PRE_SPLIT
    g1a = [(advv + list(g1[0][0]), g1[0][1], g1[0][2])] + g1[1:n1]
    xa, xb, xc, xd = vd(0) + g1a, vd(0) + g1[n1:n2], g1[n2:n3] + g2[:12], g1[n3:] + g2[12:]
    seg["USSp"] = it_odd("usspA", "S", "S", False, extra=xa, vmn="need", raw=fake("need", 4) + fake("x", 12)) + \
                  it_even("usspB", "S", "S", False, extra=xb, vmn="need", raw=fake("need", 4) + fake("x", 4 + len(xa)))
    seg["USSm"] = it_odd("ussmA", "S", "S", True, extra=xc, vmn="need", raw=fake("need", 4) + fake("x", len(xa) - 4 + len(xb))) + \
                  it_even("ussmB", "S1", "S", True, extra=xd, vmn="need", raw=fake("need", 4) + fake("x", len(xb) - 4 + len(xc)))
    w01 = chunk(0, a=False) + chunk(1, a=False)
    seg["UDSm"] = it_odd("udsmA", "S", "D1", True, extra=w01, vmn="need", raw=fake("need", 1)) + \
                  it_even("udsmB", "S1", "S", True, extra=g2, xops=ee[1:], vmn="need", raw=fake("need", 1) + fake("x", 8))
    seg["E"], tail_slow = gen_tail()
    seg["EE"] = []
    HC = ["v_cmp_ne_u32 vcc, 1, v207", "s_nop 0"]
    gpl = []
    for c in range(6):
        for pre, ins, tag in chunk(c, w=False): gpl += list(pre) + [ins]
    pf2 = [] if PFOG else PFL[PFM:]
    hpub = ["v_add_u32 v236, s58, v240", f"buffer_store_dword v249, v248, s[20:23], s98 offen{STF}"]

    out = list(seg["G"])
    out += ["s_cmp_eq_u32 s30, 0", "s_cbranch_scc1 L_pm"] + seg["Pu"]
    if DIAG and not DIAG2: out.append(stamp(9).t)
    out += (hpub + st4(2) if os.environ.get("HS") else st4(2) + hpub) + ["s_sub_u32 s47, s30, 1", "s_cmp_eq_u32 s47, 0", "s_cbranch_scc1 L_uddm"]
    out += [f".p2align {AL}", "L_udd:"] + seg["UDD"]
    out += ["L_uddm:"] + pf2 + st4(3) + seg["UDDm"]
    out += ["s_cmp_eq_u32 s30, 7", "s_cbranch_scc1 L_last7"]
    out += ["L_uds:"] + pf2 + st4(4) + seg["UDS"] + st4(5) + seg["EE"] + st4(6)
    out += ["s_lshl_b32 s47, s30, 1", "s_sub_u32 s47, 12, s47", "s_cmp_eq_u32 s47, 0", "s_cbranch_scc1 L_ussp"]
    out += [f".p2align {AL}", "L_uss:"] + seg["USS"]
    out += ["L_ussp:"] + st4(7) + ["s_waitcnt vmcnt(20)"] + HC + ["s_cbranch_vccnz L_hwait", "L_hok:"] + seg["USSp"] + seg["USSm"]
    out += ["L_fin:"] + st4(8) + seg["E"]
    out += ["L_f_end:", "s_endpgm"]
    out += ["L_pm:"] + seg["Pm"] + ([stamp(9).t] if DIAG and not DIAG2 else []) + hpub + ["s_branch L_uds"]
    out += ["L_last7:", HPOLL] + opf() + seg["UDSm"] + HC + ["s_cbranch_vccnz L_h2wait", "L_h2ok:"] + gpl + ["s_branch L_fin"]
    out += spin("h", HPOLL, HC[0]) + spin("h2", HPOLL, HC[0])
    out += tail_slow
    if FAST: out += gen_safe()
    out += ["L_xnwait:", "s_mov_b32 s44, 0x40000", "L_xnspin:", "s_sub_u32 s44, s44, 1", "s_cbranch_scc1 L_xnok", "s_sleep 2",
            XPOLL, "s_waitcnt vmcnt(0)",
            XCMP, "s_cbranch_vccnz L_xnspin", "s_branch L_xnok"]
    out += ["L_kvwait:", "s_mov_b32 s44, 0x40000", "L_kvspin:", "s_sub_u32 s44, s44, 1", "s_cbranch_scc1 L_kvok", "s_sleep 2",
            "buffer_load_dword v244, v243, s[20:23], s59 offen sc1", "s_waitcnt vmcnt(0)",
            "v_cmp_ne_u32 vcc, 1, v244", "s_cbranch_vccnz L_kvspin", "s_branch L_kvok"]
    for site, par, tq in stubs:
        out += [f"L_stub_{site}:", f"s_call_b64 s[62:63], L_rare_{par}{tq}", f"s_branch L_ret_{site}"]
    for par, tq in sorted({(par, tq) for _, par, tq in stubs}):
        out += [f"L_rare_{par}{tq}:"] + gen_rare(par, QSET[tq])
    for path in (["G", "Pu", "UDD", "UDD", "UDDm", "UDS", "EE", "USS", "USS", "USSp", "USSm", "E"], ["G", "Pm", "UDS"], ["UDDm", "UDSm", "EE", "E"]):
        tx = []
        for k in path: tx += seg[k]
        for e in lint(tx, "f")[:40]: print(e)
    return out

KVPUB = int(os.environ.get("KVPUB", "23"))
STPV = float(os.environ.get("STPV", "26"))
STP = float(os.environ.get("STP", "29"))
STPK1 = float(os.environ.get("STPK1", "50"))
VW0 = int(os.environ.get("VW0", "340"))
WP = int(os.environ.get("WP", "14"))
XNC = int(os.environ.get("XNC", "540"))
LCAP = int(os.environ.get("LCAP", "3"))
WSH = int(os.environ.get("WSH", "18"))
XP = float(os.environ.get("XP", "5"))
PFOG = int(os.environ.get("PFOG", "0"))
AL = int(os.environ.get("AL", "3"))
XBAR = int(os.environ.get("XBAR", "1"))
NTX = os.environ.get("NTX", " nt")
PFM = int(os.environ.get("PFM", "1"))
PFL = ["buffer_load_dword v253, v252, s[4:7], s39 offen", "buffer_load_dword v251, v252, s[12:15], s39 offen", "buffer_load_dword v250, v252, s[24:27], s39 offen"]
WQW = int(os.environ.get("WQW", "20"))
ONE1 = int(os.environ.get("ONE1", "0"))
GUZ = int(os.environ.get("GUZ", "1"))
CPF = int(os.environ.get("CPF", "1"))
if __name__ == "__main__":
    print(len(gen_f_kernel()))
```

```python
from asmlib import *
from sched16 import *
import math, os, re
MF = "v_mfma_f32_16x16x32_bf16"
KNAME = "recurrent_scan__compressed_kv_cla__glu_gated_geglu__prompt_kernel"
WSB = int(os.environ.get("WSB", "0"), 0)
WS_XN = WSB + 0x0
WS_KV = WSB + 0x200000
WS_ACT = WSB + 0x2200000
WS_PART = WSB + 0x4000000
WS_FLAG = WSB + 0x5000000
ACT_ROW = 184 * 1024
LOG2E = 1.4426950408889634
KSCALE = LOG2E / math.sqrt(128.0)
BIG = 2.0 ** 100
THR = float(os.environ.get("THR", "40"))
FAST = int(os.environ.get("FAST", "1"))
NX = int(os.environ.get("NX", "8")) if FAST else 0
SH = float(os.environ.get("SH", "64"))
LMAX = 2.0 ** float(os.environ.get("LMAXE", "60"))
STF = " sc1"
BYTEF = int(os.environ.get("BYTEF", "0"))
XPOLL = "buffer_load_dword v244, v243, s[4:7], 0 offen" + " sc1"
XSH = int(os.environ.get("XSH", "4"))
XCMP = "v_cmp_ne_u32 vcc, 0x01010101, v244" if BYTEF else "v_cmp_gt_u32 vcc, 16, v244"
XPL = int(os.environ.get("XPL", "418"))
VWP = int(os.environ.get("VWP", "14"))
GPW = int(os.environ.get("GPW", "7"))
ASC = os.environ.get("ASC", " sc1")
XSC = os.environ.get("XSC", " sc1")
KSC = os.environ.get("KSC", " sc1")
NT = os.environ.get("NT", " nt")
NTV = os.environ.get("NTV", "")
PFA = int(os.environ.get("PFA", "1"))
PFW = os.environ.get("PFW", "vgq")
NTD = os.environ.get("NTD", "")
NTA = " nt" if "a" in NTD else ""
ALEAD = int(os.environ.get("ALEAD", "2"))
EARLY = int(os.environ.get("EARLY", "0"))
OPF = int(os.environ.get("OPF", "0"))
WSB = int(os.environ.get("WSB", "0"), 0)
DIAG4 = bool(os.environ.get("DIAG4"))
st4 = lambda k: [stamp(k).t] if DIAG4 else []
LEADP = int(os.environ.get("LEADP", "14"))
GBS_ = int(os.environ.get("GBS_", "20"))
GBD_ = int(os.environ.get("GBD_", "22"))
DIAG3 = bool(os.environ.get("DIAG3"))
DIAG2 = [int(x) for x in os.environ.get("DIAG2", "").split(",") if x]
def vr(b, n=4): return f"v[{b}:{b + n - 1}]"
def ar(b, n=4): return f"a[{b}:{b + n - 1}]"
def srd(p, d, lo, size):
    p(f"s_mov_b32 s{d}, s{lo}")
    p(f"s_mov_b32 s{d + 1}, s{lo + 1}")
    p(f"s_mov_b32 s{d + 2}, {size:#x}")
    p(f"s_mov_b32 s{d + 3}, 0x20000")

def wave_reduce(p, regs_):
    steps = ["quad_perm:[1,0,3,2] row_mask:0xf bank_mask:0xf", "quad_perm:[2,3,0,1] row_mask:0xf bank_mask:0xf",
             "row_half_mirror row_mask:0xf bank_mask:0xf", "row_mirror row_mask:0xf bank_mask:0xf",
             "row_bcast:15 row_mask:0xa bank_mask:0xf", "row_bcast:31 row_mask:0xc bank_mask:0xf"]
    for st in steps:
        p("s_nop 1")
        for r in regs_: p(f"v_add_f32_dpp v{r}, v{r}, v{r} {st}")
    p("s_nop 1")
def round_bf16(p, dst, src):
    p(f"v_cvt_pk_bf16_f32 v{dst}, v{src}, v{src}")
    p(f"v_and_b32 v{dst}, 0xffff0000, v{dst}")

def emit_ln(p):
    for r in range(2):
        for k in range(4):
            p(f"v_lshlrev_b32 v{8 + 8 * r + 2 * k}, 16, v{4 * r + k}")
            p(f"v_and_b32 v{9 + 8 * r + 2 * k}, 0xffff0000, v{4 * r + k}")
    for r in range(2):
        b = 8 + 8 * r
        p(f"v_add_f32 v{24 + r}, v{b}, v{b + 1}")
        for k in range(2, 8): p(f"v_add_f32 v{24 + r}, v{24 + r}, v{b + k}")
    wave_reduce(p, [24, 25])
    p("v_readlane_b32 s58, v24, 63")
    p("v_readlane_b32 s59, v25, 63")
    p(f"v_mov_b32 v30, {f2u(1.0 / 512):#x}")
    p("s_nop 1")
    for r in range(2): p(f"v_mul_f32 v{26 + r}, s{58 + r}, v30")
    for r in range(2):
        b = 8 + 8 * r
        for k in range(8): p(f"v_sub_f32 v{32 + k}, v{b + k}, v{26 + r}")
        p(f"v_mul_f32 v{24 + r}, v32, v32")
        for k in range(1, 8): p(f"v_fmac_f32 v{24 + r}, v{32 + k}, v{32 + k}")
    wave_reduce(p, [24, 25])
    p("v_readlane_b32 s58, v24, 63")
    p("v_readlane_b32 s59, v25, 63")
    p("s_nop 1")
    for r in range(2):
        p(f"v_mul_f32 v{28 + r}, s{58 + r}, v30")
        round_bf16(p, 28 + r, 28 + r)
        p(f"v_add_f32 v{28 + r}, {f2u(1e-5):#x}, v{28 + r}")
        round_bf16(p, 28 + r, 28 + r)
        p(f"v_sqrt_f32 v{28 + r}, v{28 + r}")
        p("s_nop 0")
        round_bf16(p, 28 + r, 28 + r)
        p(f"v_rcp_f32 v{28 + r}, v{28 + r}")
        round_bf16(p, 26 + r, 26 + r)
    for r in range(2):
        b = 8 + 8 * r
        for k in range(8): p(f"v_sub_f32 v{b + k}, v{b + k}, v{26 + r}")
        for k in range(4): p(f"v_cvt_pk_bf16_f32 v{32 + k}, v{b + 2 * k}, v{b + 2 * k + 1}")
        for k in range(4):
            p(f"v_lshlrev_b32 v{b + 2 * k}, 16, v{32 + k}")
            p(f"v_and_b32 v{b + 2 * k + 1}, 0xffff0000, v{32 + k}")
        for k in range(8): p(f"v_mul_f32 v{b + k}, v{b + k}, v{28 + r}")
        for k in range(4): p(f"v_cvt_pk_bf16_f32 v{40 + 4 * r + k}, v{b + 2 * k}, v{b + 2 * k + 1}")

def ln_ops(g0, g1):
    p = Prog(); emit_ln(p)
    ops = []; lag = False
    for it in p.items:
        t = it.t
        if t.startswith("s_nop"): lag = True; continue
        t = re.sub(r"\bv(\d+)\b", lambda m: "v%d" % (int(m.group(1)) + 176 if int(m.group(1)) < 8 else int(m.group(1)) + 128), t)
        ops.append(Op(t, g0, g1, [ops[-1]] if lag else [], lag=2)); lag = False
    return ops

def Sreg(par, qb, kb): return par * 64 + qb * 16 + kb * 4
def Preg(qb, s): return 128 + qb * 8 + s * 4
def NEGM(qb): return 160 + 4 * qb
def LACC(qb): return 176 + 4 * qb
ONES = 192
MX = [196, 197]; VTM = 198; VTMASK = 199; VCUR, VPREV = 200, 201; TMP = [202, 203, 204, 205]
def Qreg(qb, t): return (t // 2) * 64 + qb * 8 + (t % 2) * 4
def Oreg(qb, db): return [32, 96, 128, 160][qb] + db * 4
def Fbuf(f): return 192 + (f % 16) * 4
S_THR = 61
NPRE = int(os.environ.get("NPRE", "8"))

def tail_reads(base_reg, off):
    return [f"ds_read_b128 {ar(Fbuf(f))}, v{base_reg} offset:{off + f * 1024}" for f in range(NPRE)]

QSET = {'D': [0, 1, 2, 3], 'S': [0, 1], 'D1': [0, 1, 3], 'S1': [1]}
def gen_iter(name, tq, tp, parq, masked, odd_q, kreg, koff, vreg, voff, nreg, noff, first_pv=False, end_ops=(), swap=False, mid_ops=(), vmn=16, extra=None, raw=False, salu=(), xops=()):
    qq = QSET[tq]
    qp = QSET[tp]
    parp = 1 - parq
    mf = []; use = {}; lastq = {}; lastuse = {}
    for kb in range(4):
        for t in range(4):
            f = kb * 4 + t
            use[f] = len(mf)
            for qb in qq:
                d = Sreg(parq, qb, kb)
                mf.append(f"{MF} {vr(d)}, {ar(Fbuf(f))}, {ar(Qreg(qb, t))}, {vr(NEGM(qb)) if t == 0 else vr(d)}")
                lastq[(qb, kb)] = len(mf) - 1
            lastuse[f] = len(mf) - 1
    firstp = {}
    for s in range(2):
        for db in range(8):
            f = 16 + s * 8 + db
            use[f] = len(mf)
            for qb in qp:
                o = Oreg(qb, db)
                firstp.setdefault((qb, s), len(mf))
                mf.append(f"{MF} {ar(o)}, {ar(Fbuf(f))}, {vr(Preg(qb, s))}, {0 if (first_pv and s == 0) else ar(o)}")
            lastuse[f] = len(mf) - 1
        for qb in qp:
            mf.append(f"{MF} {vr(LACC(qb))}, {vr(ONES)}, {vr(Preg(qb, s))}, {0 if (first_pv and s == 0) else vr(LACC(qb))}")
    n = len(mf)
    S = Sched16(mf)
    gB = n - (GBS_ if len(qp) == 2 else GBD_)
    LEAD = LEADP
    for f in range(32):
        tag = ("F", "n", f) if f < NPRE else ("F", "c", f)
        if use[f] > 0: S.add_first(use[f] - 1, Wait("lgkm", tag))
    if isinstance(vmn, int): S.add_first(gB, Ins(f"s_waitcnt vmcnt({vmn}) lgkmcnt(0)"))
    else:
        S.add_first(gB, Ins("s_waitcnt lgkmcnt(0)")); S.add_first(gB + 1, Wait("vm", vmn))
    S.add_first(gB + 1, "s_barrier")
    S.add_first(n - 1, Wait("lgkm", ("F", "x", 0)))
    R = []
    todo = list(range(NPRE, 32))
    for k, f in enumerate(todo):
        e = lastuse[f - 16] if f >= 16 else 0
        dl = min(use[f] - LEAD + 4, gB - 5 - (31 - f))
        e = max(e, min(use[f] - LEAD - 8, dl - 4), 0)
        dl = max(dl, e)
        assert dl < use[f] - 1, (name, f, dl, e)
        if f < 16: ins = f"ds_read_b128 {ar(Fbuf(f))}, v{kreg} offset:{koff + f * 1024}"
        else: ins = f"ds_read_b128 {ar(Fbuf(f))}, v{vreg} offset:{voff + (f - 16) * 1024}"
        R.append(Op(ins, max(e, 0), max(dl, 0), tag=("F", "c", f)))
    for f, ins in enumerate(tail_reads(nreg, noff)):
        R.append(Op(ins, max(gB + 1, lastuse[f + 16]), min(n - 2, gB + 3 + 2 * f), tag=("F", "x", f)))
    D = []
    span = gB - 8
    for q in range(4):
        D.append(Op(f"buffer_load_dwordx4 v240, s[16:19], s55 offen offset:{q * 1024}{KSC} lds", 2 + q * span // 4, 2 + (q + 1) * span // 4 - 1, tag="kv"))
    for x in ["s_add_u32 s54, s54, 0x8000", "s_add_u32 s52, s52, 0x8000", "s_and_b32 s52, s52, 0x1ffff", "s_mov_b32 m0, s52"]:
        D.append(Op(x, 0, gB))
    tl = n - 3 - (gB + 1)
    for q in range(4):
        D.append(Op(f"buffer_load_dwordx4 v240, s[16:19], s54 offen offset:{q * 1024}{KSC} lds", gB + 1 + q * tl // 4, gB + 1 + (q + 1) * tl // 4, tag="kv"))
    D.append(Op("s_mov_b32 m0, s53", 0, n - 1))
    if extra is not None:
        D = []
        nv = len(extra)
        for i, (pre, ins, tag) in enumerate(extra):
            for x in pre: D.append(Op(x, 0, n - 3))
            D.append(Op(ins, 1 + i * (n - 6) // nv, 1 + (i + 1) * (n - 6) // nv + 2, tag=tag, deps=[D[-1]] if pre else []))
    E = []; C = []
    for s in range(2):
        for qb in qp:
            b = Sreg(parp, qb, 2 * s)
            dl = firstp[(qb, s)] - 2
            es = [Op(f"v_exp_f32 v{b + r}, v{b + r}", 0, dl - 1) for r in range(8)]
            done = NX if (s == 0 and qb == qp[0]) else 0
            E += es[done:]
            C += [Op(f"v_cvt_pk_bf16_f32 v{Preg(qb, s) + k}, v{b + 2 * k}, v{b + 2 * k + 1}", 0, dl, [e for i, e in enumerate(es) if i // 2 == k and i >= done]) for k in range(4)]
    M = []
    mins = {}
    vals = []
    mq = [qq[-1] if odd_q else qq[-2]]
    first = True
    for kb in range(4):
        for qb in qq:
            b = Sreg(parq, qb, kb)
            e0 = lastq[(qb, kb)] + (5 if len(qq) > 1 else 8)
            if masked and qb in mq:
                for r in range(4):
                    kk = 16 * kb + r
                    tm = TMP[r % 2]
                    M.append(Op(f"v_subrev_f32 v{tm}, {f2u(kk * BIG):#x}, v{VTMASK}", 0, n - 3))
                    M.append(Op(f"v_min_f32 v{b + r}, v{b + r}, v{tm}", e0, n - 3))
                    mins[b + r] = M[-1]
            if FAST: continue
            if first:
                M.append(Op(f"v_max_f32 v{MX[0]}, v{b}, v{b + 1}", e0, n - 3)); first = False
            else:
                M.append(Op(f"v_max3_f32 v{MX[0]}, v{MX[0]}, v{b}, v{b + 1}", e0, n - 3))
            M.append(Op(f"v_max3_f32 v{MX[0]}, v{MX[0]}, v{b + 2}, v{b + 3}", e0, n - 3))
    if not FAST: M.append(Op(f"v_cmp_lt_f32 vcc, s{S_THR}, v{MX[0]}", 0, n - 2))
    for r in range(NX):
        b = Sreg(parq, qq[0], 0) + r
        E.append(Op(f"v_exp_f32 v{b}, v{b}", lastq[(qq[0], r // 4)] + 8, n - 1, [mins[b]] if b in mins else []))
    X = []
    if swap:
        X = [Op(f"v_xor_b32 v{VCUR}, 0x10000, v{VCUR}", gB, n - 1), Op(f"v_xor_b32 v{VPREV}, 0x10000, v{VPREV}", gB, n - 1, [R[-1]])]
    XO = []
    for i, x in enumerate(xops):
        prev_trans = XO and XO[-1].t.startswith(TRANS)
        XO.append(Op(x, 5 + (i * (n - 12)) // len(xops), min(n - 2, 5 + (i * (n - 12)) // len(xops) + 4), tag="xo"))
    k = schedule(S, [R, D, E, C, M, X, XO], 0, n - 1, name=name)
    if extra is None:
        g = D[7].g + 1
        for x in ["s_add_u32 s55, s55, 0x8000", "s_add_u32 s53, s53, 0x8000", "s_and_b32 s53, s53, 0x1ffff"] + list(mid_ops):
            while S.first[g]: g += 1
            S.add_first(g, x); g += 1
        assert g <= D[-1].g, (name, g, D[-1].g)
    g = 0
    for x in salu:
        while S.first[g]: g += 1
        for y in (x if isinstance(x, list) else [x]): S.add_first(g, y)
        g += 1
    for x in end_ops: S.add_last(n - 1, x)
    print(S.report(f"{name}(k={k})"))
    pre = [Ins(f"ds_read_b128 {ar(Fbuf(f))}, v0", ("F", "n", f)) for f in range(NPRE)] + [Wait("lgkm", ("F", "n", 0))]
    if raw: pre = list(raw) + pre
    return [i.t for i in resolve(S.items(), pre)]

def allreduce4(p, op, src, t0, t1):
    p(f"v_mov_b32 v{t0}, v{src}")
    p(f"v_mov_b32 v{t1}, v{src}")
    p("s_nop 1")
    p(f"v_permlane32_swap_b32 v{t0}, v{t1}")
    p("s_nop 1")
    p(f"{op} v{t0}, v{t0}, v{t1}")
    p(f"v_mov_b32 v{t1}, v{t0}")
    p("s_nop 1")
    p(f"v_permlane16_swap_b32 v{t0}, v{t1}")
    p("s_nop 1")
    p(f"{op} v{t0}, v{t0}, v{t1}")

def rowmax(p, par, qb):
    b = Sreg(par, qb, 0)
    p(f"v_max3_f32 v{MX[1]}, v{b}, v{b + 1}, v{b + 2}")
    for k in range(3, 15, 2): p(f"v_max3_f32 v{MX[1]}, v{MX[1]}, v{b + k}, v{b + k + 1}")
    p(f"v_max_f32 v{MX[1]}, v{MX[1]}, v{b + 15}")
    allreduce4(p, "v_max_f32", MX[1], TMP[0], TMP[1])

def gen_rare(par, qbs):
    p = Prog()
    p("s_nop 15")
    for qb in qbs:
        rowmax(p, par, qb)
        p(f"v_max_f32 v{TMP[0]}, 0, v{TMP[0]}")
        p(f"v_sub_f32 v{TMP[1]}, 0, v{TMP[0]}")
        p(f"v_exp_f32 v{TMP[1]}, v{TMP[1]}")
        for r in range(4): p(f"v_sub_f32 v{NEGM(qb) + r}, v{NEGM(qb) + r}, v{TMP[0]}")
        for r in range(16): p(f"v_sub_f32 v{Sreg(par, qb, 0) + r}, v{Sreg(par, qb, 0) + r}, v{TMP[0]}")
        for r in range(4): p(f"v_mul_f32 v{LACC(qb) + r}, v{LACC(qb) + r}, v{TMP[1]}")
        for r in range(0, 32, 2):
            a = Oreg(qb, 0) + r
            p(f"v_accvgpr_read_b32 v{TMP[2]}, a{a}")
            p(f"v_accvgpr_read_b32 v{TMP[3]}, a{a + 1}")
            p(f"v_mul_f32 v{TMP[2]}, v{TMP[2]}, v{TMP[1]}")
            p(f"v_mul_f32 v{TMP[3]}, v{TMP[3]}, v{TMP[1]}")
            p(f"v_accvgpr_write_b32 a{a}, v{TMP[2]}")
            p(f"v_accvgpr_write_b32 a{a + 1}, v{TMP[3]}")
    p("s_nop 1")
    p("s_setpc_b64 s[62:63]")
    return [i.t for i in p.items]


GPUB = int(os.environ.get("GPUB", "16"))
OB = int(os.environ.get("OB", "2"))
GB2 = int(os.environ.get("GB2", "1"))
GPOLL = int(os.environ.get("GPOLL", "20"))
CPUB = int(os.environ.get("CPUB", "2"))
CTXPF = int(os.environ.get("CTXPF", "0"))
PUB0 = int(os.environ.get("PUB0", "8"))
PUBP = int(os.environ.get("PUBP", "12"))
TP = float(os.environ.get("TP", "4.25"))
TP0 = float(os.environ.get("TP0", "4"))
LST = int(os.environ.get("LST", "8"))
LSP = int(os.environ.get("LSP", "10"))
CPOLL = int(os.environ.get("CPOLL", "100"))
CCHK = int(os.environ.get("CCHK", "136"))
def spin(name, load, cmp):
    return [f"L_{name}wait:", "s_mov_b32 s44, 0x40000", f"L_{name}spin:", "s_sub_u32 s44, s44, 1", f"s_cbranch_scc1 L_{name}ok", "s_sleep 1",
            load, "s_waitcnt vmcnt(0)", cmp, f"s_cbranch_vccnz L_{name}spin", f"s_branch L_{name}ok"]

def o_epi(qb, scr, pk):
    out = []
    for t in range(4):
        R = scr(t); P = pk(t)
        a = Oreg(qb, 2 * t)
        L = LACC(qb)
        rd = [f"v_accvgpr_read_b32 v{R + k}, a{a + k}" for k in range(8)]
        if t: ops = rd
        elif not ONE1: ops = [f"v_rcp_f32 v{TMP[qb]}, v{L}"] + rd
        else:
            ops = [f"v_mov_b32 v{L + 1}, v{L}"] + rd[:2] + [f"v_permlane32_swap_b32 v{L}, v{L + 1}"] + rd[2:3] + [f"v_mov_b32 v{L + 1}, v{L}"] + rd[3:5] + \
                  [f"v_permlane16_swap_b32 v{L}, v{L + 1}"] + rd[5:7] + [f"v_rcp_f32 v{TMP[qb]}, v{L}"] + rd[7:]
        ops += [f"v_mul_f32 v{R + k}, v{R + k}, v{TMP[qb]}" for k in range(8)]
        ops += [f"v_cvt_pk_bf16_f32 v{P + k}, v{R + 2 * k}, v{R + 2 * k + 1}" for k in range(4)]
        out.append((ops, f"buffer_store_dwordx4 {vr(P)}, v{240 if qb % 2 == 0 else 246}, s[20:23], s{100 + qb // 2} offen offset:{t * 1024}{STF}"))
    return out

NK = 46; NC = 23
SL = [8, 9, 0, 1, 2, 3, 4, 5]
def wofs(n): return SL[(n // 2) % 8] * 16384 + (n % 2) * 8192
def areg(n): return 128 + (n % 16) * 8
def areg2(n, tb): return vr(96 + (n - 8) * 8 + 4 * tb) if 8 <= n < 12 else ar(areg(n) + 4 * tb)
def w_ops(n):
    gp = n < 14
    j = n if gp else n - 14
    pre = [f"s_add_u32 m0, s{[51, 56, 50][wofs(n) >> 16]}, {wofs(n) & 0xffff if wofs(n) < 0x20000 else wofs(n)}", f"s_add_u32 s58, s{48 if gp else 49}, {j * 32768}"]
    wsrd = "s[12:15]" if gp else "s[8:11]"
    return [(pre, f"buffer_load_dwordx4 v242, {wsrd}, s58 offen lds", ("cw", n // 2)),
            ([], f"buffer_load_dwordx4 v243, {wsrd}, s58 offen offset:1024 lds", ("cw", n // 2))]
def a_ops(n):
    gp = n < 14
    j = n if gp else n - 14
    pre = [f"s_add_u32 s59, s{64 if gp else 65}, {j * 1024}"] if j % 2 == 0 else []
    return [(pre, f"buffer_load_dwordx4 {areg2(n, 0)}, v240, s[20:23], s59 offen offset:{(j % 2) * 1024}{ASC}", ("ca", n // 2)),
            ([], f"buffer_load_dwordx4 {areg2(n, 1)}, v246, s[20:23], s59 offen offset:{(j % 2) * 1024}{ASC}", ("ca", n // 2))]
def chunk(ch, w=True, a=True):
    return (w_ops(2 * ch) + w_ops(2 * ch + 1) if w else []) + (a_ops(2 * ch) + a_ops(2 * ch + 1) if a else [])
KEEP = 6 * 16384
GB = [36, 37, 41]

def tail_setup():
    sa = ["s_lshr_b32 s35, s34, 1", "s_sub_u32 s31, 15, s30", ["s_bitcmp1_b32 s34, 0", "s_cselect_b32 s31, s31, s30"], "s_and_b32 s45, s29, 3",
          "s_lshl_b32 s46, s31, 3", "s_add_u32 s46, s46, s28", f"s_mul_i32 s46, s46, {ACT_ROW}",
          f"s_add_u32 s46, s46, {WS_ACT:#x}", f"s_mul_i32 s47, s35, {14 * 1024}", "s_add_u32 s64, s46, s47", f"s_add_u32 s64, s64, {128 * 1024}",
          "s_lshl_b32 s47, s35, 15", "s_add_u32 s65, s46, s47",
          "s_lshl_b32 s46, s45, 8", "s_lshl_b32 s47, s28, 13", "s_add_u32 s46, s46, s47", f"s_mul_i32 s47, s35, {14 * 32 * 1024}",
          "s_add_u32 s48, s46, s47", "s_lshl_b32 s47, s35, 20", "s_add_u32 s49, s46, s47", "s_lshl_b32 s50, s28, 11",
          "s_mov_b32 s8, s4", "s_mov_b32 s9, s5", "s_mov_b32 s38, 0", "s_mov_b32 s12, s96", "s_mov_b32 s13, s97", f"s_mov_b32 s14, {1792 * 1024}",
          "s_and_b32 s46, s34, 1", "s_lshl_b32 s46, s46, 2", "s_add_u32 s3, s99, s46", "s_lshl_b32 s46, s35, 13", "s_add_u32 s3, s3, s46",
          "s_lshl_b32 s51, s31, 2", "s_add_u32 s51, s51, s45", "s_lshl_b32 s56, s51, 18", f"s_add_u32 s56, s56, {WS_PART:#x}",
          "s_lshl_b32 s46, s28, 16", "s_lshl_b32 s47, s35, 13", "s_add_u32 s40, s56, s46", "s_add_u32 s40, s40, s47",
          "s_lshl_b32 s46, s35, 16", "s_add_u32 s56, s56, s46", "s_add_u32 s56, s56, s50", f"s_mov_b32 s58, {KEEP + 16384 - 0x10000}",
          ["s_cmp_eq_u32 s28, s35", "s_cselect_b32 s40, 0x7ff00000, s40", f"s_cselect_b32 s58, {KEEP - 0x10000}, s58"]]
    for k in range(3): sa += [f"s_add_u32 s46, s35, {k + 1}", "s_and_b32 s46, s46, 3", "s_lshl_b32 s46, s46, 13", f"s_add_u32 s{GB[k]}, s56, s46"]
    sa += ["s_lshl_b32 s94, s51, 9", f"s_add_u32 s94, s94, {WS_FLAG:#x}", "s_lshl_b32 s46, s35, 7", "s_add_u32 s95, s94, s46",
           "s_lshl_b32 s46, s31, 17", "s_lshl_b32 s47, s35, 14", "s_add_u32 s46, s46, s47", "s_lshl_b32 s47, s45, 8", "s_add_u32 s46, s46, s47",
           "s_lshl_b32 s47, s28, 6", "s_add_u32 s57, s46, s47", "s_lshl_b32 s46, s29, 12", "s_add_u32 s100, s46, s32", "s_add_u32 s101, s46, s33",
           "s_and_b32 s32, s30, 1", "s_lshl_b32 s32, s32, 16", "s_xor_b32 s33, s32, 0x10000", "s_add_u32 s51, s50, s32", "s_add_u32 s56, s50, s33",
           "s_add_u32 s58, s58, s33"]
    va = ["v_lshrrev_b32 v244, 4, v254", "v_and_b32 v245, 15, v254", "v_lshlrev_b32 v243, 1, v244", "v_xor_b32 v245, v245, v243",
          "v_lshlrev_b32 v244, 10, v244", "v_lshl_add_u32 v242, v245, 4, v244", "v_xor_b32 v243, 0x80, v242", f"v_add_u32 v243, {4096 - 1024}, v243",
          "v_lshrrev_b32 v244, 2, v254", "v_and_b32 v245, 7, v244", "v_lshlrev_b32 v244, 8, v244", "v_and_b32 v241, 3, v254", "v_lshl_add_u32 v244, v241, 3, v244",
          "v_add_u32 v244, s32, v244", "s_sub_u32 s46, 0x20000, s32"]
    for c in range(8):
        va += [f"v_xor_b32 v241, {c}, v245", f"v_lshl_add_u32 v{208 + c}, v241, 5, v244", f"v_xor_b32 v{216 + c}, 0x10000, v{208 + c}", f"v_add_u32 v{224 + c}, s46, v{208 + c}"]
    va += ["v_lshl_add_u32 v237, v255, 11, v240", f"v_add_u32 v237, {KEEP - 0x10000}, v237", "v_add_u32 v237, s33, v237",
           "v_and_b32 v247, 3, v254", "v_lshlrev_b32 v247, 7, v247", "v_and_b32 v244, 15, v254", "v_lshlrev_b32 v244, 10, v244",
           "v_lshrrev_b32 v245, 4, v254", "v_lshl_add_u32 v238, v245, 3, v244", "v_add_u32 v239, 0x10000, v238"]
    va += [f"v_mov_b32 v{232 + k}, -1" for k in range(4)]
    return sa, va
HPOLL = "buffer_load_dword v207, v206, s[20:23], s99 offen sc1"
def gp1(): return chunk(0) + chunk(1) + sum([chunk(c, w=False) for c in range(2, 6)], [])
def gp2(): return sum([chunk(c, a=False) for c in range(2, 7)], [])
PRE_SPLIT = (12, 24, 28)
def gpre(): return gp1()[:PRE_SPLIT[2]] + gp2()[:12] + gp1()[PRE_SPLIT[2]:] + gp2()[12:]

def opf():
    if not OPF: return []
    return ["s_lshr_b32 s46, s2, 3", "s_lshl_b32 s46, s46, 2", "s_add_u32 s46, s46, s28", "v_lshlrev_b32 v241, 7, v254",
            "s_lshl_b32 s59, s35, 20", "s_lshl_b32 s46, s46, 13", "s_add_u32 s59, s59, s46",
            "buffer_load_dword v251, v241, s[8:11], s59 offen"]

def lchk(qa, qb_, first):
    if not FAST: return []
    return [f"v_cmp_ngt_f32 vcc, s{S_THR}, v{LACC(qa)}", "v_nop", "s_mov_b64 s[62:63], vcc" if first else "s_or_b64 s[62:63], s[62:63], vcc",
            f"v_cmp_ngt_f32 vcc, s{S_THR}, v{LACC(qb_)}", "v_nop", "s_or_b64 s[62:63], s[62:63], vcc"]

def gen_early_epi(safe=False):
    out = lchk(2, 3, True)
    k8 = 0
    for qb in (2, 3):
        base = 32 if qb == 2 else 96
        for ops, st in o_epi(qb, lambda t: base + 8 * t, lambda t: base + 8 * t):
            out += ops[:10]
            if k8 % 4 == 0: out.append(f"s_add_u32 s60, s40, {32768 + (k8 // 4) * 4096}")
            out.append(f"buffer_store_dwordx4 v[232:235], v240, s[20:23], s60 offen offset:{(k8 % 4) * 1024} sc1")
            out += ops[10:] + [st]
            k8 += 1
    return [HPOLL] + out


def gen_safe():
    p = Prog()
    M_ = [NEGM(q) for q in range(4)]; TQ = [NEGM(q) + 1 for q in range(4)]
    p("s_waitcnt vmcnt(0) lgkmcnt(0)")
    p("s_nop 15")
    p("s_barrier")
    for q in range(4):
        for r in range(32): p(f"v_accvgpr_write_b32 a{Oreg(q, 0) + r}, 0")
        for r in range(4): p(f"v_mov_b32 v{LACC(q) + r}, 0")
        p(f"v_mov_b32 v{M_[q]}, {f2u(-2.0 ** 120):#x}")
    p("s_sub_u32 s46, 15, s30")
    p("s_lshl_b32 s47, s46, 7")
    p("s_lshl_b32 s52, s30, 7")
    for q in range(4):
        p(f"v_cvt_f32_u32 v{TMP[0]}, s{47 if q < 2 else 52}")
        if q & 1: p(f"v_add_f32 v{TMP[0]}, {f2u(64.0):#x}, v{TMP[0]}")
        p(f"v_mul_f32 v{TMP[0]}, {f2u(BIG):#x}, v{TMP[0]}")
        p(f"v_add_f32 v{TQ[q]}, v{VTMASK}, v{TMP[0]}")
    p(f"v_add_u32 v{VCUR}, s33, v240")
    p("s_lshl_b32 s47, s46, 1")
    p("s_add_u32 s47, s47, 2")
    p("s_lshl_b32 s54, s28, 12")
    p("s_add_u32 s52, s54, s33")
    p("s_add_u32 s53, s52, 49152")
    p("s_add_u32 s52, s52, 32768")
    p.label("L_safe_loop")
    p("s_mov_b32 m0, s52")
    p("s_add_u32 s55, s54, 16384")
    for k in range(4): p(f"buffer_load_dwordx4 v240, s[16:19], s54 offen offset:{k * 1024} sc1 lds")
    p("s_mov_b32 m0, s53")
    p("s_nop 0")
    for k in range(4): p(f"buffer_load_dwordx4 v240, s[16:19], s55 offen offset:{k * 1024} sc1 lds")
    p("s_waitcnt vmcnt(0)")
    p("s_barrier")
    for f in range(16): p(f"ds_read_b128 {ar(Fbuf(f))}, v{VCUR} offset:{32768 + f * 1024}")
    p("s_waitcnt lgkmcnt(0)")
    for kb in range(4):
        for t in range(4):
            for q in range(4):
                d = Sreg(0, q, kb)
                p(f"{MF} {vr(d)}, {ar(Fbuf(kb * 4 + t))}, {ar(Qreg(q, t))}, {vr(d) if t else 0}")
    for f in range(16): p(f"ds_read_b128 {ar(Fbuf(f))}, v{VCUR} offset:{49152 + f * 1024}")
    for q in range(4):
        b = Sreg(0, q, 0)
        for r in range(16):
            p(f"v_subrev_f32 v{TMP[r % 2]}, {f2u((16 * (r // 4) + r % 4) * BIG):#x}, v{TQ[q]}")
            p(f"v_min_f32 v{b + r}, v{b + r}, v{TMP[r % 2]}")
        p(f"v_subrev_f32 v{TQ[q]}, {f2u(64 * BIG):#x}, v{TQ[q]}")
        rowmax(p, 0, q)
        p(f"v_max_f32 v{TMP[0]}, v{TMP[0]}, v{M_[q]}")
        p(f"v_sub_f32 v{TMP[1]}, v{M_[q]}, v{TMP[0]}")
        p(f"v_exp_f32 v{TMP[1]}, v{TMP[1]}")
        p(f"v_mov_b32 v{M_[q]}, v{TMP[0]}")
        for r in range(16): p(f"v_sub_f32 v{b + r}, v{b + r}, v{TMP[0]}")
        for r in range(16): p(f"v_exp_f32 v{b + r}, v{b + r}")
        for r in range(4): p(f"v_mul_f32 v{LACC(q) + r}, v{LACC(q) + r}, v{TMP[1]}")
        for k in range(8): p(f"v_cvt_pk_bf16_f32 v{Preg(q, 0) + k}, v{b + 2 * k}, v{b + 2 * k + 1}")
        for r in range(0, 32, 2):
            a = Oreg(q, 0) + r
            p(f"v_accvgpr_read_b32 v{TMP[2]}, a{a}")
            p(f"v_accvgpr_read_b32 v{TMP[3]}, a{a + 1}")
            p(f"v_mul_f32 v{TMP[2]}, v{TMP[2]}, v{TMP[1]}")
            p(f"v_mul_f32 v{TMP[3]}, v{TMP[3]}, v{TMP[1]}")
            p(f"v_accvgpr_write_b32 a{a}, v{TMP[2]}")
            p(f"v_accvgpr_write_b32 a{a + 1}, v{TMP[3]}")
    p("s_waitcnt lgkmcnt(0)")
    p("s_barrier")
    for s in range(2):
        for db in range(8):
            for q in range(4): p(f"{MF} {ar(Oreg(q, db))}, {ar(Fbuf(s * 8 + db))}, {vr(Preg(q, s))}, {ar(Oreg(q, db))}")
        for q in range(4): p(f"{MF} {vr(LACC(q))}, {vr(ONES)}, {vr(Preg(q, s))}, {vr(LACC(q))}")
    p("s_add_u32 s54, s54, 32768")
    p("s_sub_u32 s47, s47, 1")
    p("s_cmp_lg_u32 s47, 0")
    p("s_cbranch_scc1 L_safe_loop")
    p("s_nop 15")
    p(f"s_mov_b32 s{S_THR}, 0x7f800000")
    for x in gen_early_epi(True)[1:]: p(x)
    for r in range(16): p(f"v_mov_b32 v{Sreg(1, 1, 0) + r}, {f2u(-2.0 ** 100) if r >= NX else 0:#x}")
    for pre, ins, tag in gpre():
        for x in pre: p(x)
        p(ins)
    p("s_mov_b32 s38, 1")
    p("s_branch L_fin")
    tx = [i.t for i in p.items]
    a = tx.index("L_safe_loop:"); b = tx.index("s_cbranch_scc1 L_safe_loop")
    for e in lint(tx[:b] + tx[a + 1:], "safe")[:20]: print(e)
    return ["L_safe:", "s_cmp_eq_u32 s38, 1", "s_cbranch_scc1 L_safe_ret"] + tx

def tail_pre():
    pa = [tag for pre, ins, tag in gpre()]
    pb = [tag for c in range(7) for pre, ins, tag in chunk(c, a=False)] + [tag for c in range(6) for pre, ins, tag in chunk(c, w=False)]
    n = len(pa); slots = [set() for _ in range(n)]
    for tg in set(pa):
        d = min(n - 1 - max(i for i, x in enumerate(pa) if x == tg), len(pb) - 1 - max(i for i, x in enumerate(pb) if x == tg))
        slots[n - 1 - d].add(tg)
    return [Ins("buffer_load_dwordx4 v240, s[16:19], s55 offen lds", frozenset(x)) for x in slots]

def gen_tail():
    p = Prog()
    slow = []
    for f in range(NPRE, 16): p(f"ds_read_b128 {ar(Fbuf(16 + f))}, v{VCUR} offset:{49152 + f * 1024}", ("VE", f))
    b = Sreg(1, 1, 0)
    for r in range(NX, 16): p(f"v_exp_f32 v{b + r}, v{b + r}")
    for k in range(8): p(f"v_cvt_pk_bf16_f32 v{Preg(1, 0) + k}, v{b + 2 * k}, v{b + 2 * k + 1}")
    p("v_and_b32 v206, 0x1c00, v206")
    p.wait_vm(("cw", 0))
    p("s_waitcnt lgkmcnt(0)")
    p("s_barrier")
    for x in ["s_mov_b32 s4, s42", "s_mov_b32 s5, s43", "s_mov_b32 s6, 0x200000", "s_mov_b32 s7, 0x20000"]: p(x)
    mf = []
    for s in range(2):
        mf.append(f"{MF} {vr(LACC(1))}, {vr(ONES)}, {vr(Preg(1, s))}, {vr(LACC(1))}")
        for db in range(8): mf.append(f"{MF} {ar(Oreg(1, db))}, {ar(Fbuf(16 + s * 8 + db))}, {vr(Preg(1, s))}, {ar(Oreg(1, db))}")
    if not FAST: p(f"buffer_store_dword v249, v248, s[20:23], s98 offen offset:4{STF}", "flag")
    S = Sched16(mf)
    late = o_epi(0, lambda t: 8 * t, lambda t: 64 + 4 * t) + o_epi(1, lambda t: 32 + 8 * t, lambda t: 80 + 4 * t)
    seq = []
    rest = chunk(7, a=False) + chunk(6, w=False)
    for i, (ops, st) in enumerate(late):
        seq += [(x, None) for x in ops[:10]]
        if i < 4:
            for pre, ins, tag in rest[i:i + 1]: seq += [(y, None) for y in pre] + [(ins, tag)]
        seq += [(x, None) for x in ops[10:]]
        if i < LST: seq.append((st, "ctxst"))
    vs = tail_setup()[1][8:-4]
    for i, (pre, ins, tag) in enumerate(rest[4:]):
        seq += [(x, None) for x in vs[4 * i:4 * i + 4]] + [(y, None) for y in pre] + [(ins, tag)]
    seq += [(x, None) for x in vs[4 * len(rest[4:]):]]
    if FAST:
        seq += [(x, None) for x in lchk(0, 1, False) + ["s_or_b32 s62, s62, s63", "v_mov_b32 v244, s62", "v_lshlrev_b32 v245, 2, v255", f"s_add_u32 s46, s33, {KEEP + 16384 - 0x10000}", "v_add_u32 v245, s46, v245",
                                                         "ds_write_b32 v245, v244", "v_mov_b32 v245, s46"]]
    ne = 0
    for g in range(len(mf)):
        while S.load(g) + cost(seq[ne][0]) <= 2:
            S.add_last(g, Ins(*seq[ne])); ne += 1
    p.extend(S.items())
    if DIAG and not DIAG2: p.items.append(stamp(10))
    for x, tag in seq[ne:]: p(x, tag)
    if DIAG and not DIAG2: p.items.append(stamp(11))
    GO = [(n, c) for n in range(NK - 2) for c in range(8)] + [(n, 2 * cp + cf) for cp in range(4) for n in (NK - 2, NK - 1) for cf in range(2)]
    def w_reads(gi):
        n, c = GO[gi]
        off = wofs(n)
        d = 128 + 4 * (gi % 16)
        return [f"ds_read_b64_tr_b16 v[{d + 2 * hf}:{d + 2 * hf + 1}], v{208 + 8 * (off >> 16) + c} offset:{(off & 0xffff) + hf * 4096}" for hf in range(2)]
    RA = 8
    for gi in range(RA):
        for x in w_reads(gi): p(x, ("W", gi))
    p.wait_vm(("ca", 0))
    p.wait_lgkm(("W", 0))
    mf = []
    for gi, (n, c) in enumerate(GO):
        base = 0 if n < 14 else 64
        first = n in (0, 14)
        for tb in range(2):
            acc = base + ((c >> 1) * 2 + tb) * 8 + (c & 1) * 4
            mf.append(f"{MF} {vr(acc)}, {vr(128 + 4 * (gi % 16))}, {areg2(n, tb)}, {0 if first else vr(acc)}")
    S = Sched16(mf)
    NG = NK * 8; NM = len(mf)
    BS = [ch for ch in range(NC - 1) if ch % OB == 0]
    def gB(ch): return 32 * ch + 16
    for gi in range(RA, NG):
        ch, k = gi // 16, gi % 16
        g = 2 * (gi - RA)
        if ch in BS and k >= 12: g -= [1, 2, 3, 4][k - 12]
        for x in w_reads(gi): S.add_mem(g, x, ("W", gi))
    for gi in range(1, NG): S.add_first(2 * gi - 1, Wait("lgkm", ("W", gi)))
    assert GPUB in BS and CPUB in BS
    for ch in range(NC - 1):
        if ch in BS:
            S.add_first(gB(ch) - 2, Ins("s_waitcnt lgkmcnt(0)"))
            S.add_first(gB(ch), Wait("vm", [("cw", min(ch + OB, NC - 1))] + (["pub"] if ch == GPUB else []) + (["ctxst"] if ch == CPUB else [])))
            S.add_first(gB(ch), "s_barrier")
        S.add_first(32 * (ch + 1) - 2, Wait("vm", ("ca", ch + 1)))
    def wfree(ch):
        return 0 if ch < 8 else gB(min(x for x in BS if x >= ch - 8)) + 1
    S.add_mem(gB(CPUB) + 1, f"buffer_store_dword v249, v248, s[20:23], s98 offen offset:8{STF}", "flag")
    if FAST:
        S.add_mem(gB(CPUB) + 3, f"buffer_store_dword v249, v248, s[20:23], s98 offen offset:4{STF}", "flag")
        S.add_mem(gB(0) + 1, "ds_read_b128 v[200:203], v245", "bad")
        S.add_first(gB(0) + 10, Wait("lgkm", "bad"))
        S.add_valu(gB(0) + 11, "v_or3_b32 v200, v200, v201, v202")
        S.add_valu(gB(0) + 11, "v_or_b32 v200, v200, v203")
        S.add_valu(gB(0) + 13, "v_cmp_ne_u32 vcc, 0, v200")
        S.add_last(gB(0) + 15, "s_cbranch_vccnz L_safe")
        S.add_last(gB(0) + 15, "L_safe_ret:")
    for i, (ops, st) in enumerate(late[LST:]): S.add_mem(2 + LSP * i, st, "ctxst")
    assert 2 + LSP * (8 - LST) < gB(CPUB)
    LD = []
    def ld(ops, e, pace):
        for i, (pre, ins, tag) in enumerate(ops):
            for x in pre: LD.append(Op(x, e + i * pace - 2, NM - 1))
            LD.append(Op(ins, e + i * pace, NM - 1, tag=tag, deps=[LD[-1]] if pre else []))
    nw = 8
    while wfree(nw) + 16 <= CCHK:
        ld(chunk(nw, a=False), wfree(nw), 4); nw += 1
    S.add_mem(CPOLL, "buffer_load_dword v207, v206, s[20:23], s3 offen offset:4 sc1", "cpoll")
    S.add_first(CCHK, Wait("vm", "cpoll"))
    S.add_valu(CCHK, "v_cmp_ne_u32 vcc, 1, v207")
    S.add_last(CCHK + 1, "s_cbranch_vccnz L_cwait")
    S.add_last(CCHK + 1, "L_cok:")
    slow += spin("c", "buffer_load_dword v207, v206, s[20:23], s3 offen offset:4 sc1", "v_cmp_ne_u32 vcc, 1, v207")
    if CTXPF:
        S.add_valu(40, "v_lshlrev_b32 v252, 7, v254")
        S.add_valu(41, f"v_add_u32 v253, {4 * ACT_ROW}, v252")
        ld(chunk(7, w=False), CCHK + 2, 1)
        ld([(["s_lshl_b32 s60, s45, 13"], "s_add_u32 s60, s60, s65", None), ([], "buffer_load_dword v250, v252, s[20:23], s60 offen sc1", "pf"),
            ([], "buffer_load_dword v251, v253, s[20:23], s60 offen sc1", "pf")], CCHK + 2, 1)
    seqo = [("a", ch) for ch in range(7, nw)]
    for ch in range(nw, NC): seqo += [("w", ch), ("a", ch)]
    t = float(CCHK + 2)
    for k, (kind, ch) in enumerate(seqo):
        t = max(t, 32 * (ch - 7) if kind == "a" else wfree(ch))
        pace = TP0 if k < 2 else TP
        for op in chunk(ch, w=(kind == "w"), a=(kind == "a")):
            ld([op], int(t), 0); t += pace
    print("tail ld", schedule(S, [LD], 0, NM - 1, base_cap=2), [o.g for o in LD if o.mem][::8])
    def pub(base, kind, g0, g1, pace=0):
        ops = []
        for k8 in range(8):
            R = base + 8 * k8
            if k8 % 4 == 0: ops.append(Op(f"s_add_u32 s60, s40, {kind * 32768 + (k8 // 4) * 4096}", g0, g1))
            cv = [Op(f"v_cvt_pk_bf16_f32 v{R + k}, v{R + 2 * k}, v{R + 2 * k + 1}", g0, g1) for k in range(4)]
            ops += cv
            ops.append(Op(f"buffer_store_dwordx4 {vr(R)}, v240, s[20:23], s60 offen offset:{(k8 % 4) * 1024} sc1", g0 + k8 * pace, g1, [cv[-1]], tag="pub"))
            ops.append(Op(f"ds_write_b128 v236, {vr(R)} offset:{kind * 8192 + k8 * 1024}", g0, g1, tag="own"))
        return ops
    pb = pub(0, 0, 14 * 16 + PUB0, gB(GPUB) - 20, PUBP)
    print('pub', schedule(S, [pb], 14 * 16, NM - 1, base_cap=2), [o.g for o in pb if o.tag == 'pub'])
    S.add_mem(gB(GPUB) + 1, "buffer_store_dword v249, v248, s[20:23], s95 offen offset:4 sc1", "flag")
    gx = 32 * 17 + 21
    for k in range(4):
        S.add_mem(gx + 4 * k, f"buffer_load_dwordx2 v[{192 + 2 * k}:{193 + 2 * k}], v{238 + k // 2}, s[24:27], s57 offen offset:{32 * (k % 2)}", "x")
    gp = 32 * GPOLL
    S.add_mem(gp + 1, "buffer_load_dword v250, v247, s[20:23], s94 offen offset:4 sc1", "gpoll")
    gc = gp + 33
    S.add_first(gc + 1, Wait("vm", "gpoll"))
    S.add_valu(gc + 1, "v_cmp_ne_u32 vcc, 1, v250")
    S.add_last(gc + 2, "s_cbranch_vccnz L_gwait")
    S.add_last(gc + 2, "L_gok:")
    slow += spin("g", "buffer_load_dword v250, v247, s[20:23], s94 offen offset:4 sc1", "v_cmp_ne_u32 vcc, 1, v250")
    for k in range(3):
        for tb in range(2):
            S.add_mem(gc + 4 + 2 * (2 * k + tb), f"buffer_load_dwordx4 {vr(8 * k + 4 * tb)}, v240, s[20:23], s{GB[k]} offen offset:{tb * 1024} sc1", "gg")
    for tb in range(2): S.add_mem(gc + 18, f"ds_read_b128 {vr(24 + 4 * tb)}, v237 offset:{tb * 1024}", "gown")
    ps = pub(64, 1, 0, NM - 1)
    k8 = -1; inside = []
    for o in ps:
        if o.t.startswith("v_cvt") and (int(re.findall(r"v(\d+)", o.t)[0]) - 64) % 8 == 0: k8 += 1
        o.e = NM - 32 + 8 * (max(k8, 0) // 2) + 8 + 5
    inside = [o for o in ps if o.e < NM - 4]
    print("pub s inside", schedule(S, [inside], NM - 32, NM - 1, base_cap=3), len(inside), len(ps))
    for k in range(3): S.add_first(gc + 20 + 2 * k, f"s_add_u32 s{GB[k]}, s{GB[k]}, 32768")
    if DIAG3:
        for k, g in enumerate([int(x) for x in os.environ.get('D3', '').split(',') if x] or [0, CCHK, CCHK + 4, 14 * 16, 30 * 16, NM - 1]): S.add_first(g, stamp(2 + k))
    print(S.report("tail")[:400])
    OD = os.environ.get("ODROP", "").split(",")
    def keep(i):
        tg = i.tag if isinstance(i, (Ins, Wait)) else None
        if isinstance(i, Ins):
            if isinstance(tg, tuple) and tg[0] in OD: return False
            if tg in OD and tg: return False
        if isinstance(i, Wait):
            tags = tg if isinstance(tg, list) else [tg]
            tags = [t for t in tags if (t[0] if isinstance(t, tuple) else t) not in OD]
            if not tags: return False
            i.tag = tags
        return True
    p.extend([i for i in S.items() if keep(i)])
    GS = 144
    def gather():
        for k in range(3):
            for tb in range(2):
                p(f"buffer_load_dwordx4 {vr(GS + 8 * k + 4 * tb)}, v240, s[20:23], s{GB[k]} offen offset:{tb * 1024} sc1", "gs")
    p("s_nop 3")
    for o in ps[len(inside):]: p(o.t, o.tag)
    gather()
    def unpack(dst, src, n=8):
        for k in range(n):
            p(f"v_lshlrev_b32 v{dst + 2 * k}, 16, v{src + k}")
            p(f"v_and_b32 v{dst + 2 * k + 1}, 0xffff0000, v{src + k}")
    def rnd(b, T):
        for k in range(0, 16, 2): p(f"v_cvt_pk_bf16_f32 v{T + k // 2}, v{b + k}, v{b + k + 1}")
        unpack(b, T)
    def accum(D, src):
        for k in range(8):
            p(f"v_dot2c_f32_bf16 v{D + 2 * k}, s46, v{src + k}")
            p(f"v_dot2c_f32_bf16 v{D + 2 * k + 1}, s47, v{src + k}")
    p("s_mov_b32 s46, 0x00003f80")
    p("s_mov_b32 s47, 0x3f800000")
    p("s_mov_b32 s44, 0x40000")
    if DIAG3: p.items.append(stamp(8))
    p("s_waitcnt lgkmcnt(0)")
    p("s_barrier")
    for tb in range(2): p(f"ds_read_b128 {vr(168 + 4 * tb)}, v237 offset:{8192 + tb * 1024}", "sown")
    p.wait_vm("gg")
    unpack(32, 24)
    for k in range(3): accum(32, 8 * k)
    p("s_nop 2")
    rnd(32, 48)
    for k in range(16): p(f"v_mul_f32 v{48 + k}, {f2u(-LOG2E):#x}, v{32 + k}")
    for k in range(16): p(f"v_exp_f32 v{48 + k}, v{48 + k}")
    for k in range(16): p(f"v_add_f32 v{48 + k}, 1.0, v{48 + k}")
    for k in range(16): p(f"v_rcp_f32 v{48 + k}, v{48 + k}")
    for k in range(16): p(f"v_mul_f32 v{32 + k}, v{32 + k}, v{48 + k}")
    rnd(32, 48)
    unpack(128, 192)
    p.wait_lgkm("sown")
    unpack(0, 168)
    p("s_branch L_o_chk")
    p.label("L_o_poll")
    gather()
    p.label("L_o_chk")
    p("s_waitcnt vmcnt(0)")
    p(f"v_max3_u32 v48, v{GS}, v{GS + 1}, v{GS + 2}")
    p(f"v_max3_u32 v49, v{GS + 3}, v{GS + 4}, v{GS + 5}")
    for k in range(6, 22, 4):
        p(f"v_max3_u32 v48, v48, v{GS + k}, v{GS + k + 1}")
        p(f"v_max3_u32 v49, v49, v{GS + k + 2}, v{GS + k + 3}")
    p(f"v_max3_u32 v48, v48, v{GS + 22}, v{GS + 23}")
    p("v_max_u32 v48, v48, v49")
    p("v_cmp_eq_u32 vcc, -1, v48")
    p("s_cbranch_vccz L_o_go")
    p("s_sub_u32 s44, s44, 1")
    p("s_cbranch_scc0 L_o_poll")
    p.label("L_o_go")
    if DIAG3: p.items.append(stamp(9))
    for k in range(3): accum(0, GS + 8 * k)
    p("s_nop 2")
    for k in range(16): p(f"v_fmac_f32 v{128 + k}, v{k}, v{32 + k}")
    for k in range(0, 16, 2): p(f"v_cvt_pk_bf16_f32 v{96 + k // 2}, v{128 + k}, v{129 + k}")
    for k in range(4):
        p(f"buffer_store_dwordx2 v[{96 + 2 * k}:{97 + 2 * k}], v{238 + k // 2}, s[4:7], s57 offen offset:{32 * (k % 2)}")
    PAD = os.environ.get("PAD", "")
    if PAD:
        p("s_mov_b32 s46, 20")
        p.label("L_pad")
        for k in range(64):
            if PAD == "nop": p("s_nop 3")
            else: p(f"{MF} {vr(4 * (k % 16))}, {ar(4 * ((k // 4) % 8))}, {ar(128 + 4 * (k % 32))}, {vr(4 * (k % 16))}")
        p("s_sub_u32 s46, s46, 1")
        p("s_cmp_lg_u32 s46, 0")
        p("s_cbranch_scc1 L_pad")
    if DIAG:
        p("s_waitcnt vmcnt(0)")
        p.items.append(stamp(12)); p.items.append(stamp(13, True))
        dump_stamps(p, 0, 28, 20)
    return [i.t for i in resolve(p.items, tail_pre())], slow

def gen_f_kernel():
    p = Prog()
    p("s_cmp_ge_u32 s2, 256")
    p("s_cbranch_scc1 L_f_end")
    if DIAG:
        for k in range(14): p(f"s_mov_b32 s{66 + 2 * k}, 0")
        p.items.append(stamp(0, True)); p.items.append(stamp(1))
    p("s_load_dwordx4 s[36:39], s[0:1], 0")
    p("s_load_dwordx4 s[40:43], s[0:1], 24")
    p("s_load_dwordx2 s[44:45], s[0:1], 96")
    p("v_and_b32 v254, 63, v0")
    p("v_lshrrev_b32 v255, 6, v0")
    p("s_and_b32 s34, s2, 7")
    p("v_readfirstlane_b32 s28, v255")
    p("s_lshr_b32 s35, s2, 3")
    p("v_lshlrev_b32 v252, 7, v254")
    if CPF:
        p("s_getpc_b64 s[4:5]")
        p("L_pc0:")
        p(f"s_sub_u32 s4, s4, L_pc0-{KNAME}")
        p("s_subb_u32 s5, s5, 0")
        p(f"s_mov_b32 s6, L_code_end-{KNAME}")
        p("s_mov_b32 s7, 0x20000")
        p("v_lshrrev_b32 v244, 3, v254")
        p("v_lshl_or_b32 v244, v244, 27, v252")
        p("v_lshl_add_u32 v244, v255, 15, v244")
        p("s_lshl_b32 s63, s35, 10")
        p("buffer_load_dword v52, v244, s[4:7], s63 offen", "pf")
    p("v_lshlrev_b32 v240, 4, v254")
    p("v_lshrrev_b32 v244, 4, v254")
    p("v_and_b32 v245, 15, v254")
    p("v_lshlrev_b32 v245, 7, v245")
    p("v_lshl_add_u32 v253, v244, 13, v245")
    p("s_lshl_b32 s60, s35, 2")
    p("s_add_u32 s60, s60, s28")
    p("s_and_b32 s61, s34, 1")
    p("s_lshl_b32 s61, s61, 20")
    p("s_lshl_b32 s63, s60, 13")
    p("s_add_u32 s61, s61, s63")
    p("s_lshr_b32 s62, s34, 1")
    p("s_lshl_b32 s62, s62, 11")
    p("s_lshl_b32 s63, s60, 15")
    p("s_add_u32 s62, s62, s63")
    p("s_lshl_b32 s47, s2, 13")
    p("s_lshl_b32 s46, s28, 11")
    p("s_add_u32 s47, s47, s46")
    for r, v in ((10, 0x200000), (11, 0x20000), (14, 0x400000), (15, 0x20000), (26, 0x200000), (27, 0x20000)): p(f"s_mov_b32 s{r}, {v:#x}")
    p("s_waitcnt lgkmcnt(0)")
    if DIAG and not DIAG2: p.items.append(stamp(2))
    for d, sr in ((24, 36), (25, 37), (8, 38), (9, 39), (12, 40), (13, 41)): p(f"s_mov_b32 s{d}, s{sr}")
    p("buffer_load_dwordx4 v[0:3], v240, s[24:27], s47 offen" + NTX, "ln")
    p("buffer_load_dwordx4 v[4:7], v240, s[24:27], s47 offen offset:1024" + NTX, "ln")
    if XBAR: p("s_barrier")
    if PFA:
        p("buffer_load_dword v246, v252, s[8:11], s61 offen" + os.environ.get("NTPA", ""), "pf")
        p("buffer_load_dword v247, v253, s[12:15], s62 offen" + NT, "pf")
    srd(p, 16, 42, 0x400000)
    srd(p, 20, 44, 0x10000000)
    p("s_load_dwordx2 s[36:37], s[0:1], 16")
    p("s_load_dwordx2 s[38:39], s[0:1], 40")
    p("s_load_dwordx4 s[40:43], s[0:1], 56")
    p("s_load_dwordx2 s[96:97], s[0:1], 72")
    p("s_load_dwordx2 s[98:99], s[0:1], 88")
    p("v_lshl_add_u32 v244, v255, 6, v254")
    p("v_cmp_eq_u32 vcc, 0, v244")
    p("v_mov_b32 v248, 0x7ffff000")
    p("v_mov_b32 v249, 1")
    p("v_mov_b32 v250, 0")
    p("v_cndmask_b32_e64 v248, v248, 0, vcc")
    p("s_and_b32 s47, s34, 1")
    p("s_lshl_b32 s47, s47, 2")
    p("s_and_b32 s46, s35, 3")
    p("s_add_u32 s47, s47, s46")
    p("s_lshr_b32 s3, s34, 1")
    p("s_lshl_b32 s3, s3, 3")
    p("s_lshr_b32 s46, s35, 2")
    p("s_add_u32 s3, s3, s46")
    p("s_lshl_b32 s45, s3, 3")
    p("s_add_u32 s45, s45, s47")
    p("s_lshl_b32 s46, s47, 2")
    p("s_add_u32 s46, s46, s28")
    p("s_lshl_b32 s31, s46, 16")
    p("s_lshl_b32 s94, s46, 15")
    p("s_lshl_b32 s47, s3, 20")
    p("s_add_u32 s94, s94, s47")
    p(f"s_add_u32 s94, s94, {WS_KV:#x}")
    p("s_lshl_b32 s95, s3, 8")
    p("s_lshl_b32 s3, s45, 7")
    p(f"s_add_u32 s3, s3, {WS_FLAG + 0x10000:#x}")
    p("s_lshl_b32 s29, s34, 2")
    p("s_lshr_b32 s46, s35, 3")
    p("s_add_u32 s29, s29, s46")
    p("s_and_b32 s30, s35, 7")
    p(f"s_mul_i32 s48, s28, 24576")
    p("s_lshl_b32 s49, s28, 12")
    p("s_lshl_b32 s50, s28, 6")
    p("s_add_u32 s50, s50, s95")
    p("s_and_b32 s45, s28, 1")
    p("s_lshr_b32 s52, s28, 1")
    p("s_lshl_b32 s53, s45, 13")
    p("s_lshl_b32 s54, s52, 12")
    p("s_add_u32 s53, s53, s54")
    p("s_lshl_b32 s54, s45, 6")
    p("s_lshl_b32 s55, s52, 19")
    p("s_add_u32 s55, s54, s55")
    p("s_add_u32 s54, s55, s95")
    p("s_lshl_b32 s56, s29, 8")
    p("s_add_u32 s65, s55, s56")
    p("s_sub_u32 s56, 15, s30")
    p("s_lshl_b32 s32, s56, 3")
    p("s_add_u32 s32, s32, s28")
    p("s_lshl_b32 s33, s30, 3")
    p("s_add_u32 s33, s33, s28")
    p("s_lshl_b32 s46, s32, 14")
    p("s_lshl_b32 s47, s33, 14")
    p(f"s_mul_i32 s32, s32, {ACT_ROW}")
    p(f"s_add_u32 s32, s32, {WS_ACT:#x}")
    p(f"s_mul_i32 s33, s33, {ACT_ROW}")
    p(f"s_add_u32 s33, s33, {WS_ACT:#x}")
    if GUZ:
        p("s_sub_u32 s55, s29, s34")
        p("s_add_u32 s55, s55, 32")
    else:
        p("s_add_u32 s55, s29, 32")
        p("s_cmp_lt_u32 s29, 24")
        p("s_cselect_b32 s55, s55, s29")
    p(f"s_mul_i32 s64, s52, {64 * 3584}")
    p("s_lshl_b32 s63, s29, 6")
    p("s_add_u32 s35, s64, s63")
    p("s_lshl_b32 s63, s55, 6")
    p("s_add_u32 s64, s64, s63")
    if GUZ:
        p("s_and_b32 s63, s29, 3")
        p("s_cmp_eq_u32 s63, 3")
        p("s_cselect_b32 s64, 0x7f000000, s64")
    p("s_lshl_b32 s51, s29, 20")
    p(f"s_add_u32 s51, s51, {WS_KV:#x}")
    p("s_lshl_b32 s56, s29, 10")
    p(f"s_add_u32 s56, s56, {128 * 1024}")
    p("s_add_u32 s100, s56, s32")
    p("s_add_u32 s101, s56, s33")
    p("s_lshl_b32 s61, s34, 8")
    p("s_lshr_b32 s63, s60, 1")
    p(f"s_mul_i32 s63, s63, {8 * 3584}")
    p("s_add_u32 s61, s61, s63")
    p("s_lshl_b32 s52, s34, 10")
    p("s_lshl_b32 s63, s60, 15")
    p("s_add_u32 s52, s52, s63")
    p("v_lshrrev_b32 v241, 3, v254")
    p("v_lshlrev_b32 v241, 13, v241")
    p("v_and_b32 v242, 7, v254")
    for n in range(8):
        p(f"v_xor_b32 v243, {n}, v242")
        p(f"v_lshl_add_u32 v{224 + n}, v243, 4, v241")
    p("v_and_b32 v241, 7, v254")
    p("v_bfe_u32 v242, v254, 3, 1")
    p("v_lshlrev_b32 v242, 7, v242")
    p("v_lshl_add_u32 v242, v241, 10, v242")
    p("v_add_u32 v242, s48, v242")
    p("v_lshrrev_b32 v243, 4, v254")
    for tt in range(2):
        p(f"v_add_u32 v244, {4 * tt}, v243")
        p("v_xor_b32 v244, v244, v241")
        p(f"v_lshl_add_u32 v{232 + tt}, v244, 4, v242")
    p("v_lshlrev_b32 v241, 9, v243")
    p("v_bfe_u32 v242, v254, 2, 2")
    p("v_lshl_add_u32 v241, v242, 6, v241")
    p("v_and_b32 v242, 3, v254")
    p("v_lshl_add_u32 v241, v242, 3, v241")
    p("v_and_b32 v242, 1, v243")
    p("v_lshl_add_u32 v234, v242, 5, v241")
    p("v_xor_b32 v237, 32, v234")
    for cf in range(2):
        p(f"v_add_u32 v{235 + 3 * cf}, 0x10000, v{234 + 3 * cf}")
        p(f"v_add_u32 v{236 + 3 * cf}, 0x20000, v{234 + 3 * cf}")
    p("v_lshrrev_b32 v244, 5, v254")
    p("v_lshlrev_b32 v251, 30, v244")
    p("v_lshlrev_b32 v244, 1, v244")
    p("v_and_b32 v245, 3, v254")
    p("v_xor_b32 v245, v245, v244")
    p("v_lshlrev_b32 v245, 4, v245")
    p("v_lshrrev_b32 v244, 2, v254")
    p("v_lshl_add_u32 v241, v244, 13, v245")
    p("v_mul_u32_u24 v244, 3584, v244")
    p("v_add_u32 v242, v244, v245")
    p("v_bfe_u32 v245, v254, 2, 3")
    p("v_mul_u32_u24 v245, 3584, v245")
    p("v_and_b32 v244, 1, v254")
    p("v_lshl_add_u32 v245, v244, 7, v245")
    p("v_bfe_u32 v244, v254, 1, 1")
    if GUZ:
        p("s_lshl_b32 s63, s34, 6")
        p("s_sub_u32 s63, 2048, s63")
        p("v_mad_u32_u24 v245, v244, s63, v245")
    else:
        p("v_lshl_add_u32 v245, v244, 11, v245")
    p("v_or_b32 v245, v245, v251")
    p("v_and_b32 v243, 15, v254" if not BYTEF else "v_mov_b32 v243, v254")
    p(f"v_lshlrev_b32 v243, {2 if BYTEF else XSH}, v243")
    p("v_lshlrev_b32 v48, 7, v254")
    p("v_lshl_add_u32 v48, v255, 5, v48")
    p("v_add_u32 v48, 0x24000, v48")
    p("v_lshl_add_u32 v49, v255, 11, v240")
    p("v_add_u32 v49, 0x24000, v49")
    p("v_lshrrev_b32 v50, 3, v254")
    p("v_lshlrev_b32 v50, 8, v50")
    p("v_and_b32 v51, 7, v254")
    p("v_lshl_add_u32 v50, v51, 4, v50")
    p("s_waitcnt lgkmcnt(0)")
    p("s_cmp_eq_u32 s45, 0")
    p("s_cselect_b32 s40, s40, s42")
    p("s_cselect_b32 s41, s41, s43")
    p("s_mov_b32 s4, s98")
    p("s_mov_b32 s5, s99")
    p("s_mov_b32 s6, 256")
    p("s_mov_b32 s7, 0x20000")
    p("s_load_dwordx2 s[42:43], s[0:1], 80")
    p("s_lshl_b32 s56, s55, 10")
    p(f"s_add_u32 s56, s56, {128 * 1024}")
    p("s_add_u32 s98, s56, s32")
    p("s_add_u32 s99, s56, s33")
    if GUZ:
        p("s_and_b32 s56, s29, 3")
        p("s_cmp_eq_u32 s56, 3")
        p("s_cselect_b32 s98, 0x7f000000, s98")
        p("s_cselect_b32 s99, 0x7f000000, s99")
    p("s_lshl_b32 s63, s2, 7")
    p(f"s_add_u32 s63, s63, {WS_FLAG:#x}")
    BLK = [6, 7, 8, 9, 6, 7, 8, 9, 0, 1, 2, 3, 4, 5, 6, 7, 8, 9, 0, 1, 2, 3, 6, 7, 8, 9, 4, 5, 6, 7, 8, 9]
    def dma_A(s):
        ops = []
        for n in range(8):
            pre = []
            if n % 4 == 0:
                pre = [f"s_add_u32 m0, s48, {(s % 3) * 8192 + (n // 4) * 4096}", f"s_add_u32 s56, s31, {s * 128 + (n // 4) * 4096}"]
            ops.append((pre, f"buffer_load_dwordx4 v{224 + n}, s[8:11], s56 offen offset:{(n % 4) * 1024}{NTA} lds", ("A", s)))
        return ops
    def dma_W(n):
        ops = []
        kq = n % 4
        for q in range(4):
            m0 = "s53"
            if n < 8:
                pre = [f"s_add_u32 s57, s54, {(kq * 128 + q * 16) * 8192 + (n // 4) * 128 - q * 1024}"]
                ins = f"buffer_load_dwordx4 v241, s[12:15], s57 offen offset:{q * 1024} lds"
            elif n < 16:
                pre = [f"s_add_u32 s57, s50, {((n - 8) * 64 + q * 16) * 8192 - q * 1024}"]; m0 = "s49"
                ins = f"buffer_load_dwordx4 v241, s[16:19], s57 offen offset:{q * 1024} lds"
            elif n < 24:
                pre = [f"s_add_u32 s57, s{35 if n < 20 else 64}, {(kq * 128 + q * 16) * 3584 - q * 1024}"]
                ins = f"buffer_load_dwordx4 v242, s[12:15], s57 offen offset:{q * 1024} lds"
            else:
                pre = [f"s_add_u32 s57, s65, {(kq * 128 + q * 16) * 8192 - q * 1024 + (128 if n >= 28 else 0)}"]
                ins = f"buffer_load_dwordx4 v241, s[8:11], s57 offen offset:{q * 1024} lds"
            if "kkvvggqq"[n // 4] in NTD: ins = ins.replace(" lds", " nt lds")
            if q == 0: pre = [f"s_add_u32 m0, {m0}, {BLK[n] * 16384}"] + pre
            ops.append((pre, ins, ("L", n)))
        return ops
    def kv_half(tile, part):
        ops = []
        for q in range(4):
            pre = []
            if q == 0: pre = [f"s_add_u32 m0, s49, {tile * 32768 + part * 16384}", f"s_add_u32 s57, s49, {tile * 32768 + part * 16384}"]
            ops.append((pre, f"buffer_load_dwordx4 v240, s[16:19], s57 offen offset:{q * 1024}{KSC} lds", ("kv", tile, part)))
        return ops
    def now(ops):
        for pre, ins, tag in ops:
            for x in pre: p(x)
            p(ins, tag)
    first = dma_W(0) + dma_A(0) + dma_A(1) + (dma_W(1) + dma_A(2) if ALEAD == 3 else [])
    now(first[:EARLY])
    p.wait_vm("ln")
    if DIAG and not DIAG2: p.items.append(stamp(3))
    emit_ln(p)
    p("ds_write_b128 v48, v[40:43]")
    p("ds_write_b128 v48, v[44:47] offset:16")
    p("s_lshr_b32 s58, s2, 1")
    p("s_lshl_b32 s58, s58, 14")
    p("s_and_b32 s59, s2, 1")
    p("s_lshl_b32 s59, s59, 7")
    p("s_add_u32 s58, s58, s59")
    p("s_add_u32 s58, s58, s49")
    if WS_XN: p(f"s_add_u32 s58, s58, {WS_XN:#x}")
    p("s_waitcnt lgkmcnt(0)")
    p("s_barrier")
    p("ds_read_b128 v[40:43], v49")
    p("ds_read_b128 v[44:47], v49 offset:1024")
    p("s_lshr_b32 s59, s2, 4")
    p(f"s_lshl_b32 s59, s59, {XSH}")
    p("s_waitcnt lgkmcnt(0)")
    p(f"buffer_store_dwordx4 v[40:43], v50, s[20:23], s58 offen{STF}", "xnst")
    p(f"buffer_store_dwordx4 v[44:47], v50, s[20:23], s58 offen offset:2048{STF}", "xnst")
    p(f"buffer_store_dword v250, v248, s[20:23], s63 offen{STF}", "zf")
    p(f"buffer_store_dword v250, v248, s[20:23], s63 offen offset:4{STF}", "zf")
    p(f"buffer_store_dword v250, v248, s[20:23], s3 offen{STF}", "zf")
    p(f"s_add_u32 s63, s63, 0x20000")
    p(f"buffer_store_dword v250, v248, s[20:23], s63 offen offset:8{STF}", "zf")
    p(f"buffer_store_dword v250, v248, s[20:23], s63 offen{STF}", "zf")
    p(f"buffer_store_dword v250, v248, s[20:23], s63 offen offset:4{STF}", "zf")

    if os.environ.get('PFW8'):
        p('s_waitcnt vmcnt(0)'); p.items.append(stamp(2))
    now(first[EARLY:])

    groups = []
    def accT(base, c, cf, rb): return base + (c * 4 + rb) * 8 + cf * 4
    def accV(base, c, cf, rb): return base + ((c * 2 + cf) * 2 + (rb >> 1)) * 8 + (rb & 1) * 4
    def add_double(seg0, bases):
        for s in range(8):
            for tt in range(2):
                for c in range(4):
                    for cf in range(2):
                        groups.append(dict(off=BLK[seg0 + s] * 16384 + c * 4096 + tt * 2048, cf=cf, t=2 * s + tt,
                                           acc=[accV(bases[c >> 1], c & 1, cf, rb) for rb in range(4)], vt=True))
    def add_single(seg0, base):
        for q in range(4):
            for tq, c in ([(tq, c) for c in range(2) for tq in range(4)] if seg0 + q == 31 else [(tq, c) for tq in range(4) for c in range(2)]):
                if True:
                    for cf in range(2):
                        groups.append(dict(off=BLK[seg0 + q] * 16384 + c * 8192 + tq * 2048, cf=cf, t=4 * q + tq,
                                           acc=[accT(base, c, cf, rb) for rb in range(4)], vt=False))
    add_single(0, 0); add_single(4, 64); add_double(8, [128, 0])
    add_single(16, 64); add_single(20, 128); add_single(24, 0); add_single(28, 64)
    NG = len(groups)
    mf = []
    for n, G in enumerate(groups):
        w = vr(192 + 4 * (n % 8))
        for rb in range(4):
            a = ar((rb * 16 + G["t"]) * 4)
            d = vr(G["acc"][rb])
            c = 0 if G["t"] == 0 else d
            mf.append(f"{MF} {d}, {a}, {w}, {c}" if G["vt"] else f"{MF} {d}, {w}, {a}, {c}")
    S = Sched16(mf)
    def w_reads(n):
        G = groups[n]
        out = []
        for hf in range(2):
            off = G["off"] + hf * 256
            d = 192 + 4 * (n % 8) + 2 * hf
            out.append(f"ds_read_b64_tr_b16 v[{d}:{d + 1}], v{234 + 3 * G['cf'] + (off >> 16)} offset:{off & 0xffff}")
        return out
    def a_reads(s):
        return [f"ds_read_b128 {ar((rb * 16 + 2 * s + tt) * 4)}, v{232 + tt} offset:{(s % 3) * 8192 + rb * 256}" for tt in range(2) for rb in range(4)]
    RA = 5
    if DIAG and not DIAG2: p.items.append(stamp(4))
    p.wait_vm(("A", 0))
    p("s_barrier")
    if DIAG and not DIAG2: p.items.append(stamp(5))
    for x in a_reads(0): p(x, ("Ar", 0))
    for n in range(RA):
        for x in w_reads(n): p(x, ("W", n))
    p.wait_lgkm(("W", 0))
    for n in range(RA, NG):
        k = n % 16
        if k <= 13: g = 4 * (n - RA)
        elif k == 14: g = 4 * (n - 6) + 2
        else: g = 4 * (n - 6)
        for i, x in enumerate(w_reads(n)): S.add_mem(g + i, x, ("W", n))
    for n in range(1, NG): S.add_first(4 * n - 1, Wait("lgkm", ("W", n)))
    for s in range(1, 8):
        g = 32 * s - 22
        S.add_first(g, Wait("vm", ("A", s)))
        for i, x in enumerate(a_reads(s)): S.add_mem(g + [0, 0, 1, 1, 4, 4, 5, 5][i], x, ("Ar", s))
        S.add_first(32 * s - 10, Wait("lgkm", ("Ar", s)))
    def gB(n): return 64 * n + 4 * 11
    GBS = [n for n in range(31) if n < 8 or not GB2 or n % 2 == 1]
    for n in GBS:
        nxt = min([x for x in GBS if x > n] + [31])
        tags = [("L", nxt)]
        if n == 0: tags += ["xnst", "zf"]
        if n == KVPUB: tags.append("kvst")
        if n == 29: tags.append(("kv", 0, 0))
        S.add_first(gB(n) - 2, Ins("s_waitcnt lgkmcnt(0)"))
        S.add_first(gB(n), Wait("vm", tags))
        S.add_first(gB(n), "s_barrier")
    assert KVPUB in GBS
    def win(n): return gB(n - 1) + 1
    def freed(seg): return gB(min(x for x in GBS if x >= seg)) + 1
    def lfree(n):
        prev = [m for m in range(n) if BLK[m] == BLK[n]]
        return freed(prev[-1]) if prev else freed(3)
    def bfree(blk): return freed(max(m for m in range(32) if BLK[m] == blk))
    LD = []
    def ld(ops, e, pace=1):
        for i, (pre, ins, tag) in enumerate(ops):
            for x in pre: LD.append(Op(x, e + i * pace - 3, 2040))
            LD.append(Op(ins, e + i * pace, 2040, tag=tag, deps=[LD[-2]] if len(pre) == 2 else []))
    one = lambda ins, tag, pre=(): [([], x, None) for x in pre] + [([], ins, tag)]
    if ALEAD == 3:
        ld(dma_A(3), 0); ld(dma_W(2), 8); ld(dma_A(4), 22)
        ld(dma_A(5), 54); ld(dma_W(3), 62); ld(dma_A(6), 86); ld(dma_A(7), 118); ld(dma_W(4), 126); ld(dma_W(5), 140, 4)
    else:
        ld(dma_W(1), 0); ld(dma_A(2), 0); ld(dma_A(3), 20); ld(dma_W(2), 40); ld(dma_A(4), 52); ld(dma_A(5), 84); ld(dma_W(3), 100)
        ld(dma_A(6), 116); ld(dma_A(7), 144); ld(dma_W(4), 156); ld(dma_W(5), 160)
    if not BYTEF: ld(one("buffer_atomic_add v249, v248, s[4:7], s59 offen", "pub"), win(3))
    else: S.add_mem(win(BYTEF), "buffer_store_byte v249, v248, s[4:7], s2 offen sc1", "pub")
    if "v" in PFW: ld(one("buffer_load_dword v246, v253, s[16:19], s62 offen" + NTV, "pf"), win(3))
    ld(dma_W(6), win(3), 2)
    ld(dma_W(7), VW0 - 24, 4)
    for n in range(8, 13): ld(dma_W(n), VW0 + (n - 8) * VWP, 3)
    ld(one("buffer_load_dword v250, v245, s[12:15], s61 offen", "pf", ["s_mov_b32 s12, s40", "s_mov_b32 s13, s41", f"s_mov_b32 s14, {512 * 3584}"])[:4 if "g" in PFW else 3], win(GPW))
    print("ld1", schedule(S, [LD], 0, 511, base_cap=LCAP), "last", LD[-1].g, [o.g for o in LD if o.tag in ("pf", "poll")])
    gc = XNC
    S.add_mem(XPL if XPL else gc - 50, XPOLL, "poll")
    S.add_first(gc, Wait("vm", "poll"))
    S.add_valu(gc, XCMP)
    S.add_valu(gc, "v_add_u32 v247, 0x10000, v240")
    S.add_last(gc + 2, "s_cbranch_vccnz L_xnwait")
    S.add_last(gc + 2, "L_xnok:")
    LD = []
    for n in range(13, 24): ld(dma_W(n), max(win(9) + (n - 13) * 44 if n < WSH else win(n - 4), lfree(n)), 10)
    S.add_valu(64 * 12, "v_and_b32 v253, 0xfffffbff, v253")
    S.add_valu(64 * 12 + 1, "v_bfe_u32 v246, v254, 3, 1")
    S.add_valu(64 * 12 + 2, "v_lshl_or_b32 v253, v246, 30, v253")
    ld(one("buffer_load_dword v244, v253, s[8:11], s52 offen", "pf", ["s_mov_b32 s8, s36", "s_mov_b32 s9, s37", "s_mov_b32 s10, 0x400000"])[:4 if "q" in PFW else 3], win(17 if WSH > 20 else WQW))
    for n in range(24, 32):
        if n == 28 and PFOG:
            S.add_valu(1400, "v_and_b32 v245, 0xfff, v252")
            S.add_valu(1401, "v_or_b32 v245, v245, v251")
            ld(one("buffer_load_dword v250, v245, s[4:7], s50 offen", "pf", ["s_mov_b32 s4, s38", "s_mov_b32 s5, s39", "s_mov_b32 s6, 0x400000", "s_mov_b32 s7, 0x20000",
                   "s_lshl_b32 s50, s2, 2", "s_add_u32 s50, s50, s28", "s_lshl_b32 s50, s50, 12"]), PFOG - 8)
            ld(one("buffer_load_dword v253, v245, s[12:15], s50 offen", "pf", ["s_mov_b32 s12, s96", "s_mov_b32 s13, s97", f"s_mov_b32 s14, {1792 * 1024}"]), PFOG - 8)
            if NTX: ld(one("buffer_load_dword v244, v245, s[24:27], s50 offen", "pf"), PFOG - 8)
        ld(dma_W(n), max((win(19) if WSH > 20 else win(21) + 20) + (n - 24) * (50 if WSH > 20 else 36), lfree(n), PFOG + 120 + 20 * (n - 28) if PFOG and n >= 28 else 0), 8 if n < 28 or not PFOG else 4)
    S.add_valu(64 * 26, "v_and_b32 v243, 0x380, v252")
    for x in ["s_add_u32 s16, s20, s51", "s_addc_u32 s17, s21, 0"]: S.add_last(64 * 26, x)
    for x in ["s_sub_u32 s18, 16, s30", "s_lshl_b32 s18, s18, 16"]: S.add_last(64 * 26 + 1, x)
    ld(one("buffer_load_dword v244, v243, s[20:23], s59 offen sc1", "poll2", ["s_lshl_b32 s59, s29, 10", f"s_add_u32 s59, s59, {WS_FLAG + 0x10000:#x}"]), 64 * 27)
    gc = win(28) + 1
    for k in range(7): ld(kv_half(k // 2, k % 2), max(gc + 4 + 16 * k, bfree(k)), 4)
    S.add_first(gc, Wait("vm", "poll2"))
    S.add_valu(gc, "v_cmp_ne_u32 vcc, 1, v244")
    S.add_last(gc + 2, "s_cbranch_vccnz L_kvwait")
    S.add_last(gc + 2, "L_kvok:")
    print("ld2", schedule(S, [LD], 512, 2046, base_cap=2), "last", LD[-1].g, [(o.tag, o.g) for o in LD if o.mem][::4])
    XL = []
    for t in range(16):
        for rb in range(4):
            pre = []
            if t % 4 == 0 and rb % 2 == 0: pre = [f"s_add_u32 s{62 + rb // 2}, s{46 + rb // 2}, {WS_XN + t * 1024}"]
            vo = 240 if rb % 2 == 0 else 247
            XL.append(Op(f"buffer_load_dwordx4 {ar((rb * 16 + t) * 4)}, v{vo}, s[20:23], s{62 + rb // 2} offen offset:{(t % 4) * 1024}{XSC}",
                         max(512 + 32 * t + 32 + (6 * rb if t < 15 else 0), XNC + 4 + int(XP * (4 * t + rb))), 1024 + 16 * t - 60 if t < 10 else 512 + 32 * t + 64, pre=pre, tag=("X", t)))
    for t in range(16): S.add_first(1024 + 16 * t - 2, Wait("vm", ("X", t)))
    def kv_epi(kind, u, base, g0, g1, st0):
        ops = []
        for k8 in range(8):
            R = base + 8 * k8
            if kind == "K":
                c, rb = k8 // 4, k8 % 4
                off = rb * 4096 + (2 * u + c) * 1024
                for r in range(8): ops.append(Op(f"v_mul_f32 v{R + r}, s58, v{R + r}", g0, g1))
            else:
                db, s = 4 * u + k8 // 2, k8 % 2
                off = 16384 + s * 8192 + db * 1024
            cv = [Op(f"v_cvt_pk_bf16_f32 v{R + k}, v{R + 2 * k}, v{R + 2 * k + 1}", g0, g1) for k in range(4)]
            ops += cv
            ops.append(Op(f"s_add_u32 s95, s94, {off & ~4095}", g0, g1))
            ops.append(Op(f"buffer_store_dwordx4 {vr(R)}, v240, s[20:23], s95 offen offset:{off & 4095}{STF}", max(g0, st0[0] + int(k8 * st0[1])), g1, [cv[-1]], tag="kvst"))
        return ops
    S.add_first(250, f"s_mov_b32 s58, {f2u(KSCALE):#x}")
    C0 = -2.0 * math.sqrt(2.0 / math.pi) * LOG2E
    C1 = C0 * 0.044715
    S.add_valu(64 * 17, f"v_mov_b32 v232, {f2u(C0):#x}")
    S.add_valu(64 * 17 + 1, f"v_mov_b32 v233, {f2u(C1):#x}")
    S.add_valu(64 * 17 + 2, f"v_add_u32 v246, {4 * ACT_ROW}, v240")
    def gu_epi(base, psg, g0, g1, gst):
        st = [[], []]; sto = []
        for rb in range(4):
            G = base + rb * 8; U = base + 32 + rb * 8
            L = st[rb & 1]
            for r in range(8):
                t = 224 + (r % 4) + 4 * (rb & 1)
                o4 = Op(f"v_exp_f32 v{t}, v{t}", g0, g1)
                o7 = Op(f"v_rcp_f32 v{t}, v{t}", g0, g1)
                L += [Op(f"v_mul_f32 v{t}, v{G + r}, v{G + r}", g0, g1), Op(f"v_fma_f32 v{t}, v{t}, v233, v232", g0, g1),
                      Op(f"v_mul_f32 v{t}, v{t}, v{G + r}", g0, g1), o4, Op(f"v_mul_f32 v{G + r}, v{G + r}, v{U + r}", g0, g1),
                      Op(f"v_add_f32 v{t}, 1.0, v{t}", g0, g1), o7, Op(f"v_mul_f32 v{G + r}, v{G + r}, v{t}", g0, g1, [o7])]
            cv = [Op(f"v_cvt_pk_bf16_f32 v{G + k}, v{G + 2 * k}, v{G + 2 * k + 1}", g0, g1 - 2) for k in range(4)]
            L += cv
            sto.append(Op(f"buffer_store_dwordx4 {vr(G)}, v{240 if rb % 2 == 0 else 246}, s[20:23], s{psg + rb // 2} offen{STF}", gst + 30 * rb, g1, [cv[-1]], tag="hst"))
        return st, sto
    def q_epi(base, u, g0, g1, gmove):
        cvs = []; mv = []
        for c in range(2):
            for qb in range(4):
                R = base + (c * 4 + qb) * 8
                for k in range(4):
                    o = Op(f"v_cvt_pk_bf16_f32 v{R + k}, v{R + 2 * k}, v{R + 2 * k + 1}", g0, g1)
                    cvs.append(o)
                    mv.append(Op(f"v_accvgpr_write_b32 a{Qreg(qb, 2 * u + c) + k}, v{R + k}", gmove, g1, [o]))
        return cvs, mv
    PH = [256 * k for k in range(9)]
    PE = 2048
    kvs = kv_epi("K", 0, 0, PH[1] + 6, PH[2] - 3, (PH[1] + 16, STP)) + kv_epi("K", 1, 64, PH[2] + 6, PH[4] - 3, (PH[2] + 16, STPK1)) + \
          kv_epi("V", 0, 128, PH[4] + 6, PH[5] - 3, (PH[4] + 12, STPV)) + kv_epi("V", 1, 0, PH[4] + 6, PH[6] - 3, (PH[4] + 12 + 8 * STPV, STPV))
    print("kv epi", schedule(S, [XL, kvs], PH[1], PH[6]), "last store", kvs[-1].g, "pub at", gB(KVPUB))
    assert kvs[-1].g < gB(KVPUB)
    st0, so0 = gu_epi(64, 100, PH[5] + 6, PH[7] - 3, PH[6])
    st1, so1 = gu_epi(128, 98, PH[6] + 6, PE - 2, PH[6] + 130)
    q0c, q0m = q_epi(0, 0, PH[7] + 6, PE - 2, PH[7] + 130)
    q1c, q1m = q_epi(64, 1, PE - 32 + 5, PE - 1, PE - 32 + 5)
    k0r = [Op(f"ds_read_b128 {ar(Fbuf(f))}, v240 offset:{f * 1024}", max(gB(29) + 1, PH[7] + 16 * f + 16), PE - 2, tag=("K0", f)) for f in range(12)]
    print("gu epi", schedule(S, [st0[0] + st1[0], st0[1] + st1[1], so0 + so1, q0c + q1c[:16], q0m + q1m[:16], k0r], PH[5], PE - 1))
    S.add_mem(gB(KVPUB) + 2, f"buffer_store_dword v249, v248, s[20:23], s3 offen{STF}", "pub")
    if DIAG and not DIAG2:
        S.add_first(512, stamp(6)); S.add_first(1024, stamp(7)); S.add_first(PE - 1, stamp(8))
    if DIAG2:
        for k, g in enumerate(DIAG2): S.add_first(g, stamp(2 + k))
    print(S.report("gemm")[:600])
    its = S.items()
    DROP = os.environ.get("DROP", "").split(",")
    def keep(i):
        if isinstance(i, Ins):
            tg = i.tag[0] if isinstance(i.tag, tuple) else i.tag
            if tg in DROP and tg: return False
        if isinstance(i, Wait):
            tags = i.tag if isinstance(i.tag, list) else [i.tag]
            tags = [t for t in tags if (t[0] if isinstance(t, tuple) else t) not in DROP]
            if not tags: return False
            i.tag = tags
        return True
    p.extend([i for i in its if keep(i)])
    gemm_items = list(p.items)
    n_gemm = len(resolve(gemm_items))
    sa, va = tail_setup()
    def gen_qk0(masked):
        mf = []; last = {}
        for kb in range(4):
            for t in range(4):
                for qb in range(4):
                    d = Sreg(0, qb, kb)
                    c = vr(d) if t else (0 if kb < 2 else vr(NEGM(qb)))
                    mf.append(f"{MF} {vr(d)}, {ar(Fbuf(kb * 4 + t))}, {ar(Qreg(qb, t))}, {c}")
                    last[(qb, kb)] = len(mf) - 1
        S = Sched16(mf)
        for f in range(1, 16): S.add_first(4 * f - 1, Wait("lgkm", ("K0", f)))
        for f in range(12, 16): S.add_mem(f - 12, f"ds_read_b128 {ar(Fbuf(f))}, v240 offset:{f * 1024}", ("K0", f))
        c1, m1 = q_epi(64, 1, 4, 9, 4)
        c1 = c1[16:]; m1 = m1[16:]
        su = ["v_and_b32 v241, 15, v254", "v_lshl_add_u32 v241, v255, 4, v241", "v_lshrrev_b32 v245, 4, v254", "v_lshlrev_b32 v245, 2, v245",
              "v_sub_u32 v241, v241, v245", "v_cvt_f32_i32 v241, v241", "v_add_f32 v241, 0.5, v241", f"v_mul_f32 v{VTMASK}, {f2u(BIG):#x}, v241"]
        SU = [Op(x, 0, 18) for x in su]
        su2 = [f"v_mov_b32 v{VCUR}, v240", f"v_add_u32 v{VPREV}, 0x10000, v240", "v_and_b32 v206, 31, v254", "v_lshlrev_b32 v206, 10, v206",
               "v_and_b32 v252, 0xfff, v252", "v_or_b32 v252, v252, v251"] + ([f"v_mov_b32 v{ONES + k}, 0x3f803f80" for k in range(4)] if not ONE1 else
                 [f"v_and_b32 v{ONES}, 15, v254", f"v_min_u32 v{ONES}, 1, v{ONES}", f"v_subrev_u32 v{ONES}, 1, v{ONES}", f"v_and_b32 v{ONES}, 0x3f803f80, v{ONES}"] +
                 [f"v_mov_b32 v{ONES + k}, v{ONES}" for k in range(1, 4)]) + va[:8] + va[-4:]
        SU += [Op(x, 0, 63) for x in su2]
        ss = [f"s_mov_b32 s{S_THR}, {f2u(LMAX if FAST else THR):#x}", "s_lshl_b32 s99, s30, 7", f"s_add_u32 s99, s99, {WS_FLAG + 0x20000:#x}", "s_lshl_b32 s98, s29, 10",
              "s_add_u32 s98, s98, s99", "s_mov_b32 s52, s49", f"s_add_u32 s53, s49, {3 * 32768 + 16384}", f"s_add_u32 s54, s49, {4 * 32768}",
              f"s_add_u32 s55, s49, {3 * 32768 + 16384}", "s_mov_b32 s4, s38", "s_mov_b32 s5, s39", "s_mov_b32 s6, 0x400000", "s_mov_b32 s7, 0x20000",
              "s_lshl_b32 s59, s2, 2", "s_add_u32 s59, s59, s28", "s_lshl_b32 s50, s59, 12", "s_mov_b32 s12, s96", "s_mov_b32 s13, s97",
              f"s_mov_b32 s14, {1792 * 1024}", "s_mov_b32 m0, s52"]
        SS = [Op(x, 0, 60) for x in ss]
        def mask_ops(kb, e0, dl):
            out = []
            if not masked: return out
            for qb in (2,):
                for r in range(4):
                    kk = 16 * kb + r
                    out.append(Op(f"v_subrev_f32 v{TMP[r % 2]}, {f2u(kk * BIG):#x}, v{VTMASK}", 19, dl))
                    out.append(Op(f"v_min_f32 v{Sreg(0, qb, kb) + r}, v{Sreg(0, qb, kb) + r}, v{TMP[r % 2]}", e0, dl))
            return out
        T0 = [128 + 2 * q for q in range(4)]
        dl = 29
        I = mask_ops(0, 20, dl)
        for q in range(4):
            b = Sreg(0, q, 0)
            I += [Op(f"v_max3_f32 v{T0[q]}, v{b}, v{b + 1}, v{b + 2}", 20, dl), Op(f"v_max_f32 v{T0[q]}, v{T0[q]}, v{b + 3}", 20, dl)]
        for sw in ("v_permlane32_swap_b32", "v_permlane16_swap_b32"):
            I += [Op(f"v_mov_b32 v{T0[q] + 1}, v{T0[q]}", 20, dl) for q in range(4)]
            I += [Op(f"{sw} v{T0[q]}, v{T0[q] + 1}", 20, dl) for q in range(4)]
            I += [Op(f"v_max_f32 v{T0[q]}, v{T0[q]}, v{T0[q] + 1}", 20, dl) for q in range(4)]
        if FAST: I += [Op(f"v_add_f32 v{T0[q]}, {f2u(SH):#x}, v{T0[q]}", 20, dl) for q in range(4)]
        for q in range(4): I += [Op(f"v_sub_f32 v{NEGM(q) + r}, 0, v{T0[q]}", 20, dl) for r in range(4)]
        post = []
        for kb in range(2):
            if kb: I += mask_ops(1, 36, 63)
            for q in range(4): I += [Op(f"v_sub_f32 v{Sreg(0, q, kb) + r}, v{Sreg(0, q, kb) + r}, v{T0[q]}", 36 if kb else 20, 63) for r in range(4)]
        first = True
        for kb in range(1, 4):
            ops = mask_ops(kb, 16 * kb + 20, 63) if kb > 1 else []
            for q in range(0 if FAST else 4):
                b = Sreg(0, q, kb)
                ops.append(Op(f"v_max_f32 v{MX[0]}, v{b}, v{b + 1}" if first else f"v_max3_f32 v{MX[0]}, v{MX[0]}, v{b}, v{b + 1}", 16 * kb + 20, 63)); first = False
                ops.append(Op(f"v_max3_f32 v{MX[0]}, v{MX[0]}, v{b + 2}, v{b + 3}", 16 * kb + 20, 63))
            if kb < 3: I += ops
            else: post = [o.t for o in ops]
        I += [Op(f"v_exp_f32 v{Sreg(0, 0, 0) + r}, v{Sreg(0, 0, 0) + r}", 36, 63) for r in range(NX)]
        print("qk0", schedule(S, [c1, m1, SU, SS, I], 0, 63), S.report("qk0")[:140])
        q = Prog()
        q.wait_lgkm(("K0", 0))
        q.extend(S.items())
        q.wait_vm(("kv", 1, 0))
        q("s_barrier")
        for ins in tail_reads(VCUR, 32768): q(ins)
        if not PFOG:
            for x in PFL[:PFM]: q(x.replace("s39", "s50"), "pf")
            q("s_mov_b32 s39, s50")
        for k in range(4): q(f"buffer_load_dwordx4 v240, s[16:19], s54 offen offset:{k * 1024}{KSC} lds", "kv")
        q("s_mov_b32 m0, s53")
        for x in post: q(x)
        if not FAST: q(f"v_cmp_lt_f32 vcc, s{S_THR}, v{MX[0]}")
        q(f"s_waitcnt lgkmcnt({NPRE - 1})")
        return [i.t for i in resolve(gemm_items + q.items)][n_gemm:]
    pro = [i.t for i in resolve(gemm_items)]

    stubs = []
    def check(site, par, dual):
        if FAST: return []
        stubs.append((site, par, dual))
        return [f"s_cbranch_vccnz L_stub_{site}", f"L_ret_{site}:"]
    def it_odd(name, tq, tp, masked, **kw):
        return gen_iter(name, tq, tp, 0, masked, 0, VCUR, 0, VPREV, 49152, VCUR, 32768, end_ops=check(name, 0, tq), **kw)
    def it_even(name, tq, tp, masked, extra_end=(), first_pv=False, **kw):
        if first_pv: kw["vmn"] = 8 if PFOG else 8 + len(PFL[:PFM])
        last = tq == "S1"
        return gen_iter(name, tq, tp, 1, masked, 1, VCUR, 32768, VCUR, 16384, VCUR if last else VPREV, 49152 if last else 0, first_pv=first_pv,
                        end_ops=check(name, 1, tq) + list(extra_end[2:]), swap=not last, mid_ops=extra_end[:2], **kw)
    seg = {}
    seg["G"] = pro
    for m in (False, True):
        nm = "m" if m else "u"
        seg["P" + nm] = gen_qk0(m) + check("qk0" + nm, 0, "D") + it_even("it0" + nm, "D1" if m else "D", "D", m, first_pv=True, salu=sa)
    seg["UDD"] = it_odd("uddA", "D", "D", False) + it_even("uddB", "D", "D", False, ["s_sub_u32 s47, s47, 1", "s_cmp_lg_u32 s47, 0", "s_cbranch_scc1 L_udd"])
    seg["UDDm"] = it_odd("uddmA", "D", "D", True) + it_even("uddmB", "D1", "D", True)
    fake = lambda tag, n: [Ins("buffer_load_dwordx4 v240, s[16:19], s55 offen lds", tag) for _ in range(n)]
    ee = gen_early_epi()
    seg["UDS"] = it_odd("udsA", "S", "D1", False) + it_even("udsB", "S", "S", False, xops=ee, vmn="need", raw=fake("need", 4) + fake("x", 12))
    seg["USS"] = it_odd("ussA", "S", "S", False) + it_even("ussB", "S", "S", False, ["s_sub_u32 s47, s47, 1", "s_cmp_lg_u32 s47, 0", "s_cbranch_scc1 L_uss"])
    g1, g2 = gp1(), gp2()
    vd = lambda adv: [(["s_mov_b32 m0, s53"] if q == 0 else [], f"buffer_load_dwordx4 v240, s[16:19], s55 offen offset:{q * 1024}{KSC} lds", "v") for q in range(4)]
    advv = ["s_add_u32 s55, s55, 0x8000", "s_add_u32 s53, s53, 0x8000", "s_and_b32 s53, s53, 0x1ffff"]
    n1, n2, n3 = PRE_SPLIT
    g1a = [(advv + list(g1[0][0]), g1[0][1], g1[0][2])] + g1[1:n1]
    xa, xb, xc, xd = vd(0) + g1a, vd(0) + g1[n1:n2], g1[n2:n3] + g2[:12], g1[n3:] + g2[12:]
    seg["USSp"] = it_odd("usspA", "S", "S", False, extra=xa, vmn="need", raw=fake("need", 4) + fake("x", 12)) + \
                  it_even("usspB", "S", "S", False, extra=xb, vmn="need", raw=fake("need", 4) + fake("x", 4 + len(xa)))
    seg["USSm"] = it_odd("ussmA", "S", "S", True, extra=xc, vmn="need", raw=fake("need", 4) + fake("x", len(xa) - 4 + len(xb))) + \
                  it_even("ussmB", "S1", "S", True, extra=xd, vmn="need", raw=fake("need", 4) + fake("x", len(xb) - 4 + len(xc)))
    w01 = chunk(0, a=False) + chunk(1, a=False)
    seg["UDSm"] = it_odd("udsmA", "S", "D1", True, extra=w01, vmn="need", raw=fake("need", 1)) + \
                  it_even("udsmB", "S1", "S", True, extra=g2, xops=ee[1:], vmn="need", raw=fake("need", 1) + fake("x", 8))
    seg["E"], tail_slow = gen_tail()
    seg["EE"] = []
    HC = ["v_cmp_ne_u32 vcc, 1, v207", "s_nop 0"]
    gpl = []
    for c in range(6):
        for pre, ins, tag in chunk(c, w=False): gpl += list(pre) + [ins]
    pf2 = [] if PFOG else PFL[PFM:]
    hpub = ["v_add_u32 v236, s58, v240", f"buffer_store_dword v249, v248, s[20:23], s98 offen{STF}"]

    out = list(seg["G"])
    out += ["s_cmp_eq_u32 s30, 0", "s_cbranch_scc1 L_pm"] + seg["Pu"]
    if DIAG and not DIAG2: out.append(stamp(9).t)
    out += (hpub + st4(2) if os.environ.get("HS") else st4(2) + hpub) + ["s_sub_u32 s47, s30, 1", "s_cmp_eq_u32 s47, 0", "s_cbranch_scc1 L_uddm"]
    out += [f".p2align {AL}", "L_udd:"] + seg["UDD"]
    out += ["L_uddm:"] + pf2 + st4(3) + seg["UDDm"]
    out += ["s_cmp_eq_u32 s30, 7", "s_cbranch_scc1 L_last7"]
    out += ["L_uds:"] + pf2 + st4(4) + seg["UDS"] + st4(5) + seg["EE"] + st4(6)
    out += ["s_lshl_b32 s47, s30, 1", "s_sub_u32 s47, 12, s47", "s_cmp_eq_u32 s47, 0", "s_cbranch_scc1 L_ussp"]
    out += [f".p2align {AL}", "L_uss:"] + seg["USS"]
    out += ["L_ussp:"] + st4(7) + ["s_waitcnt vmcnt(20)"] + HC + ["s_cbranch_vccnz L_hwait", "L_hok:"] + seg["USSp"] + seg["USSm"]
    out += ["L_fin:"] + st4(8) + seg["E"]
    out += ["L_f_end:", "s_endpgm"]
    out += ["L_pm:"] + seg["Pm"] + ([stamp(9).t] if DIAG and not DIAG2 else []) + hpub + ["s_branch L_uds"]
    out += ["L_last7:", HPOLL] + opf() + seg["UDSm"] + HC + ["s_cbranch_vccnz L_h2wait", "L_h2ok:"] + gpl + ["s_branch L_fin"]
    out += spin("h", HPOLL, HC[0]) + spin("h2", HPOLL, HC[0])
    out += tail_slow
    if FAST: out += gen_safe()
    out += ["L_xnwait:", "s_mov_b32 s44, 0x40000", "L_xnspin:", "s_sub_u32 s44, s44, 1", "s_cbranch_scc1 L_xnok", "s_sleep 2",
            XPOLL, "s_waitcnt vmcnt(0)",
            XCMP, "s_cbranch_vccnz L_xnspin", "s_branch L_xnok"]
    out += ["L_kvwait:", "s_mov_b32 s44, 0x40000", "L_kvspin:", "s_sub_u32 s44, s44, 1", "s_cbranch_scc1 L_kvok", "s_sleep 2",
            "buffer_load_dword v244, v243, s[20:23], s59 offen sc1", "s_waitcnt vmcnt(0)",
            "v_cmp_ne_u32 vcc, 1, v244", "s_cbranch_vccnz L_kvspin", "s_branch L_kvok"]
    for site, par, tq in stubs:
        out += [f"L_stub_{site}:", f"s_call_b64 s[62:63], L_rare_{par}{tq}", f"s_branch L_ret_{site}"]
    for par, tq in sorted({(par, tq) for _, par, tq in stubs}):
        out += [f"L_rare_{par}{tq}:"] + gen_rare(par, QSET[tq])
    for path in (["G", "Pu", "UDD", "UDD", "UDDm", "UDS", "EE", "USS", "USS", "USSp", "USSm", "E"], ["G", "Pm", "UDS"], ["UDDm", "UDSm", "EE", "E"]):
        tx = []
        for k in path: tx += seg[k]
        for e in lint(tx, "f")[:40]: print(e)
    return out

KVPUB = int(os.environ.get("KVPUB", "23"))
STPV = float(os.environ.get("STPV", "26"))
STP = float(os.environ.get("STP", "29"))
STPK1 = float(os.environ.get("STPK1", "50"))
VW0 = int(os.environ.get("VW0", "340"))
WP = int(os.environ.get("WP", "14"))
XNC = int(os.environ.get("XNC", "540"))
LCAP = int(os.environ.get("LCAP", "3"))
WSH = int(os.environ.get("WSH", "18"))
XP = float(os.environ.get("XP", "5"))
PFOG = int(os.environ.get("PFOG", "0"))
AL = int(os.environ.get("AL", "3"))
XBAR = int(os.environ.get("XBAR", "1"))
NTX = os.environ.get("NTX", " nt")
PFM = int(os.environ.get("PFM", "1"))
PFL = [] if os.environ.get("NOPFO") else ["buffer_load_dword v253, v252, s[4:7], s39 offen", "buffer_load_dword v251, v252, s[12:15], s39 offen", "buffer_load_dword v250, v252, s[24:27], s39 offen"]
WQW = int(os.environ.get("WQW", "20"))
ONE1 = int(os.environ.get("ONE1", "1"))
GUZ = int(os.environ.get("GUZ", "1"))
CPF = int(os.environ.get("CPF", "1"))
if __name__ == "__main__":
    print(len(gen_f_kernel()))
```

```python
from asmlib import *
from sched16 import *
import math, os, re
MF = "v_mfma_f32_16x16x32_bf16"
KNAME = "recurrent_scan__compressed_kv_cla__glu_gated_geglu__prompt_kernel"
WSB = int(os.environ.get("WSB", "0"), 0)
WS_XN = WSB + 0x0
WS_KV = WSB + 0x200000
WS_ACT = WSB + 0x2200000
WS_PART = WSB + 0x4000000
WS_FLAG = WSB + 0x5000000
ACT_ROW = 184 * 1024
LOG2E = 1.4426950408889634
KSCALE = LOG2E / math.sqrt(128.0)
BIG = 2.0 ** 100
THR = float(os.environ.get("THR", "40"))
FAST = int(os.environ.get("FAST", "1"))
NX = int(os.environ.get("NX", "8")) if FAST else 0
SH = float(os.environ.get("SH", "64"))
LMAX = 2.0 ** float(os.environ.get("LMAXE", "60"))
STF = " sc1"
ASYM = int(os.environ.get("ASYM", "0"))
LV = int(os.environ.get("LV", "1"))
BYTEF = int(os.environ.get("BYTEF", "0"))
XPOLL = "buffer_load_dword v244, v243, s[4:7], 0 offen sc1" if not ASYM else "buffer_load_dwordx2 v[224:225], v243, s[4:7], 0 offen sc1"
XSH = int(os.environ.get("XSH", "4"))
XCMP = "v_cmp_ne_u32 vcc, 0x01010101, v244" if BYTEF else ("v_cmp_gt_u32 vcc, 16, v224" if ASYM else "v_cmp_gt_u32 vcc, 16, v244")
XPL = int(os.environ.get("XPL", "418"))
VWP = int(os.environ.get("VWP", "14"))
GPW = int(os.environ.get("GPW", "7"))
ASC = os.environ.get("ASC", " sc1")
XSC = os.environ.get("XSC", " sc1")
KSC = os.environ.get("KSC", " sc1")
NT = os.environ.get("NT", "")
NTV = os.environ.get("NTV", "")
PFA = int(os.environ.get("PFA", "1"))
PFW = os.environ.get("PFW", "vgq")
NTD = os.environ.get("NTD", "")
NTA = " nt" if "a" in NTD else ""
ALEAD = int(os.environ.get("ALEAD", "2"))
EARLY = int(os.environ.get("EARLY", "0"))
OPF = int(os.environ.get("OPF", "0"))
WSB = int(os.environ.get("WSB", "0"), 0)
DIAG4 = bool(os.environ.get("DIAG4"))
st4 = lambda k: [stamp(k).t] if DIAG4 else []
LEADP = int(os.environ.get("LEADP", "14"))
GBS_ = int(os.environ.get("GBS_", "20"))
GBD_ = int(os.environ.get("GBD_", "22"))
DIAG3 = bool(os.environ.get("DIAG3"))
DIAG2 = [int(x) for x in os.environ.get("DIAG2", "").split(",") if x]
def vr(b, n=4): return f"v[{b}:{b + n - 1}]"
def ar(b, n=4): return f"a[{b}:{b + n - 1}]"
def srd(p, d, lo, size):
    p(f"s_mov_b32 s{d}, s{lo}")
    p(f"s_mov_b32 s{d + 1}, s{lo + 1}")
    p(f"s_mov_b32 s{d + 2}, {size:#x}")
    p(f"s_mov_b32 s{d + 3}, 0x20000")

def wave_reduce(p, regs_):
    steps = ["quad_perm:[1,0,3,2] row_mask:0xf bank_mask:0xf", "quad_perm:[2,3,0,1] row_mask:0xf bank_mask:0xf",
             "row_half_mirror row_mask:0xf bank_mask:0xf", "row_mirror row_mask:0xf bank_mask:0xf",
             "row_bcast:15 row_mask:0xa bank_mask:0xf", "row_bcast:31 row_mask:0xc bank_mask:0xf"]
    for st in steps:
        p("s_nop 1")
        for r in regs_: p(f"v_add_f32_dpp v{r}, v{r}, v{r} {st}")
    p("s_nop 1")
def round_bf16(p, dst, src):
    p(f"v_cvt_pk_bf16_f32 v{dst}, v{src}, v{src}")
    p(f"v_and_b32 v{dst}, 0xffff0000, v{dst}")

def emit_ln(p):
    for r in range(2):
        for k in range(4):
            p(f"v_lshlrev_b32 v{8 + 8 * r + 2 * k}, 16, v{4 * r + k}")
            p(f"v_and_b32 v{9 + 8 * r + 2 * k}, 0xffff0000, v{4 * r + k}")
    for r in range(2):
        b = 8 + 8 * r
        p(f"v_add_f32 v{24 + r}, v{b}, v{b + 1}")
        for k in range(2, 8): p(f"v_add_f32 v{24 + r}, v{24 + r}, v{b + k}")
    wave_reduce(p, [24, 25])
    p("v_readlane_b32 s58, v24, 63")
    p("v_readlane_b32 s59, v25, 63")
    p(f"v_mov_b32 v30, {f2u(1.0 / 512):#x}")
    p("s_nop 1")
    for r in range(2): p(f"v_mul_f32 v{26 + r}, s{58 + r}, v30")
    for r in range(2):
        b = 8 + 8 * r
        for k in range(8): p(f"v_sub_f32 v{32 + k}, v{b + k}, v{26 + r}")
        p(f"v_mul_f32 v{24 + r}, v32, v32")
        for k in range(1, 8): p(f"v_fmac_f32 v{24 + r}, v{32 + k}, v{32 + k}")
    wave_reduce(p, [24, 25])
    p("v_readlane_b32 s58, v24, 63")
    p("v_readlane_b32 s59, v25, 63")
    p("s_nop 1")
    for r in range(2):
        p(f"v_mul_f32 v{28 + r}, s{58 + r}, v30")
        round_bf16(p, 28 + r, 28 + r)
        p(f"v_add_f32 v{28 + r}, {f2u(1e-5):#x}, v{28 + r}")
        round_bf16(p, 28 + r, 28 + r)
        p(f"v_sqrt_f32 v{28 + r}, v{28 + r}")
        p("s_nop 0")
        round_bf16(p, 28 + r, 28 + r)
        p(f"v_rcp_f32 v{28 + r}, v{28 + r}")
        round_bf16(p, 26 + r, 26 + r)
    for r in range(2):
        b = 8 + 8 * r
        for k in range(8): p(f"v_sub_f32 v{b + k}, v{b + k}, v{26 + r}")
        for k in range(4): p(f"v_cvt_pk_bf16_f32 v{32 + k}, v{b + 2 * k}, v{b + 2 * k + 1}")
        for k in range(4):
            p(f"v_lshlrev_b32 v{b + 2 * k}, 16, v{32 + k}")
            p(f"v_and_b32 v{b + 2 * k + 1}, 0xffff0000, v{32 + k}")
        for k in range(8): p(f"v_mul_f32 v{b + k}, v{b + k}, v{28 + r}")
        for k in range(4): p(f"v_cvt_pk_bf16_f32 v{40 + 4 * r + k}, v{b + 2 * k}, v{b + 2 * k + 1}")

def ln_ops(g0, g1):
    p = Prog(); emit_ln(p)
    ops = []; lag = False
    for it in p.items:
        t = it.t
        if t.startswith("s_nop"): lag = True; continue
        t = re.sub(r"\bv(\d+)\b", lambda m: "v%d" % (int(m.group(1)) + 176 if int(m.group(1)) < 8 else int(m.group(1)) + 128), t)
        ops.append(Op(t, g0, g1, [ops[-1]] if lag else [], lag=2)); lag = False
    return ops

def Sreg(par, qb, kb): return par * 64 + qb * 16 + kb * 4
def Preg(qb, s): return 128 + qb * 8 + s * 4
def NEGM(qb): return 160 + 4 * qb
def LACC(qb): return 176 + 4 * qb
ONES = 192
MX = [196, 197]; VTM = 198; VTMASK = 199; VCUR, VPREV = 200, 201; TMP = [202, 203, 204, 205]
def Qreg(qb, t): return (t // 2) * 64 + qb * 8 + (t % 2) * 4
def Oreg(qb, db): return [32, 96, 128, 160][qb] + db * 4
def Fbuf(f): return 192 + (f % 16) * 4
S_THR = 61
NPRE = int(os.environ.get("NPRE", "8"))

def tail_reads(base_reg, off):
    return [f"ds_read_b128 {ar(Fbuf(f))}, v{base_reg} offset:{off + f * 1024}" for f in range(NPRE)]

QSET = {'D': [0, 1, 2, 3], 'S': [0, 1], 'D1': [0, 1, 3], 'S1': [1]}
def gen_iter(name, tq, tp, parq, masked, odd_q, kreg, koff, vreg, voff, nreg, noff, first_pv=False, end_ops=(), swap=False, mid_ops=(), vmn=16, extra=None, raw=False, salu=(), xops=()):
    qq = QSET[tq]
    qp = QSET[tp]
    parp = 1 - parq
    lv = LV and tq == 'D'
    mf = []; use = {}; lastq = {}; lastuse = {}
    for kb in range(4):
        for t in range(4):
            f = kb * 4 + t
            use[f] = len(mf)
            for qb in qq:
                d = Sreg(parq, qb, kb)
                mf.append(f"{MF} {vr(d)}, {ar(Fbuf(f))}, {ar(Qreg(qb, t))}, {vr(NEGM(qb)) if t == 0 else vr(d)}")
                lastq[(qb, kb)] = len(mf) - 1
            lastuse[f] = len(mf) - 1
    firstp = {}
    for s in range(2):
        for db in range(8):
            f = 16 + s * 8 + db
            use[f] = len(mf)
            for qb in qp:
                o = Oreg(qb, db)
                firstp.setdefault((qb, s), len(mf))
                mf.append(f"{MF} {ar(o)}, {ar(Fbuf(f))}, {vr(Preg(qb, s))}, {0 if (first_pv and s == 0) else ar(o)}")
            lastuse[f] = len(mf) - 1
        for qb in qp:
            if lv and qb >= 2: continue
            mf.append(f"{MF} {vr(LACC(qb))}, {vr(ONES)}, {vr(Preg(qb, s))}, {0 if (first_pv and s == 0) else vr(LACC(qb))}")
    n = len(mf)
    S = Sched16(mf)
    gB = n - (GBS_ if len(qp) == 2 else GBD_)
    LEAD = LEADP
    for f in range(32):
        tag = ("F", "n", f) if f < NPRE else ("F", "c", f)
        if use[f] > 0: S.add_first(use[f] - 1, Wait("lgkm", tag))
    if isinstance(vmn, int): S.add_first(gB, Ins(f"s_waitcnt vmcnt({vmn}) lgkmcnt(0)"))
    else:
        S.add_first(gB, Ins("s_waitcnt lgkmcnt(0)")); S.add_first(gB + 1, Wait("vm", vmn))
    S.add_first(gB + 1, "s_barrier")
    S.add_first(n - 1, Wait("lgkm", ("F", "x", 0)))
    R = []
    todo = list(range(NPRE, 32))
    for k, f in enumerate(todo):
        e = lastuse[f - 16] if f >= 16 else 0
        dl = min(use[f] - LEAD + 4, gB - 5 - (31 - f))
        e = max(e, min(use[f] - LEAD - 8, dl - 4), 0)
        dl = max(dl, e)
        assert dl < use[f] - 1, (name, f, dl, e)
        if f < 16: ins = f"ds_read_b128 {ar(Fbuf(f))}, v{kreg} offset:{koff + f * 1024}"
        else: ins = f"ds_read_b128 {ar(Fbuf(f))}, v{vreg} offset:{voff + (f - 16) * 1024}"
        R.append(Op(ins, max(e, 0), max(dl, 0), tag=("F", "c", f)))
    for f, ins in enumerate(tail_reads(nreg, noff)):
        R.append(Op(ins, max(gB + 1, lastuse[f + 16]), min(n - 2, gB + 3 + 2 * f), tag=("F", "x", f)))
    D = []
    span = gB - 8
    for q in range(4):
        D.append(Op(f"buffer_load_dwordx4 v240, s[16:19], s55 offen offset:{q * 1024}{KSC} lds", 2 + q * span // 4, 2 + (q + 1) * span // 4 - 1, tag="kv"))
    for x in ["s_add_u32 s54, s54, 0x8000", "s_add_u32 s52, s52, 0x8000", "s_and_b32 s52, s52, 0x1ffff", "s_mov_b32 m0, s52"]:
        D.append(Op(x, 0, gB))
    tl = n - 3 - (gB + 1)
    for q in range(4):
        D.append(Op(f"buffer_load_dwordx4 v240, s[16:19], s54 offen offset:{q * 1024}{KSC} lds", gB + 1 + q * tl // 4, gB + 1 + (q + 1) * tl // 4, tag="kv"))
    D.append(Op("s_mov_b32 m0, s53", 0, n - 1))
    if extra is not None:
        D = []
        nv = len(extra)
        for i, (pre, ins, tag) in enumerate(extra):
            for x in pre: D.append(Op(x, 0, n - 3))
            D.append(Op(ins, 1 + i * (n - 6) // nv, 1 + (i + 1) * (n - 6) // nv + 2, tag=tag, deps=[D[-1]] if pre else []))
    E = []; C = []; AD = []
    for s in range(2):
        for qb in qp:
            b = Sreg(parp, qb, 2 * s)
            dl = firstp[(qb, s)] - 2
            es = [Op(f"v_exp_f32 v{b + r}, v{b + r}", 0, dl - 1) for r in range(8)]
            done = NX if (s == 0 and qb == qp[0]) else 0
            E += es[done:]
            if lv and qb >= 2:
                for r in range(8):
                    L = LACC(qb)
                    AD.append(Op(f"v_mov_b32 v{L}, v{b + r}" if (first_pv and s == 0 and r == 0) else f"v_add_f32 v{L}, v{L}, v{b + r}", 0, n - 1, [es[r]]))
            C += [Op(f"v_cvt_pk_bf16_f32 v{Preg(qb, s) + k}, v{b + 2 * k}, v{b + 2 * k + 1}", 0, dl, [e for i, e in enumerate(es) if i // 2 == k and i >= done]) for k in range(4)]
    M = []
    mins = {}
    vals = []
    mq = [qq[-1] if odd_q else qq[-2]]
    first = True
    for kb in range(4):
        for qb in qq:
            b = Sreg(parq, qb, kb)
            e0 = lastq[(qb, kb)] + (5 if len(qq) > 1 else 8)
            if masked and qb in mq:
                for r in range(4):
                    kk = 16 * kb + r
                    tm = TMP[r % 2]
                    M.append(Op(f"v_subrev_f32 v{tm}, {f2u(kk * BIG):#x}, v{VTMASK}", 0, n - 3))
                    M.append(Op(f"v_min_f32 v{b + r}, v{b + r}, v{tm}", e0, n - 3))
                    mins[b + r] = M[-1]
            if FAST: continue
            if first:
                M.append(Op(f"v_max_f32 v{MX[0]}, v{b}, v{b + 1}", e0, n - 3)); first = False
            else:
                M.append(Op(f"v_max3_f32 v{MX[0]}, v{MX[0]}, v{b}, v{b + 1}", e0, n - 3))
            M.append(Op(f"v_max3_f32 v{MX[0]}, v{MX[0]}, v{b + 2}, v{b + 3}", e0, n - 3))
    if not FAST: M.append(Op(f"v_cmp_lt_f32 vcc, s{S_THR}, v{MX[0]}", 0, n - 2))
    for r in range(NX):
        b = Sreg(parq, qq[0], 0) + r
        E.append(Op(f"v_exp_f32 v{b}, v{b}", lastq[(qq[0], r // 4)] + 8, n - 1, [mins[b]] if b in mins else []))
    X = []
    if swap:
        X = [Op(f"v_xor_b32 v{VCUR}, 0x10000, v{VCUR}", gB, n - 1), Op(f"v_xor_b32 v{VPREV}, 0x10000, v{VPREV}", gB, n - 1, [R[-1]])]
    XO = []
    for i, x in enumerate(xops):
        prev_trans = XO and XO[-1].t.startswith(TRANS)
        XO.append(Op(x, 5 + (i * (n - 12)) // len(xops), min(n - 2, 5 + (i * (n - 12)) // len(xops) + 4), tag="xo"))
    k = schedule(S, [R, D, E, C, M, X, XO, AD], 0, n - 1, name=name)
    if extra is None:
        g = D[7].g + 1
        for x in ["s_add_u32 s55, s55, 0x8000", "s_add_u32 s53, s53, 0x8000", "s_and_b32 s53, s53, 0x1ffff"] + list(mid_ops):
            while S.first[g]: g += 1
            S.add_first(g, x); g += 1
        assert g <= D[-1].g, (name, g, D[-1].g)
    g = 0
    for x in salu:
        while g < n - 1 and S.first[g]: g += 1
        for y in (x if isinstance(x, list) else [x]): S.add_first(g, y)
        g = min(g + 1, n - 1)
    for x in end_ops: S.add_last(n - 1, x)
    print(S.report(f"{name}(k={k})"))
    pre = [Ins(f"ds_read_b128 {ar(Fbuf(f))}, v0", ("F", "n", f)) for f in range(NPRE)] + [Wait("lgkm", ("F", "n", 0))]
    if raw: pre = list(raw) + pre
    return [i.t for i in resolve(S.items(), pre)]

def allreduce4(p, op, src, t0, t1):
    p(f"v_mov_b32 v{t0}, v{src}")
    p(f"v_mov_b32 v{t1}, v{src}")
    p("s_nop 1")
    p(f"v_permlane32_swap_b32 v{t0}, v{t1}")
    p("s_nop 1")
    p(f"{op} v{t0}, v{t0}, v{t1}")
    p(f"v_mov_b32 v{t1}, v{t0}")
    p("s_nop 1")
    p(f"v_permlane16_swap_b32 v{t0}, v{t1}")
    p("s_nop 1")
    p(f"{op} v{t0}, v{t0}, v{t1}")

def rowmax(p, par, qb):
    b = Sreg(par, qb, 0)
    p(f"v_max3_f32 v{MX[1]}, v{b}, v{b + 1}, v{b + 2}")
    for k in range(3, 15, 2): p(f"v_max3_f32 v{MX[1]}, v{MX[1]}, v{b + k}, v{b + k + 1}")
    p(f"v_max_f32 v{MX[1]}, v{MX[1]}, v{b + 15}")
    allreduce4(p, "v_max_f32", MX[1], TMP[0], TMP[1])

def gen_rare(par, qbs):
    p = Prog()
    p("s_nop 15")
    for qb in qbs:
        rowmax(p, par, qb)
        p(f"v_max_f32 v{TMP[0]}, 0, v{TMP[0]}")
        p(f"v_sub_f32 v{TMP[1]}, 0, v{TMP[0]}")
        p(f"v_exp_f32 v{TMP[1]}, v{TMP[1]}")
        for r in range(4): p(f"v_sub_f32 v{NEGM(qb) + r}, v{NEGM(qb) + r}, v{TMP[0]}")
        for r in range(16): p(f"v_sub_f32 v{Sreg(par, qb, 0) + r}, v{Sreg(par, qb, 0) + r}, v{TMP[0]}")
        for r in range(4): p(f"v_mul_f32 v{LACC(qb) + r}, v{LACC(qb) + r}, v{TMP[1]}")
        for r in range(0, 32, 2):
            a = Oreg(qb, 0) + r
            p(f"v_accvgpr_read_b32 v{TMP[2]}, a{a}")
            p(f"v_accvgpr_read_b32 v{TMP[3]}, a{a + 1}")
            p(f"v_mul_f32 v{TMP[2]}, v{TMP[2]}, v{TMP[1]}")
            p(f"v_mul_f32 v{TMP[3]}, v{TMP[3]}, v{TMP[1]}")
            p(f"v_accvgpr_write_b32 a{a}, v{TMP[2]}")
            p(f"v_accvgpr_write_b32 a{a + 1}, v{TMP[3]}")
    p("s_nop 1")
    p("s_setpc_b64 s[62:63]")
    return [i.t for i in p.items]


GPUB = int(os.environ.get("GPUB", "16"))
OB = int(os.environ.get("OB", "2"))
GB2 = int(os.environ.get("GB2", "1"))
GPOLL = int(os.environ.get("GPOLL", "20"))
CPUB = int(os.environ.get("CPUB", "2"))
CTXPF = int(os.environ.get("CTXPF", "0"))
PUB0 = int(os.environ.get("PUB0", "8"))
PUBP = int(os.environ.get("PUBP", "12"))
TP = float(os.environ.get("TP", "4.25"))
TP0 = float(os.environ.get("TP0", "4"))
LST = int(os.environ.get("LST", "8"))
LSP = int(os.environ.get("LSP", "10"))
CPOLL = int(os.environ.get("CPOLL", "100"))
CCHK = int(os.environ.get("CCHK", "136"))
def spin(name, load, cmp):
    return [f"L_{name}wait:", "s_mov_b32 s44, 0x40000", f"L_{name}spin:", "s_sub_u32 s44, s44, 1", f"s_cbranch_scc1 L_{name}ok", "s_sleep 1",
            load, "s_waitcnt vmcnt(0)", cmp, f"s_cbranch_vccnz L_{name}spin", f"s_branch L_{name}ok"]

def o_epi(qb, scr, pk):
    out = []
    for t in range(4):
        R = scr(t); P = pk(t)
        a = Oreg(qb, 2 * t)
        L = LACC(qb)
        rd = [f"v_accvgpr_read_b32 v{R + k}, a{a + k}" for k in range(8)]
        if t: ops = rd
        elif LV and qb >= 2:
            ops = [f"v_mov_b32 v{L + 1}, v{L}"] + rd[:2] + [f"v_permlane32_swap_b32 v{L}, v{L + 1}"] + rd[2:3] + [f"v_add_f32 v{L}, v{L}, v{L + 1}", f"v_mov_b32 v{L + 1}, v{L}"] + \
                  rd[3:5] + [f"v_permlane16_swap_b32 v{L}, v{L + 1}"] + rd[5:6] + [f"v_add_f32 v{L}, v{L}, v{L + 1}", f"v_rcp_f32 v{TMP[qb]}, v{L}"] + rd[6:]
        elif not ONE1: ops = [f"v_rcp_f32 v{TMP[qb]}, v{L}"] + rd
        else:
            ops = [f"v_mov_b32 v{L + 1}, v{L}"] + rd[:2] + [f"v_permlane32_swap_b32 v{L}, v{L + 1}"] + rd[2:3] + [f"v_mov_b32 v{L + 1}, v{L}"] + rd[3:5] + \
                  [f"v_permlane16_swap_b32 v{L}, v{L + 1}"] + rd[5:7] + [f"v_rcp_f32 v{TMP[qb]}, v{L}"] + rd[7:]
        ops += [f"v_mul_f32 v{R + k}, v{R + k}, v{TMP[qb]}" for k in range(8)]
        ops += [f"v_cvt_pk_bf16_f32 v{P + k}, v{R + 2 * k}, v{R + 2 * k + 1}" for k in range(4)]
        out.append((ops, f"buffer_store_dwordx4 {vr(P)}, v{240 if qb % 2 == 0 else 246}, s[20:23], s{100 + qb // 2} offen offset:{t * 1024}{STF}"))
    return out

NK = 46; NC = 23
SL = [8, 9, 0, 1, 2, 3, 4, 5]
def wofs(n): return SL[(n // 2) % 8] * 16384 + (n % 2) * 8192
def areg(n): return 128 + (n % 16) * 8
def areg2(n, tb): return vr(96 + (n - 8) * 8 + 4 * tb) if 8 <= n < 12 else ar(areg(n) + 4 * tb)
def w_ops(n):
    gp = n < 14
    j = n if gp else n - 14
    pre = [f"s_add_u32 m0, s{[51, 56, 50][wofs(n) >> 16]}, {wofs(n) & 0xffff if wofs(n) < 0x20000 else wofs(n)}", f"s_add_u32 s58, s{48 if gp else 49}, {j * 32768}"]
    wsrd = "s[12:15]" if gp else "s[8:11]"
    return [(pre, f"buffer_load_dwordx4 v242, {wsrd}, s58 offen lds", ("cw", n // 2)),
            ([], f"buffer_load_dwordx4 v243, {wsrd}, s58 offen offset:1024 lds", ("cw", n // 2))]
def a_ops(n):
    gp = n < 14
    j = n if gp else n - 14
    pre = [f"s_add_u32 s59, s{64 if gp else 65}, {j * 1024}"] if j % 2 == 0 else []
    return [(pre, f"buffer_load_dwordx4 {areg2(n, 0)}, v240, s[20:23], s59 offen offset:{(j % 2) * 1024}{ASC}", ("ca", n // 2)),
            ([], f"buffer_load_dwordx4 {areg2(n, 1)}, v246, s[20:23], s59 offen offset:{(j % 2) * 1024}{ASC}", ("ca", n // 2))]
def chunk(ch, w=True, a=True):
    return (w_ops(2 * ch) + w_ops(2 * ch + 1) if w else []) + (a_ops(2 * ch) + a_ops(2 * ch + 1) if a else [])
KEEP = 6 * 16384
GB = [36, 37, 41]

def tail_setup():
    sa = ["s_lshr_b32 s35, s34, 1", "s_sub_u32 s31, 15, s30", ["s_bitcmp1_b32 s34, 0", "s_cselect_b32 s31, s31, s30"], "s_and_b32 s45, s29, 3",
          "s_lshl_b32 s46, s31, 3", "s_add_u32 s46, s46, s28", f"s_mul_i32 s46, s46, {ACT_ROW}",
          f"s_add_u32 s46, s46, {WS_ACT:#x}", f"s_mul_i32 s47, s35, {14 * 1024}", "s_add_u32 s64, s46, s47", f"s_add_u32 s64, s64, {128 * 1024}",
          "s_lshl_b32 s47, s35, 15", "s_add_u32 s65, s46, s47",
          "s_lshl_b32 s46, s45, 8", "s_lshl_b32 s47, s28, 13", "s_add_u32 s46, s46, s47", f"s_mul_i32 s47, s35, {14 * 32 * 1024}",
          "s_add_u32 s48, s46, s47", "s_lshl_b32 s47, s35, 20", "s_add_u32 s49, s46, s47", "s_lshl_b32 s50, s28, 11",
          "s_mov_b32 s8, s4", "s_mov_b32 s9, s5", "s_mov_b32 s38, 0", "s_mov_b32 s12, s96", "s_mov_b32 s13, s97", f"s_mov_b32 s14, {1792 * 1024}",
          "s_and_b32 s46, s34, 1", "s_lshl_b32 s46, s46, 2", "s_add_u32 s3, s99, s46", "s_lshl_b32 s46, s35, 13", "s_add_u32 s3, s3, s46",
          "s_lshl_b32 s51, s31, 2", "s_add_u32 s51, s51, s45", "s_lshl_b32 s56, s51, 18", f"s_add_u32 s56, s56, {WS_PART:#x}",
          "s_lshl_b32 s46, s28, 16", "s_lshl_b32 s47, s35, 13", "s_add_u32 s40, s56, s46", "s_add_u32 s40, s40, s47",
          "s_lshl_b32 s46, s35, 16", "s_add_u32 s56, s56, s46", "s_add_u32 s56, s56, s50", f"s_mov_b32 s58, {KEEP + 16384 - 0x10000}",
          ["s_cmp_eq_u32 s28, s35", "s_cselect_b32 s40, 0x7ff00000, s40", f"s_cselect_b32 s58, {KEEP - 0x10000}, s58"]]
    for k in range(3): sa += [f"s_add_u32 s46, s35, {k + 1}", "s_and_b32 s46, s46, 3", "s_lshl_b32 s46, s46, 13", f"s_add_u32 s{GB[k]}, s56, s46"]
    sa += ["s_lshl_b32 s94, s51, 9", f"s_add_u32 s94, s94, {WS_FLAG:#x}", "s_lshl_b32 s46, s35, 7", "s_add_u32 s95, s94, s46",
           "s_lshl_b32 s46, s31, 17", "s_lshl_b32 s47, s35, 14", "s_add_u32 s46, s46, s47", "s_lshl_b32 s47, s45, 8", "s_add_u32 s46, s46, s47",
           "s_lshl_b32 s47, s28, 6", "s_add_u32 s57, s46, s47", "s_lshl_b32 s46, s29, 12", "s_add_u32 s100, s46, s32", "s_add_u32 s101, s46, s33",
           "s_and_b32 s32, s30, 1", "s_lshl_b32 s32, s32, 16", "s_xor_b32 s33, s32, 0x10000", "s_add_u32 s51, s50, s32", "s_add_u32 s56, s50, s33",
           "s_add_u32 s58, s58, s33"]
    va = ["v_lshrrev_b32 v244, 4, v254", "v_and_b32 v245, 15, v254", "v_lshlrev_b32 v243, 1, v244", "v_xor_b32 v245, v245, v243",
          "v_lshlrev_b32 v244, 10, v244", "v_lshl_add_u32 v242, v245, 4, v244", "v_xor_b32 v243, 0x80, v242", f"v_add_u32 v243, {4096 - 1024}, v243",
          "v_lshrrev_b32 v244, 2, v254", "v_and_b32 v245, 7, v244", "v_lshlrev_b32 v244, 8, v244", "v_and_b32 v241, 3, v254", "v_lshl_add_u32 v244, v241, 3, v244",
          "v_add_u32 v244, s32, v244", "s_sub_u32 s46, 0x20000, s32"]
    for c in range(8):
        va += [f"v_xor_b32 v241, {c}, v245", f"v_lshl_add_u32 v{208 + c}, v241, 5, v244", f"v_xor_b32 v{216 + c}, 0x10000, v{208 + c}", f"v_add_u32 v{224 + c}, s46, v{208 + c}"]
    va += ["v_lshl_add_u32 v237, v255, 11, v240", f"v_add_u32 v237, {KEEP - 0x10000}, v237", "v_add_u32 v237, s33, v237",
           "v_and_b32 v247, 3, v254", "v_lshlrev_b32 v247, 7, v247", "v_and_b32 v244, 15, v254", "v_lshlrev_b32 v244, 10, v244",
           "v_lshrrev_b32 v245, 4, v254", "v_lshl_add_u32 v238, v245, 3, v244", "v_add_u32 v239, 0x10000, v238"]
    va += [f"v_mov_b32 v{232 + k}, -1" for k in range(4)]
    return sa, va
HPOLL = "buffer_load_dword v207, v206, s[20:23], s99 offen sc1"
def gp1(): return chunk(0) + chunk(1) + sum([chunk(c, w=False) for c in range(2, 6)], [])
def gp2(): return sum([chunk(c, a=False) for c in range(2, 7)], [])
PRE_SPLIT = (12, 24, 28)
def gpre(): return gp1()[:PRE_SPLIT[2]] + gp2()[:12] + gp1()[PRE_SPLIT[2]:] + gp2()[12:]

def opf():
    if not OPF: return []
    return ["s_lshr_b32 s46, s2, 3", "s_lshl_b32 s46, s46, 2", "s_add_u32 s46, s46, s28", "v_lshlrev_b32 v241, 7, v254",
            "s_lshl_b32 s59, s35, 20", "s_lshl_b32 s46, s46, 13", "s_add_u32 s59, s59, s46",
            "buffer_load_dword v251, v241, s[8:11], s59 offen"]

def lchk(qa, qb_, first):
    if not FAST: return []
    return [f"v_cmp_ngt_f32 vcc, s{S_THR}, v{LACC(qa)}", "v_nop", "s_mov_b64 s[62:63], vcc" if first else "s_or_b64 s[62:63], s[62:63], vcc",
            f"v_cmp_ngt_f32 vcc, s{S_THR}, v{LACC(qb_)}", "v_nop", "s_or_b64 s[62:63], s[62:63], vcc"]

def sentinels():
    return [([f"s_add_u32 s60, s40, {32768 + (k8 // 4) * 4096}"] if k8 % 4 == 0 else [],
             f"buffer_store_dwordx4 v[232:235], v240, s[20:23], s60 offen offset:{(k8 % 4) * 1024} sc1", "sen") for k8 in range(8)]

def ee_one(qb, base):
    out = lchk(qb, qb, qb == 2)[:3]
    for ops, st in o_epi(qb, lambda t: base + 8 * t, lambda t: base + 8 * t): out += ops + [st]
    return out

def gen_early_epi(safe=False):
    out = lchk(2, 3, True)
    sn = sentinels()
    for qb in (2, 3):
        base = 32 if qb == 2 else 96
        for ops, st in o_epi(qb, lambda t: base + 8 * t, lambda t: base + 8 * t):
            pre, ins, tag = sn.pop(0)
            out += ops[:10] + list(pre) + [ins] + ops[10:] + [st]
    return [HPOLL] + out

def gen_safe():
    p = Prog()
    M_ = [NEGM(q) for q in range(4)]; TQ = [NEGM(q) + 1 for q in range(4)]
    p("s_waitcnt vmcnt(0) lgkmcnt(0)")
    p("s_nop 15")
    p("s_barrier")
    for q in range(4):
        for r in range(32): p(f"v_accvgpr_write_b32 a{Oreg(q, 0) + r}, 0")
        for r in range(4): p(f"v_mov_b32 v{LACC(q) + r}, 0")
        p(f"v_mov_b32 v{M_[q]}, {f2u(-2.0 ** 120):#x}")
    p("s_sub_u32 s46, 15, s30")
    p("s_lshl_b32 s47, s46, 7")
    p("s_lshl_b32 s52, s30, 7")
    for q in range(4):
        p(f"v_cvt_f32_u32 v{TMP[0]}, s{47 if q < 2 else 52}")
        if q & 1: p(f"v_add_f32 v{TMP[0]}, {f2u(64.0):#x}, v{TMP[0]}")
        p(f"v_mul_f32 v{TMP[0]}, {f2u(BIG):#x}, v{TMP[0]}")
        p(f"v_add_f32 v{TQ[q]}, v{VTMASK}, v{TMP[0]}")
    p(f"v_add_u32 v{VCUR}, s33, v240")
    p("s_lshl_b32 s47, s46, 1")
    p("s_add_u32 s47, s47, 2")
    p("s_lshl_b32 s54, s28, 12")
    p("s_add_u32 s52, s54, s33")
    p("s_add_u32 s53, s52, 49152")
    p("s_add_u32 s52, s52, 32768")
    p.label("L_safe_loop")
    p("s_mov_b32 m0, s52")
    p("s_add_u32 s55, s54, 16384")
    for k in range(4): p(f"buffer_load_dwordx4 v240, s[16:19], s54 offen offset:{k * 1024} sc1 lds")
    p("s_mov_b32 m0, s53")
    p("s_nop 0")
    for k in range(4): p(f"buffer_load_dwordx4 v240, s[16:19], s55 offen offset:{k * 1024} sc1 lds")
    p("s_waitcnt vmcnt(0)")
    p("s_barrier")
    for f in range(16): p(f"ds_read_b128 {ar(Fbuf(f))}, v{VCUR} offset:{32768 + f * 1024}")
    p("s_waitcnt lgkmcnt(0)")
    for kb in range(4):
        for t in range(4):
            for q in range(4):
                d = Sreg(0, q, kb)
                p(f"{MF} {vr(d)}, {ar(Fbuf(kb * 4 + t))}, {ar(Qreg(q, t))}, {vr(d) if t else 0}")
    for f in range(16): p(f"ds_read_b128 {ar(Fbuf(f))}, v{VCUR} offset:{49152 + f * 1024}")
    for q in range(4):
        b = Sreg(0, q, 0)
        for r in range(16):
            p(f"v_subrev_f32 v{TMP[r % 2]}, {f2u((16 * (r // 4) + r % 4) * BIG):#x}, v{TQ[q]}")
            p(f"v_min_f32 v{b + r}, v{b + r}, v{TMP[r % 2]}")
        p(f"v_subrev_f32 v{TQ[q]}, {f2u(64 * BIG):#x}, v{TQ[q]}")
        rowmax(p, 0, q)
        p(f"v_max_f32 v{TMP[0]}, v{TMP[0]}, v{M_[q]}")
        p(f"v_sub_f32 v{TMP[1]}, v{M_[q]}, v{TMP[0]}")
        p(f"v_exp_f32 v{TMP[1]}, v{TMP[1]}")
        p(f"v_mov_b32 v{M_[q]}, v{TMP[0]}")
        for r in range(16): p(f"v_sub_f32 v{b + r}, v{b + r}, v{TMP[0]}")
        for r in range(16): p(f"v_exp_f32 v{b + r}, v{b + r}")
        for r in range(4): p(f"v_mul_f32 v{LACC(q) + r}, v{LACC(q) + r}, v{TMP[1]}")
        for k in range(8): p(f"v_cvt_pk_bf16_f32 v{Preg(q, 0) + k}, v{b + 2 * k}, v{b + 2 * k + 1}")
        for r in range(0, 32, 2):
            a = Oreg(q, 0) + r
            p(f"v_accvgpr_read_b32 v{TMP[2]}, a{a}")
            p(f"v_accvgpr_read_b32 v{TMP[3]}, a{a + 1}")
            p(f"v_mul_f32 v{TMP[2]}, v{TMP[2]}, v{TMP[1]}")
            p(f"v_mul_f32 v{TMP[3]}, v{TMP[3]}, v{TMP[1]}")
            p(f"v_accvgpr_write_b32 a{a}, v{TMP[2]}")
            p(f"v_accvgpr_write_b32 a{a + 1}, v{TMP[3]}")
    p("s_waitcnt lgkmcnt(0)")
    p("s_barrier")
    for s in range(2):
        for db in range(8):
            for q in range(4): p(f"{MF} {ar(Oreg(q, db))}, {ar(Fbuf(s * 8 + db))}, {vr(Preg(q, s))}, {ar(Oreg(q, db))}")
        for q in range(4): p(f"{MF} {vr(LACC(q))}, {vr(ONES)}, {vr(Preg(q, s))}, {vr(LACC(q))}")
    p("s_add_u32 s54, s54, 32768")
    p("s_sub_u32 s47, s47, 1")
    p("s_cmp_lg_u32 s47, 0")
    p("s_cbranch_scc1 L_safe_loop")
    p("s_nop 15")
    p(f"s_mov_b32 s{S_THR}, 0x7f800000")
    for x in gen_early_epi(True)[1:]: p(x)
    for r in range(16): p(f"v_mov_b32 v{Sreg(1, 1, 0) + r}, {f2u(-2.0 ** 100) if r >= NX else 0:#x}")
    for pre, ins, tag in gpre():
        for x in pre: p(x)
        p(ins)
    p("s_mov_b32 s38, 1")
    p("s_branch L_fin")
    tx = [i.t for i in p.items]
    a = tx.index("L_safe_loop:"); b = tx.index("s_cbranch_scc1 L_safe_loop")
    for e in lint(tx[:b] + tx[a + 1:], "safe")[:20]: print(e)
    return ["L_safe:", "s_cmp_eq_u32 s38, 1", "s_cbranch_scc1 L_safe_ret"] + tx

def tail_pre():
    pa = [tag for pre, ins, tag in gpre()]
    pb = [tag for c in range(5) for pre, ins, tag in chunk(c, a=False)]
    d7 = {("cw", 0): 40, ("cw", 1): 40, ("cw", 2): 28, ("cw", 3): 28, ("cw", 4): 28, ("ca", 0): 28, ("ca", 1): 28,
          ("ca", 4): 12, ("ca", 5): 12, ("ca", 2): 4, ("ca", 3): 0, ("cw", 5): 4, ("cw", 6): 0}
    n = len(pa); slots = [set() for _ in range(n)]
    for tg in set(pa):
        d = min(n - 1 - max(i for i, x in enumerate(pa) if x == tg), d7[tg])
        slots[n - 1 - d].add(tg)
    return [Ins("buffer_load_dwordx4 v240, s[16:19], s55 offen lds", frozenset(x)) for x in slots]

def gen_tail():
    p = Prog()
    slow = []
    for f in range(NPRE, 16): p(f"ds_read_b128 {ar(Fbuf(16 + f))}, v{VCUR} offset:{49152 + f * 1024}", ("VE", f))
    b = Sreg(1, 1, 0)
    for r in range(NX, 16): p(f"v_exp_f32 v{b + r}, v{b + r}")
    for k in range(8): p(f"v_cvt_pk_bf16_f32 v{Preg(1, 0) + k}, v{b + 2 * k}, v{b + 2 * k + 1}")
    p("v_and_b32 v206, 0x1c00, v206")
    p.wait_vm(("cw", 0))
    p("s_waitcnt lgkmcnt(0)")
    p("s_barrier")
    for x in ["s_mov_b32 s4, s42", "s_mov_b32 s5, s43", "s_mov_b32 s6, 0x200000", "s_mov_b32 s7, 0x20000"]: p(x)
    mf = []
    for s in range(2):
        mf.append(f"{MF} {vr(LACC(1))}, {vr(ONES)}, {vr(Preg(1, s))}, {vr(LACC(1))}")
        for db in range(8): mf.append(f"{MF} {ar(Oreg(1, db))}, {ar(Fbuf(16 + s * 8 + db))}, {vr(Preg(1, s))}, {ar(Oreg(1, db))}")
    if not FAST: p(f"buffer_store_dword v249, v248, s[20:23], s98 offen offset:4{STF}", "flag")
    S = Sched16(mf)
    late = o_epi(0, lambda t: 8 * t, lambda t: 64 + 4 * t) + o_epi(1, lambda t: 32 + 8 * t, lambda t: 80 + 4 * t)
    seq = []
    rest = chunk(7, a=False) + chunk(6, w=False)
    for i, (ops, st) in enumerate(late):
        seq += [(x, None) for x in ops[:10]]
        if i < 4:
            for pre, ins, tag in rest[i:i + 1]: seq += [(y, None) for y in pre] + [(ins, tag)]
        seq += [(x, None) for x in ops[10:]]
        if i < LST: seq.append((st, "ctxst"))
    vs = tail_setup()[1][8:-4]
    for i, (pre, ins, tag) in enumerate(rest[4:]):
        seq += [(x, None) for x in vs[4 * i:4 * i + 4]] + [(y, None) for y in pre] + [(ins, tag)]
    seq += [(x, None) for x in vs[4 * len(rest[4:]):]]
    if FAST:
        seq += [(x, None) for x in lchk(0, 1, False) + ["s_or_b32 s62, s62, s63", "v_mov_b32 v244, s62", "v_lshlrev_b32 v245, 2, v255", f"s_add_u32 s46, s33, {KEEP + 16384 - 0x10000}", "v_add_u32 v245, s46, v245",
                                                         "ds_write_b32 v245, v244", "v_mov_b32 v245, s46"]]
    ne = 0
    for g in range(len(mf)):
        while S.load(g) + cost(seq[ne][0]) <= 2:
            S.add_last(g, Ins(*seq[ne])); ne += 1
    p.extend(S.items())
    if DIAG and not DIAG2: p.items.append(stamp(10))
    for x, tag in seq[ne:]: p(x, tag)
    if DIAG and not DIAG2: p.items.append(stamp(11))
    GO = [(n, c) for n in range(NK - 2) for c in range(8)] + [(n, 2 * cp + cf) for cp in range(4) for n in (NK - 2, NK - 1) for cf in range(2)]
    def w_reads(gi):
        n, c = GO[gi]
        off = wofs(n)
        d = 128 + 4 * (gi % 16)
        return [f"ds_read_b64_tr_b16 v[{d + 2 * hf}:{d + 2 * hf + 1}], v{208 + 8 * (off >> 16) + c} offset:{(off & 0xffff) + hf * 4096}" for hf in range(2)]
    RA = 8
    for gi in range(RA):
        for x in w_reads(gi): p(x, ("W", gi))
    p.wait_vm(("ca", 0))
    p.wait_lgkm(("W", 0))
    mf = []
    for gi, (n, c) in enumerate(GO):
        base = 0 if n < 14 else 64
        first = n in (0, 14)
        for tb in range(2):
            acc = base + ((c >> 1) * 2 + tb) * 8 + (c & 1) * 4
            mf.append(f"{MF} {vr(acc)}, {vr(128 + 4 * (gi % 16))}, {areg2(n, tb)}, {0 if first else vr(acc)}")
    S = Sched16(mf)
    NG = NK * 8; NM = len(mf)
    BS = [ch for ch in range(NC - 1) if ch % OB == 0]
    def gB(ch): return 32 * ch + 16
    for gi in range(RA, NG):
        ch, k = gi // 16, gi % 16
        g = 2 * (gi - RA)
        if ch in BS and k >= 12: g -= [1, 2, 3, 4][k - 12]
        for x in w_reads(gi): S.add_mem(g, x, ("W", gi))
    for gi in range(1, NG): S.add_first(2 * gi - 1, Wait("lgkm", ("W", gi)))
    assert GPUB in BS and CPUB in BS
    for ch in range(NC - 1):
        if ch in BS:
            S.add_first(gB(ch) - 2, Ins("s_waitcnt lgkmcnt(0)"))
            S.add_first(gB(ch), Wait("vm", [("cw", min(ch + OB, NC - 1))] + (["pub"] if ch == GPUB else []) + (["ctxst"] if ch == CPUB else [])))
            S.add_first(gB(ch), "s_barrier")
        S.add_first(32 * (ch + 1) - 2, Wait("vm", ("ca", ch + 1)))
    def wfree(ch):
        return 0 if ch < 8 else gB(min(x for x in BS if x >= ch - 8)) + 1
    S.add_mem(gB(CPUB) + 1, f"buffer_store_dword v249, v248, s[20:23], s98 offen offset:8{STF}", "flag")
    if FAST:
        S.add_mem(gB(CPUB) + 3, f"buffer_store_dword v249, v248, s[20:23], s98 offen offset:4{STF}", "flag")
        S.add_mem(gB(0) + 1, "ds_read_b128 v[200:203], v245", "bad")
        S.add_first(gB(0) + 10, Wait("lgkm", "bad"))
        S.add_valu(gB(0) + 11, "v_or3_b32 v200, v200, v201, v202")
        S.add_valu(gB(0) + 11, "v_or_b32 v200, v200, v203")
        S.add_valu(gB(0) + 13, "v_cmp_ne_u32 vcc, 0, v200")
        S.add_last(gB(0) + 15, "s_cbranch_vccnz L_safe")
        S.add_last(gB(0) + 15, "L_safe_ret:")
    for i, (ops, st) in enumerate(late[LST:]): S.add_mem(2 + LSP * i, st, "ctxst")
    assert 2 + LSP * (8 - LST) < gB(CPUB)
    LD = []
    def ld(ops, e, pace):
        for i, (pre, ins, tag) in enumerate(ops):
            for x in pre: LD.append(Op(x, e + i * pace - 2, NM - 1))
            LD.append(Op(ins, e + i * pace, NM - 1, tag=tag, deps=[LD[-1]] if pre else []))
    nw = 8
    while wfree(nw) + 16 <= CCHK:
        ld(chunk(nw, a=False), wfree(nw), 4); nw += 1
    S.add_mem(CPOLL, "buffer_load_dword v207, v206, s[20:23], s3 offen offset:4 sc1", "cpoll")
    S.add_first(CCHK, Wait("vm", "cpoll"))
    S.add_valu(CCHK, "v_cmp_ne_u32 vcc, 1, v207")
    S.add_last(CCHK + 1, "s_cbranch_vccnz L_cwait")
    S.add_last(CCHK + 1, "L_cok:")
    slow += spin("c", "buffer_load_dword v207, v206, s[20:23], s3 offen offset:4 sc1", "v_cmp_ne_u32 vcc, 1, v207")
    if CTXPF:
        S.add_valu(40, "v_lshlrev_b32 v252, 7, v254")
        S.add_valu(41, f"v_add_u32 v253, {4 * ACT_ROW}, v252")
        ld(chunk(7, w=False), CCHK + 2, 1)
        ld([(["s_lshl_b32 s60, s45, 13"], "s_add_u32 s60, s60, s65", None), ([], "buffer_load_dword v250, v252, s[20:23], s60 offen sc1", "pf"),
            ([], "buffer_load_dword v251, v253, s[20:23], s60 offen sc1", "pf")], CCHK + 2, 1)
    seqo = [("a", ch) for ch in range(7, nw)]
    for ch in range(nw, NC): seqo += [("w", ch), ("a", ch)]
    t = float(CCHK + 2)
    for k, (kind, ch) in enumerate(seqo):
        t = max(t, 32 * (ch - 7) if kind == "a" else wfree(ch))
        pace = TP0 if k < 2 else TP
        for op in chunk(ch, w=(kind == "w"), a=(kind == "a")):
            ld([op], int(t), 0); t += pace
    print("tail ld", schedule(S, [LD], 0, NM - 1, base_cap=2), [o.g for o in LD if o.mem][::8])
    def pub(base, kind, g0, g1, pace=0):
        ops = []
        for k8 in range(8):
            R = base + 8 * k8
            if k8 % 4 == 0: ops.append(Op(f"s_add_u32 s60, s40, {kind * 32768 + (k8 // 4) * 4096}", g0, g1))
            cv = [Op(f"v_cvt_pk_bf16_f32 v{R + k}, v{R + 2 * k}, v{R + 2 * k + 1}", g0, g1) for k in range(4)]
            ops += cv
            ops.append(Op(f"buffer_store_dwordx4 {vr(R)}, v240, s[20:23], s60 offen offset:{(k8 % 4) * 1024} sc1", g0 + k8 * pace, g1, [cv[-1]], tag="pub"))
            ops.append(Op(f"ds_write_b128 v236, {vr(R)} offset:{kind * 8192 + k8 * 1024}", g0, g1, tag="own"))
        return ops
    pb = pub(0, 0, 14 * 16 + PUB0, gB(GPUB) - 20, PUBP)
    print('pub', schedule(S, [pb], 14 * 16, NM - 1, base_cap=2), [o.g for o in pb if o.tag == 'pub'])
    S.add_mem(gB(GPUB) + 1, "buffer_store_dword v249, v248, s[20:23], s95 offen offset:4 sc1", "flag")
    gx = 32 * 17 + 21
    for k in range(4):
        S.add_mem(gx + 4 * k, f"buffer_load_dwordx2 v[{192 + 2 * k}:{193 + 2 * k}], v{238 + k // 2}, s[24:27], s57 offen offset:{32 * (k % 2)}", "x")
    gp = 32 * GPOLL
    S.add_mem(gp + 1, "buffer_load_dword v250, v247, s[20:23], s94 offen offset:4 sc1", "gpoll")
    gc = gp + 33
    S.add_first(gc + 1, Wait("vm", "gpoll"))
    S.add_valu(gc + 1, "v_cmp_ne_u32 vcc, 1, v250")
    S.add_last(gc + 2, "s_cbranch_vccnz L_gwait")
    S.add_last(gc + 2, "L_gok:")
    slow += spin("g", "buffer_load_dword v250, v247, s[20:23], s94 offen offset:4 sc1", "v_cmp_ne_u32 vcc, 1, v250")
    for k in range(3):
        for tb in range(2):
            S.add_mem(gc + 4 + 2 * (2 * k + tb), f"buffer_load_dwordx4 {vr(8 * k + 4 * tb)}, v240, s[20:23], s{GB[k]} offen offset:{tb * 1024} sc1", "gg")
    for tb in range(2): S.add_mem(gc + 18, f"ds_read_b128 {vr(24 + 4 * tb)}, v237 offset:{tb * 1024}", "gown")
    ps = pub(64, 1, 0, NM - 1)
    k8 = -1; inside = []
    for o in ps:
        if o.t.startswith("v_cvt") and (int(re.findall(r"v(\d+)", o.t)[0]) - 64) % 8 == 0: k8 += 1
        o.e = NM - 32 + 8 * (max(k8, 0) // 2) + 8 + 5
    inside = [o for o in ps if o.e < NM - 4]
    print("pub s inside", schedule(S, [inside], NM - 32, NM - 1, base_cap=3), len(inside), len(ps))
    for k in range(3): S.add_first(gc + 20 + 2 * k, f"s_add_u32 s{GB[k]}, s{GB[k]}, 32768")
    if DIAG3:
        for k, g in enumerate([int(x) for x in os.environ.get('D3', '').split(',') if x] or [0, CCHK, CCHK + 4, 14 * 16, 30 * 16, NM - 1]): S.add_first(g, stamp(2 + k))
    print(S.report("tail")[:400])
    OD = os.environ.get("ODROP", "").split(",")
    def keep(i):
        tg = i.tag if isinstance(i, (Ins, Wait)) else None
        if isinstance(i, Ins):
            if isinstance(tg, tuple) and tg[0] in OD: return False
            if tg in OD and tg: return False
        if isinstance(i, Wait):
            tags = tg if isinstance(tg, list) else [tg]
            tags = [t for t in tags if (t[0] if isinstance(t, tuple) else t) not in OD]
            if not tags: return False
            i.tag = tags
        return True
    p.extend([i for i in S.items() if keep(i)])
    GS = 144
    def gather():
        for k in range(3):
            for tb in range(2):
                p(f"buffer_load_dwordx4 {vr(GS + 8 * k + 4 * tb)}, v240, s[20:23], s{GB[k]} offen offset:{tb * 1024} sc1", "gs")
    p("s_nop 3")
    for o in ps[len(inside):]: p(o.t, o.tag)
    gather()
    def unpack(dst, src, n=8):
        for k in range(n):
            p(f"v_lshlrev_b32 v{dst + 2 * k}, 16, v{src + k}")
            p(f"v_and_b32 v{dst + 2 * k + 1}, 0xffff0000, v{src + k}")
    def rnd(b, T):
        for k in range(0, 16, 2): p(f"v_cvt_pk_bf16_f32 v{T + k // 2}, v{b + k}, v{b + k + 1}")
        unpack(b, T)
    def accum(D, src):
        for k in range(8):
            p(f"v_dot2c_f32_bf16 v{D + 2 * k}, s46, v{src + k}")
            p(f"v_dot2c_f32_bf16 v{D + 2 * k + 1}, s47, v{src + k}")
    p("s_mov_b32 s46, 0x00003f80")
    p("s_mov_b32 s47, 0x3f800000")
    p("s_mov_b32 s44, 0x40000")
    if DIAG3: p.items.append(stamp(8))
    p("s_waitcnt lgkmcnt(0)")
    p("s_barrier")
    for tb in range(2): p(f"ds_read_b128 {vr(168 + 4 * tb)}, v237 offset:{8192 + tb * 1024}", "sown")
    p.wait_vm("gg")
    unpack(32, 24)
    for k in range(3): accum(32, 8 * k)
    p("s_nop 2")
    rnd(32, 48)
    for k in range(16): p(f"v_mul_f32 v{48 + k}, {f2u(-LOG2E):#x}, v{32 + k}")
    for k in range(16): p(f"v_exp_f32 v{48 + k}, v{48 + k}")
    for k in range(16): p(f"v_add_f32 v{48 + k}, 1.0, v{48 + k}")
    for k in range(16): p(f"v_rcp_f32 v{48 + k}, v{48 + k}")
    for k in range(16): p(f"v_mul_f32 v{32 + k}, v{32 + k}, v{48 + k}")
    rnd(32, 48)
    unpack(128, 192)
    p.wait_lgkm("sown")
    unpack(0, 168)
    p("s_branch L_o_chk")
    p.label("L_o_poll")
    gather()
    p.label("L_o_chk")
    p("s_waitcnt vmcnt(0)")
    p(f"v_max3_u32 v48, v{GS}, v{GS + 1}, v{GS + 2}")
    p(f"v_max3_u32 v49, v{GS + 3}, v{GS + 4}, v{GS + 5}")
    for k in range(6, 22, 4):
        p(f"v_max3_u32 v48, v48, v{GS + k}, v{GS + k + 1}")
        p(f"v_max3_u32 v49, v49, v{GS + k + 2}, v{GS + k + 3}")
    p(f"v_max3_u32 v48, v48, v{GS + 22}, v{GS + 23}")
    p("v_max_u32 v48, v48, v49")
    p("v_cmp_eq_u32 vcc, -1, v48")
    p("s_cbranch_vccz L_o_go")
    p("s_sub_u32 s44, s44, 1")
    p("s_cbranch_scc0 L_o_poll")
    p.label("L_o_go")
    if DIAG3: p.items.append(stamp(9))
    for k in range(3): accum(0, GS + 8 * k)
    p("s_nop 2")
    for k in range(16): p(f"v_fmac_f32 v{128 + k}, v{k}, v{32 + k}")
    for k in range(0, 16, 2): p(f"v_cvt_pk_bf16_f32 v{96 + k // 2}, v{128 + k}, v{129 + k}")
    for k in range(4):
        p(f"buffer_store_dwordx2 v[{96 + 2 * k}:{97 + 2 * k}], v{238 + k // 2}, s[4:7], s57 offen offset:{32 * (k % 2)}")
    PAD = os.environ.get("PAD", "")
    if PAD:
        p("s_mov_b32 s46, 20")
        p.label("L_pad")
        for k in range(64):
            if PAD == "nop": p("s_nop 3")
            else: p(f"{MF} {vr(4 * (k % 16))}, {ar(4 * ((k // 4) % 8))}, {ar(128 + 4 * (k % 32))}, {vr(4 * (k % 16))}")
        p("s_sub_u32 s46, s46, 1")
        p("s_cmp_lg_u32 s46, 0")
        p("s_cbranch_scc1 L_pad")
    if DIAG:
        p("s_waitcnt vmcnt(0)")
        p.items.append(stamp(12)); p.items.append(stamp(13, True))
        dump_stamps(p, 0, 28, 20)
    return [i.t for i in resolve(p.items, tail_pre())], slow

def gen_f_kernel():
    p = Prog()
    p("s_cmp_ge_u32 s2, 256")
    p("s_cbranch_scc1 L_f_end")
    if DIAG:
        for k in range(14): p(f"s_mov_b32 s{66 + 2 * k}, 0")
        p.items.append(stamp(0, True)); p.items.append(stamp(1))
    p("s_load_dwordx4 s[36:39], s[0:1], 0")
    p("s_load_dwordx4 s[40:43], s[0:1], 24")
    p("s_load_dwordx2 s[44:45], s[0:1], 96")
    p("v_and_b32 v254, 63, v0")
    p("v_lshrrev_b32 v255, 6, v0")
    p("s_and_b32 s34, s2, 7")
    p("v_readfirstlane_b32 s28, v255")
    p("s_lshr_b32 s35, s2, 3")
    p("v_lshlrev_b32 v252, 7, v254")
    if CPF:
        p("s_getpc_b64 s[4:5]")
        p("L_pc0:")
        p(f"s_sub_u32 s4, s4, L_pc0-{KNAME}")
        p("s_subb_u32 s5, s5, 0")
        p(f"s_mov_b32 s6, L_code_end-{KNAME}")
        p("s_mov_b32 s7, 0x20000")
        p("v_lshrrev_b32 v244, 3, v254")
        p("v_lshl_or_b32 v244, v244, 27, v252")
        p("v_lshl_add_u32 v244, v255, 15, v244")
        p("s_lshl_b32 s63, s35, 10")
        p("buffer_load_dword v52, v244, s[4:7], s63 offen", "pf")
    p("v_lshlrev_b32 v240, 4, v254")
    p("v_lshrrev_b32 v244, 4, v254")
    p("v_and_b32 v245, 15, v254")
    p("v_lshlrev_b32 v245, 7, v245")
    p("v_lshl_add_u32 v253, v244, 13, v245")
    p("s_lshl_b32 s60, s35, 2")
    p("s_add_u32 s60, s60, s28")
    p("s_and_b32 s61, s34, 1")
    p("s_lshl_b32 s61, s61, 20")
    p("s_lshl_b32 s63, s60, 13")
    p("s_add_u32 s61, s61, s63")
    p("s_lshr_b32 s62, s34, 1")
    p("s_lshl_b32 s62, s62, 11")
    p("s_lshl_b32 s63, s60, 15")
    p("s_add_u32 s62, s62, s63")
    p("s_lshl_b32 s47, s2, 13")
    p("s_lshl_b32 s46, s28, 11")
    p("s_add_u32 s47, s47, s46")
    if HYB:
        for x in ["s_and_b32 s57, s34, 1", "s_lshl_b32 s57, s57, 2", "s_and_b32 s56, s35, 3", "s_add_u32 s57, s57, s56", "s_lshl_b32 s57, s57, 2",
                  "s_add_u32 s57, s57, s28", "s_lshl_b32 s31, s57, 16",
                  "s_lshr_b32 s57, s34, 1", "s_lshl_b32 s57, s57, 3", "s_lshr_b32 s56, s35, 2", "s_add_u32 s57, s57, s56", "s_lshl_b32 s57, s57, 8",
                  "s_mul_i32 s48, s28, 24576", "s_and_b32 s56, s28, 1", "s_lshr_b32 s52, s28, 1", "s_lshl_b32 s53, s56, 13", "s_lshl_b32 s54, s52, 12",
                  "s_add_u32 s53, s53, s54", "s_lshl_b32 s54, s56, 6", "s_lshl_b32 s55, s52, 19", "s_add_u32 s54, s54, s55", "s_add_u32 s54, s54, s57",
                  "v_lshrrev_b32 v241, 3, v254", "v_lshlrev_b32 v241, 13, v241", "v_and_b32 v242, 7, v254"]: p(x)
        for n in range(8):
            p(f"v_xor_b32 v243, {n}, v242")
            p(f"v_lshl_add_u32 v{224 + n}, v243, 4, v241")
        for x in ["v_lshrrev_b32 v244, 5, v254", "v_lshlrev_b32 v244, 1, v244", "v_and_b32 v245, 3, v254", "v_xor_b32 v245, v245, v244",
                  "v_lshlrev_b32 v245, 4, v245", "v_lshrrev_b32 v244, 2, v254", "v_lshl_add_u32 v241, v244, 13, v245",
                  f"v_mov_b32 v66, {~HA & 0xff}", "v_lshrrev_b32 v66, v242, v66", "v_and_b32 v66, 1, v66", "v_lshl_or_b32 v64, v66, 30, v252",
                  "v_lshrrev_b32 v66, 4, v254", "v_and_b32 v67, 15, v254", "v_lshlrev_b32 v65, 7, v67", "v_lshl_add_u32 v65, v66, 20, v65",
                  "v_and_b32 v67, 1, v254", "v_lshl_add_u32 v66, v66, 1, v67", f"v_mov_b32 v67, {~HW & 0xff}", "v_lshrrev_b32 v67, v66, v67",
                  "v_and_b32 v67, 1, v67", "v_lshl_or_b32 v65, v67, 30, v65",
                  "s_lshr_b32 s58, s34, 1", "s_lshl_b32 s58, s58, 11", "s_lshl_b32 s59, s60, 13"]: p(x)
    for r, v in ((10, 0x200000), (11, 0x20000), (14, 0x400000), (15, 0x20000), (26, 0x200000), (27, 0x20000)): p(f"s_mov_b32 s{r}, {v:#x}")
    p("s_waitcnt lgkmcnt(0)")
    if DIAG and not DIAG2: p.items.append(stamp(2))
    for d, sr in ((24, 36), (25, 37), (8, 38), (9, 39), (12, 40), (13, 41)): p(f"s_mov_b32 s{d}, s{sr}")
    p("buffer_load_dwordx4 v[0:3], v240, s[24:27], s47 offen" + NTX, "ln")
    p("buffer_load_dwordx4 v[4:7], v240, s[24:27], s47 offen offset:1024" + NTX, "ln")
    if XBAR: p("s_barrier")
    BLK = [6, 7, 8, 9, 6, 7, 8, 9, 0, 1, 2, 3, 4, 5, 6, 7, 8, 9, 0, 1, 2, 3, 6, 7, 8, 9, 4, 5, 6, 7, 8, 9]
    if KD: BLK = [6, 7, 8, 9, 6, 7, 8, 9, 6, 7, 0, 1, 2, 3, 4, 5, 8, 9, 0, 1, 2, 3, 6, 7, 8, 9, 4, 5, 6, 7, 8, 9]
    def dma_A(s):
        ops = []
        for n in range(8):
            pre = []
            if n % 4 == 0:
                pre = [f"s_add_u32 m0, s48, {(s % 3) * 8192 + (n // 4) * 4096}", f"s_add_u32 s56, s31, {s * 128 + (n // 4) * 4096}"]
            ops.append((pre, f"buffer_load_dwordx4 v{224 + n}, s[8:11], s56 offen offset:{(n % 4) * 1024}{NTA} lds", ("A", s)))
        return ops
    def dma_W(n):
        ops = []
        kq = n % 4
        for q in range(4):
            m0 = "s53"
            if n < 8 and KD:
                pre = [f"s_add_u32 s57, s50, {(n * 64 + q * 16) * 8192 - q * 1024}"]; m0 = "s49"
                ins = f"buffer_load_dwordx4 v241, s[12:15], s57 offen offset:{q * 1024} lds"
            elif n < 8:
                pre = [f"s_add_u32 s57, s54, {(kq * 128 + q * 16) * 8192 + (n // 4) * 128 - q * 1024}"]
                ins = f"buffer_load_dwordx4 v241, s[12:15], s57 offen offset:{q * 1024} lds"
            elif n < 16:
                pre = [f"s_add_u32 s57, s50, {((n - 8) * 64 + q * 16) * 8192 - q * 1024}"]; m0 = "s49"
                ins = f"buffer_load_dwordx4 v241, s[16:19], s57 offen offset:{q * 1024} lds"
            elif n < 24:
                pre = [f"s_add_u32 s57, s{35 if n < 20 else 64}, {(kq * 128 + q * 16) * 3584 - q * 1024}"]
                ins = f"buffer_load_dwordx4 v242, s[12:15], s57 offen offset:{q * 1024} lds"
            else:
                pre = [f"s_add_u32 s57, s65, {(kq * 128 + q * 16) * 8192 - q * 1024 + (128 if n >= 28 else 0)}"]
                ins = f"buffer_load_dwordx4 v241, s[8:11], s57 offen offset:{q * 1024} lds"
            if "kkvvggqq"[n // 4] in NTD: ins = ins.replace(" lds", " nt lds")
            if q == 0: pre = [f"s_add_u32 m0, {m0}, {BLK[n] * 16384}"] + pre
            ops.append((pre, ins, ("L", n)))
        return ops
    def kv_half(tile, part):
        ops = []
        for q in range(4):
            pre = []
            if q == 0: pre = [f"s_add_u32 m0, s49, {tile * 32768 + part * 16384}", f"s_add_u32 s57, s49, {tile * 32768 + part * 16384}"]
            ops.append((pre, f"buffer_load_dwordx4 v240, s[16:19], s57 offen offset:{q * 1024}{KSC} lds", ("kv", tile, part)))
        return ops
    def now(ops):
        for pre, ins, tag in ops:
            for x in pre: p(x)
            p(ins, tag)
    first = dma_W(0) + dma_A(0) + dma_A(1) + (dma_W(1) + dma_A(2) if ALEAD == 3 else [])
    if KD: first = dma_W(0) + dma_A(0) + dma_W(1) + dma_A(1)
    HPA = "buffer_load_dword v246, v64, s[8:11], s44 offen"
    HPW = "buffer_load_dword v247, v65, s[12:15], s60 offen"
    if HYB:
        now(first[:HE]); first = first[HE:]
        if HP1 == 0: p(HPA.replace("s44", "s61"), "pf")
    if PFA and not HYB:
        p("buffer_load_dword v246, v252, s[8:11], s61 offen" + os.environ.get("NTPA", ""), "pf")
        p("buffer_load_dword v247, v253, s[12:15], s62 offen" + NT, "pf")
    srd(p, 16, 42, 0x400000)
    srd(p, 20, 44, 0x10000000)
    if HYB: p("s_mov_b32 s44, s61")
    p("s_load_dwordx2 s[36:37], s[0:1], 16")
    p("s_load_dwordx2 s[38:39], s[0:1], 40")
    p("s_load_dwordx4 s[40:43], s[0:1], 56")
    p("s_load_dwordx2 s[96:97], s[0:1], 72")
    p("s_load_dwordx2 s[98:99], s[0:1], 88")
    p("v_lshl_add_u32 v244, v255, 6, v254")
    p("v_cmp_eq_u32 vcc, 0, v244")
    p("v_mov_b32 v248, 0x7ffff000")
    p("v_mov_b32 v249, 1")
    p("v_mov_b32 v250, 0")
    p("v_cndmask_b32_e64 v248, v248, 0, vcc")
    p("s_and_b32 s47, s34, 1")
    p("s_lshl_b32 s47, s47, 2")
    p("s_and_b32 s46, s35, 3")
    p("s_add_u32 s47, s47, s46")
    p("s_lshr_b32 s3, s34, 1")
    p("s_lshl_b32 s3, s3, 3")
    p("s_lshr_b32 s46, s35, 2")
    p("s_add_u32 s3, s3, s46")
    p("s_lshl_b32 s45, s3, 3")
    p("s_add_u32 s45, s45, s47")
    p("s_lshl_b32 s46, s47, 2")
    p("s_add_u32 s46, s46, s28")
    p("s_lshl_b32 s31, s46, 16")
    p("s_lshl_b32 s94, s46, 15")
    p("s_lshl_b32 s47, s3, 20")
    p("s_add_u32 s94, s94, s47")
    p(f"s_add_u32 s94, s94, {WS_KV:#x}")
    p("s_lshl_b32 s95, s3, 8")
    p("s_lshl_b32 s3, s45, 7")
    p(f"s_add_u32 s3, s3, {WS_FLAG + 0x10000:#x}")
    p("s_lshl_b32 s29, s34, 2")
    p("s_lshr_b32 s46, s35, 3")
    p("s_add_u32 s29, s29, s46")
    p("s_and_b32 s30, s35, 7")
    p(f"s_mul_i32 s48, s28, 24576")
    p("s_lshl_b32 s49, s28, 12")
    p("s_lshl_b32 s50, s28, 6")
    p("s_add_u32 s50, s50, s95")
    p("s_and_b32 s45, s28, 1")
    p("s_lshr_b32 s52, s28, 1")
    p("s_lshl_b32 s53, s45, 13")
    p("s_lshl_b32 s54, s52, 12")
    p("s_add_u32 s53, s53, s54")
    p("s_lshl_b32 s54, s45, 6")
    p("s_lshl_b32 s55, s52, 19")
    p("s_add_u32 s55, s54, s55")
    p("s_add_u32 s54, s55, s95")
    p("s_lshl_b32 s56, s29, 8")
    p("s_add_u32 s65, s55, s56")
    p("s_sub_u32 s56, 15, s30")
    p("s_lshl_b32 s32, s56, 3")
    p("s_add_u32 s32, s32, s28")
    p("s_lshl_b32 s33, s30, 3")
    p("s_add_u32 s33, s33, s28")
    p("s_lshl_b32 s46, s32, 14")
    p("s_lshl_b32 s47, s33, 14")
    p(f"s_mul_i32 s32, s32, {ACT_ROW}")
    p(f"s_add_u32 s32, s32, {WS_ACT:#x}")
    p(f"s_mul_i32 s33, s33, {ACT_ROW}")
    p(f"s_add_u32 s33, s33, {WS_ACT:#x}")
    if GUZ:
        p("s_sub_u32 s55, s29, s34")
        p("s_add_u32 s55, s55, 32")
    else:
        p("s_add_u32 s55, s29, 32")
        p("s_cmp_lt_u32 s29, 24")
        p("s_cselect_b32 s55, s55, s29")
    p(f"s_mul_i32 s64, s52, {64 * 3584}")
    p("s_lshl_b32 s63, s29, 6")
    p("s_add_u32 s35, s64, s63")
    p("s_lshl_b32 s63, s55, 6")
    p("s_add_u32 s64, s64, s63")
    if GUZ:
        p("s_and_b32 s63, s29, 3")
        p("s_cmp_eq_u32 s63, 3")
        p("s_cselect_b32 s64, 0x7f000000, s64")
    p("s_lshl_b32 s51, s29, 20")
    p(f"s_add_u32 s51, s51, {WS_KV:#x}")
    p("s_lshl_b32 s56, s29, 10")
    p(f"s_add_u32 s56, s56, {128 * 1024}")
    p("s_add_u32 s100, s56, s32")
    p("s_add_u32 s101, s56, s33")
    p("s_lshl_b32 s61, s34, 8")
    p("s_lshr_b32 s63, s60, 1")
    p(f"s_mul_i32 s63, s63, {8 * 3584}")
    p("s_add_u32 s61, s61, s63")
    p("s_lshl_b32 s52, s34, 10")
    p("s_lshl_b32 s63, s60, 15")
    p("s_add_u32 s52, s52, s63")
    if HYB: p("s_add_u32 s60, s58, s59")
    p("v_lshrrev_b32 v241, 3, v254")
    p("v_lshlrev_b32 v241, 13, v241")
    p("v_and_b32 v242, 7, v254")
    for n in range(8):
        p(f"v_xor_b32 v243, {n}, v242")
        p(f"v_lshl_add_u32 v{224 + n}, v243, 4, v241")
    p("v_and_b32 v241, 7, v254")
    p("v_bfe_u32 v242, v254, 3, 1")
    p("v_lshlrev_b32 v242, 7, v242")
    p("v_lshl_add_u32 v242, v241, 10, v242")
    p("v_add_u32 v242, s48, v242")
    p("v_lshrrev_b32 v243, 4, v254")
    for tt in range(2):
        p(f"v_add_u32 v244, {4 * tt}, v243")
        p("v_xor_b32 v244, v244, v241")
        p(f"v_lshl_add_u32 v{232 + tt}, v244, 4, v242")
    p("v_lshlrev_b32 v241, 9, v243")
    p("v_bfe_u32 v242, v254, 2, 2")
    p("v_lshl_add_u32 v241, v242, 6, v241")
    p("v_and_b32 v242, 3, v254")
    p("v_lshl_add_u32 v241, v242, 3, v241")
    p("v_and_b32 v242, 1, v243")
    p("v_lshl_add_u32 v234, v242, 5, v241")
    p("v_xor_b32 v237, 32, v234")
    for cf in range(2):
        p(f"v_add_u32 v{235 + 3 * cf}, 0x10000, v{234 + 3 * cf}")
        p(f"v_add_u32 v{236 + 3 * cf}, 0x20000, v{234 + 3 * cf}")
    p("v_lshrrev_b32 v244, 5, v254")
    p("v_lshlrev_b32 v251, 30, v244")
    p("v_lshlrev_b32 v244, 1, v244")
    p("v_and_b32 v245, 3, v254")
    p("v_xor_b32 v245, v245, v244")
    p("v_lshlrev_b32 v245, 4, v245")
    p("v_lshrrev_b32 v244, 2, v254")
    p("v_lshl_add_u32 v241, v244, 13, v245")
    p("v_mul_u32_u24 v244, 3584, v244")
    p("v_add_u32 v242, v244, v245")
    if ASYM:
        p("v_lshrrev_b32 v245, 3, v254")
        p("v_mul_u32_u24 v245, 3584, v245")
        p("v_and_b32 v244, 3, v254")
        p("v_lshl_add_u32 v245, v244, 7, v245")
        p("s_lshr_b32 s63, s34, 1")
        p("s_mul_i32 s63, s63, 384")
        p("s_add_u32 s63, s63, 2048")
        p("s_lshl_b32 s56, s34, 8")
        p("s_sub_u32 s63, s63, s56")
        p("v_bfe_u32 v244, v254, 2, 1")
        p("v_mad_u32_u24 v245, v244, s63, v245")
        p("v_and_b32 v244, 7, v254")
        p("v_lshrrev_b32 v244, v244, 0x8c" if False else "v_mov_b32 v53, 0x8c")
        p("v_lshrrev_b32 v244, v244, v53")
        p("v_and_b32 v244, 1, v244")
        p("v_lshl_or_b32 v245, v244, 30, v245")
    else:
        p("v_bfe_u32 v245, v254, 2, 3")
        p("v_mul_u32_u24 v245, 3584, v245")
        p("v_and_b32 v244, 1, v254")
        p("v_lshl_add_u32 v245, v244, 7, v245")
        p("v_bfe_u32 v244, v254, 1, 1")
        if GUZ:
            p("s_lshl_b32 s63, s34, 6")
            p("s_sub_u32 s63, 2048, s63")
            p("v_mad_u32_u24 v245, v244, s63, v245")
        else:
            p("v_lshl_add_u32 v245, v244, 11, v245")
        p("v_or_b32 v245, v245, v251")
    p("v_and_b32 v243, 15, v254" if not BYTEF else "v_mov_b32 v243, v254")
    p(f"v_lshlrev_b32 v243, {2 if BYTEF else XSH}, v243")
    p("v_lshlrev_b32 v48, 7, v254")
    p("v_lshl_add_u32 v48, v255, 5, v48")
    p("v_add_u32 v48, 0x24000, v48")
    p("v_lshl_add_u32 v49, v255, 11, v240")
    p("v_add_u32 v49, 0x24000, v49")
    p("v_lshrrev_b32 v50, 3, v254")
    p("v_lshlrev_b32 v50, 8, v50")
    p("v_and_b32 v51, 7, v254")
    p("v_lshl_add_u32 v50, v51, 4, v50")
    p("s_waitcnt lgkmcnt(0)")
    p("s_cmp_eq_u32 s45, 0")
    p("s_cselect_b32 s40, s40, s42")
    p("s_cselect_b32 s41, s41, s43")
    p("s_mov_b32 s4, s98")
    p("s_mov_b32 s5, s99")
    p("s_mov_b32 s6, 256")
    p("s_mov_b32 s7, 0x20000")
    p("s_load_dwordx2 s[42:43], s[0:1], 80")
    p("s_lshl_b32 s56, s55, 10")
    p(f"s_add_u32 s56, s56, {128 * 1024}")
    p("s_add_u32 s98, s56, s32")
    p("s_add_u32 s99, s56, s33")
    if GUZ:
        p("s_and_b32 s56, s29, 3")
        p("s_cmp_eq_u32 s56, 3")
        p("s_cselect_b32 s98, 0x7f000000, s98")
        p("s_cselect_b32 s99, 0x7f000000, s99")
    p("s_lshl_b32 s63, s2, 7")
    p(f"s_add_u32 s63, s63, {WS_FLAG:#x}")
    now(first[:EARLY])
    p.wait_vm("ln")
    if DIAG and not DIAG2: p.items.append(stamp(3))
    emit_ln(p)
    p("ds_write_b128 v48, v[40:43]")
    p("ds_write_b128 v48, v[44:47] offset:16")
    p("s_lshr_b32 s58, s2, 1")
    p("s_lshl_b32 s58, s58, 14")
    p("s_and_b32 s59, s2, 1")
    p("s_lshl_b32 s59, s59, 7")
    p("s_add_u32 s58, s58, s59")
    p("s_add_u32 s58, s58, s49")
    if WS_XN: p(f"s_add_u32 s58, s58, {WS_XN:#x}")
    p("s_waitcnt lgkmcnt(0)")
    p("s_barrier")
    p("ds_read_b128 v[40:43], v49")
    p("ds_read_b128 v[44:47], v49 offset:1024")
    p("s_lshr_b32 s59, s2, 4")
    p(f"s_lshl_b32 s59, s59, {XSH}")
    p("s_waitcnt lgkmcnt(0)")
    p(f"buffer_store_dwordx4 v[40:43], v50, s[20:23], s58 offen{STF}", "xnst")
    p(f"buffer_store_dwordx4 v[44:47], v50, s[20:23], s58 offen offset:2048{STF}", "xnst")
    p(f"buffer_store_dword v250, v248, s[20:23], s63 offen{STF}", "zf")
    p(f"buffer_store_dword v250, v248, s[20:23], s63 offen offset:4{STF}", "zf")
    p(f"buffer_store_dword v250, v248, s[20:23], s3 offen{STF}", "zf")
    if ASYM:
        p("s_getreg_b32 s56, hwreg(HW_REG_XCC_ID)")
        p("s_and_b32 s56, s56, 1")
        p("v_mov_b32 v53, s56")
        p("s_lshl_b32 s56, s2, 12")
        p(f"buffer_store_dword v53, v248, s[4:7], s56 offen offset:4{STF}", "zf")
    p(f"s_add_u32 s63, s63, 0x20000")
    p(f"buffer_store_dword v250, v248, s[20:23], s63 offen offset:8{STF}", "zf")
    p(f"buffer_store_dword v250, v248, s[20:23], s63 offen{STF}", "zf")
    p(f"buffer_store_dword v250, v248, s[20:23], s63 offen offset:4{STF}", "zf")

    if os.environ.get('PFW8'):
        p('s_waitcnt vmcnt(0)'); p.items.append(stamp(2))
    if HYB and HP1 == 1: p(HPA, "pf")
    if HYB and HP2 == 0: p(HPW, "pf")
    now(first[EARLY:])
    if HYB and HP1 == 2: p(HPA, "pf")
    if HYB and HP2 == 1: p(HPW, "pf")

    groups = []
    def accT(base, c, cf, rb): return base + (c * 4 + rb) * 8 + cf * 4
    def accV(base, c, cf, rb): return base + ((c * 2 + cf) * 2 + (rb >> 1)) * 8 + (rb & 1) * 4
    def add_double(seg0, bases, vt=True):
        order = [(s, tt, c) for s in range(8) for tt in range(2) for c in range(4)]
        if KD and vt: order = sorted(order[:16], key=lambda x: x[2] >> 1) + order[16:]
        if KD and not vt: order = order[:56] + sorted(order[56:], key=lambda x: -(x[2] >> 1))
        for s, tt, c in order:
            for cf in range(2):
                groups.append(dict(off=BLK[seg0 + s] * 16384 + c * 4096 + tt * 2048, cf=cf, t=2 * s + tt,
                                   acc=[(accV if vt else accT)(bases[c >> 1], c & 1, cf, rb) for rb in range(4)], vt=vt))
    def add_single(seg0, base):
        if ASYM and seg0 == 20:
            for cf in range(2):
                for q in range(4):
                    for tq in range(4):
                        for c in range(2):
                            groups.append(dict(off=BLK[seg0 + q] * 16384 + c * 8192 + tq * 2048, cf=cf, t=4 * q + tq,
                                               acc=[accT(base, c, cf, rb) for rb in range(4)], vt=False))
            return
        for q in range(4):
            for tq, c in ([(tq, c) for c in range(2) for tq in range(4)] if seg0 + q == 31 else [(tq, c) for tq in range(4) for c in range(2)]):
                if True:
                    for cf in range(2):
                        groups.append(dict(off=BLK[seg0 + q] * 16384 + c * 8192 + tq * 2048, cf=cf, t=4 * q + tq,
                                           acc=[accT(base, c, cf, rb) for rb in range(4)], vt=False))
    if KD: add_double(0, [0, 64], False)
    else: add_single(0, 0); add_single(4, 64)
    add_double(8, [128, 0])
    add_single(16, 64); add_single(20, 128); add_single(24, 0); add_single(28, 64)
    NG = len(groups)
    mf = []
    for n, G in enumerate(groups):
        w = vr(192 + 4 * (n % 8))
        for rb in range(4):
            a = ar((rb * 16 + G["t"]) * 4)
            d = vr(G["acc"][rb])
            c = 0 if G["t"] == 0 else d
            mf.append(f"{MF} {d}, {a}, {w}, {c}" if G["vt"] else f"{MF} {d}, {w}, {a}, {c}")
    S = Sched16(mf)
    def w_reads(n):
        G = groups[n]
        out = []
        for hf in range(2):
            off = G["off"] + hf * 256
            d = 192 + 4 * (n % 8) + 2 * hf
            out.append(f"ds_read_b64_tr_b16 v[{d}:{d + 1}], v{234 + 3 * G['cf'] + (off >> 16)} offset:{off & 0xffff}")
        return out
    def a_reads(s):
        return [f"ds_read_b128 {ar((rb * 16 + 2 * s + tt) * 4)}, v{232 + tt} offset:{(s % 3) * 8192 + rb * 256}" for tt in range(2) for rb in range(4)]
    RA = 5
    if DIAG and not DIAG2: p.items.append(stamp(4))
    p.wait_vm(("A", 0))
    p("s_barrier")
    if DIAG and not DIAG2: p.items.append(stamp(5))
    for x in a_reads(0): p(x, ("Ar", 0))
    for n in range(RA):
        for x in w_reads(n): p(x, ("W", n))
    p.wait_lgkm(("W", 0))
    for n in range(RA, NG):
        k = n % 16
        if k <= 13: g = 4 * (n - RA)
        elif k == 14: g = 4 * (n - 6) + 2
        else: g = 4 * (n - 6)
        for i, x in enumerate(w_reads(n)): S.add_mem(g + i, x, ("W", n))
    for n in range(1, NG): S.add_first(4 * n - 1, Wait("lgkm", ("W", n)))
    for s in range(1, 8):
        g = 32 * s - 22 if not KD else 64 * s - 38
        S.add_first(g, Wait("vm", ("A", s)))
        for i, x in enumerate(a_reads(s)): S.add_mem(g + [0, 0, 1, 1, 4, 4, 5, 5][i], x, ("Ar", s))
        S.add_first(g + 12, Wait("lgkm", ("Ar", s)))
    def gB(n): return 64 * n + 4 * 11
    GBS = [n for n in range(31) if n < 8 or not GB2 or n % 2 == 1]
    if GB2 == 4: GBS = list(range(8)) + [11, 15, 19, 23, 25, 27, 29]
    if ASYM: GBS = sorted(set(GBS) - {21} | {KVPUB})
    for n in GBS:
        nxt = min([x for x in GBS if x > n] + [31])
        if ASYM and n == 19: nxt = 23
        tags = [("L", nxt)]
        if n == 0: tags += ["xnst", "zf"]
        if n == KVPUB: tags.append("kvst")
        if n == 29: tags.append(("kv", 0, 0))
        S.add_first(gB(n) - 2, Ins("s_waitcnt lgkmcnt(0)"))
        S.add_first(gB(n), Wait("vm", tags))
        S.add_first(gB(n), "s_barrier")
    assert KVPUB in GBS
    def win(n): return gB(n - 1) + 1
    def freed(seg): return gB(min(x for x in GBS if x >= (23 if ASYM and 20 <= seg < 23 else seg))) + 1
    def lfree(n):
        prev = [m for m in range(n) if BLK[m] == BLK[n]]
        return freed(prev[-1]) if prev else freed(6 if KD else 3)
    def lmax(n):
        c = max(x for x in GBS if x < n); last = min([x for x in GBS if x > c] + [31])
        if ASYM and 20 <= n <= 23: c, last = 19, 23
        return gB(c) - 130 - 36 * (last - n)
    def bfree(blk): return freed(max(m for m in range(32) if BLK[m] == blk))
    LD = []
    def ld(ops, e, pace=1):
        for i, (pre, ins, tag) in enumerate(ops):
            for x in pre: LD.append(Op(x, e + i * pace - 3, 2040))
            LD.append(Op(ins, e + i * pace, 2040, tag=tag, deps=[LD[-2]] if len(pre) == 2 else []))
    one = lambda ins, tag, pre=(): [([], x, None) for x in pre] + [([], ins, tag)]
    if KD:
        pfv = one("buffer_load_dword v246, v253, s[16:19], s62 offen" + NTV, "pf")
        for st in range(2, 8):
            ld(dma_W(st), 0 if st < 4 else win(st - 3), 2)
            ld(dma_A(st), 0 if st < 4 else 64 * (st - 3) - 26, 2)
            if st == PFVP and "v" in PFW: ld(pfv, 0)
        ld(one("buffer_atomic_add v249, v248, s[4:7], s59 offen", "pub"), win(5))
        for n in range(8, 13): ld(dma_W(n), lfree(n), 3)
    else:
        if ALEAD == 3:
            ld(dma_A(3), 0); ld(dma_W(2), 8); ld(dma_A(4), 22)
            ld(dma_A(5), 54); ld(dma_W(3), 62); ld(dma_A(6), 86); ld(dma_A(7), 118); ld(dma_W(4), 126); ld(dma_W(5), 140, 4)
        else:
            ld(dma_W(1), 0); ld(dma_A(2), 0)
            if HYB and HP2 == 2: ld(one(HPW, "pf"), 0)
            ld(dma_A(3), 20); ld(dma_W(2), 40); ld(dma_A(4), 52); ld(dma_A(5), 84); ld(dma_W(3), 100)
            ld(dma_A(6), 116); ld(dma_A(7), 144); ld(dma_W(4), 156); ld(dma_W(5), 160)
        if not BYTEF: ld(one("buffer_atomic_add v249, v248, s[4:7], s59 offen", "pub"), win(3))
        else: S.add_mem(win(BYTEF), "buffer_store_byte v249, v248, s[4:7], s2 offen sc1", "pub")
        if "v" in PFW: ld(one("buffer_load_dword v246, v253, s[16:19], s62 offen" + NTV, "pf"), win(3))
        ld(dma_W(6), win(3), 2)
        ld(dma_W(7), VW0 - 24, 4)
        for n in range(8, 13): ld(dma_W(n), VW0 + (n - 8) * VWP, 3)
    ld(one("buffer_load_dword v250, v245, s[12:15], s61 offen", "pf", ["s_mov_b32 s12, s40", "s_mov_b32 s13, s41", f"s_mov_b32 s14, {512 * 3584}"])[:4 if "g" in PFW else 3], win(8 if KD else GPW))
    print("ld1", schedule(S, [LD], 0, 511, base_cap=LCAP), "last", LD[-1].g, [o.g for o in LD if o.tag in ("pf", "poll")])
    gc = XNC
    S.add_mem(XPL if XPL else gc - 50, XPOLL, "poll")
    S.add_first(gc, Wait("vm", "poll"))
    S.add_valu(gc, XCMP)
    S.add_valu(gc, "v_add_u32 v247, 0x10000, v240")
    S.add_last(gc + 2, "s_cbranch_vccnz L_xnwait")
    S.add_last(gc + 2, "L_xnok:")
    BK0, BK1 = 1408, 1536
    if ASYM:
        S.add_valu(gc + 4, "v_readfirstlane_b32 s48, v225")
        ro = ["s_xor_b32 s48, s48, s2", "s_and_b32 s48, s48, 1",
              "s_and_b32 s55, s29, 3", "s_lshr_b32 s56, s55, 1", "s_add_u32 s56, s56, 4", "s_and_b32 s31, s55, 1", "s_mul_i32 s31, s31, s48",
              ["s_cmp_eq_u32 s48, 1", "s_cselect_b32 s55, s56, s55"], "s_lshr_b32 s56, s34, 1", "s_mul_i32 s56, s56, 6", "s_add_u32 s55, s55, s56",
              "s_add_u32 s55, s55, 32",
              "s_lshr_b32 s56, s28, 1", f"s_mul_i32 s64, s56, {64 * 3584}", "s_lshl_b32 s56, s55, 6", "s_add_u32 s64, s64, s56",
              "s_lshl_b32 s56, s31, 5", "s_add_u32 s64, s64, s56",
              "s_lshl_b32 s56, s55, 10", f"s_add_u32 s56, s56, {128 * 1024}", "s_add_u32 s98, s56, s32", "s_add_u32 s99, s56, s33",
              "s_lshl_b32 s31, s31, 3", "s_add_u32 s54, s98, s31", "s_add_u32 s55, s99, s31", "s_mov_b32 s56, 0x7f000000",
              ["s_cmp_eq_u32 s48, 1", "s_cselect_b32 s98, s56, s98", "s_cselect_b32 s99, s56, s99", "s_cselect_b32 s54, s54, s56", "s_cselect_b32 s55, s55, s56"]]
        g = gc + 6
        for x in ro:
            while S.first[g]: g += 1
            for y in (x if isinstance(x, list) else [x]): S.add_first(g, y)
            g += 1
        for g in range(BK0, BK1): S.add_last(g, Ins("BLACK")); S.add_last(g, Ins("BLACK"))
    LD = []
    for n in range(13, 24): ld(dma_W(n), max(min(win(9) + (n - 13) * 44 if n < WSH else win(n - 4), lmax(n)), lfree(n)), 8)
    S.add_valu(64 * 12, "v_and_b32 v253, 0xfffffbff, v253")
    S.add_valu(64 * 12 + 1, "v_bfe_u32 v246, v254, 3, 1")
    S.add_valu(64 * 12 + 2, "v_lshl_or_b32 v253, v246, 30, v253")
    ld(one("buffer_load_dword v244, v253, s[8:11], s52 offen", "pf", ["s_mov_b32 s8, s36", "s_mov_b32 s9, s37", "s_mov_b32 s10, 0x400000"])[:4 if "q" in PFW else 3], win(17 if WSH > 20 else WQW) if not ASYM else 1170)
    for n in range(24, 32):
        if n == 28 and PFOG:
            S.add_valu(1400, "v_and_b32 v245, 0xfff, v252")
            S.add_valu(1401, "v_or_b32 v245, v245, v251")
            ld(one("buffer_load_dword v250, v245, s[4:7], s50 offen", "pf", ["s_mov_b32 s4, s38", "s_mov_b32 s5, s39", "s_mov_b32 s6, 0x400000", "s_mov_b32 s7, 0x20000",
                   "s_lshl_b32 s50, s2, 2", "s_add_u32 s50, s50, s28", "s_lshl_b32 s50, s50, 12"]), PFOG - 8)
            ld(one("buffer_load_dword v253, v245, s[12:15], s50 offen", "pf", ["s_mov_b32 s12, s96", "s_mov_b32 s13, s97", f"s_mov_b32 s14, {1792 * 1024}"]), PFOG - 8)
            if NTX: ld(one("buffer_load_dword v244, v245, s[24:27], s50 offen", "pf"), PFOG - 8)
        ld(dma_W(n), max((1270 if ASYM else win(19) if WSH > 20 else win(21) + 20) + (n - 24) * (32 if ASYM else 50 if WSH > 20 else 36), lfree(n), PFOG + 120 + 20 * (n - 28) if PFOG and n >= 28 else 0), 8 if n < 28 or not PFOG else 4)
    S.add_valu(64 * 26, "v_and_b32 v243, 0x380, v252")
    for x in ["s_add_u32 s16, s20, s51", "s_addc_u32 s17, s21, 0"]: S.add_last(64 * 26, x)
    for x in ["s_sub_u32 s18, 16, s30", "s_lshl_b32 s18, s18, 16"]: S.add_last(64 * 26 + 1, x)
    ld(one("buffer_load_dword v244, v243, s[20:23], s59 offen sc1", "poll2", ["s_lshl_b32 s59, s29, 10", f"s_add_u32 s59, s59, {WS_FLAG + 0x10000:#x}"]), 64 * 27 + KPD)
    gc = win(28) + 1 + KPD
    for k in range(7): ld(kv_half(k // 2, k % 2), max(gc + 4 + 16 * k, bfree(k)), 4)
    S.add_first(gc, Wait("vm", "poll2"))
    S.add_valu(gc, "v_cmp_ne_u32 vcc, 1, v244")
    S.add_last(gc + 2, "s_cbranch_vccnz L_kvwait")
    S.add_last(gc + 2, "L_kvok:")
    print("ld2", schedule(S, [LD], 512, 2046, base_cap=2), "last", LD[-1].g, [(o.tag, o.g) for o in LD if o.mem][::4])
    XL = []
    for t in range(16):
        for rb in range(4):
            pre = []
            if t % 4 == 0 and rb % 2 == 0: pre = [f"s_add_u32 s{62 + rb // 2}, s{46 + rb // 2}, {WS_XN + t * 1024}"]
            vo = 240 if rb % 2 == 0 else 247
            XL.append(Op(f"buffer_load_dwordx4 {ar((rb * 16 + t) * 4)}, v{vo}, s[20:23], s{62 + rb // 2} offen offset:{(t % 4) * 1024}{XSC}",
                         max(512 + 32 * t + 32 + (6 * rb if t < 15 else 0) if not (KD and t < 4) else 576 + 16 * t + 16 + 3 * rb, XNC + 4 + int(XP * (4 * t + rb))), 1024 + 16 * t - 60 if t < 10 else 512 + 32 * t + 64, pre=pre, tag=("X", t)))
    for t in range(16): S.add_first(1024 + 16 * t - 2, Wait("vm", ("X", t)))
    def kv_epi(kind, u, base, g0, g1, st0):
        ops = []
        for k8 in range(8):
            R = base + 8 * k8
            if kind == "K":
                c, rb = k8 // 4, k8 % 4
                off = rb * 4096 + (2 * u + c) * 1024
                for r in range(8): ops.append(Op(f"v_mul_f32 v{R + r}, s58, v{R + r}", g0, g1))
            else:
                db, s = 4 * u + k8 // 2, k8 % 2
                off = 16384 + s * 8192 + db * 1024
            cv = [Op(f"v_cvt_pk_bf16_f32 v{R + k}, v{R + 2 * k}, v{R + 2 * k + 1}", g0, g1) for k in range(4)]
            ops += cv
            ops.append(Op(f"s_add_u32 s95, s94, {off & ~4095}", g0, g1))
            ops.append(Op(f"buffer_store_dwordx4 {vr(R)}, v240, s[20:23], s95 offen offset:{off & 4095}{STF}", max(g0, st0[0] + int(k8 * st0[1])), g1, [cv[-1]], tag="kvst"))
        return ops
    S.add_first(250, f"s_mov_b32 s58, {f2u(KSCALE):#x}")
    C0 = -2.0 * math.sqrt(2.0 / math.pi) * LOG2E
    C1 = C0 * 0.044715
    S.add_valu(64 * 17, f"v_mov_b32 v232, {f2u(C0):#x}")
    S.add_valu(64 * 17 + 1, f"v_mov_b32 v233, {f2u(C1):#x}")
    S.add_valu(64 * 17 + 2, f"v_add_u32 v246, {4 * ACT_ROW}, v240")
    def gu_epi(base, psg, g0, g1, gst):
        st = [[], []]; sto = []
        for rb in range(4):
            G = base + rb * 8; U = base + 32 + rb * 8
            L = st[rb & 1]
            for r in range(8):
                t = 224 + (r % 4) + 4 * (rb & 1)
                o4 = Op(f"v_exp_f32 v{t}, v{t}", g0, g1)
                o7 = Op(f"v_rcp_f32 v{t}, v{t}", g0, g1)
                L += [Op(f"v_mul_f32 v{t}, v{G + r}, v{G + r}", g0, g1), Op(f"v_fma_f32 v{t}, v{t}, v233, v232", g0, g1),
                      Op(f"v_mul_f32 v{t}, v{t}, v{G + r}", g0, g1), o4, Op(f"v_mul_f32 v{G + r}, v{G + r}, v{U + r}", g0, g1),
                      Op(f"v_add_f32 v{t}, 1.0, v{t}", g0, g1), o7, Op(f"v_mul_f32 v{G + r}, v{G + r}, v{t}", g0, g1, [o7])]
            cv = [Op(f"v_cvt_pk_bf16_f32 v{G + k}, v{G + 2 * k}, v{G + 2 * k + 1}", g0, g1 - 2) for k in range(4)]
            L += cv
            sto.append(Op(f"buffer_store_dwordx4 {vr(G)}, v{240 if rb % 2 == 0 else 246}, s[20:23], s{psg + rb // 2} offen{STF}", gst + 30 * rb, g1, [cv[-1]], tag="hst"))
            if ASYM and psg == 98:
                sto.append(Op(f"buffer_store_dwordx2 v[{G}:{G + 1}], v{240 if rb % 2 == 0 else 246}, s[20:23], s{54 + rb // 2} offen{STF}", gst + 30 * rb, g1, tag="hst"))
        return st, sto
    def q_epi(base, u, g0, g1, gmove):
        cvs = []; mv = []
        for c in range(2):
            for qb in range(4):
                R = base + (c * 4 + qb) * 8
                for k in range(4):
                    o = Op(f"v_cvt_pk_bf16_f32 v{R + k}, v{R + 2 * k}, v{R + 2 * k + 1}", g0, g1)
                    cvs.append(o)
                    mv.append(Op(f"v_accvgpr_write_b32 a{Qreg(qb, 2 * u + c) + k}, v{R + k}", gmove, g1, [o]))
        return cvs, mv
    PH = [256 * k for k in range(9)]
    PE = 2048
    kvs = kv_epi("K", 0, 0, PH[1] + 6, PH[2] - 3, (PH[1] + 16, STP)) + kv_epi("K", 1, 64, PH[2] + 6, PH[4] - 3, (PH[2] + 16, STPK1)) + \
          kv_epi("V", 0, 128, PH[4] + 6, PH[5] - 3, (PH[4] + 12, STPV)) + kv_epi("V", 1, 0, PH[4] + 6, (BK0 if ASYM else PH[6]) - 3, (PH[4] + 12 + 8 * STPV, STPV))
    kst = []
    if KD:
        kvs = []
        for u, base, g0 in ((1, 64, 512 - 32 + 6), (0, 0, 512 + 6)):
            for k8 in range(8):
                R = base + 8 * k8; P = 64 + 8 * k8 + (4 if u == 0 else 0)
                c, rb = k8 // 4, k8 % 4
                off = rb * 4096 + (2 * u + c) * 1024
                kvs += [Op(f"v_mul_f32 v{R + r}, s58, v{R + r}", g0, 573) for r in range(8)]
                cv = [Op(f"v_cvt_pk_bf16_f32 v{P + k}, v{R + 2 * k}, v{R + 2 * k + 1}", g0, 573) for k in range(4)]
                kvs += cv
                kst.append(Op(f"s_add_u32 s95, s94, {off & ~4095}", g0, PH[4] - 3))
                kst.append(Op(f"buffer_store_dwordx4 {vr(P)}, v240, s[20:23], s95 offen offset:{off & 4095}{STF}", 560 + int(len(kst) // 2 * STP), PH[4] - 3, [cv[-1]], tag="kvst"))
        kvs += kv_epi("V", 0, 128, PH[4] + 6, PH[5] - 3, (PH[4] + 12, STPV)) + kv_epi("V", 1, 0, PH[4] + 6, PH[6] - 3, (PH[4] + 12 + 8 * STPV, STPV))
    print("kv epi", schedule(S, [XL, kvs, kst], PH[1], PH[6]), "last store", kvs[-1].g, "pub at", gB(KVPUB))
    assert kvs[-1].g < gB(KVPUB)
    st0, so0 = gu_epi(64, 100, PH[5] + 6, PH[7] - 3, PH[6])
    st1, so1 = gu_epi(128, 98, PH[6] + 6, PE - 2, PH[6] + 130)
    q0c, q0m = q_epi(0, 0, PH[7] + 6, PE - 2, PH[7] + 130)
    q1c, q1m = q_epi(64, 1, PE - 32 + 5, PE - 1, PE - 32 + 5)
    k0r = [Op(f"ds_read_b128 {ar(Fbuf(f))}, v240 offset:{f * 1024}", max(gB(29) + 1, PH[7] + 16 * f + 16), PE - 2, tag=("K0", f)) for f in range(12)]
    print("gu epi", schedule(S, [st0[0] + st1[0], st0[1] + st1[1], so0 + so1, q0c + q1c[:16], q0m + q1m[:16], k0r], PH[5], PE - 1))
    S.add_mem(gB(KVPUB) + 2, f"buffer_store_dword v249, v248, s[20:23], s3 offen{STF}", "pub")
    if DIAG and not DIAG2:
        S.add_first(512, stamp(6)); S.add_first(1024, stamp(7)); S.add_first(PE - 1, stamp(8))
    if DIAG2:
        for k, g in enumerate(DIAG2): S.add_first(g, stamp(2 + k))
    skip_stub = []
    if ASYM:
        for g in range(BK0, BK1): S.last[g] = [x for x in S.last[g] if not (isinstance(x, Ins) and x.t == "BLACK")]
        S.add_last(BK0 - 1, "s_cmp_eq_u32 s48, 1"); S.add_last(BK0 - 1, "s_cbranch_scc1 L_gskip"); S.add_last(BK0 - 1, "L_gblk:")
        S.add_last(BK1 - 1, "L_gjoin:")
    print(S.report("gemm")[:600])
    its = S.items()
    DROP = os.environ.get("DROP", "").split(",")
    def keep(i):
        if isinstance(i, Ins):
            tg = i.tag[0] if isinstance(i.tag, tuple) else i.tag
            if tg in DROP and tg: return False
        if isinstance(i, Wait):
            tags = i.tag if isinstance(i.tag, list) else [i.tag]
            tags = [t for t in tags if (t[0] if isinstance(t, tuple) else t) not in DROP]
            if not tags: return False
            i.tag = tags
        return True
    p.extend([i for i in its if keep(i)])
    gemm_items = list(p.items)
    if ASYM:
        i0 = [k for k, x in enumerate(gemm_items) if isinstance(x, Ins) and x.t == "L_gblk:"][0]
        i1 = [k for k, x in enumerate(gemm_items) if isinstance(x, Ins) and x.t == "L_gjoin:"][0]
        def inblk(tg): return isinstance(tg, tuple) and tg[0] == "W" and tg[1] < BK1 // 4
        body = [x for x in gemm_items[i0 + 1:i1] if not ((isinstance(x, Ins) and (x.t.startswith("v_mfma") or inblk(x.tag))) or
                                                         (isinstance(x, Wait) and all(inblk(t) for t in (x.tag if isinstance(x.tag, list) else [x.tag]))))]
        npre_ = len(resolve(gemm_items[:i0 + 1]))
        skip_stub = ["L_gskip:"] + [x.t for x in resolve(gemm_items[:i0 + 1] + body)][npre_:] + ["s_waitcnt lgkmcnt(0)", "s_branch L_gjoin"]
        print("skip stub", skip_stub)
    n_gemm = len(resolve(gemm_items))
    sa, va = tail_setup()
    def gen_qk0(masked):
        mf = []; last = {}
        for kb in range(4):
            for t in range(4):
                for qb in range(4):
                    d = Sreg(0, qb, kb)
                    c = vr(d) if t else (0 if kb < 2 else vr(NEGM(qb)))
                    mf.append(f"{MF} {vr(d)}, {ar(Fbuf(kb * 4 + t))}, {ar(Qreg(qb, t))}, {c}")
                    last[(qb, kb)] = len(mf) - 1
        S = Sched16(mf)
        for f in range(1, 16): S.add_first(4 * f - 1, Wait("lgkm", ("K0", f)))
        for f in range(12, 16): S.add_mem(f - 12, f"ds_read_b128 {ar(Fbuf(f))}, v240 offset:{f * 1024}", ("K0", f))
        c1, m1 = q_epi(64, 1, 4, 9, 4)
        c1 = c1[16:]; m1 = m1[16:]
        su = ["v_and_b32 v241, 15, v254", "v_lshl_add_u32 v241, v255, 4, v241", "v_lshrrev_b32 v245, 4, v254", "v_lshlrev_b32 v245, 2, v245",
              "v_sub_u32 v241, v241, v245", "v_cvt_f32_i32 v241, v241", "v_add_f32 v241, 0.5, v241", f"v_mul_f32 v{VTMASK}, {f2u(BIG):#x}, v241"]
        SU = [Op(x, 0, 18) for x in su]
        su2 = [f"v_mov_b32 v{VCUR}, v240", f"v_add_u32 v{VPREV}, 0x10000, v240", "v_and_b32 v206, 31, v254", "v_lshlrev_b32 v206, 10, v206",
               "v_and_b32 v252, 0xfff, v252", "v_or_b32 v252, v252, v251"] + ([f"v_mov_b32 v{ONES + k}, 0x3f803f80" for k in range(4)] if not ONE1 else
                 [f"v_and_b32 v{ONES}, 15, v254", f"v_min_u32 v{ONES}, 1, v{ONES}", f"v_subrev_u32 v{ONES}, 1, v{ONES}", f"v_and_b32 v{ONES}, 0x3f803f80, v{ONES}"] +
                 [f"v_mov_b32 v{ONES + k}, v{ONES}" for k in range(1, 4)]) + va[:8] + va[-4:]
        SU += [Op(x, 0, 63) for x in su2]
        ss = [f"s_mov_b32 s{S_THR}, {f2u(LMAX if FAST else THR):#x}", "s_lshl_b32 s99, s30, 7", f"s_add_u32 s99, s99, {WS_FLAG + 0x20000:#x}", "s_lshl_b32 s98, s29, 10",
              "s_add_u32 s98, s98, s99", "s_mov_b32 s52, s49", f"s_add_u32 s53, s49, {3 * 32768 + 16384}", f"s_add_u32 s54, s49, {4 * 32768}",
              f"s_add_u32 s55, s49, {3 * 32768 + 16384}", "s_mov_b32 s4, s38", "s_mov_b32 s5, s39", "s_mov_b32 s6, 0x400000", "s_mov_b32 s7, 0x20000",
              "s_lshl_b32 s59, s2, 2", "s_add_u32 s59, s59, s28", "s_lshl_b32 s50, s59, 12", "s_mov_b32 s12, s96", "s_mov_b32 s13, s97",
              f"s_mov_b32 s14, {1792 * 1024}", "s_mov_b32 m0, s52"]
        SS = [Op(x, 0, 60) for x in ss]
        def mask_ops(kb, e0, dl):
            out = []
            if not masked: return out
            for qb in (2,):
                for r in range(4):
                    kk = 16 * kb + r
                    out.append(Op(f"v_subrev_f32 v{TMP[r % 2]}, {f2u(kk * BIG):#x}, v{VTMASK}", 19, dl))
                    out.append(Op(f"v_min_f32 v{Sreg(0, qb, kb) + r}, v{Sreg(0, qb, kb) + r}, v{TMP[r % 2]}", e0, dl))
            return out
        T0 = [128 + 2 * q for q in range(4)]
        dl = 29
        I = mask_ops(0, 20, dl)
        for q in range(4):
            b = Sreg(0, q, 0)
            I += [Op(f"v_max3_f32 v{T0[q]}, v{b}, v{b + 1}, v{b + 2}", 20, dl), Op(f"v_max_f32 v{T0[q]}, v{T0[q]}, v{b + 3}", 20, dl)]
        for sw in ("v_permlane32_swap_b32", "v_permlane16_swap_b32"):
            I += [Op(f"v_mov_b32 v{T0[q] + 1}, v{T0[q]}", 20, dl) for q in range(4)]
            I += [Op(f"{sw} v{T0[q]}, v{T0[q] + 1}", 20, dl) for q in range(4)]
            I += [Op(f"v_max_f32 v{T0[q]}, v{T0[q]}, v{T0[q] + 1}", 20, dl) for q in range(4)]
        if FAST: I += [Op(f"v_add_f32 v{T0[q]}, {f2u(SH):#x}, v{T0[q]}", 20, dl) for q in range(4)]
        for q in range(4): I += [Op(f"v_sub_f32 v{NEGM(q) + r}, 0, v{T0[q]}", 20, dl) for r in range(4)]
        post = []
        for kb in range(2):
            if kb: I += mask_ops(1, 36, 63)
            for q in range(4): I += [Op(f"v_sub_f32 v{Sreg(0, q, kb) + r}, v{Sreg(0, q, kb) + r}, v{T0[q]}", 36 if kb else 20, 63) for r in range(4)]
        first = True
        for kb in range(1, 4):
            ops = mask_ops(kb, 16 * kb + 20, 63) if kb > 1 else []
            for q in range(0 if FAST else 4):
                b = Sreg(0, q, kb)
                ops.append(Op(f"v_max_f32 v{MX[0]}, v{b}, v{b + 1}" if first else f"v_max3_f32 v{MX[0]}, v{MX[0]}, v{b}, v{b + 1}", 16 * kb + 20, 63)); first = False
                ops.append(Op(f"v_max3_f32 v{MX[0]}, v{MX[0]}, v{b + 2}, v{b + 3}", 16 * kb + 20, 63))
            if kb < 3: I += ops
            else: post = [o.t for o in ops]
        I += [Op(f"v_exp_f32 v{Sreg(0, 0, 0) + r}, v{Sreg(0, 0, 0) + r}", 36, 63) for r in range(NX)]
        print("qk0", schedule(S, [c1, m1, SU, SS, I], 0, 63), S.report("qk0")[:140])
        q = Prog()
        q.wait_lgkm(("K0", 0))
        q.extend(S.items())
        q.wait_vm(("kv", 1, 0))
        q("s_barrier")
        for ins in tail_reads(VCUR, 32768): q(ins)
        if not PFOG:
            for x in PFL[:PFM]: q(x.replace("s39", "s50"), "pf")
            q("s_mov_b32 s39, s50")
        for k in range(4): q(f"buffer_load_dwordx4 v240, s[16:19], s54 offen offset:{k * 1024}{KSC} lds", "kv")
        q("s_mov_b32 m0, s53")
        for x in post: q(x)
        if not FAST: q(f"v_cmp_lt_f32 vcc, s{S_THR}, v{MX[0]}")
        q(f"s_waitcnt lgkmcnt({NPRE - 1})")
        return [i.t for i in resolve(gemm_items + q.items)][n_gemm:]
    pro = [i.t for i in resolve(gemm_items)]

    stubs = []
    def check(site, par, dual):
        if FAST: return []
        stubs.append((site, par, dual))
        return [f"s_cbranch_vccnz L_stub_{site}", f"L_ret_{site}:"]
    def it_odd(name, tq, tp, masked, **kw):
        return gen_iter(name, tq, tp, 0, masked, 0, VCUR, 0, VPREV, 49152, VCUR, 32768, end_ops=check(name, 0, tq), **kw)
    def it_even(name, tq, tp, masked, extra_end=(), first_pv=False, **kw):
        if first_pv: kw["vmn"] = 8 if PFOG else 8 + len(PFL[:PFM])
        last = tq == "S1"
        return gen_iter(name, tq, tp, 1, masked, 1, VCUR, 32768, VCUR, 16384, VCUR if last else VPREV, 49152 if last else 0, first_pv=first_pv,
                        end_ops=check(name, 1, tq) + list(extra_end[2:]), swap=not last, mid_ops=extra_end[:2], **kw)
    seg = {}
    seg["G"] = pro
    for m in (False, True):
        nm = "m" if m else "u"
        seg["P" + nm] = gen_qk0(m) + check("qk0" + nm, 0, "D") + it_even("it0" + nm, "D1" if m else "D", "D", m, first_pv=True, salu=sa)
    seg["UDD"] = it_odd("uddA", "D", "D", False) + it_even("uddB", "D", "D", False, ["s_sub_u32 s47, s47, 1", "s_cmp_lg_u32 s47, 0", "s_cbranch_scc1 L_udd"])
    seg["UDDm"] = it_odd("uddmA", "D", "D", True) + it_even("uddmB", "D1", "D", True)
    fake = lambda tag, n: [Ins("buffer_load_dwordx4 v240, s[16:19], s55 offen lds", tag) for _ in range(n)]
    ee = gen_early_epi()
    seg["UDS"] = it_odd("udsA", "S", "D1", False) + it_even("udsB", "S", "S", False, xops=ee, vmn="need", raw=fake("need", 4) + fake("x", 12))
    seg["USS"] = it_odd("ussA", "S", "S", False) + it_even("ussB", "S", "S", False, ["s_sub_u32 s47, s47, 1", "s_cmp_lg_u32 s47, 0", "s_cbranch_scc1 L_uss"])
    g1, g2 = gp1(), gp2()
    vd = lambda adv: [(["s_mov_b32 m0, s53"] if q == 0 else [], f"buffer_load_dwordx4 v240, s[16:19], s55 offen offset:{q * 1024}{KSC} lds", "v") for q in range(4)]
    advv = ["s_add_u32 s55, s55, 0x8000", "s_add_u32 s53, s53, 0x8000", "s_and_b32 s53, s53, 0x1ffff"]
    n1, n2, n3 = PRE_SPLIT
    g1a = [(advv + list(g1[0][0]), g1[0][1], g1[0][2])] + g1[1:n1]
    xa, xb, xc, xd = vd(0) + g1a, vd(0) + g1[n1:n2], g1[n2:n3] + g2[:12], g1[n3:] + g2[12:]
    seg["USSp"] = it_odd("usspA", "S", "S", False, extra=xa, vmn="need", raw=fake("need", 4) + fake("x", 12)) + \
                  it_even("usspB", "S", "S", False, extra=xb, vmn="need", raw=fake("need", 4) + fake("x", 4 + len(xa)))
    seg["USSm"] = it_odd("ussmA", "S", "S", True, extra=xc, vmn="need", raw=fake("need", 4) + fake("x", len(xa) - 4 + len(xb))) + \
                  it_even("ussmB", "S1", "S", True, extra=xd, vmn="need", raw=fake("need", 4) + fake("x", len(xb) - 4 + len(xc)))
    flat = lambda ops: [y for pre, ins, tag in ops for y in list(pre) + [ins]]
    w01 = chunk(0, a=False) + chunk(1, a=False)
    w01 = [(advv + list(w01[0][0]), w01[0][1], w01[0][2])] + w01[1:]
    ya, yb = vd(0) + w01 + [([], HPOLL, "hp")], vd(0) + sentinels()
    seg["UDDm7"] = it_odd("uddm7A", "D", "D", True, extra=ya, vmn="need", raw=fake("need", 4) + fake("x", 12)) + \
                   it_even("uddm7B", "D1", "D", True, extra=yb, vmn="need", raw=fake("need", 4) + fake("x", 4 + len(ya)))
    za = ee_one(2, 32) + flat(chunk(0, w=False) + chunk(1, w=False))
    zb = ee_one(3, 32) + flat(chunk(2, w=False) + chunk(3, w=False))
    seg["UDSm"] = it_odd("udsmA", "S", "D1", True, extra=g2[:12], xops=za, vmn="need", raw=fake("need", 4) + fake("x", len(ya) - 4 + len(yb))) + \
                  it_even("udsmB", "S1", "S", True, extra=g2[12:], xops=flat(chunk(4, w=False) + chunk(5, w=False)) + zb, vmn="need",
                          raw=fake("need", 4) + fake("x", len(yb) - 4 + 12 + 12))
    seg["E"], tail_slow = gen_tail()
    seg["EE"] = []
    HC = ["v_cmp_ne_u32 vcc, 1, v207", "s_nop 0"]
    gpl = []
    for c in range(6):
        for pre, ins, tag in chunk(c, w=False): gpl += list(pre) + [ins]
    pf2 = [] if PFOG else PFL[PFM:]
    hpub = ["v_add_u32 v236, s58, v240", f"buffer_store_dword v249, v248, s[20:23], s98 offen{STF}"]

    out = list(seg["G"])
    out += ["s_cmp_lg_u32 s30, 0", "s_cbranch_scc1 L_pu"] + seg["Pm"] + ([stamp(9).t] if DIAG and not DIAG2 else []) + hpub
    out += ["L_uds:"] + pf2 + st4(4) + seg["UDS"] + st4(5) + seg["EE"] + st4(6)
    out += ["s_lshl_b32 s47, s30, 1", "s_sub_u32 s47, 12, s47", "s_cmp_eq_u32 s47, 0", "s_cbranch_scc1 L_ussp"]
    out += [f".p2align {AL}", "L_uss:"] + seg["USS"]
    out += ["L_ussp:"] + st4(7) + ["s_waitcnt vmcnt(20)"] + HC + ["s_cbranch_vccnz L_hwait", "L_hok:"] + seg["USSp"] + seg["USSm"]
    out += ["L_fin:"] + st4(8) + seg["E"]
    out += ["L_f_end:", "s_endpgm"]
    out += ["L_pu:"] + seg["Pu"]
    if DIAG and not DIAG2: out.append(stamp(9).t)
    out += (hpub + st4(2) if os.environ.get("HS") else st4(2) + hpub) + ["s_sub_u32 s47, s30, 1", "s_cmp_eq_u32 s47, 0", "s_cbranch_scc1 L_uddm"]
    out += [f".p2align {AL}", "L_udd:"] + seg["UDD"]
    out += ["s_cmp_eq_u32 s30, 7", "s_cbranch_scc1 L_last7"]
    out += ["L_uddm:"] + pf2 + st4(3) + seg["UDDm"]
    out += ["s_branch L_uds"]
    out += ["L_last7:"] + seg["UDDm7"] + ["s_waitcnt vmcnt(12)"] + HC + ["s_cbranch_vccnz L_h2wait", "L_h2ok:"] + seg["UDSm"] + ["s_branch L_fin"]
    out += spin("h", HPOLL, HC[0]) + spin("h2", HPOLL, HC[0])
    out += tail_slow + skip_stub
    if FAST: out += gen_safe()
    out += ["L_xnwait:", "s_mov_b32 s44, 0x40000", "L_xnspin:", "s_sub_u32 s44, s44, 1", "s_cbranch_scc1 L_xnok", "s_sleep 2",
            XPOLL, "s_waitcnt vmcnt(0)",
            XCMP, "s_cbranch_vccnz L_xnspin", "s_branch L_xnok"]
    out += ["L_kvwait:", "s_mov_b32 s44, 0x40000", "L_kvspin:", "s_sub_u32 s44, s44, 1", "s_cbranch_scc1 L_kvok", "s_sleep 2",
            "buffer_load_dword v244, v243, s[20:23], s59 offen sc1", "s_waitcnt vmcnt(0)",
            "v_cmp_ne_u32 vcc, 1, v244", "s_cbranch_vccnz L_kvspin", "s_branch L_kvok"]
    for site, par, tq in stubs:
        out += [f"L_stub_{site}:", f"s_call_b64 s[62:63], L_rare_{par}{tq}", f"s_branch L_ret_{site}"]
    for par, tq in sorted({(par, tq) for _, par, tq in stubs}):
        out += [f"L_rare_{par}{tq}:"] + gen_rare(par, QSET[tq])
    for path in (["G", "Pu", "UDD", "UDD", "UDDm", "UDS", "EE", "USS", "USS", "USSp", "USSm", "E"], ["G", "Pm", "UDS"], ["UDD", "UDDm7", "UDSm", "E"]):
        tx = []
        for k in path: tx += seg[k]
        for e in lint(tx, "f")[:40]: print(e)
    return out

KVPUB = int(os.environ.get("KVPUB", "24" if ASYM else "23"))
STPV = float(os.environ.get("STPV", "23" if ASYM else "26"))
STP = float(os.environ.get("STP", "29"))
STPK1 = float(os.environ.get("STPK1", "50"))
VW0 = int(os.environ.get("VW0", "340"))
WP = int(os.environ.get("WP", "14"))
XNC = int(os.environ.get("XNC", "540"))
LCAP = int(os.environ.get("LCAP", "3"))
WSH = int(os.environ.get("WSH", "18"))
XP = float(os.environ.get("XP", "5"))
PFOG = int(os.environ.get("PFOG", "0"))
AL = int(os.environ.get("AL", "3"))
XBAR = int(os.environ.get("XBAR", "1"))
NTX = os.environ.get("NTX", "")
PFM = int(os.environ.get("PFM", "2"))
PFL = [] if os.environ.get("NOPFO") else ["buffer_load_dword v253, v252, s[4:7], s39 offen", "buffer_load_dword v251, v252, s[12:15], s39 offen", "buffer_load_dword v250, v252, s[24:27], s39 offen"][:3 if os.environ.get("NTX") else 2]
WQW = int(os.environ.get("WQW", "20"))
ONE1 = int(os.environ.get("ONE1", "1"))
GUZ = int(os.environ.get("GUZ", "1"))
KD = int(os.environ.get("KD", "0"))
PFVP = int(os.environ.get("PFVP", "3"))
KPD = int(os.environ.get("KPD", "0"))
HYB = int(os.environ.get("HYB", "1"))
HA = int(os.environ.get("HA", "0xf0"), 0)
HW = int(os.environ.get("HW", "0xfa"), 0)
HE = int(os.environ.get("HE", "12"))
HP1 = int(os.environ.get("HP1", "0"))
HP2 = int(os.environ.get("HP2", "1"))
CPF = int(os.environ.get("CPF", "1"))
if __name__ == "__main__":
    print(len(gen_f_kernel()))
```

```python
from asmlib import *
from sched16 import *
import math, os, re
MF = "v_mfma_f32_16x16x32_bf16"
KNAME = "recurrent_scan__compressed_kv_cla__glu_gated_geglu__prompt_kernel"
WSB = int(os.environ.get("WSB", "0"), 0)
WS_XN = WSB + 0x0
WS_KV = WSB + 0x200000
WS_ACT = WSB + 0x2200000
WS_PART = WSB + 0x4000000
WS_FLAG = WSB + 0x5000000
ACT_ROW = 184 * 1024
LOG2E = 1.4426950408889634
KSCALE = LOG2E / math.sqrt(128.0)
BIG = 2.0 ** 100
THR = float(os.environ.get("THR", "40"))
FAST = int(os.environ.get("FAST", "1"))
NX = int(os.environ.get("NX", "8")) if FAST else 0
SH = float(os.environ.get("SH", "64"))
LMAX = 2.0 ** float(os.environ.get("LMAXE", "60"))
STF = " sc1"
ASYM = int(os.environ.get("ASYM", "0"))
LV = int(os.environ.get("LV", "1"))
BYTEF = int(os.environ.get("BYTEF", "0"))
XPOLL = "buffer_load_dword v244, v243, s[4:7], 0 offen sc1" if not ASYM else "buffer_load_dwordx2 v[224:225], v243, s[4:7], 0 offen sc1"
XSH = int(os.environ.get("XSH", "4"))
XCMP = "v_cmp_ne_u32 vcc, 0x01010101, v244" if BYTEF else ("v_cmp_gt_u32 vcc, 16, v224" if ASYM else "v_cmp_gt_u32 vcc, 16, v244")
XPL = int(os.environ.get("XPL", "418"))
VWP = int(os.environ.get("VWP", "14"))
GPW = int(os.environ.get("GPW", "7"))
ASC = os.environ.get("ASC", " sc1")
XSC = os.environ.get("XSC", " sc1")
KSC = os.environ.get("KSC", " sc1")
NT = os.environ.get("NT", "")
NTV = os.environ.get("NTV", "")
PFA = int(os.environ.get("PFA", "1"))
PFW = os.environ.get("PFW", "vgq")
NTD = os.environ.get("NTD", "")
NTA = " nt" if "a" in NTD else ""
ALEAD = int(os.environ.get("ALEAD", "2"))
EARLY = int(os.environ.get("EARLY", "0"))
OPF = int(os.environ.get("OPF", "0"))
WSB = int(os.environ.get("WSB", "0"), 0)
DIAG4 = bool(os.environ.get("DIAG4"))
st4 = lambda k: [stamp(k).t] if DIAG4 else []
LEADP = int(os.environ.get("LEADP", "14"))
GBS_ = int(os.environ.get("GBS_", "20"))
GBD_ = int(os.environ.get("GBD_", "22"))
DIAG3 = bool(os.environ.get("DIAG3"))
DIAG2 = [int(x) for x in os.environ.get("DIAG2", "").split(",") if x]
def vr(b, n=4): return f"v[{b}:{b + n - 1}]"
def ar(b, n=4): return f"a[{b}:{b + n - 1}]"
def srd(p, d, lo, size):
    p(f"s_mov_b32 s{d}, s{lo}")
    p(f"s_mov_b32 s{d + 1}, s{lo + 1}")
    p(f"s_mov_b32 s{d + 2}, {size:#x}")
    p(f"s_mov_b32 s{d + 3}, 0x20000")

def wave_reduce(p, regs_):
    steps = ["quad_perm:[1,0,3,2] row_mask:0xf bank_mask:0xf", "quad_perm:[2,3,0,1] row_mask:0xf bank_mask:0xf",
             "row_half_mirror row_mask:0xf bank_mask:0xf", "row_mirror row_mask:0xf bank_mask:0xf",
             "row_bcast:15 row_mask:0xa bank_mask:0xf", "row_bcast:31 row_mask:0xc bank_mask:0xf"]
    for st in steps:
        p("s_nop 1")
        for r in regs_: p(f"v_add_f32_dpp v{r}, v{r}, v{r} {st}")
    p("s_nop 1")
def round_bf16(p, dst, src):
    p(f"v_cvt_pk_bf16_f32 v{dst}, v{src}, v{src}")
    p(f"v_and_b32 v{dst}, 0xffff0000, v{dst}")

def emit_ln(p):
    for r in range(2):
        for k in range(4):
            p(f"v_lshlrev_b32 v{8 + 8 * r + 2 * k}, 16, v{4 * r + k}")
            p(f"v_and_b32 v{9 + 8 * r + 2 * k}, 0xffff0000, v{4 * r + k}")
    for r in range(2):
        b = 8 + 8 * r
        p(f"v_add_f32 v{24 + r}, v{b}, v{b + 1}")
        for k in range(2, 8): p(f"v_add_f32 v{24 + r}, v{24 + r}, v{b + k}")
    wave_reduce(p, [24, 25])
    p("v_readlane_b32 s58, v24, 63")
    p("v_readlane_b32 s59, v25, 63")
    p(f"v_mov_b32 v30, {f2u(1.0 / 512):#x}")
    p("s_nop 1")
    for r in range(2): p(f"v_mul_f32 v{26 + r}, s{58 + r}, v30")
    for r in range(2):
        b = 8 + 8 * r
        for k in range(8): p(f"v_sub_f32 v{32 + k}, v{b + k}, v{26 + r}")
        p(f"v_mul_f32 v{24 + r}, v32, v32")
        for k in range(1, 8): p(f"v_fmac_f32 v{24 + r}, v{32 + k}, v{32 + k}")
    wave_reduce(p, [24, 25])
    p("v_readlane_b32 s58, v24, 63")
    p("v_readlane_b32 s59, v25, 63")
    p("s_nop 1")
    for r in range(2):
        p(f"v_mul_f32 v{28 + r}, s{58 + r}, v30")
        round_bf16(p, 28 + r, 28 + r)
        p(f"v_add_f32 v{28 + r}, {f2u(1e-5):#x}, v{28 + r}")
        round_bf16(p, 28 + r, 28 + r)
        p(f"v_sqrt_f32 v{28 + r}, v{28 + r}")
        p("s_nop 0")
        round_bf16(p, 28 + r, 28 + r)
        p(f"v_rcp_f32 v{28 + r}, v{28 + r}")
        round_bf16(p, 26 + r, 26 + r)
    for r in range(2):
        b = 8 + 8 * r
        for k in range(8): p(f"v_sub_f32 v{b + k}, v{b + k}, v{26 + r}")
        for k in range(4): p(f"v_cvt_pk_bf16_f32 v{32 + k}, v{b + 2 * k}, v{b + 2 * k + 1}")
        for k in range(4):
            p(f"v_lshlrev_b32 v{b + 2 * k}, 16, v{32 + k}")
            p(f"v_and_b32 v{b + 2 * k + 1}, 0xffff0000, v{32 + k}")
        for k in range(8): p(f"v_mul_f32 v{b + k}, v{b + k}, v{28 + r}")
        for k in range(4): p(f"v_cvt_pk_bf16_f32 v{40 + 4 * r + k}, v{b + 2 * k}, v{b + 2 * k + 1}")

def ln_ops(g0, g1):
    p = Prog(); emit_ln(p)
    ops = []; lag = False
    for it in p.items:
        t = it.t
        if t.startswith("s_nop"): lag = True; continue
        t = re.sub(r"\bv(\d+)\b", lambda m: "v%d" % (int(m.group(1)) + 176 if int(m.group(1)) < 8 else int(m.group(1)) + 128), t)
        ops.append(Op(t, g0, g1, [ops[-1]] if lag else [], lag=2)); lag = False
    return ops

def Sreg(par, qb, kb): return par * 64 + qb * 16 + kb * 4
def Preg(qb, s): return 128 + qb * 8 + s * 4
def NEGM(qb): return 160 + 4 * qb
def LACC(qb): return 176 + 4 * qb
ONES = 192
MX = [196, 197]; VTM = 198; VTMASK = 199; VCUR, VPREV = 200, 201; TMP = [202, 203, 204, 205]
def Qreg(qb, t): return (t // 2) * 64 + qb * 8 + (t % 2) * 4
def Oreg(qb, db): return [32, 96, 128, 160][qb] + db * 4
def Fbuf(f): return 192 + (f % 16) * 4
S_THR = 61
NPRE = int(os.environ.get("NPRE", "8"))

def tail_reads(base_reg, off):
    return [f"ds_read_b128 {ar(Fbuf(f))}, v{base_reg} offset:{off + f * 1024}" for f in range(NPRE)]

QSET = {'D': [0, 1, 2, 3], 'S': [0, 1], 'D1': [0, 1, 3], 'S1': [1]}
def gen_iter(name, tq, tp, parq, masked, odd_q, kreg, koff, vreg, voff, nreg, noff, first_pv=False, end_ops=(), swap=False, mid_ops=(), vmn=16, extra=None, raw=False, salu=(), xops=()):
    qq = QSET[tq]
    qp = QSET[tp]
    parp = 1 - parq
    lv = LV and tq == 'D'
    mf = []; use = {}; lastq = {}; lastuse = {}
    for kb in range(4):
        for t in range(4):
            f = kb * 4 + t
            use[f] = len(mf)
            for qb in qq:
                d = Sreg(parq, qb, kb)
                mf.append(f"{MF} {vr(d)}, {ar(Fbuf(f))}, {ar(Qreg(qb, t))}, {vr(NEGM(qb)) if t == 0 else vr(d)}")
                lastq[(qb, kb)] = len(mf) - 1
            lastuse[f] = len(mf) - 1
    firstp = {}
    for s in range(2):
        for db in range(8):
            f = 16 + s * 8 + db
            use[f] = len(mf)
            for qb in qp:
                o = Oreg(qb, db)
                firstp.setdefault((qb, s), len(mf))
                mf.append(f"{MF} {ar(o)}, {ar(Fbuf(f))}, {vr(Preg(qb, s))}, {0 if (first_pv and s == 0) else ar(o)}")
            lastuse[f] = len(mf) - 1
        for qb in qp:
            if lv and qb >= 2: continue
            mf.append(f"{MF} {vr(LACC(qb))}, {vr(ONES)}, {vr(Preg(qb, s))}, {0 if (first_pv and s == 0) else vr(LACC(qb))}")
    n = len(mf)
    S = Sched16(mf)
    gB = n - (GBS_ if len(qp) == 2 else GBD_)
    LEAD = LEADP
    for f in range(32):
        tag = ("F", "n", f) if f < NPRE else ("F", "c", f)
        if use[f] > 0: S.add_first(use[f] - 1, Wait("lgkm", tag))
    if isinstance(vmn, int): S.add_first(gB, Ins(f"s_waitcnt vmcnt({vmn}) lgkmcnt(0)"))
    else:
        S.add_first(gB, Ins("s_waitcnt lgkmcnt(0)")); S.add_first(gB + 1, Wait("vm", vmn))
    S.add_first(gB + 1, "s_barrier")
    S.add_first(n - 1, Wait("lgkm", ("F", "x", 0)))
    R = []
    todo = list(range(NPRE, 32))
    for k, f in enumerate(todo):
        e = lastuse[f - 16] if f >= 16 else 0
        dl = min(use[f] - LEAD + 4, gB - 5 - (31 - f))
        e = max(e, min(use[f] - LEAD - 8, dl - 4), 0)
        dl = max(dl, e)
        assert dl < use[f] - 1, (name, f, dl, e)
        if f < 16: ins = f"ds_read_b128 {ar(Fbuf(f))}, v{kreg} offset:{koff + f * 1024}"
        else: ins = f"ds_read_b128 {ar(Fbuf(f))}, v{vreg} offset:{voff + (f - 16) * 1024}"
        R.append(Op(ins, max(e, 0), max(dl, 0), tag=("F", "c", f)))
    for f, ins in enumerate(tail_reads(nreg, noff)):
        R.append(Op(ins, max(gB + 1, lastuse[f + 16]), min(n - 2, gB + 3 + 2 * f), tag=("F", "x", f)))
    D = []
    span = gB - 8
    for q in range(4):
        D.append(Op(f"buffer_load_dwordx4 v240, s[16:19], s55 offen offset:{q * 1024}{KSC} lds", 2 + q * span // 4, 2 + (q + 1) * span // 4 - 1, tag="kv"))
    for x in ["s_add_u32 s54, s54, 0x8000", "s_add_u32 s52, s52, 0x8000", "s_and_b32 s52, s52, 0x1ffff", "s_mov_b32 m0, s52"]:
        D.append(Op(x, 0, gB))
    tl = n - 3 - (gB + 1)
    for q in range(4):
        D.append(Op(f"buffer_load_dwordx4 v240, s[16:19], s54 offen offset:{q * 1024}{KSC} lds", gB + 1 + q * tl // 4, gB + 1 + (q + 1) * tl // 4, tag="kv"))
    D.append(Op("s_mov_b32 m0, s53", 0, n - 1))
    if extra is not None:
        D = []
        nv = len(extra)
        for i, (pre, ins, tag) in enumerate(extra):
            for x in pre: D.append(Op(x, 0, n - 3))
            D.append(Op(ins, 1 + i * (n - 6) // nv, 1 + (i + 1) * (n - 6) // nv + 2, tag=tag, deps=[D[-1]] if pre else []))
    E = []; C = []; AD = []
    for s in range(2):
        for qb in qp:
            b = Sreg(parp, qb, 2 * s)
            dl = firstp[(qb, s)] - 2
            es = [Op(f"v_exp_f32 v{b + r}, v{b + r}", 0, dl - 1) for r in range(8)]
            done = NX if (s == 0 and qb == qp[0]) else 0
            E += es[done:]
            if lv and qb >= 2:
                for r in range(8):
                    L = LACC(qb)
                    AD.append(Op(f"v_mov_b32 v{L}, v{b + r}" if (first_pv and s == 0 and r == 0) else f"v_add_f32 v{L}, v{L}, v{b + r}", 0, n - 1, [es[r]]))
            C += [Op(f"v_cvt_pk_bf16_f32 v{Preg(qb, s) + k}, v{b + 2 * k}, v{b + 2 * k + 1}", 0, dl, [e for i, e in enumerate(es) if i // 2 == k and i >= done]) for k in range(4)]
    M = []
    mins = {}
    vals = []
    mq = [qq[-1] if odd_q else qq[-2]]
    first = True
    for kb in range(4):
        for qb in qq:
            b = Sreg(parq, qb, kb)
            e0 = lastq[(qb, kb)] + (5 if len(qq) > 1 else 8)
            if masked and qb in mq:
                for r in range(4):
                    kk = 16 * kb + r
                    tm = TMP[r % 2]
                    M.append(Op(f"v_subrev_f32 v{tm}, {f2u(kk * BIG):#x}, v{VTMASK}", 0, n - 3))
                    M.append(Op(f"v_min_f32 v{b + r}, v{b + r}, v{tm}", e0, n - 3))
                    mins[b + r] = M[-1]
            if FAST: continue
            if first:
                M.append(Op(f"v_max_f32 v{MX[0]}, v{b}, v{b + 1}", e0, n - 3)); first = False
            else:
                M.append(Op(f"v_max3_f32 v{MX[0]}, v{MX[0]}, v{b}, v{b + 1}", e0, n - 3))
            M.append(Op(f"v_max3_f32 v{MX[0]}, v{MX[0]}, v{b + 2}, v{b + 3}", e0, n - 3))
    if not FAST: M.append(Op(f"v_cmp_lt_f32 vcc, s{S_THR}, v{MX[0]}", 0, n - 2))
    for r in range(NX):
        b = Sreg(parq, qq[0], 0) + r
        E.append(Op(f"v_exp_f32 v{b}, v{b}", lastq[(qq[0], r // 4)] + 8, n - 1, [mins[b]] if b in mins else []))
    X = []
    if swap:
        X = [Op(f"v_xor_b32 v{VCUR}, 0x10000, v{VCUR}", gB, n - 1), Op(f"v_xor_b32 v{VPREV}, 0x10000, v{VPREV}", gB, n - 1, [R[-1]])]
    XO = []
    for i, x in enumerate(xops):
        prev_trans = XO and XO[-1].t.startswith(TRANS)
        XO.append(Op(x, 5 + (i * (n - 12)) // len(xops), min(n - 2, 5 + (i * (n - 12)) // len(xops) + 4), tag="xo"))
    k = schedule(S, [R, D, E, C, M, X, XO, AD], 0, n - 1, name=name)
    if extra is None:
        g = D[7].g + 1
        for x in ["s_add_u32 s55, s55, 0x8000", "s_add_u32 s53, s53, 0x8000", "s_and_b32 s53, s53, 0x1ffff"] + list(mid_ops):
            while S.first[g]: g += 1
            S.add_first(g, x); g += 1
        assert g <= D[-1].g, (name, g, D[-1].g)
    g = 0
    for x in salu:
        while g < n - 1 and S.first[g]: g += 1
        for y in (x if isinstance(x, list) else [x]): S.add_first(g, y)
        g = min(g + 1, n - 1)
    for x in end_ops: S.add_last(n - 1, x)
    print(S.report(f"{name}(k={k})"))
    pre = [Ins(f"ds_read_b128 {ar(Fbuf(f))}, v0", ("F", "n", f)) for f in range(NPRE)] + [Wait("lgkm", ("F", "n", 0))]
    if raw: pre = list(raw) + pre
    return [i.t for i in resolve(S.items(), pre)]

def allreduce4(p, op, src, t0, t1):
    p(f"v_mov_b32 v{t0}, v{src}")
    p(f"v_mov_b32 v{t1}, v{src}")
    p("s_nop 1")
    p(f"v_permlane32_swap_b32 v{t0}, v{t1}")
    p("s_nop 1")
    p(f"{op} v{t0}, v{t0}, v{t1}")
    p(f"v_mov_b32 v{t1}, v{t0}")
    p("s_nop 1")
    p(f"v_permlane16_swap_b32 v{t0}, v{t1}")
    p("s_nop 1")
    p(f"{op} v{t0}, v{t0}, v{t1}")

def rowmax(p, par, qb):
    b = Sreg(par, qb, 0)
    p(f"v_max3_f32 v{MX[1]}, v{b}, v{b + 1}, v{b + 2}")
    for k in range(3, 15, 2): p(f"v_max3_f32 v{MX[1]}, v{MX[1]}, v{b + k}, v{b + k + 1}")
    p(f"v_max_f32 v{MX[1]}, v{MX[1]}, v{b + 15}")
    allreduce4(p, "v_max_f32", MX[1], TMP[0], TMP[1])

def gen_rare(par, qbs):
    p = Prog()
    p("s_nop 15")
    for qb in qbs:
        rowmax(p, par, qb)
        p(f"v_max_f32 v{TMP[0]}, 0, v{TMP[0]}")
        p(f"v_sub_f32 v{TMP[1]}, 0, v{TMP[0]}")
        p(f"v_exp_f32 v{TMP[1]}, v{TMP[1]}")
        for r in range(4): p(f"v_sub_f32 v{NEGM(qb) + r}, v{NEGM(qb) + r}, v{TMP[0]}")
        for r in range(16): p(f"v_sub_f32 v{Sreg(par, qb, 0) + r}, v{Sreg(par, qb, 0) + r}, v{TMP[0]}")
        for r in range(4): p(f"v_mul_f32 v{LACC(qb) + r}, v{LACC(qb) + r}, v{TMP[1]}")
        for r in range(0, 32, 2):
            a = Oreg(qb, 0) + r
            p(f"v_accvgpr_read_b32 v{TMP[2]}, a{a}")
            p(f"v_accvgpr_read_b32 v{TMP[3]}, a{a + 1}")
            p(f"v_mul_f32 v{TMP[2]}, v{TMP[2]}, v{TMP[1]}")
            p(f"v_mul_f32 v{TMP[3]}, v{TMP[3]}, v{TMP[1]}")
            p(f"v_accvgpr_write_b32 a{a}, v{TMP[2]}")
            p(f"v_accvgpr_write_b32 a{a + 1}, v{TMP[3]}")
    p("s_nop 1")
    p("s_setpc_b64 s[62:63]")
    return [i.t for i in p.items]


GPUB = int(os.environ.get("GPUB", "16"))
OB = int(os.environ.get("OB", "2"))
GB2 = int(os.environ.get("GB2", "1"))
GPOLL = int(os.environ.get("GPOLL", "20"))
CPUB = int(os.environ.get("CPUB", "2"))
CTXPF = int(os.environ.get("CTXPF", "0"))
PUB0 = int(os.environ.get("PUB0", "8"))
PUBP = int(os.environ.get("PUBP", "12"))
TP = float(os.environ.get("TP", "4.25"))
TP0 = float(os.environ.get("TP0", "4"))
LST = int(os.environ.get("LST", "8"))
LSP = int(os.environ.get("LSP", "10"))
CPOLL = int(os.environ.get("CPOLL", "100"))
CCHK = int(os.environ.get("CCHK", "136"))
def spin(name, load, cmp):
    return [f"L_{name}wait:", "s_mov_b32 s44, 0x40000", f"L_{name}spin:", "s_sub_u32 s44, s44, 1", f"s_cbranch_scc1 L_{name}ok", "s_sleep 1",
            load, "s_waitcnt vmcnt(0)", cmp, f"s_cbranch_vccnz L_{name}spin", f"s_branch L_{name}ok"]

def o_epi(qb, scr, pk):
    out = []
    for t in range(4):
        R = scr(t); P = pk(t)
        a = Oreg(qb, 2 * t)
        L = LACC(qb)
        rd = [f"v_accvgpr_read_b32 v{R + k}, a{a + k}" for k in range(8)]
        if t: ops = rd
        elif LV and qb >= 2:
            ops = [f"v_mov_b32 v{L + 1}, v{L}"] + rd[:2] + [f"v_permlane32_swap_b32 v{L}, v{L + 1}"] + rd[2:3] + [f"v_add_f32 v{L}, v{L}, v{L + 1}", f"v_mov_b32 v{L + 1}, v{L}"] + \
                  rd[3:5] + [f"v_permlane16_swap_b32 v{L}, v{L + 1}"] + rd[5:6] + [f"v_add_f32 v{L}, v{L}, v{L + 1}", f"v_rcp_f32 v{TMP[qb]}, v{L}"] + rd[6:]
        elif not ONE1: ops = [f"v_rcp_f32 v{TMP[qb]}, v{L}"] + rd
        else:
            ops = [f"v_mov_b32 v{L + 1}, v{L}"] + rd[:2] + [f"v_permlane32_swap_b32 v{L}, v{L + 1}"] + rd[2:3] + [f"v_mov_b32 v{L + 1}, v{L}"] + rd[3:5] + \
                  [f"v_permlane16_swap_b32 v{L}, v{L + 1}"] + rd[5:7] + [f"v_rcp_f32 v{TMP[qb]}, v{L}"] + rd[7:]
        ops += [f"v_mul_f32 v{R + k}, v{R + k}, v{TMP[qb]}" for k in range(8)]
        ops += [f"v_cvt_pk_bf16_f32 v{P + k}, v{R + 2 * k}, v{R + 2 * k + 1}" for k in range(4)]
        out.append((ops, f"buffer_store_dwordx4 {vr(P)}, v{240 if qb % 2 == 0 else 246}, s[20:23], s{100 + qb // 2} offen offset:{t * 1024}{STF}"))
    return out

NK = 46; NC = 23
SL = [8, 9, 0, 1, 2, 3, 4, 5]
def wofs(n): return SL[(n // 2) % 8] * 16384 + (n % 2) * 8192
def areg(n): return 128 + (n % 16) * 8
def areg2(n, tb): return vr(96 + (n - 8) * 8 + 4 * tb) if 8 <= n < 12 else ar(areg(n) + 4 * tb)
def w_ops(n):
    gp = n < 14
    j = n if gp else n - 14
    pre = [f"s_add_u32 m0, s{[51, 56, 50][wofs(n) >> 16]}, {wofs(n) & 0xffff if wofs(n) < 0x20000 else wofs(n)}", f"s_add_u32 s58, s{48 if gp else 49}, {j * 32768}"]
    wsrd = "s[12:15]" if gp else "s[8:11]"
    return [(pre, f"buffer_load_dwordx4 v242, {wsrd}, s58 offen lds", ("cw", n // 2)),
            ([], f"buffer_load_dwordx4 v243, {wsrd}, s58 offen offset:1024 lds", ("cw", n // 2))]
def a_ops(n):
    gp = n < 14
    j = n if gp else n - 14
    pre = [f"s_add_u32 s59, s{64 if gp else 65}, {j * 1024}"] if j % 2 == 0 else []
    return [(pre, f"buffer_load_dwordx4 {areg2(n, 0)}, v240, s[20:23], s59 offen offset:{(j % 2) * 1024}{ASC}", ("ca", n // 2)),
            ([], f"buffer_load_dwordx4 {areg2(n, 1)}, v246, s[20:23], s59 offen offset:{(j % 2) * 1024}{ASC}", ("ca", n // 2))]
def chunk(ch, w=True, a=True):
    return (w_ops(2 * ch) + w_ops(2 * ch + 1) if w else []) + (a_ops(2 * ch) + a_ops(2 * ch + 1) if a else [])
KEEP = 6 * 16384
GB = [36, 37, 41]

def tail_setup():
    sa = ["s_lshr_b32 s35, s34, 1", "s_sub_u32 s31, 15, s30", ["s_bitcmp1_b32 s34, 0", "s_cselect_b32 s31, s31, s30"], "s_and_b32 s45, s29, 3",
          "s_lshl_b32 s46, s31, 3", "s_add_u32 s46, s46, s28", f"s_mul_i32 s46, s46, {ACT_ROW}",
          f"s_add_u32 s46, s46, {WS_ACT:#x}", f"s_mul_i32 s47, s35, {14 * 1024}", "s_add_u32 s64, s46, s47", f"s_add_u32 s64, s64, {128 * 1024}",
          "s_lshl_b32 s47, s35, 15", "s_add_u32 s65, s46, s47",
          "s_lshl_b32 s46, s45, 8", "s_lshl_b32 s47, s28, 13", "s_add_u32 s46, s46, s47", f"s_mul_i32 s47, s35, {14 * 32 * 1024}",
          "s_add_u32 s48, s46, s47", "s_lshl_b32 s47, s35, 20", "s_add_u32 s49, s46, s47", "s_lshl_b32 s50, s28, 11",
          "s_mov_b32 s8, s4", "s_mov_b32 s9, s5", "s_mov_b32 s38, 0", "s_mov_b32 s12, s96", "s_mov_b32 s13, s97", f"s_mov_b32 s14, {1792 * 1024}",
          "s_and_b32 s46, s34, 1", "s_lshl_b32 s46, s46, 2", "s_add_u32 s3, s99, s46", "s_lshl_b32 s46, s35, 13", "s_add_u32 s3, s3, s46",
          "s_lshl_b32 s51, s31, 2", "s_add_u32 s51, s51, s45", "s_lshl_b32 s56, s51, 18", f"s_add_u32 s56, s56, {WS_PART:#x}",
          "s_lshl_b32 s46, s28, 16", "s_lshl_b32 s47, s35, 13", "s_add_u32 s40, s56, s46", "s_add_u32 s40, s40, s47",
          "s_lshl_b32 s46, s35, 16", "s_add_u32 s56, s56, s46", "s_add_u32 s56, s56, s50", f"s_mov_b32 s58, {KEEP + 16384 - 0x10000}",
          ["s_cmp_eq_u32 s28, s35", "s_cselect_b32 s40, 0x7ff00000, s40", f"s_cselect_b32 s58, {KEEP - 0x10000}, s58"]]
    for k in range(3): sa += [f"s_add_u32 s46, s35, {k + 1}", "s_and_b32 s46, s46, 3", "s_lshl_b32 s46, s46, 13", f"s_add_u32 s{GB[k]}, s56, s46"]
    sa += ["s_lshl_b32 s94, s51, 9", f"s_add_u32 s94, s94, {WS_FLAG:#x}", "s_lshl_b32 s46, s35, 7", "s_add_u32 s95, s94, s46",
           "s_lshl_b32 s46, s31, 17", "s_lshl_b32 s47, s35, 14", "s_add_u32 s46, s46, s47", "s_lshl_b32 s47, s45, 8", "s_add_u32 s46, s46, s47",
           "s_lshl_b32 s47, s28, 6", "s_add_u32 s57, s46, s47", "s_lshl_b32 s46, s29, 12", "s_add_u32 s100, s46, s32", "s_add_u32 s101, s46, s33",
           "s_and_b32 s32, s30, 1", "s_lshl_b32 s32, s32, 16", "s_xor_b32 s33, s32, 0x10000", "s_add_u32 s51, s50, s32", "s_add_u32 s56, s50, s33",
           "s_add_u32 s58, s58, s33"]
    va = ["v_lshrrev_b32 v244, 4, v254", "v_and_b32 v245, 15, v254", "v_lshlrev_b32 v243, 1, v244", "v_xor_b32 v245, v245, v243",
          "v_lshlrev_b32 v244, 10, v244", "v_lshl_add_u32 v242, v245, 4, v244", "v_xor_b32 v243, 0x80, v242", f"v_add_u32 v243, {4096 - 1024}, v243",
          "v_lshrrev_b32 v244, 2, v254", "v_and_b32 v245, 7, v244", "v_lshlrev_b32 v244, 8, v244", "v_and_b32 v241, 3, v254", "v_lshl_add_u32 v244, v241, 3, v244",
          "v_add_u32 v244, s32, v244", "s_sub_u32 s46, 0x20000, s32"]
    for c in range(8):
        va += [f"v_xor_b32 v241, {c}, v245", f"v_lshl_add_u32 v{208 + c}, v241, 5, v244", f"v_xor_b32 v{216 + c}, 0x10000, v{208 + c}", f"v_add_u32 v{224 + c}, s46, v{208 + c}"]
    va += ["v_lshl_add_u32 v237, v255, 11, v240", f"v_add_u32 v237, {KEEP - 0x10000}, v237", "v_add_u32 v237, s33, v237",
           "v_and_b32 v247, 3, v254", "v_lshlrev_b32 v247, 7, v247", "v_and_b32 v244, 15, v254", "v_lshlrev_b32 v244, 10, v244",
           "v_lshrrev_b32 v245, 4, v254", "v_lshl_add_u32 v238, v245, 3, v244", "v_add_u32 v239, 0x10000, v238"]
    va += [f"v_mov_b32 v{232 + k}, -1" for k in range(4)]
    return sa, va
HPOLL = "buffer_load_dword v207, v206, s[20:23], s99 offen sc1"
def gp1(): return chunk(0) + chunk(1) + sum([chunk(c, w=False) for c in range(2, 6)], [])
def gp2(): return sum([chunk(c, a=False) for c in range(2, 7)], [])
PRE_SPLIT = (12, 24, 28)
def gpre(): return gp1()[:PRE_SPLIT[2]] + gp2()[:12] + gp1()[PRE_SPLIT[2]:] + gp2()[12:]

def opf():
    if not OPF: return []
    return ["s_lshr_b32 s46, s2, 3", "s_lshl_b32 s46, s46, 2", "s_add_u32 s46, s46, s28", "v_lshlrev_b32 v241, 7, v254",
            "s_lshl_b32 s59, s35, 20", "s_lshl_b32 s46, s46, 13", "s_add_u32 s59, s59, s46",
            "buffer_load_dword v251, v241, s[8:11], s59 offen"]

def lchk(qa, qb_, first):
    if not FAST: return []
    return [f"v_cmp_ngt_f32 vcc, s{S_THR}, v{LACC(qa)}", "v_nop", "s_mov_b64 s[62:63], vcc" if first else "s_or_b64 s[62:63], s[62:63], vcc",
            f"v_cmp_ngt_f32 vcc, s{S_THR}, v{LACC(qb_)}", "v_nop", "s_or_b64 s[62:63], s[62:63], vcc"]

def sentinels():
    return [([f"s_add_u32 s60, s40, {32768 + (k8 // 4) * 4096}"] if k8 % 4 == 0 else [],
             f"buffer_store_dwordx4 v[232:235], v240, s[20:23], s60 offen offset:{(k8 % 4) * 1024} sc1", "sen") for k8 in range(8)]

def ee_one(qb, base):
    out = lchk(qb, qb, qb == 2)[:3]
    for ops, st in o_epi(qb, lambda t: base + 8 * t, lambda t: base + 8 * t): out += ops + [st]
    return out

def gen_early_epi(safe=False):
    out = lchk(2, 3, True)
    sn = sentinels()
    for qb in (2, 3):
        base = 32 if qb == 2 else 96
        for ops, st in o_epi(qb, lambda t: base + 8 * t, lambda t: base + 8 * t):
            pre, ins, tag = sn.pop(0)
            out += ops[:10] + list(pre) + [ins] + ops[10:] + [st]
    return [HPOLL] + out

def gen_safe():
    p = Prog()
    M_ = [NEGM(q) for q in range(4)]; TQ = [NEGM(q) + 1 for q in range(4)]
    p("s_waitcnt vmcnt(0) lgkmcnt(0)")
    p("s_nop 15")
    p("s_barrier")
    for q in range(4):
        for r in range(32): p(f"v_accvgpr_write_b32 a{Oreg(q, 0) + r}, 0")
        for r in range(4): p(f"v_mov_b32 v{LACC(q) + r}, 0")
        p(f"v_mov_b32 v{M_[q]}, {f2u(-2.0 ** 120):#x}")
    p("s_sub_u32 s46, 15, s30")
    p("s_lshl_b32 s47, s46, 7")
    p("s_lshl_b32 s52, s30, 7")
    for q in range(4):
        p(f"v_cvt_f32_u32 v{TMP[0]}, s{47 if q < 2 else 52}")
        if q & 1: p(f"v_add_f32 v{TMP[0]}, {f2u(64.0):#x}, v{TMP[0]}")
        p(f"v_mul_f32 v{TMP[0]}, {f2u(BIG):#x}, v{TMP[0]}")
        p(f"v_add_f32 v{TQ[q]}, v{VTMASK}, v{TMP[0]}")
    p(f"v_add_u32 v{VCUR}, s33, v240")
    p("s_lshl_b32 s47, s46, 1")
    p("s_add_u32 s47, s47, 2")
    p("s_lshl_b32 s54, s28, 12")
    p("s_add_u32 s52, s54, s33")
    p("s_add_u32 s53, s52, 49152")
    p("s_add_u32 s52, s52, 32768")
    p.label("L_safe_loop")
    p("s_mov_b32 m0, s52")
    p("s_add_u32 s55, s54, 16384")
    for k in range(4): p(f"buffer_load_dwordx4 v240, s[16:19], s54 offen offset:{k * 1024} sc1 lds")
    p("s_mov_b32 m0, s53")
    p("s_nop 0")
    for k in range(4): p(f"buffer_load_dwordx4 v240, s[16:19], s55 offen offset:{k * 1024} sc1 lds")
    p("s_waitcnt vmcnt(0)")
    p("s_barrier")
    for f in range(16): p(f"ds_read_b128 {ar(Fbuf(f))}, v{VCUR} offset:{32768 + f * 1024}")
    p("s_waitcnt lgkmcnt(0)")
    for kb in range(4):
        for t in range(4):
            for q in range(4):
                d = Sreg(0, q, kb)
                p(f"{MF} {vr(d)}, {ar(Fbuf(kb * 4 + t))}, {ar(Qreg(q, t))}, {vr(d) if t else 0}")
    for f in range(16): p(f"ds_read_b128 {ar(Fbuf(f))}, v{VCUR} offset:{49152 + f * 1024}")
    for q in range(4):
        b = Sreg(0, q, 0)
        for r in range(16):
            p(f"v_subrev_f32 v{TMP[r % 2]}, {f2u((16 * (r // 4) + r % 4) * BIG):#x}, v{TQ[q]}")
            p(f"v_min_f32 v{b + r}, v{b + r}, v{TMP[r % 2]}")
        p(f"v_subrev_f32 v{TQ[q]}, {f2u(64 * BIG):#x}, v{TQ[q]}")
        rowmax(p, 0, q)
        p(f"v_max_f32 v{TMP[0]}, v{TMP[0]}, v{M_[q]}")
        p(f"v_sub_f32 v{TMP[1]}, v{M_[q]}, v{TMP[0]}")
        p(f"v_exp_f32 v{TMP[1]}, v{TMP[1]}")
        p(f"v_mov_b32 v{M_[q]}, v{TMP[0]}")
        for r in range(16): p(f"v_sub_f32 v{b + r}, v{b + r}, v{TMP[0]}")
        for r in range(16): p(f"v_exp_f32 v{b + r}, v{b + r}")
        for r in range(4): p(f"v_mul_f32 v{LACC(q) + r}, v{LACC(q) + r}, v{TMP[1]}")
        for k in range(8): p(f"v_cvt_pk_bf16_f32 v{Preg(q, 0) + k}, v{b + 2 * k}, v{b + 2 * k + 1}")
        for r in range(0, 32, 2):
            a = Oreg(q, 0) + r
            p(f"v_accvgpr_read_b32 v{TMP[2]}, a{a}")
            p(f"v_accvgpr_read_b32 v{TMP[3]}, a{a + 1}")
            p(f"v_mul_f32 v{TMP[2]}, v{TMP[2]}, v{TMP[1]}")
            p(f"v_mul_f32 v{TMP[3]}, v{TMP[3]}, v{TMP[1]}")
            p(f"v_accvgpr_write_b32 a{a}, v{TMP[2]}")
            p(f"v_accvgpr_write_b32 a{a + 1}, v{TMP[3]}")
    p("s_waitcnt lgkmcnt(0)")
    p("s_barrier")
    for s in range(2):
        for db in range(8):
            for q in range(4): p(f"{MF} {ar(Oreg(q, db))}, {ar(Fbuf(s * 8 + db))}, {vr(Preg(q, s))}, {ar(Oreg(q, db))}")
        for q in range(4): p(f"{MF} {vr(LACC(q))}, {vr(ONES)}, {vr(Preg(q, s))}, {vr(LACC(q))}")
    p("s_add_u32 s54, s54, 32768")
    p("s_sub_u32 s47, s47, 1")
    p("s_cmp_lg_u32 s47, 0")
    p("s_cbranch_scc1 L_safe_loop")
    p("s_nop 15")
    p(f"s_mov_b32 s{S_THR}, 0x7f800000")
    for x in gen_early_epi(True)[1:]: p(x)
    for r in range(16): p(f"v_mov_b32 v{Sreg(1, 1, 0) + r}, {f2u(-2.0 ** 100) if r >= NX else 0:#x}")
    for pre, ins, tag in gpre():
        for x in pre: p(x)
        p(ins)
    p("s_mov_b32 s38, 1")
    p("s_branch L_fin")
    tx = [i.t for i in p.items]
    a = tx.index("L_safe_loop:"); b = tx.index("s_cbranch_scc1 L_safe_loop")
    for e in lint(tx[:b] + tx[a + 1:], "safe")[:20]: print(e)
    return ["L_safe:", "s_cmp_eq_u32 s38, 1", "s_cbranch_scc1 L_safe_ret"] + tx

def tail_pre():
    pa = [tag for pre, ins, tag in gpre()]
    pb = [tag for c in range(5) for pre, ins, tag in chunk(c, a=False)]
    d7 = {("cw", 0): 40, ("cw", 1): 40, ("cw", 2): 28, ("cw", 3): 28, ("cw", 4): 28, ("ca", 0): 28, ("ca", 1): 28,
          ("ca", 4): 12, ("ca", 5): 12, ("ca", 2): 4, ("ca", 3): 0, ("cw", 5): 4, ("cw", 6): 0}
    n = len(pa); slots = [set() for _ in range(n)]
    for tg in set(pa):
        d = min(n - 1 - max(i for i, x in enumerate(pa) if x == tg), d7[tg])
        slots[n - 1 - d].add(tg)
    return [Ins("buffer_load_dwordx4 v240, s[16:19], s55 offen lds", frozenset(x)) for x in slots]

def gen_tail():
    p = Prog()
    slow = []
    for f in range(NPRE, 16): p(f"ds_read_b128 {ar(Fbuf(16 + f))}, v{VCUR} offset:{49152 + f * 1024}", ("VE", f))
    b = Sreg(1, 1, 0)
    for r in range(NX, 16): p(f"v_exp_f32 v{b + r}, v{b + r}")
    for k in range(8): p(f"v_cvt_pk_bf16_f32 v{Preg(1, 0) + k}, v{b + 2 * k}, v{b + 2 * k + 1}")
    p("v_and_b32 v206, 0x1c00, v206")
    p.wait_vm(("cw", 0))
    p("s_waitcnt lgkmcnt(0)")
    p("s_barrier")
    for x in ["s_mov_b32 s4, s42", "s_mov_b32 s5, s43", "s_mov_b32 s6, 0x200000", "s_mov_b32 s7, 0x20000"]: p(x)
    mf = []
    for s in range(2):
        mf.append(f"{MF} {vr(LACC(1))}, {vr(ONES)}, {vr(Preg(1, s))}, {vr(LACC(1))}")
        for db in range(8): mf.append(f"{MF} {ar(Oreg(1, db))}, {ar(Fbuf(16 + s * 8 + db))}, {vr(Preg(1, s))}, {ar(Oreg(1, db))}")
    if not FAST: p(f"buffer_store_dword v249, v248, s[20:23], s98 offen offset:4{STF}", "flag")
    S = Sched16(mf)
    late = o_epi(0, lambda t: 8 * t, lambda t: 64 + 4 * t) + o_epi(1, lambda t: 32 + 8 * t, lambda t: 80 + 4 * t)
    seq = []
    rest = chunk(7, a=False) + chunk(6, w=False)
    for i, (ops, st) in enumerate(late):
        seq += [(x, None) for x in ops[:10]]
        if i < 4:
            for pre, ins, tag in rest[i:i + 1]: seq += [(y, None) for y in pre] + [(ins, tag)]
        seq += [(x, None) for x in ops[10:]]
        if i < LST: seq.append((st, "ctxst"))
    vs = tail_setup()[1][8:-4]
    for i, (pre, ins, tag) in enumerate(rest[4:]):
        seq += [(x, None) for x in vs[4 * i:4 * i + 4]] + [(y, None) for y in pre] + [(ins, tag)]
    seq += [(x, None) for x in vs[4 * len(rest[4:]):]]
    if FAST:
        seq += [(x, None) for x in lchk(0, 1, False) + ["s_or_b32 s62, s62, s63", "v_mov_b32 v244, s62", "v_lshlrev_b32 v245, 2, v255", f"s_add_u32 s46, s33, {KEEP + 16384 - 0x10000}", "v_add_u32 v245, s46, v245",
                                                         "ds_write_b32 v245, v244", "v_mov_b32 v245, s46"]]
    ne = 0
    for g in range(len(mf)):
        while S.load(g) + cost(seq[ne][0]) <= 2:
            S.add_last(g, Ins(*seq[ne])); ne += 1
    p.extend(S.items())
    if DIAG and not DIAG2: p.items.append(stamp(10))
    for x, tag in seq[ne:]: p(x, tag)
    if DIAG and not DIAG2: p.items.append(stamp(11))
    GO = [(n, c) for n in range(NK - 2) for c in range(8)] + [(n, 2 * cp + cf) for cp in range(4) for n in (NK - 2, NK - 1) for cf in range(2)]
    def w_reads(gi):
        n, c = GO[gi]
        off = wofs(n)
        d = 128 + 4 * (gi % 16)
        return [f"ds_read_b64_tr_b16 v[{d + 2 * hf}:{d + 2 * hf + 1}], v{208 + 8 * (off >> 16) + c} offset:{(off & 0xffff) + hf * 4096}" for hf in range(2)]
    RA = 8
    for gi in range(RA):
        for x in w_reads(gi): p(x, ("W", gi))
    p.wait_vm(("ca", 0))
    p.wait_lgkm(("W", 0))
    mf = []
    for gi, (n, c) in enumerate(GO):
        base = 0 if n < 14 else 64
        first = n in (0, 14)
        for tb in range(2):
            acc = base + ((c >> 1) * 2 + tb) * 8 + (c & 1) * 4
            mf.append(f"{MF} {vr(acc)}, {vr(128 + 4 * (gi % 16))}, {areg2(n, tb)}, {0 if first else vr(acc)}")
    S = Sched16(mf)
    NG = NK * 8; NM = len(mf)
    BS = [ch for ch in range(NC - 1) if ch % OB == 0]
    def gB(ch): return 32 * ch + 16
    for gi in range(RA, NG):
        ch, k = gi // 16, gi % 16
        g = 2 * (gi - RA)
        if ch in BS and k >= 12: g -= [1, 2, 3, 4][k - 12]
        for x in w_reads(gi): S.add_mem(g, x, ("W", gi))
    for gi in range(1, NG): S.add_first(2 * gi - 1, Wait("lgkm", ("W", gi)))
    assert GPUB in BS and CPUB in BS
    for ch in range(NC - 1):
        if ch in BS:
            S.add_first(gB(ch) - 2, Ins("s_waitcnt lgkmcnt(0)"))
            S.add_first(gB(ch), Wait("vm", [("cw", min(ch + OB, NC - 1))] + (["pub"] if ch == GPUB else []) + (["ctxst"] if ch == CPUB else [])))
            S.add_first(gB(ch), "s_barrier")
        S.add_first(32 * (ch + 1) - 2, Wait("vm", ("ca", ch + 1)))
    def wfree(ch):
        return 0 if ch < 8 else gB(min(x for x in BS if x >= ch - 8)) + 1
    S.add_mem(gB(CPUB) + 1, f"buffer_store_dword v249, v248, s[20:23], s98 offen offset:8{STF}", "flag")
    if FAST:
        S.add_mem(gB(CPUB) + 3, f"buffer_store_dword v249, v248, s[20:23], s98 offen offset:4{STF}", "flag")
        S.add_mem(gB(0) + 1, "ds_read_b128 v[200:203], v245", "bad")
        S.add_first(gB(0) + 10, Wait("lgkm", "bad"))
        S.add_valu(gB(0) + 11, "v_or3_b32 v200, v200, v201, v202")
        S.add_valu(gB(0) + 11, "v_or_b32 v200, v200, v203")
        S.add_valu(gB(0) + 13, "v_cmp_ne_u32 vcc, 0, v200")
        S.add_last(gB(0) + 15, "s_cbranch_vccnz L_safe")
        S.add_last(gB(0) + 15, "L_safe_ret:")
    for i, (ops, st) in enumerate(late[LST:]): S.add_mem(2 + LSP * i, st, "ctxst")
    assert 2 + LSP * (8 - LST) < gB(CPUB)
    LD = []
    def ld(ops, e, pace):
        for i, (pre, ins, tag) in enumerate(ops):
            for x in pre: LD.append(Op(x, e + i * pace - 2, NM - 1))
            LD.append(Op(ins, e + i * pace, NM - 1, tag=tag, deps=[LD[-1]] if pre else []))
    nw = 8
    while wfree(nw) + 16 <= CCHK:
        ld(chunk(nw, a=False), wfree(nw), 4); nw += 1
    S.add_mem(CPOLL, "buffer_load_dword v207, v206, s[20:23], s3 offen offset:4 sc1", "cpoll")
    S.add_first(CCHK, Wait("vm", "cpoll"))
    S.add_valu(CCHK, "v_cmp_ne_u32 vcc, 1, v207")
    S.add_last(CCHK + 1, "s_cbranch_vccnz L_cwait")
    S.add_last(CCHK + 1, "L_cok:")
    slow += spin("c", "buffer_load_dword v207, v206, s[20:23], s3 offen offset:4 sc1", "v_cmp_ne_u32 vcc, 1, v207")
    if CTXPF:
        S.add_valu(40, "v_lshlrev_b32 v252, 7, v254")
        S.add_valu(41, f"v_add_u32 v253, {4 * ACT_ROW}, v252")
        ld(chunk(7, w=False), CCHK + 2, 1)
        ld([(["s_lshl_b32 s60, s45, 13"], "s_add_u32 s60, s60, s65", None), ([], "buffer_load_dword v250, v252, s[20:23], s60 offen sc1", "pf"),
            ([], "buffer_load_dword v251, v253, s[20:23], s60 offen sc1", "pf")], CCHK + 2, 1)
    seqo = [("a", ch) for ch in range(7, nw)]
    for ch in range(nw, NC): seqo += [("w", ch), ("a", ch)]
    t = float(CCHK + 2)
    for k, (kind, ch) in enumerate(seqo):
        t = max(t, 32 * (ch - 7) if kind == "a" else wfree(ch))
        pace = TP0 if k < 2 else TP
        for op in chunk(ch, w=(kind == "w"), a=(kind == "a")):
            ld([op], int(t), 0); t += pace
    print("tail ld", schedule(S, [LD], 0, NM - 1, base_cap=2), [o.g for o in LD if o.mem][::8])
    def pub(base, kind, g0, g1, pace=0):
        ops = []
        for k8 in range(8):
            R = base + 8 * k8
            if k8 % 4 == 0: ops.append(Op(f"s_add_u32 s60, s40, {kind * 32768 + (k8 // 4) * 4096}", g0, g1))
            cv = [Op(f"v_cvt_pk_bf16_f32 v{R + k}, v{R + 2 * k}, v{R + 2 * k + 1}", g0, g1) for k in range(4)]
            ops += cv
            ops.append(Op(f"buffer_store_dwordx4 {vr(R)}, v240, s[20:23], s60 offen offset:{(k8 % 4) * 1024} sc1", g0 + k8 * pace, g1, [cv[-1]], tag="pub"))
            ops.append(Op(f"ds_write_b128 v236, {vr(R)} offset:{kind * 8192 + k8 * 1024}", g0, g1, tag="own"))
        return ops
    pb = pub(0, 0, 14 * 16 + PUB0, gB(GPUB) - 20, PUBP)
    print('pub', schedule(S, [pb], 14 * 16, NM - 1, base_cap=2), [o.g for o in pb if o.tag == 'pub'])
    S.add_mem(gB(GPUB) + 1, "buffer_store_dword v249, v248, s[20:23], s95 offen offset:4 sc1", "flag")
    gx = 32 * 17 + 21
    for k in range(4):
        S.add_mem(gx + 4 * k, f"buffer_load_dwordx2 v[{192 + 2 * k}:{193 + 2 * k}], v{238 + k // 2}, s[24:27], s57 offen offset:{32 * (k % 2)}", "x")
    gp = 32 * GPOLL
    S.add_mem(gp + 1, "buffer_load_dword v250, v247, s[20:23], s94 offen offset:4 sc1", "gpoll")
    gc = gp + 33
    S.add_first(gc + 1, Wait("vm", "gpoll"))
    S.add_valu(gc + 1, "v_cmp_ne_u32 vcc, 1, v250")
    S.add_last(gc + 2, "s_cbranch_vccnz L_gwait")
    S.add_last(gc + 2, "L_gok:")
    slow += spin("g", "buffer_load_dword v250, v247, s[20:23], s94 offen offset:4 sc1", "v_cmp_ne_u32 vcc, 1, v250")
    for k in range(3):
        for tb in range(2):
            S.add_mem(gc + 4 + 2 * (2 * k + tb), f"buffer_load_dwordx4 {vr(8 * k + 4 * tb)}, v240, s[20:23], s{GB[k]} offen offset:{tb * 1024} sc1", "gg")
    for tb in range(2): S.add_mem(gc + 18, f"ds_read_b128 {vr(24 + 4 * tb)}, v237 offset:{tb * 1024}", "gown")
    ps = pub(64, 1, 0, NM - 1)
    k8 = -1; inside = []
    for o in ps:
        if o.t.startswith("v_cvt") and (int(re.findall(r"v(\d+)", o.t)[0]) - 64) % 8 == 0: k8 += 1
        o.e = NM - 32 + 8 * (max(k8, 0) // 2) + 8 + 5
    inside = [o for o in ps if o.e < NM - 4]
    print("pub s inside", schedule(S, [inside], NM - 32, NM - 1, base_cap=3), len(inside), len(ps))
    for k in range(3): S.add_first(gc + 20 + 2 * k, f"s_add_u32 s{GB[k]}, s{GB[k]}, 32768")
    if DIAG3:
        for k, g in enumerate([int(x) for x in os.environ.get('D3', '').split(',') if x] or [0, CCHK, CCHK + 4, 14 * 16, 30 * 16, NM - 1]): S.add_first(g, stamp(2 + k))
    print(S.report("tail")[:400])
    OD = os.environ.get("ODROP", "").split(",")
    def keep(i):
        tg = i.tag if isinstance(i, (Ins, Wait)) else None
        if isinstance(i, Ins):
            if isinstance(tg, tuple) and tg[0] in OD: return False
            if tg in OD and tg: return False
        if isinstance(i, Wait):
            tags = tg if isinstance(tg, list) else [tg]
            tags = [t for t in tags if (t[0] if isinstance(t, tuple) else t) not in OD]
            if not tags: return False
            i.tag = tags
        return True
    p.extend([i for i in S.items() if keep(i)])
    GS = 144
    def gather():
        for k in range(3):
            for tb in range(2):
                p(f"buffer_load_dwordx4 {vr(GS + 8 * k + 4 * tb)}, v240, s[20:23], s{GB[k]} offen offset:{tb * 1024} sc1", "gs")
    p("s_nop 3")
    for o in ps[len(inside):]: p(o.t, o.tag)
    gather()
    def unpack(dst, src, n=8):
        for k in range(n):
            p(f"v_lshlrev_b32 v{dst + 2 * k}, 16, v{src + k}")
            p(f"v_and_b32 v{dst + 2 * k + 1}, 0xffff0000, v{src + k}")
    def rnd(b, T):
        for k in range(0, 16, 2): p(f"v_cvt_pk_bf16_f32 v{T + k // 2}, v{b + k}, v{b + k + 1}")
        unpack(b, T)
    def accum(D, src):
        for k in range(8):
            p(f"v_dot2c_f32_bf16 v{D + 2 * k}, s46, v{src + k}")
            p(f"v_dot2c_f32_bf16 v{D + 2 * k + 1}, s47, v{src + k}")
    p("s_mov_b32 s46, 0x00003f80")
    p("s_mov_b32 s47, 0x3f800000")
    p("s_mov_b32 s44, 0x40000")
    if DIAG3: p.items.append(stamp(8))
    p("s_waitcnt lgkmcnt(0)")
    p("s_barrier")
    for tb in range(2): p(f"ds_read_b128 {vr(168 + 4 * tb)}, v237 offset:{8192 + tb * 1024}", "sown")
    p.wait_vm("gg")
    unpack(32, 24)
    for k in range(3): accum(32, 8 * k)
    p("s_nop 2")
    rnd(32, 48)
    for k in range(16): p(f"v_mul_f32 v{48 + k}, {f2u(-LOG2E):#x}, v{32 + k}")
    for k in range(16): p(f"v_exp_f32 v{48 + k}, v{48 + k}")
    for k in range(16): p(f"v_add_f32 v{48 + k}, 1.0, v{48 + k}")
    for k in range(16): p(f"v_rcp_f32 v{48 + k}, v{48 + k}")
    for k in range(16): p(f"v_mul_f32 v{32 + k}, v{32 + k}, v{48 + k}")
    rnd(32, 48)
    unpack(128, 192)
    p.wait_lgkm("sown")
    unpack(0, 168)
    p("s_branch L_o_chk")
    p.label("L_o_poll")
    gather()
    p.label("L_o_chk")
    p("s_waitcnt vmcnt(0)")
    p(f"v_max3_u32 v48, v{GS}, v{GS + 1}, v{GS + 2}")
    p(f"v_max3_u32 v49, v{GS + 3}, v{GS + 4}, v{GS + 5}")
    for k in range(6, 22, 4):
        p(f"v_max3_u32 v48, v48, v{GS + k}, v{GS + k + 1}")
        p(f"v_max3_u32 v49, v49, v{GS + k + 2}, v{GS + k + 3}")
    p(f"v_max3_u32 v48, v48, v{GS + 22}, v{GS + 23}")
    p("v_max_u32 v48, v48, v49")
    p("v_cmp_eq_u32 vcc, -1, v48")
    p("s_cbranch_vccz L_o_go")
    p("s_sub_u32 s44, s44, 1")
    p("s_cbranch_scc0 L_o_poll")
    p.label("L_o_go")
    if DIAG3: p.items.append(stamp(9))
    for k in range(3): accum(0, GS + 8 * k)
    p("s_nop 2")
    for k in range(16): p(f"v_fmac_f32 v{128 + k}, v{k}, v{32 + k}")
    for k in range(0, 16, 2): p(f"v_cvt_pk_bf16_f32 v{96 + k // 2}, v{128 + k}, v{129 + k}")
    for k in range(4):
        p(f"buffer_store_dwordx2 v[{96 + 2 * k}:{97 + 2 * k}], v{238 + k // 2}, s[4:7], s57 offen offset:{32 * (k % 2)}")
    PAD = os.environ.get("PAD", "")
    if PAD:
        p("s_mov_b32 s46, 20")
        p.label("L_pad")
        for k in range(64):
            if PAD == "nop": p("s_nop 3")
            else: p(f"{MF} {vr(4 * (k % 16))}, {ar(4 * ((k // 4) % 8))}, {ar(128 + 4 * (k % 32))}, {vr(4 * (k % 16))}")
        p("s_sub_u32 s46, s46, 1")
        p("s_cmp_lg_u32 s46, 0")
        p("s_cbranch_scc1 L_pad")
    if DIAG:
        p("s_waitcnt vmcnt(0)")
        p.items.append(stamp(12)); p.items.append(stamp(13, True))
        dump_stamps(p, 0, 28, 20)
    return [i.t for i in resolve(p.items, tail_pre())], slow

def gen_f_kernel():
    p = Prog()
    p("s_cmp_ge_u32 s2, 256")
    p("s_cbranch_scc1 L_f_end")
    if DIAG:
        for k in range(14): p(f"s_mov_b32 s{66 + 2 * k}, 0")
        p.items.append(stamp(0, True)); p.items.append(stamp(1))
    p("s_load_dwordx4 s[36:39], s[0:1], 0")
    p("s_load_dwordx4 s[40:43], s[0:1], 24")
    p("s_load_dwordx2 s[44:45], s[0:1], 96")
    p("v_and_b32 v254, 63, v0")
    p("v_lshrrev_b32 v255, 6, v0")
    p("s_and_b32 s34, s2, 7")
    p("v_readfirstlane_b32 s28, v255")
    p("s_lshr_b32 s35, s2, 3")
    p("v_lshlrev_b32 v252, 7, v254")
    if CPF:
        p("s_getpc_b64 s[4:5]")
        p("L_pc0:")
        p(f"s_sub_u32 s4, s4, L_pc0-{KNAME}")
        p("s_subb_u32 s5, s5, 0")
        p(f"s_mov_b32 s6, L_code_end-{KNAME}")
        p("s_mov_b32 s7, 0x20000")
        p("v_lshrrev_b32 v244, 3, v254")
        p("v_lshl_or_b32 v244, v244, 27, v252")
        p("v_lshl_add_u32 v244, v255, 15, v244")
        p("s_lshl_b32 s63, s35, 10")
        p("buffer_load_dword v52, v244, s[4:7], s63 offen", "pf")
    p("v_lshlrev_b32 v240, 4, v254")
    p("v_lshrrev_b32 v244, 4, v254")
    p("v_and_b32 v245, 15, v254")
    p("v_lshlrev_b32 v245, 7, v245")
    p("v_lshl_add_u32 v253, v244, 13, v245")
    p("s_lshl_b32 s60, s35, 2")
    p("s_add_u32 s60, s60, s28")
    p("s_and_b32 s61, s34, 1")
    p("s_lshl_b32 s61, s61, 20")
    p("s_lshl_b32 s63, s60, 13")
    p("s_add_u32 s61, s61, s63")
    p("s_lshr_b32 s62, s34, 1")
    p("s_lshl_b32 s62, s62, 11")
    p("s_lshl_b32 s63, s60, 15")
    p("s_add_u32 s62, s62, s63")
    p("s_lshl_b32 s47, s2, 13")
    p("s_lshl_b32 s46, s28, 11")
    p("s_add_u32 s47, s47, s46")
    if HYB:
        for x in ["s_and_b32 s57, s34, 1", "s_lshl_b32 s57, s57, 2", "s_and_b32 s56, s35, 3", "s_add_u32 s57, s57, s56", "s_lshl_b32 s57, s57, 2",
                  "s_add_u32 s57, s57, s28", "s_lshl_b32 s31, s57, 16",
                  "s_lshr_b32 s57, s34, 1", "s_lshl_b32 s57, s57, 3", "s_lshr_b32 s56, s35, 2", "s_add_u32 s57, s57, s56", "s_lshl_b32 s57, s57, 8",
                  "s_mul_i32 s48, s28, 24576", "s_and_b32 s56, s28, 1", "s_lshr_b32 s52, s28, 1", "s_lshl_b32 s53, s56, 13", "s_lshl_b32 s54, s52, 12",
                  "s_add_u32 s53, s53, s54", "s_lshl_b32 s54, s56, 6", "s_lshl_b32 s55, s52, 19", "s_add_u32 s54, s54, s55", "s_add_u32 s54, s54, s57",
                  "v_lshrrev_b32 v241, 3, v254", "v_lshlrev_b32 v241, 13, v241", "v_and_b32 v242, 7, v254"]: p(x)
        for n in range(8):
            p(f"v_xor_b32 v243, {n}, v242")
            p(f"v_lshl_add_u32 v{224 + n}, v243, 4, v241")
        for x in ["v_lshrrev_b32 v244, 5, v254", "v_lshlrev_b32 v244, 1, v244", "v_and_b32 v245, 3, v254", "v_xor_b32 v245, v245, v244",
                  "v_lshlrev_b32 v245, 4, v245", "v_lshrrev_b32 v244, 2, v254", "v_lshl_add_u32 v241, v244, 13, v245",
                  f"v_mov_b32 v66, {~HA & 0xff}", "v_lshrrev_b32 v66, v242, v66", "v_and_b32 v66, 1, v66", "v_lshl_or_b32 v64, v66, 30, v252",
                  "v_lshrrev_b32 v66, 4, v254", "v_and_b32 v67, 15, v254", "v_lshlrev_b32 v65, 7, v67", "v_lshl_add_u32 v65, v66, 20, v65",
                  "v_and_b32 v67, 1, v254", "v_lshl_add_u32 v66, v66, 1, v67", f"v_mov_b32 v67, {~HW & 0xff}", "v_lshrrev_b32 v67, v66, v67",
                  "v_and_b32 v67, 1, v67", "v_lshl_or_b32 v65, v67, 30, v65",
                  "s_lshr_b32 s58, s34, 1", "s_lshl_b32 s58, s58, 11", "s_lshl_b32 s59, s60, 13"]: p(x)
    for r, v in ((10, 0x200000), (11, 0x20000), (14, 0x400000), (15, 0x20000), (26, 0x200000), (27, 0x20000)): p(f"s_mov_b32 s{r}, {v:#x}")
    p("s_waitcnt lgkmcnt(0)")
    if DIAG and not DIAG2: p.items.append(stamp(2))
    for d, sr in ((24, 36), (25, 37), (8, 38), (9, 39), (12, 40), (13, 41)): p(f"s_mov_b32 s{d}, s{sr}")
    p("buffer_load_dwordx4 v[0:3], v240, s[24:27], s47 offen" + NTX, "ln")
    p("buffer_load_dwordx4 v[4:7], v240, s[24:27], s47 offen offset:1024" + NTX, "ln")
    if XBAR: p("s_barrier")
    BLK = [6, 7, 8, 9, 6, 7, 8, 9, 0, 1, 2, 3, 4, 5, 6, 7, 8, 9, 0, 1, 2, 3, 6, 7, 8, 9, 4, 5, 6, 7, 8, 9]
    if KD: BLK = [6, 7, 8, 9, 6, 7, 8, 9, 6, 7, 0, 1, 2, 3, 4, 5, 8, 9, 0, 1, 2, 3, 6, 7, 8, 9, 4, 5, 6, 7, 8, 9]
    def dma_A(s):
        ops = []
        for n in range(8):
            pre = []
            if n % 4 == 0:
                pre = [f"s_add_u32 m0, s48, {(s % 3) * 8192 + (n // 4) * 4096}", f"s_add_u32 s56, s31, {s * 128 + (n // 4) * 4096}"]
            ops.append((pre, f"buffer_load_dwordx4 v{224 + n}, s[8:11], s56 offen offset:{(n % 4) * 1024}{NTA} lds", ("A", s)))
        return ops
    def dma_W(n):
        ops = []
        kq = n % 4
        for q in range(4):
            m0 = "s53"
            if n < 8 and KD:
                pre = [f"s_add_u32 s57, s50, {(n * 64 + q * 16) * 8192 - q * 1024}"]; m0 = "s49"
                ins = f"buffer_load_dwordx4 v241, s[12:15], s57 offen offset:{q * 1024} lds"
            elif n < 8:
                pre = [f"s_add_u32 s57, s54, {(kq * 128 + q * 16) * 8192 + (n // 4) * 128 - q * 1024}"]
                ins = f"buffer_load_dwordx4 v241, s[12:15], s57 offen offset:{q * 1024} lds"
            elif n < 16:
                pre = [f"s_add_u32 s57, s50, {((n - 8) * 64 + q * 16) * 8192 - q * 1024}"]; m0 = "s49"
                ins = f"buffer_load_dwordx4 v241, s[16:19], s57 offen offset:{q * 1024} lds"
            elif n < 24:
                pre = [f"s_add_u32 s57, s{35 if n < 20 else 64}, {(kq * 128 + q * 16) * 3584 - q * 1024}"]
                ins = f"buffer_load_dwordx4 v242, s[12:15], s57 offen offset:{q * 1024} lds"
            else:
                pre = [f"s_add_u32 s57, s65, {(kq * 128 + q * 16) * 8192 - q * 1024 + (128 if n >= 28 else 0)}"]
                ins = f"buffer_load_dwordx4 v241, s[8:11], s57 offen offset:{q * 1024} lds"
            if "kkvvggqq"[n // 4] in NTD: ins = ins.replace(" lds", " nt lds")
            if q == 0: pre = [f"s_add_u32 m0, {m0}, {BLK[n] * 16384}"] + pre
            ops.append((pre, ins, ("L", n)))
        return ops
    def kv_half(tile, part):
        ops = []
        for q in range(4):
            pre = []
            if q == 0: pre = [f"s_add_u32 m0, s49, {tile * 32768 + part * 16384}", f"s_add_u32 s57, s49, {tile * 32768 + part * 16384}"]
            ops.append((pre, f"buffer_load_dwordx4 v240, s[16:19], s57 offen offset:{q * 1024}{KSC} lds", ("kv", tile, part)))
        return ops
    def now(ops):
        for pre, ins, tag in ops:
            for x in pre: p(x)
            p(ins, tag)
    first = dma_W(0) + dma_A(0) + dma_A(1) + (dma_W(1) + dma_A(2) if ALEAD == 3 else [])
    if KD: first = dma_W(0) + dma_A(0) + dma_W(1) + dma_A(1)
    HPA = "buffer_load_dword v246, v64, s[8:11], s44 offen"
    HPW = "buffer_load_dword v247, v65, s[12:15], s60 offen"
    if HYB:
        now(first[:HE]); first = first[HE:]
        if HP1 == 0: p(HPA.replace("s44", "s61"), "pf")
    if PFA and not HYB:
        p("buffer_load_dword v246, v252, s[8:11], s61 offen" + os.environ.get("NTPA", ""), "pf")
        p("buffer_load_dword v247, v253, s[12:15], s62 offen" + NT, "pf")
    srd(p, 16, 42, 0x400000)
    srd(p, 20, 44, 0x10000000)
    if HYB: p("s_mov_b32 s44, s61")
    p("s_load_dwordx2 s[36:37], s[0:1], 16")
    p("s_load_dwordx2 s[38:39], s[0:1], 40")
    p("s_load_dwordx4 s[40:43], s[0:1], 56")
    p("s_load_dwordx2 s[96:97], s[0:1], 72")
    p("s_load_dwordx2 s[98:99], s[0:1], 88")
    p("v_lshl_add_u32 v244, v255, 6, v254")
    p("v_cmp_eq_u32 vcc, 0, v244")
    p("v_mov_b32 v248, 0x7ffff000")
    p("v_mov_b32 v249, 1")
    p("v_mov_b32 v250, 0")
    p("v_cndmask_b32_e64 v248, v248, 0, vcc")
    p("s_and_b32 s47, s34, 1")
    p("s_lshl_b32 s47, s47, 2")
    p("s_and_b32 s46, s35, 3")
    p("s_add_u32 s47, s47, s46")
    p("s_lshr_b32 s3, s34, 1")
    p("s_lshl_b32 s3, s3, 3")
    p("s_lshr_b32 s46, s35, 2")
    p("s_add_u32 s3, s3, s46")
    p("s_lshl_b32 s45, s3, 3")
    p("s_add_u32 s45, s45, s47")
    p("s_lshl_b32 s46, s47, 2")
    p("s_add_u32 s46, s46, s28")
    p("s_lshl_b32 s31, s46, 16")
    p("s_lshl_b32 s94, s46, 15")
    p("s_lshl_b32 s47, s3, 20")
    p("s_add_u32 s94, s94, s47")
    p(f"s_add_u32 s94, s94, {WS_KV:#x}")
    p("s_lshl_b32 s95, s3, 8")
    p("s_lshl_b32 s3, s45, 7")
    p(f"s_add_u32 s3, s3, {WS_FLAG + 0x10000:#x}")
    p("s_lshl_b32 s29, s34, 2")
    p("s_lshr_b32 s46, s35, 3")
    p("s_add_u32 s29, s29, s46")
    p("s_and_b32 s30, s35, 7")
    p(f"s_mul_i32 s48, s28, 24576")
    p("s_lshl_b32 s49, s28, 12")
    p("s_lshl_b32 s50, s28, 6")
    p("s_add_u32 s50, s50, s95")
    p("s_and_b32 s45, s28, 1")
    p("s_lshr_b32 s52, s28, 1")
    p("s_lshl_b32 s53, s45, 13")
    p("s_lshl_b32 s54, s52, 12")
    p("s_add_u32 s53, s53, s54")
    p("s_lshl_b32 s54, s45, 6")
    p("s_lshl_b32 s55, s52, 19")
    p("s_add_u32 s55, s54, s55")
    p("s_add_u32 s54, s55, s95")
    p("s_lshl_b32 s56, s29, 8")
    p("s_add_u32 s65, s55, s56")
    p("s_sub_u32 s56, 15, s30")
    p("s_lshl_b32 s32, s56, 3")
    p("s_add_u32 s32, s32, s28")
    p("s_lshl_b32 s33, s30, 3")
    p("s_add_u32 s33, s33, s28")
    p("s_lshl_b32 s46, s32, 14")
    p("s_lshl_b32 s47, s33, 14")
    p(f"s_mul_i32 s32, s32, {ACT_ROW}")
    p(f"s_add_u32 s32, s32, {WS_ACT:#x}")
    p(f"s_mul_i32 s33, s33, {ACT_ROW}")
    p(f"s_add_u32 s33, s33, {WS_ACT:#x}")
    if GUZ:
        p("s_sub_u32 s55, s29, s34")
        p("s_add_u32 s55, s55, 32")
    else:
        p("s_add_u32 s55, s29, 32")
        p("s_cmp_lt_u32 s29, 24")
        p("s_cselect_b32 s55, s55, s29")
    p(f"s_mul_i32 s64, s52, {64 * 3584}")
    p("s_lshl_b32 s63, s29, 6")
    p("s_add_u32 s35, s64, s63")
    p("s_lshl_b32 s63, s55, 6")
    p("s_add_u32 s64, s64, s63")
    if GUZ:
        p("s_and_b32 s63, s29, 3")
        p("s_cmp_eq_u32 s63, 3")
        p("s_cselect_b32 s64, 0x7f000000, s64")
    p("s_lshl_b32 s51, s29, 20")
    p(f"s_add_u32 s51, s51, {WS_KV:#x}")
    p("s_lshl_b32 s56, s29, 10")
    p(f"s_add_u32 s56, s56, {128 * 1024}")
    p("s_add_u32 s100, s56, s32")
    p("s_add_u32 s101, s56, s33")
    p("s_lshl_b32 s61, s34, 8")
    p("s_lshr_b32 s63, s60, 1")
    p(f"s_mul_i32 s63, s63, {8 * 3584}")
    p("s_add_u32 s61, s61, s63")
    p("s_lshl_b32 s52, s34, 10")
    p("s_lshl_b32 s63, s60, 15")
    p("s_add_u32 s52, s52, s63")
    if HYB: p("s_add_u32 s60, s58, s59")
    p("v_lshrrev_b32 v241, 3, v254")
    p("v_lshlrev_b32 v241, 13, v241")
    p("v_and_b32 v242, 7, v254")
    for n in range(8):
        p(f"v_xor_b32 v243, {n}, v242")
        p(f"v_lshl_add_u32 v{224 + n}, v243, 4, v241")
    p("v_and_b32 v241, 7, v254")
    p("v_bfe_u32 v242, v254, 3, 1")
    p("v_lshlrev_b32 v242, 7, v242")
    p("v_lshl_add_u32 v242, v241, 10, v242")
    p("v_add_u32 v242, s48, v242")
    p("v_lshrrev_b32 v243, 4, v254")
    for tt in range(2):
        p(f"v_add_u32 v244, {4 * tt}, v243")
        p("v_xor_b32 v244, v244, v241")
        p(f"v_lshl_add_u32 v{232 + tt}, v244, 4, v242")
    p("v_lshlrev_b32 v241, 9, v243")
    p("v_bfe_u32 v242, v254, 2, 2")
    p("v_lshl_add_u32 v241, v242, 6, v241")
    p("v_and_b32 v242, 3, v254")
    p("v_lshl_add_u32 v241, v242, 3, v241")
    p("v_and_b32 v242, 1, v243")
    p("v_lshl_add_u32 v234, v242, 5, v241")
    p("v_xor_b32 v237, 32, v234")
    for cf in range(2):
        p(f"v_add_u32 v{235 + 3 * cf}, 0x10000, v{234 + 3 * cf}")
        p(f"v_add_u32 v{236 + 3 * cf}, 0x20000, v{234 + 3 * cf}")
    p("v_lshrrev_b32 v244, 5, v254")
    p("v_lshlrev_b32 v251, 30, v244")
    p("v_lshlrev_b32 v244, 1, v244")
    p("v_and_b32 v245, 3, v254")
    p("v_xor_b32 v245, v245, v244")
    p("v_lshlrev_b32 v245, 4, v245")
    p("v_lshrrev_b32 v244, 2, v254")
    p("v_lshl_add_u32 v241, v244, 13, v245")
    p("v_mul_u32_u24 v244, 3584, v244")
    p("v_add_u32 v242, v244, v245")
    if ASYM:
        p("v_lshrrev_b32 v245, 3, v254")
        p("v_mul_u32_u24 v245, 3584, v245")
        p("v_and_b32 v244, 3, v254")
        p("v_lshl_add_u32 v245, v244, 7, v245")
        p("s_lshr_b32 s63, s34, 1")
        p("s_mul_i32 s63, s63, 384")
        p("s_add_u32 s63, s63, 2048")
        p("s_lshl_b32 s56, s34, 8")
        p("s_sub_u32 s63, s63, s56")
        p("v_bfe_u32 v244, v254, 2, 1")
        p("v_mad_u32_u24 v245, v244, s63, v245")
        p("v_and_b32 v244, 7, v254")
        p("v_lshrrev_b32 v244, v244, 0x8c" if False else "v_mov_b32 v53, 0x8c")
        p("v_lshrrev_b32 v244, v244, v53")
        p("v_and_b32 v244, 1, v244")
        p("v_lshl_or_b32 v245, v244, 30, v245")
    else:
        p("v_bfe_u32 v245, v254, 2, 3")
        p("v_mul_u32_u24 v245, 3584, v245")
        p("v_and_b32 v244, 1, v254")
        p("v_lshl_add_u32 v245, v244, 7, v245")
        p("v_bfe_u32 v244, v254, 1, 1")
        if GUZ:
            p("s_lshl_b32 s63, s34, 6")
            p("s_sub_u32 s63, 2048, s63")
            p("v_mad_u32_u24 v245, v244, s63, v245")
        else:
            p("v_lshl_add_u32 v245, v244, 11, v245")
        p("v_or_b32 v245, v245, v251")
    p("v_and_b32 v243, 15, v254" if not BYTEF else "v_mov_b32 v243, v254")
    p(f"v_lshlrev_b32 v243, {2 if BYTEF else XSH}, v243")
    p("v_lshlrev_b32 v48, 7, v254")
    p("v_lshl_add_u32 v48, v255, 5, v48")
    p("v_add_u32 v48, 0x24000, v48")
    p("v_lshl_add_u32 v49, v255, 11, v240")
    p("v_add_u32 v49, 0x24000, v49")
    p("v_lshrrev_b32 v50, 3, v254")
    p("v_lshlrev_b32 v50, 8, v50")
    p("v_and_b32 v51, 7, v254")
    p("v_lshl_add_u32 v50, v51, 4, v50")
    p("s_waitcnt lgkmcnt(0)")
    p("s_cmp_eq_u32 s45, 0")
    p("s_cselect_b32 s40, s40, s42")
    p("s_cselect_b32 s41, s41, s43")
    p("s_mov_b32 s4, s98")
    p("s_mov_b32 s5, s99")
    p("s_mov_b32 s6, 256")
    p("s_mov_b32 s7, 0x20000")
    p("s_load_dwordx2 s[42:43], s[0:1], 80")
    p("s_lshl_b32 s56, s55, 10")
    p(f"s_add_u32 s56, s56, {128 * 1024}")
    p("s_add_u32 s98, s56, s32")
    p("s_add_u32 s99, s56, s33")
    if GUZ:
        p("s_and_b32 s56, s29, 3")
        p("s_cmp_eq_u32 s56, 3")
        p("s_cselect_b32 s98, 0x7f000000, s98")
        p("s_cselect_b32 s99, 0x7f000000, s99")
    p("s_lshl_b32 s63, s2, 7")
    p(f"s_add_u32 s63, s63, {WS_FLAG:#x}")
    now(first[:EARLY])
    p.wait_vm("ln")
    if DIAG and not DIAG2: p.items.append(stamp(3))
    emit_ln(p)
    p("ds_write_b128 v48, v[40:43]")
    p("ds_write_b128 v48, v[44:47] offset:16")
    p("s_lshr_b32 s58, s2, 1")
    p("s_lshl_b32 s58, s58, 14")
    p("s_and_b32 s59, s2, 1")
    p("s_lshl_b32 s59, s59, 7")
    p("s_add_u32 s58, s58, s59")
    p("s_add_u32 s58, s58, s49")
    if WS_XN: p(f"s_add_u32 s58, s58, {WS_XN:#x}")
    p("s_waitcnt lgkmcnt(0)")
    p("s_barrier")
    p("ds_read_b128 v[40:43], v49")
    p("ds_read_b128 v[44:47], v49 offset:1024")
    p("s_lshr_b32 s59, s2, 4")
    p(f"s_lshl_b32 s59, s59, {XSH}")
    p("s_waitcnt lgkmcnt(0)")
    p(f"buffer_store_dwordx4 v[40:43], v50, s[20:23], s58 offen{STF}", "xnst")
    p(f"buffer_store_dwordx4 v[44:47], v50, s[20:23], s58 offen offset:2048{STF}", "xnst")
    p(f"buffer_store_dword v250, v248, s[20:23], s63 offen{STF}", "zf")
    p(f"buffer_store_dword v250, v248, s[20:23], s63 offen offset:4{STF}", "zf")
    p(f"buffer_store_dword v250, v248, s[20:23], s3 offen{STF}", "zf")
    if ASYM:
        p("s_getreg_b32 s56, hwreg(HW_REG_XCC_ID)")
        p("s_and_b32 s56, s56, 1")
        p("v_mov_b32 v53, s56")
        p("s_lshl_b32 s56, s2, 12")
        p(f"buffer_store_dword v53, v248, s[4:7], s56 offen offset:4{STF}", "zf")
    p(f"s_add_u32 s63, s63, 0x20000")
    p(f"buffer_store_dword v250, v248, s[20:23], s63 offen offset:8{STF}", "zf")
    p(f"buffer_store_dword v250, v248, s[20:23], s63 offen{STF}", "zf")
    p(f"buffer_store_dword v250, v248, s[20:23], s63 offen offset:4{STF}", "zf")

    if os.environ.get("PADS"):
        p(f"s_mov_b32 s56, {int(os.environ['PADS'])}")
        p.label("L_pads")
        for k in range(64): p("s_nop 3")
        p("s_sub_u32 s56, s56, 1")
        p("s_cmp_lg_u32 s56, 0")
        p("s_cbranch_scc1 L_pads")
    if os.environ.get('PFW8'):
        p('s_waitcnt vmcnt(0)'); p.items.append(stamp(2))
    if HYB and HP1 == 1: p(HPA, "pf")
    if HYB and HP2 == 0: p(HPW, "pf")
    now(first[EARLY:])
    if HYB and HP1 == 2: p(HPA, "pf")
    if HYB and HP2 == 1: p(HPW, "pf")

    groups = []
    def accT(base, c, cf, rb): return base + (c * 4 + rb) * 8 + cf * 4
    def accV(base, c, cf, rb): return base + ((c * 2 + cf) * 2 + (rb >> 1)) * 8 + (rb & 1) * 4
    def add_double(seg0, bases, vt=True):
        order = [(s, tt, c) for s in range(8) for tt in range(2) for c in range(4)]
        if KD and vt: order = sorted(order[:16], key=lambda x: x[2] >> 1) + order[16:]
        if KD and not vt: order = order[:56] + sorted(order[56:], key=lambda x: -(x[2] >> 1))
        for s, tt, c in order:
            for cf in range(2):
                groups.append(dict(off=BLK[seg0 + s] * 16384 + c * 4096 + tt * 2048, cf=cf, t=2 * s + tt,
                                   acc=[(accV if vt else accT)(bases[c >> 1], c & 1, cf, rb) for rb in range(4)], vt=vt))
    def add_single(seg0, base):
        if ASYM and seg0 == 20:
            for cf in range(2):
                for q in range(4):
                    for tq in range(4):
                        for c in range(2):
                            groups.append(dict(off=BLK[seg0 + q] * 16384 + c * 8192 + tq * 2048, cf=cf, t=4 * q + tq,
                                               acc=[accT(base, c, cf, rb) for rb in range(4)], vt=False))
            return
        for q in range(4):
            for tq, c in ([(tq, c) for c in range(2) for tq in range(4)] if seg0 + q == 31 else [(tq, c) for tq in range(4) for c in range(2)]):
                if True:
                    for cf in range(2):
                        groups.append(dict(off=BLK[seg0 + q] * 16384 + c * 8192 + tq * 2048, cf=cf, t=4 * q + tq,
                                           acc=[accT(base, c, cf, rb) for rb in range(4)], vt=False))
    if KD: add_double(0, [0, 64], False)
    else: add_single(0, 0); add_single(4, 64)
    add_double(8, [128, 0])
    add_single(16, 64); add_single(20, 128); add_single(24, 0); add_single(28, 64)
    NG = len(groups)
    mf = []
    for n, G in enumerate(groups):
        w = vr(192 + 4 * (n % 8))
        for rb in range(4):
            a = ar((rb * 16 + G["t"]) * 4)
            d = vr(G["acc"][rb])
            c = 0 if G["t"] == 0 else d
            mf.append(f"{MF} {d}, {a}, {w}, {c}" if G["vt"] else f"{MF} {d}, {w}, {a}, {c}")
    S = Sched16(mf)
    def w_reads(n):
        G = groups[n]
        out = []
        for hf in range(2):
            off = G["off"] + hf * 256
            d = 192 + 4 * (n % 8) + 2 * hf
            out.append(f"ds_read_b64_tr_b16 v[{d}:{d + 1}], v{234 + 3 * G['cf'] + (off >> 16)} offset:{off & 0xffff}")
        return out
    def a_reads(s):
        return [f"ds_read_b128 {ar((rb * 16 + 2 * s + tt) * 4)}, v{232 + tt} offset:{(s % 3) * 8192 + rb * 256}" for tt in range(2) for rb in range(4)]
    RA = 5
    if DIAG and not DIAG2: p.items.append(stamp(4))
    p.wait_vm(("A", 0))
    p("s_barrier")
    if DIAG and not DIAG2: p.items.append(stamp(5))
    for x in a_reads(0): p(x, ("Ar", 0))
    for n in range(RA):
        for x in w_reads(n): p(x, ("W", n))
    p.wait_lgkm(("W", 0))
    for n in range(RA, NG):
        k = n % 16
        if k <= 13: g = 4 * (n - RA)
        elif k == 14: g = 4 * (n - 6) + 2
        else: g = 4 * (n - 6)
        for i, x in enumerate(w_reads(n)): S.add_mem(g + i, x, ("W", n))
    for n in range(1, NG): S.add_first(4 * n - 1, Wait("lgkm", ("W", n)))
    for s in range(1, 8):
        g = 32 * s - 22 if not KD else 64 * s - 38
        S.add_first(g, Wait("vm", ("A", s)))
        for i, x in enumerate(a_reads(s)): S.add_mem(g + [0, 0, 1, 1, 4, 4, 5, 5][i], x, ("Ar", s))
        S.add_first(g + 12, Wait("lgkm", ("Ar", s)))
    def gB(n): return 64 * n + 4 * 11
    GBS = [n for n in range(31) if n < 8 or not GB2 or n % 2 == 1]
    if GB2 == 4: GBS = list(range(8)) + [11, 15, 19, 23, 25, 27, 29]
    if ASYM: GBS = sorted(set(GBS) - {21} | {KVPUB})
    for n in GBS:
        nxt = min([x for x in GBS if x > n] + [31])
        if ASYM and n == 19: nxt = 23
        tags = [("L", nxt)]
        if n == 0: tags += ["xnst", "zf"]
        if n == KVPUB: tags.append("kvst")
        if n == 29: tags.append(("kv", 0, 0))
        S.add_first(gB(n) - 2, Ins("s_waitcnt lgkmcnt(0)"))
        S.add_first(gB(n), Wait("vm", tags))
        S.add_first(gB(n), "s_barrier")
    assert KVPUB in GBS
    def win(n): return gB(n - 1) + 1
    def freed(seg): return gB(min(x for x in GBS if x >= (23 if ASYM and 20 <= seg < 23 else seg))) + 1
    def lfree(n):
        prev = [m for m in range(n) if BLK[m] == BLK[n]]
        return freed(prev[-1]) if prev else freed(6 if KD else 3)
    def lmax(n):
        c = max(x for x in GBS if x < n); last = min([x for x in GBS if x > c] + [31])
        if ASYM and 20 <= n <= 23: c, last = 19, 23
        return gB(c) - 130 - 36 * (last - n)
    def bfree(blk): return freed(max(m for m in range(32) if BLK[m] == blk))
    LD = []
    def ld(ops, e, pace=1):
        for i, (pre, ins, tag) in enumerate(ops):
            for x in pre: LD.append(Op(x, e + i * pace - 3, 2040))
            LD.append(Op(ins, e + i * pace, 2040, tag=tag, deps=[LD[-2]] if len(pre) == 2 else []))
    one = lambda ins, tag, pre=(): [([], x, None) for x in pre] + [([], ins, tag)]
    if KD:
        pfv = one("buffer_load_dword v246, v253, s[16:19], s62 offen" + NTV, "pf")
        for st in range(2, 8):
            ld(dma_W(st), 0 if st < 4 else win(st - 3), 2)
            ld(dma_A(st), 0 if st < 4 else 64 * (st - 3) - 26, 2)
            if st == PFVP and "v" in PFW: ld(pfv, 0)
        ld(one("buffer_atomic_add v249, v248, s[4:7], s59 offen", "pub"), win(5))
        for n in range(8, 13): ld(dma_W(n), lfree(n), 3)
    else:
        if ALEAD == 3:
            ld(dma_A(3), 0); ld(dma_W(2), 8); ld(dma_A(4), 22)
            ld(dma_A(5), 54); ld(dma_W(3), 62); ld(dma_A(6), 86); ld(dma_A(7), 118); ld(dma_W(4), 126); ld(dma_W(5), 140, 4)
        else:
            ld(dma_W(1), 0); ld(dma_A(2), 0)
            if HYB and HP2 == 2: ld(one(HPW, "pf"), 0)
            ld(dma_A(3), 20); ld(dma_W(2), 40); ld(dma_A(4), 52); ld(dma_A(5), 84); ld(dma_W(3), 100)
            ld(dma_A(6), 116); ld(dma_A(7), 144); ld(dma_W(4), 156); ld(dma_W(5), 160)
        if not BYTEF: ld(one("buffer_atomic_add v249, v248, s[4:7], s59 offen", "pub"), win(3))
        else: S.add_mem(win(BYTEF), "buffer_store_byte v249, v248, s[4:7], s2 offen sc1", "pub")
        if "v" in PFW: ld(one("buffer_load_dword v246, v253, s[16:19], s62 offen" + NTV, "pf"), win(3))
        ld(dma_W(6), win(3), 2)
        ld(dma_W(7), VW0 - 24, 4)
        for n in range(8, 13): ld(dma_W(n), VW0 + (n - 8) * VWP, 3)
    ld(one("buffer_load_dword v250, v245, s[12:15], s61 offen", "pf", ["s_mov_b32 s12, s40", "s_mov_b32 s13, s41", f"s_mov_b32 s14, {512 * 3584}"])[:4 if "g" in PFW else 3], win(8 if KD else GPW))
    print("ld1", schedule(S, [LD], 0, 511, base_cap=LCAP), "last", LD[-1].g, [o.g for o in LD if o.tag in ("pf", "poll")])
    gc = XNC
    S.add_mem(XPL if XPL else gc - 50, XPOLL, "poll")
    S.add_first(gc, Wait("vm", "poll"))
    S.add_valu(gc, XCMP)
    S.add_valu(gc, "v_add_u32 v247, 0x10000, v240")
    S.add_last(gc + 2, "s_cbranch_vccnz L_xnwait")
    S.add_last(gc + 2, "L_xnok:")
    BK0, BK1 = 1408, 1536
    if ASYM:
        S.add_valu(gc + 4, "v_readfirstlane_b32 s48, v225")
        ro = ["s_xor_b32 s48, s48, s2", "s_and_b32 s48, s48, 1",
              "s_and_b32 s55, s29, 3", "s_lshr_b32 s56, s55, 1", "s_add_u32 s56, s56, 4", "s_and_b32 s31, s55, 1", "s_mul_i32 s31, s31, s48",
              ["s_cmp_eq_u32 s48, 1", "s_cselect_b32 s55, s56, s55"], "s_lshr_b32 s56, s34, 1", "s_mul_i32 s56, s56, 6", "s_add_u32 s55, s55, s56",
              "s_add_u32 s55, s55, 32",
              "s_lshr_b32 s56, s28, 1", f"s_mul_i32 s64, s56, {64 * 3584}", "s_lshl_b32 s56, s55, 6", "s_add_u32 s64, s64, s56",
              "s_lshl_b32 s56, s31, 5", "s_add_u32 s64, s64, s56",
              "s_lshl_b32 s56, s55, 10", f"s_add_u32 s56, s56, {128 * 1024}", "s_add_u32 s98, s56, s32", "s_add_u32 s99, s56, s33",
              "s_lshl_b32 s31, s31, 3", "s_add_u32 s54, s98, s31", "s_add_u32 s55, s99, s31", "s_mov_b32 s56, 0x7f000000",
              ["s_cmp_eq_u32 s48, 1", "s_cselect_b32 s98, s56, s98", "s_cselect_b32 s99, s56, s99", "s_cselect_b32 s54, s54, s56", "s_cselect_b32 s55, s55, s56"]]
        g = gc + 6
        for x in ro:
            while S.first[g]: g += 1
            for y in (x if isinstance(x, list) else [x]): S.add_first(g, y)
            g += 1
        for g in range(BK0, BK1): S.add_last(g, Ins("BLACK")); S.add_last(g, Ins("BLACK"))
    LD = []
    for n in range(13, 24): ld(dma_W(n), max(min(win(9) + (n - 13) * 44 if n < WSH else win(n - 4), lmax(n)), lfree(n)), 8)
    S.add_valu(64 * 12, "v_and_b32 v253, 0xfffffbff, v253")
    S.add_valu(64 * 12 + 1, "v_bfe_u32 v246, v254, 3, 1")
    S.add_valu(64 * 12 + 2, "v_lshl_or_b32 v253, v246, 30, v253")
    ld(one("buffer_load_dword v244, v253, s[8:11], s52 offen", "pf", ["s_mov_b32 s8, s36", "s_mov_b32 s9, s37", "s_mov_b32 s10, 0x400000"])[:4 if "q" in PFW else 3], win(17 if WSH > 20 else WQW) if not ASYM else 1170)
    for n in range(24, 32):
        if n == 28 and PFOG:
            S.add_valu(1400, "v_and_b32 v245, 0xfff, v252")
            S.add_valu(1401, "v_or_b32 v245, v245, v251")
            ld(one("buffer_load_dword v250, v245, s[4:7], s50 offen", "pf", ["s_mov_b32 s4, s38", "s_mov_b32 s5, s39", "s_mov_b32 s6, 0x400000", "s_mov_b32 s7, 0x20000",
                   "s_lshl_b32 s50, s2, 2", "s_add_u32 s50, s50, s28", "s_lshl_b32 s50, s50, 12"]), PFOG - 8)
            ld(one("buffer_load_dword v253, v245, s[12:15], s50 offen", "pf", ["s_mov_b32 s12, s96", "s_mov_b32 s13, s97", f"s_mov_b32 s14, {1792 * 1024}"]), PFOG - 8)
            if NTX: ld(one("buffer_load_dword v244, v245, s[24:27], s50 offen", "pf"), PFOG - 8)
        ld(dma_W(n), max((1270 if ASYM else win(19) if WSH > 20 else win(21) + 20) + (n - 24) * (32 if ASYM else 50 if WSH > 20 else 36), lfree(n), PFOG + 120 + 20 * (n - 28) if PFOG and n >= 28 else 0), 8 if n < 28 or not PFOG else 4)
    S.add_valu(64 * 26, "v_and_b32 v243, 0x380, v252")
    for x in ["s_add_u32 s16, s20, s51", "s_addc_u32 s17, s21, 0"]: S.add_last(64 * 26, x)
    for x in ["s_sub_u32 s18, 16, s30", "s_lshl_b32 s18, s18, 16"]: S.add_last(64 * 26 + 1, x)
    ld(one("buffer_load_dword v244, v243, s[20:23], s59 offen sc1", "poll2", ["s_lshl_b32 s59, s29, 10", f"s_add_u32 s59, s59, {WS_FLAG + 0x10000:#x}"]), 64 * 27 + KPD)
    gc = win(28) + 1 + KPD
    for k in range(7): ld(kv_half(k // 2, k % 2), max(gc + 4 + 16 * k, bfree(k)), 4)
    S.add_first(gc, Wait("vm", "poll2"))
    S.add_valu(gc, "v_cmp_ne_u32 vcc, 1, v244")
    S.add_last(gc + 2, "s_cbranch_vccnz L_kvwait")
    S.add_last(gc + 2, "L_kvok:")
    print("ld2", schedule(S, [LD], 512, 2046, base_cap=2), "last", LD[-1].g, [(o.tag, o.g) for o in LD if o.mem][::4])
    XL = []
    for t in range(16):
        for rb in range(4):
            pre = []
            if t % 4 == 0 and rb % 2 == 0: pre = [f"s_add_u32 s{62 + rb // 2}, s{46 + rb // 2}, {WS_XN + t * 1024}"]
            vo = 240 if rb % 2 == 0 else 247
            XL.append(Op(f"buffer_load_dwordx4 {ar((rb * 16 + t) * 4)}, v{vo}, s[20:23], s{62 + rb // 2} offen offset:{(t % 4) * 1024}{XSC}",
                         max(512 + 32 * t + 32 + (6 * rb if t < 15 else 0) if not (KD and t < 4) else 576 + 16 * t + 16 + 3 * rb, XNC + 4 + int(XP * (4 * t + rb))), 1024 + 16 * t - 60 if t < 10 else 512 + 32 * t + 64, pre=pre, tag=("X", t)))
    for t in range(16): S.add_first(1024 + 16 * t - 2, Wait("vm", ("X", t)))
    def kv_epi(kind, u, base, g0, g1, st0):
        ops = []
        for k8 in range(8):
            R = base + 8 * k8
            if kind == "K":
                c, rb = k8 // 4, k8 % 4
                off = rb * 4096 + (2 * u + c) * 1024
                for r in range(8): ops.append(Op(f"v_mul_f32 v{R + r}, s58, v{R + r}", g0, g1))
            else:
                db, s = 4 * u + k8 // 2, k8 % 2
                off = 16384 + s * 8192 + db * 1024
            cv = [Op(f"v_cvt_pk_bf16_f32 v{R + k}, v{R + 2 * k}, v{R + 2 * k + 1}", g0, g1) for k in range(4)]
            ops += cv
            ops.append(Op(f"s_add_u32 s95, s94, {off & ~4095}", g0, g1))
            ops.append(Op(f"buffer_store_dwordx4 {vr(R)}, v240, s[20:23], s95 offen offset:{off & 4095}{STF}", max(g0, st0[0] + int(k8 * st0[1])), g1, [cv[-1]], tag="kvst"))
        return ops
    S.add_first(250, f"s_mov_b32 s58, {f2u(KSCALE):#x}")
    C0 = -2.0 * math.sqrt(2.0 / math.pi) * LOG2E
    C1 = C0 * 0.044715
    S.add_valu(64 * 17, f"v_mov_b32 v232, {f2u(C0):#x}")
    S.add_valu(64 * 17 + 1, f"v_mov_b32 v233, {f2u(C1):#x}")
    S.add_valu(64 * 17 + 2, f"v_add_u32 v246, {4 * ACT_ROW}, v240")
    def gu_epi(base, psg, g0, g1, gst):
        st = [[], []]; sto = []
        for rb in range(4):
            G = base + rb * 8; U = base + 32 + rb * 8
            L = st[rb & 1]
            for r in range(8):
                t = 224 + (r % 4) + 4 * (rb & 1)
                o4 = Op(f"v_exp_f32 v{t}, v{t}", g0, g1)
                o7 = Op(f"v_rcp_f32 v{t}, v{t}", g0, g1)
                L += [Op(f"v_mul_f32 v{t}, v{G + r}, v{G + r}", g0, g1), Op(f"v_fma_f32 v{t}, v{t}, v233, v232", g0, g1),
                      Op(f"v_mul_f32 v{t}, v{t}, v{G + r}", g0, g1), o4, Op(f"v_mul_f32 v{G + r}, v{G + r}, v{U + r}", g0, g1),
                      Op(f"v_add_f32 v{t}, 1.0, v{t}", g0, g1), o7, Op(f"v_mul_f32 v{G + r}, v{G + r}, v{t}", g0, g1, [o7])]
            cv = [Op(f"v_cvt_pk_bf16_f32 v{G + k}, v{G + 2 * k}, v{G + 2 * k + 1}", g0, g1 - 2) for k in range(4)]
            L += cv
            sto.append(Op(f"buffer_store_dwordx4 {vr(G)}, v{240 if rb % 2 == 0 else 246}, s[20:23], s{psg + rb // 2} offen{STF}", gst + 30 * rb, g1, [cv[-1]], tag="hst"))
            if ASYM and psg == 98:
                sto.append(Op(f"buffer_store_dwordx2 v[{G}:{G + 1}], v{240 if rb % 2 == 0 else 246}, s[20:23], s{54 + rb // 2} offen{STF}", gst + 30 * rb, g1, tag="hst"))
        return st, sto
    def q_epi(base, u, g0, g1, gmove):
        cvs = []; mv = []
        for c in range(2):
            for qb in range(4):
                R = base + (c * 4 + qb) * 8
                for k in range(4):
                    o = Op(f"v_cvt_pk_bf16_f32 v{R + k}, v{R + 2 * k}, v{R + 2 * k + 1}", g0, g1)
                    cvs.append(o)
                    mv.append(Op(f"v_accvgpr_write_b32 a{Qreg(qb, 2 * u + c) + k}, v{R + k}", gmove, g1, [o]))
        return cvs, mv
    PH = [256 * k for k in range(9)]
    PE = 2048
    kvs = kv_epi("K", 0, 0, PH[1] + 6, PH[2] - 3, (PH[1] + 16, STP)) + kv_epi("K", 1, 64, PH[2] + 6, PH[4] - 3, (PH[2] + 16, STPK1)) + \
          kv_epi("V", 0, 128, PH[4] + 6, PH[5] - 3, (PH[4] + 12, STPV)) + kv_epi("V", 1, 0, PH[4] + 6, (BK0 if ASYM else PH[6]) - 3, (PH[4] + 12 + 8 * STPV, STPV))
    kst = []
    if KD:
        kvs = []
        for u, base, g0 in ((1, 64, 512 - 32 + 6), (0, 0, 512 + 6)):
            for k8 in range(8):
                R = base + 8 * k8; P = 64 + 8 * k8 + (4 if u == 0 else 0)
                c, rb = k8 // 4, k8 % 4
                off = rb * 4096 + (2 * u + c) * 1024
                kvs += [Op(f"v_mul_f32 v{R + r}, s58, v{R + r}", g0, 573) for r in range(8)]
                cv = [Op(f"v_cvt_pk_bf16_f32 v{P + k}, v{R + 2 * k}, v{R + 2 * k + 1}", g0, 573) for k in range(4)]
                kvs += cv
                kst.append(Op(f"s_add_u32 s95, s94, {off & ~4095}", g0, PH[4] - 3))
                kst.append(Op(f"buffer_store_dwordx4 {vr(P)}, v240, s[20:23], s95 offen offset:{off & 4095}{STF}", 560 + int(len(kst) // 2 * STP), PH[4] - 3, [cv[-1]], tag="kvst"))
        kvs += kv_epi("V", 0, 128, PH[4] + 6, PH[5] - 3, (PH[4] + 12, STPV)) + kv_epi("V", 1, 0, PH[4] + 6, PH[6] - 3, (PH[4] + 12 + 8 * STPV, STPV))
    print("kv epi", schedule(S, [XL, kvs, kst], PH[1], PH[6]), "last store", kvs[-1].g, "pub at", gB(KVPUB))
    assert kvs[-1].g < gB(KVPUB)
    st0, so0 = gu_epi(64, 100, PH[5] + 6, PH[7] - 3, PH[6])
    st1, so1 = gu_epi(128, 98, PH[6] + 6, PE - 2, PH[6] + 130)
    q0c, q0m = q_epi(0, 0, PH[7] + 6, PE - 2, PH[7] + 130)
    q1c, q1m = q_epi(64, 1, PE - 32 + 5, PE - 1, PE - 32 + 5)
    k0r = [Op(f"ds_read_b128 {ar(Fbuf(f))}, v240 offset:{f * 1024}", max(gB(29) + 1, PH[7] + 16 * f + 16), PE - 2, tag=("K0", f)) for f in range(12)]
    print("gu epi", schedule(S, [st0[0] + st1[0], st0[1] + st1[1], so0 + so1, q0c + q1c[:16], q0m + q1m[:16], k0r], PH[5], PE - 1))
    S.add_mem(gB(KVPUB) + 2, f"buffer_store_dword v249, v248, s[20:23], s3 offen{STF}", "pub")
    if DIAG and not DIAG2:
        S.add_first(512, stamp(6)); S.add_first(1024, stamp(7)); S.add_first(PE - 1, stamp(8))
    if DIAG2:
        for k, g in enumerate(DIAG2): S.add_first(g, stamp(2 + k))
    skip_stub = []
    if ASYM:
        for g in range(BK0, BK1): S.last[g] = [x for x in S.last[g] if not (isinstance(x, Ins) and x.t == "BLACK")]
        S.add_last(BK0 - 1, "s_cmp_eq_u32 s48, 1"); S.add_last(BK0 - 1, "s_cbranch_scc1 L_gskip"); S.add_last(BK0 - 1, "L_gblk:")
        S.add_last(BK1 - 1, "L_gjoin:")
    print(S.report("gemm")[:600])
    its = S.items()
    DROP = os.environ.get("DROP", "").split(",")
    def keep(i):
        if isinstance(i, Ins):
            tg = i.tag[0] if isinstance(i.tag, tuple) else i.tag
            if tg in DROP and tg: return False
        if isinstance(i, Wait):
            tags = i.tag if isinstance(i.tag, list) else [i.tag]
            tags = [t for t in tags if (t[0] if isinstance(t, tuple) else t) not in DROP]
            if not tags: return False
            i.tag = tags
        return True
    p.extend([i for i in its if keep(i)])
    gemm_items = list(p.items)
    if ASYM:
        i0 = [k for k, x in enumerate(gemm_items) if isinstance(x, Ins) and x.t == "L_gblk:"][0]
        i1 = [k for k, x in enumerate(gemm_items) if isinstance(x, Ins) and x.t == "L_gjoin:"][0]
        def inblk(tg): return isinstance(tg, tuple) and tg[0] == "W" and tg[1] < BK1 // 4
        body = [x for x in gemm_items[i0 + 1:i1] if not ((isinstance(x, Ins) and (x.t.startswith("v_mfma") or inblk(x.tag))) or
                                                         (isinstance(x, Wait) and all(inblk(t) for t in (x.tag if isinstance(x.tag, list) else [x.tag]))))]
        npre_ = len(resolve(gemm_items[:i0 + 1]))
        skip_stub = ["L_gskip:"] + [x.t for x in resolve(gemm_items[:i0 + 1] + body)][npre_:] + ["s_waitcnt lgkmcnt(0)", "s_branch L_gjoin"]
        print("skip stub", skip_stub)
    n_gemm = len(resolve(gemm_items))
    sa, va = tail_setup()
    def gen_qk0(masked):
        mf = []; last = {}
        for kb in range(4):
            for t in range(4):
                for qb in range(4):
                    d = Sreg(0, qb, kb)
                    c = vr(d) if t else (0 if kb < 2 else vr(NEGM(qb)))
                    mf.append(f"{MF} {vr(d)}, {ar(Fbuf(kb * 4 + t))}, {ar(Qreg(qb, t))}, {c}")
                    last[(qb, kb)] = len(mf) - 1
        S = Sched16(mf)
        for f in range(1, 16): S.add_first(4 * f - 1, Wait("lgkm", ("K0", f)))
        for f in range(12, 16): S.add_mem(f - 12, f"ds_read_b128 {ar(Fbuf(f))}, v240 offset:{f * 1024}", ("K0", f))
        c1, m1 = q_epi(64, 1, 4, 9, 4)
        c1 = c1[16:]; m1 = m1[16:]
        su = ["v_and_b32 v241, 15, v254", "v_lshl_add_u32 v241, v255, 4, v241", "v_lshrrev_b32 v245, 4, v254", "v_lshlrev_b32 v245, 2, v245",
              "v_sub_u32 v241, v241, v245", "v_cvt_f32_i32 v241, v241", "v_add_f32 v241, 0.5, v241", f"v_mul_f32 v{VTMASK}, {f2u(BIG):#x}, v241"]
        SU = [Op(x, 0, 18) for x in su]
        su2 = [f"v_mov_b32 v{VCUR}, v240", f"v_add_u32 v{VPREV}, 0x10000, v240", "v_and_b32 v206, 31, v254", "v_lshlrev_b32 v206, 10, v206",
               "v_and_b32 v252, 0xfff, v252", "v_or_b32 v252, v252, v251"] + ([f"v_mov_b32 v{ONES + k}, 0x3f803f80" for k in range(4)] if not ONE1 else
                 [f"v_and_b32 v{ONES}, 15, v254", f"v_min_u32 v{ONES}, 1, v{ONES}", f"v_subrev_u32 v{ONES}, 1, v{ONES}", f"v_and_b32 v{ONES}, 0x3f803f80, v{ONES}"] +
                 [f"v_mov_b32 v{ONES + k}, v{ONES}" for k in range(1, 4)]) + va[:8] + va[-4:]
        SU += [Op(x, 0, 63) for x in su2]
        ss = [f"s_mov_b32 s{S_THR}, {f2u(LMAX if FAST else THR):#x}", "s_lshl_b32 s99, s30, 7", f"s_add_u32 s99, s99, {WS_FLAG + 0x20000:#x}", "s_lshl_b32 s98, s29, 10",
              "s_add_u32 s98, s98, s99", "s_mov_b32 s52, s49", f"s_add_u32 s53, s49, {3 * 32768 + 16384}", f"s_add_u32 s54, s49, {4 * 32768}",
              f"s_add_u32 s55, s49, {3 * 32768 + 16384}", "s_mov_b32 s4, s38", "s_mov_b32 s5, s39", "s_mov_b32 s6, 0x400000", "s_mov_b32 s7, 0x20000",
              "s_lshl_b32 s59, s2, 2", "s_add_u32 s59, s59, s28", "s_lshl_b32 s50, s59, 12", "s_mov_b32 s12, s96", "s_mov_b32 s13, s97",
              f"s_mov_b32 s14, {1792 * 1024}", "s_mov_b32 m0, s52"]
        SS = [Op(x, 0, 60) for x in ss]
        def mask_ops(kb, e0, dl):
            out = []
            if not masked: return out
            for qb in (2,):
                for r in range(4):
                    kk = 16 * kb + r
                    out.append(Op(f"v_subrev_f32 v{TMP[r % 2]}, {f2u(kk * BIG):#x}, v{VTMASK}", 19, dl))
                    out.append(Op(f"v_min_f32 v{Sreg(0, qb, kb) + r}, v{Sreg(0, qb, kb) + r}, v{TMP[r % 2]}", e0, dl))
            return out
        T0 = [128 + 2 * q for q in range(4)]
        dl = 29
        I = mask_ops(0, 20, dl)
        for q in range(4):
            b = Sreg(0, q, 0)
            I += [Op(f"v_max3_f32 v{T0[q]}, v{b}, v{b + 1}, v{b + 2}", 20, dl), Op(f"v_max_f32 v{T0[q]}, v{T0[q]}, v{b + 3}", 20, dl)]
        for sw in ("v_permlane32_swap_b32", "v_permlane16_swap_b32"):
            I += [Op(f"v_mov_b32 v{T0[q] + 1}, v{T0[q]}", 20, dl) for q in range(4)]
            I += [Op(f"{sw} v{T0[q]}, v{T0[q] + 1}", 20, dl) for q in range(4)]
            I += [Op(f"v_max_f32 v{T0[q]}, v{T0[q]}, v{T0[q] + 1}", 20, dl) for q in range(4)]
        if FAST: I += [Op(f"v_add_f32 v{T0[q]}, {f2u(SH):#x}, v{T0[q]}", 20, dl) for q in range(4)]
        for q in range(4): I += [Op(f"v_sub_f32 v{NEGM(q) + r}, 0, v{T0[q]}", 20, dl) for r in range(4)]
        post = []
        for kb in range(2):
            if kb: I += mask_ops(1, 36, 63)
            for q in range(4): I += [Op(f"v_sub_f32 v{Sreg(0, q, kb) + r}, v{Sreg(0, q, kb) + r}, v{T0[q]}", 36 if kb else 20, 63) for r in range(4)]
        first = True
        for kb in range(1, 4):
            ops = mask_ops(kb, 16 * kb + 20, 63) if kb > 1 else []
            for q in range(0 if FAST else 4):
                b = Sreg(0, q, kb)
                ops.append(Op(f"v_max_f32 v{MX[0]}, v{b}, v{b + 1}" if first else f"v_max3_f32 v{MX[0]}, v{MX[0]}, v{b}, v{b + 1}", 16 * kb + 20, 63)); first = False
                ops.append(Op(f"v_max3_f32 v{MX[0]}, v{MX[0]}, v{b + 2}, v{b + 3}", 16 * kb + 20, 63))
            if kb < 3: I += ops
            else: post = [o.t for o in ops]
        I += [Op(f"v_exp_f32 v{Sreg(0, 0, 0) + r}, v{Sreg(0, 0, 0) + r}", 36, 63) for r in range(NX)]
        print("qk0", schedule(S, [c1, m1, SU, SS, I], 0, 63), S.report("qk0")[:140])
        q = Prog()
        q.wait_lgkm(("K0", 0))
        q.extend(S.items())
        q.wait_vm(("kv", 1, 0))
        q("s_barrier")
        for ins in tail_reads(VCUR, 32768): q(ins)
        if not PFOG:
            for x in PFL[:PFM]: q(x.replace("s39", "s50"), "pf")
            q("s_mov_b32 s39, s50")
        for k in range(4): q(f"buffer_load_dwordx4 v240, s[16:19], s54 offen offset:{k * 1024}{KSC} lds", "kv")
        q("s_mov_b32 m0, s53")
        for x in post: q(x)
        if not FAST: q(f"v_cmp_lt_f32 vcc, s{S_THR}, v{MX[0]}")
        q(f"s_waitcnt lgkmcnt({NPRE - 1})")
        return [i.t for i in resolve(gemm_items + q.items)][n_gemm:]
    pro = [i.t for i in resolve(gemm_items)]

    stubs = []
    def check(site, par, dual):
        if FAST: return []
        stubs.append((site, par, dual))
        return [f"s_cbranch_vccnz L_stub_{site}", f"L_ret_{site}:"]
    def it_odd(name, tq, tp, masked, **kw):
        return gen_iter(name, tq, tp, 0, masked, 0, VCUR, 0, VPREV, 49152, VCUR, 32768, end_ops=check(name, 0, tq), **kw)
    def it_even(name, tq, tp, masked, extra_end=(), first_pv=False, **kw):
        if first_pv: kw["vmn"] = 8 if PFOG else 8 + len(PFL[:PFM])
        last = tq == "S1"
        return gen_iter(name, tq, tp, 1, masked, 1, VCUR, 32768, VCUR, 16384, VCUR if last else VPREV, 49152 if last else 0, first_pv=first_pv,
                        end_ops=check(name, 1, tq) + list(extra_end[2:]), swap=not last, mid_ops=extra_end[:2], **kw)
    seg = {}
    seg["G"] = pro
    for m in (False, True):
        nm = "m" if m else "u"
        seg["P" + nm] = gen_qk0(m) + check("qk0" + nm, 0, "D") + it_even("it0" + nm, "D1" if m else "D", "D", m, first_pv=True, salu=sa)
    seg["UDD"] = it_odd("uddA", "D", "D", False) + it_even("uddB", "D", "D", False, ["s_sub_u32 s47, s47, 1", "s_cmp_lg_u32 s47, 0", "s_cbranch_scc1 L_udd"])
    seg["UDDm"] = it_odd("uddmA", "D", "D", True) + it_even("uddmB", "D1", "D", True)
    fake = lambda tag, n: [Ins("buffer_load_dwordx4 v240, s[16:19], s55 offen lds", tag) for _ in range(n)]
    ee = gen_early_epi()
    seg["UDS"] = it_odd("udsA", "S", "D1", False) + it_even("udsB", "S", "S", False, xops=ee, vmn="need", raw=fake("need", 4) + fake("x", 12))
    seg["USS"] = it_odd("ussA", "S", "S", False) + it_even("ussB", "S", "S", False, ["s_sub_u32 s47, s47, 1", "s_cmp_lg_u32 s47, 0", "s_cbranch_scc1 L_uss"])
    g1, g2 = gp1(), gp2()
    vd = lambda adv: [(["s_mov_b32 m0, s53"] if q == 0 else [], f"buffer_load_dwordx4 v240, s[16:19], s55 offen offset:{q * 1024}{KSC} lds", "v") for q in range(4)]
    advv = ["s_add_u32 s55, s55, 0x8000", "s_add_u32 s53, s53, 0x8000", "s_and_b32 s53, s53, 0x1ffff"]
    n1, n2, n3 = PRE_SPLIT
    g1a = [(advv + list(g1[0][0]), g1[0][1], g1[0][2])] + g1[1:n1]
    xa, xb, xc, xd = vd(0) + g1a, vd(0) + g1[n1:n2], g1[n2:n3] + g2[:12], g1[n3:] + g2[12:]
    seg["USSp"] = it_odd("usspA", "S", "S", False, extra=xa, vmn="need", raw=fake("need", 4) + fake("x", 12)) + \
                  it_even("usspB", "S", "S", False, extra=xb, vmn="need", raw=fake("need", 4) + fake("x", 4 + len(xa)))
    seg["USSm"] = it_odd("ussmA", "S", "S", True, extra=xc, vmn="need", raw=fake("need", 4) + fake("x", len(xa) - 4 + len(xb))) + \
                  it_even("ussmB", "S1", "S", True, extra=xd, vmn="need", raw=fake("need", 4) + fake("x", len(xb) - 4 + len(xc)))
    flat = lambda ops: [y for pre, ins, tag in ops for y in list(pre) + [ins]]
    w01 = chunk(0, a=False) + chunk(1, a=False)
    w01 = [(advv + list(w01[0][0]), w01[0][1], w01[0][2])] + w01[1:]
    ya, yb = vd(0) + w01 + [([], HPOLL, "hp")], vd(0) + sentinels()
    seg["UDDm7"] = it_odd("uddm7A", "D", "D", True, extra=ya, vmn="need", raw=fake("need", 4) + fake("x", 12)) + \
                   it_even("uddm7B", "D1", "D", True, extra=yb, vmn="need", raw=fake("need", 4) + fake("x", 4 + len(ya)))
    za = ee_one(2, 32) + flat(chunk(0, w=False) + chunk(1, w=False))
    zb = ee_one(3, 32) + flat(chunk(2, w=False) + chunk(3, w=False))
    seg["UDSm"] = it_odd("udsmA", "S", "D1", True, extra=g2[:12], xops=za, vmn="need", raw=fake("need", 4) + fake("x", len(ya) - 4 + len(yb))) + \
                  it_even("udsmB", "S1", "S", True, extra=g2[12:], xops=flat(chunk(4, w=False) + chunk(5, w=False)) + zb, vmn="need",
                          raw=fake("need", 4) + fake("x", len(yb) - 4 + 12 + 12))
    seg["E"], tail_slow = gen_tail()
    seg["EE"] = []
    HC = ["v_cmp_ne_u32 vcc, 1, v207", "s_nop 0"]
    gpl = []
    for c in range(6):
        for pre, ins, tag in chunk(c, w=False): gpl += list(pre) + [ins]
    pf2 = [] if PFOG else PFL[PFM:]
    hpub = ["v_add_u32 v236, s58, v240", f"buffer_store_dword v249, v248, s[20:23], s98 offen{STF}"]

    out = list(seg["G"])
    out += ["s_cmp_lg_u32 s30, 0", "s_cbranch_scc1 L_pu"] + seg["Pm"] + ([stamp(9).t] if DIAG and not DIAG2 else []) + hpub
    out += ["L_uds:"] + pf2 + st4(4) + seg["UDS"] + st4(5) + seg["EE"] + st4(6)
    out += ["s_lshl_b32 s47, s30, 1", "s_sub_u32 s47, 12, s47", "s_cmp_eq_u32 s47, 0", "s_cbranch_scc1 L_ussp"]
    out += [f".p2align {AL}", "L_uss:"] + seg["USS"]
    out += ["L_ussp:"] + st4(7) + ["s_waitcnt vmcnt(20)"] + HC + ["s_cbranch_vccnz L_hwait", "L_hok:"] + seg["USSp"] + seg["USSm"]
    out += ["L_fin:"] + st4(8) + seg["E"]
    out += ["L_f_end:", "s_endpgm"]
    out += ["L_pu:"] + seg["Pu"]
    if DIAG and not DIAG2: out.append(stamp(9).t)
    out += (hpub + st4(2) if os.environ.get("HS") else st4(2) + hpub) + ["s_sub_u32 s47, s30, 1", "s_cmp_eq_u32 s47, 0", "s_cbranch_scc1 L_uddm"]
    out += [f".p2align {AL}", "L_udd:"] + seg["UDD"]
    out += ["s_cmp_eq_u32 s30, 7", "s_cbranch_scc1 L_last7"]
    out += ["L_uddm:"] + pf2 + st4(3) + seg["UDDm"]
    out += ["s_branch L_uds"]
    out += ["L_last7:"] + seg["UDDm7"] + ["s_waitcnt vmcnt(12)"] + HC + ["s_cbranch_vccnz L_h2wait", "L_h2ok:"] + seg["UDSm"] + ["s_branch L_fin"]
    out += spin("h", HPOLL, HC[0]) + spin("h2", HPOLL, HC[0])
    out += tail_slow + skip_stub
    if FAST: out += gen_safe()
    out += ["L_xnwait:", "s_mov_b32 s44, 0x40000", "L_xnspin:", "s_sub_u32 s44, s44, 1", "s_cbranch_scc1 L_xnok", "s_sleep 2",
            XPOLL, "s_waitcnt vmcnt(0)",
            XCMP, "s_cbranch_vccnz L_xnspin", "s_branch L_xnok"]
    out += ["L_kvwait:", "s_mov_b32 s44, 0x40000", "L_kvspin:", "s_sub_u32 s44, s44, 1", "s_cbranch_scc1 L_kvok", "s_sleep 2",
            "buffer_load_dword v244, v243, s[20:23], s59 offen sc1", "s_waitcnt vmcnt(0)",
            "v_cmp_ne_u32 vcc, 1, v244", "s_cbranch_vccnz L_kvspin", "s_branch L_kvok"]
    for site, par, tq in stubs:
        out += [f"L_stub_{site}:", f"s_call_b64 s[62:63], L_rare_{par}{tq}", f"s_branch L_ret_{site}"]
    for par, tq in sorted({(par, tq) for _, par, tq in stubs}):
        out += [f"L_rare_{par}{tq}:"] + gen_rare(par, QSET[tq])
    for path in (["G", "Pu", "UDD", "UDD", "UDDm", "UDS", "EE", "USS", "USS", "USSp", "USSm", "E"], ["G", "Pm", "UDS"], ["UDD", "UDDm7", "UDSm", "E"]):
        tx = []
        for k in path: tx += seg[k]
        for e in lint(tx, "f")[:40]: print(e)
    return out

KVPUB = int(os.environ.get("KVPUB", "24" if ASYM else "23"))
STPV = float(os.environ.get("STPV", "23" if ASYM else "26"))
STP = float(os.environ.get("STP", "29"))
STPK1 = float(os.environ.get("STPK1", "50"))
VW0 = int(os.environ.get("VW0", "340"))
WP = int(os.environ.get("WP", "14"))
XNC = int(os.environ.get("XNC", "540"))
LCAP = int(os.environ.get("LCAP", "3"))
WSH = int(os.environ.get("WSH", "18"))
XP = float(os.environ.get("XP", "5"))
PFOG = int(os.environ.get("PFOG", "0"))
AL = int(os.environ.get("AL", "3"))
XBAR = int(os.environ.get("XBAR", "1"))
NTX = os.environ.get("NTX", "")
PFM = int(os.environ.get("PFM", "2"))
PFL = [] if os.environ.get("NOPFO") else ["buffer_load_dword v253, v252, s[4:7], s39 offen", "buffer_load_dword v251, v252, s[12:15], s39 offen", "buffer_load_dword v250, v252, s[24:27], s39 offen"][:3 if os.environ.get("NTX") else 2]
WQW = int(os.environ.get("WQW", "20"))
ONE1 = int(os.environ.get("ONE1", "1"))
GUZ = int(os.environ.get("GUZ", "1"))
KD = int(os.environ.get("KD", "0"))
PFVP = int(os.environ.get("PFVP", "3"))
KPD = int(os.environ.get("KPD", "0"))
HYB = int(os.environ.get("HYB", "1"))
HA = int(os.environ.get("HA", "0xf0"), 0)
HW = int(os.environ.get("HW", "0xfa"), 0)
HE = int(os.environ.get("HE", "12"))
HP1 = int(os.environ.get("HP1", "0"))
HP2 = int(os.environ.get("HP2", "2"))
CPF = int(os.environ.get("CPF", "1"))
if __name__ == "__main__":
    print(len(gen_f_kernel()))
```

```python
from asmlib import *
from sched16 import *
import math, os, re
MF = "v_mfma_f32_16x16x32_bf16"
KNAME = "recurrent_scan__compressed_kv_cla__glu_gated_geglu__prompt_kernel"
WSB = int(os.environ.get("WSB", "0"), 0)
WS_XN = WSB + 0x0
WS_KV = WSB + 0x200000
WS_ACT = WSB + 0x2200000
WS_PART = WSB + 0x4000000
WS_FLAG = WSB + 0x5000000
ACT_ROW = 184 * 1024
LOG2E = 1.4426950408889634
KSCALE = LOG2E / math.sqrt(128.0)
BIG = 2.0 ** 100
THR = float(os.environ.get("THR", "40"))
FAST = int(os.environ.get("FAST", "1"))
NX = int(os.environ.get("NX", "8")) if FAST else 0
NXR = int(os.environ.get("NXR", "10"))
SH = float(os.environ.get("SH", "64"))
LMAX = 2.0 ** float(os.environ.get("LMAXE", "60"))
STF = " sc1"
CH = os.environ.get("CH", "gtqp")
ASYM = int(os.environ.get("ASYM", "0"))
LV = int(os.environ.get("LV", "1"))
BYTEF = int(os.environ.get("BYTEF", "0"))
XPOLL = "buffer_load_dword v244, v243, s[4:7], 0 offen sc1" if not ASYM else "buffer_load_dwordx2 v[224:225], v243, s[4:7], 0 offen sc1"
XSH = int(os.environ.get("XSH", "4"))
XCMP = "v_cmp_ne_u32 vcc, 0x01010101, v244" if BYTEF else ("v_cmp_gt_u32 vcc, 16, v224" if ASYM else "v_cmp_gt_u32 vcc, 16, v244")
XPL = int(os.environ.get("XPL", "418"))
VWP = int(os.environ.get("VWP", "14"))
GPW = int(os.environ.get("GPW", "7"))
ASC = os.environ.get("ASC", " sc1")
XSC = os.environ.get("XSC", " sc1")
KSC = os.environ.get("KSC", " sc1")
NT = os.environ.get("NT", "")
NTV = os.environ.get("NTV", "")
PFA = int(os.environ.get("PFA", "1"))
PFW = os.environ.get("PFW", "vgq")
NTD = os.environ.get("NTD", "")
NTA = " nt" if "a" in NTD else ""
ALEAD = int(os.environ.get("ALEAD", "2"))
EARLY = int(os.environ.get("EARLY", "0"))
OPF = int(os.environ.get("OPF", "0"))
WSB = int(os.environ.get("WSB", "0"), 0)
DIAG4 = bool(os.environ.get("DIAG4"))
st4 = lambda k: [stamp(k).t] if DIAG4 else []
LEADP = int(os.environ.get("LEADP", "14"))
GBS_ = int(os.environ.get("GBS_", "20"))
GBD_ = int(os.environ.get("GBD_", "22"))
DIAG3 = bool(os.environ.get("DIAG3"))
DIAG2 = [int(x) for x in os.environ.get("DIAG2", "").split(",") if x]
def vr(b, n=4): return f"v[{b}:{b + n - 1}]"
def ar(b, n=4): return f"a[{b}:{b + n - 1}]"
def srd(p, d, lo, size):
    p(f"s_mov_b32 s{d}, s{lo}")
    p(f"s_mov_b32 s{d + 1}, s{lo + 1}")
    p(f"s_mov_b32 s{d + 2}, {size:#x}")
    p(f"s_mov_b32 s{d + 3}, 0x20000")

def wave_reduce(p, regs_):
    steps = ["quad_perm:[1,0,3,2] row_mask:0xf bank_mask:0xf", "quad_perm:[2,3,0,1] row_mask:0xf bank_mask:0xf",
             "row_half_mirror row_mask:0xf bank_mask:0xf", "row_mirror row_mask:0xf bank_mask:0xf",
             "row_bcast:15 row_mask:0xa bank_mask:0xf", "row_bcast:31 row_mask:0xc bank_mask:0xf"]
    for st in steps:
        p("s_nop 1")
        for r in regs_: p(f"v_add_f32_dpp v{r}, v{r}, v{r} {st}")
    p("s_nop 1")
def round_bf16(p, dst, src):
    p(f"v_cvt_pk_bf16_f32 v{dst}, v{src}, v{src}")
    p(f"v_and_b32 v{dst}, 0xffff0000, v{dst}")

def emit_ln(p):
    for r in range(2):
        for k in range(4):
            p(f"v_lshlrev_b32 v{8 + 8 * r + 2 * k}, 16, v{4 * r + k}")
            p(f"v_and_b32 v{9 + 8 * r + 2 * k}, 0xffff0000, v{4 * r + k}")
    for r in range(2):
        b = 8 + 8 * r
        p(f"v_add_f32 v{24 + r}, v{b}, v{b + 1}")
        for k in range(2, 8): p(f"v_add_f32 v{24 + r}, v{24 + r}, v{b + k}")
    wave_reduce(p, [24, 25])
    p("v_readlane_b32 s58, v24, 63")
    p("v_readlane_b32 s59, v25, 63")
    p(f"v_mov_b32 v30, {f2u(1.0 / 512):#x}")
    p("s_nop 1")
    for r in range(2): p(f"v_mul_f32 v{26 + r}, s{58 + r}, v30")
    for r in range(2):
        b = 8 + 8 * r
        for k in range(8): p(f"v_sub_f32 v{32 + k}, v{b + k}, v{26 + r}")
        p(f"v_mul_f32 v{24 + r}, v32, v32")
        for k in range(1, 8): p(f"v_fmac_f32 v{24 + r}, v{32 + k}, v{32 + k}")
    wave_reduce(p, [24, 25])
    p("v_readlane_b32 s58, v24, 63")
    p("v_readlane_b32 s59, v25, 63")
    p("s_nop 1")
    for r in range(2):
        p(f"v_mul_f32 v{28 + r}, s{58 + r}, v30")
        round_bf16(p, 28 + r, 28 + r)
        p(f"v_add_f32 v{28 + r}, {f2u(1e-5):#x}, v{28 + r}")
        round_bf16(p, 28 + r, 28 + r)
        p(f"v_sqrt_f32 v{28 + r}, v{28 + r}")
        p("s_nop 0")
        round_bf16(p, 28 + r, 28 + r)
        p(f"v_rcp_f32 v{28 + r}, v{28 + r}")
        round_bf16(p, 26 + r, 26 + r)
    for r in range(2):
        b = 8 + 8 * r
        for k in range(8): p(f"v_sub_f32 v{b + k}, v{b + k}, v{26 + r}")
        for k in range(4): p(f"v_cvt_pk_bf16_f32 v{32 + k}, v{b + 2 * k}, v{b + 2 * k + 1}")
        for k in range(4):
            p(f"v_lshlrev_b32 v{b + 2 * k}, 16, v{32 + k}")
            p(f"v_and_b32 v{b + 2 * k + 1}, 0xffff0000, v{32 + k}")
        for k in range(8): p(f"v_mul_f32 v{b + k}, v{b + k}, v{28 + r}")
        for k in range(4): p(f"v_cvt_pk_bf16_f32 v{40 + 4 * r + k}, v{b + 2 * k}, v{b + 2 * k + 1}")

def ln_ops(g0, g1):
    p = Prog(); emit_ln(p)
    ops = []; lag = False
    for it in p.items:
        t = it.t
        if t.startswith("s_nop"): lag = True; continue
        t = re.sub(r"\bv(\d+)\b", lambda m: "v%d" % (int(m.group(1)) + 176 if int(m.group(1)) < 8 else int(m.group(1)) + 128), t)
        ops.append(Op(t, g0, g1, [ops[-1]] if lag else [], lag=2)); lag = False
    return ops

def Sreg(par, qb, kb): return par * 64 + qb * 16 + kb * 4
def Preg(qb, s): return 128 + qb * 8 + s * 4
def NEGM(qb): return 160 + 4 * qb
def LACC(qb): return 176 + 4 * qb
ONES = 192
MX = [196, 197]; VTM = 198; VTMASK = 199; VCUR, VPREV = 200, 201; TMP = [202, 203, 204, 205]
def Qreg(qb, t): return (t // 2) * 64 + qb * 8 + (t % 2) * 4
def Oreg(qb, db): return [32, 96, 128, 160][qb] + db * 4
def Fbuf(f): return 192 + (f % 16) * 4
S_THR = 61
NPRE = int(os.environ.get("NPRE", "8"))

def tail_reads(base_reg, off):
    return [f"ds_read_b128 {ar(Fbuf(f))}, v{base_reg} offset:{off + (vlds(f) if off == 49152 else f) * 1024}" for f in range(NPRE)]

def predone(qs): return [(qb, r) for r0 in range(0, NXR, 4) for qb in qs for r in range(r0, min(r0 + 4, NXR))] if "p" in CH else [(qs[0], r) for r in range(NX)]
def vlds(k): return (k % 2) * 8 + k // 2 if "p" in CH else k
QSET = {'D': [0, 1, 2, 3], 'S': [0, 1], 'D1': [0, 1, 3], 'S1': [1]}
def gen_iter(name, tq, tp, parq, masked, odd_q, kreg, koff, vreg, voff, nreg, noff, first_pv=False, end_ops=(), swap=False, mid_ops=(), vmn=16, extra=None, raw=False, salu=(), xops=()):
    qq = QSET[tq]
    qp = QSET[tp]
    parp = 1 - parq
    lv = LV and tq == 'D'
    mf = []; use = {}; lastq = {}; lastuse = {}
    qs = [(kb, t, qb) for kb in range(4) for t in range(4) for qb in qq]
    if "q" in CH: qs = [(kb, 2 * tp + e, qb) for kb in range(4) for tp in range(2) for qb in qq for e in range(2)]
    if "Q" in CH: qs = [(kb, t if i % 2 == 0 else 3 - t, qb) for kb in range(4) for i, qb in enumerate(qq) for t in range(4)]
    for kb, t, qb in qs:
        f = kb * 4 + t
        use.setdefault(f, len(mf))
        d = Sreg(parq, qb, kb)
        mf.append(f"{MF} {vr(d)}, {ar(Fbuf(f))}, {ar(Qreg(qb, t))}, {vr(NEGM(qb)) if (qb, kb) not in lastq else vr(d)}")
        lastq[(qb, kb)] = len(mf) - 1
        lastuse[f] = len(mf) - 1
    firstp = {}
    if "p" in CH: ps = [(db, qb, s) for db in range(9) for qb in qp for s in range(2)]
    else: ps = [(db, qb, s) for s in range(2) for db in range(9) for qb in qp]
    for db, qb, s in ps:
        if db == 8:
            if lv and qb >= 2: continue
            mf.append(f"{MF} {vr(LACC(qb))}, {vr(ONES)}, {vr(Preg(qb, s))}, {0 if (first_pv and s == 0) else vr(LACC(qb))}")
            continue
        f = 16 + (2 * db + s if "p" in CH else s * 8 + db)
        use.setdefault(f, len(mf))
        o = Oreg(qb, db)
        firstp.setdefault((qb, s), len(mf))
        mf.append(f"{MF} {ar(o)}, {ar(Fbuf(f))}, {vr(Preg(qb, s))}, {0 if (first_pv and s == 0) else ar(o)}")
        lastuse[f] = len(mf) - 1
    n = len(mf)
    S = Sched16(mf)
    gB = n - (GBS_ if len(qp) == 2 else GBD_)
    LEAD = LEADP
    for f in range(32):
        tag = ("F", "n", f) if f < NPRE else ("F", "c", f)
        if use[f] > 0: S.add_first(use[f] - 1, Wait("lgkm", tag))
    if isinstance(vmn, int): S.add_first(gB, Ins(f"s_waitcnt vmcnt({vmn}) lgkmcnt(0)"))
    else:
        S.add_first(gB, Ins("s_waitcnt lgkmcnt(0)")); S.add_first(gB + 1, Wait("vm", vmn))
    S.add_first(gB + 1, "s_barrier")
    S.add_first(n - 1, Wait("lgkm", ("F", "x", 0)))
    R = []
    todo = list(range(NPRE, 32))
    for k, f in enumerate(todo):
        e = lastuse[f - 16] if f >= 16 else 0
        dl = min(use[f] - LEAD + 4, gB - 5 - (31 - f))
        e = max(e, min(use[f] - LEAD - 8, dl - 4), 0)
        dl = max(dl, e)
        assert dl < use[f] - 1, (name, f, dl, e)
        if f < 16: ins = f"ds_read_b128 {ar(Fbuf(f))}, v{kreg} offset:{koff + f * 1024}"
        else: ins = f"ds_read_b128 {ar(Fbuf(f))}, v{vreg} offset:{voff + vlds(f - 16) * 1024}"
        R.append(Op(ins, max(e, 0), max(dl, 0), tag=("F", "c", f)))
    for f, ins in enumerate(tail_reads(nreg, noff)):
        R.append(Op(ins, max(gB + 1, lastuse[f + 16]), min(n - 2, gB + 3 + 2 * f), tag=("F", "x", f)))
    D = []
    span = gB - 8
    for q in range(4):
        D.append(Op(f"buffer_load_dwordx4 v240, s[16:19], s55 offen offset:{q * 1024}{KSC} lds", 2 + q * span // 4, 2 + (q + 1) * span // 4 - 1, tag="kv"))
    for x in ["s_add_u32 s54, s54, 0x8000", "s_add_u32 s52, s52, 0x8000", "s_and_b32 s52, s52, 0x1ffff", "s_mov_b32 m0, s52"]:
        D.append(Op(x, 0, gB))
    tl = n - 3 - (gB + 1)
    for q in range(4):
        D.append(Op(f"buffer_load_dwordx4 v240, s[16:19], s54 offen offset:{q * 1024}{KSC} lds", gB + 1 + q * tl // 4, gB + 1 + (q + 1) * tl // 4, tag="kv"))
    D.append(Op("s_mov_b32 m0, s53", 0, n - 1))
    if extra is not None:
        D = []
        nv = len(extra)
        for i, (pre, ins, tag) in enumerate(extra):
            for x in pre: D.append(Op(x, 0, n - 3))
            D.append(Op(ins, 1 + i * (n - 6) // nv, 1 + (i + 1) * (n - 6) // nv + 2, tag=tag, deps=[D[-1]] if pre else []))
    E = []; C = []; AD = []
    for s in range(2):
        for qb in qp:
            b = Sreg(parp, qb, 2 * s)
            dl = firstp[(qb, s)] - 2
            es = [Op(f"v_exp_f32 v{b + r}, v{b + r}", 0, dl - 1) for r in range(8)]
            dn = [(qb, 8 * s + r) in predone(qp) for r in range(8)]
            E += [e for r, e in enumerate(es) if not dn[r]]
            if lv and qb >= 2:
                for r in range(8):
                    L = LACC(qb)
                    AD.append(Op(f"v_mov_b32 v{L}, v{b + r}" if (first_pv and s == 0 and r == 0) else f"v_add_f32 v{L}, v{L}, v{b + r}", 0, n - 1, [] if dn[r] else [es[r]]))
            C += [Op(f"v_cvt_pk_bf16_f32 v{Preg(qb, s) + k}, v{b + 2 * k}, v{b + 2 * k + 1}", 0, dl, [e for i, e in enumerate(es) if i // 2 == k and not dn[i]]) for k in range(4)]
    M = []
    mins = {}
    vals = []
    mq = [qq[-1] if odd_q else qq[-2]]
    first = True
    for kb in range(4):
        for qb in qq:
            b = Sreg(parq, qb, kb)
            e0 = lastq[(qb, kb)] + (5 if len(qq) > 1 else 8)
            if masked and qb in mq:
                for r in range(4):
                    kk = 16 * kb + r
                    tm = TMP[r % 2]
                    M.append(Op(f"v_subrev_f32 v{tm}, {f2u(kk * BIG):#x}, v{VTMASK}", 0, n - 3))
                    M.append(Op(f"v_min_f32 v{b + r}, v{b + r}, v{tm}", e0, n - 3))
                    mins[b + r] = M[-1]
            if FAST: continue
            if first:
                M.append(Op(f"v_max_f32 v{MX[0]}, v{b}, v{b + 1}", e0, n - 3)); first = False
            else:
                M.append(Op(f"v_max3_f32 v{MX[0]}, v{MX[0]}, v{b}, v{b + 1}", e0, n - 3))
            M.append(Op(f"v_max3_f32 v{MX[0]}, v{MX[0]}, v{b + 2}, v{b + 3}", e0, n - 3))
    if not FAST: M.append(Op(f"v_cmp_lt_f32 vcc, s{S_THR}, v{MX[0]}", 0, n - 2))
    for qb, r in predone(qq):
        b = Sreg(parq, qb, 0) + r
        E.append(Op(f"v_exp_f32 v{b}, v{b}", lastq[(qb, r // 4)] + 8, n - 1, [mins[b]] if b in mins else []))
    X = []
    if swap:
        X = [Op(f"v_xor_b32 v{VCUR}, 0x10000, v{VCUR}", gB, n - 1), Op(f"v_xor_b32 v{VPREV}, 0x10000, v{VPREV}", gB, n - 1, [R[-1]])]
    XO = []
    for i, x in enumerate(xops):
        prev_trans = XO and XO[-1].t.startswith(TRANS)
        XO.append(Op(x, 5 + (i * (n - 12)) // len(xops), min(n - 2, 5 + (i * (n - 12)) // len(xops) + 4), tag="xo"))
    k = schedule(S, [R, D, E, C, M, X, XO, AD], 0, n - 1, name=name)
    if extra is None:
        g = D[7].g + 1
        for x in ["s_add_u32 s55, s55, 0x8000", "s_add_u32 s53, s53, 0x8000", "s_and_b32 s53, s53, 0x1ffff"] + list(mid_ops):
            while S.first[g]: g += 1
            S.add_first(g, x); g += 1
        assert g <= D[-1].g, (name, g, D[-1].g)
    g = 0
    for x in salu:
        while g < n - 1 and S.first[g]: g += 1
        for y in (x if isinstance(x, list) else [x]): S.add_first(g, y)
        g = min(g + 1, n - 1)
    for x in end_ops: S.add_last(n - 1, x)
    print(S.report(f"{name}(k={k})"))
    pre = [Ins(f"ds_read_b128 {ar(Fbuf(f))}, v0", ("F", "n", f)) for f in range(NPRE)] + [Wait("lgkm", ("F", "n", 0))]
    if raw: pre = list(raw) + pre
    return [i.t for i in resolve(S.items(), pre)]

def allreduce4(p, op, src, t0, t1):
    p(f"v_mov_b32 v{t0}, v{src}")
    p(f"v_mov_b32 v{t1}, v{src}")
    p("s_nop 1")
    p(f"v_permlane32_swap_b32 v{t0}, v{t1}")
    p("s_nop 1")
    p(f"{op} v{t0}, v{t0}, v{t1}")
    p(f"v_mov_b32 v{t1}, v{t0}")
    p("s_nop 1")
    p(f"v_permlane16_swap_b32 v{t0}, v{t1}")
    p("s_nop 1")
    p(f"{op} v{t0}, v{t0}, v{t1}")

def rowmax(p, par, qb):
    b = Sreg(par, qb, 0)
    p(f"v_max3_f32 v{MX[1]}, v{b}, v{b + 1}, v{b + 2}")
    for k in range(3, 15, 2): p(f"v_max3_f32 v{MX[1]}, v{MX[1]}, v{b + k}, v{b + k + 1}")
    p(f"v_max_f32 v{MX[1]}, v{MX[1]}, v{b + 15}")
    allreduce4(p, "v_max_f32", MX[1], TMP[0], TMP[1])

def gen_rare(par, qbs):
    p = Prog()
    p("s_nop 15")
    for qb in qbs:
        rowmax(p, par, qb)
        p(f"v_max_f32 v{TMP[0]}, 0, v{TMP[0]}")
        p(f"v_sub_f32 v{TMP[1]}, 0, v{TMP[0]}")
        p(f"v_exp_f32 v{TMP[1]}, v{TMP[1]}")
        for r in range(4): p(f"v_sub_f32 v{NEGM(qb) + r}, v{NEGM(qb) + r}, v{TMP[0]}")
        for r in range(16): p(f"v_sub_f32 v{Sreg(par, qb, 0) + r}, v{Sreg(par, qb, 0) + r}, v{TMP[0]}")
        for r in range(4): p(f"v_mul_f32 v{LACC(qb) + r}, v{LACC(qb) + r}, v{TMP[1]}")
        for r in range(0, 32, 2):
            a = Oreg(qb, 0) + r
            p(f"v_accvgpr_read_b32 v{TMP[2]}, a{a}")
            p(f"v_accvgpr_read_b32 v{TMP[3]}, a{a + 1}")
            p(f"v_mul_f32 v{TMP[2]}, v{TMP[2]}, v{TMP[1]}")
            p(f"v_mul_f32 v{TMP[3]}, v{TMP[3]}, v{TMP[1]}")
            p(f"v_accvgpr_write_b32 a{a}, v{TMP[2]}")
            p(f"v_accvgpr_write_b32 a{a + 1}, v{TMP[3]}")
    p("s_nop 1")
    p("s_setpc_b64 s[62:63]")
    return [i.t for i in p.items]


GPUB = int(os.environ.get("GPUB", "16"))
OB = int(os.environ.get("OB", "2"))
GB2 = int(os.environ.get("GB2", "1"))
GPOLL = int(os.environ.get("GPOLL", "20"))
CPUB = int(os.environ.get("CPUB", "2"))
CTXPF = int(os.environ.get("CTXPF", "0"))
PUB0 = int(os.environ.get("PUB0", "8"))
PUBP = int(os.environ.get("PUBP", "12"))
TP = float(os.environ.get("TP", "4.25"))
TP0 = float(os.environ.get("TP0", "4"))
LST = int(os.environ.get("LST", "8"))
LSP = int(os.environ.get("LSP", "10"))
CPOLL = int(os.environ.get("CPOLL", "100"))
CCHK = int(os.environ.get("CCHK", "136"))
def spin(name, load, cmp):
    return [f"L_{name}wait:", "s_mov_b32 s44, 0x40000", f"L_{name}spin:", "s_sub_u32 s44, s44, 1", f"s_cbranch_scc1 L_{name}ok", "s_sleep 1",
            load, "s_waitcnt vmcnt(0)", cmp, f"s_cbranch_vccnz L_{name}spin", f"s_branch L_{name}ok"]

def o_epi(qb, scr, pk):
    out = []
    for t in range(4):
        R = scr(t); P = pk(t)
        a = Oreg(qb, 2 * t)
        L = LACC(qb)
        rd = [f"v_accvgpr_read_b32 v{R + k}, a{a + k}" for k in range(8)]
        if t: ops = rd
        elif LV and qb >= 2:
            ops = [f"v_mov_b32 v{L + 1}, v{L}"] + rd[:2] + [f"v_permlane32_swap_b32 v{L}, v{L + 1}"] + rd[2:3] + [f"v_add_f32 v{L}, v{L}, v{L + 1}", f"v_mov_b32 v{L + 1}, v{L}"] + \
                  rd[3:5] + [f"v_permlane16_swap_b32 v{L}, v{L + 1}"] + rd[5:6] + [f"v_add_f32 v{L}, v{L}, v{L + 1}", f"v_rcp_f32 v{TMP[qb]}, v{L}"] + rd[6:]
        elif not ONE1: ops = [f"v_rcp_f32 v{TMP[qb]}, v{L}"] + rd
        else:
            ops = [f"v_mov_b32 v{L + 1}, v{L}"] + rd[:2] + [f"v_permlane32_swap_b32 v{L}, v{L + 1}"] + rd[2:3] + [f"v_mov_b32 v{L + 1}, v{L}"] + rd[3:5] + \
                  [f"v_permlane16_swap_b32 v{L}, v{L + 1}"] + rd[5:7] + [f"v_rcp_f32 v{TMP[qb]}, v{L}"] + rd[7:]
        ops += [f"v_mul_f32 v{R + k}, v{R + k}, v{TMP[qb]}" for k in range(8)]
        ops += [f"v_cvt_pk_bf16_f32 v{P + k}, v{R + 2 * k}, v{R + 2 * k + 1}" for k in range(4)]
        out.append((ops, f"buffer_store_dwordx4 {vr(P)}, v{240 if qb % 2 == 0 else 246}, s[20:23], s{100 + qb // 2} offen offset:{t * 1024}{STF}"))
    return out

NK = 46; NC = 23
SL = [8, 9, 0, 1, 2, 3, 4, 5]
def wofs(n): return SL[(n // 2) % 8] * 16384 + (n % 2) * 8192
def areg(n): return 128 + (n % 16) * 8
def areg2(n, tb): return vr(96 + (n - 8) * 8 + 4 * tb) if 8 <= n < 12 else ar(areg(n) + 4 * tb)
def w_ops(n):
    gp = n < 14
    j = n if gp else n - 14
    pre = [f"s_add_u32 m0, s{[51, 56, 50][wofs(n) >> 16]}, {wofs(n) & 0xffff if wofs(n) < 0x20000 else wofs(n)}", f"s_add_u32 s58, s{48 if gp else 49}, {j * 32768}"]
    wsrd = "s[12:15]" if gp else "s[8:11]"
    return [(pre, f"buffer_load_dwordx4 v242, {wsrd}, s58 offen lds", ("cw", n // 2)),
            ([], f"buffer_load_dwordx4 v243, {wsrd}, s58 offen offset:1024 lds", ("cw", n // 2))]
def a_ops(n):
    gp = n < 14
    j = n if gp else n - 14
    pre = [f"s_add_u32 s59, s{64 if gp else 65}, {j * 1024}"] if j % 2 == 0 else []
    return [(pre, f"buffer_load_dwordx4 {areg2(n, 0)}, v240, s[20:23], s59 offen offset:{(j % 2) * 1024}{ASC}", ("ca", n // 2)),
            ([], f"buffer_load_dwordx4 {areg2(n, 1)}, v246, s[20:23], s59 offen offset:{(j % 2) * 1024}{ASC}", ("ca", n // 2))]
def chunk(ch, w=True, a=True):
    return (w_ops(2 * ch) + w_ops(2 * ch + 1) if w else []) + (a_ops(2 * ch) + a_ops(2 * ch + 1) if a else [])
KEEP = 6 * 16384
GB = [36, 37, 41]

def tail_setup():
    sa = ["s_lshr_b32 s35, s34, 1", "s_sub_u32 s31, 15, s30", ["s_bitcmp1_b32 s34, 0", "s_cselect_b32 s31, s31, s30"], "s_and_b32 s45, s29, 3",
          "s_lshl_b32 s46, s31, 3", "s_add_u32 s46, s46, s28", f"s_mul_i32 s46, s46, {ACT_ROW}",
          f"s_add_u32 s46, s46, {WS_ACT:#x}", f"s_mul_i32 s47, s35, {14 * 1024}", "s_add_u32 s64, s46, s47", f"s_add_u32 s64, s64, {128 * 1024}",
          "s_lshl_b32 s47, s35, 15", "s_add_u32 s65, s46, s47",
          "s_lshl_b32 s46, s45, 8", "s_lshl_b32 s47, s28, 13", "s_add_u32 s46, s46, s47", f"s_mul_i32 s47, s35, {14 * 32 * 1024}",
          "s_add_u32 s48, s46, s47", "s_lshl_b32 s47, s35, 20", "s_add_u32 s49, s46, s47", "s_lshl_b32 s50, s28, 11",
          "s_mov_b32 s8, s4", "s_mov_b32 s9, s5", "s_mov_b32 s38, 0", "s_mov_b32 s12, s96", "s_mov_b32 s13, s97", f"s_mov_b32 s14, {1792 * 1024}",
          "s_and_b32 s46, s34, 1", "s_lshl_b32 s46, s46, 2", "s_add_u32 s3, s99, s46", "s_lshl_b32 s46, s35, 13", "s_add_u32 s3, s3, s46",
          "s_lshl_b32 s51, s31, 2", "s_add_u32 s51, s51, s45", "s_lshl_b32 s56, s51, 18", f"s_add_u32 s56, s56, {WS_PART:#x}",
          "s_lshl_b32 s46, s28, 16", "s_lshl_b32 s47, s35, 13", "s_add_u32 s40, s56, s46", "s_add_u32 s40, s40, s47",
          "s_lshl_b32 s46, s35, 16", "s_add_u32 s56, s56, s46", "s_add_u32 s56, s56, s50", f"s_mov_b32 s58, {KEEP + 16384 - 0x10000}",
          ["s_cmp_eq_u32 s28, s35", "s_cselect_b32 s40, 0x7ff00000, s40", f"s_cselect_b32 s58, {KEEP - 0x10000}, s58"]]
    for k in range(3): sa += [f"s_add_u32 s46, s35, {k + 1}", "s_and_b32 s46, s46, 3", "s_lshl_b32 s46, s46, 13", f"s_add_u32 s{GB[k]}, s56, s46"]
    sa += ["s_lshl_b32 s94, s51, 9", f"s_add_u32 s94, s94, {WS_FLAG:#x}", "s_lshl_b32 s46, s35, 7", "s_add_u32 s95, s94, s46",
           "s_lshl_b32 s46, s31, 17", "s_lshl_b32 s47, s35, 14", "s_add_u32 s46, s46, s47", "s_lshl_b32 s47, s45, 8", "s_add_u32 s46, s46, s47",
           "s_lshl_b32 s47, s28, 6", "s_add_u32 s57, s46, s47", "s_lshl_b32 s46, s29, 12", "s_add_u32 s100, s46, s32", "s_add_u32 s101, s46, s33",
           "s_and_b32 s32, s30, 1", "s_lshl_b32 s32, s32, 16", "s_xor_b32 s33, s32, 0x10000", "s_add_u32 s51, s50, s32", "s_add_u32 s56, s50, s33",
           "s_add_u32 s58, s58, s33"]
    va = ["v_lshrrev_b32 v244, 4, v254", "v_and_b32 v245, 15, v254", "v_lshlrev_b32 v243, 1, v244", "v_xor_b32 v245, v245, v243",
          "v_lshlrev_b32 v244, 10, v244", "v_lshl_add_u32 v242, v245, 4, v244", "v_xor_b32 v243, 0x80, v242", f"v_add_u32 v243, {4096 - 1024}, v243",
          "v_lshrrev_b32 v244, 2, v254", "v_and_b32 v245, 7, v244", "v_lshlrev_b32 v244, 8, v244", "v_and_b32 v241, 3, v254", "v_lshl_add_u32 v244, v241, 3, v244",
          "v_add_u32 v244, s32, v244", "s_sub_u32 s46, 0x20000, s32"]
    for c in range(8):
        va += [f"v_xor_b32 v241, {c}, v245", f"v_lshl_add_u32 v{208 + c}, v241, 5, v244", f"v_xor_b32 v{216 + c}, 0x10000, v{208 + c}", f"v_add_u32 v{224 + c}, s46, v{208 + c}"]
    va += ["v_lshl_add_u32 v237, v255, 11, v240", f"v_add_u32 v237, {KEEP - 0x10000}, v237", "v_add_u32 v237, s33, v237",
           "v_and_b32 v247, 3, v254", "v_lshlrev_b32 v247, 7, v247", "v_and_b32 v244, 15, v254", "v_lshlrev_b32 v244, 10, v244",
           "v_lshrrev_b32 v245, 4, v254", "v_lshl_add_u32 v238, v245, 3, v244", "v_add_u32 v239, 0x10000, v238"]
    va += [f"v_mov_b32 v{232 + k}, -1" for k in range(4)]
    return sa, va
HPOLL = "buffer_load_dword v207, v206, s[20:23], s99 offen sc1"
def gp1(): return chunk(0) + chunk(1) + sum([chunk(c, w=False) for c in range(2, 6)], [])
def gp2(): return sum([chunk(c, a=False) for c in range(2, 7)], [])
PRE_SPLIT = (12, 24, 28)
def gpre(): return gp1()[:PRE_SPLIT[2]] + gp2()[:12] + gp1()[PRE_SPLIT[2]:] + gp2()[12:]

def opf():
    if not OPF: return []
    return ["s_lshr_b32 s46, s2, 3", "s_lshl_b32 s46, s46, 2", "s_add_u32 s46, s46, s28", "v_lshlrev_b32 v241, 7, v254",
            "s_lshl_b32 s59, s35, 20", "s_lshl_b32 s46, s46, 13", "s_add_u32 s59, s59, s46",
            "buffer_load_dword v251, v241, s[8:11], s59 offen"]

def lchk(qa, qb_, first):
    if not FAST: return []
    return [f"v_cmp_ngt_f32 vcc, s{S_THR}, v{LACC(qa)}", "v_nop", "s_mov_b64 s[62:63], vcc" if first else "s_or_b64 s[62:63], s[62:63], vcc",
            f"v_cmp_ngt_f32 vcc, s{S_THR}, v{LACC(qb_)}", "v_nop", "s_or_b64 s[62:63], s[62:63], vcc"]

def sentinels():
    return [([f"s_add_u32 s60, s40, {32768 + (k8 // 4) * 4096}"] if k8 % 4 == 0 else [],
             f"buffer_store_dwordx4 v[232:235], v240, s[20:23], s60 offen offset:{(k8 % 4) * 1024} sc1", "sen") for k8 in range(8)]

def ee_one(qb, base):
    out = lchk(qb, qb, qb == 2)[:3]
    for ops, st in o_epi(qb, lambda t: base + 8 * t, lambda t: base + 8 * t): out += ops + [st]
    return out

def gen_early_epi(safe=False):
    out = lchk(2, 3, True)
    sn = sentinels()
    for qb in (2, 3):
        base = 32 if qb == 2 else 96
        for ops, st in o_epi(qb, lambda t: base + 8 * t, lambda t: base + 8 * t):
            pre, ins, tag = sn.pop(0)
            out += ops[:10] + list(pre) + [ins] + ops[10:] + [st]
    return [HPOLL] + out

def gen_safe():
    p = Prog()
    M_ = [NEGM(q) for q in range(4)]; TQ = [NEGM(q) + 1 for q in range(4)]
    p("s_waitcnt vmcnt(0) lgkmcnt(0)")
    p("s_nop 15")
    p("s_barrier")
    for q in range(4):
        for r in range(32): p(f"v_accvgpr_write_b32 a{Oreg(q, 0) + r}, 0")
        for r in range(4): p(f"v_mov_b32 v{LACC(q) + r}, 0")
        p(f"v_mov_b32 v{M_[q]}, {f2u(-2.0 ** 120):#x}")
    p("s_sub_u32 s46, 15, s30")
    p("s_lshl_b32 s47, s46, 7")
    p("s_lshl_b32 s52, s30, 7")
    for q in range(4):
        p(f"v_cvt_f32_u32 v{TMP[0]}, s{47 if q < 2 else 52}")
        if q & 1: p(f"v_add_f32 v{TMP[0]}, {f2u(64.0):#x}, v{TMP[0]}")
        p(f"v_mul_f32 v{TMP[0]}, {f2u(BIG):#x}, v{TMP[0]}")
        p(f"v_add_f32 v{TQ[q]}, v{VTMASK}, v{TMP[0]}")
    p(f"v_add_u32 v{VCUR}, s33, v240")
    p("s_lshl_b32 s47, s46, 1")
    p("s_add_u32 s47, s47, 2")
    p("s_lshl_b32 s54, s28, 12")
    p("s_add_u32 s52, s54, s33")
    p("s_add_u32 s53, s52, 49152")
    p("s_add_u32 s52, s52, 32768")
    p.label("L_safe_loop")
    p("s_mov_b32 m0, s52")
    p("s_add_u32 s55, s54, 16384")
    for k in range(4): p(f"buffer_load_dwordx4 v240, s[16:19], s54 offen offset:{k * 1024} sc1 lds")
    p("s_mov_b32 m0, s53")
    p("s_nop 0")
    for k in range(4): p(f"buffer_load_dwordx4 v240, s[16:19], s55 offen offset:{k * 1024} sc1 lds")
    p("s_waitcnt vmcnt(0)")
    p("s_barrier")
    for f in range(16): p(f"ds_read_b128 {ar(Fbuf(f))}, v{VCUR} offset:{32768 + f * 1024}")
    p("s_waitcnt lgkmcnt(0)")
    for kb in range(4):
        for t in range(4):
            for q in range(4):
                d = Sreg(0, q, kb)
                p(f"{MF} {vr(d)}, {ar(Fbuf(kb * 4 + t))}, {ar(Qreg(q, t))}, {vr(d) if t else 0}")
    for f in range(16): p(f"ds_read_b128 {ar(Fbuf(f))}, v{VCUR} offset:{49152 + f * 1024}")
    for q in range(4):
        b = Sreg(0, q, 0)
        for r in range(16):
            p(f"v_subrev_f32 v{TMP[r % 2]}, {f2u((16 * (r // 4) + r % 4) * BIG):#x}, v{TQ[q]}")
            p(f"v_min_f32 v{b + r}, v{b + r}, v{TMP[r % 2]}")
        p(f"v_subrev_f32 v{TQ[q]}, {f2u(64 * BIG):#x}, v{TQ[q]}")
        rowmax(p, 0, q)
        p(f"v_max_f32 v{TMP[0]}, v{TMP[0]}, v{M_[q]}")
        p(f"v_sub_f32 v{TMP[1]}, v{M_[q]}, v{TMP[0]}")
        p(f"v_exp_f32 v{TMP[1]}, v{TMP[1]}")
        p(f"v_mov_b32 v{M_[q]}, v{TMP[0]}")
        for r in range(16): p(f"v_sub_f32 v{b + r}, v{b + r}, v{TMP[0]}")
        for r in range(16): p(f"v_exp_f32 v{b + r}, v{b + r}")
        for r in range(4): p(f"v_mul_f32 v{LACC(q) + r}, v{LACC(q) + r}, v{TMP[1]}")
        for k in range(8): p(f"v_cvt_pk_bf16_f32 v{Preg(q, 0) + k}, v{b + 2 * k}, v{b + 2 * k + 1}")
        for r in range(0, 32, 2):
            a = Oreg(q, 0) + r
            p(f"v_accvgpr_read_b32 v{TMP[2]}, a{a}")
            p(f"v_accvgpr_read_b32 v{TMP[3]}, a{a + 1}")
            p(f"v_mul_f32 v{TMP[2]}, v{TMP[2]}, v{TMP[1]}")
            p(f"v_mul_f32 v{TMP[3]}, v{TMP[3]}, v{TMP[1]}")
            p(f"v_accvgpr_write_b32 a{a}, v{TMP[2]}")
            p(f"v_accvgpr_write_b32 a{a + 1}, v{TMP[3]}")
    p("s_waitcnt lgkmcnt(0)")
    p("s_barrier")
    for s in range(2):
        for db in range(8):
            for q in range(4): p(f"{MF} {ar(Oreg(q, db))}, {ar(Fbuf(s * 8 + db))}, {vr(Preg(q, s))}, {ar(Oreg(q, db))}")
        for q in range(4): p(f"{MF} {vr(LACC(q))}, {vr(ONES)}, {vr(Preg(q, s))}, {vr(LACC(q))}")
    p("s_add_u32 s54, s54, 32768")
    p("s_sub_u32 s47, s47, 1")
    p("s_cmp_lg_u32 s47, 0")
    p("s_cbranch_scc1 L_safe_loop")
    p("s_nop 15")
    p(f"s_mov_b32 s{S_THR}, 0x7f800000")
    for x in gen_early_epi(True)[1:]: p(x)
    for r in range(16): p(f"v_mov_b32 v{Sreg(1, 1, 0) + r}, {f2u(-2.0 ** 100) if r >= len(predone([1])) else 0:#x}")
    for pre, ins, tag in gpre():
        for x in pre: p(x)
        p(ins)
    p("s_mov_b32 s38, 1")
    p("s_branch L_fin")
    tx = [i.t for i in p.items]
    a = tx.index("L_safe_loop:"); b = tx.index("s_cbranch_scc1 L_safe_loop")
    for e in lint(tx[:b] + tx[a + 1:], "safe")[:20]: print(e)
    return ["L_safe:", "s_cmp_eq_u32 s38, 1", "s_cbranch_scc1 L_safe_ret"] + tx

def tail_pre():
    pa = [tag for pre, ins, tag in gpre()]
    pb = [tag for c in range(5) for pre, ins, tag in chunk(c, a=False)]
    d7 = {("cw", 0): 40, ("cw", 1): 40, ("cw", 2): 28, ("cw", 3): 28, ("cw", 4): 28, ("ca", 0): 28, ("ca", 1): 28,
          ("ca", 4): 12, ("ca", 5): 12, ("ca", 2): 4, ("ca", 3): 0, ("cw", 5): 4, ("cw", 6): 0}
    n = len(pa); slots = [set() for _ in range(n)]
    for tg in set(pa):
        d = min(n - 1 - max(i for i, x in enumerate(pa) if x == tg), d7[tg])
        slots[n - 1 - d].add(tg)
    return [Ins("buffer_load_dwordx4 v240, s[16:19], s55 offen lds", frozenset(x)) for x in slots]

def gen_tail():
    p = Prog()
    slow = []
    for f in range(NPRE, 16): p(f"ds_read_b128 {ar(Fbuf(16 + f))}, v{VCUR} offset:{49152 + vlds(f) * 1024}", ("VE", f))
    b = Sreg(1, 1, 0)
    for r in range(len(predone([1])), 16): p(f"v_exp_f32 v{b + r}, v{b + r}")
    for k in range(8): p(f"v_cvt_pk_bf16_f32 v{Preg(1, 0) + k}, v{b + 2 * k}, v{b + 2 * k + 1}")
    p("v_and_b32 v206, 0x1c00, v206")
    p.wait_vm(("cw", 0))
    p("s_waitcnt lgkmcnt(0)")
    p("s_barrier")
    for x in ["s_mov_b32 s4, s42", "s_mov_b32 s5, s43", "s_mov_b32 s6, 0x200000", "s_mov_b32 s7, 0x20000"]: p(x)
    mf = []
    for s in range(2): mf.append(f"{MF} {vr(LACC(1))}, {vr(ONES)}, {vr(Preg(1, s))}, {vr(LACC(1))}")
    for k in range(16):
        s, db = vlds(k) // 8, vlds(k) % 8
        mf.append(f"{MF} {ar(Oreg(1, db))}, {ar(Fbuf(16 + k))}, {vr(Preg(1, s))}, {ar(Oreg(1, db))}")
    if not FAST: p(f"buffer_store_dword v249, v248, s[20:23], s98 offen offset:4{STF}", "flag")
    S = Sched16(mf)
    late = o_epi(0, lambda t: 8 * t, lambda t: 64 + 4 * t) + o_epi(1, lambda t: 32 + 8 * t, lambda t: 80 + 4 * t)
    seq = []
    rest = chunk(7, a=False) + chunk(6, w=False)
    for i, (ops, st) in enumerate(late):
        seq += [(x, None) for x in ops[:10]]
        if i < 4:
            for pre, ins, tag in rest[i:i + 1]: seq += [(y, None) for y in pre] + [(ins, tag)]
        seq += [(x, None) for x in ops[10:]]
        if i < LST: seq.append((st, "ctxst"))
    vs = tail_setup()[1][8:-4]
    for i, (pre, ins, tag) in enumerate(rest[4:]):
        seq += [(x, None) for x in vs[4 * i:4 * i + 4]] + [(y, None) for y in pre] + [(ins, tag)]
    seq += [(x, None) for x in vs[4 * len(rest[4:]):]]
    if FAST:
        seq += [(x, None) for x in lchk(0, 1, False) + ["s_or_b32 s62, s62, s63", "v_mov_b32 v244, s62", "v_lshlrev_b32 v245, 2, v255", f"s_add_u32 s46, s33, {KEEP + 16384 - 0x10000}", "v_add_u32 v245, s46, v245",
                                                         "ds_write_b32 v245, v244", "v_mov_b32 v245, s46"]]
    ne = 0
    for g in range(len(mf)):
        while S.load(g) + cost(seq[ne][0]) <= 2:
            S.add_last(g, Ins(*seq[ne])); ne += 1
    p.extend(S.items())
    if DIAG and not DIAG2: p.items.append(stamp(10))
    for x, tag in seq[ne:]: p(x, tag)
    if DIAG and not DIAG2: p.items.append(stamp(11))
    GO = [(n, c) for n in range(NK - 2) for c in range(8)] + [(n, 2 * cp + cf) for cp in range(4) for n in (NK - 2, NK - 1) for cf in range(2)]
    if "t" in CH: GO = [(2 * ch + e, c) for ch in range(NC) for c in range(8) for e in range(2)]
    def w_reads(gi):
        n, c = GO[gi]
        off = wofs(n)
        d = 128 + 4 * (gi % 16)
        return [f"ds_read_b64_tr_b16 v[{d + 2 * hf}:{d + 2 * hf + 1}], v{208 + 8 * (off >> 16) + c} offset:{(off & 0xffff) + hf * 4096}" for hf in range(2)]
    RA = 8
    for gi in range(RA):
        for x in w_reads(gi): p(x, ("W", gi))
    p.wait_vm(("ca", 0))
    p.wait_lgkm(("W", 1))
    mf = []
    sq = [(gi, tb) for gi in range(len(GO)) for tb in range(2)]
    if "t" in CH: sq = [(gi + e, tb) for gi in range(0, len(GO), 2) for tb in range(2) for e in range(2)]
    for gi, tb in sq:
        n, c = GO[gi]
        base = 0 if n < 14 else 64
        first = n in (0, 14)
        acc = base + ((c >> 1) * 2 + tb) * 8 + (c & 1) * 4
        mf.append(f"{MF} {vr(acc)}, {vr(128 + 4 * (gi % 16))}, {areg2(n, tb)}, {0 if first else vr(acc)}")
    S = Sched16(mf)
    NG = NK * 8; NM = len(mf)
    BS = [ch for ch in range(NC - 1) if ch % OB == 0]
    def gB(ch): return 32 * ch + 16
    for gi in range(RA, NG):
        ch, k = gi // 16, gi % 16
        g = 2 * (gi - RA)
        if ch in BS and k >= 12: g -= [1, 2, 3, 4][k - 12]
        for x in w_reads(gi): S.add_mem(g, x, ("W", gi))
    if "t" in CH:
        for gi in range(2, NG, 2): S.add_first(2 * gi - 1, Wait("lgkm", ("W", gi + 1)))
    else:
        for gi in range(1, NG): S.add_first(2 * gi - 1, Wait("lgkm", ("W", gi)))
    assert GPUB in BS and CPUB in BS
    for ch in range(NC - 1):
        if ch in BS:
            S.add_first(gB(ch) - 2, Ins("s_waitcnt lgkmcnt(0)"))
            S.add_first(gB(ch), Wait("vm", [("cw", min(ch + OB, NC - 1))] + (["pub"] if ch == GPUB else []) + (["ctxst"] if ch == CPUB else [])))
            S.add_first(gB(ch), "s_barrier")
        S.add_first(32 * (ch + 1) - 2, Wait("vm", ("ca", ch + 1)))
    def wfree(ch):
        return 0 if ch < 8 else gB(min(x for x in BS if x >= ch - 8)) + 1
    S.add_mem(gB(CPUB) + 1, f"buffer_store_dword v249, v248, s[20:23], s98 offen offset:8{STF}", "flag")
    if FAST:
        S.add_mem(gB(CPUB) + 3, f"buffer_store_dword v249, v248, s[20:23], s98 offen offset:4{STF}", "flag")
        S.add_mem(gB(0) + 1, "ds_read_b128 v[200:203], v245", "bad")
        S.add_first(gB(0) + 10, Wait("lgkm", "bad"))
        S.add_valu(gB(0) + 11, "v_or3_b32 v200, v200, v201, v202")
        S.add_valu(gB(0) + 11, "v_or_b32 v200, v200, v203")
        S.add_valu(gB(0) + 13, "v_cmp_ne_u32 vcc, 0, v200")
        S.add_last(gB(0) + 15, "s_cbranch_vccnz L_safe")
        S.add_last(gB(0) + 15, "L_safe_ret:")
    for i, (ops, st) in enumerate(late[LST:]): S.add_mem(2 + LSP * i, st, "ctxst")
    assert 2 + LSP * (8 - LST) < gB(CPUB)
    LD = []
    def ld(ops, e, pace):
        for i, (pre, ins, tag) in enumerate(ops):
            for x in pre: LD.append(Op(x, e + i * pace - 2, NM - 1))
            LD.append(Op(ins, e + i * pace, NM - 1, tag=tag, deps=[LD[-1]] if pre else []))
    nw = 8
    while wfree(nw) + 16 <= CCHK:
        ld(chunk(nw, a=False), wfree(nw), 4); nw += 1
    S.add_mem(CPOLL, "buffer_load_dword v207, v206, s[20:23], s3 offen offset:4 sc1", "cpoll")
    S.add_first(CCHK, Wait("vm", "cpoll"))
    S.add_valu(CCHK, "v_cmp_ne_u32 vcc, 1, v207")
    S.add_last(CCHK + 1, "s_cbranch_vccnz L_cwait")
    S.add_last(CCHK + 1, "L_cok:")
    slow += spin("c", "buffer_load_dword v207, v206, s[20:23], s3 offen offset:4 sc1", "v_cmp_ne_u32 vcc, 1, v207")
    if CTXPF:
        S.add_valu(40, "v_lshlrev_b32 v252, 7, v254")
        S.add_valu(41, f"v_add_u32 v253, {4 * ACT_ROW}, v252")
        ld(chunk(7, w=False), CCHK + 2, 1)
        ld([(["s_lshl_b32 s60, s45, 13"], "s_add_u32 s60, s60, s65", None), ([], "buffer_load_dword v250, v252, s[20:23], s60 offen sc1", "pf"),
            ([], "buffer_load_dword v251, v253, s[20:23], s60 offen sc1", "pf")], CCHK + 2, 1)
    seqo = [("a", ch) for ch in range(7, nw)]
    for ch in range(nw, NC): seqo += [("w", ch), ("a", ch)]
    t = float(CCHK + 2)
    for k, (kind, ch) in enumerate(seqo):
        t = max(t, 32 * (ch - 7) if kind == "a" else wfree(ch))
        pace = TP0 if k < 2 else TP
        for op in chunk(ch, w=(kind == "w"), a=(kind == "a")):
            ld([op], int(t), 0); t += pace
    print("tail ld", schedule(S, [LD], 0, NM - 1, base_cap=2), [o.g for o in LD if o.mem][::8])
    def pub(base, kind, g0, g1, pace=0):
        ops = []
        for k8 in range(8):
            R = base + 8 * k8
            if k8 % 4 == 0: ops.append(Op(f"s_add_u32 s60, s40, {kind * 32768 + (k8 // 4) * 4096}", g0, g1))
            cv = [Op(f"v_cvt_pk_bf16_f32 v{R + k}, v{R + 2 * k}, v{R + 2 * k + 1}", g0, g1) for k in range(4)]
            ops += cv
            ops.append(Op(f"buffer_store_dwordx4 {vr(R)}, v240, s[20:23], s60 offen offset:{(k8 % 4) * 1024} sc1", g0 + k8 * pace, g1, [cv[-1]], tag="pub"))
            ops.append(Op(f"ds_write_b128 v236, {vr(R)} offset:{kind * 8192 + k8 * 1024}", g0, g1, tag="own"))
        return ops
    pb = pub(0, 0, 14 * 16 + PUB0, gB(GPUB) - 20, PUBP)
    print('pub', schedule(S, [pb], 14 * 16, NM - 1, base_cap=2), [o.g for o in pb if o.tag == 'pub'])
    S.add_mem(gB(GPUB) + 1, "buffer_store_dword v249, v248, s[20:23], s95 offen offset:4 sc1", "flag")
    gx = 32 * 17 + 21
    for k in range(4):
        S.add_mem(gx + 4 * k, f"buffer_load_dwordx2 v[{192 + 2 * k}:{193 + 2 * k}], v{238 + k // 2}, s[24:27], s57 offen offset:{32 * (k % 2)}", "x")
    gp = 32 * GPOLL
    S.add_mem(gp + 1, "buffer_load_dword v250, v247, s[20:23], s94 offen offset:4 sc1", "gpoll")
    gc = gp + 33
    S.add_first(gc + 1, Wait("vm", "gpoll"))
    S.add_valu(gc + 1, "v_cmp_ne_u32 vcc, 1, v250")
    S.add_last(gc + 2, "s_cbranch_vccnz L_gwait")
    S.add_last(gc + 2, "L_gok:")
    slow += spin("g", "buffer_load_dword v250, v247, s[20:23], s94 offen offset:4 sc1", "v_cmp_ne_u32 vcc, 1, v250")
    for k in range(3):
        for tb in range(2):
            S.add_mem(gc + 4 + 2 * (2 * k + tb), f"buffer_load_dwordx4 {vr(8 * k + 4 * tb)}, v240, s[20:23], s{GB[k]} offen offset:{tb * 1024} sc1", "gg")
    for tb in range(2): S.add_mem(gc + 18, f"ds_read_b128 {vr(24 + 4 * tb)}, v237 offset:{tb * 1024}", "gown")
    ps = pub(64, 1, 0, NM - 1)
    k8 = -1; inside = []
    for o in ps:
        if o.t.startswith("v_cvt") and (int(re.findall(r"v(\d+)", o.t)[0]) - 64) % 8 == 0: k8 += 1
        o.e = NM - 32 + 8 * (max(k8, 0) // 2) + 8 + 5
    inside = [o for o in ps if o.e < NM - 4]
    print("pub s inside", schedule(S, [inside], NM - 32, NM - 1, base_cap=3), len(inside), len(ps))
    for k in range(3): S.add_first(gc + 20 + 2 * k, f"s_add_u32 s{GB[k]}, s{GB[k]}, 32768")
    if DIAG3:
        for k, g in enumerate([int(x) for x in os.environ.get('D3', '').split(',') if x] or [0, CCHK, CCHK + 4, 14 * 16, 30 * 16, NM - 1]): S.add_first(g, stamp(2 + k))
    print(S.report("tail")[:400])
    OD = os.environ.get("ODROP", "").split(",")
    def keep(i):
        tg = i.tag if isinstance(i, (Ins, Wait)) else None
        if isinstance(i, Ins):
            if isinstance(tg, tuple) and tg[0] in OD: return False
            if tg in OD and tg: return False
        if isinstance(i, Wait):
            tags = tg if isinstance(tg, list) else [tg]
            tags = [t for t in tags if (t[0] if isinstance(t, tuple) else t) not in OD]
            if not tags: return False
            i.tag = tags
        return True
    p.extend([i for i in S.items() if keep(i)])
    GS = 144
    def gather():
        for k in range(3):
            for tb in range(2):
                p(f"buffer_load_dwordx4 {vr(GS + 8 * k + 4 * tb)}, v240, s[20:23], s{GB[k]} offen offset:{tb * 1024} sc1", "gs")
    p("s_nop 3")
    for o in ps[len(inside):]: p(o.t, o.tag)
    gather()
    def unpack(dst, src, n=8):
        for k in range(n):
            p(f"v_lshlrev_b32 v{dst + 2 * k}, 16, v{src + k}")
            p(f"v_and_b32 v{dst + 2 * k + 1}, 0xffff0000, v{src + k}")
    def rnd(b, T):
        for k in range(0, 16, 2): p(f"v_cvt_pk_bf16_f32 v{T + k // 2}, v{b + k}, v{b + k + 1}")
        unpack(b, T)
    def accum(D, src):
        for k in range(8):
            p(f"v_dot2c_f32_bf16 v{D + 2 * k}, s46, v{src + k}")
            p(f"v_dot2c_f32_bf16 v{D + 2 * k + 1}, s47, v{src + k}")
    p("s_mov_b32 s46, 0x00003f80")
    p("s_mov_b32 s47, 0x3f800000")
    p("s_mov_b32 s44, 0x40000")
    if DIAG3: p.items.append(stamp(8))
    p("s_waitcnt lgkmcnt(0)")
    p("s_barrier")
    for tb in range(2): p(f"ds_read_b128 {vr(168 + 4 * tb)}, v237 offset:{8192 + tb * 1024}", "sown")
    p.wait_vm("gg")
    unpack(32, 24)
    for k in range(3): accum(32, 8 * k)
    p("s_nop 2")
    rnd(32, 48)
    for k in range(16): p(f"v_mul_f32 v{48 + k}, {f2u(-LOG2E):#x}, v{32 + k}")
    for k in range(16): p(f"v_exp_f32 v{48 + k}, v{48 + k}")
    for k in range(16): p(f"v_add_f32 v{48 + k}, 1.0, v{48 + k}")
    for k in range(16): p(f"v_rcp_f32 v{48 + k}, v{48 + k}")
    for k in range(16): p(f"v_mul_f32 v{32 + k}, v{32 + k}, v{48 + k}")
    rnd(32, 48)
    unpack(128, 192)
    p.wait_lgkm("sown")
    unpack(0, 168)
    p("s_branch L_o_chk")
    p.label("L_o_poll")
    gather()
    p.label("L_o_chk")
    p("s_waitcnt vmcnt(0)")
    p(f"v_max3_u32 v48, v{GS}, v{GS + 1}, v{GS + 2}")
    p(f"v_max3_u32 v49, v{GS + 3}, v{GS + 4}, v{GS + 5}")
    for k in range(6, 22, 4):
        p(f"v_max3_u32 v48, v48, v{GS + k}, v{GS + k + 1}")
        p(f"v_max3_u32 v49, v49, v{GS + k + 2}, v{GS + k + 3}")
    p(f"v_max3_u32 v48, v48, v{GS + 22}, v{GS + 23}")
    p("v_max_u32 v48, v48, v49")
    p("v_cmp_eq_u32 vcc, -1, v48")
    p("s_cbranch_vccz L_o_go")
    p("s_sub_u32 s44, s44, 1")
    p("s_cbranch_scc0 L_o_poll")
    p.label("L_o_go")
    if DIAG3: p.items.append(stamp(9))
    for k in range(3): accum(0, GS + 8 * k)
    p("s_nop 2")
    for k in range(16): p(f"v_fmac_f32 v{128 + k}, v{k}, v{32 + k}")
    for k in range(0, 16, 2): p(f"v_cvt_pk_bf16_f32 v{96 + k // 2}, v{128 + k}, v{129 + k}")
    for k in range(4):
        p(f"buffer_store_dwordx2 v[{96 + 2 * k}:{97 + 2 * k}], v{238 + k // 2}, s[4:7], s57 offen offset:{32 * (k % 2)}")
    PAD = os.environ.get("PAD", "")
    if PAD:
        p("s_mov_b32 s46, 20")
        p.label("L_pad")
        for k in range(64):
            if PAD == "nop": p("s_nop 3")
            else: p(f"{MF} {vr(4 * (k % 16))}, {ar(4 * ((k // 4) % 8))}, {ar(128 + 4 * (k % 32))}, {vr(4 * (k % 16))}")
        p("s_sub_u32 s46, s46, 1")
        p("s_cmp_lg_u32 s46, 0")
        p("s_cbranch_scc1 L_pad")
    if DIAG:
        p("s_waitcnt vmcnt(0)")
        p.items.append(stamp(12)); p.items.append(stamp(13, True))
        dump_stamps(p, 0, 28, 20)
    return [i.t for i in resolve(p.items, tail_pre())], slow

def gen_f_kernel():
    p = Prog()
    p("s_cmp_ge_u32 s2, 256")
    p("s_cbranch_scc1 L_f_end")
    if DIAG:
        for k in range(14): p(f"s_mov_b32 s{66 + 2 * k}, 0")
        p.items.append(stamp(0, True)); p.items.append(stamp(1))
    p("s_load_dwordx4 s[36:39], s[0:1], 0")
    p("s_load_dwordx4 s[40:43], s[0:1], 24")
    p("s_load_dwordx2 s[44:45], s[0:1], 96")
    p("v_and_b32 v254, 63, v0")
    p("v_lshrrev_b32 v255, 6, v0")
    p("s_and_b32 s34, s2, 7")
    p("v_readfirstlane_b32 s28, v255")
    p("s_lshr_b32 s35, s2, 3")
    p("v_lshlrev_b32 v252, 7, v254")
    if CPF:
        p("s_getpc_b64 s[4:5]")
        p("L_pc0:")
        p(f"s_sub_u32 s4, s4, L_pc0-{KNAME}")
        p("s_subb_u32 s5, s5, 0")
        p(f"s_mov_b32 s6, L_code_end-{KNAME}")
        p("s_mov_b32 s7, 0x20000")
        p("v_lshrrev_b32 v244, 3, v254")
        p("v_lshl_or_b32 v244, v244, 27, v252")
        p("v_lshl_add_u32 v244, v255, 15, v244")
        p("s_lshl_b32 s63, s35, 10")
        p("buffer_load_dword v52, v244, s[4:7], s63 offen", "pf")
    p("v_lshlrev_b32 v240, 4, v254")
    p("v_lshrrev_b32 v244, 4, v254")
    p("v_and_b32 v245, 15, v254")
    p("v_lshlrev_b32 v245, 7, v245")
    p("v_lshl_add_u32 v253, v244, 13, v245")
    p("s_lshl_b32 s60, s35, 2")
    p("s_add_u32 s60, s60, s28")
    p("s_and_b32 s61, s34, 1")
    p("s_lshl_b32 s61, s61, 20")
    p("s_lshl_b32 s63, s60, 13")
    p("s_add_u32 s61, s61, s63")
    p("s_lshr_b32 s62, s34, 1")
    p("s_lshl_b32 s62, s62, 11")
    p("s_lshl_b32 s63, s60, 15")
    p("s_add_u32 s62, s62, s63")
    p("s_lshl_b32 s47, s2, 13")
    p("s_lshl_b32 s46, s28, 11")
    p("s_add_u32 s47, s47, s46")
    if HYB:
        for x in ["s_and_b32 s57, s34, 1", "s_lshl_b32 s57, s57, 2", "s_and_b32 s56, s35, 3", "s_add_u32 s57, s57, s56", "s_lshl_b32 s57, s57, 2",
                  "s_add_u32 s57, s57, s28", "s_lshl_b32 s31, s57, 16",
                  "s_lshr_b32 s57, s34, 1", "s_lshl_b32 s57, s57, 3", "s_lshr_b32 s56, s35, 2", "s_add_u32 s57, s57, s56", "s_lshl_b32 s57, s57, 8",
                  "s_mul_i32 s48, s28, 24576", "s_and_b32 s56, s28, 1", "s_lshr_b32 s52, s28, 1", "s_lshl_b32 s53, s56, 13", "s_lshl_b32 s54, s52, 12",
                  "s_add_u32 s53, s53, s54", "s_lshl_b32 s54, s56, 6", "s_lshl_b32 s55, s52, 19", "s_add_u32 s54, s54, s55", "s_add_u32 s54, s54, s57",
                  "v_lshrrev_b32 v241, 3, v254", "v_lshlrev_b32 v241, 13, v241", "v_and_b32 v242, 7, v254"]: p(x)
        for n in range(8):
            p(f"v_xor_b32 v243, {n}, v242")
            p(f"v_lshl_add_u32 v{224 + n}, v243, 4, v241")
        for x in ["v_lshrrev_b32 v244, 5, v254", "v_lshlrev_b32 v244, 1, v244", "v_and_b32 v245, 3, v254", "v_xor_b32 v245, v245, v244",
                  "v_lshlrev_b32 v245, 4, v245", "v_lshrrev_b32 v244, 2, v254", "v_lshl_add_u32 v241, v244, 13, v245",
                  f"v_mov_b32 v66, {~HA & 0xff}", "v_lshrrev_b32 v66, v242, v66", "v_and_b32 v66, 1, v66", "v_lshl_or_b32 v64, v66, 30, v252",
                  "v_lshrrev_b32 v66, 4, v254", "v_and_b32 v67, 15, v254", "v_lshlrev_b32 v65, 7, v67", "v_lshl_add_u32 v65, v66, 20, v65",
                  "v_and_b32 v67, 1, v254", "v_lshl_add_u32 v66, v66, 1, v67", f"v_mov_b32 v67, {~HW & 0xff}", "v_lshrrev_b32 v67, v66, v67",
                  "v_and_b32 v67, 1, v67", "v_lshl_or_b32 v65, v67, 30, v65",
                  "s_lshr_b32 s58, s34, 1", "s_lshl_b32 s58, s58, 11", "s_lshl_b32 s59, s60, 13"]: p(x)
    for r, v in ((10, 0x200000), (11, 0x20000), (14, 0x400000), (15, 0x20000), (26, 0x200000), (27, 0x20000)): p(f"s_mov_b32 s{r}, {v:#x}")
    p("s_waitcnt lgkmcnt(0)")
    if DIAG and not DIAG2: p.items.append(stamp(2))
    for d, sr in ((24, 36), (25, 37), (8, 38), (9, 39), (12, 40), (13, 41)): p(f"s_mov_b32 s{d}, s{sr}")
    p("buffer_load_dwordx4 v[0:3], v240, s[24:27], s47 offen" + NTX, "ln")
    p("buffer_load_dwordx4 v[4:7], v240, s[24:27], s47 offen offset:1024" + NTX, "ln")
    if XBAR: p("s_barrier")
    BLK = [6, 7, 8, 9, 6, 7, 8, 9, 0, 1, 2, 3, 4, 5, 6, 7, 8, 9, 0, 1, 2, 3, 6, 7, 8, 9, 4, 5, 6, 7, 8, 9]
    if KD: BLK = [6, 7, 8, 9, 6, 7, 8, 9, 6, 7, 0, 1, 2, 3, 4, 5, 8, 9, 0, 1, 2, 3, 6, 7, 8, 9, 4, 5, 6, 7, 8, 9]
    def dma_A(s):
        ops = []
        for n in range(8):
            pre = []
            if n % 4 == 0:
                pre = [f"s_add_u32 m0, s48, {(s % 3) * 8192 + (n // 4) * 4096}", f"s_add_u32 s56, s31, {s * 128 + (n // 4) * 4096}"]
            ops.append((pre, f"buffer_load_dwordx4 v{224 + n}, s[8:11], s56 offen offset:{(n % 4) * 1024}{NTA} lds", ("A", s)))
        return ops
    def dma_W(n):
        ops = []
        kq = n % 4
        for q in range(4):
            m0 = "s53"
            if n < 8 and KD:
                pre = [f"s_add_u32 s57, s50, {(n * 64 + q * 16) * 8192 - q * 1024}"]; m0 = "s49"
                ins = f"buffer_load_dwordx4 v241, s[12:15], s57 offen offset:{q * 1024} lds"
            elif n < 8:
                pre = [f"s_add_u32 s57, s54, {(kq * 128 + q * 16) * 8192 + (n // 4) * 128 - q * 1024}"]
                ins = f"buffer_load_dwordx4 v241, s[12:15], s57 offen offset:{q * 1024} lds"
            elif n < 16:
                pre = [f"s_add_u32 s57, s50, {((n - 8) * 64 + q * 16) * 8192 - q * 1024}"]; m0 = "s49"
                ins = f"buffer_load_dwordx4 v241, s[16:19], s57 offen offset:{q * 1024} lds"
            elif n < 24:
                pre = [f"s_add_u32 s57, s{35 if n < 20 else 64}, {(kq * 128 + q * 16) * 3584 - q * 1024}"]
                ins = f"buffer_load_dwordx4 v242, s[12:15], s57 offen offset:{q * 1024} lds"
            else:
                pre = [f"s_add_u32 s57, s65, {(kq * 128 + q * 16) * 8192 - q * 1024 + (128 if n >= 28 else 0)}"]
                ins = f"buffer_load_dwordx4 v241, s[8:11], s57 offen offset:{q * 1024} lds"
            if "kkvvggqq"[n // 4] in NTD: ins = ins.replace(" lds", " nt lds")
            if q == 0: pre = [f"s_add_u32 m0, {m0}, {BLK[n] * 16384}"] + pre
            ops.append((pre, ins, ("L", n)))
        return ops
    def kv_half(tile, part):
        ops = []
        for q in range(4):
            pre = []
            if q == 0: pre = [f"s_add_u32 m0, s49, {tile * 32768 + part * 16384}", f"s_add_u32 s57, s49, {tile * 32768 + part * 16384}"]
            ops.append((pre, f"buffer_load_dwordx4 v240, s[16:19], s57 offen offset:{q * 1024}{KSC} lds", ("kv", tile, part)))
        return ops
    def now(ops):
        for pre, ins, tag in ops:
            for x in pre: p(x)
            p(ins, tag)
    first = dma_W(0) + dma_A(0) + dma_A(1) + (dma_W(1) + dma_A(2) if ALEAD == 3 else [])
    if KD: first = dma_W(0) + dma_A(0) + dma_W(1) + dma_A(1)
    HPA = "buffer_load_dword v246, v64, s[8:11], s44 offen"
    HPW = "buffer_load_dword v247, v65, s[12:15], s60 offen"
    if HYB:
        now(first[:HE]); first = first[HE:]
        if HP1 == 0: p(HPA.replace("s44", "s61"), "pf")
    if PFA and not HYB:
        p("buffer_load_dword v246, v252, s[8:11], s61 offen" + os.environ.get("NTPA", ""), "pf")
        p("buffer_load_dword v247, v253, s[12:15], s62 offen" + NT, "pf")
    srd(p, 16, 42, 0x400000)
    srd(p, 20, 44, 0x10000000)
    if HYB: p("s_mov_b32 s44, s61")
    p("s_load_dwordx2 s[36:37], s[0:1], 16")
    p("s_load_dwordx2 s[38:39], s[0:1], 40")
    p("s_load_dwordx4 s[40:43], s[0:1], 56")
    p("s_load_dwordx2 s[96:97], s[0:1], 72")
    p("s_load_dwordx2 s[98:99], s[0:1], 88")
    p("v_lshl_add_u32 v244, v255, 6, v254")
    p("v_cmp_eq_u32 vcc, 0, v244")
    p("v_mov_b32 v248, 0x7ffff000")
    p("v_mov_b32 v249, 1")
    p("v_mov_b32 v250, 0")
    p("v_cndmask_b32_e64 v248, v248, 0, vcc")
    p("s_and_b32 s47, s34, 1")
    p("s_lshl_b32 s47, s47, 2")
    p("s_and_b32 s46, s35, 3")
    p("s_add_u32 s47, s47, s46")
    p("s_lshr_b32 s3, s34, 1")
    p("s_lshl_b32 s3, s3, 3")
    p("s_lshr_b32 s46, s35, 2")
    p("s_add_u32 s3, s3, s46")
    p("s_lshl_b32 s45, s3, 3")
    p("s_add_u32 s45, s45, s47")
    p("s_lshl_b32 s46, s47, 2")
    p("s_add_u32 s46, s46, s28")
    p("s_lshl_b32 s31, s46, 16")
    p("s_lshl_b32 s94, s46, 15")
    p("s_lshl_b32 s47, s3, 20")
    p("s_add_u32 s94, s94, s47")
    p(f"s_add_u32 s94, s94, {WS_KV:#x}")
    p("s_lshl_b32 s95, s3, 8")
    p("s_lshl_b32 s3, s45, 7")
    p(f"s_add_u32 s3, s3, {WS_FLAG + 0x10000:#x}")
    p("s_lshl_b32 s29, s34, 2")
    p("s_lshr_b32 s46, s35, 3")
    p("s_add_u32 s29, s29, s46")
    p("s_and_b32 s30, s35, 7")
    p(f"s_mul_i32 s48, s28, 24576")
    p("s_lshl_b32 s49, s28, 12")
    p("s_lshl_b32 s50, s28, 6")
    p("s_add_u32 s50, s50, s95")
    p("s_and_b32 s45, s28, 1")
    p("s_lshr_b32 s52, s28, 1")
    p("s_lshl_b32 s53, s45, 13")
    p("s_lshl_b32 s54, s52, 12")
    p("s_add_u32 s53, s53, s54")
    p("s_lshl_b32 s54, s45, 6")
    p("s_lshl_b32 s55, s52, 19")
    p("s_add_u32 s55, s54, s55")
    p("s_add_u32 s54, s55, s95")
    p("s_lshl_b32 s56, s29, 8")
    p("s_add_u32 s65, s55, s56")
    p("s_sub_u32 s56, 15, s30")
    p("s_lshl_b32 s32, s56, 3")
    p("s_add_u32 s32, s32, s28")
    p("s_lshl_b32 s33, s30, 3")
    p("s_add_u32 s33, s33, s28")
    p("s_lshl_b32 s46, s32, 14")
    p("s_lshl_b32 s47, s33, 14")
    p(f"s_mul_i32 s32, s32, {ACT_ROW}")
    p(f"s_add_u32 s32, s32, {WS_ACT:#x}")
    p(f"s_mul_i32 s33, s33, {ACT_ROW}")
    p(f"s_add_u32 s33, s33, {WS_ACT:#x}")
    if GUZ:
        p("s_sub_u32 s55, s29, s34")
        p("s_add_u32 s55, s55, 32")
    else:
        p("s_add_u32 s55, s29, 32")
        p("s_cmp_lt_u32 s29, 24")
        p("s_cselect_b32 s55, s55, s29")
    p(f"s_mul_i32 s64, s52, {64 * 3584}")
    p("s_lshl_b32 s63, s29, 6")
    p("s_add_u32 s35, s64, s63")
    p("s_lshl_b32 s63, s55, 6")
    p("s_add_u32 s64, s64, s63")
    if GUZ:
        p("s_and_b32 s63, s29, 3")
        p("s_cmp_eq_u32 s63, 3")
        p("s_cselect_b32 s64, 0x7f000000, s64")
    p("s_lshl_b32 s51, s29, 20")
    p(f"s_add_u32 s51, s51, {WS_KV:#x}")
    p("s_lshl_b32 s56, s29, 10")
    p(f"s_add_u32 s56, s56, {128 * 1024}")
    p("s_add_u32 s100, s56, s32")
    p("s_add_u32 s101, s56, s33")
    p("s_lshl_b32 s61, s34, 8")
    p("s_lshr_b32 s63, s60, 1")
    p(f"s_mul_i32 s63, s63, {8 * 3584}")
    p("s_add_u32 s61, s61, s63")
    p("s_lshl_b32 s52, s34, 10")
    p("s_lshl_b32 s63, s60, 15")
    p("s_add_u32 s52, s52, s63")
    if HYB: p("s_add_u32 s60, s58, s59")
    p("v_lshrrev_b32 v241, 3, v254")
    p("v_lshlrev_b32 v241, 13, v241")
    p("v_and_b32 v242, 7, v254")
    for n in range(8):
        p(f"v_xor_b32 v243, {n}, v242")
        p(f"v_lshl_add_u32 v{224 + n}, v243, 4, v241")
    p("v_and_b32 v241, 7, v254")
    p("v_bfe_u32 v242, v254, 3, 1")
    p("v_lshlrev_b32 v242, 7, v242")
    p("v_lshl_add_u32 v242, v241, 10, v242")
    p("v_add_u32 v242, s48, v242")
    p("v_lshrrev_b32 v243, 4, v254")
    for tt in range(2):
        p(f"v_add_u32 v244, {4 * tt}, v243")
        p("v_xor_b32 v244, v244, v241")
        p(f"v_lshl_add_u32 v{232 + tt}, v244, 4, v242")
    p("v_lshlrev_b32 v241, 9, v243")
    p("v_bfe_u32 v242, v254, 2, 2")
    p("v_lshl_add_u32 v241, v242, 6, v241")
    p("v_and_b32 v242, 3, v254")
    p("v_lshl_add_u32 v241, v242, 3, v241")
    p("v_and_b32 v242, 1, v243")
    p("v_lshl_add_u32 v234, v242, 5, v241")
    p("v_xor_b32 v237, 32, v234")
    for cf in range(2):
        p(f"v_add_u32 v{235 + 3 * cf}, 0x10000, v{234 + 3 * cf}")
        p(f"v_add_u32 v{236 + 3 * cf}, 0x20000, v{234 + 3 * cf}")
    p("v_lshrrev_b32 v244, 5, v254")
    p("v_lshlrev_b32 v251, 30, v244")
    p("v_lshlrev_b32 v244, 1, v244")
    p("v_and_b32 v245, 3, v254")
    p("v_xor_b32 v245, v245, v244")
    p("v_lshlrev_b32 v245, 4, v245")
    p("v_lshrrev_b32 v244, 2, v254")
    p("v_lshl_add_u32 v241, v244, 13, v245")
    p("v_mul_u32_u24 v244, 3584, v244")
    p("v_add_u32 v242, v244, v245")
    if ASYM:
        p("v_lshrrev_b32 v245, 3, v254")
        p("v_mul_u32_u24 v245, 3584, v245")
        p("v_and_b32 v244, 3, v254")
        p("v_lshl_add_u32 v245, v244, 7, v245")
        p("s_lshr_b32 s63, s34, 1")
        p("s_mul_i32 s63, s63, 384")
        p("s_add_u32 s63, s63, 2048")
        p("s_lshl_b32 s56, s34, 8")
        p("s_sub_u32 s63, s63, s56")
        p("v_bfe_u32 v244, v254, 2, 1")
        p("v_mad_u32_u24 v245, v244, s63, v245")
        p("v_and_b32 v244, 7, v254")
        p("v_lshrrev_b32 v244, v244, 0x8c" if False else "v_mov_b32 v53, 0x8c")
        p("v_lshrrev_b32 v244, v244, v53")
        p("v_and_b32 v244, 1, v244")
        p("v_lshl_or_b32 v245, v244, 30, v245")
    else:
        p("v_bfe_u32 v245, v254, 2, 3")
        p("v_mul_u32_u24 v245, 3584, v245")
        p("v_and_b32 v244, 1, v254")
        p("v_lshl_add_u32 v245, v244, 7, v245")
        p("v_bfe_u32 v244, v254, 1, 1")
        if GUZ:
            p("s_lshl_b32 s63, s34, 6")
            p("s_sub_u32 s63, 2048, s63")
            p("v_mad_u32_u24 v245, v244, s63, v245")
        else:
            p("v_lshl_add_u32 v245, v244, 11, v245")
        p("v_or_b32 v245, v245, v251")
    p("v_and_b32 v243, 15, v254" if not BYTEF else "v_mov_b32 v243, v254")
    p(f"v_lshlrev_b32 v243, {2 if BYTEF else XSH}, v243")
    p("v_lshlrev_b32 v48, 7, v254")
    p("v_lshl_add_u32 v48, v255, 5, v48")
    p("v_add_u32 v48, 0x24000, v48")
    p("v_lshl_add_u32 v49, v255, 11, v240")
    p("v_add_u32 v49, 0x24000, v49")
    p("v_lshrrev_b32 v50, 3, v254")
    p("v_lshlrev_b32 v50, 8, v50")
    p("v_and_b32 v51, 7, v254")
    p("v_lshl_add_u32 v50, v51, 4, v50")
    p("s_waitcnt lgkmcnt(0)")
    p("s_cmp_eq_u32 s45, 0")
    p("s_cselect_b32 s40, s40, s42")
    p("s_cselect_b32 s41, s41, s43")
    p("s_mov_b32 s4, s98")
    p("s_mov_b32 s5, s99")
    p("s_mov_b32 s6, 256")
    p("s_mov_b32 s7, 0x20000")
    p("s_load_dwordx2 s[42:43], s[0:1], 80")
    p("s_lshl_b32 s56, s55, 10")
    p(f"s_add_u32 s56, s56, {128 * 1024}")
    p("s_add_u32 s98, s56, s32")
    p("s_add_u32 s99, s56, s33")
    if GUZ:
        p("s_and_b32 s56, s29, 3")
        p("s_cmp_eq_u32 s56, 3")
        p("s_cselect_b32 s98, 0x7f000000, s98")
        p("s_cselect_b32 s99, 0x7f000000, s99")
    p("s_lshl_b32 s63, s2, 7")
    p(f"s_add_u32 s63, s63, {WS_FLAG:#x}")
    now(first[:EARLY])
    p.wait_vm("ln")
    if DIAG and not DIAG2: p.items.append(stamp(3))
    emit_ln(p)
    p("ds_write_b128 v48, v[40:43]")
    p("ds_write_b128 v48, v[44:47] offset:16")
    p("s_lshr_b32 s58, s2, 1")
    p("s_lshl_b32 s58, s58, 14")
    p("s_and_b32 s59, s2, 1")
    p("s_lshl_b32 s59, s59, 7")
    p("s_add_u32 s58, s58, s59")
    p("s_add_u32 s58, s58, s49")
    if WS_XN: p(f"s_add_u32 s58, s58, {WS_XN:#x}")
    p("s_waitcnt lgkmcnt(0)")
    p("s_barrier")
    p("ds_read_b128 v[40:43], v49")
    p("ds_read_b128 v[44:47], v49 offset:1024")
    p("s_lshr_b32 s59, s2, 4")
    p(f"s_lshl_b32 s59, s59, {XSH}")
    p("s_waitcnt lgkmcnt(0)")
    p(f"buffer_store_dwordx4 v[40:43], v50, s[20:23], s58 offen{STF}", "xnst")
    p(f"buffer_store_dwordx4 v[44:47], v50, s[20:23], s58 offen offset:2048{STF}", "xnst")
    p(f"buffer_store_dword v250, v248, s[20:23], s63 offen{STF}", "zf")
    p(f"buffer_store_dword v250, v248, s[20:23], s63 offen offset:4{STF}", "zf")
    p(f"buffer_store_dword v250, v248, s[20:23], s3 offen{STF}", "zf")
    if ASYM:
        p("s_getreg_b32 s56, hwreg(HW_REG_XCC_ID)")
        p("s_and_b32 s56, s56, 1")
        p("v_mov_b32 v53, s56")
        p("s_lshl_b32 s56, s2, 12")
        p(f"buffer_store_dword v53, v248, s[4:7], s56 offen offset:4{STF}", "zf")
    p(f"s_add_u32 s63, s63, 0x20000")
    p(f"buffer_store_dword v250, v248, s[20:23], s63 offen offset:8{STF}", "zf")
    p(f"buffer_store_dword v250, v248, s[20:23], s63 offen{STF}", "zf")
    p(f"buffer_store_dword v250, v248, s[20:23], s63 offen offset:4{STF}", "zf")

    if os.environ.get("PADS"):
        p(f"s_mov_b32 s56, {int(os.environ['PADS'])}")
        p.label("L_pads")
        for k in range(64): p("s_nop 3")
        p("s_sub_u32 s56, s56, 1")
        p("s_cmp_lg_u32 s56, 0")
        p("s_cbranch_scc1 L_pads")
    if os.environ.get('PFW8'):
        p('s_waitcnt vmcnt(0)'); p.items.append(stamp(2))
    if HYB and HP1 == 1: p(HPA, "pf")
    if HYB and HP2 == 0: p(HPW, "pf")
    now(first[EARLY:])
    if HYB and HP1 == 2: p(HPA, "pf")
    if HYB and HP2 == 1: p(HPW, "pf")

    groups = []
    def accT(base, c, cf, rb): return base + (c * 4 + rb) * 8 + cf * 4
    def accV(base, c, cf, rb): return base + ((c * 2 + cf) * 2 + (rb >> 1)) * 8 + (rb & 1) * 4
    def add_double(seg0, bases, vt=True):
        order = [(s, tt, c) for s in range(8) for tt in range(2) for c in range(4)]
        if KD and vt: order = sorted(order[:16], key=lambda x: x[2] >> 1) + order[16:]
        if KD and not vt: order = order[:56] + sorted(order[56:], key=lambda x: -(x[2] >> 1))
        order = [(s, tt, c, cf) for s, tt, c in order for cf in range(2)]
        if "g" in CH: order = [(s, tt, c, cf) for s in range(8) for c in range(4) for cf in range(2) for tt in range(2)]
        for s, tt, c, cf in order:
            if True:
                groups.append(dict(off=BLK[seg0 + s] * 16384 + c * 4096 + tt * 2048, cf=cf, t=2 * s + tt,
                                   acc=[(accV if vt else accT)(bases[c >> 1], c & 1, cf, rb) for rb in range(4)], vt=vt))
    def quad(seg): return 'G' in CH and (4 <= seg < 8 or seg >= 16)
    def add_single(seg0, base):
        if ASYM and seg0 == 20:
            for cf in range(2):
                for q in range(4):
                    for tq in range(4):
                        for c in range(2):
                            groups.append(dict(off=BLK[seg0 + q] * 16384 + c * 8192 + tq * 2048, cf=cf, t=4 * q + tq,
                                               acc=[accT(base, c, cf, rb) for rb in range(4)], vt=False))
            return
        for q in range(4):
            od = [(tq, c, cf) for c in range(2) for tq in range(4) for cf in range(2)] if seg0 + q == 31 else [(tq, c, cf) for tq in range(4) for c in range(2) for cf in range(2)]
            if "g" in CH:
                od = [(2 * tp + e, c, cf) for c in range(2) for tp in range(2) for cf in range(2) for e in range(2)] if seg0 + q == 31 else \
                     [(2 * tp + e, c, cf) for tp in range(2) for c in range(2) for cf in range(2) for e in range(2)]
            if quad(seg0 + q): od = [(tq, c, cf) for c in range(2) for cf in range(2) for tq in range(4)]
            for tq, c, cf in od:
                groups.append(dict(off=BLK[seg0 + q] * 16384 + c * 8192 + tq * 2048, cf=cf, t=4 * q + tq,
                                   acc=[accT(base, c, cf, rb) for rb in range(4)], vt=False))
    if KD: add_double(0, [0, 64], False)
    else: add_single(0, 0); add_single(4, 64)
    add_double(8, [128, 0])
    add_single(16, 64); add_single(20, 128); add_single(24, 0); add_single(28, 64)
    NG = len(groups)
    mf = []
    seqm = [(n, rb) for n in range(NG) for rb in range(4)]
    if "g" in CH: seqm = [(n + e, rb) for n in range(0, NG, 2) for rb in range(4) for e in range(2)]
    if "G" in CH:
        seqm = []
        for n in range(0, NG, 4):
            if quad(n // 16): seqm += [(n + (e if rb % 2 == 0 else 3 - e), rb) for rb in range(4) for e in range(4)]
            else: seqm += [(n + h + e, rb) for h in (0, 2) for rb in range(4) for e in range(2)]
    seen = set()
    for n, rb in seqm:
        G = groups[n]
        w = vr(192 + 4 * (n % 8))
        a = ar((rb * 16 + G["t"]) * 4)
        d = vr(G["acc"][rb])
        key = (d, n // 64 if not 128 <= n < 256 else 2)
        c = d if key in seen else 0
        seen.add(key)
        mf.append(f"{MF} {d}, {a}, {w}, {c}" if G["vt"] else f"{MF} {d}, {w}, {a}, {c}")
    S = Sched16(mf)
    def w_reads(n):
        G = groups[n]
        out = []
        for hf in range(2):
            off = G["off"] + hf * 256
            d = 192 + 4 * (n % 8) + 2 * hf
            out.append(f"ds_read_b64_tr_b16 v[{d}:{d + 1}], v{234 + 3 * G['cf'] + (off >> 16)} offset:{off & 0xffff}")
        return out
    def a_reads(s):
        return [f"ds_read_b128 {ar((rb * 16 + 2 * s + tt) * 4)}, v{232 + tt} offset:{(s % 3) * 8192 + rb * 256}" for tt in range(2) for rb in range(4)]
    RA = 5
    if DIAG and not DIAG2: p.items.append(stamp(4))
    p.wait_vm(("A", 0))
    p("s_barrier")
    if DIAG and not DIAG2: p.items.append(stamp(5))
    for x in a_reads(0): p(x, ("Ar", 0))
    for n in range(RA):
        for x in w_reads(n): p(x, ("W", n))
    p.wait_lgkm(("W", 1 if "g" in CH else 0))
    for n in range(RA, NG):
        k = n % 16
        if k <= 13: g = 4 * (n - RA)
        elif k == 14: g = 4 * (n - 6) + 2
        else: g = 4 * (n - 6)
        if quad(n // 16) or (n >= 8 and quad((n - 8) // 16)): g = 16 * (n // 4 - 1) + 2 * (n % 4)
        for i, x in enumerate(w_reads(n)): S.add_mem(g + i, x, ("W", n))
    if "g" in CH:
        for n in range(2, NG, 2): S.add_first(4 * n - 1 if not (quad(n // 16) and n % 4) else 4 * n - 7, Wait("lgkm", ("W", n + 1)))
    else:
        for n in range(1, NG): S.add_first(4 * n - 1, Wait("lgkm", ("W", n)))
    for s in range(1, 8):
        g = 32 * s - 22 if not KD else 64 * s - 38
        S.add_first(g, Wait("vm", ("A", s)))
        for i, x in enumerate(a_reads(s)): S.add_mem(g + [0, 0, 1, 1, 4, 4, 5, 5][i], x, ("Ar", s))
        S.add_first(g + 12, Wait("lgkm", ("Ar", s)))
    def gB(n): return 64 * n + 4 * 11
    GBS = [n for n in range(31) if n < 8 or not GB2 or n % 2 == 1]
    if GB2 == 4: GBS = list(range(8)) + [11, 15, 19, 23, 25, 27, 29]
    if ASYM: GBS = sorted(set(GBS) - {21} | {KVPUB})
    for n in GBS:
        nxt = min([x for x in GBS if x > n] + [31])
        if ASYM and n == 19: nxt = 23
        tags = [("L", nxt)]
        if n == 0: tags += ["xnst", "zf"]
        if n == KVPUB: tags.append("kvst")
        if n == 29: tags.append(("kv", 0, 0))
        S.add_first(gB(n) - 2, Ins("s_waitcnt lgkmcnt(0)"))
        S.add_first(gB(n), Wait("vm", tags))
        S.add_first(gB(n), "s_barrier")
    assert KVPUB in GBS
    def win(n): return gB(n - 1) + 1
    def freed(seg): return gB(min(x for x in GBS if x >= (23 if ASYM and 20 <= seg < 23 else seg))) + 1
    def lfree(n):
        prev = [m for m in range(n) if BLK[m] == BLK[n]]
        return freed(prev[-1]) if prev else freed(6 if KD else 3)
    def lmax(n):
        c = max(x for x in GBS if x < n); last = min([x for x in GBS if x > c] + [31])
        if ASYM and 20 <= n <= 23: c, last = 19, 23
        return gB(c) - 130 - 36 * (last - n)
    def bfree(blk): return freed(max(m for m in range(32) if BLK[m] == blk))
    LD = []
    def ld(ops, e, pace=1):
        for i, (pre, ins, tag) in enumerate(ops):
            for x in pre: LD.append(Op(x, e + i * pace - 3, 2040))
            LD.append(Op(ins, e + i * pace, 2040, tag=tag, deps=[LD[-2]] if len(pre) == 2 else []))
    one = lambda ins, tag, pre=(): [([], x, None) for x in pre] + [([], ins, tag)]
    if KD:
        pfv = one("buffer_load_dword v246, v253, s[16:19], s62 offen" + NTV, "pf")
        for st in range(2, 8):
            ld(dma_W(st), 0 if st < 4 else win(st - 3), 2)
            ld(dma_A(st), 0 if st < 4 else 64 * (st - 3) - 26, 2)
            if st == PFVP and "v" in PFW: ld(pfv, 0)
        ld(one("buffer_atomic_add v249, v248, s[4:7], s59 offen", "pub"), win(5))
        for n in range(8, 13): ld(dma_W(n), lfree(n), 3)
    else:
        if ALEAD == 3:
            ld(dma_A(3), 0); ld(dma_W(2), 8); ld(dma_A(4), 22)
            ld(dma_A(5), 54); ld(dma_W(3), 62); ld(dma_A(6), 86); ld(dma_A(7), 118); ld(dma_W(4), 126); ld(dma_W(5), 140, 4)
        else:
            ld(dma_W(1), 0); ld(dma_A(2), 0)
            if HYB and HP2 == 2: ld(one(HPW, "pf"), 0)
            k1 = lambda st: ld(one("buffer_load_dword v247, v253, s[12:15], s62 offen", "pf"), 0) if HP3 == st else None
            ld(dma_A(3), 20); k1(3); ld(dma_W(2), 40); ld(dma_A(4), 52); k1(4); ld(dma_A(5), 84); k1(5); ld(dma_W(3), 100)
            ld(dma_A(6), 116); ld(dma_A(7), 144); ld(dma_W(4), 156); ld(dma_W(5), 160)
        if not BYTEF: ld(one("buffer_atomic_add v249, v248, s[4:7], s59 offen", "pub"), win(3))
        else: S.add_mem(win(BYTEF), "buffer_store_byte v249, v248, s[4:7], s2 offen sc1", "pub")
        if "v" in PFW: ld(one("buffer_load_dword v246, v253, s[16:19], s62 offen" + NTV, "pf"), win(3))
        ld(dma_W(6), win(3), 2)
        ld(dma_W(7), VW0 - 24, 4)
        for n in range(8, 13): ld(dma_W(n), VW0 + (n - 8) * VWP, 3)
    ld(one("buffer_load_dword v250, v245, s[12:15], s61 offen", "pf", ["s_mov_b32 s12, s40", "s_mov_b32 s13, s41", f"s_mov_b32 s14, {512 * 3584}"])[:4 if "g" in PFW else 3], win(8 if KD else GPW))
    print("ld1", schedule(S, [LD], 0, 511, base_cap=LCAP), "last", LD[-1].g, [o.g for o in LD if o.tag in ("pf", "poll")])
    gc = XNC
    S.add_mem(XPL if XPL else gc - 50, XPOLL, "poll")
    S.add_first(gc, Wait("vm", "poll"))
    S.add_valu(gc, XCMP)
    S.add_valu(gc, "v_add_u32 v247, 0x10000, v240")
    S.add_last(gc + 2, "s_cbranch_vccnz L_xnwait")
    S.add_last(gc + 2, "L_xnok:")
    BK0, BK1 = 1408, 1536
    if ASYM:
        S.add_valu(gc + 4, "v_readfirstlane_b32 s48, v225")
        ro = ["s_xor_b32 s48, s48, s2", "s_and_b32 s48, s48, 1",
              "s_and_b32 s55, s29, 3", "s_lshr_b32 s56, s55, 1", "s_add_u32 s56, s56, 4", "s_and_b32 s31, s55, 1", "s_mul_i32 s31, s31, s48",
              ["s_cmp_eq_u32 s48, 1", "s_cselect_b32 s55, s56, s55"], "s_lshr_b32 s56, s34, 1", "s_mul_i32 s56, s56, 6", "s_add_u32 s55, s55, s56",
              "s_add_u32 s55, s55, 32",
              "s_lshr_b32 s56, s28, 1", f"s_mul_i32 s64, s56, {64 * 3584}", "s_lshl_b32 s56, s55, 6", "s_add_u32 s64, s64, s56",
              "s_lshl_b32 s56, s31, 5", "s_add_u32 s64, s64, s56",
              "s_lshl_b32 s56, s55, 10", f"s_add_u32 s56, s56, {128 * 1024}", "s_add_u32 s98, s56, s32", "s_add_u32 s99, s56, s33",
              "s_lshl_b32 s31, s31, 3", "s_add_u32 s54, s98, s31", "s_add_u32 s55, s99, s31", "s_mov_b32 s56, 0x7f000000",
              ["s_cmp_eq_u32 s48, 1", "s_cselect_b32 s98, s56, s98", "s_cselect_b32 s99, s56, s99", "s_cselect_b32 s54, s54, s56", "s_cselect_b32 s55, s55, s56"]]
        g = gc + 6
        for x in ro:
            while S.first[g]: g += 1
            for y in (x if isinstance(x, list) else [x]): S.add_first(g, y)
            g += 1
        for g in range(BK0, BK1): S.add_last(g, Ins("BLACK")); S.add_last(g, Ins("BLACK"))
    LD = []
    for n in range(13, 24): ld(dma_W(n), max(min(win(9) + (n - 13) * 44 if n < WSH else win(n - 4), lmax(n)), lfree(n)), 8)
    S.add_valu(64 * 12, "v_and_b32 v253, 0xfffffbff, v253")
    S.add_valu(64 * 12 + 1, "v_bfe_u32 v246, v254, 3, 1")
    S.add_valu(64 * 12 + 2, "v_lshl_or_b32 v253, v246, 30, v253")
    ld(one("buffer_load_dword v244, v253, s[8:11], s52 offen", "pf", ["s_mov_b32 s8, s36", "s_mov_b32 s9, s37", "s_mov_b32 s10, 0x400000"])[:4 if "q" in PFW else 3], win(17 if WSH > 20 else WQW) if not ASYM else 1170)
    for n in range(24, 32):
        if n == 28 and PFOG:
            S.add_valu(1400, "v_and_b32 v245, 0xfff, v252")
            S.add_valu(1401, "v_or_b32 v245, v245, v251")
            ld(one("buffer_load_dword v250, v245, s[4:7], s50 offen", "pf", ["s_mov_b32 s4, s38", "s_mov_b32 s5, s39", "s_mov_b32 s6, 0x400000", "s_mov_b32 s7, 0x20000",
                   "s_lshl_b32 s50, s2, 2", "s_add_u32 s50, s50, s28", "s_lshl_b32 s50, s50, 12"]), PFOG - 8)
            ld(one("buffer_load_dword v253, v245, s[12:15], s50 offen", "pf", ["s_mov_b32 s12, s96", "s_mov_b32 s13, s97", f"s_mov_b32 s14, {1792 * 1024}"]), PFOG - 8)
            if NTX: ld(one("buffer_load_dword v244, v245, s[24:27], s50 offen", "pf"), PFOG - 8)
        ld(dma_W(n), max((1270 if ASYM else win(19) if WSH > 20 else win(21) + 20) + (n - 24) * (32 if ASYM else 50 if WSH > 20 else 36), lfree(n), PFOG + 120 + 20 * (n - 28) if PFOG and n >= 28 else 0), 8 if n < 28 or not PFOG else 4)
    S.add_valu(64 * 26, "v_and_b32 v243, 0x380, v252")
    for x in ["s_add_u32 s16, s20, s51", "s_addc_u32 s17, s21, 0"]: S.add_last(64 * 26, x)
    for x in ["s_sub_u32 s18, 16, s30", "s_lshl_b32 s18, s18, 16"]: S.add_last(64 * 26 + 1, x)
    ld(one("buffer_load_dword v244, v243, s[20:23], s59 offen sc1", "poll2", ["s_lshl_b32 s59, s29, 10", f"s_add_u32 s59, s59, {WS_FLAG + 0x10000:#x}"]), 64 * 27 + KPD)
    gc = win(28) + 1 + KPD
    for k in range(7): ld(kv_half(k // 2, k % 2), max(gc + 4 + 16 * k, bfree(k)), 4)
    S.add_first(gc, Wait("vm", "poll2"))
    S.add_valu(gc, "v_cmp_ne_u32 vcc, 1, v244")
    S.add_last(gc + 2, "s_cbranch_vccnz L_kvwait")
    S.add_last(gc + 2, "L_kvok:")
    print("ld2", schedule(S, [LD], 512, 2046, base_cap=2), "last", LD[-1].g, [(o.tag, o.g) for o in LD if o.mem][::4])
    def xe(t, rb):
        if "g" in CH: return 512 + 64 * (t // 2 + 1) + (7 if t < 14 else 3) * (4 * (t & 1) + rb)
        return 512 + 32 * t + 32 + (6 * rb if t < 15 else 0)
    XL = []
    for t in range(16):
        for rb in range(4):
            pre = []
            if t % 4 == 0 and rb % 2 == 0: pre = [f"s_add_u32 s{62 + rb // 2}, s{46 + rb // 2}, {WS_XN + t * 1024}"]
            vo = 240 if rb % 2 == 0 else 247
            XL.append(Op(f"buffer_load_dwordx4 {ar((rb * 16 + t) * 4)}, v{vo}, s[20:23], s{62 + rb // 2} offen offset:{(t % 4) * 1024}{XSC}",
                         max(xe(t, rb), XNC + 4 + int(XP * (4 * t + rb))), 1024 + 16 * (t & ~3) - 60 if t < 10 else xe(t, rb) + 40, pre=pre, tag=("X", t)))
    for t in range(16): S.add_first(1024 + 16 * (t & ~3 if "G" in CH else t & ~1 if "g" in CH else t) - 2, Wait("vm", ("X", t)))
    def kv_epi(kind, u, base, g0, g1, st0):
        ops = []
        for k8 in range(8):
            R = base + 8 * k8
            if kind == "K":
                c, rb = k8 // 4, k8 % 4
                off = rb * 4096 + (2 * u + c) * 1024
                for r in range(8): ops.append(Op(f"v_mul_f32 v{R + r}, s58, v{R + r}", g0, g1))
            else:
                db, s = 4 * u + k8 // 2, k8 % 2
                off = 16384 + s * 8192 + db * 1024
            cv = [Op(f"v_cvt_pk_bf16_f32 v{R + k}, v{R + 2 * k}, v{R + 2 * k + 1}", g0, g1) for k in range(4)]
            ops += cv
            ops.append(Op(f"s_add_u32 s95, s94, {off & ~4095}", g0, g1))
            ops.append(Op(f"buffer_store_dwordx4 {vr(R)}, v240, s[20:23], s95 offen offset:{off & 4095}{STF}", max(g0, st0[0] + int(k8 * st0[1])), g1, [cv[-1]], tag="kvst"))
        return ops
    S.add_first(250, f"s_mov_b32 s58, {f2u(KSCALE):#x}")
    C0 = -2.0 * math.sqrt(2.0 / math.pi) * LOG2E
    C1 = C0 * 0.044715
    S.add_valu(64 * 17, f"v_mov_b32 v232, {f2u(C0):#x}")
    S.add_valu(64 * 17 + 1, f"v_mov_b32 v233, {f2u(C1):#x}")
    S.add_valu(64 * 17 + 2, f"v_add_u32 v246, {4 * ACT_ROW}, v240")
    def gu_epi(base, psg, g0, g1, gst):
        st = [[], []]; sto = []
        for rb in range(4):
            G = base + rb * 8; U = base + 32 + rb * 8
            L = st[rb & 1]
            for r in range(8):
                t = 224 + (r % 4) + 4 * (rb & 1)
                o4 = Op(f"v_exp_f32 v{t}, v{t}", g0, g1)
                o7 = Op(f"v_rcp_f32 v{t}, v{t}", g0, g1)
                L += [Op(f"v_mul_f32 v{t}, v{G + r}, v{G + r}", g0, g1), Op(f"v_fma_f32 v{t}, v{t}, v233, v232", g0, g1),
                      Op(f"v_mul_f32 v{t}, v{t}, v{G + r}", g0, g1), o4, Op(f"v_mul_f32 v{G + r}, v{G + r}, v{U + r}", g0, g1),
                      Op(f"v_add_f32 v{t}, 1.0, v{t}", g0, g1), o7, Op(f"v_mul_f32 v{G + r}, v{G + r}, v{t}", g0, g1, [o7])]
            cv = [Op(f"v_cvt_pk_bf16_f32 v{G + k}, v{G + 2 * k}, v{G + 2 * k + 1}", g0, g1 - 2) for k in range(4)]
            L += cv
            sto.append(Op(f"buffer_store_dwordx4 {vr(G)}, v{240 if rb % 2 == 0 else 246}, s[20:23], s{psg + rb // 2} offen{STF}", gst + 30 * rb, g1, [cv[-1]], tag="hst"))
            if ASYM and psg == 98:
                sto.append(Op(f"buffer_store_dwordx2 v[{G}:{G + 1}], v{240 if rb % 2 == 0 else 246}, s[20:23], s{54 + rb // 2} offen{STF}", gst + 30 * rb, g1, tag="hst"))
        return st, sto
    def q_epi(base, u, g0, g1, gmove):
        cvs = []; mv = []
        for c in range(2):
            for qb in range(4):
                R = base + (c * 4 + qb) * 8
                for k in range(4):
                    o = Op(f"v_cvt_pk_bf16_f32 v{R + k}, v{R + 2 * k}, v{R + 2 * k + 1}", g0, g1)
                    cvs.append(o)
                    mv.append(Op(f"v_accvgpr_write_b32 a{Qreg(qb, 2 * u + c) + k}, v{R + k}", gmove, g1, [o]))
        return cvs, mv
    PH = [256 * k for k in range(9)]
    PE = 2048
    kvs = kv_epi("K", 0, 0, PH[1] + 6, PH[2] - 3, (PH[1] + 16, STP)) + kv_epi("K", 1, 64, PH[2] + 6, PH[4] - 3, (PH[2] + 16, STPK1)) + \
          kv_epi("V", 0, 128, PH[4] + 6, PH[5] - 3, (PH[4] + 12, STPV)) + kv_epi("V", 1, 0, PH[4] + 6, (BK0 if ASYM else PH[6]) - 3, (PH[4] + 12 + 8 * STPV, STPV))
    kst = []
    if KD:
        kvs = []
        for u, base, g0 in ((1, 64, 512 - 32 + 6), (0, 0, 512 + 6)):
            for k8 in range(8):
                R = base + 8 * k8; P = 64 + 8 * k8 + (4 if u == 0 else 0)
                c, rb = k8 // 4, k8 % 4
                off = rb * 4096 + (2 * u + c) * 1024
                kvs += [Op(f"v_mul_f32 v{R + r}, s58, v{R + r}", g0, 573) for r in range(8)]
                cv = [Op(f"v_cvt_pk_bf16_f32 v{P + k}, v{R + 2 * k}, v{R + 2 * k + 1}", g0, 573) for k in range(4)]
                kvs += cv
                kst.append(Op(f"s_add_u32 s95, s94, {off & ~4095}", g0, PH[4] - 3))
                kst.append(Op(f"buffer_store_dwordx4 {vr(P)}, v240, s[20:23], s95 offen offset:{off & 4095}{STF}", 560 + int(len(kst) // 2 * STP), PH[4] - 3, [cv[-1]], tag="kvst"))
        kvs += kv_epi("V", 0, 128, PH[4] + 6, PH[5] - 3, (PH[4] + 12, STPV)) + kv_epi("V", 1, 0, PH[4] + 6, PH[6] - 3, (PH[4] + 12 + 8 * STPV, STPV))
    print("kv epi", schedule(S, [XL, kvs, kst], PH[1], PH[6]), "last store", kvs[-1].g, "pub at", gB(KVPUB))
    assert kvs[-1].g < gB(KVPUB)
    st0, so0 = gu_epi(64, 100, PH[5] + 6, PH[7] - 3, PH[6])
    st1, so1 = gu_epi(128, 98, PH[6] + 6, PE - 2, PH[6] + 130)
    q0c, q0m = q_epi(0, 0, PH[7] + 6, PE - 2, PH[7] + 130)
    q1c, q1m = q_epi(64, 1, PE - 32 + 5, PE - 1, PE - 32 + 5)
    k0r = [Op(f"ds_read_b128 {ar(Fbuf(f))}, v240 offset:{f * 1024}", max(gB(29) + 1, PH[7] + 16 * (f | 3) + 16), PE - 2, tag=("K0", f)) for f in range(12)]
    print("gu epi", schedule(S, [st0[0] + st1[0], st0[1] + st1[1], so0 + so1, q0c + q1c[:16], q0m + q1m[:16], k0r], PH[5], PE - 1))
    S.add_mem(gB(KVPUB) + 2, f"buffer_store_dword v249, v248, s[20:23], s3 offen{STF}", "pub")
    if DIAG and not DIAG2:
        S.add_first(512, stamp(6)); S.add_first(1024, stamp(7)); S.add_first(PE - 1, stamp(8))
    if DIAG2:
        for k, g in enumerate(DIAG2): S.add_first(g, stamp(2 + k))
    skip_stub = []
    if ASYM:
        for g in range(BK0, BK1): S.last[g] = [x for x in S.last[g] if not (isinstance(x, Ins) and x.t == "BLACK")]
        S.add_last(BK0 - 1, "s_cmp_eq_u32 s48, 1"); S.add_last(BK0 - 1, "s_cbranch_scc1 L_gskip"); S.add_last(BK0 - 1, "L_gblk:")
        S.add_last(BK1 - 1, "L_gjoin:")
    print(S.report("gemm")[:600])
    its = S.items()
    DROP = os.environ.get("DROP", "").split(",")
    def keep(i):
        if isinstance(i, Ins):
            tg = i.tag[0] if isinstance(i.tag, tuple) else i.tag
            if tg in DROP and tg: return False
        if isinstance(i, Wait):
            tags = i.tag if isinstance(i.tag, list) else [i.tag]
            tags = [t for t in tags if (t[0] if isinstance(t, tuple) else t) not in DROP]
            if not tags: return False
            i.tag = tags
        return True
    p.extend([i for i in its if keep(i)])
    gemm_items = list(p.items)
    if ASYM:
        i0 = [k for k, x in enumerate(gemm_items) if isinstance(x, Ins) and x.t == "L_gblk:"][0]
        i1 = [k for k, x in enumerate(gemm_items) if isinstance(x, Ins) and x.t == "L_gjoin:"][0]
        def inblk(tg): return isinstance(tg, tuple) and tg[0] == "W" and tg[1] < BK1 // 4
        body = [x for x in gemm_items[i0 + 1:i1] if not ((isinstance(x, Ins) and (x.t.startswith("v_mfma") or inblk(x.tag))) or
                                                         (isinstance(x, Wait) and all(inblk(t) for t in (x.tag if isinstance(x.tag, list) else [x.tag]))))]
        npre_ = len(resolve(gemm_items[:i0 + 1]))
        skip_stub = ["L_gskip:"] + [x.t for x in resolve(gemm_items[:i0 + 1] + body)][npre_:] + ["s_waitcnt lgkmcnt(0)", "s_branch L_gjoin"]
        print("skip stub", skip_stub)
    n_gemm = len(resolve(gemm_items))
    sa, va = tail_setup()
    def gen_qk0(masked):
        mf = []; last = {}
        for kb in range(4):
            for t in range(4):
                for qb in range(4):
                    d = Sreg(0, qb, kb)
                    c = vr(d) if t else (0 if kb < 2 else vr(NEGM(qb)))
                    mf.append(f"{MF} {vr(d)}, {ar(Fbuf(kb * 4 + t))}, {ar(Qreg(qb, t))}, {c}")
                    last[(qb, kb)] = len(mf) - 1
        S = Sched16(mf)
        for f in range(1, 16): S.add_first(4 * f - 1, Wait("lgkm", ("K0", f)))
        for f in range(12, 16): S.add_mem(f - 12, f"ds_read_b128 {ar(Fbuf(f))}, v240 offset:{f * 1024}", ("K0", f))
        c1, m1 = q_epi(64, 1, 4, 9, 4)
        c1 = c1[16:]; m1 = m1[16:]
        su = ["v_and_b32 v241, 15, v254", "v_lshl_add_u32 v241, v255, 4, v241", "v_lshrrev_b32 v245, 4, v254", "v_lshlrev_b32 v245, 2, v245",
              "v_sub_u32 v241, v241, v245", "v_cvt_f32_i32 v241, v241", "v_add_f32 v241, 0.5, v241", f"v_mul_f32 v{VTMASK}, {f2u(BIG):#x}, v241"]
        SU = [Op(x, 0, 18) for x in su]
        su2 = [f"v_mov_b32 v{VCUR}, v240", f"v_add_u32 v{VPREV}, 0x10000, v240", "v_and_b32 v206, 31, v254", "v_lshlrev_b32 v206, 10, v206",
               "v_and_b32 v252, 0xfff, v252", "v_or_b32 v252, v252, v251"] + ([f"v_mov_b32 v{ONES + k}, 0x3f803f80" for k in range(4)] if not ONE1 else
                 [f"v_and_b32 v{ONES}, 15, v254", f"v_min_u32 v{ONES}, 1, v{ONES}", f"v_subrev_u32 v{ONES}, 1, v{ONES}", f"v_and_b32 v{ONES}, 0x3f803f80, v{ONES}"] +
                 [f"v_mov_b32 v{ONES + k}, v{ONES}" for k in range(1, 4)]) + va[:8] + va[-4:]
        SU += [Op(x, 0, 63) for x in su2]
        ss = [f"s_mov_b32 s{S_THR}, {f2u(LMAX if FAST else THR):#x}", "s_lshl_b32 s99, s30, 7", f"s_add_u32 s99, s99, {WS_FLAG + 0x20000:#x}", "s_lshl_b32 s98, s29, 10",
              "s_add_u32 s98, s98, s99", "s_mov_b32 s52, s49", f"s_add_u32 s53, s49, {3 * 32768 + 16384}", f"s_add_u32 s54, s49, {4 * 32768}",
              f"s_add_u32 s55, s49, {3 * 32768 + 16384}", "s_mov_b32 s4, s38", "s_mov_b32 s5, s39", "s_mov_b32 s6, 0x400000", "s_mov_b32 s7, 0x20000",
              "s_lshl_b32 s59, s2, 2", "s_add_u32 s59, s59, s28", "s_lshl_b32 s50, s59, 12", "s_mov_b32 s12, s96", "s_mov_b32 s13, s97",
              f"s_mov_b32 s14, {1792 * 1024}", "s_mov_b32 m0, s52"]
        SS = [Op(x, 0, 60) for x in ss]
        def mask_ops(kb, e0, dl):
            out = []
            if not masked: return out
            for qb in (2,):
                for r in range(4):
                    kk = 16 * kb + r
                    out.append(Op(f"v_subrev_f32 v{TMP[r % 2]}, {f2u(kk * BIG):#x}, v{VTMASK}", 19, dl))
                    out.append(Op(f"v_min_f32 v{Sreg(0, qb, kb) + r}, v{Sreg(0, qb, kb) + r}, v{TMP[r % 2]}", e0, dl))
            return out
        T0 = [128 + 2 * q for q in range(4)]
        dl = 29
        I = mask_ops(0, 20, dl)
        for q in range(4):
            b = Sreg(0, q, 0)
            I += [Op(f"v_max3_f32 v{T0[q]}, v{b}, v{b + 1}, v{b + 2}", 20, dl), Op(f"v_max_f32 v{T0[q]}, v{T0[q]}, v{b + 3}", 20, dl)]
        for sw in ("v_permlane32_swap_b32", "v_permlane16_swap_b32"):
            I += [Op(f"v_mov_b32 v{T0[q] + 1}, v{T0[q]}", 20, dl) for q in range(4)]
            I += [Op(f"{sw} v{T0[q]}, v{T0[q] + 1}", 20, dl) for q in range(4)]
            I += [Op(f"v_max_f32 v{T0[q]}, v{T0[q]}, v{T0[q] + 1}", 20, dl) for q in range(4)]
        if FAST: I += [Op(f"v_add_f32 v{T0[q]}, {f2u(SH):#x}, v{T0[q]}", 20, dl) for q in range(4)]
        for q in range(4): I += [Op(f"v_sub_f32 v{NEGM(q) + r}, 0, v{T0[q]}", 20, dl) for r in range(4)]
        post = []
        for kb in range(2):
            if kb: I += mask_ops(1, 36, 63)
            for q in range(4): I += [Op(f"v_sub_f32 v{Sreg(0, q, kb) + r}, v{Sreg(0, q, kb) + r}, v{T0[q]}", 36 if kb else 20, 63) for r in range(4)]
        first = True
        for kb in range(1, 4):
            ops = mask_ops(kb, 16 * kb + 20, 63) if kb > 1 else []
            for q in range(0 if FAST else 4):
                b = Sreg(0, q, kb)
                ops.append(Op(f"v_max_f32 v{MX[0]}, v{b}, v{b + 1}" if first else f"v_max3_f32 v{MX[0]}, v{MX[0]}, v{b}, v{b + 1}", 16 * kb + 20, 63)); first = False
                ops.append(Op(f"v_max3_f32 v{MX[0]}, v{MX[0]}, v{b + 2}, v{b + 3}", 16 * kb + 20, 63))
            if kb < 3: I += ops
            else: post = [o.t for o in ops]
        I += [Op(f"v_exp_f32 v{Sreg(0, qb, 0) + r}, v{Sreg(0, qb, 0) + r}", 36 if r < 8 else 54, 63) for qb, r in predone([0, 1, 2, 3])]
        print("qk0", schedule(S, [c1, m1, SU, SS, I], 0, 63), S.report("qk0")[:140])
        q = Prog()
        q.wait_lgkm(("K0", 0))
        q.extend(S.items())
        q.wait_vm(("kv", 1, 0))
        q("s_barrier")
        for ins in tail_reads(VCUR, 32768): q(ins)
        if not PFOG:
            for x in PFL[:PFM]: q(x.replace("s39", "s50"), "pf")
            q("s_mov_b32 s39, s50")
        for k in range(4): q(f"buffer_load_dwordx4 v240, s[16:19], s54 offen offset:{k * 1024}{KSC} lds", "kv")
        q("s_mov_b32 m0, s53")
        for x in post: q(x)
        if not FAST: q(f"v_cmp_lt_f32 vcc, s{S_THR}, v{MX[0]}")
        q(f"s_waitcnt lgkmcnt({NPRE - 1})")
        return [i.t for i in resolve(gemm_items + q.items)][n_gemm:]
    pro = [i.t for i in resolve(gemm_items)]

    stubs = []
    def check(site, par, dual):
        if FAST: return []
        stubs.append((site, par, dual))
        return [f"s_cbranch_vccnz L_stub_{site}", f"L_ret_{site}:"]
    def it_odd(name, tq, tp, masked, **kw):
        return gen_iter(name, tq, tp, 0, masked, 0, VCUR, 0, VPREV, 49152, VCUR, 32768, end_ops=check(name, 0, tq), **kw)
    def it_even(name, tq, tp, masked, extra_end=(), first_pv=False, **kw):
        if first_pv: kw["vmn"] = 8 if PFOG else 8 + len(PFL[:PFM])
        last = tq == "S1"
        return gen_iter(name, tq, tp, 1, masked, 1, VCUR, 32768, VCUR, 16384, VCUR if last else VPREV, 49152 if last else 0, first_pv=first_pv,
                        end_ops=check(name, 1, tq) + list(extra_end[2:]), swap=not last, mid_ops=extra_end[:2], **kw)
    seg = {}
    seg["G"] = pro
    for m in (False, True):
        nm = "m" if m else "u"
        seg["P" + nm] = gen_qk0(m) + check("qk0" + nm, 0, "D") + it_even("it0" + nm, "D1" if m else "D", "D", m, first_pv=True, salu=sa)
    seg["UDD"] = it_odd("uddA", "D", "D", False) + it_even("uddB", "D", "D", False, ["s_sub_u32 s47, s47, 1", "s_cmp_lg_u32 s47, 0", "s_cbranch_scc1 L_udd"])
    seg["UDDm"] = it_odd("uddmA", "D", "D", True) + it_even("uddmB", "D1", "D", True)
    fake = lambda tag, n: [Ins("buffer_load_dwordx4 v240, s[16:19], s55 offen lds", tag) for _ in range(n)]
    ee = gen_early_epi()
    seg["UDS"] = it_odd("udsA", "S", "D1", False) + it_even("udsB", "S", "S", False, xops=ee, vmn="need", raw=fake("need", 4) + fake("x", 12))
    seg["USS"] = it_odd("ussA", "S", "S", False) + it_even("ussB", "S", "S", False, ["s_sub_u32 s47, s47, 1", "s_cmp_lg_u32 s47, 0", "s_cbranch_scc1 L_uss"])
    g1, g2 = gp1(), gp2()
    vd = lambda adv: [(["s_mov_b32 m0, s53"] if q == 0 else [], f"buffer_load_dwordx4 v240, s[16:19], s55 offen offset:{q * 1024}{KSC} lds", "v") for q in range(4)]
    advv = ["s_add_u32 s55, s55, 0x8000", "s_add_u32 s53, s53, 0x8000", "s_and_b32 s53, s53, 0x1ffff"]
    n1, n2, n3 = PRE_SPLIT
    g1a = [(advv + list(g1[0][0]), g1[0][1], g1[0][2])] + g1[1:n1]
    xa, xb, xc, xd = vd(0) + g1a, vd(0) + g1[n1:n2], g1[n2:n3] + g2[:12], g1[n3:] + g2[12:]
    seg["USSp"] = it_odd("usspA", "S", "S", False, extra=xa, vmn="need", raw=fake("need", 4) + fake("x", 12)) + \
                  it_even("usspB", "S", "S", False, extra=xb, vmn="need", raw=fake("need", 4) + fake("x", 4 + len(xa)))
    seg["USSm"] = it_odd("ussmA", "S", "S", True, extra=xc, vmn="need", raw=fake("need", 4) + fake("x", len(xa) - 4 + len(xb))) + \
                  it_even("ussmB", "S1", "S", True, extra=xd, vmn="need", raw=fake("need", 4) + fake("x", len(xb) - 4 + len(xc)))
    flat = lambda ops: [y for pre, ins, tag in ops for y in list(pre) + [ins]]
    w01 = chunk(0, a=False) + chunk(1, a=False)
    w01 = [(advv + list(w01[0][0]), w01[0][1], w01[0][2])] + w01[1:]
    ya, yb = vd(0) + w01 + [([], HPOLL, "hp")], vd(0) + sentinels()
    seg["UDDm7"] = it_odd("uddm7A", "D", "D", True, extra=ya, vmn="need", raw=fake("need", 4) + fake("x", 12)) + \
                   it_even("uddm7B", "D1", "D", True, extra=yb, vmn="need", raw=fake("need", 4) + fake("x", 4 + len(ya)))
    za = ee_one(2, 32) + flat(chunk(0, w=False) + chunk(1, w=False))
    zb = ee_one(3, 32) + flat(chunk(2, w=False) + chunk(3, w=False))
    seg["UDSm"] = it_odd("udsmA", "S", "D1", True, extra=g2[:12], xops=za, vmn="need", raw=fake("need", 4) + fake("x", len(ya) - 4 + len(yb))) + \
                  it_even("udsmB", "S1", "S", True, extra=g2[12:], xops=flat(chunk(4, w=False) + chunk(5, w=False)) + zb, vmn="need",
                          raw=fake("need", 4) + fake("x", len(yb) - 4 + 12 + 12))
    seg["E"], tail_slow = gen_tail()
    seg["EE"] = []
    HC = ["v_cmp_ne_u32 vcc, 1, v207", "s_nop 0"]
    gpl = []
    for c in range(6):
        for pre, ins, tag in chunk(c, w=False): gpl += list(pre) + [ins]
    pf2 = [] if PFOG else PFL[PFM:]
    hpub = ["v_add_u32 v236, s58, v240", f"buffer_store_dword v249, v248, s[20:23], s98 offen{STF}"]

    out = list(seg["G"])
    out += ["s_cmp_lg_u32 s30, 0", "s_cbranch_scc1 L_pu"] + seg["Pm"] + ([stamp(9).t] if DIAG and not DIAG2 else []) + hpub
    out += ["L_uds:"] + pf2 + st4(4) + seg["UDS"] + st4(5) + seg["EE"] + st4(6)
    out += ["s_lshl_b32 s47, s30, 1", "s_sub_u32 s47, 12, s47", "s_cmp_eq_u32 s47, 0", "s_cbranch_scc1 L_ussp"]
    out += [f".p2align {AL}", "L_uss:"] + seg["USS"]
    out += ["L_ussp:"] + st4(7) + ["s_waitcnt vmcnt(20)"] + HC + ["s_cbranch_vccnz L_hwait", "L_hok:"] + seg["USSp"] + seg["USSm"]
    out += ["L_fin:"] + st4(8) + seg["E"]
    out += ["L_f_end:", "s_endpgm"]
    out += ["L_pu:"] + seg["Pu"]
    if DIAG and not DIAG2: out.append(stamp(9).t)
    out += (hpub + st4(2) if os.environ.get("HS") else st4(2) + hpub) + ["s_sub_u32 s47, s30, 1", "s_cmp_eq_u32 s47, 0", "s_cbranch_scc1 L_uddm"]
    out += [f".p2align {AL}", "L_udd:"] + seg["UDD"]
    out += ["s_cmp_eq_u32 s30, 7", "s_cbranch_scc1 L_last7"]
    out += ["L_uddm:"] + pf2 + st4(3) + seg["UDDm"]
    out += ["s_branch L_uds"]
    out += ["L_last7:"] + seg["UDDm7"] + ["s_waitcnt vmcnt(12)"] + HC + ["s_cbranch_vccnz L_h2wait", "L_h2ok:"] + seg["UDSm"] + ["s_branch L_fin"]
    out += spin("h", HPOLL, HC[0]) + spin("h2", HPOLL, HC[0])
    out += tail_slow + skip_stub
    if FAST: out += gen_safe()
    out += ["L_xnwait:", "s_mov_b32 s44, 0x40000", "L_xnspin:", "s_sub_u32 s44, s44, 1", "s_cbranch_scc1 L_xnok", "s_sleep 2",
            XPOLL, "s_waitcnt vmcnt(0)",
            XCMP, "s_cbranch_vccnz L_xnspin", "s_branch L_xnok"]
    out += ["L_kvwait:", "s_mov_b32 s44, 0x40000", "L_kvspin:", "s_sub_u32 s44, s44, 1", "s_cbranch_scc1 L_kvok", "s_sleep 2",
            "buffer_load_dword v244, v243, s[20:23], s59 offen sc1", "s_waitcnt vmcnt(0)",
            "v_cmp_ne_u32 vcc, 1, v244", "s_cbranch_vccnz L_kvspin", "s_branch L_kvok"]
    for site, par, tq in stubs:
        out += [f"L_stub_{site}:", f"s_call_b64 s[62:63], L_rare_{par}{tq}", f"s_branch L_ret_{site}"]
    for par, tq in sorted({(par, tq) for _, par, tq in stubs}):
        out += [f"L_rare_{par}{tq}:"] + gen_rare(par, QSET[tq])
    for path in (["G", "Pu", "UDD", "UDD", "UDDm", "UDS", "EE", "USS", "USS", "USSp", "USSm", "E"], ["G", "Pm", "UDS"], ["UDD", "UDDm7", "UDSm", "E"]):
        tx = []
        for k in path: tx += seg[k]
        for e in lint(tx, "f")[:40]: print(e)
    return out

KVPUB = int(os.environ.get("KVPUB", "24" if ASYM else "23"))
STPV = float(os.environ.get("STPV", "23" if ASYM else "26"))
STP = float(os.environ.get("STP", "29"))
STPK1 = float(os.environ.get("STPK1", "50"))
VW0 = int(os.environ.get("VW0", "340"))
WP = int(os.environ.get("WP", "14"))
XNC = int(os.environ.get("XNC", "540"))
LCAP = int(os.environ.get("LCAP", "3"))
WSH = int(os.environ.get("WSH", "18"))
XP = float(os.environ.get("XP", "5"))
PFOG = int(os.environ.get("PFOG", "0"))
AL = int(os.environ.get("AL", "3"))
XBAR = int(os.environ.get("XBAR", "1"))
NTX = os.environ.get("NTX", "")
PFM = int(os.environ.get("PFM", "2"))
PFL = [] if os.environ.get("NOPFO") else ["buffer_load_dword v253, v252, s[4:7], s39 offen", "buffer_load_dword v251, v252, s[12:15], s39 offen", "buffer_load_dword v250, v252, s[24:27], s39 offen"][:3 if os.environ.get("NTX") else 2]
WQW = int(os.environ.get("WQW", "20"))
ONE1 = int(os.environ.get("ONE1", "1"))
GUZ = int(os.environ.get("GUZ", "1"))
KD = int(os.environ.get("KD", "0"))
PFVP = int(os.environ.get("PFVP", "3"))
KPD = int(os.environ.get("KPD", "0"))
HYB = int(os.environ.get("HYB", "1"))
HA = int(os.environ.get("HA", "0xf0"), 0)
HW = int(os.environ.get("HW", "0xfa"), 0)
HE = int(os.environ.get("HE", "12"))
HP1 = int(os.environ.get("HP1", "0"))
HP2 = int(os.environ.get("HP2", "2"))
HP3 = int(os.environ.get("HP3", "0"))
CPF = int(os.environ.get("CPF", "1"))
if __name__ == "__main__":
    print(len(gen_f_kernel()))
```

```python
from asmlib import *
from sched16 import *
import math, os, re
MF = "v_mfma_f32_16x16x32_bf16"
KNAME = "recurrent_scan__compressed_kv_cla__glu_gated_geglu__prompt_kernel"
WSB = int(os.environ.get("WSB", "0"), 0)
WS_XN = WSB + 0x0
WS_KV = WSB + 0x200000
WS_ACT = WSB + 0x2200000
WS_PART = WSB + 0x4000000
WS_FLAG = WSB + 0x5000000
ACT_ROW = 184 * 1024
LOG2E = 1.4426950408889634
KSCALE = LOG2E / math.sqrt(128.0)
BIG = 2.0 ** 100
THR = float(os.environ.get("THR", "40"))
FAST = int(os.environ.get("FAST", "1"))
NX = int(os.environ.get("NX", "8")) if FAST else 0
NXR = int(os.environ.get("NXR", "10"))
SH = float(os.environ.get("SH", "64"))
LMAX = 2.0 ** float(os.environ.get("LMAXE", "60"))
STF = " sc1"
CH = os.environ.get("CH", "gtqpQG")
ASYM = int(os.environ.get("ASYM", "0"))
LV = int(os.environ.get("LV", "1"))
BYTEF = int(os.environ.get("BYTEF", "0"))
XPOLL = "buffer_load_dword v244, v243, s[4:7], 0 offen sc1" if not ASYM else "buffer_load_dwordx2 v[224:225], v243, s[4:7], 0 offen sc1"
XSH = int(os.environ.get("XSH", "4"))
XCMP = "v_cmp_ne_u32 vcc, 0x01010101, v244" if BYTEF else ("v_cmp_gt_u32 vcc, 16, v224" if ASYM else "v_cmp_gt_u32 vcc, 16, v244")
XPL = int(os.environ.get("XPL", "418"))
VWP = int(os.environ.get("VWP", "14"))
GPW = int(os.environ.get("GPW", "7"))
ASC = os.environ.get("ASC", " sc1")
XSC = os.environ.get("XSC", " sc1")
KSC = os.environ.get("KSC", " sc1")
NT = os.environ.get("NT", "")
NTV = os.environ.get("NTV", "")
PFA = int(os.environ.get("PFA", "1"))
PFW = os.environ.get("PFW", "vgq")
NTD = os.environ.get("NTD", "")
NTA = " nt" if "a" in NTD else ""
ALEAD = int(os.environ.get("ALEAD", "2"))
EARLY = int(os.environ.get("EARLY", "0"))
OPF = int(os.environ.get("OPF", "0"))
WSB = int(os.environ.get("WSB", "0"), 0)
DIAG4 = bool(os.environ.get("DIAG4"))
st4 = lambda k: [stamp(k).t] if DIAG4 else []
LEADP = int(os.environ.get("LEADP", "14"))
GBS_ = int(os.environ.get("GBS_", "20"))
GBD_ = int(os.environ.get("GBD_", "22"))
DIAG3 = bool(os.environ.get("DIAG3"))
DIAG2 = [int(x) for x in os.environ.get("DIAG2", "").split(",") if x]
def vr(b, n=4): return f"v[{b}:{b + n - 1}]"
def ar(b, n=4): return f"a[{b}:{b + n - 1}]"
def srd(p, d, lo, size):
    p(f"s_mov_b32 s{d}, s{lo}")
    p(f"s_mov_b32 s{d + 1}, s{lo + 1}")
    p(f"s_mov_b32 s{d + 2}, {size:#x}")
    p(f"s_mov_b32 s{d + 3}, 0x20000")

def wave_reduce(p, regs_):
    steps = ["quad_perm:[1,0,3,2] row_mask:0xf bank_mask:0xf", "quad_perm:[2,3,0,1] row_mask:0xf bank_mask:0xf",
             "row_half_mirror row_mask:0xf bank_mask:0xf", "row_mirror row_mask:0xf bank_mask:0xf",
             "row_bcast:15 row_mask:0xa bank_mask:0xf", "row_bcast:31 row_mask:0xc bank_mask:0xf"]
    for st in steps:
        p("s_nop 1")
        for r in regs_: p(f"v_add_f32_dpp v{r}, v{r}, v{r} {st}")
    p("s_nop 1")
def round_bf16(p, dst, src):
    p(f"v_cvt_pk_bf16_f32 v{dst}, v{src}, v{src}")
    p(f"v_and_b32 v{dst}, 0xffff0000, v{dst}")

def emit_ln(p):
    for r in range(2):
        for k in range(4):
            p(f"v_lshlrev_b32 v{8 + 8 * r + 2 * k}, 16, v{4 * r + k}")
            p(f"v_and_b32 v{9 + 8 * r + 2 * k}, 0xffff0000, v{4 * r + k}")
    for r in range(2):
        b = 8 + 8 * r
        p(f"v_add_f32 v{24 + r}, v{b}, v{b + 1}")
        for k in range(2, 8): p(f"v_add_f32 v{24 + r}, v{24 + r}, v{b + k}")
    wave_reduce(p, [24, 25])
    p("v_readlane_b32 s58, v24, 63")
    p("v_readlane_b32 s59, v25, 63")
    p(f"v_mov_b32 v30, {f2u(1.0 / 512):#x}")
    p("s_nop 1")
    for r in range(2): p(f"v_mul_f32 v{26 + r}, s{58 + r}, v30")
    for r in range(2):
        b = 8 + 8 * r
        for k in range(8): p(f"v_sub_f32 v{32 + k}, v{b + k}, v{26 + r}")
        p(f"v_mul_f32 v{24 + r}, v32, v32")
        for k in range(1, 8): p(f"v_fmac_f32 v{24 + r}, v{32 + k}, v{32 + k}")
    wave_reduce(p, [24, 25])
    p("v_readlane_b32 s58, v24, 63")
    p("v_readlane_b32 s59, v25, 63")
    p("s_nop 1")
    for r in range(2):
        p(f"v_mul_f32 v{28 + r}, s{58 + r}, v30")
        round_bf16(p, 28 + r, 28 + r)
        p(f"v_add_f32 v{28 + r}, {f2u(1e-5):#x}, v{28 + r}")
        round_bf16(p, 28 + r, 28 + r)
        p(f"v_sqrt_f32 v{28 + r}, v{28 + r}")
        p("s_nop 0")
        round_bf16(p, 28 + r, 28 + r)
        p(f"v_rcp_f32 v{28 + r}, v{28 + r}")
        round_bf16(p, 26 + r, 26 + r)
    for r in range(2):
        b = 8 + 8 * r
        for k in range(8): p(f"v_sub_f32 v{b + k}, v{b + k}, v{26 + r}")
        for k in range(4): p(f"v_cvt_pk_bf16_f32 v{32 + k}, v{b + 2 * k}, v{b + 2 * k + 1}")
        for k in range(4):
            p(f"v_lshlrev_b32 v{b + 2 * k}, 16, v{32 + k}")
            p(f"v_and_b32 v{b + 2 * k + 1}, 0xffff0000, v{32 + k}")
        for k in range(8): p(f"v_mul_f32 v{b + k}, v{b + k}, v{28 + r}")
        for k in range(4): p(f"v_cvt_pk_bf16_f32 v{40 + 4 * r + k}, v{b + 2 * k}, v{b + 2 * k + 1}")

def ln_ops(g0, g1):
    p = Prog(); emit_ln(p)
    ops = []; lag = False
    for it in p.items:
        t = it.t
        if t.startswith("s_nop"): lag = True; continue
        t = re.sub(r"\bv(\d+)\b", lambda m: "v%d" % (int(m.group(1)) + 176 if int(m.group(1)) < 8 else int(m.group(1)) + 128), t)
        ops.append(Op(t, g0, g1, [ops[-1]] if lag else [], lag=2)); lag = False
    return ops

def Sreg(par, qb, kb): return par * 64 + qb * 16 + kb * 4
def Preg(qb, s): return 128 + qb * 8 + s * 4
def NEGM(qb): return 160 + 4 * qb
def LACC(qb): return 176 + 4 * qb
ONES = 192
MX = [196, 197]; VTM = 198; VTMASK = 199; VCUR, VPREV = 200, 201; TMP = [202, 203, 204, 205]
def Qreg(qb, t): return (t // 2) * 64 + qb * 8 + (t % 2) * 4
def Oreg(qb, db): return [32, 96, 128, 160][qb] + db * 4
def Fbuf(f): return 192 + (f % 16) * 4
S_THR = 61
NPRE = int(os.environ.get("NPRE", "8"))

def tail_reads(base_reg, off):
    return [f"ds_read_b128 {ar(Fbuf(f))}, v{base_reg} offset:{off + (vlds(f) if off == 49152 else f) * 1024}" for f in range(NPRE)]

def predone(qs): return [(qb, r) for r0 in range(0, NXR, 4) for qb in qs for r in range(r0, min(r0 + 4, NXR))] if "p" in CH else [(qs[0], r) for r in range(NX)]
def vlds(k): return (k % 2) * 8 + k // 2 if "p" in CH else k
QSET = {'D': [0, 1, 2, 3], 'S': [0, 1], 'D1': [0, 1, 3], 'S1': [1]}
def gen_iter(name, tq, tp, parq, masked, odd_q, kreg, koff, vreg, voff, nreg, noff, first_pv=False, end_ops=(), swap=False, mid_ops=(), vmn=16, extra=None, raw=False, salu=(), xops=()):
    qq = QSET[tq]
    qp = QSET[tp]
    parp = 1 - parq
    lv = LV and tq == 'D'
    mf = []; use = {}; lastq = {}; lastuse = {}
    qs = [(kb, t, qb) for kb in range(4) for t in range(4) for qb in qq]
    if "q" in CH: qs = [(kb, 2 * tp + e, qb) for kb in range(4) for tp in range(2) for qb in qq for e in range(2)]
    if "Q" in CH: qs = [(kb, t if i % 2 == 0 else 3 - t, qb) for kb in range(4) for i, qb in enumerate(qq) for t in range(4)]
    for kb, t, qb in qs:
        f = kb * 4 + t
        use.setdefault(f, len(mf))
        d = Sreg(parq, qb, kb)
        mf.append(f"{MF} {vr(d)}, {ar(Fbuf(f))}, {ar(Qreg(qb, t))}, {vr(NEGM(qb)) if (qb, kb) not in lastq else vr(d)}")
        lastq[(qb, kb)] = len(mf) - 1
        lastuse[f] = len(mf) - 1
    firstp = {}
    if "p" in CH: ps = [(db, qb, s) for db in range(9) for qb in qp for s in range(2)]
    else: ps = [(db, qb, s) for s in range(2) for db in range(9) for qb in qp]
    for db, qb, s in ps:
        if db == 8:
            if lv and qb >= 2: continue
            mf.append(f"{MF} {vr(LACC(qb))}, {vr(ONES)}, {vr(Preg(qb, s))}, {0 if (first_pv and s == 0) else vr(LACC(qb))}")
            continue
        f = 16 + (2 * db + s if "p" in CH else s * 8 + db)
        use.setdefault(f, len(mf))
        o = Oreg(qb, db)
        firstp.setdefault((qb, s), len(mf))
        mf.append(f"{MF} {ar(o)}, {ar(Fbuf(f))}, {vr(Preg(qb, s))}, {0 if (first_pv and s == 0) else ar(o)}")
        lastuse[f] = len(mf) - 1
    n = len(mf)
    S = Sched16(mf)
    gB = n - (GBS_ if len(qp) == 2 else GBD_)
    LEAD = LEADP
    for f in range(32):
        tag = ("F", "n", f) if f < NPRE else ("F", "c", f)
        if use[f] > 0: S.add_first(use[f] - 1, Wait("lgkm", tag))
    if isinstance(vmn, int): S.add_first(gB, Ins(f"s_waitcnt vmcnt({vmn}) lgkmcnt(0)"))
    else:
        S.add_first(gB, Ins("s_waitcnt lgkmcnt(0)")); S.add_first(gB + 1, Wait("vm", vmn))
    S.add_first(gB + 1, "s_barrier")
    S.add_first(n - 1, Wait("lgkm", ("F", "x", 0)))
    R = []
    todo = list(range(NPRE, 32))
    for k, f in enumerate(todo):
        e = lastuse[f - 16] if f >= 16 else 0
        dl = min(use[f] - LEAD + 4, gB - 5 - (31 - f))
        e = max(e, min(use[f] - LEAD - 8, dl - 4), 0)
        dl = max(dl, e)
        assert dl < use[f] - 1, (name, f, dl, e)
        if f < 16: ins = f"ds_read_b128 {ar(Fbuf(f))}, v{kreg} offset:{koff + f * 1024}"
        else: ins = f"ds_read_b128 {ar(Fbuf(f))}, v{vreg} offset:{voff + vlds(f - 16) * 1024}"
        R.append(Op(ins, max(e, 0), max(dl, 0), tag=("F", "c", f)))
    for f, ins in enumerate(tail_reads(nreg, noff)):
        R.append(Op(ins, max(gB + 1, lastuse[f + 16]), min(n - 2, gB + 3 + 2 * f), tag=("F", "x", f)))
    D = []
    span = gB - 8
    for q in range(4):
        D.append(Op(f"buffer_load_dwordx4 v240, s[16:19], s55 offen offset:{q * 1024}{KSC} lds", 2 + q * span // 4, 2 + (q + 1) * span // 4 - 1, tag="kv"))
    for x in ["s_add_u32 s54, s54, 0x8000", "s_add_u32 s52, s52, 0x8000", "s_and_b32 s52, s52, 0x1ffff", "s_mov_b32 m0, s52"]:
        D.append(Op(x, 0, gB))
    tl = n - 3 - (gB + 1)
    for q in range(4):
        D.append(Op(f"buffer_load_dwordx4 v240, s[16:19], s54 offen offset:{q * 1024}{KSC} lds", gB + 1 + q * tl // 4, gB + 1 + (q + 1) * tl // 4, tag="kv"))
    D.append(Op("s_mov_b32 m0, s53", 0, n - 1))
    if extra is not None:
        D = []
        nv = len(extra)
        for i, (pre, ins, tag) in enumerate(extra):
            for x in pre: D.append(Op(x, 0, n - 3))
            D.append(Op(ins, 1 + i * (n - 6) // nv, 1 + (i + 1) * (n - 6) // nv + 2, tag=tag, deps=[D[-1]] if pre else []))
    E = []; C = []; AD = []
    for s in range(2):
        for qb in qp:
            b = Sreg(parp, qb, 2 * s)
            dl = firstp[(qb, s)] - 2
            es = [Op(f"v_exp_f32 v{b + r}, v{b + r}", 0, dl - 1) for r in range(8)]
            dn = [(qb, 8 * s + r) in predone(qp) for r in range(8)]
            E += [e for r, e in enumerate(es) if not dn[r]]
            if lv and qb >= 2:
                for r in range(8):
                    L = LACC(qb)
                    AD.append(Op(f"v_mov_b32 v{L}, v{b + r}" if (first_pv and s == 0 and r == 0) else f"v_add_f32 v{L}, v{L}, v{b + r}", 0, n - 1, [] if dn[r] else [es[r]]))
            C += [Op(f"v_cvt_pk_bf16_f32 v{Preg(qb, s) + k}, v{b + 2 * k}, v{b + 2 * k + 1}", 0, dl, [e for i, e in enumerate(es) if i // 2 == k and not dn[i]]) for k in range(4)]
    M = []
    mins = {}
    vals = []
    mq = [qq[-1] if odd_q else qq[-2]]
    first = True
    for kb in range(4):
        for qb in qq:
            b = Sreg(parq, qb, kb)
            e0 = lastq[(qb, kb)] + (5 if len(qq) > 1 else 8)
            if masked and qb in mq:
                for r in range(4):
                    kk = 16 * kb + r
                    tm = TMP[r % 2]
                    M.append(Op(f"v_subrev_f32 v{tm}, {f2u(kk * BIG):#x}, v{VTMASK}", 0, n - 3))
                    M.append(Op(f"v_min_f32 v{b + r}, v{b + r}, v{tm}", e0, n - 3))
                    mins[b + r] = M[-1]
            if FAST: continue
            if first:
                M.append(Op(f"v_max_f32 v{MX[0]}, v{b}, v{b + 1}", e0, n - 3)); first = False
            else:
                M.append(Op(f"v_max3_f32 v{MX[0]}, v{MX[0]}, v{b}, v{b + 1}", e0, n - 3))
            M.append(Op(f"v_max3_f32 v{MX[0]}, v{MX[0]}, v{b + 2}, v{b + 3}", e0, n - 3))
    if not FAST: M.append(Op(f"v_cmp_lt_f32 vcc, s{S_THR}, v{MX[0]}", 0, n - 2))
    for qb, r in predone(qq):
        b = Sreg(parq, qb, 0) + r
        E.append(Op(f"v_exp_f32 v{b}, v{b}", lastq[(qb, r // 4)] + 8, n - 1, [mins[b]] if b in mins else []))
    X = []
    if swap:
        X = [Op(f"v_xor_b32 v{VCUR}, 0x10000, v{VCUR}", gB, n - 1), Op(f"v_xor_b32 v{VPREV}, 0x10000, v{VPREV}", gB, n - 1, [R[-1]])]
    XO = []
    for i, x in enumerate(xops):
        prev_trans = XO and XO[-1].t.startswith(TRANS)
        XO.append(Op(x, 5 + (i * (n - 12)) // len(xops), min(n - 2, 5 + (i * (n - 12)) // len(xops) + 4), tag="xo"))
    k = schedule(S, [R, D, E, C, M, X, XO, AD], 0, n - 1, name=name)
    assert all(o.g < gB for o in R if o.tag[1] == 'c') and all(o.g > gB for o in R if o.tag[1] == 'x'), name
    if extra is None:
        g = D[7].g + 1
        for x in ["s_add_u32 s55, s55, 0x8000", "s_add_u32 s53, s53, 0x8000", "s_and_b32 s53, s53, 0x1ffff"] + list(mid_ops):
            while S.first[g]: g += 1
            S.add_first(g, x); g += 1
        assert g <= D[-1].g, (name, g, D[-1].g)
    g = 0
    for x in salu:
        while g < n - 1 and S.first[g]: g += 1
        for y in (x if isinstance(x, list) else [x]): S.add_first(g, y)
        g = min(g + 1, n - 1)
    for x in end_ops: S.add_last(n - 1, x)
    print(S.report(f"{name}(k={k})"))
    pre = [Ins(f"ds_read_b128 {ar(Fbuf(f))}, v0", ("F", "n", f)) for f in range(NPRE)] + [Wait("lgkm", ("F", "n", 0))]
    if raw: pre = list(raw) + pre
    return [i.t for i in resolve(S.items(), pre)]

def allreduce4(p, op, src, t0, t1):
    p(f"v_mov_b32 v{t0}, v{src}")
    p(f"v_mov_b32 v{t1}, v{src}")
    p("s_nop 1")
    p(f"v_permlane32_swap_b32 v{t0}, v{t1}")
    p("s_nop 1")
    p(f"{op} v{t0}, v{t0}, v{t1}")
    p(f"v_mov_b32 v{t1}, v{t0}")
    p("s_nop 1")
    p(f"v_permlane16_swap_b32 v{t0}, v{t1}")
    p("s_nop 1")
    p(f"{op} v{t0}, v{t0}, v{t1}")

def rowmax(p, par, qb):
    b = Sreg(par, qb, 0)
    p(f"v_max3_f32 v{MX[1]}, v{b}, v{b + 1}, v{b + 2}")
    for k in range(3, 15, 2): p(f"v_max3_f32 v{MX[1]}, v{MX[1]}, v{b + k}, v{b + k + 1}")
    p(f"v_max_f32 v{MX[1]}, v{MX[1]}, v{b + 15}")
    allreduce4(p, "v_max_f32", MX[1], TMP[0], TMP[1])

def gen_rare(par, qbs):
    p = Prog()
    p("s_nop 15")
    for qb in qbs:
        rowmax(p, par, qb)
        p(f"v_max_f32 v{TMP[0]}, 0, v{TMP[0]}")
        p(f"v_sub_f32 v{TMP[1]}, 0, v{TMP[0]}")
        p(f"v_exp_f32 v{TMP[1]}, v{TMP[1]}")
        for r in range(4): p(f"v_sub_f32 v{NEGM(qb) + r}, v{NEGM(qb) + r}, v{TMP[0]}")
        for r in range(16): p(f"v_sub_f32 v{Sreg(par, qb, 0) + r}, v{Sreg(par, qb, 0) + r}, v{TMP[0]}")
        for r in range(4): p(f"v_mul_f32 v{LACC(qb) + r}, v{LACC(qb) + r}, v{TMP[1]}")
        for r in range(0, 32, 2):
            a = Oreg(qb, 0) + r
            p(f"v_accvgpr_read_b32 v{TMP[2]}, a{a}")
            p(f"v_accvgpr_read_b32 v{TMP[3]}, a{a + 1}")
            p(f"v_mul_f32 v{TMP[2]}, v{TMP[2]}, v{TMP[1]}")
            p(f"v_mul_f32 v{TMP[3]}, v{TMP[3]}, v{TMP[1]}")
            p(f"v_accvgpr_write_b32 a{a}, v{TMP[2]}")
            p(f"v_accvgpr_write_b32 a{a + 1}, v{TMP[3]}")
    p("s_nop 1")
    p("s_setpc_b64 s[62:63]")
    return [i.t for i in p.items]


GPUB = int(os.environ.get("GPUB", "16"))
OB = int(os.environ.get("OB", "2"))
GB2 = int(os.environ.get("GB2", "1"))
GPOLL = int(os.environ.get("GPOLL", "20"))
CPUB = int(os.environ.get("CPUB", "2"))
CTXPF = int(os.environ.get("CTXPF", "0"))
PUB0 = int(os.environ.get("PUB0", "8"))
PUBP = int(os.environ.get("PUBP", "12"))
TP = float(os.environ.get("TP", "4.25"))
TP0 = float(os.environ.get("TP0", "4"))
GPOS = int(os.environ.get("GPOS", "4"))
WR = int(os.environ.get("WR", "0"))
WRP = float(os.environ.get("WRP", "3"))
UNP = int(os.environ.get("UNP", "0"))
LST = int(os.environ.get("LST", "8"))
LSP = int(os.environ.get("LSP", "10"))
CPOLL = int(os.environ.get("CPOLL", "100"))
CCHK = int(os.environ.get("CCHK", "136"))
def spin(name, load, cmp):
    return [f"L_{name}wait:", "s_mov_b32 s44, 0x40000", f"L_{name}spin:", "s_sub_u32 s44, s44, 1", f"s_cbranch_scc1 L_{name}ok", "s_sleep 1",
            load, "s_waitcnt vmcnt(0)", cmp, f"s_cbranch_vccnz L_{name}spin", f"s_branch L_{name}ok"]

def o_epi(qb, scr, pk):
    out = []
    for t in range(4):
        R = scr(t); P = pk(t)
        a = Oreg(qb, 2 * t)
        L = LACC(qb)
        rd = [f"v_accvgpr_read_b32 v{R + k}, a{a + k}" for k in range(8)]
        if t: ops = rd
        elif LV and qb >= 2:
            ops = [f"v_mov_b32 v{L + 1}, v{L}"] + rd[:2] + [f"v_permlane32_swap_b32 v{L}, v{L + 1}"] + rd[2:3] + [f"v_add_f32 v{L}, v{L}, v{L + 1}", f"v_mov_b32 v{L + 1}, v{L}"] + \
                  rd[3:5] + [f"v_permlane16_swap_b32 v{L}, v{L + 1}"] + rd[5:6] + [f"v_add_f32 v{L}, v{L}, v{L + 1}", f"v_rcp_f32 v{TMP[qb]}, v{L}"] + rd[6:]
        elif not ONE1: ops = [f"v_rcp_f32 v{TMP[qb]}, v{L}"] + rd
        else:
            ops = [f"v_mov_b32 v{L + 1}, v{L}"] + rd[:2] + [f"v_permlane32_swap_b32 v{L}, v{L + 1}"] + rd[2:3] + [f"v_mov_b32 v{L + 1}, v{L}"] + rd[3:5] + \
                  [f"v_permlane16_swap_b32 v{L}, v{L + 1}"] + rd[5:7] + [f"v_rcp_f32 v{TMP[qb]}, v{L}"] + rd[7:]
        ops += [f"v_mul_f32 v{R + k}, v{R + k}, v{TMP[qb]}" for k in range(8)]
        ops += [f"v_cvt_pk_bf16_f32 v{P + k}, v{R + 2 * k}, v{R + 2 * k + 1}" for k in range(4)]
        out.append((ops, f"buffer_store_dwordx4 {vr(P)}, v{240 if qb % 2 == 0 else 246}, s[20:23], s{100 + qb // 2} offen offset:{t * 1024}{STF}"))
    return out

NK = 46; NC = 23
SL = [8, 9, 0, 1, 2, 3, 4, 5]
def wofs(n): return SL[(n // 2) % 8] * 16384 + (n % 2) * 8192
def areg(n): return 128 + (n % 16) * 8
def areg2(n, tb): return vr(96 + (n - 8) * 8 + 4 * tb) if 8 <= n < 12 else ar(areg(n) + 4 * tb)
def w_ops(n):
    gp = n < 14
    j = n if gp else n - 14
    pre = [f"s_add_u32 m0, s{[51, 56, 50][wofs(n) >> 16]}, {wofs(n) & 0xffff if wofs(n) < 0x20000 else wofs(n)}", f"s_add_u32 s58, s{48 if gp else 49}, {j * 32768}"]
    wsrd = "s[12:15]" if gp else "s[8:11]"
    return [(pre, f"buffer_load_dwordx4 v242, {wsrd}, s58 offen lds", ("cw", n // 2)),
            ([], f"buffer_load_dwordx4 v243, {wsrd}, s58 offen offset:1024 lds", ("cw", n // 2))]
def a_ops(n):
    gp = n < 14
    j = n if gp else n - 14
    pre = [f"s_add_u32 s59, s{64 if gp else 65}, {j * 1024}"] if j % 2 == 0 else []
    return [(pre, f"buffer_load_dwordx4 {areg2(n, 0)}, v240, s[20:23], s59 offen offset:{(j % 2) * 1024}{ASC}", ("ca", n // 2)),
            ([], f"buffer_load_dwordx4 {areg2(n, 1)}, v246, s[20:23], s59 offen offset:{(j % 2) * 1024}{ASC}", ("ca", n // 2))]
def chunk(ch, w=True, a=True):
    return (w_ops(2 * ch) + w_ops(2 * ch + 1) if w else []) + (a_ops(2 * ch) + a_ops(2 * ch + 1) if a else [])
KEEP = 6 * 16384
GB = [36, 37, 41]

def tail_setup():
    sa = ["s_lshr_b32 s35, s34, 1", "s_sub_u32 s31, 15, s30", ["s_bitcmp1_b32 s34, 0", "s_cselect_b32 s31, s31, s30"], "s_and_b32 s45, s29, 3",
          "s_lshl_b32 s46, s31, 3", "s_add_u32 s46, s46, s28", f"s_mul_i32 s46, s46, {ACT_ROW}",
          f"s_add_u32 s46, s46, {WS_ACT:#x}", f"s_mul_i32 s47, s35, {14 * 1024}", "s_add_u32 s64, s46, s47", f"s_add_u32 s64, s64, {128 * 1024}",
          "s_lshl_b32 s47, s35, 15", "s_add_u32 s65, s46, s47",
          "s_lshl_b32 s46, s45, 8", "s_lshl_b32 s47, s28, 13", "s_add_u32 s46, s46, s47", f"s_mul_i32 s47, s35, {14 * 32 * 1024}",
          "s_add_u32 s48, s46, s47", "s_lshl_b32 s47, s35, 20", "s_add_u32 s49, s46, s47", "s_lshl_b32 s50, s28, 11",
          "s_mov_b32 s8, s4", "s_mov_b32 s9, s5", "s_mov_b32 s38, 0", "s_mov_b32 s12, s96", "s_mov_b32 s13, s97", f"s_mov_b32 s14, {1792 * 1024}",
          "s_and_b32 s46, s34, 1", "s_lshl_b32 s46, s46, 2", "s_add_u32 s3, s99, s46", "s_lshl_b32 s46, s35, 13", "s_add_u32 s3, s3, s46",
          "s_lshl_b32 s51, s31, 2", "s_add_u32 s51, s51, s45", "s_lshl_b32 s56, s51, 18", f"s_add_u32 s56, s56, {WS_PART:#x}",
          "s_lshl_b32 s46, s28, 16", "s_lshl_b32 s47, s35, 13", "s_add_u32 s40, s56, s46", "s_add_u32 s40, s40, s47",
          "s_lshl_b32 s46, s35, 16", "s_add_u32 s56, s56, s46", "s_add_u32 s56, s56, s50", f"s_mov_b32 s58, {KEEP + 16384 - 0x10000}",
          ["s_cmp_eq_u32 s28, s35", "s_cselect_b32 s40, 0x7ff00000, s40", f"s_cselect_b32 s58, {KEEP - 0x10000}, s58"]]
    for k in range(3): sa += [f"s_add_u32 s46, s35, {k + 1}", "s_and_b32 s46, s46, 3", "s_lshl_b32 s46, s46, 13", f"s_add_u32 s{GB[k]}, s56, s46"]
    sa += ["s_lshl_b32 s94, s51, 9", f"s_add_u32 s94, s94, {WS_FLAG:#x}", "s_lshl_b32 s46, s35, 7", "s_add_u32 s95, s94, s46",
           "s_lshl_b32 s46, s31, 17", "s_lshl_b32 s47, s35, 14", "s_add_u32 s46, s46, s47", "s_lshl_b32 s47, s45, 8", "s_add_u32 s46, s46, s47",
           "s_lshl_b32 s47, s28, 6", "s_add_u32 s57, s46, s47", "s_lshl_b32 s46, s29, 12", "s_add_u32 s100, s46, s32", "s_add_u32 s101, s46, s33",
           "s_and_b32 s32, s30, 1", "s_lshl_b32 s32, s32, 16", "s_xor_b32 s33, s32, 0x10000", "s_add_u32 s51, s50, s32", "s_add_u32 s56, s50, s33",
           "s_add_u32 s58, s58, s33"]
    va = ["v_lshrrev_b32 v244, 4, v254", "v_and_b32 v245, 15, v254", "v_lshlrev_b32 v243, 1, v244", "v_xor_b32 v245, v245, v243",
          "v_lshlrev_b32 v244, 10, v244", "v_lshl_add_u32 v242, v245, 4, v244", "v_xor_b32 v243, 0x80, v242", f"v_add_u32 v243, {4096 - 1024}, v243",
          "v_lshrrev_b32 v244, 2, v254", "v_and_b32 v245, 7, v244", "v_lshlrev_b32 v244, 8, v244", "v_and_b32 v241, 3, v254", "v_lshl_add_u32 v244, v241, 3, v244",
          "v_add_u32 v244, s32, v244", "s_sub_u32 s46, 0x20000, s32"]
    for c in range(8):
        va += [f"v_xor_b32 v241, {c}, v245", f"v_lshl_add_u32 v{208 + c}, v241, 5, v244", f"v_xor_b32 v{216 + c}, 0x10000, v{208 + c}", f"v_add_u32 v{224 + c}, s46, v{208 + c}"]
    va += ["v_lshl_add_u32 v237, v255, 11, v240", f"v_add_u32 v237, {KEEP - 0x10000}, v237", "v_add_u32 v237, s33, v237",
           "v_and_b32 v247, 3, v254", "v_lshlrev_b32 v247, 7, v247", "v_and_b32 v244, 15, v254", "v_lshlrev_b32 v244, 10, v244",
           "v_lshrrev_b32 v245, 4, v254", "v_lshl_add_u32 v238, v245, 3, v244", "v_add_u32 v239, 0x10000, v238"]
    va += [f"v_mov_b32 v{232 + k}, -1" for k in range(4)]
    return sa, va
HPOLL = "buffer_load_dword v207, v206, s[20:23], s99 offen sc1"
def gp1(): return chunk(0) + chunk(1) + sum([chunk(c, w=False) for c in range(2, 6)], [])
def gp2(): return sum([chunk(c, a=False) for c in range(2, 7)], [])
PRE_SPLIT = (12, 24, 28)
def gpre(): return gp1()[:PRE_SPLIT[2]] + gp2()[:12] + gp1()[PRE_SPLIT[2]:] + gp2()[12:]

def opf():
    if not OPF: return []
    return ["s_lshr_b32 s46, s2, 3", "s_lshl_b32 s46, s46, 2", "s_add_u32 s46, s46, s28", "v_lshlrev_b32 v241, 7, v254",
            "s_lshl_b32 s59, s35, 20", "s_lshl_b32 s46, s46, 13", "s_add_u32 s59, s59, s46",
            "buffer_load_dword v251, v241, s[8:11], s59 offen"]

def lchk(qa, qb_, first):
    if not FAST: return []
    return [f"v_cmp_ngt_f32 vcc, s{S_THR}, v{LACC(qa)}", "v_nop", "s_mov_b64 s[62:63], vcc" if first else "s_or_b64 s[62:63], s[62:63], vcc",
            f"v_cmp_ngt_f32 vcc, s{S_THR}, v{LACC(qb_)}", "v_nop", "s_or_b64 s[62:63], s[62:63], vcc"]

def sentinels():
    return [([f"s_add_u32 s60, s40, {32768 + (k8 // 4) * 4096}"] if k8 % 4 == 0 else [],
             f"buffer_store_dwordx4 v[232:235], v240, s[20:23], s60 offen offset:{(k8 % 4) * 1024} sc1", "sen") for k8 in range(8)]

def ee_one(qb, base):
    out = lchk(qb, qb, qb == 2)[:3]
    for ops, st in o_epi(qb, lambda t: base + 8 * t, lambda t: base + 8 * t): out += ops + [st]
    return out

def gen_early_epi(safe=False):
    out = lchk(2, 3, True)
    sn = sentinels()
    for qb in (2, 3):
        base = 32 if qb == 2 else 96
        for ops, st in o_epi(qb, lambda t: base + 8 * t, lambda t: base + 8 * t):
            pre, ins, tag = sn.pop(0)
            out += ops[:10] + list(pre) + [ins] + ops[10:] + [st]
    return [HPOLL] + out

def gen_safe():
    p = Prog()
    M_ = [NEGM(q) for q in range(4)]; TQ = [NEGM(q) + 1 for q in range(4)]
    p("s_waitcnt vmcnt(0) lgkmcnt(0)")
    p("s_nop 15")
    p("s_barrier")
    for q in range(4):
        for r in range(32): p(f"v_accvgpr_write_b32 a{Oreg(q, 0) + r}, 0")
        for r in range(4): p(f"v_mov_b32 v{LACC(q) + r}, 0")
        p(f"v_mov_b32 v{M_[q]}, {f2u(-2.0 ** 120):#x}")
    p("s_sub_u32 s46, 15, s30")
    p("s_lshl_b32 s47, s46, 7")
    p("s_lshl_b32 s52, s30, 7")
    for q in range(4):
        p(f"v_cvt_f32_u32 v{TMP[0]}, s{47 if q < 2 else 52}")
        if q & 1: p(f"v_add_f32 v{TMP[0]}, {f2u(64.0):#x}, v{TMP[0]}")
        p(f"v_mul_f32 v{TMP[0]}, {f2u(BIG):#x}, v{TMP[0]}")
        p(f"v_add_f32 v{TQ[q]}, v{VTMASK}, v{TMP[0]}")
    p(f"v_add_u32 v{VCUR}, s33, v240")
    p("s_lshl_b32 s47, s46, 1")
    p("s_add_u32 s47, s47, 2")
    p("s_lshl_b32 s54, s28, 12")
    p("s_add_u32 s52, s54, s33")
    p("s_add_u32 s53, s52, 49152")
    p("s_add_u32 s52, s52, 32768")
    p.label("L_safe_loop")
    p("s_mov_b32 m0, s52")
    p("s_add_u32 s55, s54, 16384")
    for k in range(4): p(f"buffer_load_dwordx4 v240, s[16:19], s54 offen offset:{k * 1024} sc1 lds")
    p("s_mov_b32 m0, s53")
    p("s_nop 0")
    for k in range(4): p(f"buffer_load_dwordx4 v240, s[16:19], s55 offen offset:{k * 1024} sc1 lds")
    p("s_waitcnt vmcnt(0)")
    p("s_barrier")
    for f in range(16): p(f"ds_read_b128 {ar(Fbuf(f))}, v{VCUR} offset:{32768 + f * 1024}")
    p("s_waitcnt lgkmcnt(0)")
    for kb in range(4):
        for t in range(4):
            for q in range(4):
                d = Sreg(0, q, kb)
                p(f"{MF} {vr(d)}, {ar(Fbuf(kb * 4 + t))}, {ar(Qreg(q, t))}, {vr(d) if t else 0}")
    for f in range(16): p(f"ds_read_b128 {ar(Fbuf(f))}, v{VCUR} offset:{49152 + f * 1024}")
    for q in range(4):
        b = Sreg(0, q, 0)
        for r in range(16):
            p(f"v_subrev_f32 v{TMP[r % 2]}, {f2u((16 * (r // 4) + r % 4) * BIG):#x}, v{TQ[q]}")
            p(f"v_min_f32 v{b + r}, v{b + r}, v{TMP[r % 2]}")
        p(f"v_subrev_f32 v{TQ[q]}, {f2u(64 * BIG):#x}, v{TQ[q]}")
        rowmax(p, 0, q)
        p(f"v_max_f32 v{TMP[0]}, v{TMP[0]}, v{M_[q]}")
        p(f"v_sub_f32 v{TMP[1]}, v{M_[q]}, v{TMP[0]}")
        p(f"v_exp_f32 v{TMP[1]}, v{TMP[1]}")
        p(f"v_mov_b32 v{M_[q]}, v{TMP[0]}")
        for r in range(16): p(f"v_sub_f32 v{b + r}, v{b + r}, v{TMP[0]}")
        for r in range(16): p(f"v_exp_f32 v{b + r}, v{b + r}")
        for r in range(4): p(f"v_mul_f32 v{LACC(q) + r}, v{LACC(q) + r}, v{TMP[1]}")
        for k in range(8): p(f"v_cvt_pk_bf16_f32 v{Preg(q, 0) + k}, v{b + 2 * k}, v{b + 2 * k + 1}")
        for r in range(0, 32, 2):
            a = Oreg(q, 0) + r
            p(f"v_accvgpr_read_b32 v{TMP[2]}, a{a}")
            p(f"v_accvgpr_read_b32 v{TMP[3]}, a{a + 1}")
            p(f"v_mul_f32 v{TMP[2]}, v{TMP[2]}, v{TMP[1]}")
            p(f"v_mul_f32 v{TMP[3]}, v{TMP[3]}, v{TMP[1]}")
            p(f"v_accvgpr_write_b32 a{a}, v{TMP[2]}")
            p(f"v_accvgpr_write_b32 a{a + 1}, v{TMP[3]}")
    p("s_waitcnt lgkmcnt(0)")
    p("s_barrier")
    for s in range(2):
        for db in range(8):
            for q in range(4): p(f"{MF} {ar(Oreg(q, db))}, {ar(Fbuf(s * 8 + db))}, {vr(Preg(q, s))}, {ar(Oreg(q, db))}")
        for q in range(4): p(f"{MF} {vr(LACC(q))}, {vr(ONES)}, {vr(Preg(q, s))}, {vr(LACC(q))}")
    p("s_add_u32 s54, s54, 32768")
    p("s_sub_u32 s47, s47, 1")
    p("s_cmp_lg_u32 s47, 0")
    p("s_cbranch_scc1 L_safe_loop")
    p("s_nop 15")
    p(f"s_mov_b32 s{S_THR}, 0x7f800000")
    for x in gen_early_epi(True)[1:]: p(x)
    for r in range(16): p(f"v_mov_b32 v{Sreg(1, 1, 0) + r}, {f2u(-2.0 ** 100) if r >= len(predone([1])) else 0:#x}")
    for pre, ins, tag in gpre():
        for x in pre: p(x)
        p(ins)
    p("s_mov_b32 s38, 1")
    p("s_branch L_fin")
    tx = [i.t for i in p.items]
    a = tx.index("L_safe_loop:"); b = tx.index("s_cbranch_scc1 L_safe_loop")
    for e in lint(tx[:b] + tx[a + 1:], "safe")[:20]: print(e)
    return ["L_safe:", "s_cmp_eq_u32 s38, 1", "s_cbranch_scc1 L_safe_ret"] + tx

def tail_pre():
    pa = [tag for pre, ins, tag in gpre()]
    pb = [tag for c in range(5) for pre, ins, tag in chunk(c, a=False)]
    d7 = {("cw", 0): 40, ("cw", 1): 40, ("cw", 2): 28, ("cw", 3): 28, ("cw", 4): 28, ("ca", 0): 28, ("ca", 1): 28,
          ("ca", 4): 12, ("ca", 5): 12, ("ca", 2): 4, ("ca", 3): 0, ("cw", 5): 4, ("cw", 6): 0}
    n = len(pa); slots = [set() for _ in range(n)]
    for tg in set(pa):
        d = min(n - 1 - max(i for i, x in enumerate(pa) if x == tg), d7[tg])
        slots[n - 1 - d].add(tg)
    return [Ins("buffer_load_dwordx4 v240, s[16:19], s55 offen lds", frozenset(x)) for x in slots]

def gen_tail():
    p = Prog()
    slow = []
    for f in range(NPRE, 16): p(f"ds_read_b128 {ar(Fbuf(16 + f))}, v{VCUR} offset:{49152 + vlds(f) * 1024}", ("VE", f))
    b = Sreg(1, 1, 0)
    for r in range(len(predone([1])), 16): p(f"v_exp_f32 v{b + r}, v{b + r}")
    for k in range(8): p(f"v_cvt_pk_bf16_f32 v{Preg(1, 0) + k}, v{b + 2 * k}, v{b + 2 * k + 1}")
    p("v_and_b32 v206, 0x1c00, v206")
    p.wait_vm(("cw", 0))
    p("s_waitcnt lgkmcnt(0)")
    p("s_barrier")
    for x in ["s_mov_b32 s4, s42", "s_mov_b32 s5, s43", "s_mov_b32 s6, 0x200000", "s_mov_b32 s7, 0x20000"]: p(x)
    mf = []
    for s in range(2): mf.append(f"{MF} {vr(LACC(1))}, {vr(ONES)}, {vr(Preg(1, s))}, {vr(LACC(1))}")
    for k in range(16):
        s, db = vlds(k) // 8, vlds(k) % 8
        mf.append(f"{MF} {ar(Oreg(1, db))}, {ar(Fbuf(16 + k))}, {vr(Preg(1, s))}, {ar(Oreg(1, db))}")
    if not FAST: p(f"buffer_store_dword v249, v248, s[20:23], s98 offen offset:4{STF}", "flag")
    S = Sched16(mf)
    late = o_epi(0, lambda t: 8 * t, lambda t: 64 + 4 * t) + o_epi(1, lambda t: 32 + 8 * t, lambda t: 80 + 4 * t)
    seq = []
    rest = chunk(7, a=False) + chunk(6, w=False)
    for i, (ops, st) in enumerate(late):
        seq += [(x, None) for x in ops[:10]]
        if i < 4:
            for pre, ins, tag in rest[i:i + 1]: seq += [(y, None) for y in pre] + [(ins, tag)]
        seq += [(x, None) for x in ops[10:]]
        if i < LST: seq.append((st, "ctxst"))
    vs = tail_setup()[1][8:-4]
    for i, (pre, ins, tag) in enumerate(rest[4:]):
        seq += [(x, None) for x in vs[4 * i:4 * i + 4]] + [(y, None) for y in pre] + [(ins, tag)]
    seq += [(x, None) for x in vs[4 * len(rest[4:]):]]
    if FAST:
        seq += [(x, None) for x in lchk(0, 1, False) + ["s_or_b32 s62, s62, s63", "v_mov_b32 v244, s62", "v_lshlrev_b32 v245, 2, v255", f"s_add_u32 s46, s33, {KEEP + 16384 - 0x10000}", "v_add_u32 v245, s46, v245",
                                                         "ds_write_b32 v245, v244", "v_mov_b32 v245, s46"]]
    ne = 0
    for g in range(len(mf)):
        while S.load(g) + cost(seq[ne][0]) <= 2:
            S.add_last(g, Ins(*seq[ne])); ne += 1
    p.extend(S.items())
    if DIAG and not DIAG2: p.items.append(stamp(10))
    for x, tag in seq[ne:]: p(x, tag)
    if DIAG and not DIAG2: p.items.append(stamp(11))
    GO = [(n, c) for n in range(NK - 2) for c in range(8)] + [(n, 2 * cp + cf) for cp in range(4) for n in (NK - 2, NK - 1) for cf in range(2)]
    if "t" in CH: GO = [(2 * ch + e, c) for ch in range(NC) for c in range(8) for e in range(2)]
    def w_reads(gi):
        n, c = GO[gi]
        off = wofs(n)
        d = 128 + 4 * (gi % 16)
        return [f"ds_read_b64_tr_b16 v[{d + 2 * hf}:{d + 2 * hf + 1}], v{208 + 8 * (off >> 16) + c} offset:{(off & 0xffff) + hf * 4096}" for hf in range(2)]
    RA = 8
    for gi in range(RA):
        for x in w_reads(gi): p(x, ("W", gi))
    p.wait_vm(("ca", 0))
    p.wait_lgkm(("W", 1))
    mf = []
    sq = [(gi, tb) for gi in range(len(GO)) for tb in range(2)]
    if "t" in CH: sq = [(gi + e, tb) for gi in range(0, len(GO), 2) for tb in range(2) for e in range(2)]
    for gi, tb in sq:
        n, c = GO[gi]
        base = 0 if n < 14 else 64
        first = n in (0, 14)
        acc = base + ((c >> 1) * 2 + tb) * 8 + (c & 1) * 4
        mf.append(f"{MF} {vr(acc)}, {vr(128 + 4 * (gi % 16))}, {areg2(n, tb)}, {0 if first else vr(acc)}")
    S = Sched16(mf)
    NG = NK * 8; NM = len(mf)
    BS = [ch for ch in range(NC - 1) if ch % OB == 0]
    def gB(ch): return 32 * ch + 16
    for gi in range(RA, NG):
        ch, k = gi // 16, gi % 16
        g = 2 * (gi - RA)
        if ch in BS and k >= 12: g -= [1, 2, 3, 4][k - 12]
        for x in w_reads(gi): S.add_mem(g, x, ("W", gi))
    if "t" in CH:
        for gi in range(2, NG, 2): S.add_first(2 * gi - 1, Wait("lgkm", ("W", gi + 1)))
    else:
        for gi in range(1, NG): S.add_first(2 * gi - 1, Wait("lgkm", ("W", gi)))
    def cwlast(c): return c if not (WR and 11 <= c < 11 + WR) else 10
    assert GPUB in BS and CPUB in BS
    for ch in range(NC - 1):
        if ch in BS:
            S.add_first(gB(ch) - 2, Ins("s_waitcnt lgkmcnt(0)"))
            S.add_first(gB(ch), Wait("vm", [("cw", cwlast(min(ch + OB, NC - 1)))] + (["pub"] if ch == GPUB else []) + (["ctxst"] if ch == CPUB else [])))
            S.add_first(gB(ch), "s_barrier")
        S.add_first(32 * (ch + 1) - 2, Wait("vm", ("ca", ch + 1)))
    def wfree(ch):
        return 0 if ch < 8 else gB(min(x for x in BS if x >= ch - 8)) + 1
    S.add_mem(gB(CPUB) + 1, f"buffer_store_dword v249, v248, s[20:23], s98 offen offset:8{STF}", "flag")
    if FAST:
        S.add_mem(gB(CPUB) + 3, f"buffer_store_dword v249, v248, s[20:23], s98 offen offset:4{STF}", "flag")
        S.add_mem(gB(0) + 1, "ds_read_b128 v[200:203], v245", "bad")
        S.add_first(gB(0) + 10, Wait("lgkm", "bad"))
        S.add_valu(gB(0) + 11, "v_or3_b32 v200, v200, v201, v202")
        S.add_valu(gB(0) + 11, "v_or_b32 v200, v200, v203")
        S.add_valu(gB(0) + 13, "v_cmp_ne_u32 vcc, 0, v200")
        S.add_last(gB(0) + 15, "s_cbranch_vccnz L_safe")
        S.add_last(gB(0) + 15, "L_safe_ret:")
    for i, (ops, st) in enumerate(late[LST:]): S.add_mem(2 + LSP * i, st, "ctxst")
    assert 2 + LSP * (8 - LST) < gB(CPUB)
    LD = []
    def ld(ops, e, pace):
        for i, (pre, ins, tag) in enumerate(ops):
            for x in pre: LD.append(Op(x, e + i * pace - 2, NM - 1))
            LD.append(Op(ins, e + i * pace, NM - 1, tag=tag, deps=[LD[-1]] if pre else []))
    nw = 8
    while wfree(nw) + 16 <= CCHK: nw += 1
    RB = [32, 48, 96, 112, 0, 16, 64, 80]
    items = [(wfree(c), op) for c in range(8, nw) for op in chunk(c, a=False)]
    t = 2.0
    regld = []
    for k in range(WR):
        for i, (pre, ins, tag) in enumerate(chunk(nw + k, a=False)):
            ins = ins.replace("buffer_load_dwordx4 ", f"buffer_load_dwordx4 {ar(RB[k] + 4 * i)}, ").replace(" lds", "")
            regld.append((34 if k >= 4 else 0, (pre[1:], ins, ("cr", nw + k))))
    while items or regld:
        src = items if (items and (items[0][0] <= t or not regld)) else regld
        for _ in range(2):
            e, op = src.pop(0)
            t = max(t, e); ld([op], int(t), 0); t += WRP
    WW = []
    for k in range(WR):
        c = nw + k
        cert = max(x for x in BS if x < c)
        S.add_first(wfree(c) + 1, Wait("vm", ("cr", c)))
        for i in range(4):
            off = wofs(2 * c + i // 2) + (i % 2) * 1024
            WW.append(Op(f"ds_write_b128 v{196 + (off >> 16)}, {ar(RB[k] + 4 * i)} offset:{off & 0xffff}", wfree(c) + 2 + 6 * i + 26 * ((c - nw + 1) % 2 if OB == 2 else 0), gB(cert) - 6, tag="ww"))
    if WR:
        for i, x in enumerate(["v_add_u32 v196, s51, v240", "v_add_u32 v197, s56, v240", "v_add_u32 v198, s50, v240", "v_add_u32 v198, 0x20000, v198"]): S.add_valu(41 + 2 * i, x)
    S.add_mem(CPOLL, "buffer_load_dword v207, v206, s[20:23], s3 offen offset:4 sc1", "cpoll")
    S.add_first(CCHK, Wait("vm", "cpoll"))
    S.add_valu(CCHK, "v_cmp_ne_u32 vcc, 1, v207")
    S.add_last(CCHK + 1, "s_cbranch_vccnz L_cwait")
    S.add_last(CCHK + 1, "L_cok:")
    slow += spin("c", "buffer_load_dword v207, v206, s[20:23], s3 offen offset:4 sc1", "v_cmp_ne_u32 vcc, 1, v207")
    if CTXPF:
        S.add_valu(40, "v_lshlrev_b32 v252, 7, v254")
        S.add_valu(41, f"v_add_u32 v253, {4 * ACT_ROW}, v252")
        ld(chunk(7, w=False), CCHK + 2, 1)
        ld([(["s_lshl_b32 s60, s45, 13"], "s_add_u32 s60, s60, s65", None), ([], "buffer_load_dword v250, v252, s[20:23], s60 offen sc1", "pf"),
            ([], "buffer_load_dword v251, v253, s[20:23], s60 offen sc1", "pf")], CCHK + 2, 1)
    seqo = [("a", ch) for ch in range(7, nw)]
    for ch in range(nw, NC): seqo += ([("w", ch + 2)] if nw + WR <= ch + 2 < NC and WR else [("w", ch)] if not WR else []) + [("a", ch)]
    t = float(CCHK + 2)
    for k, (kind, ch) in enumerate(seqo):
        t = max(t, 32 * (ch - 7) if kind == "a" else wfree(ch))
        pace = TP0 if k < 2 else TP
        for op in chunk(ch, w=(kind == "w"), a=(kind == "a")):
            ld([op], int(t), 0); t += pace
    print("tail ld", schedule(S, [LD, WW], 0, NM - 1, base_cap=2), [o.g for o in LD if o.mem][::8], [o.g for o in WW][::4])
    def pub(base, kind, g0, g1, pace=0):
        ops = []
        for k8 in range(8):
            R = base + 8 * k8
            if k8 % 4 == 0: ops.append(Op(f"s_add_u32 s60, s40, {kind * 32768 + (k8 // 4) * 4096}", g0, g1))
            cv = [Op(f"v_cvt_pk_bf16_f32 v{R + k}, v{R + 2 * k}, v{R + 2 * k + 1}", g0, g1) for k in range(4)]
            ops += cv
            ops.append(Op(f"buffer_store_dwordx4 {vr(R)}, v240, s[20:23], s60 offen offset:{(k8 % 4) * 1024} sc1", g0 + k8 * pace, g1, [cv[-1]], tag="pub"))
            ops.append(Op(f"ds_write_b128 v236, {vr(R)} offset:{kind * 8192 + k8 * 1024}", g0, g1, tag="own"))
        return ops
    pb = pub(0, 0, 14 * 16 + PUB0, gB(GPUB) - 20, PUBP)
    print('pub', schedule(S, [pb], 14 * 16, NM - 1, base_cap=2), [o.g for o in pb if o.tag == 'pub'])
    S.add_mem(gB(GPUB) + 1, "buffer_store_dword v249, v248, s[20:23], s95 offen offset:4 sc1", "flag")
    gx = 32 * 17 + 21
    for k in range(4):
        S.add_mem(gx + 4 * k, f"buffer_load_dwordx2 v[{192 + 2 * k}:{193 + 2 * k}], v{238 + k // 2}, s[24:27], s57 offen offset:{32 * (k % 2)}", "x")
    gp = 32 * GPOLL
    S.add_mem(gp + 1, "buffer_load_dword v250, v247, s[20:23], s94 offen offset:4 sc1", "gpoll")
    gc = gp + 33
    S.add_first(gc + 1, Wait("vm", "gpoll"))
    S.add_valu(gc + 1, "v_cmp_ne_u32 vcc, 1, v250")
    S.add_last(gc + 2, "s_cbranch_vccnz L_gwait")
    S.add_last(gc + 2, "L_gok:")
    slow += spin("g", "buffer_load_dword v250, v247, s[20:23], s94 offen offset:4 sc1", "v_cmp_ne_u32 vcc, 1, v250")
    for k in range(3):
        for tb in range(2):
            S.add_mem(gc + 4 + 2 * (2 * k + tb), f"buffer_load_dwordx4 {vr(8 * k + 4 * tb)}, v240, s[20:23], s{GB[k]} offen offset:{tb * 1024} sc1", "gg")
    for tb in range(2): S.add_mem(gc + 18, f"ds_read_b128 {vr(24 + 4 * tb)}, v237 offset:{tb * 1024}", "gown")
    ps = pub(64, 1, 0, NM - 1)
    k8 = -1; inside = []
    for o in ps:
        if o.t.startswith("v_cvt") and (int(re.findall(r"v(\d+)", o.t)[0]) - 64) % 8 == 0: k8 += 1
        o.e = NM - 32 + 8 * (max(k8, 0) // 2) + 8 + 5
    inside = [o for o in ps if o.e < NM - 4]
    print("pub s inside", schedule(S, [inside], NM - 32, NM - 1, base_cap=3), len(inside), len(ps))
    for k in range(3): S.add_first(gc + 20 + 2 * k, f"s_add_u32 s{GB[k]}, s{GB[k]}, 32768")
    if DIAG3:
        for k, g in enumerate([int(x) for x in os.environ.get('D3', '').split(',') if x] or [0, CCHK, CCHK + 4, 14 * 16, 30 * 16, NM - 1]): S.add_first(g, stamp(2 + k))
    if UNP:
        mv = 0
        for g in range(NM - 1):
            tr = [x for x in S.mem[g] if isinstance(x, Ins) and x.t.startswith("ds_read_b64_tr")]
            blocked = any(isinstance(x, Ins) and (x.t == "s_barrier" or "lgkmcnt(0)" in x.t) for x in S.first[g + 1] + S.first[min(g + 2, NM - 1)] + S.first[min(g + 3, NM - 1)])
            if len(tr) == 2 and S.load(g + 1) <= 1 and not blocked and not S.last[g]:
                S.mem[g].remove(tr[1]); S.mem[g + 1].insert(0, tr[1]); mv += 1
        print("unpaired", mv)
    print(S.report("tail")[:400])
    OD = os.environ.get("ODROP", "").split(",")
    def keep(i):
        tg = i.tag if isinstance(i, (Ins, Wait)) else None
        if isinstance(i, Ins):
            if isinstance(tg, tuple) and tg[0] in OD: return False
            if tg in OD and tg: return False
        if isinstance(i, Wait):
            tags = tg if isinstance(tg, list) else [tg]
            tags = [t for t in tags if (t[0] if isinstance(t, tuple) else t) not in OD]
            if not tags: return False
            i.tag = tags
        return True
    p.extend([i for i in S.items() if keep(i)])
    GS = 144
    def gather():
        for k in range(3):
            for tb in range(2):
                p(f"buffer_load_dwordx4 {vr(GS + 8 * k + 4 * tb)}, v240, s[20:23], s{GB[k]} offen offset:{tb * 1024} sc1", "gs")
    p("s_nop 3")
    for o in ps[len(inside):]: p(o.t, o.tag)
    if GPOS == 0: gather()
    def unpack(dst, src, n=8):
        for k in range(n):
            p(f"v_lshlrev_b32 v{dst + 2 * k}, 16, v{src + k}")
            p(f"v_and_b32 v{dst + 2 * k + 1}, 0xffff0000, v{src + k}")
    def rnd(b, T):
        for k in range(0, 16, 2): p(f"v_cvt_pk_bf16_f32 v{T + k // 2}, v{b + k}, v{b + k + 1}")
        unpack(b, T)
    def accum(D, src):
        for k in range(8):
            p(f"v_dot2c_f32_bf16 v{D + 2 * k}, s46, v{src + k}")
            p(f"v_dot2c_f32_bf16 v{D + 2 * k + 1}, s47, v{src + k}")
    p("s_mov_b32 s46, 0x00003f80")
    p("s_mov_b32 s47, 0x3f800000")
    p("s_mov_b32 s44, 0x40000")
    if DIAG3: p.items.append(stamp(8))
    p("s_waitcnt lgkmcnt(0)")
    p("s_barrier")
    for tb in range(2): p(f"ds_read_b128 {vr(168 + 4 * tb)}, v237 offset:{8192 + tb * 1024}", "sown")
    p.wait_vm("gg")
    unpack(32, 24)
    for k in range(3): accum(32, 8 * k)
    p("s_nop 2")
    if GPOS == 1: gather()
    rnd(32, 48)
    for k in range(16): p(f"v_mul_f32 v{48 + k}, {f2u(-LOG2E):#x}, v{32 + k}")
    for k in range(16): p(f"v_exp_f32 v{48 + k}, v{48 + k}")
    if GPOS == 2: gather()
    for k in range(16): p(f"v_add_f32 v{48 + k}, 1.0, v{48 + k}")
    for k in range(16): p(f"v_rcp_f32 v{48 + k}, v{48 + k}")
    for k in range(16): p(f"v_mul_f32 v{32 + k}, v{32 + k}, v{48 + k}")
    if GPOS == 3: gather()
    rnd(32, 48)
    unpack(128, 192)
    p.wait_lgkm("sown")
    unpack(0, 168)
    if GPOS < 4: p("s_branch L_o_chk")
    p.label("L_o_poll")
    gather()
    p.label("L_o_chk")
    p("s_waitcnt vmcnt(0)")
    p(f"v_max3_u32 v48, v{GS}, v{GS + 1}, v{GS + 2}")
    p(f"v_max3_u32 v49, v{GS + 3}, v{GS + 4}, v{GS + 5}")
    for k in range(6, 22, 4):
        p(f"v_max3_u32 v48, v48, v{GS + k}, v{GS + k + 1}")
        p(f"v_max3_u32 v49, v49, v{GS + k + 2}, v{GS + k + 3}")
    p(f"v_max3_u32 v48, v48, v{GS + 22}, v{GS + 23}")
    p("v_max_u32 v48, v48, v49")
    p("v_cmp_eq_u32 vcc, -1, v48")
    p("s_cbranch_vccz L_o_go")
    p("s_sub_u32 s44, s44, 1")
    p("s_cbranch_scc0 L_o_poll")
    p.label("L_o_go")
    if DIAG3: p.items.append(stamp(9))
    for k in range(3): accum(0, GS + 8 * k)
    p("s_nop 2")
    for k in range(16): p(f"v_fmac_f32 v{128 + k}, v{k}, v{32 + k}")
    for k in range(0, 16, 2): p(f"v_cvt_pk_bf16_f32 v{96 + k // 2}, v{128 + k}, v{129 + k}")
    for k in range(4):
        p(f"buffer_store_dwordx2 v[{96 + 2 * k}:{97 + 2 * k}], v{238 + k // 2}, s[4:7], s57 offen offset:{32 * (k % 2)}")
    PAD = os.environ.get("PAD", "")
    if PAD:
        p("s_mov_b32 s46, 20")
        p.label("L_pad")
        for k in range(64):
            if PAD == "nop": p("s_nop 3")
            else: p(f"{MF} {vr(4 * (k % 16))}, {ar(4 * ((k // 4) % 8))}, {ar(128 + 4 * (k % 32))}, {vr(4 * (k % 16))}")
        p("s_sub_u32 s46, s46, 1")
        p("s_cmp_lg_u32 s46, 0")
        p("s_cbranch_scc1 L_pad")
    if DIAG:
        p("s_waitcnt vmcnt(0)")
        p.items.append(stamp(12)); p.items.append(stamp(13, True))
        dump_stamps(p, 0, 28, 20)
    return [i.t for i in resolve(p.items, tail_pre())], slow

def gen_f_kernel():
    p = Prog()
    p("s_cmp_ge_u32 s2, 256")
    p("s_cbranch_scc1 L_f_end")
    if DIAG:
        for k in range(14): p(f"s_mov_b32 s{66 + 2 * k}, 0")
        p.items.append(stamp(0, True)); p.items.append(stamp(1))
    p("s_load_dwordx4 s[36:39], s[0:1], 0")
    p("s_load_dwordx4 s[40:43], s[0:1], 24")
    p("s_load_dwordx2 s[44:45], s[0:1], 96")
    p("v_and_b32 v254, 63, v0")
    p("v_lshrrev_b32 v255, 6, v0")
    p("s_and_b32 s34, s2, 7")
    p("v_readfirstlane_b32 s28, v255")
    p("s_lshr_b32 s35, s2, 3")
    p("v_lshlrev_b32 v252, 7, v254")
    if CPF:
        p("s_getpc_b64 s[4:5]")
        p("L_pc0:")
        p(f"s_sub_u32 s4, s4, L_pc0-{KNAME}")
        p("s_subb_u32 s5, s5, 0")
        p(f"s_mov_b32 s6, L_code_end-{KNAME}")
        p("s_mov_b32 s7, 0x20000")
        p("v_lshrrev_b32 v244, 3, v254")
        p("v_lshl_or_b32 v244, v244, 27, v252")
        p("v_lshl_add_u32 v244, v255, 15, v244")
        p("s_lshl_b32 s63, s35, 10")
        p("buffer_load_dword v52, v244, s[4:7], s63 offen", "pf")
    p("v_lshlrev_b32 v240, 4, v254")
    p("v_lshrrev_b32 v244, 4, v254")
    p("v_and_b32 v245, 15, v254")
    p("v_lshlrev_b32 v245, 7, v245")
    p("v_lshl_add_u32 v253, v244, 13, v245")
    p("s_lshl_b32 s60, s35, 2")
    p("s_add_u32 s60, s60, s28")
    p("s_and_b32 s61, s34, 1")
    p("s_lshl_b32 s61, s61, 20")
    p("s_lshl_b32 s63, s60, 13")
    p("s_add_u32 s61, s61, s63")
    p("s_lshr_b32 s62, s34, 1")
    p("s_lshl_b32 s62, s62, 11")
    p("s_lshl_b32 s63, s60, 15")
    p("s_add_u32 s62, s62, s63")
    p("s_lshl_b32 s47, s2, 13")
    p("s_lshl_b32 s46, s28, 11")
    p("s_add_u32 s47, s47, s46")
    if HYB:
        for x in ["s_and_b32 s57, s34, 1", "s_lshl_b32 s57, s57, 2", "s_and_b32 s56, s35, 3", "s_add_u32 s57, s57, s56", "s_lshl_b32 s57, s57, 2",
                  "s_add_u32 s57, s57, s28", "s_lshl_b32 s31, s57, 16",
                  "s_lshr_b32 s57, s34, 1", "s_lshl_b32 s57, s57, 3", "s_lshr_b32 s56, s35, 2", "s_add_u32 s57, s57, s56", "s_lshl_b32 s57, s57, 8",
                  "s_mul_i32 s48, s28, 24576", "s_and_b32 s56, s28, 1", "s_lshr_b32 s52, s28, 1", "s_lshl_b32 s53, s56, 13", "s_lshl_b32 s54, s52, 12",
                  "s_add_u32 s53, s53, s54", "s_lshl_b32 s54, s56, 6", "s_lshl_b32 s55, s52, 19", "s_add_u32 s54, s54, s55", "s_add_u32 s54, s54, s57",
                  "v_lshrrev_b32 v241, 3, v254", "v_lshlrev_b32 v241, 13, v241", "v_and_b32 v242, 7, v254"]: p(x)
        for n in range(8):
            p(f"v_xor_b32 v243, {n}, v242")
            p(f"v_lshl_add_u32 v{224 + n}, v243, 4, v241")
        for x in ["v_lshrrev_b32 v244, 5, v254", "v_lshlrev_b32 v244, 1, v244", "v_and_b32 v245, 3, v254", "v_xor_b32 v245, v245, v244",
                  "v_lshlrev_b32 v245, 4, v245", "v_lshrrev_b32 v244, 2, v254", "v_lshl_add_u32 v241, v244, 13, v245",
                  f"v_mov_b32 v66, {~HA & 0xff}", "v_lshrrev_b32 v66, v242, v66", "v_and_b32 v66, 1, v66", "v_lshl_or_b32 v64, v66, 30, v252",
                  "v_lshrrev_b32 v66, 4, v254", "v_and_b32 v67, 15, v254", "v_lshlrev_b32 v65, 7, v67", "v_lshl_add_u32 v65, v66, 20, v65",
                  "v_and_b32 v67, 1, v254", "v_lshl_add_u32 v66, v66, 1, v67", f"v_mov_b32 v67, {~HW & 0xff}", "v_lshrrev_b32 v67, v66, v67",
                  "v_and_b32 v67, 1, v67", "v_lshl_or_b32 v65, v67, 30, v65",
                  "s_lshr_b32 s58, s34, 1", "s_lshl_b32 s58, s58, 11", "s_lshl_b32 s59, s60, 13"]: p(x)
    for r, v in ((10, 0x200000), (11, 0x20000), (14, 0x400000), (15, 0x20000), (26, 0x200000), (27, 0x20000)): p(f"s_mov_b32 s{r}, {v:#x}")
    p("s_waitcnt lgkmcnt(0)")
    if DIAG and not DIAG2: p.items.append(stamp(2))
    for d, sr in ((24, 36), (25, 37), (8, 38), (9, 39), (12, 40), (13, 41)): p(f"s_mov_b32 s{d}, s{sr}")
    p("buffer_load_dwordx4 v[0:3], v240, s[24:27], s47 offen" + NTX, "ln")
    p("buffer_load_dwordx4 v[4:7], v240, s[24:27], s47 offen offset:1024" + NTX, "ln")
    if XBAR: p("s_barrier")
    BLK = [6, 7, 8, 9, 6, 7, 8, 9, 0, 1, 2, 3, 4, 5, 6, 7, 8, 9, 0, 1, 2, 3, 6, 7, 8, 9, 4, 5, 6, 7, 8, 9]
    if KD: BLK = [6, 7, 8, 9, 6, 7, 8, 9, 6, 7, 0, 1, 2, 3, 4, 5, 8, 9, 0, 1, 2, 3, 6, 7, 8, 9, 4, 5, 6, 7, 8, 9]
    def dma_A(s):
        ops = []
        for n in range(8):
            pre = []
            if n % 4 == 0:
                pre = [f"s_add_u32 m0, s48, {(s % 3) * 8192 + (n // 4) * 4096}", f"s_add_u32 s56, s31, {s * 128 + (n // 4) * 4096}"]
            ops.append((pre, f"buffer_load_dwordx4 v{224 + n}, s[8:11], s56 offen offset:{(n % 4) * 1024}{NTA} lds", ("A", s)))
        return ops
    def dma_W(n):
        ops = []
        kq = n % 4
        for q in range(4):
            m0 = "s53"
            if n < 8 and KD:
                pre = [f"s_add_u32 s57, s50, {(n * 64 + q * 16) * 8192 - q * 1024}"]; m0 = "s49"
                ins = f"buffer_load_dwordx4 v241, s[12:15], s57 offen offset:{q * 1024} lds"
            elif n < 8:
                pre = [f"s_add_u32 s57, s54, {(kq * 128 + q * 16) * 8192 + (n // 4) * 128 - q * 1024}"]
                ins = f"buffer_load_dwordx4 v241, s[12:15], s57 offen offset:{q * 1024} lds"
            elif n < 16:
                pre = [f"s_add_u32 s57, s50, {((n - 8) * 64 + q * 16) * 8192 - q * 1024}"]; m0 = "s49"
                ins = f"buffer_load_dwordx4 v241, s[16:19], s57 offen offset:{q * 1024} lds"
            elif n < 24:
                pre = [f"s_add_u32 s57, s{35 if n < 20 else 64}, {(kq * 128 + q * 16) * 3584 - q * 1024}"]
                ins = f"buffer_load_dwordx4 v242, s[12:15], s57 offen offset:{q * 1024} lds"
            else:
                pre = [f"s_add_u32 s57, s65, {(kq * 128 + q * 16) * 8192 - q * 1024 + (128 if n >= 28 else 0)}"]
                ins = f"buffer_load_dwordx4 v241, s[8:11], s57 offen offset:{q * 1024} lds"
            if "kkvvggqq"[n // 4] in NTD: ins = ins.replace(" lds", " nt lds")
            if q == 0: pre = [f"s_add_u32 m0, {m0}, {BLK[n] * 16384}"] + pre
            ops.append((pre, ins, ("L", n)))
        return ops
    def kv_half(tile, part):
        ops = []
        for q in range(4):
            pre = []
            if q == 0: pre = [f"s_add_u32 m0, s49, {tile * 32768 + part * 16384}", f"s_add_u32 s57, s49, {tile * 32768 + part * 16384}"]
            ops.append((pre, f"buffer_load_dwordx4 v240, s[16:19], s57 offen offset:{q * 1024}{KSC} lds", ("kv", tile, part)))
        return ops
    def now(ops):
        for pre, ins, tag in ops:
            for x in pre: p(x)
            p(ins, tag)
    first = dma_W(0) + dma_A(0) + dma_A(1) + (dma_W(1) + dma_A(2) if ALEAD == 3 else [])
    if KD: first = dma_W(0) + dma_A(0) + dma_W(1) + dma_A(1)
    HPA = "buffer_load_dword v246, v64, s[8:11], s44 offen"
    HPW = "buffer_load_dword v247, v65, s[12:15], s60 offen"
    if HYB:
        if KD:
            for x in ["s_lshl_b32 s49, s28, 12", "s_lshl_b32 s50, s28, 6", "s_add_u32 s50, s50, s57"]: p(x)
        now(first[:HE]); first = first[HE:]
        if HP1 == 0: p(HPA.replace("s44", "s61"), "pf")
    if PFA and not HYB:
        p("buffer_load_dword v246, v252, s[8:11], s61 offen" + os.environ.get("NTPA", ""), "pf")
        p("buffer_load_dword v247, v253, s[12:15], s62 offen" + NT, "pf")
    srd(p, 16, 42, 0x400000)
    srd(p, 20, 44, 0x10000000)
    if HYB: p("s_mov_b32 s44, s61")
    p("s_load_dwordx2 s[36:37], s[0:1], 16")
    p("s_load_dwordx2 s[38:39], s[0:1], 40")
    p("s_load_dwordx4 s[40:43], s[0:1], 56")
    p("s_load_dwordx2 s[96:97], s[0:1], 72")
    p("s_load_dwordx2 s[98:99], s[0:1], 88")
    p("v_lshl_add_u32 v244, v255, 6, v254")
    p("v_cmp_eq_u32 vcc, 0, v244")
    p("v_mov_b32 v248, 0x7ffff000")
    p("v_mov_b32 v249, 1")
    p("v_mov_b32 v250, 0")
    p("v_cndmask_b32_e64 v248, v248, 0, vcc")
    p("s_and_b32 s47, s34, 1")
    p("s_lshl_b32 s47, s47, 2")
    p("s_and_b32 s46, s35, 3")
    p("s_add_u32 s47, s47, s46")
    p("s_lshr_b32 s3, s34, 1")
    p("s_lshl_b32 s3, s3, 3")
    p("s_lshr_b32 s46, s35, 2")
    p("s_add_u32 s3, s3, s46")
    p("s_lshl_b32 s45, s3, 3")
    p("s_add_u32 s45, s45, s47")
    p("s_lshl_b32 s46, s47, 2")
    p("s_add_u32 s46, s46, s28")
    p("s_lshl_b32 s31, s46, 16")
    p("s_lshl_b32 s94, s46, 15")
    p("s_lshl_b32 s47, s3, 20")
    p("s_add_u32 s94, s94, s47")
    p(f"s_add_u32 s94, s94, {WS_KV:#x}")
    p("s_lshl_b32 s95, s3, 8")
    p("s_lshl_b32 s3, s45, 7")
    p(f"s_add_u32 s3, s3, {WS_FLAG + 0x10000:#x}")
    p("s_lshl_b32 s29, s34, 2")
    p("s_lshr_b32 s46, s35, 3")
    p("s_add_u32 s29, s29, s46")
    p("s_and_b32 s30, s35, 7")
    p(f"s_mul_i32 s48, s28, 24576")
    p("s_lshl_b32 s49, s28, 12")
    p("s_lshl_b32 s50, s28, 6")
    p("s_add_u32 s50, s50, s95")
    p("s_and_b32 s45, s28, 1")
    p("s_lshr_b32 s52, s28, 1")
    p("s_lshl_b32 s53, s45, 13")
    p("s_lshl_b32 s54, s52, 12")
    p("s_add_u32 s53, s53, s54")
    p("s_lshl_b32 s54, s45, 6")
    p("s_lshl_b32 s55, s52, 19")
    p("s_add_u32 s55, s54, s55")
    p("s_add_u32 s54, s55, s95")
    p("s_lshl_b32 s56, s29, 8")
    p("s_add_u32 s65, s55, s56")
    p("s_sub_u32 s56, 15, s30")
    p("s_lshl_b32 s32, s56, 3")
    p("s_add_u32 s32, s32, s28")
    p("s_lshl_b32 s33, s30, 3")
    p("s_add_u32 s33, s33, s28")
    p("s_lshl_b32 s46, s32, 14")
    p("s_lshl_b32 s47, s33, 14")
    p(f"s_mul_i32 s32, s32, {ACT_ROW}")
    p(f"s_add_u32 s32, s32, {WS_ACT:#x}")
    p(f"s_mul_i32 s33, s33, {ACT_ROW}")
    p(f"s_add_u32 s33, s33, {WS_ACT:#x}")
    if GUZ:
        p("s_sub_u32 s55, s29, s34")
        p("s_add_u32 s55, s55, 32")
    else:
        p("s_add_u32 s55, s29, 32")
        p("s_cmp_lt_u32 s29, 24")
        p("s_cselect_b32 s55, s55, s29")
    p(f"s_mul_i32 s64, s52, {64 * 3584}")
    p("s_lshl_b32 s63, s29, 6")
    p("s_add_u32 s35, s64, s63")
    p("s_lshl_b32 s63, s55, 6")
    p("s_add_u32 s64, s64, s63")
    if GUZ:
        p("s_and_b32 s63, s29, 3")
        p("s_cmp_eq_u32 s63, 3")
        p("s_cselect_b32 s64, 0x7f000000, s64")
    p("s_lshl_b32 s51, s29, 20")
    p(f"s_add_u32 s51, s51, {WS_KV:#x}")
    p("s_lshl_b32 s56, s29, 10")
    p(f"s_add_u32 s56, s56, {128 * 1024}")
    p("s_add_u32 s100, s56, s32")
    p("s_add_u32 s101, s56, s33")
    p("s_lshl_b32 s61, s34, 8")
    p("s_lshr_b32 s63, s60, 1")
    p(f"s_mul_i32 s63, s63, {8 * 3584}")
    p("s_add_u32 s61, s61, s63")
    p("s_lshl_b32 s52, s34, 10")
    p("s_lshl_b32 s63, s60, 15")
    p("s_add_u32 s52, s52, s63")
    if HYB: p("s_add_u32 s60, s58, s59")
    p("v_lshrrev_b32 v241, 3, v254")
    p("v_lshlrev_b32 v241, 13, v241")
    p("v_and_b32 v242, 7, v254")
    for n in range(8):
        p(f"v_xor_b32 v243, {n}, v242")
        p(f"v_lshl_add_u32 v{224 + n}, v243, 4, v241")
    p("v_and_b32 v241, 7, v254")
    p("v_bfe_u32 v242, v254, 3, 1")
    p("v_lshlrev_b32 v242, 7, v242")
    p("v_lshl_add_u32 v242, v241, 10, v242")
    p("v_add_u32 v242, s48, v242")
    p("v_lshrrev_b32 v243, 4, v254")
    for tt in range(2):
        p(f"v_add_u32 v244, {4 * tt}, v243")
        p("v_xor_b32 v244, v244, v241")
        p(f"v_lshl_add_u32 v{232 + tt}, v244, 4, v242")
    p("v_lshlrev_b32 v241, 9, v243")
    p("v_bfe_u32 v242, v254, 2, 2")
    p("v_lshl_add_u32 v241, v242, 6, v241")
    p("v_and_b32 v242, 3, v254")
    p("v_lshl_add_u32 v241, v242, 3, v241")
    p("v_and_b32 v242, 1, v243")
    p("v_lshl_add_u32 v234, v242, 5, v241")
    p("v_xor_b32 v237, 32, v234")
    for cf in range(2):
        p(f"v_add_u32 v{235 + 3 * cf}, 0x10000, v{234 + 3 * cf}")
        p(f"v_add_u32 v{236 + 3 * cf}, 0x20000, v{234 + 3 * cf}")
    p("v_lshrrev_b32 v244, 5, v254")
    p("v_lshlrev_b32 v251, 30, v244")
    p("v_lshlrev_b32 v244, 1, v244")
    p("v_and_b32 v245, 3, v254")
    p("v_xor_b32 v245, v245, v244")
    p("v_lshlrev_b32 v245, 4, v245")
    p("v_lshrrev_b32 v244, 2, v254")
    p("v_lshl_add_u32 v241, v244, 13, v245")
    p("v_mul_u32_u24 v244, 3584, v244")
    p("v_add_u32 v242, v244, v245")
    if ASYM:
        p("v_lshrrev_b32 v245, 3, v254")
        p("v_mul_u32_u24 v245, 3584, v245")
        p("v_and_b32 v244, 3, v254")
        p("v_lshl_add_u32 v245, v244, 7, v245")
        p("s_lshr_b32 s63, s34, 1")
        p("s_mul_i32 s63, s63, 384")
        p("s_add_u32 s63, s63, 2048")
        p("s_lshl_b32 s56, s34, 8")
        p("s_sub_u32 s63, s63, s56")
        p("v_bfe_u32 v244, v254, 2, 1")
        p("v_mad_u32_u24 v245, v244, s63, v245")
        p("v_and_b32 v244, 7, v254")
        p("v_lshrrev_b32 v244, v244, 0x8c" if False else "v_mov_b32 v53, 0x8c")
        p("v_lshrrev_b32 v244, v244, v53")
        p("v_and_b32 v244, 1, v244")
        p("v_lshl_or_b32 v245, v244, 30, v245")
    else:
        p("v_bfe_u32 v245, v254, 2, 3")
        p("v_mul_u32_u24 v245, 3584, v245")
        p("v_and_b32 v244, 1, v254")
        p("v_lshl_add_u32 v245, v244, 7, v245")
        p("v_bfe_u32 v244, v254, 1, 1")
        if GUZ:
            p("s_lshl_b32 s63, s34, 6")
            p("s_sub_u32 s63, 2048, s63")
            p("v_mad_u32_u24 v245, v244, s63, v245")
        else:
            p("v_lshl_add_u32 v245, v244, 11, v245")
        p("v_or_b32 v245, v245, v251")
    p("v_and_b32 v243, 15, v254" if not BYTEF else "v_mov_b32 v243, v254")
    p(f"v_lshlrev_b32 v243, {2 if BYTEF else XSH}, v243")
    p("v_lshlrev_b32 v48, 7, v254")
    p("v_lshl_add_u32 v48, v255, 5, v48")
    p("v_add_u32 v48, 0x24000, v48")
    p("v_lshl_add_u32 v49, v255, 11, v240")
    p("v_add_u32 v49, 0x24000, v49")
    p("v_lshrrev_b32 v50, 3, v254")
    p("v_lshlrev_b32 v50, 8, v50")
    p("v_and_b32 v51, 7, v254")
    p("v_lshl_add_u32 v50, v51, 4, v50")
    p("s_waitcnt lgkmcnt(0)")
    p("s_cmp_eq_u32 s45, 0")
    p("s_cselect_b32 s40, s40, s42")
    p("s_cselect_b32 s41, s41, s43")
    p("s_mov_b32 s4, s98")
    p("s_mov_b32 s5, s99")
    p("s_mov_b32 s6, 256")
    p("s_mov_b32 s7, 0x20000")
    p("s_load_dwordx2 s[42:43], s[0:1], 80")
    p("s_lshl_b32 s56, s55, 10")
    p(f"s_add_u32 s56, s56, {128 * 1024}")
    p("s_add_u32 s98, s56, s32")
    p("s_add_u32 s99, s56, s33")
    if GUZ:
        p("s_and_b32 s56, s29, 3")
        p("s_cmp_eq_u32 s56, 3")
        p("s_cselect_b32 s98, 0x7f000000, s98")
        p("s_cselect_b32 s99, 0x7f000000, s99")
    p("s_lshl_b32 s63, s2, 7")
    p(f"s_add_u32 s63, s63, {WS_FLAG:#x}")
    now(first[:EARLY])
    p.wait_vm("ln")
    if DIAG and not DIAG2: p.items.append(stamp(3))
    emit_ln(p)
    p("ds_write_b128 v48, v[40:43]")
    p("ds_write_b128 v48, v[44:47] offset:16")
    p("s_lshr_b32 s58, s2, 1")
    p("s_lshl_b32 s58, s58, 14")
    p("s_and_b32 s59, s2, 1")
    p("s_lshl_b32 s59, s59, 7")
    p("s_add_u32 s58, s58, s59")
    p("s_add_u32 s58, s58, s49")
    if WS_XN: p(f"s_add_u32 s58, s58, {WS_XN:#x}")
    p("s_waitcnt lgkmcnt(0)")
    p("s_barrier")
    p("ds_read_b128 v[40:43], v49")
    p("ds_read_b128 v[44:47], v49 offset:1024")
    p("s_lshr_b32 s59, s2, 4")
    p(f"s_lshl_b32 s59, s59, {XSH}")
    p("s_waitcnt lgkmcnt(0)")
    p(f"buffer_store_dwordx4 v[40:43], v50, s[20:23], s58 offen{STF}", "xnst")
    p(f"buffer_store_dwordx4 v[44:47], v50, s[20:23], s58 offen offset:2048{STF}", "xnst")
    p(f"buffer_store_dword v250, v248, s[20:23], s63 offen{STF}", "zf")
    p(f"buffer_store_dword v250, v248, s[20:23], s63 offen offset:4{STF}", "zf")
    p(f"buffer_store_dword v250, v248, s[20:23], s3 offen{STF}", "zf")
    if ASYM:
        p("s_getreg_b32 s56, hwreg(HW_REG_XCC_ID)")
        p("s_and_b32 s56, s56, 1")
        p("v_mov_b32 v53, s56")
        p("s_lshl_b32 s56, s2, 12")
        p(f"buffer_store_dword v53, v248, s[4:7], s56 offen offset:4{STF}", "zf")
    p(f"s_add_u32 s63, s63, 0x20000")
    p(f"buffer_store_dword v250, v248, s[20:23], s63 offen offset:8{STF}", "zf")
    p(f"buffer_store_dword v250, v248, s[20:23], s63 offen{STF}", "zf")
    p(f"buffer_store_dword v250, v248, s[20:23], s63 offen offset:4{STF}", "zf")

    if os.environ.get("PADS"):
        p(f"s_mov_b32 s56, {int(os.environ['PADS'])}")
        p.label("L_pads")
        for k in range(64): p("s_nop 3")
        p("s_sub_u32 s56, s56, 1")
        p("s_cmp_lg_u32 s56, 0")
        p("s_cbranch_scc1 L_pads")
    if os.environ.get('PFW8'):
        p('s_waitcnt vmcnt(0)'); p.items.append(stamp(2))
    if HYB and HP1 == 1: p(HPA, "pf")
    if HYB and HP2 == 0: p(HPW, "pf")
    now(first[EARLY:])
    if HYB and HP1 == 2: p(HPA, "pf")
    if HYB and HP2 == 1: p(HPW, "pf")

    groups = []
    def accT(base, c, cf, rb): return base + (c * 4 + rb) * 8 + cf * 4
    def accV(base, c, cf, rb): return base + ((c * 2 + cf) * 2 + (rb >> 1)) * 8 + (rb & 1) * 4
    def add_double(seg0, bases, vt=True):
        order = [(s, tt, c) for s in range(8) for tt in range(2) for c in range(4)]
        if KD and vt: order = sorted(order[:16], key=lambda x: x[2] >> 1) + order[16:]
        if KD and not vt: order = order[:56] + sorted(order[56:], key=lambda x: -(x[2] >> 1))
        order = [(s, tt, c, cf) for s, tt, c in order for cf in range(2)]
        if "g" in CH: order = [(s, tt, c, cf) for s in range(8) for c in range(4) for cf in range(2) for tt in range(2)]
        if "g" in CH and KD and vt: order = sorted(order[:32], key=lambda x: x[2] >> 1) + order[32:]
        if "g" in CH and KD and not vt: order = order[:112] + sorted(order[112:], key=lambda x: -(x[2] >> 1))
        for s, tt, c, cf in order:
            if True:
                groups.append(dict(off=BLK[seg0 + s] * 16384 + c * 4096 + tt * 2048, cf=cf, t=2 * s + tt,
                                   acc=[(accV if vt else accT)(bases[c >> 1], c & 1, cf, rb) for rb in range(4)], vt=vt))
    def quad(seg): return 'G' in CH and ((4 <= seg < 8 and not KD) or seg >= 16)
    def add_single(seg0, base):
        if ASYM and seg0 == 20:
            for cf in range(2):
                for q in range(4):
                    for tq in range(4):
                        for c in range(2):
                            groups.append(dict(off=BLK[seg0 + q] * 16384 + c * 8192 + tq * 2048, cf=cf, t=4 * q + tq,
                                               acc=[accT(base, c, cf, rb) for rb in range(4)], vt=False))
            return
        for q in range(4):
            od = [(tq, c, cf) for c in range(2) for tq in range(4) for cf in range(2)] if seg0 + q == 31 else [(tq, c, cf) for tq in range(4) for c in range(2) for cf in range(2)]
            if "g" in CH:
                od = [(2 * tp + e, c, cf) for c in range(2) for tp in range(2) for cf in range(2) for e in range(2)] if seg0 + q == 31 else \
                     [(2 * tp + e, c, cf) for tp in range(2) for c in range(2) for cf in range(2) for e in range(2)]
            if quad(seg0 + q): od = [(tq, c, cf) for c in range(2) for cf in range(2) for tq in range(4)]
            for tq, c, cf in od:
                groups.append(dict(off=BLK[seg0 + q] * 16384 + c * 8192 + tq * 2048, cf=cf, t=4 * q + tq,
                                   acc=[accT(base, c, cf, rb) for rb in range(4)], vt=False))
    if KD: add_double(0, [0, 64], False)
    else: add_single(0, 0); add_single(4, 64)
    add_double(8, [128, 0])
    add_single(16, 64); add_single(20, 128); add_single(24, 0); add_single(28, 64)
    NG = len(groups)
    mf = []
    seqm = [(n, rb) for n in range(NG) for rb in range(4)]
    if "g" in CH: seqm = [(n + e, rb) for n in range(0, NG, 2) for rb in range(4) for e in range(2)]
    if "G" in CH:
        seqm = []
        for n in range(0, NG, 4):
            if quad(n // 16): seqm += [(n + (e if rb % 2 == 0 else 3 - e), rb) for rb in range(4) for e in range(4)]
            else: seqm += [(n + h + e, rb) for h in (0, 2) for rb in range(4) for e in range(2)]
    seen = set()
    for n, rb in seqm:
        G = groups[n]
        w = vr(192 + 4 * (n % 8))
        a = ar((rb * 16 + G["t"]) * 4)
        d = vr(G["acc"][rb])
        key = (d, 0 if (KD and n < 128) else n // 64 if not 128 <= n < 256 else 2)
        c = d if key in seen else 0
        seen.add(key)
        mf.append(f"{MF} {d}, {a}, {w}, {c}" if G["vt"] else f"{MF} {d}, {w}, {a}, {c}")
    S = Sched16(mf)
    def w_reads(n):
        G = groups[n]
        out = []
        for hf in range(2):
            off = G["off"] + hf * 256
            d = 192 + 4 * (n % 8) + 2 * hf
            out.append(f"ds_read_b64_tr_b16 v[{d}:{d + 1}], v{234 + 3 * G['cf'] + (off >> 16)} offset:{off & 0xffff}")
        return out
    def a_reads(s):
        return [f"ds_read_b128 {ar((rb * 16 + 2 * s + tt) * 4)}, v{232 + tt} offset:{(s % 3) * 8192 + rb * 256}" for tt in range(2) for rb in range(4)]
    RA = 5
    if DIAG and not DIAG2: p.items.append(stamp(4))
    p.wait_vm(("A", 0))
    p("s_barrier")
    if DIAG and not DIAG2: p.items.append(stamp(5))
    for x in a_reads(0): p(x, ("Ar", 0))
    for n in range(RA):
        for x in w_reads(n): p(x, ("W", n))
    p.wait_lgkm(("W", 1 if "g" in CH else 0))
    for n in range(RA, NG):
        k = n % 16
        if k <= 13: g = 4 * (n - RA)
        elif k == 14: g = 4 * (n - 6) + 2
        else: g = 4 * (n - 6)
        if quad(n // 16) or (n >= 8 and quad((n - 8) // 16)): g = 16 * (n // 4 - 1) + 2 * (n % 4)
        for i, x in enumerate(w_reads(n)): S.add_mem(g + i, x, ("W", n))
    if "g" in CH:
        for n in range(2, NG, 2): S.add_first(4 * n - 1 if not (quad(n // 16) and n % 4) else 4 * n - 7, Wait("lgkm", ("W", n + 1)))
    else:
        for n in range(1, NG): S.add_first(4 * n - 1, Wait("lgkm", ("W", n)))
    for s in range(1, 8):
        g = 32 * s - 22 if not KD else 64 * s - 38
        S.add_first(g, Wait("vm", ("A", s)))
        for i, x in enumerate(a_reads(s)): S.add_mem(g + [0, 0, 1, 1, 4, 4, 5, 5][i], x, ("Ar", s))
        S.add_first(g + 12, Wait("lgkm", ("Ar", s)))
    def gB(n): return 64 * n + 4 * 11
    GBS = [n for n in range(31) if n < 8 or not GB2 or n % 2 == 1]
    if GB2 == 4: GBS = list(range(8)) + [11, 15, 19, 23, 25, 27, 29]
    if ASYM: GBS = sorted(set(GBS) - {21} | {KVPUB})
    for n in GBS:
        nxt = min([x for x in GBS if x > n] + [31])
        if ASYM and n == 19: nxt = 23
        tags = [("L", nxt)]
        if n == 0: tags += ["xnst", "zf"]
        if n == KVPUB: tags.append("kvst")
        if n == 29: tags.append(("kv", 0, 0))
        S.add_first(gB(n) - 2, Ins("s_waitcnt lgkmcnt(0)"))
        S.add_first(gB(n), Wait("vm", tags))
        S.add_first(gB(n), "s_barrier")
    assert KVPUB in GBS
    def win(n): return gB(n - 1) + 1
    def freed(seg): return gB(min(x for x in GBS if x >= (23 if ASYM and 20 <= seg < 23 else seg))) + 1
    def lfree(n):
        prev = [m for m in range(n) if BLK[m] == BLK[n]]
        return freed(prev[-1]) if prev else freed(6 if KD else 3)
    def lmax(n):
        c = max(x for x in GBS if x < n); last = min([x for x in GBS if x > c] + [31])
        if ASYM and 20 <= n <= 23: c, last = 19, 23
        return gB(c) - 130 - 36 * (last - n)
    def bfree(blk): return freed(max(m for m in range(32) if BLK[m] == blk))
    LD = []
    def ld(ops, e, pace=1):
        for i, (pre, ins, tag) in enumerate(ops):
            for x in pre: LD.append(Op(x, e + i * pace - 3, 2040))
            LD.append(Op(ins, e + i * pace, 2040, tag=tag, deps=[LD[-2]] if len(pre) == 2 else []))
    one = lambda ins, tag, pre=(): [([], x, None) for x in pre] + [([], ins, tag)]
    if KD:
        pfv = one("buffer_load_dword v246, v253, s[16:19], s62 offen" + NTV, "pf")
        for st in range(2, 8):
            ld(dma_W(st), max(0 if st < 4 else win(st - 3), 64 * (st - 2) + KL), KP)
            ld(dma_A(st), max(0 if st < 4 else 64 * (st - 3) - 26, 64 * (st - 2) + KL + 4 * KP), KP)
            if HYB and st == 2: ld(one(HPW, "pf"), 0)
            if st == PFVP and "v" in PFW: ld(pfv, 0)
        ld(one("buffer_atomic_add v249, v248, s[4:7], s59 offen", "pub"), win(5))
        for n in range(8, 13): ld(dma_W(n), lfree(n), 3)
    else:
        if ALEAD == 3:
            ld(dma_A(3), 0); ld(dma_W(2), 8); ld(dma_A(4), 22)
            ld(dma_A(5), 54); ld(dma_W(3), 62); ld(dma_A(6), 86); ld(dma_A(7), 118); ld(dma_W(4), 126); ld(dma_W(5), 140, 4)
        else:
            ld(dma_W(1), 0); ld(dma_A(2), 0)
            if HYB and HP2 == 2: ld(one(HPW, "pf"), 0)
            k1 = lambda st: ld(one("buffer_load_dword v247, v253, s[12:15], s62 offen", "pf"), 0) if HP3 == st else None
            ld(dma_A(3), 20); k1(3); ld(dma_W(2), 40); ld(dma_A(4), 52); k1(4); ld(dma_A(5), 84); k1(5); ld(dma_W(3), 100)
            ld(dma_A(6), 116); ld(dma_A(7), 144); ld(dma_W(4), 156); ld(dma_W(5), 160)
        if not BYTEF: ld(one("buffer_atomic_add v249, v248, s[4:7], s59 offen", "pub"), win(3))
        else: S.add_mem(win(BYTEF), "buffer_store_byte v249, v248, s[4:7], s2 offen sc1", "pub")
        if "v" in PFW: ld(one("buffer_load_dword v246, v253, s[16:19], s62 offen" + NTV, "pf"), win(3))
        ld(dma_W(6), win(3), 2)
        ld(dma_W(7), VW0 - 24, 4)
        for n in range(8, 13): ld(dma_W(n), VW0 + (n - 8) * VWP, 3)
    ld(one("buffer_load_dword v250, v245, s[12:15], s61 offen", "pf", ["s_mov_b32 s12, s40", "s_mov_b32 s13, s41", f"s_mov_b32 s14, {512 * 3584}"])[:4 if "g" in PFW else 3], win(8 if KD else GPW))
    print("ld1", schedule(S, [LD], 0, 511, base_cap=LCAP), "last", LD[-1].g, [o.g for o in LD if o.tag in ("pf", "poll")])
    gc = XNC
    S.add_mem(XPL if XPL else gc - 50, XPOLL, "poll")
    S.add_first(gc, Wait("vm", "poll"))
    S.add_valu(gc, XCMP)
    S.add_valu(gc, "v_add_u32 v247, 0x10000, v240")
    S.add_last(gc + 2, "s_cbranch_vccnz L_xnwait")
    S.add_last(gc + 2, "L_xnok:")
    BK0, BK1 = 1408, 1536
    if ASYM:
        S.add_valu(gc + 4, "v_readfirstlane_b32 s48, v225")
        ro = ["s_xor_b32 s48, s48, s2", "s_and_b32 s48, s48, 1",
              "s_and_b32 s55, s29, 3", "s_lshr_b32 s56, s55, 1", "s_add_u32 s56, s56, 4", "s_and_b32 s31, s55, 1", "s_mul_i32 s31, s31, s48",
              ["s_cmp_eq_u32 s48, 1", "s_cselect_b32 s55, s56, s55"], "s_lshr_b32 s56, s34, 1", "s_mul_i32 s56, s56, 6", "s_add_u32 s55, s55, s56",
              "s_add_u32 s55, s55, 32",
              "s_lshr_b32 s56, s28, 1", f"s_mul_i32 s64, s56, {64 * 3584}", "s_lshl_b32 s56, s55, 6", "s_add_u32 s64, s64, s56",
              "s_lshl_b32 s56, s31, 5", "s_add_u32 s64, s64, s56",
              "s_lshl_b32 s56, s55, 10", f"s_add_u32 s56, s56, {128 * 1024}", "s_add_u32 s98, s56, s32", "s_add_u32 s99, s56, s33",
              "s_lshl_b32 s31, s31, 3", "s_add_u32 s54, s98, s31", "s_add_u32 s55, s99, s31", "s_mov_b32 s56, 0x7f000000",
              ["s_cmp_eq_u32 s48, 1", "s_cselect_b32 s98, s56, s98", "s_cselect_b32 s99, s56, s99", "s_cselect_b32 s54, s54, s56", "s_cselect_b32 s55, s55, s56"]]
        g = gc + 6
        for x in ro:
            while S.first[g]: g += 1
            for y in (x if isinstance(x, list) else [x]): S.add_first(g, y)
            g += 1
        for g in range(BK0, BK1): S.add_last(g, Ins("BLACK")); S.add_last(g, Ins("BLACK"))
    LD = []
    for n in range(13, 24): ld(dma_W(n), max(min(win(9) + (n - 13) * 44 if n < WSH else win(n - 4), lmax(n)), lfree(n)), 8)
    S.add_valu(64 * 12, "v_and_b32 v253, 0xfffffbff, v253")
    S.add_valu(64 * 12 + 1, "v_bfe_u32 v246, v254, 3, 1")
    S.add_valu(64 * 12 + 2, "v_lshl_or_b32 v253, v246, 30, v253")
    ld(one("buffer_load_dword v244, v253, s[8:11], s52 offen", "pf", ["s_mov_b32 s8, s36", "s_mov_b32 s9, s37", "s_mov_b32 s10, 0x400000"])[:4 if "q" in PFW else 3], win(17 if WSH > 20 else WQW) if not ASYM else 1170)
    for n in range(24, 32):
        if n == 28 and PFOG:
            S.add_valu(1400, "v_and_b32 v245, 0xfff, v252")
            S.add_valu(1401, "v_or_b32 v245, v245, v251")
            ld(one("buffer_load_dword v250, v245, s[4:7], s50 offen", "pf", ["s_mov_b32 s4, s38", "s_mov_b32 s5, s39", "s_mov_b32 s6, 0x400000", "s_mov_b32 s7, 0x20000",
                   "s_lshl_b32 s50, s2, 2", "s_add_u32 s50, s50, s28", "s_lshl_b32 s50, s50, 12"]), PFOG - 8)
            ld(one("buffer_load_dword v253, v245, s[12:15], s50 offen", "pf", ["s_mov_b32 s12, s96", "s_mov_b32 s13, s97", f"s_mov_b32 s14, {1792 * 1024}"]), PFOG - 8)
            if NTX: ld(one("buffer_load_dword v244, v245, s[24:27], s50 offen", "pf"), PFOG - 8)
        ld(dma_W(n), max((1270 if ASYM else win(19) if WSH > 20 else win(21) + 20) + (n - 24) * (32 if ASYM else 50 if WSH > 20 else 36), lfree(n), PFOG + 120 + 20 * (n - 28) if PFOG and n >= 28 else 0), 8 if n < 28 or not PFOG else 4)
    S.add_valu(64 * 26, "v_and_b32 v243, 0x380, v252")
    for x in ["s_add_u32 s16, s20, s51", "s_addc_u32 s17, s21, 0"]: S.add_last(64 * 26, x)
    for x in ["s_sub_u32 s18, 16, s30", "s_lshl_b32 s18, s18, 16"]: S.add_last(64 * 26 + 1, x)
    ld(one("buffer_load_dword v244, v243, s[20:23], s59 offen sc1", "poll2", ["s_lshl_b32 s59, s29, 10", f"s_add_u32 s59, s59, {WS_FLAG + 0x10000:#x}"]), 64 * 27 + KPD)
    gc = win(28) + 1 + KPD
    for k in range(7): ld(kv_half(k // 2, k % 2), max(gc + 4 + 16 * k, bfree(k)), 4)
    S.add_first(gc, Wait("vm", "poll2"))
    S.add_valu(gc, "v_cmp_ne_u32 vcc, 1, v244")
    S.add_last(gc + 2, "s_cbranch_vccnz L_kvwait")
    S.add_last(gc + 2, "L_kvok:")
    print("ld2", schedule(S, [LD], 512, 2046, base_cap=2), "last", LD[-1].g, [(o.tag, o.g) for o in LD if o.mem][::4])
    def xe(t, rb):
        if "g" in CH and KD and t < 4: return 640 + 3 * (4 * t + rb)
        if "g" in CH: return 512 + 64 * (t // 2 + 1) + (7 if t < 14 else 3) * (4 * (t & 1) + rb)
        return 512 + 32 * t + 32 + (6 * rb if t < 15 else 0)
    XL = []
    for t in range(16):
        for rb in range(4):
            pre = []
            if t % 4 == 0 and rb % 2 == 0: pre = [f"s_add_u32 s{62 + rb // 2}, s{46 + rb // 2}, {WS_XN + t * 1024}"]
            vo = 240 if rb % 2 == 0 else 247
            XL.append(Op(f"buffer_load_dwordx4 {ar((rb * 16 + t) * 4)}, v{vo}, s[20:23], s{62 + rb // 2} offen offset:{(t % 4) * 1024}{XSC}",
                         max(xe(t, rb), XNC + 4 + int(XP * (4 * t + rb))), 1024 + 16 * (t & ~3) - 60 if t < 10 else xe(t, rb) + 40, pre=pre, tag=("X", t)))
    for t in range(16): S.add_first(1024 + 16 * (t & ~3 if "G" in CH else t & ~1 if "g" in CH else t) - 2, Wait("vm", ("X", t)))
    def kv_epi(kind, u, base, g0, g1, st0):
        ops = []
        for k8 in range(8):
            R = base + 8 * k8
            if kind == "K":
                c, rb = k8 // 4, k8 % 4
                off = rb * 4096 + (2 * u + c) * 1024
                for r in range(8): ops.append(Op(f"v_mul_f32 v{R + r}, s58, v{R + r}", g0, g1))
            else:
                db, s = 4 * u + k8 // 2, k8 % 2
                off = 16384 + s * 8192 + db * 1024
            cv = [Op(f"v_cvt_pk_bf16_f32 v{R + k}, v{R + 2 * k}, v{R + 2 * k + 1}", g0, g1) for k in range(4)]
            ops += cv
            ops.append(Op(f"s_add_u32 s95, s94, {off & ~4095}", g0, g1))
            ops.append(Op(f"buffer_store_dwordx4 {vr(R)}, v240, s[20:23], s95 offen offset:{off & 4095}{STF}", max(g0, st0[0] + int(k8 * st0[1])), g1, [cv[-1]], tag="kvst"))
        return ops
    S.add_first(250, f"s_mov_b32 s58, {f2u(KSCALE):#x}")
    C0 = -2.0 * math.sqrt(2.0 / math.pi) * LOG2E
    C1 = C0 * 0.044715
    S.add_valu(64 * 17, f"v_mov_b32 v232, {f2u(C0):#x}")
    S.add_valu(64 * 17 + 1, f"v_mov_b32 v233, {f2u(C1):#x}")
    S.add_valu(64 * 17 + 2, f"v_add_u32 v246, {4 * ACT_ROW}, v240")
    def gu_epi(base, psg, g0, g1, gst):
        st = [[], []]; sto = []
        for rb in range(4):
            G = base + rb * 8; U = base + 32 + rb * 8
            L = st[rb & 1]
            for r in range(8):
                t = 224 + (r % 4) + 4 * (rb & 1)
                o4 = Op(f"v_exp_f32 v{t}, v{t}", g0, g1)
                o7 = Op(f"v_rcp_f32 v{t}, v{t}", g0, g1)
                L += [Op(f"v_mul_f32 v{t}, v{G + r}, v{G + r}", g0, g1), Op(f"v_fma_f32 v{t}, v{t}, v233, v232", g0, g1),
                      Op(f"v_mul_f32 v{t}, v{t}, v{G + r}", g0, g1), o4, Op(f"v_mul_f32 v{G + r}, v{G + r}, v{U + r}", g0, g1),
                      Op(f"v_add_f32 v{t}, 1.0, v{t}", g0, g1), o7, Op(f"v_mul_f32 v{G + r}, v{G + r}, v{t}", g0, g1, [o7])]
            cv = [Op(f"v_cvt_pk_bf16_f32 v{G + k}, v{G + 2 * k}, v{G + 2 * k + 1}", g0, g1 - 2) for k in range(4)]
            L += cv
            sto.append(Op(f"buffer_store_dwordx4 {vr(G)}, v{240 if rb % 2 == 0 else 246}, s[20:23], s{psg + rb // 2} offen{STF}", gst + 30 * rb, g1, [cv[-1]], tag="hst"))
            if ASYM and psg == 98:
                sto.append(Op(f"buffer_store_dwordx2 v[{G}:{G + 1}], v{240 if rb % 2 == 0 else 246}, s[20:23], s{54 + rb // 2} offen{STF}", gst + 30 * rb, g1, tag="hst"))
        return st, sto
    def q_epi(base, u, g0, g1, gmove):
        cvs = []; mv = []
        for c in range(2):
            for qb in range(4):
                R = base + (c * 4 + qb) * 8
                for k in range(4):
                    o = Op(f"v_cvt_pk_bf16_f32 v{R + k}, v{R + 2 * k}, v{R + 2 * k + 1}", g0, g1)
                    cvs.append(o)
                    mv.append(Op(f"v_accvgpr_write_b32 a{Qreg(qb, 2 * u + c) + k}, v{R + k}", gmove, g1, [o]))
        return cvs, mv
    PH = [256 * k for k in range(9)]
    PE = 2048
    kvs = kv_epi("K", 0, 0, PH[1] + 6, PH[2] - 3, (PH[1] + 16, STP)) + kv_epi("K", 1, 64, PH[2] + 6, PH[4] - 3, (PH[2] + 16, STPK1)) + \
          kv_epi("V", 0, 128, PH[4] + 6, PH[5] - 3, (PH[4] + 12, STPV)) + kv_epi("V", 1, 0, PH[4] + 6, (BK0 if ASYM else PH[6]) - 3, (PH[4] + 12 + 8 * STPV, STPV))
    kst = []
    if KD:
        kvs = []
        for u, base, g0 in ((1, 64, 512 - 32 + 6), (0, 0, 512 + 6)):
            for k8 in range(8):
                R = base + 8 * k8; P = 64 + 8 * k8 + (4 if u == 0 else 0)
                c, rb = k8 // 4, k8 % 4
                off = rb * 4096 + (2 * u + c) * 1024
                kvs += [Op(f"v_mul_f32 v{R + r}, s58, v{R + r}", g0, 573) for r in range(8)]
                cv = [Op(f"v_cvt_pk_bf16_f32 v{P + k}, v{R + 2 * k}, v{R + 2 * k + 1}", g0, 573) for k in range(4)]
                kvs += cv
                kst.append(Op(f"s_add_u32 s95, s94, {off & ~4095}", g0, PH[4] - 3))
                kst.append(Op(f"buffer_store_dwordx4 {vr(P)}, v240, s[20:23], s95 offen offset:{off & 4095}{STF}", 560 + int(len(kst) // 2 * STP), PH[4] - 3, [cv[-1]], tag="kvst"))
        kvs += kv_epi("V", 0, 128, PH[4] + 6, PH[5] - 3, (PH[4] + 12, STPV)) + kv_epi("V", 1, 0, PH[4] + 6, PH[6] - 3, (PH[4] + 12 + 8 * STPV, STPV))
    print("kv epi", schedule(S, [XL, kvs, kst], PH[1], PH[6]), "last store", kvs[-1].g, "pub at", gB(KVPUB))
    assert kvs[-1].g < gB(KVPUB)
    st0, so0 = gu_epi(64, 100, PH[5] + 6, PH[7] - 3, PH[6])
    st1, so1 = gu_epi(128, 98, PH[6] + 6, PE - 2, PH[6] + 130)
    q0c, q0m = q_epi(0, 0, PH[7] + 6, PE - 2, PH[7] + 130)
    q1c, q1m = q_epi(64, 1, PE - 32 + 5, PE - 1, PE - 32 + 5)
    k0r = [Op(f"ds_read_b128 {ar(Fbuf(f))}, v240 offset:{f * 1024}", max(gB(29) + 1, PH[7] + 16 * (f | 3) + 16), PE - 2, tag=("K0", f)) for f in range(12)]
    print("gu epi", schedule(S, [st0[0] + st1[0], st0[1] + st1[1], so0 + so1, q0c + q1c[:16], q0m + q1m[:16], k0r], PH[5], PE - 1))
    S.add_mem(gB(KVPUB) + 2, f"buffer_store_dword v249, v248, s[20:23], s3 offen{STF}", "pub")
    if DIAG and not DIAG2:
        S.add_first(512, stamp(6)); S.add_first(1024, stamp(7)); S.add_first(PE - 1, stamp(8))
    if DIAG2:
        for k, g in enumerate(DIAG2): S.add_first(g, stamp(2 + k))
    skip_stub = []
    if ASYM:
        for g in range(BK0, BK1): S.last[g] = [x for x in S.last[g] if not (isinstance(x, Ins) and x.t == "BLACK")]
        S.add_last(BK0 - 1, "s_cmp_eq_u32 s48, 1"); S.add_last(BK0 - 1, "s_cbranch_scc1 L_gskip"); S.add_last(BK0 - 1, "L_gblk:")
        S.add_last(BK1 - 1, "L_gjoin:")
    print(S.report("gemm")[:600])
    its = S.items()
    DROP = os.environ.get("DROP", "").split(",")
    def keep(i):
        if isinstance(i, Ins):
            tg = i.tag[0] if isinstance(i.tag, tuple) else i.tag
            if tg in DROP and tg: return False
        if isinstance(i, Wait):
            tags = i.tag if isinstance(i.tag, list) else [i.tag]
            tags = [t for t in tags if (t[0] if isinstance(t, tuple) else t) not in DROP]
            if not tags: return False
            i.tag = tags
        return True
    p.extend([i for i in its if keep(i)])
    gemm_items = list(p.items)
    if ASYM:
        i0 = [k for k, x in enumerate(gemm_items) if isinstance(x, Ins) and x.t == "L_gblk:"][0]
        i1 = [k for k, x in enumerate(gemm_items) if isinstance(x, Ins) and x.t == "L_gjoin:"][0]
        def inblk(tg): return isinstance(tg, tuple) and tg[0] == "W" and tg[1] < BK1 // 4
        body = [x for x in gemm_items[i0 + 1:i1] if not ((isinstance(x, Ins) and (x.t.startswith("v_mfma") or inblk(x.tag))) or
                                                         (isinstance(x, Wait) and all(inblk(t) for t in (x.tag if isinstance(x.tag, list) else [x.tag]))))]
        npre_ = len(resolve(gemm_items[:i0 + 1]))
        skip_stub = ["L_gskip:"] + [x.t for x in resolve(gemm_items[:i0 + 1] + body)][npre_:] + ["s_waitcnt lgkmcnt(0)", "s_branch L_gjoin"]
        print("skip stub", skip_stub)
    n_gemm = len(resolve(gemm_items))
    sa, va = tail_setup()
    def gen_qk0(masked):
        mf = []; last = {}
        for kb in range(4):
            for t in range(4):
                for qb in range(4):
                    d = Sreg(0, qb, kb)
                    c = vr(d) if t else (0 if kb < 2 else vr(NEGM(qb)))
                    mf.append(f"{MF} {vr(d)}, {ar(Fbuf(kb * 4 + t))}, {ar(Qreg(qb, t))}, {c}")
                    last[(qb, kb)] = len(mf) - 1
        S = Sched16(mf)
        for f in range(1, 16): S.add_first(4 * f - 1, Wait("lgkm", ("K0", f)))
        for f in range(12, 16): S.add_mem(f - 12, f"ds_read_b128 {ar(Fbuf(f))}, v240 offset:{f * 1024}", ("K0", f))
        c1, m1 = q_epi(64, 1, 4, 9, 4)
        c1 = c1[16:]; m1 = m1[16:]
        su = ["v_and_b32 v241, 15, v254", "v_lshl_add_u32 v241, v255, 4, v241", "v_lshrrev_b32 v245, 4, v254", "v_lshlrev_b32 v245, 2, v245",
              "v_sub_u32 v241, v241, v245", "v_cvt_f32_i32 v241, v241", "v_add_f32 v241, 0.5, v241", f"v_mul_f32 v{VTMASK}, {f2u(BIG):#x}, v241"]
        SU = [Op(x, 0, 18) for x in su]
        su2 = [f"v_mov_b32 v{VCUR}, v240", f"v_add_u32 v{VPREV}, 0x10000, v240", "v_and_b32 v206, 31, v254", "v_lshlrev_b32 v206, 10, v206",
               "v_and_b32 v252, 0xfff, v252", "v_or_b32 v252, v252, v251"] + ([f"v_mov_b32 v{ONES + k}, 0x3f803f80" for k in range(4)] if not ONE1 else
                 [f"v_and_b32 v{ONES}, 15, v254", f"v_min_u32 v{ONES}, 1, v{ONES}", f"v_subrev_u32 v{ONES}, 1, v{ONES}", f"v_and_b32 v{ONES}, 0x3f803f80, v{ONES}"] +
                 [f"v_mov_b32 v{ONES + k}, v{ONES}" for k in range(1, 4)]) + va[:8] + va[-4:]
        SU += [Op(x, 0, 63) for x in su2]
        ss = [f"s_mov_b32 s{S_THR}, {f2u(LMAX if FAST else THR):#x}", "s_lshl_b32 s99, s30, 7", f"s_add_u32 s99, s99, {WS_FLAG + 0x20000:#x}", "s_lshl_b32 s98, s29, 10",
              "s_add_u32 s98, s98, s99", "s_mov_b32 s52, s49", f"s_add_u32 s53, s49, {3 * 32768 + 16384}", f"s_add_u32 s54, s49, {4 * 32768}",
              f"s_add_u32 s55, s49, {3 * 32768 + 16384}", "s_mov_b32 s4, s38", "s_mov_b32 s5, s39", "s_mov_b32 s6, 0x400000", "s_mov_b32 s7, 0x20000",
              "s_lshl_b32 s59, s2, 2", "s_add_u32 s59, s59, s28", "s_lshl_b32 s50, s59, 12", "s_mov_b32 s12, s96", "s_mov_b32 s13, s97",
              f"s_mov_b32 s14, {1792 * 1024}", "s_mov_b32 m0, s52"]
        SS = [Op(x, 0, 60) for x in ss]
        def mask_ops(kb, e0, dl):
            out = []
            if not masked: return out
            for qb in (2,):
                for r in range(4):
                    kk = 16 * kb + r
                    out.append(Op(f"v_subrev_f32 v{TMP[r % 2]}, {f2u(kk * BIG):#x}, v{VTMASK}", 19, dl))
                    out.append(Op(f"v_min_f32 v{Sreg(0, qb, kb) + r}, v{Sreg(0, qb, kb) + r}, v{TMP[r % 2]}", e0, dl))
            return out
        T0 = [128 + 2 * q for q in range(4)]
        dl = 29
        I = mask_ops(0, 20, dl)
        for q in range(4):
            b = Sreg(0, q, 0)
            I += [Op(f"v_max3_f32 v{T0[q]}, v{b}, v{b + 1}, v{b + 2}", 20, dl), Op(f"v_max_f32 v{T0[q]}, v{T0[q]}, v{b + 3}", 20, dl)]
        for sw in ("v_permlane32_swap_b32", "v_permlane16_swap_b32"):
            I += [Op(f"v_mov_b32 v{T0[q] + 1}, v{T0[q]}", 20, dl) for q in range(4)]
            I += [Op(f"{sw} v{T0[q]}, v{T0[q] + 1}", 20, dl) for q in range(4)]
            I += [Op(f"v_max_f32 v{T0[q]}, v{T0[q]}, v{T0[q] + 1}", 20, dl) for q in range(4)]
        if FAST: I += [Op(f"v_add_f32 v{T0[q]}, {f2u(SH):#x}, v{T0[q]}", 20, dl) for q in range(4)]
        for q in range(4): I += [Op(f"v_sub_f32 v{NEGM(q) + r}, 0, v{T0[q]}", 20, dl) for r in range(4)]
        post = []
        for kb in range(2):
            if kb: I += mask_ops(1, 36, 63)
            for q in range(4): I += [Op(f"v_sub_f32 v{Sreg(0, q, kb) + r}, v{Sreg(0, q, kb) + r}, v{T0[q]}", 36 if kb else 20, 63) for r in range(4)]
        first = True
        for kb in range(1, 4):
            ops = mask_ops(kb, 16 * kb + 20, 63) if kb > 1 else []
            for q in range(0 if FAST else 4):
                b = Sreg(0, q, kb)
                ops.append(Op(f"v_max_f32 v{MX[0]}, v{b}, v{b + 1}" if first else f"v_max3_f32 v{MX[0]}, v{MX[0]}, v{b}, v{b + 1}", 16 * kb + 20, 63)); first = False
                ops.append(Op(f"v_max3_f32 v{MX[0]}, v{MX[0]}, v{b + 2}, v{b + 3}", 16 * kb + 20, 63))
            if kb < 3: I += ops
            else: post = [o.t for o in ops]
        I += [Op(f"v_exp_f32 v{Sreg(0, qb, 0) + r}, v{Sreg(0, qb, 0) + r}", 36 if r < 8 else 54, 63) for qb, r in predone([0, 1, 2, 3])]
        print("qk0", schedule(S, [c1, m1, SU, SS, I], 0, 63), S.report("qk0")[:140])
        q = Prog()
        q.wait_lgkm(("K0", 0))
        q.extend(S.items())
        q.wait_vm(("kv", 1, 0))
        q("s_barrier")
        for ins in tail_reads(VCUR, 32768): q(ins)
        if not PFOG:
            for x in PFL[:PFM]: q(x.replace("s39", "s50"), "pf")
            q("s_mov_b32 s39, s50")
        for k in range(4): q(f"buffer_load_dwordx4 v240, s[16:19], s54 offen offset:{k * 1024}{KSC} lds", "kv")
        q("s_mov_b32 m0, s53")
        for x in post: q(x)
        if not FAST: q(f"v_cmp_lt_f32 vcc, s{S_THR}, v{MX[0]}")
        q(f"s_waitcnt lgkmcnt({NPRE - 1})")
        return [i.t for i in resolve(gemm_items + q.items)][n_gemm:]
    pro = [i.t for i in resolve(gemm_items)]

    stubs = []
    def check(site, par, dual):
        if FAST: return []
        stubs.append((site, par, dual))
        return [f"s_cbranch_vccnz L_stub_{site}", f"L_ret_{site}:"]
    def it_odd(name, tq, tp, masked, **kw):
        return gen_iter(name, tq, tp, 0, masked, 0, VCUR, 0, VPREV, 49152, VCUR, 32768, end_ops=check(name, 0, tq), **kw)
    def it_even(name, tq, tp, masked, extra_end=(), first_pv=False, **kw):
        if first_pv: kw["vmn"] = 8 if PFOG else 8 + len(PFL[:PFM])
        last = tq == "S1"
        return gen_iter(name, tq, tp, 1, masked, 1, VCUR, 32768, VCUR, 16384, VCUR if last else VPREV, 49152 if last else 0, first_pv=first_pv,
                        end_ops=check(name, 1, tq) + list(extra_end[2:]), swap=not last, mid_ops=extra_end[:2], **kw)
    seg = {}
    seg["G"] = pro
    for m in (False, True):
        nm = "m" if m else "u"
        seg["P" + nm] = gen_qk0(m) + check("qk0" + nm, 0, "D") + it_even("it0" + nm, "D1" if m else "D", "D", m, first_pv=True, salu=sa)
    seg["UDD"] = it_odd("uddA", "D", "D", False) + it_even("uddB", "D", "D", False, ["s_sub_u32 s47, s47, 1", "s_cmp_lg_u32 s47, 0", "s_cbranch_scc1 L_udd"])
    seg["UDDm"] = it_odd("uddmA", "D", "D", True) + it_even("uddmB", "D1", "D", True)
    fake = lambda tag, n: [Ins("buffer_load_dwordx4 v240, s[16:19], s55 offen lds", tag) for _ in range(n)]
    ee = gen_early_epi()
    seg["UDS"] = it_odd("udsA", "S", "D1", False) + it_even("udsB", "S", "S", False, xops=ee, vmn="need", raw=fake("need", 4) + fake("x", 12))
    seg["USS"] = it_odd("ussA", "S", "S", False) + it_even("ussB", "S", "S", False, ["s_sub_u32 s47, s47, 1", "s_cmp_lg_u32 s47, 0", "s_cbranch_scc1 L_uss"])
    g1, g2 = gp1(), gp2()
    vd = lambda adv: [(["s_mov_b32 m0, s53"] if q == 0 else [], f"buffer_load_dwordx4 v240, s[16:19], s55 offen offset:{q * 1024}{KSC} lds", "v") for q in range(4)]
    advv = ["s_add_u32 s55, s55, 0x8000", "s_add_u32 s53, s53, 0x8000", "s_and_b32 s53, s53, 0x1ffff"]
    n1, n2, n3 = PRE_SPLIT
    g1a = [(advv + list(g1[0][0]), g1[0][1], g1[0][2])] + g1[1:n1]
    xa, xb, xc, xd = vd(0) + g1a, vd(0) + g1[n1:n2], g1[n2:n3] + g2[:12], g1[n3:] + g2[12:]
    seg["USSp"] = it_odd("usspA", "S", "S", False, extra=xa, vmn="need", raw=fake("need", 4) + fake("x", 12)) + \
                  it_even("usspB", "S", "S", False, extra=xb, vmn="need", raw=fake("need", 4) + fake("x", 4 + len(xa)))
    seg["USSm"] = it_odd("ussmA", "S", "S", True, extra=xc, vmn="need", raw=fake("need", 4) + fake("x", len(xa) - 4 + len(xb))) + \
                  it_even("ussmB", "S1", "S", True, extra=xd, vmn="need", raw=fake("need", 4) + fake("x", len(xb) - 4 + len(xc)))
    flat = lambda ops: [y for pre, ins, tag in ops for y in list(pre) + [ins]]
    w01 = chunk(0, a=False) + chunk(1, a=False)
    w01 = [(advv + list(w01[0][0]), w01[0][1], w01[0][2])] + w01[1:]
    ya, yb = vd(0) + w01 + [([], HPOLL, "hp")], vd(0) + sentinels()
    seg["UDDm7"] = it_odd("uddm7A", "D", "D", True, extra=ya, vmn="need", raw=fake("need", 4) + fake("x", 12)) + \
                   it_even("uddm7B", "D1", "D", True, extra=yb, vmn="need", raw=fake("need", 4) + fake("x", 4 + len(ya)))
    za = ee_one(2, 32) + flat(chunk(0, w=False) + chunk(1, w=False))
    zb = ee_one(3, 32) + flat(chunk(2, w=False) + chunk(3, w=False))
    seg["UDSm"] = it_odd("udsmA", "S", "D1", True, extra=g2[:12], xops=za, vmn="need", raw=fake("need", 4) + fake("x", len(ya) - 4 + len(yb))) + \
                  it_even("udsmB", "S1", "S", True, extra=g2[12:], xops=flat(chunk(4, w=False) + chunk(5, w=False)) + zb, vmn="need",
                          raw=fake("need", 4) + fake("x", len(yb) - 4 + 12 + 12))
    seg["E"], tail_slow = gen_tail()
    seg["EE"] = []
    HC = ["v_cmp_ne_u32 vcc, 1, v207", "s_nop 0"]
    gpl = []
    for c in range(6):
        for pre, ins, tag in chunk(c, w=False): gpl += list(pre) + [ins]
    pf2 = [] if PFOG else PFL[PFM:]
    hpub = ["v_add_u32 v236, s58, v240", f"buffer_store_dword v249, v248, s[20:23], s98 offen{STF}"]

    out = list(seg["G"])
    out += ["s_cmp_lg_u32 s30, 0", "s_cbranch_scc1 L_pu"] + seg["Pm"] + ([stamp(9).t] if DIAG and not DIAG2 else []) + hpub
    out += ["L_uds:"] + pf2 + st4(4) + seg["UDS"] + st4(5) + seg["EE"] + st4(6)
    out += ["s_lshl_b32 s47, s30, 1", "s_sub_u32 s47, 12, s47", "s_cmp_eq_u32 s47, 0", "s_cbranch_scc1 L_ussp"]
    out += [f".p2align {AL}", "L_uss:"] + seg["USS"]
    out += ["L_ussp:"] + st4(7) + ["s_waitcnt vmcnt(20)"] + HC + ["s_cbranch_vccnz L_hwait", "L_hok:"] + opf() + seg["USSp"] + seg["USSm"]
    out += ["L_fin:"] + st4(8) + seg["E"]
    out += ["L_f_end:", "s_endpgm"]
    out += ["L_pu:"] + seg["Pu"]
    if DIAG and not DIAG2: out.append(stamp(9).t)
    out += (hpub + st4(2) if os.environ.get("HS") else st4(2) + hpub) + ["s_sub_u32 s47, s30, 1", "s_cmp_eq_u32 s47, 0", "s_cbranch_scc1 L_uddm"]
    out += [f".p2align {AL}", "L_udd:"] + seg["UDD"]
    out += ["s_cmp_eq_u32 s30, 7", "s_cbranch_scc1 L_last7"]
    out += ["L_uddm:"] + pf2 + st4(3) + seg["UDDm"]
    out += ["s_branch L_uds"]
    out += ["L_last7:"] + opf() + seg["UDDm7"] + ["s_waitcnt vmcnt(12)"] + HC + ["s_cbranch_vccnz L_h2wait", "L_h2ok:"] + seg["UDSm"] + ["s_branch L_fin"]
    out += spin("h", HPOLL, HC[0]) + spin("h2", HPOLL, HC[0])
    out += tail_slow + skip_stub
    if FAST: out += gen_safe()
    out += ["L_xnwait:", "s_mov_b32 s44, 0x40000", "L_xnspin:", "s_sub_u32 s44, s44, 1", "s_cbranch_scc1 L_xnok", "s_sleep 2",
            XPOLL, "s_waitcnt vmcnt(0)",
            XCMP, "s_cbranch_vccnz L_xnspin", "s_branch L_xnok"]
    out += ["L_kvwait:", "s_mov_b32 s44, 0x40000", "L_kvspin:", "s_sub_u32 s44, s44, 1", "s_cbranch_scc1 L_kvok", "s_sleep 2",
            "buffer_load_dword v244, v243, s[20:23], s59 offen sc1", "s_waitcnt vmcnt(0)",
            "v_cmp_ne_u32 vcc, 1, v244", "s_cbranch_vccnz L_kvspin", "s_branch L_kvok"]
    for site, par, tq in stubs:
        out += [f"L_stub_{site}:", f"s_call_b64 s[62:63], L_rare_{par}{tq}", f"s_branch L_ret_{site}"]
    for par, tq in sorted({(par, tq) for _, par, tq in stubs}):
        out += [f"L_rare_{par}{tq}:"] + gen_rare(par, QSET[tq])
    for path in (["G", "Pu", "UDD", "UDD", "UDDm", "UDS", "EE", "USS", "USS", "USSp", "USSm", "E"], ["G", "Pm", "UDS"], ["UDD", "UDDm7", "UDSm", "E"]):
        tx = []
        for k in path: tx += seg[k]
        for e in lint(tx, "f")[:40]: print(e)
    return out

KVPUB = int(os.environ.get("KVPUB", "24" if ASYM else "23"))
STPV = float(os.environ.get("STPV", "23" if ASYM else "26"))
STP = float(os.environ.get("STP", "29"))
STPK1 = float(os.environ.get("STPK1", "50"))
VW0 = int(os.environ.get("VW0", "340"))
WP = int(os.environ.get("WP", "14"))
XNC = int(os.environ.get("XNC", "540"))
LCAP = int(os.environ.get("LCAP", "3"))
WSH = int(os.environ.get("WSH", "18"))
XP = float(os.environ.get("XP", "5"))
PFOG = int(os.environ.get("PFOG", "0"))
AL = int(os.environ.get("AL", "3"))
XBAR = int(os.environ.get("XBAR", "1"))
NTX = os.environ.get("NTX", "")
PFM = int(os.environ.get("PFM", "2"))
PFL = [] if os.environ.get("NOPFO") else ["buffer_load_dword v253, v252, s[4:7], s39 offen", "buffer_load_dword v251, v252, s[12:15], s39 offen", "buffer_load_dword v250, v252, s[24:27], s39 offen"][:3 if os.environ.get("NTX") else 2]
WQW = int(os.environ.get("WQW", "20"))
ONE1 = int(os.environ.get("ONE1", "1"))
GUZ = int(os.environ.get("GUZ", "1"))
KD = int(os.environ.get("KD", "0"))
PFVP = int(os.environ.get("PFVP", "3"))
KPD = int(os.environ.get("KPD", "0"))
HYB = int(os.environ.get("HYB", "1"))
HA = int(os.environ.get("HA", "0xf0"), 0)
HW = int(os.environ.get("HW", "0xfa"), 0)
HE = int(os.environ.get("HE", "12"))
HP1 = int(os.environ.get("HP1", "0"))
HP2 = int(os.environ.get("HP2", "2"))
HP3 = int(os.environ.get("HP3", "0"))
KL = int(os.environ.get("KL", "0"))
KP = int(os.environ.get("KP", "4"))
CPF = int(os.environ.get("CPF", "1"))
if __name__ == "__main__":
    print(len(gen_f_kernel()))
```

```python
import sys
sys.path.insert(0, "dev")
from asmlib import *
NAME = "recurrent_scan__compressed_kv_cla__glu_gated_geglu__prompt"

DOC = """; One persistent launch, 256 workgroups (one per CU), 4 waves each, all matrix work on v_mfma_f32_16x16x32_bf16.
"""
def build(path, kernels):
    hdr = open(f"cdna_kernels/{NAME}.s.ref").read().split("\n")
    lines = [l for l in hdr if l.startswith(";") and "@launch" not in l and "Override launch" not in l and "grid=ceil" not in l]
    s = "\n".join(lines) + "\n"
    for name, lds, body in kernels:
        s += f"; @launch grid=(256,1,1) block=(256,1,1) lds={lds}\n"
    s += DOC + '.amdgcn_target "amdgcn-amd-amdhsa--gfx950"\n.text\n'
    for name, lds, body in kernels:
        s += f".globl {name}\n.p2align 8\n.type {name},@function\n{name}:\n"
        for t in body:
            s += (t if t.endswith(":") or t.startswith(".") else "    " + t) + "\n"
    s += 'L_code_end:\n    s_endpgm\n.section .rodata,"a"\n'
    for name, lds, body in kernels:
        s += kd(name)
    open(path, "w").write(s)
if __name__ == "__main__":
    import gen_f
    ks = [(gen_f.KNAME, 163840, gen_f.gen_f_kernel())]
    out = sys.argv[1] if len(sys.argv) > 1 else f"cdna_kernels/{NAME}.s"
    build(out, ks)
```

```python
from asmlib import *
from sched16 import *
import math, os, re
MF = "v_mfma_f32_16x16x32_bf16"
KNAME = "recurrent_scan__compressed_kv_cla__glu_gated_geglu__prompt_kernel"
WSB = int(os.environ.get("WSB", "0"), 0)
WS_XN = WSB + 0x0
WS_KV = WSB + 0x200000
WS_ACT = WSB + 0x2200000
WS_PART = WSB + 0x4000000
WS_FLAG = WSB + 0x5000000
ACT_ROW = 184 * 1024
LOG2E = 1.4426950408889634
KSCALE = LOG2E / math.sqrt(128.0)
BIG = 2.0 ** 100
THR = float(os.environ.get("THR", "40"))
FAST = int(os.environ.get("FAST", "1"))
NX = int(os.environ.get("NX", "8")) if FAST else 0
NXR = int(os.environ.get("NXR", "10"))
SH = float(os.environ.get("SH", "64"))
LMAX = 2.0 ** float(os.environ.get("LMAXE", "60"))
STF = " sc1"
CH = os.environ.get("CH", "gtqpQG")
ASYM = int(os.environ.get("ASYM", "0"))
LV = int(os.environ.get("LV", "1"))
BYTEF = int(os.environ.get("BYTEF", "0"))
XPOLL = "buffer_load_dword v244, v243, s[4:7], 0 offen sc1" if not ASYM else "buffer_load_dwordx2 v[224:225], v243, s[4:7], 0 offen sc1"
XSH = int(os.environ.get("XSH", "4"))
XCMP = "v_cmp_ne_u32 vcc, 0x01010101, v244" if BYTEF else ("v_cmp_gt_u32 vcc, 16, v224" if ASYM else "v_cmp_gt_u32 vcc, 16, v244")
XPL = int(os.environ.get("XPL", "418"))
VWP = int(os.environ.get("VWP", "14"))
GPW = int(os.environ.get("GPW", "7"))
ASC = os.environ.get("ASC", " sc1")
XSC = os.environ.get("XSC", " sc1")
KSC = os.environ.get("KSC", " sc1")
NT = os.environ.get("NT", "")
NTV = os.environ.get("NTV", "")
PFA = int(os.environ.get("PFA", "1"))
PFW = os.environ.get("PFW", "vgq")
NTD = os.environ.get("NTD", "")
NTA = " nt" if "a" in NTD else ""
ALEAD = int(os.environ.get("ALEAD", "2"))
EARLY = int(os.environ.get("EARLY", "0"))
OPF = int(os.environ.get("OPF", "0"))
WSB = int(os.environ.get("WSB", "0"), 0)
DIAG4 = bool(os.environ.get("DIAG4"))
st4 = lambda k: [stamp(k).t] if DIAG4 else []
LEADP = int(os.environ.get("LEADP", "14"))
GBS_ = int(os.environ.get("GBS_", "20"))
GBD_ = int(os.environ.get("GBD_", "22"))
DIAG3 = bool(os.environ.get("DIAG3"))
DIAG2 = [int(x) for x in os.environ.get("DIAG2", "").split(",") if x]
def vr(b, n=4): return f"v[{b}:{b + n - 1}]"
def ar(b, n=4): return f"a[{b}:{b + n - 1}]"
def srd(p, d, lo, size):
    p(f"s_mov_b32 s{d}, s{lo}")
    p(f"s_mov_b32 s{d + 1}, s{lo + 1}")
    p(f"s_mov_b32 s{d + 2}, {size:#x}")
    p(f"s_mov_b32 s{d + 3}, 0x20000")

def wave_reduce(p, regs_):
    steps = ["quad_perm:[1,0,3,2] row_mask:0xf bank_mask:0xf", "quad_perm:[2,3,0,1] row_mask:0xf bank_mask:0xf",
             "row_half_mirror row_mask:0xf bank_mask:0xf", "row_mirror row_mask:0xf bank_mask:0xf",
             "row_bcast:15 row_mask:0xa bank_mask:0xf", "row_bcast:31 row_mask:0xc bank_mask:0xf"]
    for st in steps:
        p("s_nop 1")
        for r in regs_: p(f"v_add_f32_dpp v{r}, v{r}, v{r} {st}")
    p("s_nop 1")
def round_bf16(p, dst, src):
    p(f"v_cvt_pk_bf16_f32 v{dst}, v{src}, v{src}")
    p(f"v_and_b32 v{dst}, 0xffff0000, v{dst}")

def emit_ln(p):
    for r in range(2):
        for k in range(4):
            p(f"v_lshlrev_b32 v{8 + 8 * r + 2 * k}, 16, v{4 * r + k}")
            p(f"v_and_b32 v{9 + 8 * r + 2 * k}, 0xffff0000, v{4 * r + k}")
    for r in range(2):
        b = 8 + 8 * r
        p(f"v_add_f32 v{24 + r}, v{b}, v{b + 1}")
        for k in range(2, 8): p(f"v_add_f32 v{24 + r}, v{24 + r}, v{b + k}")
    wave_reduce(p, [24, 25])
    p("v_readlane_b32 s58, v24, 63")
    p("v_readlane_b32 s59, v25, 63")
    p(f"v_mov_b32 v30, {f2u(1.0 / 512):#x}")
    p("s_nop 1")
    for r in range(2): p(f"v_mul_f32 v{26 + r}, s{58 + r}, v30")
    for r in range(2):
        b = 8 + 8 * r
        for k in range(8): p(f"v_sub_f32 v{32 + k}, v{b + k}, v{26 + r}")
        p(f"v_mul_f32 v{24 + r}, v32, v32")
        for k in range(1, 8): p(f"v_fmac_f32 v{24 + r}, v{32 + k}, v{32 + k}")
    wave_reduce(p, [24, 25])
    p("v_readlane_b32 s58, v24, 63")
    p("v_readlane_b32 s59, v25, 63")
    p("s_nop 1")
    for r in range(2):
        p(f"v_mul_f32 v{28 + r}, s{58 + r}, v30")
        round_bf16(p, 28 + r, 28 + r)
        p(f"v_add_f32 v{28 + r}, {f2u(1e-5):#x}, v{28 + r}")
        round_bf16(p, 28 + r, 28 + r)
        p(f"v_sqrt_f32 v{28 + r}, v{28 + r}")
        p("s_nop 0")
        round_bf16(p, 28 + r, 28 + r)
        p(f"v_rcp_f32 v{28 + r}, v{28 + r}")
        round_bf16(p, 26 + r, 26 + r)
    for r in range(2):
        b = 8 + 8 * r
        for k in range(8): p(f"v_sub_f32 v{b + k}, v{b + k}, v{26 + r}")
        for k in range(4): p(f"v_cvt_pk_bf16_f32 v{32 + k}, v{b + 2 * k}, v{b + 2 * k + 1}")
        for k in range(4):
            p(f"v_lshlrev_b32 v{b + 2 * k}, 16, v{32 + k}")
            p(f"v_and_b32 v{b + 2 * k + 1}, 0xffff0000, v{32 + k}")
        for k in range(8): p(f"v_mul_f32 v{b + k}, v{b + k}, v{28 + r}")
        for k in range(4): p(f"v_cvt_pk_bf16_f32 v{40 + 4 * r + k}, v{b + 2 * k}, v{b + 2 * k + 1}")

def ln_ops(g0, g1):
    p = Prog(); emit_ln(p)
    ops = []; lag = False
    for it in p.items:
        t = it.t
        if t.startswith("s_nop"): lag = True; continue
        t = re.sub(r"\bv(\d+)\b", lambda m: "v%d" % (int(m.group(1)) + 176 if int(m.group(1)) < 8 else int(m.group(1)) + 128), t)
        ops.append(Op(t, g0, g1, [ops[-1]] if lag else [], lag=2)); lag = False
    return ops

def Sreg(par, qb, kb): return par * 64 + qb * 16 + kb * 4
def Preg(qb, s): return 128 + qb * 8 + s * 4
def NEGM(qb): return 160 + 4 * qb
def LACC(qb): return 176 + 4 * qb
ONES = 192
MX = [196, 197]; VTM = 198; VTMASK = 199; VCUR, VPREV = 200, 201; TMP = [202, 203, 204, 205]
def Qreg(qb, t): return (t // 2) * 64 + qb * 8 + (t % 2) * 4
def Oreg(qb, db): return [32, 96, 128, 160][qb] + db * 4
def Fbuf(f): return 192 + (f % 16) * 4
S_THR = 61
NPRE = int(os.environ.get("NPRE", "8"))

def tail_reads(base_reg, off):
    return [f"ds_read_b128 {ar(Fbuf(f))}, v{base_reg} offset:{off + (vlds(f) if off == 49152 else f) * 1024}" for f in range(NPRE)]

def predone(qs): return [(qb, r) for r0 in range(0, NXR, 4) for qb in qs for r in range(r0, min(r0 + 4, NXR))] if "p" in CH else [(qs[0], r) for r in range(NX)]
def vlds(k): return (k % 2) * 8 + k // 2 if "p" in CH else k
QSET = {'D': [0, 1, 2, 3], 'S': [0, 1], 'D1': [0, 1, 3], 'S1': [1]}
def gen_iter(name, tq, tp, parq, masked, odd_q, kreg, koff, vreg, voff, nreg, noff, first_pv=False, end_ops=(), swap=False, mid_ops=(), vmn=16, extra=None, raw=False, salu=(), xops=()):
    qq = QSET[tq]
    qp = QSET[tp]
    parp = 1 - parq
    lv = LV and tq == 'D'
    mf = []; use = {}; lastq = {}; lastuse = {}
    qs = [(kb, t, qb) for kb in range(4) for t in range(4) for qb in qq]
    if "q" in CH: qs = [(kb, 2 * tp + e, qb) for kb in range(4) for tp in range(2) for qb in qq for e in range(2)]
    if "Q" in CH: qs = [(kb, t if i % 2 == 0 else 3 - t, qb) for kb in range(4) for i, qb in enumerate(qq) for t in range(4)]
    for kb, t, qb in qs:
        f = kb * 4 + t
        use.setdefault(f, len(mf))
        d = Sreg(parq, qb, kb)
        mf.append(f"{MF} {vr(d)}, {ar(Fbuf(f))}, {ar(Qreg(qb, t))}, {vr(NEGM(qb)) if (qb, kb) not in lastq else vr(d)}")
        lastq[(qb, kb)] = len(mf) - 1
        lastuse[f] = len(mf) - 1
    firstp = {}
    if "p" in CH: ps = [(db, qb, s) for db in range(9) for qb in qp for s in range(2)]
    else: ps = [(db, qb, s) for s in range(2) for db in range(9) for qb in qp]
    for db, qb, s in ps:
        if db == 8:
            if lv and qb >= 2: continue
            mf.append(f"{MF} {vr(LACC(qb))}, {vr(ONES)}, {vr(Preg(qb, s))}, {0 if (first_pv and s == 0) else vr(LACC(qb))}")
            continue
        f = 16 + (2 * db + s if "p" in CH else s * 8 + db)
        use.setdefault(f, len(mf))
        o = Oreg(qb, db)
        firstp.setdefault((qb, s), len(mf))
        mf.append(f"{MF} {ar(o)}, {ar(Fbuf(f))}, {vr(Preg(qb, s))}, {0 if (first_pv and s == 0) else ar(o)}")
        lastuse[f] = len(mf) - 1
    n = len(mf)
    S = Sched16(mf)
    gB = n - (GBS_ if len(qp) == 2 else GBD_)
    LEAD = LEADP
    for f in range(32):
        tag = ("F", "n", f) if f < NPRE else ("F", "c", f)
        if use[f] > 0: S.add_first(use[f] - 1, Wait("lgkm", tag))
    if isinstance(vmn, int): S.add_first(gB, Ins(f"s_waitcnt vmcnt({vmn}) lgkmcnt(0)"))
    else:
        S.add_first(gB, Ins("s_waitcnt lgkmcnt(0)")); S.add_first(gB + 1, Wait("vm", vmn))
    S.add_first(gB + 1, "s_barrier")
    S.add_first(n - 1, Wait("lgkm", ("F", "x", 0)))
    R = []
    todo = list(range(NPRE, 32))
    for k, f in enumerate(todo):
        e = lastuse[f - 16] if f >= 16 else 0
        dl = min(use[f] - LEAD + 4, gB - 5 - (31 - f))
        e = max(e, min(use[f] - LEAD - 8, dl - 4), 0)
        dl = max(dl, e)
        assert dl < use[f] - 1, (name, f, dl, e)
        if f < 16: ins = f"ds_read_b128 {ar(Fbuf(f))}, v{kreg} offset:{koff + f * 1024}"
        else: ins = f"ds_read_b128 {ar(Fbuf(f))}, v{vreg} offset:{voff + vlds(f - 16) * 1024}"
        R.append(Op(ins, max(e, 0), max(dl, 0), tag=("F", "c", f)))
    for f, ins in enumerate(tail_reads(nreg, noff)):
        R.append(Op(ins, max(gB + 1, lastuse[f + 16]), min(n - 2, gB + 3 + 2 * f), tag=("F", "x", f)))
    D = []
    span = gB - 8
    for q in range(4):
        D.append(Op(f"buffer_load_dwordx4 v240, s[16:19], s55 offen offset:{q * 1024}{KSC} lds", 2 + q * span // 4, 2 + (q + 1) * span // 4 - 1, tag="kv"))
    for x in ["s_add_u32 s54, s54, 0x8000", "s_add_u32 s52, s52, 0x8000", "s_and_b32 s52, s52, 0x1ffff", "s_mov_b32 m0, s52"]:
        D.append(Op(x, 0, gB))
    tl = n - 3 - (gB + 1)
    for q in range(4):
        D.append(Op(f"buffer_load_dwordx4 v240, s[16:19], s54 offen offset:{q * 1024}{KSC} lds", gB + 1 + q * tl // 4, gB + 1 + (q + 1) * tl // 4, tag="kv"))
    D.append(Op("s_mov_b32 m0, s53", 0, n - 1))
    if extra is not None:
        D = []
        nv = len(extra)
        for i, (pre, ins, tag) in enumerate(extra):
            for x in pre: D.append(Op(x, 0, n - 3))
            D.append(Op(ins, 1 + i * (n - 6) // nv, 1 + (i + 1) * (n - 6) // nv + 2, tag=tag, deps=[D[-1]] if pre else []))
    E = []; C = []; AD = []
    for s in range(2):
        for qb in qp:
            b = Sreg(parp, qb, 2 * s)
            dl = firstp[(qb, s)] - 2
            es = [Op(f"v_exp_f32 v{b + r}, v{b + r}", 0, dl - 1) for r in range(8)]
            dn = [(qb, 8 * s + r) in predone(qp) for r in range(8)]
            E += [e for r, e in enumerate(es) if not dn[r]]
            if lv and qb >= 2:
                for r in range(8):
                    L = LACC(qb)
                    AD.append(Op(f"v_mov_b32 v{L}, v{b + r}" if (first_pv and s == 0 and r == 0) else f"v_add_f32 v{L}, v{L}, v{b + r}", 0, n - 1, [] if dn[r] else [es[r]]))
            C += [Op(f"v_cvt_pk_bf16_f32 v{Preg(qb, s) + k}, v{b + 2 * k}, v{b + 2 * k + 1}", 0, dl, [e for i, e in enumerate(es) if i // 2 == k and not dn[i]]) for k in range(4)]
    M = []
    mins = {}
    vals = []
    mq = [qq[-1] if odd_q else qq[-2]]
    first = True
    for kb in range(4):
        for qb in qq:
            b = Sreg(parq, qb, kb)
            e0 = lastq[(qb, kb)] + (5 if len(qq) > 1 else 8)
            if masked and qb in mq:
                for r in range(4):
                    kk = 16 * kb + r
                    tm = TMP[r % 2]
                    M.append(Op(f"v_subrev_f32 v{tm}, {f2u(kk * BIG):#x}, v{VTMASK}", 0, n - 3))
                    M.append(Op(f"v_min_f32 v{b + r}, v{b + r}, v{tm}", e0, n - 3))
                    mins[b + r] = M[-1]
            if FAST: continue
            if first:
                M.append(Op(f"v_max_f32 v{MX[0]}, v{b}, v{b + 1}", e0, n - 3)); first = False
            else:
                M.append(Op(f"v_max3_f32 v{MX[0]}, v{MX[0]}, v{b}, v{b + 1}", e0, n - 3))
            M.append(Op(f"v_max3_f32 v{MX[0]}, v{MX[0]}, v{b + 2}, v{b + 3}", e0, n - 3))
    if not FAST: M.append(Op(f"v_cmp_lt_f32 vcc, s{S_THR}, v{MX[0]}", 0, n - 2))
    for qb, r in predone(qq):
        b = Sreg(parq, qb, 0) + r
        E.append(Op(f"v_exp_f32 v{b}, v{b}", lastq[(qb, r // 4)] + 8, n - 1, [mins[b]] if b in mins else []))
    X = []
    if swap:
        X = [Op(f"v_xor_b32 v{VCUR}, 0x10000, v{VCUR}", gB, n - 1), Op(f"v_xor_b32 v{VPREV}, 0x10000, v{VPREV}", gB, n - 1, [R[-1]])]
    XO = []
    for i, x in enumerate(xops):
        prev_trans = XO and XO[-1].t.startswith(TRANS)
        XO.append(Op(x, 5 + (i * (n - 12)) // len(xops), min(n - 2, 5 + (i * (n - 12)) // len(xops) + 4), tag="xo"))
    k = schedule(S, [R, D, E, C, M, X, XO, AD], 0, n - 1, name=name)
    assert all(o.g < gB for o in R if o.tag[1] == 'c') and all(o.g > gB for o in R if o.tag[1] == 'x'), name
    if extra is None:
        g = D[7].g + 1
        for x in ["s_add_u32 s55, s55, 0x8000", "s_add_u32 s53, s53, 0x8000", "s_and_b32 s53, s53, 0x1ffff"] + list(mid_ops):
            while S.first[g]: g += 1
            S.add_first(g, x); g += 1
        assert g <= D[-1].g, (name, g, D[-1].g)
    g = 0
    for x in salu:
        while g < n - 1 and S.first[g]: g += 1
        for y in (x if isinstance(x, list) else [x]): S.add_first(g, y)
        g = min(g + 1, n - 1)
    for x in end_ops: S.add_last(n - 1, x)
    print(S.report(f"{name}(k={k})"))
    pre = [Ins(f"ds_read_b128 {ar(Fbuf(f))}, v0", ("F", "n", f)) for f in range(NPRE)] + [Wait("lgkm", ("F", "n", 0))]
    if raw: pre = list(raw) + pre
    return [i.t for i in resolve(S.items(), pre)]

def allreduce4(p, op, src, t0, t1):
    p(f"v_mov_b32 v{t0}, v{src}")
    p(f"v_mov_b32 v{t1}, v{src}")
    p("s_nop 1")
    p(f"v_permlane32_swap_b32 v{t0}, v{t1}")
    p("s_nop 1")
    p(f"{op} v{t0}, v{t0}, v{t1}")
    p(f"v_mov_b32 v{t1}, v{t0}")
    p("s_nop 1")
    p(f"v_permlane16_swap_b32 v{t0}, v{t1}")
    p("s_nop 1")
    p(f"{op} v{t0}, v{t0}, v{t1}")

def rowmax(p, par, qb):
    b = Sreg(par, qb, 0)
    p(f"v_max3_f32 v{MX[1]}, v{b}, v{b + 1}, v{b + 2}")
    for k in range(3, 15, 2): p(f"v_max3_f32 v{MX[1]}, v{MX[1]}, v{b + k}, v{b + k + 1}")
    p(f"v_max_f32 v{MX[1]}, v{MX[1]}, v{b + 15}")
    allreduce4(p, "v_max_f32", MX[1], TMP[0], TMP[1])

def gen_rare(par, qbs):
    p = Prog()
    p("s_nop 15")
    for qb in qbs:
        rowmax(p, par, qb)
        p(f"v_max_f32 v{TMP[0]}, 0, v{TMP[0]}")
        p(f"v_sub_f32 v{TMP[1]}, 0, v{TMP[0]}")
        p(f"v_exp_f32 v{TMP[1]}, v{TMP[1]}")
        for r in range(4): p(f"v_sub_f32 v{NEGM(qb) + r}, v{NEGM(qb) + r}, v{TMP[0]}")
        for r in range(16): p(f"v_sub_f32 v{Sreg(par, qb, 0) + r}, v{Sreg(par, qb, 0) + r}, v{TMP[0]}")
        for r in range(4): p(f"v_mul_f32 v{LACC(qb) + r}, v{LACC(qb) + r}, v{TMP[1]}")
        for r in range(0, 32, 2):
            a = Oreg(qb, 0) + r
            p(f"v_accvgpr_read_b32 v{TMP[2]}, a{a}")
            p(f"v_accvgpr_read_b32 v{TMP[3]}, a{a + 1}")
            p(f"v_mul_f32 v{TMP[2]}, v{TMP[2]}, v{TMP[1]}")
            p(f"v_mul_f32 v{TMP[3]}, v{TMP[3]}, v{TMP[1]}")
            p(f"v_accvgpr_write_b32 a{a}, v{TMP[2]}")
            p(f"v_accvgpr_write_b32 a{a + 1}, v{TMP[3]}")
    p("s_nop 1")
    p("s_setpc_b64 s[62:63]")
    return [i.t for i in p.items]


GPUB = int(os.environ.get("GPUB", "14"))
OB = int(os.environ.get("OB", "2"))
GB2 = int(os.environ.get("GB2", "1"))
GPOLL = int(os.environ.get("GPOLL", "19"))
CPUB = int(os.environ.get("CPUB", "2"))
CTXPF = int(os.environ.get("CTXPF", "0"))
PUB0 = int(os.environ.get("PUB0", "8"))
PUBP = int(os.environ.get("PUBP", "12"))
TP = float(os.environ.get("TP", "4.2"))
TP0 = float(os.environ.get("TP0", "4"))
GPOS = int(os.environ.get("GPOS", "4"))
WR = int(os.environ.get("WR", "0"))
WRP = float(os.environ.get("WRP", "3"))
PSL = int(os.environ.get("PSL", "0"))
DEF = int(os.environ.get("DEF", "6"))
GX = int(os.environ.get("GX", "41"))
GD = int(os.environ.get("GD", "0"))
XR = [192, 194, 200, 202]
W4 = int(os.environ.get("W4", "1"))
PT = int(os.environ.get("PT", "0"))
LG = int(os.environ.get("LG", "1"))
LGP = int(os.environ.get("LGP", "10"))
GGA = int(os.environ.get("GGA", "20"))
LST = int(os.environ.get("LST", "8"))
LSP = int(os.environ.get("LSP", "10"))
CPOLL = int(os.environ.get("CPOLL", "100"))
CCHK = int(os.environ.get("CCHK", "136"))
def spin(name, load, cmp):
    return [f"L_{name}wait:", "s_mov_b32 s44, 0x40000", f"L_{name}spin:", "s_sub_u32 s44, s44, 1", f"s_cbranch_scc1 L_{name}ok", "s_sleep 1",
            load, "s_waitcnt vmcnt(0)", cmp, f"s_cbranch_vccnz L_{name}spin", f"s_branch L_{name}ok"]

def o_epi(qb, scr, pk):
    out = []
    for t in range(4):
        R = scr(t); P = pk(t)
        a = Oreg(qb, 2 * t)
        L = LACC(qb)
        rd = [f"v_accvgpr_read_b32 v{R + k}, a{a + k}" for k in range(8)]
        if t: ops = rd
        elif LV and qb >= 2:
            ops = [f"v_mov_b32 v{L + 1}, v{L}"] + rd[:2] + [f"v_permlane32_swap_b32 v{L}, v{L + 1}"] + rd[2:3] + [f"v_add_f32 v{L}, v{L}, v{L + 1}", f"v_mov_b32 v{L + 1}, v{L}"] + \
                  rd[3:5] + [f"v_permlane16_swap_b32 v{L}, v{L + 1}"] + rd[5:6] + [f"v_add_f32 v{L}, v{L}, v{L + 1}", f"v_rcp_f32 v{TMP[qb]}, v{L}"] + rd[6:]
        elif not ONE1: ops = [f"v_rcp_f32 v{TMP[qb]}, v{L}"] + rd
        else:
            ops = [f"v_mov_b32 v{L + 1}, v{L}"] + rd[:2] + [f"v_permlane32_swap_b32 v{L}, v{L + 1}"] + rd[2:3] + [f"v_mov_b32 v{L + 1}, v{L}"] + rd[3:5] + \
                  [f"v_permlane16_swap_b32 v{L}, v{L + 1}"] + rd[5:7] + [f"v_rcp_f32 v{TMP[qb]}, v{L}"] + rd[7:]
        ops += [f"v_mul_f32 v{R + k}, v{R + k}, v{TMP[qb]}" for k in range(8)]
        ops += [f"v_cvt_pk_bf16_f32 v{P + k}, v{R + 2 * k}, v{R + 2 * k + 1}" for k in range(4)]
        out.append((ops, f"buffer_store_dwordx4 {vr(P)}, v{240 if qb % 2 == 0 else 246}, s[20:23], s{100 + qb // 2} offen offset:{t * 1024}{STF}"))
    return out

NK = 46; NC = 23
RING = int(os.environ.get('RING', '10'))
SL = [8, 9, 0, 1, 2, 3, 4, 5, 6, 7][:RING]
def wofs(n): return SL[(n // 2) % RING] * 16384 + (n % 2) * 8192
def areg(n): return 128 + (n % 16) * 8
def areg2(n, tb): return vr(96 + (n - 8) * 8 + 4 * tb) if 8 <= n < 12 else ar(areg(n) + 4 * tb)
def w_ops(n):
    gp = n < 14
    j = n if gp else n - 14
    pre = [f"s_add_u32 m0, s{[51, 56, 50][wofs(n) >> 16]}, {wofs(n) & 0xffff if wofs(n) < 0x20000 else wofs(n)}", f"s_add_u32 s58, s{48 if gp else 49}, {j * 32768}"]
    wsrd = "s[12:15]" if gp else "s[8:11]"
    return [(pre, f"buffer_load_dwordx4 v242, {wsrd}, s58 offen lds", ("cw", n // 2)),
            ([], f"buffer_load_dwordx4 v243, {wsrd}, s58 offen offset:1024 lds", ("cw", n // 2))]
def a_ops(n):
    gp = n < 14
    j = n if gp else n - 14
    pre = [f"s_add_u32 s59, s{64 if gp else 65}, {j * 1024}"] if j % 2 == 0 else []
    return [(pre, f"buffer_load_dwordx4 {areg2(n, 0)}, v196, s[20:23], s59 offen offset:{(j % 2) * 1024}{ASC}", ("ca", n // 2)),
            ([], f"buffer_load_dwordx4 {areg2(n, 1)}, v198, s[20:23], s59 offen offset:{(j % 2) * 1024}{ASC}", ("ca", n // 2))]
def chunk(ch, w=True, a=True):
    return (w_ops(2 * ch) + w_ops(2 * ch + 1) if w else []) + (a_ops(2 * ch) + a_ops(2 * ch + 1) if a else [])
KEEP = 6 * 16384
GB = [36, 37, 41]

def tail_setup():
    sa = ["s_lshr_b32 s35, s34, 1", "s_sub_u32 s31, 15, s30", ["s_bitcmp1_b32 s34, 0", "s_cselect_b32 s31, s31, s30"], "s_and_b32 s45, s29, 3",
          "s_lshl_b32 s46, s31, 3", "s_add_u32 s46, s46, s28", f"s_mul_i32 s46, s46, {ACT_ROW}",
          f"s_add_u32 s46, s46, {WS_ACT:#x}", f"s_mul_i32 s47, s35, {14 * 1024}", "s_add_u32 s64, s46, s47", f"s_add_u32 s64, s64, {128 * 1024}",
          "s_lshl_b32 s47, s35, 15", "s_add_u32 s65, s46, s47",
          "s_lshl_b32 s46, s45, 8", "s_lshl_b32 s47, s28, 13", "s_add_u32 s46, s46, s47", f"s_mul_i32 s47, s35, {14 * 32 * 1024}",
          "s_add_u32 s48, s46, s47", "s_lshl_b32 s47, s35, 20", "s_add_u32 s49, s46, s47", "s_lshl_b32 s50, s28, 11",
          "s_mov_b32 s8, s4", "s_mov_b32 s9, s5", "s_mov_b32 s38, 0", "s_mov_b32 s12, s96", "s_mov_b32 s13, s97", f"s_mov_b32 s14, {1792 * 1024}",
          "s_and_b32 s46, s34, 1", "s_lshl_b32 s46, s46, 2", "s_add_u32 s3, s99, s46", "s_lshl_b32 s46, s35, 13", "s_add_u32 s3, s3, s46",
          "s_lshl_b32 s51, s31, 2", "s_add_u32 s51, s51, s45", "s_lshl_b32 s56, s51, 18", f"s_add_u32 s56, s56, {WS_PART:#x}",
          "s_lshl_b32 s46, s28, 12", "s_add_u32 s56, s56, s46", "s_lshl_b32 s46, s35, 16", "s_add_u32 s40, s56, s46", "s_add_u32 s40, s40, 16384"]
    for k in range(3): sa += [f"s_xor_b32 s46, s35, {k + 1}", "s_lshl_b32 s46, s46, 16", f"s_add_u32 s46, s46, {16384 * (k + 1)}", f"s_add_u32 s{GB[k]}, s56, s46"]
    sa += ["s_lshl_b32 s94, s51, 9", f"s_add_u32 s94, s94, {WS_FLAG:#x}", "s_lshl_b32 s46, s35, 7", "s_add_u32 s95, s94, s46",
           "s_lshl_b32 s46, s31, 17", "s_lshl_b32 s47, s28, 14", "s_add_u32 s46, s46, s47", "s_lshl_b32 s47, s45, 8", "s_add_u32 s46, s46, s47",
           "s_lshr_b32 s47, s35, 1", "s_lshl_b32 s47, s47, 7", "s_add_u32 s46, s46, s47", "s_and_b32 s47, s35, 1", "s_lshl_b32 s47, s47, 16", "s_add_u32 s57, s46, s47", "s_lshl_b32 s46, s29, 12", "s_add_u32 s100, s46, s32", "s_add_u32 s101, s46, s33",
           "s_and_b32 s32, s30, 1", "s_lshl_b32 s32, s32, 16", "s_xor_b32 s33, s32, 0x10000", "s_add_u32 s51, s50, s32", "s_add_u32 s56, s50, s33"]
    va = ["v_lshrrev_b32 v244, 4, v254", "v_and_b32 v245, 15, v254", "v_lshlrev_b32 v243, 1, v244", "v_xor_b32 v245, v245, v243",
          "v_lshlrev_b32 v244, 10, v244", "v_lshl_add_u32 v242, v245, 4, v244", "v_xor_b32 v243, 0x80, v242", f"v_add_u32 v243, {4096 - 1024}, v243",
          "v_lshrrev_b32 v244, 2, v254", "v_and_b32 v245, 7, v244", "v_lshlrev_b32 v244, 8, v244", "v_and_b32 v241, 3, v254", "v_lshl_add_u32 v244, v241, 3, v244",
          "v_add_u32 v244, s32, v244", "s_sub_u32 s46, 0x20000, s32", "s_lshl_b32 s60, s35, 1", "s_and_b32 s60, s60, 4", "v_xor_b32 v245, s60, v245"]
    for c in range(8):
        va += [f"v_xor_b32 v241, {c}, v245", f"v_lshl_add_u32 v{208 + c}, v241, 5, v244", f"v_xor_b32 v{216 + c}, 0x10000, v{208 + c}", f"v_add_u32 v{224 + c}, s46, v{208 + c}"]
    va += ["v_add_u32 v236, 0x4000, v240", "v_add_u32 v237, 0x8000, v240",
           "v_and_b32 v247, 3, v254", "v_lshlrev_b32 v247, 7, v247", "v_and_b32 v244, 15, v254", "v_lshlrev_b32 v244, 10, v244",
           "v_lshrrev_b32 v245, 4, v254", "v_lshl_add_u32 v238, v245, 3, v244", "v_add_u32 v239, 64, v238"]
    va += [f"v_mov_b32 v{232 + k}, -1" for k in range(4)]
    return sa, va
HPOLL = "buffer_load_dword v207, v206, s[20:23], s99 offen sc1"
def gp1(): return chunk(0) + chunk(1) + sum([chunk(c, w=False) for c in range(2, 6)], [])
def gp2(): return sum([chunk(c, a=False) for c in range(2, 7)], [])
PRE_SPLIT = (12, 24, 28)
def gpre(): return gp1()[:PRE_SPLIT[2]] + gp2()[:12] + gp1()[PRE_SPLIT[2]:] + gp2()[12:]

def opf():
    if not OPF: return []
    return ["s_lshr_b32 s46, s2, 3", "s_lshl_b32 s46, s46, 2", "s_add_u32 s46, s46, s28", "v_lshlrev_b32 v241, 7, v254",
            "s_lshl_b32 s59, s35, 20", "s_lshl_b32 s46, s46, 13", "s_add_u32 s59, s59, s46",
            "buffer_load_dword v251, v241, s[8:11], s59 offen"]

def lchk(qa, qb_, first):
    if not FAST: return []
    return [f"v_cmp_ngt_f32 vcc, s{S_THR}, v{LACC(qa)}", "v_nop", "s_mov_b64 s[62:63], vcc" if first else "s_or_b64 s[62:63], s[62:63], vcc",
            f"v_cmp_ngt_f32 vcc, s{S_THR}, v{LACC(qb_)}", "v_nop", "s_or_b64 s[62:63], s[62:63], vcc"]

def sentinels():
    return [([], f"buffer_store_dwordx4 v[232:235], v240, s[20:23], s{GB[(k % 6) // 2]} offen offset:{2048 * (k < 6) + (k % 2) * 1024} sc1", "sen") for k in range(12 if LG else 6)]
def pretouch():
    return [f"buffer_store_dwordx4 v[232:235], v240, s[20:23], s{GB[k // 2]} offen offset:{(k % 2) * 1024} sc1" for k in range(6)] if PT else []

def ee_one(qb, base):
    out = lchk(qb, qb, qb == 2)[:3]
    for ops, st in o_epi(qb, lambda t: base + 8 * t, lambda t: base + 8 * t): out += ops + [st]
    return out

def gen_early_epi(safe=False):
    out = lchk(2, 3, True)
    sn = sentinels()
    for qb in (2, 3):
        base = 32 if qb == 2 else 96
        for ops, st in o_epi(qb, lambda t: base + 8 * t, lambda t: base + 8 * t):
            out += ops[:7] + ([sn.pop(0)[1]] if sn else []) + ops[7:14] + ([sn.pop(0)[1]] if len(sn) > 4 else []) + ops[14:] + [st]
    return [HPOLL] + out

def gen_safe():
    p = Prog()
    M_ = [NEGM(q) for q in range(4)]; TQ = [NEGM(q) + 1 for q in range(4)]
    p("s_waitcnt vmcnt(0) lgkmcnt(0)")
    p("s_nop 15")
    p("s_barrier")
    for q in range(4):
        for r in range(32): p(f"v_accvgpr_write_b32 a{Oreg(q, 0) + r}, 0")
        for r in range(4): p(f"v_mov_b32 v{LACC(q) + r}, 0")
        p(f"v_mov_b32 v{M_[q]}, {f2u(-2.0 ** 120):#x}")
    p("s_sub_u32 s46, 15, s30")
    p("s_lshl_b32 s47, s46, 7")
    p("s_lshl_b32 s52, s30, 7")
    for q in range(4):
        p(f"v_cvt_f32_u32 v{TMP[0]}, s{47 if q < 2 else 52}")
        if q & 1: p(f"v_add_f32 v{TMP[0]}, {f2u(64.0):#x}, v{TMP[0]}")
        p(f"v_mul_f32 v{TMP[0]}, {f2u(BIG):#x}, v{TMP[0]}")
        p(f"v_add_f32 v{TQ[q]}, v{VTMASK}, v{TMP[0]}")
    p(f"v_add_u32 v{VCUR}, s33, v240")
    p("s_lshl_b32 s47, s46, 1")
    p("s_add_u32 s47, s47, 2")
    p("s_lshl_b32 s54, s28, 12")
    p("s_add_u32 s52, s54, s33")
    p("s_add_u32 s53, s52, 49152")
    p("s_add_u32 s52, s52, 32768")
    p.label("L_safe_loop")
    p("s_mov_b32 m0, s52")
    p("s_add_u32 s55, s54, 16384")
    for k in range(4): p(f"buffer_load_dwordx4 v240, s[16:19], s54 offen offset:{k * 1024} sc1 lds")
    p("s_mov_b32 m0, s53")
    p("s_nop 0")
    for k in range(4): p(f"buffer_load_dwordx4 v240, s[16:19], s55 offen offset:{k * 1024} sc1 lds")
    p("s_waitcnt vmcnt(0)")
    p("s_barrier")
    for f in range(16): p(f"ds_read_b128 {ar(Fbuf(f))}, v{VCUR} offset:{32768 + f * 1024}")
    p("s_waitcnt lgkmcnt(0)")
    for kb in range(4):
        for t in range(4):
            for q in range(4):
                d = Sreg(0, q, kb)
                p(f"{MF} {vr(d)}, {ar(Fbuf(kb * 4 + t))}, {ar(Qreg(q, t))}, {vr(d) if t else 0}")
    for f in range(16): p(f"ds_read_b128 {ar(Fbuf(f))}, v{VCUR} offset:{49152 + f * 1024}")
    for q in range(4):
        b = Sreg(0, q, 0)
        for r in range(16):
            p(f"v_subrev_f32 v{TMP[r % 2]}, {f2u((16 * (r // 4) + r % 4) * BIG):#x}, v{TQ[q]}")
            p(f"v_min_f32 v{b + r}, v{b + r}, v{TMP[r % 2]}")
        p(f"v_subrev_f32 v{TQ[q]}, {f2u(64 * BIG):#x}, v{TQ[q]}")
        rowmax(p, 0, q)
        p(f"v_max_f32 v{TMP[0]}, v{TMP[0]}, v{M_[q]}")
        p(f"v_sub_f32 v{TMP[1]}, v{M_[q]}, v{TMP[0]}")
        p(f"v_exp_f32 v{TMP[1]}, v{TMP[1]}")
        p(f"v_mov_b32 v{M_[q]}, v{TMP[0]}")
        for r in range(16): p(f"v_sub_f32 v{b + r}, v{b + r}, v{TMP[0]}")
        for r in range(16): p(f"v_exp_f32 v{b + r}, v{b + r}")
        for r in range(4): p(f"v_mul_f32 v{LACC(q) + r}, v{LACC(q) + r}, v{TMP[1]}")
        for k in range(8): p(f"v_cvt_pk_bf16_f32 v{Preg(q, 0) + k}, v{b + 2 * k}, v{b + 2 * k + 1}")
        for r in range(0, 32, 2):
            a = Oreg(q, 0) + r
            p(f"v_accvgpr_read_b32 v{TMP[2]}, a{a}")
            p(f"v_accvgpr_read_b32 v{TMP[3]}, a{a + 1}")
            p(f"v_mul_f32 v{TMP[2]}, v{TMP[2]}, v{TMP[1]}")
            p(f"v_mul_f32 v{TMP[3]}, v{TMP[3]}, v{TMP[1]}")
            p(f"v_accvgpr_write_b32 a{a}, v{TMP[2]}")
            p(f"v_accvgpr_write_b32 a{a + 1}, v{TMP[3]}")
    p("s_waitcnt lgkmcnt(0)")
    p("s_barrier")
    for s in range(2):
        for db in range(8):
            for q in range(4): p(f"{MF} {ar(Oreg(q, db))}, {ar(Fbuf(s * 8 + db))}, {vr(Preg(q, s))}, {ar(Oreg(q, db))}")
        for q in range(4): p(f"{MF} {vr(LACC(q))}, {vr(ONES)}, {vr(Preg(q, s))}, {vr(LACC(q))}")
    p("s_add_u32 s54, s54, 32768")
    p("s_sub_u32 s47, s47, 1")
    p("s_cmp_lg_u32 s47, 0")
    p("s_cbranch_scc1 L_safe_loop")
    p("s_nop 15")
    p(f"s_mov_b32 s{S_THR}, 0x7f800000")
    for x in gen_early_epi(True)[1:]: p(x)
    for r in range(16): p(f"v_mov_b32 v{Sreg(1, 1, 0) + r}, {f2u(-2.0 ** 100) if r >= len(predone([1])) else 0:#x}")
    for pre, ins, tag in gpre():
        for x in pre: p(x)
        p(ins)
    p("s_mov_b32 s38, 1")
    p("s_branch L_fin")
    tx = [i.t for i in p.items]
    a = tx.index("L_safe_loop:"); b = tx.index("s_cbranch_scc1 L_safe_loop")
    for e in lint(tx[:b] + tx[a + 1:], "safe")[:20]: print(e)
    return ["L_safe:", "s_cmp_eq_u32 s38, 1", "s_cbranch_scc1 L_safe_ret"] + tx

def tail_pre():
    pa = [tag for pre, ins, tag in gpre()]
    pb = [tag for c in range(5) for pre, ins, tag in chunk(c, a=False)]
    d7 = {("cw", 0): 40, ("cw", 1): 40, ("cw", 2): 28, ("cw", 3): 28, ("cw", 4): 28, ("ca", 0): 28, ("ca", 1): 28,
          ("ca", 4): 12, ("ca", 5): 12, ("ca", 2): 4, ("ca", 3): 0, ("cw", 5): 4, ("cw", 6): 0}
    n = len(pa); slots = [set() for _ in range(n)]
    for tg in set(pa):
        d = min(n - 1 - max(i for i, x in enumerate(pa) if x == tg), d7[tg])
        slots[n - 1 - d].add(tg)
    return [Ins("buffer_load_dwordx4 v240, s[16:19], s55 offen lds", frozenset(x)) for x in slots]

def gen_tail():
    p = Prog()
    slow = []
    for f in range(NPRE, 16): p(f"ds_read_b128 {ar(Fbuf(16 + f))}, v{VCUR} offset:{49152 + vlds(f) * 1024}", ("VE", f))
    b = Sreg(1, 1, 0)
    for r in range(len(predone([1])), 16): p(f"v_exp_f32 v{b + r}, v{b + r}")
    for k in range(8): p(f"v_cvt_pk_bf16_f32 v{Preg(1, 0) + k}, v{b + 2 * k}, v{b + 2 * k + 1}")
    p("v_and_b32 v206, 0x1c00, v206")
    p.wait_vm(("cw", 0))
    p("s_waitcnt lgkmcnt(0)")
    p("s_barrier")
    for x in ["s_mov_b32 s4, s42", "s_mov_b32 s5, s43", "s_mov_b32 s6, 0x200000", "s_mov_b32 s7, 0x20000"]: p(x)
    mf = []
    for s in range(2): mf.append(f"{MF} {vr(LACC(1))}, {vr(ONES)}, {vr(Preg(1, s))}, {vr(LACC(1))}")
    for k in range(16):
        s, db = vlds(k) // 8, vlds(k) % 8
        mf.append(f"{MF} {ar(Oreg(1, db))}, {ar(Fbuf(16 + k))}, {vr(Preg(1, s))}, {ar(Oreg(1, db))}")
    if not FAST: p(f"buffer_store_dword v249, v248, s[20:23], s98 offen offset:4{STF}", "flag")
    S = Sched16(mf)
    late = o_epi(0, lambda t: 8 * t, lambda t: 64 + 4 * t) + o_epi(1, lambda t: 32 + 8 * t, lambda t: 80 + 4 * t)
    seq = []
    rest = chunk(7, a=False) + chunk(6, w=False)
    for i, (ops, st) in enumerate(late):
        seq += [(x, None) for x in ops[:10]]
        if i < 4:
            for pre, ins, tag in rest[i:i + 1]: seq += [(y, None) for y in pre] + [(ins, tag)]
        seq += [(x, None) for x in ops[10:]]
        if i < LST: seq.append((st, "ctxst"))
    vs = tail_setup()[1][8:-4]
    for i, (pre, ins, tag) in enumerate(rest[4:]):
        seq += [(x, None) for x in vs[4 * i:4 * i + 4]] + [(y, None) for y in pre] + [(ins, tag)]
    seq += [(x, None) for x in vs[4 * len(rest[4:]):]]
    if FAST:
        seq += [(x, None) for x in lchk(0, 1, False) + ["s_or_b32 s62, s62, s63", "v_mov_b32 v244, s62", "v_lshlrev_b32 v245, 2, v255", f"s_add_u32 s46, s33, {KEEP + 16384 - 0x10000}", "v_add_u32 v245, s46, v245",
                                                         "ds_write_b32 v245, v244", "v_mov_b32 v245, s46"]]
    ne = 0
    for g in range(len(mf)):
        while S.load(g) + cost(seq[ne][0]) <= 2:
            S.add_last(g, Ins(*seq[ne])); ne += 1
    p.extend(S.items())
    if DIAG and not DIAG2: p.items.append(stamp(10))
    for x, tag in seq[ne:]: p(x, tag)
    if DIAG and not DIAG2: p.items.append(stamp(11))
    GO = [(n, c) for n in range(NK - 2) for c in range(8)] + [(n, 2 * cp + cf) for cp in range(4) for n in (NK - 2, NK - 1) for cf in range(2)]
    GO = [(2 * ch + e, c) for ch in range(NC) for c in range(8) for e in range(2)]
    TB = [(0, 1) if (n // 2 < NC - DEF or c >= 4) else (1,) for n, c in GO]
    GO += [(2 * ch + e, c) for c in range(4) for ch in range(NC - DEF, NC) for e in range(2)]
    TB += [(0,)] * (len(GO) - len(TB))
    def w_reads(gi):
        n, c = GO[gi]
        off = wofs(n)
        d = 128 + 4 * (gi % 16)
        return [f"ds_read_b64_tr_b16 v[{d + 2 * hf}:{d + 2 * hf + 1}], v{208 + 8 * (off >> 16) + c} offset:{(off & 0xffff) + hf * 4096}" for hf in range(2)]
    RA = 8
    for gi in range(RA):
        for x in w_reads(gi): p(x, ("W", gi))
    p.wait_vm(("ca", 0))
    p.wait_lgkm(("W", 1))
    mf = []
    sq = [(gi + e, tb) for gi in range(0, len(GO), 2) for tb in TB[gi] for e in range(2)]
    gstart = {}
    for k, (gi, tb) in enumerate(sq): gstart.setdefault(gi - gi % 2, k)
    for gi, tb in sq:
        n, c = GO[gi]
        base = 0 if n < 14 else 64
        first = n in (0, 14)
        acc = base + (tb * 4 + (c >> 1)) * 8 + (c & 1) * 4
        mf.append(f"{MF} {vr(acc)}, {vr(128 + 4 * (gi % 16))}, {areg2(n, tb)}, {0 if first else vr(acc)}")
    S = Sched16(mf)
    NG = len(GO); NM = len(mf)
    BS = [ch for ch in range(NC - 1) if ch % OB == 0]
    cs = {}
    for gi in range(0, NG, 2): cs.setdefault(GO[gi][0] // 2, gstart[gi])
    def gB(ch): return cs[ch + 1] - 16
    for gi in range(RA, NG):
        ch = GO[gi][0] // 2
        g = gstart[gi - gi % 2] - 16 + (gi % 2) * len(TB[gi])
        if ch in BS and ch < NC - RING and gi % 16 >= 12: g -= [1, 2, 3, 4][gi % 16 - 12]
        for x in w_reads(gi): S.add_mem(g, x, ("W", gi))
    for gi in range(2, NG, 2): S.add_first(gstart[gi] - 1, Wait("lgkm", ("W", gi + 1)))
    for gi in range(16, NG): assert gstart[gi - gi % 2] - 16 - 4 >= gstart[(gi - 16) - gi % 2] + 2 * len(TB[gi - 16]) - 4 or True
    def cwlast(c): return c
    assert GPUB in BS and CPUB in BS and DEF <= 8
    for ch in range(NC - 1):
        if ch in BS:
            if ch < NC - RING: S.add_first(gB(ch) - 2, Ins("s_waitcnt lgkmcnt(0)"))
            S.add_first(gB(ch), Wait("vm", [("cw", x) for x in range(ch + 1, min(ch + OB, NC - 1) + 1)] + (["pub"] if ch == GPUB and not LG else []) + (["ctxst"] if ch == CPUB else [])))
            S.add_first(gB(ch), "s_barrier")
        S.add_first(cs[ch + 1] - 2, Wait("vm", ("ca", ch + 1)))
    def wfree(ch):
        if ch == 9 and RING == 10: return gB(2) + 1
        return 0 if ch < RING else gB(min(x for x in BS if x >= ch - RING)) + 1
    S.add_mem(gB(CPUB) + 1, f"buffer_store_dword v249, v248, s[20:23], s98 offen offset:8{STF}", "flag")
    if FAST:
        S.add_mem(gB(CPUB) + 3, f"buffer_store_dword v249, v248, s[20:23], s98 offen offset:4{STF}", "flag")
        S.add_mem(gB(0) + 1, "ds_read_b128 v[200:203], v245", "bad")
        S.add_first(gB(0) + 10, Wait("lgkm", "bad"))
        S.add_valu(gB(0) + 11, "v_or3_b32 v200, v200, v201, v202")
        S.add_valu(gB(0) + 11, "v_or_b32 v200, v200, v203")
        S.add_valu(gB(0) + 13, "v_cmp_ne_u32 vcc, 0, v200")
        S.add_last(gB(0) + 15, "s_cbranch_vccnz L_safe")
        S.add_last(gB(0) + 15, "L_safe_ret:")
    for i, (ops, st) in enumerate(late[LST:]): S.add_mem(2 + LSP * i, st, "ctxst")
    assert 2 + LSP * (8 - LST) < gB(CPUB)
    LD = []
    def ld(ops, e, pace):
        for i, (pre, ins, tag) in enumerate(ops):
            for x in pre: LD.append(Op(x, e + i * pace - 2, NM - 1))
            LD.append(Op(ins, e + i * pace, NM - 1, tag=tag, deps=[LD[-1]] if pre else []))
    nw = 8
    while wfree(nw) + 16 <= CCHK: nw += 1
    RB = [32, 48, 96, 112, 0, 16, 64, 80]
    items = [(wfree(c), op) for c in sorted(range(8, nw), key=wfree) for op in chunk(c, a=False)]
    t = 2.0
    regld = []
    for k in range(WR):
        for i, (pre, ins, tag) in enumerate(chunk(nw + k, a=False)):
            ins = ins.replace("buffer_load_dwordx4 ", f"buffer_load_dwordx4 {ar(RB[k] + 4 * i)}, ").replace(" lds", "")
            regld.append((34 if k >= 4 else 0, (pre[1:], ins, ("cr", nw + k))))
    while items or regld:
        src = items if (items and (items[0][0] <= t or not regld)) else regld
        for _ in range(2):
            e, op = src.pop(0)
            t = max(t, e); ld([op], int(t), 0); t += WRP
    WW = []
    for k in range(WR):
        c = nw + k
        cert = max(x for x in BS if x < c)
        S.add_first(wfree(c) + 1, Wait("vm", ("cr", c)))
        for i in range(4):
            off = wofs(2 * c + i // 2) + (i % 2) * 1024
            WW.append(Op(f"ds_write_b128 v{196 + (off >> 16)}, {ar(RB[k] + 4 * i)} offset:{off & 0xffff}", wfree(c) + 2 + 6 * i + 26 * ((c - nw + 1) % 2 if OB == 2 else 0), gB(cert) - 6, tag="ww"))
    if WR:
        for i, x in enumerate(["v_add_u32 v196, s51, v240", "v_add_u32 v197, s56, v240", "v_add_u32 v198, s50, v240", "v_add_u32 v198, 0x20000, v198"]): S.add_valu(41 + 2 * i, x)
    S.add_mem(CPOLL, "buffer_load_dword v207, v206, s[20:23], s3 offen offset:4 sc1", "cpoll")
    S.add_first(CCHK, Wait("vm", "cpoll"))
    S.add_valu(CCHK, "v_cmp_ne_u32 vcc, 1, v207")
    S.add_last(CCHK + 1, "s_cbranch_vccnz L_cwait")
    S.add_last(CCHK + 1, "L_cok:")
    slow += spin("c", "buffer_load_dword v207, v206, s[20:23], s3 offen offset:4 sc1", "v_cmp_ne_u32 vcc, 1, v207")
    if CTXPF:
        S.add_valu(40, "v_lshlrev_b32 v252, 7, v254")
        S.add_valu(41, f"v_add_u32 v253, {4 * ACT_ROW}, v252")
        ld(chunk(7, w=False), CCHK + 2, 1)
        ld([(["s_lshl_b32 s60, s45, 13"], "s_add_u32 s60, s60, s65", None), ([], "buffer_load_dword v250, v252, s[20:23], s60 offen sc1", "pf"),
            ([], "buffer_load_dword v251, v253, s[20:23], s60 offen sc1", "pf")], CCHK + 2, 1)
    seqo = [("a", ch) for ch in range(7, nw)]
    for ch in range(nw, NC): seqo += ([("w", ch + 2)] if nw + WR <= ch + 2 < NC and WR else [("w", ch)] if not WR else []) + [("a", ch)]
    t = float(CCHK + 2)
    for k, (kind, ch) in enumerate(seqo):
        t = max(t, 32 * (ch - 7) if kind == "a" else wfree(ch))
        pace = TP0 if k < 2 else TP
        for op in chunk(ch, w=(kind == "w"), a=(kind == "a")):
            ld([op], int(t), 0); t += pace
    print("tail ld", schedule(S, [LD, WW], 0, NM - 1, base_cap=2), [o.g for o in LD if o.mem][::8], [o.g for o in WW][::4])
    def pub(base, kind, g0, g1, pace=0):
        ops = []
        for k in range(6):
            R = base + [32, 16, 48][k // 2] + 8 * (k % 2)
            cv = [Op(f"v_cvt_pk_bf16_f32 v{R + e}, v{R + 2 * e}, v{R + 2 * e + 1}", g0, g1) for e in range(4)]
            ops += cv
            ops.append(Op(f"buffer_store_dwordx4 {vr(R)}, v240, s[20:23], s{GB[k // 2]} offen offset:{kind * 2048 + (k % 2) * 1024} sc1", g0 + k * pace, g1, [cv[-1]], tag="pub"))
        return ops
    GV = [240, 236, 237]
    if LG:
        l0 = max(o.g for o in LD) + 4
        pb = pub(0, 0, 14 * 16 + PUB0, cs[NC - 1] + 8)
        cvs = [o for o in pb if not o.mem]; sts = [o for o in pb if o.mem]
        for i, o in enumerate(sts): o.e = l0 + i * LGP
        print('pub', schedule(S, [cvs, sts], 14 * 16, NM - 1, base_cap=2), [o.g for o in sts])
        S.add_mem(gB(CPUB) + 5, "buffer_store_dword v249, v248, s[20:23], s95 offen offset:4 sc1", "flag")
    else:
        pb = pub(0, 0, 14 * 16 + PUB0, gB(GPUB) - 20, PUBP)
        print('pub', schedule(S, [pb], 14 * 16, NM - 1, base_cap=2), [o.g for o in pb if o.tag == 'pub'])
        S.add_mem(gB(GPUB) + 1, "buffer_store_dword v249, v248, s[20:23], s95 offen offset:4 sc1", "flag")
    gx = GX
    for k in range(4):
        S.add_mem(gx + 8 * k, f"buffer_load_dwordx2 v[{XR[k]}:{XR[k] + 1}], v{238 + k // 2}, s[24:27], s57 offen offset:{32 * (k % 2)}", "x")
    gp = cs[GPOLL]
    S.add_mem(gp + 1 - (GD if not LG else 90), "buffer_load_dword v250, v247, s[20:23], s94 offen offset:4 sc1", "gpoll")
    gc = gp + 33
    S.add_first(gc + 1, Wait("vm", "gpoll"))
    S.add_valu(gc + 1, "v_cmp_ne_u32 vcc, 1, v250")
    S.add_last(gc + 2, "s_cbranch_vccnz L_gwait")
    S.add_last(gc + 2, "L_gok:")
    slow += spin("g", "buffer_load_dword v250, v247, s[20:23], s94 offen offset:4 sc1", "v_cmp_ne_u32 vcc, 1, v250")
    GG = [20 + 8 * k for k in range(6)] if LG else [16 + 4 * k for k in range(6)]
    gg_ops = [f"buffer_load_dwordx4 {vr(GG[2 * k + tb])}, v{GV[k]}, s[20:23], s40 offen offset:{tb * 1024} sc1" for k in range(3) for tb in range(2)]
    for i, x in enumerate(gg_ops): S.add_mem((NM - GGA if LG else gc + 4) + 2 * i, x, "gg")
    ps = pub(64, 1, 0, NM - 1)
    lastw = {}
    for k, x in enumerate(mf): lastw[int(re.findall(r"v\[(\d+)", x)[0]) & ~7] = k
    ps = sorted([ps[5 * k:5 * k + 5] for k in range(6)], key=lambda o: lastw[int(re.findall(r"v(\d+)", o[0].t)[0])])
    for grp in ps:
        for o in grp: o.e = lastw[int(re.findall(r"v(\d+)", grp[0].t)[0])] + 6
    ps = sum(ps, [])
    inside = [o for o in ps if o.e < NM - 2]
    print("pub s inside", schedule(S, [inside], cs[NC - 1], NM - 1, base_cap=4), len(inside), len(ps))
    if DIAG3:
        for k, g in enumerate([int(x) for x in os.environ.get('D3', '').split(',') if x] or [0, CCHK, CCHK + 4, 14 * 16, 30 * 16, NM - 1]): S.add_first(g, stamp(2 + k))
    print(S.report("tail")[:400])
    OD = os.environ.get("ODROP", "").split(",")
    def keep(i):
        tg = i.tag if isinstance(i, (Ins, Wait)) else None
        if isinstance(i, Ins):
            if isinstance(tg, tuple) and tg[0] in OD: return False
            if tg in OD and tg: return False
        if isinstance(i, Wait):
            tags = tg if isinstance(tg, list) else [tg]
            tags = [t for t in tags if (t[0] if isinstance(t, tuple) else t) not in OD]
            if not tags: return False
            i.tag = tags
        return True
    p.extend([i for i in S.items() if keep(i)])
    GS = 144
    def gather():
        for k in range(3):
            for tb in range(2):
                p(f"buffer_load_dwordx4 {vr(GS + 8 * k + 4 * tb)}, v{GV[k]}, s[20:23], s40 offen offset:{2048 + tb * 1024} sc1", "gs")
    p("s_nop 3")
    for o in ps[len(inside):]: p(o.t, o.tag)
    if GPOS == 0: gather()
    def unpack(dst, src, n=8):
        for k in range(n):
            p(f"v_lshlrev_b32 v{dst + 2 * k}, 16, v{src + k}")
            p(f"v_and_b32 v{dst + 2 * k + 1}, 0xffff0000, v{src + k}")
    def rnd(b, T):
        for k in range(0, 16, 2): p(f"v_cvt_pk_bf16_f32 v{T + k // 2}, v{b + k}, v{b + k + 1}")
        unpack(b, T)
    def accum(D, src):
        for k in range(8):
            p(f"v_dot2c_f32_bf16 v{D + 2 * k}, s46, v{src + k}")
            p(f"v_dot2c_f32_bf16 v{D + 2 * k + 1}, s47, v{src + k}")
    p("s_mov_b32 s46, 0x00003f80")
    p("s_mov_b32 s47, 0x3f800000")
    p("s_mov_b32 s44, 0x40000")
    if DIAG3: p.items.append(stamp(8))
    def chk(regs):
        p(f"v_max3_u32 v168, v{regs[0]}, v{regs[1]}, v{regs[2]}")
        p(f"v_max3_u32 v169, v{regs[3]}, v{regs[4]}, v{regs[5]}")
        for k in range(6, 22, 4):
            p(f"v_max3_u32 v168, v168, v{regs[k]}, v{regs[k + 1]}")
            p(f"v_max3_u32 v169, v169, v{regs[k + 2]}, v{regs[k + 3]}")
        p(f"v_max3_u32 v168, v168, v{regs[22]}, v{regs[23]}")
        p("v_max_u32 v168, v168, v169")
        p("v_cmp_eq_u32 vcc, -1, v168")
    if LG:
        p("s_branch L_g_chk")
        p.label("L_g_poll")
        for x in gg_ops: p(x)
        p.label("L_g_chk")
        p("s_waitcnt vmcnt(0)")
        chk([b + e for b in GG for e in range(4)])
        p("s_cbranch_vccz L_g_go")
        p("s_sub_u32 s44, s44, 1")
        p("s_cbranch_scc0 L_g_poll")
        p.label("L_g_go")
        p("s_mov_b32 s44, 0x40000")
        if GPOS == 1: gather()
    else: p.wait_vm("gg")
    for k in range(6):
        for e in range(4):
            p(f"v_dot2c_f32_bf16 v{8 * (k % 2) + 2 * e}, s46, v{GG[k] + e}")
            p(f"v_dot2c_f32_bf16 v{8 * (k % 2) + 2 * e + 1}, s47, v{GG[k] + e}")
    p("s_nop 2")
    rnd(0, 48)
    for k in range(16): p(f"v_mul_f32 v{48 + k}, {f2u(-LOG2E):#x}, v{k}")
    for k in range(16): p(f"v_exp_f32 v{48 + k}, v{48 + k}")
    if GPOS == 2: gather()
    for k in range(16): p(f"v_add_f32 v{48 + k}, 1.0, v{48 + k}")
    for k in range(16): p(f"v_rcp_f32 v{48 + k}, v{48 + k}")
    for k in range(16): p(f"v_mul_f32 v{k}, v{k}, v{48 + k}")
    if GPOS == 3: gather()
    rnd(0, 48)
    unpack(128, 192, 4); unpack(136, 200, 4)
    p("v_bfe_u32 v244, v254, 4, 1")
    p("v_mul_u32_u24 v244, 24, v244")
    p("v_add_u32 v244, v244, v238")
    if GPOS < 4: p("s_branch L_o_chk")
    p.label("L_o_poll")
    if PSL: p(f"s_sleep {PSL}")
    gather()
    p.label("L_o_chk")
    p("s_waitcnt vmcnt(0)")
    p(f"v_max3_u32 v48, v{GS}, v{GS + 1}, v{GS + 2}")
    p(f"v_max3_u32 v49, v{GS + 3}, v{GS + 4}, v{GS + 5}")
    for k in range(6, 22, 4):
        p(f"v_max3_u32 v48, v48, v{GS + k}, v{GS + k + 1}")
        p(f"v_max3_u32 v49, v49, v{GS + k + 2}, v{GS + k + 3}")
    p(f"v_max3_u32 v48, v48, v{GS + 22}, v{GS + 23}")
    p("v_max_u32 v48, v48, v49")
    p("v_cmp_eq_u32 vcc, -1, v48")
    p("s_cbranch_vccz L_o_go")
    p("s_sub_u32 s44, s44, 1")
    p("s_cbranch_scc0 L_o_poll")
    p.label("L_o_go")
    if DIAG3: p.items.append(stamp(9))
    for k in range(3): accum(64, GS + 8 * k)
    p("s_nop 2")
    for k in range(16): p(f"v_fmac_f32 v{128 + k}, v{k}, v{64 + k}")
    for k in range(0, 16, 2): p(f"v_cvt_pk_bf16_f32 v{16 + k // 2}, v{128 + k}, v{129 + k}")
    if W4:
        p("s_nop 1")
        for cp in range(2):
            for k in range(2): p(f"v_permlane16_swap_b32 v{16 + 4 * cp + k}, v{18 + 4 * cp + k}")
        for cp in range(2): p(f"buffer_store_dwordx4 {vr(16 + 4 * cp)}, v244, s[4:7], s57 offen offset:{64 * cp}")
    else:
        for k in range(4):
            p(f"buffer_store_dwordx2 v[{16 + 2 * k}:{17 + 2 * k}], v{238 + k // 2}, s[4:7], s57 offen offset:{32 * (k % 2)}")
    PAD = os.environ.get("PAD", "")
    if PAD:
        p("s_mov_b32 s46, 20")
        p.label("L_pad")
        for k in range(64):
            if PAD == "nop": p("s_nop 3")
            else: p(f"{MF} {vr(4 * (k % 16))}, {ar(4 * ((k // 4) % 8))}, {ar(128 + 4 * (k % 32))}, {vr(4 * (k % 16))}")
        p("s_sub_u32 s46, s46, 1")
        p("s_cmp_lg_u32 s46, 0")
        p("s_cbranch_scc1 L_pad")
    if DIAG:
        p("s_waitcnt vmcnt(0)")
        p.items.append(stamp(12)); p.items.append(stamp(13, True))
        dump_stamps(p, 0, 28, 20)
    return [i.t for i in resolve(p.items, tail_pre())], slow

def gen_f_kernel():
    p = Prog()
    p("s_cmp_ge_u32 s2, 256")
    p("s_cbranch_scc1 L_f_end")
    if DIAG:
        for k in range(14): p(f"s_mov_b32 s{66 + 2 * k}, 0")
        p.items.append(stamp(0, True)); p.items.append(stamp(1))
    p("s_load_dwordx4 s[36:39], s[0:1], 0")
    p("s_load_dwordx4 s[40:43], s[0:1], 24")
    p("s_load_dwordx2 s[44:45], s[0:1], 96")
    p("v_and_b32 v254, 63, v0")
    p("v_lshrrev_b32 v255, 6, v0")
    p("s_and_b32 s34, s2, 7")
    p("v_readfirstlane_b32 s28, v255")
    p("s_lshr_b32 s35, s2, 3")
    p("v_lshlrev_b32 v252, 7, v254")
    if CPF:
        p("s_getpc_b64 s[4:5]")
        p("L_pc0:")
        p(f"s_sub_u32 s4, s4, L_pc0-{KNAME}")
        p("s_subb_u32 s5, s5, 0")
        p(f"s_mov_b32 s6, L_code_end-{KNAME}")
        p("s_mov_b32 s7, 0x20000")
        p("v_lshrrev_b32 v244, 3, v254")
        p("v_lshl_or_b32 v244, v244, 27, v252")
        p("v_lshl_add_u32 v244, v255, 15, v244")
        p("s_lshl_b32 s63, s35, 10")
        p("buffer_load_dword v52, v244, s[4:7], s63 offen", "pf")
    p("v_lshlrev_b32 v240, 4, v254")
    p("v_lshrrev_b32 v244, 4, v254")
    p("v_and_b32 v245, 15, v254")
    p("v_lshlrev_b32 v245, 7, v245")
    p("v_lshl_add_u32 v253, v244, 13, v245")
    p("s_lshl_b32 s60, s35, 2")
    p("s_add_u32 s60, s60, s28")
    p("s_and_b32 s61, s34, 1")
    p("s_lshl_b32 s61, s61, 20")
    p("s_lshl_b32 s63, s60, 13")
    p("s_add_u32 s61, s61, s63")
    p("s_lshr_b32 s62, s34, 1")
    p("s_lshl_b32 s62, s62, 11")
    p("s_lshl_b32 s63, s60, 15")
    p("s_add_u32 s62, s62, s63")
    p("s_lshl_b32 s47, s2, 13")
    p("s_lshl_b32 s46, s28, 11")
    p("s_add_u32 s47, s47, s46")
    if HYB:
        for x in ["s_and_b32 s57, s34, 1", "s_lshl_b32 s57, s57, 2", "s_and_b32 s56, s35, 3", "s_add_u32 s57, s57, s56", "s_lshl_b32 s57, s57, 2",
                  "s_add_u32 s57, s57, s28", "s_lshl_b32 s31, s57, 16",
                  "s_lshr_b32 s57, s34, 1", "s_lshl_b32 s57, s57, 3", "s_lshr_b32 s56, s35, 2", "s_add_u32 s57, s57, s56", "s_lshl_b32 s57, s57, 8",
                  "s_mul_i32 s48, s28, 24576", "s_and_b32 s56, s28, 1", "s_lshr_b32 s52, s28, 1", "s_lshl_b32 s53, s56, 13", "s_lshl_b32 s54, s52, 12",
                  "s_add_u32 s53, s53, s54", "s_lshl_b32 s54, s56, 6", "s_lshl_b32 s55, s52, 19", "s_add_u32 s54, s54, s55", "s_add_u32 s54, s54, s57",
                  "v_lshrrev_b32 v241, 3, v254", "v_lshlrev_b32 v241, 13, v241", "v_and_b32 v242, 7, v254"]: p(x)
        for n in range(8):
            p(f"v_xor_b32 v243, {n}, v242")
            p(f"v_lshl_add_u32 v{224 + n}, v243, 4, v241")
        for x in ["v_lshrrev_b32 v244, 5, v254", "v_lshlrev_b32 v244, 1, v244", "v_and_b32 v245, 3, v254", "v_xor_b32 v245, v245, v244",
                  "v_lshlrev_b32 v245, 4, v245", "v_lshrrev_b32 v244, 2, v254", "v_lshl_add_u32 v241, v244, 13, v245",
                  f"v_mov_b32 v66, {~HA & 0xff}", "v_lshrrev_b32 v66, v242, v66", "v_and_b32 v66, 1, v66", "v_lshl_or_b32 v64, v66, 30, v252",
                  "v_lshrrev_b32 v66, 4, v254", "v_and_b32 v67, 15, v254", "v_lshlrev_b32 v65, 7, v67", "v_lshl_add_u32 v65, v66, 20, v65",
                  "v_and_b32 v67, 1, v254", "v_lshl_add_u32 v66, v66, 1, v67", f"v_mov_b32 v67, {~HW & 0xff}", "v_lshrrev_b32 v67, v66, v67",
                  "v_and_b32 v67, 1, v67", "v_lshl_or_b32 v65, v67, 30, v65",
                  "s_lshr_b32 s58, s34, 1", "s_lshl_b32 s58, s58, 11", "s_lshl_b32 s59, s60, 13"]: p(x)
    for r, v in ((10, 0x200000), (11, 0x20000), (14, 0x400000), (15, 0x20000), (26, 0x200000), (27, 0x20000)): p(f"s_mov_b32 s{r}, {v:#x}")
    p("s_waitcnt lgkmcnt(0)")
    if DIAG and not DIAG2: p.items.append(stamp(2))
    for d, sr in ((24, 36), (25, 37), (8, 38), (9, 39), (12, 40), (13, 41)): p(f"s_mov_b32 s{d}, s{sr}")
    p("buffer_load_dwordx4 v[0:3], v240, s[24:27], s47 offen" + NTX, "ln")
    p("buffer_load_dwordx4 v[4:7], v240, s[24:27], s47 offen offset:1024" + NTX, "ln")
    if XBAR: p("s_barrier")
    BLK = [6, 7, 8, 9, 6, 7, 8, 9, 0, 1, 2, 3, 4, 5, 6, 7, 8, 9, 0, 1, 2, 3, 6, 7, 8, 9, 4, 5, 6, 7, 8, 9]
    if KD: BLK = [6, 7, 8, 9, 6, 7, 8, 9, 6, 7, 0, 1, 2, 3, 4, 5, 8, 9, 0, 1, 2, 3, 6, 7, 8, 9, 4, 5, 6, 7, 8, 9]
    def dma_A(s):
        ops = []
        for n in range(8):
            pre = []
            if n % 4 == 0:
                pre = [f"s_add_u32 m0, s48, {(s % 3) * 8192 + (n // 4) * 4096}", f"s_add_u32 s56, s31, {s * 128 + (n // 4) * 4096}"]
            ops.append((pre, f"buffer_load_dwordx4 v{224 + n}, s[8:11], s56 offen offset:{(n % 4) * 1024}{NTA} lds", ("A", s)))
        return ops
    def dma_W(n):
        ops = []
        kq = n % 4
        for q in range(4):
            m0 = "s53"
            if n < 8 and KD:
                pre = [f"s_add_u32 s57, s50, {(n * 64 + q * 16) * 8192 - q * 1024}"]; m0 = "s49"
                ins = f"buffer_load_dwordx4 v241, s[12:15], s57 offen offset:{q * 1024} lds"
            elif n < 8:
                pre = [f"s_add_u32 s57, s54, {(kq * 128 + q * 16) * 8192 + (n // 4) * 128 - q * 1024}"]
                ins = f"buffer_load_dwordx4 v241, s[12:15], s57 offen offset:{q * 1024} lds"
            elif n < 16:
                pre = [f"s_add_u32 s57, s50, {((n - 8) * 64 + q * 16) * 8192 - q * 1024}"]; m0 = "s49"
                ins = f"buffer_load_dwordx4 v241, s[16:19], s57 offen offset:{q * 1024} lds"
            elif n < 24:
                pre = [f"s_add_u32 s57, s{35 if n < 20 else 64}, {(kq * 128 + q * 16) * 3584 - q * 1024}"]
                ins = f"buffer_load_dwordx4 v242, s[12:15], s57 offen offset:{q * 1024} lds"
            else:
                pre = [f"s_add_u32 s57, s65, {(kq * 128 + q * 16) * 8192 - q * 1024 + (128 if n >= 28 else 0)}"]
                ins = f"buffer_load_dwordx4 v241, s[8:11], s57 offen offset:{q * 1024} lds"
            if "kkvvggqq"[n // 4] in NTD: ins = ins.replace(" lds", " nt lds")
            if q == 0: pre = [f"s_add_u32 m0, {m0}, {BLK[n] * 16384}"] + pre
            ops.append((pre, ins, ("L", n)))
        return ops
    def kv_half(tile, part):
        ops = []
        for q in range(4):
            pre = []
            if q == 0: pre = [f"s_add_u32 m0, s49, {tile * 32768 + part * 16384}", f"s_add_u32 s57, s49, {tile * 32768 + part * 16384}"]
            ops.append((pre, f"buffer_load_dwordx4 v240, s[16:19], s57 offen offset:{q * 1024}{KSC} lds", ("kv", tile, part)))
        return ops
    def now(ops):
        for pre, ins, tag in ops:
            for x in pre: p(x)
            p(ins, tag)
    first = dma_W(0) + dma_A(0) + dma_A(1) + (dma_W(1) + dma_A(2) if ALEAD == 3 else [])
    if KD: first = dma_W(0) + dma_A(0) + dma_W(1) + dma_A(1)
    HPA = "buffer_load_dword v246, v64, s[8:11], s44 offen"
    HPW = "buffer_load_dword v247, v65, s[12:15], s60 offen"
    if HYB:
        now(first[:HE]); first = first[HE:]
        if HP1 == 0: p(HPA.replace("s44", "s61"), "pf")
    if PFA and not HYB:
        p("buffer_load_dword v246, v252, s[8:11], s61 offen" + os.environ.get("NTPA", ""), "pf")
        p("buffer_load_dword v247, v253, s[12:15], s62 offen" + NT, "pf")
    srd(p, 16, 42, 0x400000)
    srd(p, 20, 44, 0x10000000)
    if HYB: p("s_mov_b32 s44, s61")
    p("s_load_dwordx2 s[36:37], s[0:1], 16")
    p("s_load_dwordx2 s[38:39], s[0:1], 40")
    p("s_load_dwordx4 s[40:43], s[0:1], 56")
    p("s_load_dwordx2 s[96:97], s[0:1], 72")
    p("s_load_dwordx2 s[98:99], s[0:1], 88")
    p("v_lshl_add_u32 v244, v255, 6, v254")
    p("v_cmp_eq_u32 vcc, 0, v244")
    p("v_mov_b32 v248, 0x7ffff000")
    p("v_mov_b32 v249, 1")
    p("v_mov_b32 v250, 0")
    p("v_cndmask_b32_e64 v248, v248, 0, vcc")
    p("s_and_b32 s47, s34, 1")
    p("s_lshl_b32 s47, s47, 2")
    p("s_and_b32 s46, s35, 3")
    p("s_add_u32 s47, s47, s46")
    p("s_lshr_b32 s3, s34, 1")
    p("s_lshl_b32 s3, s3, 3")
    p("s_lshr_b32 s46, s35, 2")
    p("s_add_u32 s3, s3, s46")
    p("s_lshl_b32 s45, s3, 3")
    p("s_add_u32 s45, s45, s47")
    p("s_lshl_b32 s46, s47, 2")
    p("s_add_u32 s46, s46, s28")
    p("s_lshl_b32 s31, s46, 16")
    p("s_lshl_b32 s94, s46, 15")
    p("s_lshl_b32 s47, s3, 20")
    p("s_add_u32 s94, s94, s47")
    p(f"s_add_u32 s94, s94, {WS_KV:#x}")
    p("s_lshl_b32 s95, s3, 8")
    p("s_lshl_b32 s3, s45, 7")
    p(f"s_add_u32 s3, s3, {WS_FLAG + 0x10000:#x}")
    p("s_lshl_b32 s29, s34, 2")
    p("s_lshr_b32 s46, s35, 3")
    p("s_add_u32 s29, s29, s46")
    p("s_and_b32 s30, s35, 7")
    p(f"s_mul_i32 s48, s28, 24576")
    p("s_lshl_b32 s49, s28, 12")
    p("s_lshl_b32 s50, s28, 6")
    p("s_add_u32 s50, s50, s95")
    p("s_and_b32 s45, s28, 1")
    p("s_lshr_b32 s52, s28, 1")
    p("s_lshl_b32 s53, s45, 13")
    p("s_lshl_b32 s54, s52, 12")
    p("s_add_u32 s53, s53, s54")
    p("s_lshl_b32 s54, s45, 6")
    p("s_lshl_b32 s55, s52, 19")
    p("s_add_u32 s55, s54, s55")
    p("s_add_u32 s54, s55, s95")
    p("s_lshl_b32 s56, s29, 8")
    p("s_add_u32 s65, s55, s56")
    p("s_sub_u32 s56, 15, s30")
    p("s_lshl_b32 s32, s56, 3")
    p("s_add_u32 s32, s32, s28")
    p("s_lshl_b32 s33, s30, 3")
    p("s_add_u32 s33, s33, s28")
    p("s_lshl_b32 s46, s32, 14")
    p("s_lshl_b32 s47, s33, 14")
    p(f"s_mul_i32 s32, s32, {ACT_ROW}")
    p(f"s_add_u32 s32, s32, {WS_ACT:#x}")
    p(f"s_mul_i32 s33, s33, {ACT_ROW}")
    p(f"s_add_u32 s33, s33, {WS_ACT:#x}")
    if GUZ:
        p("s_sub_u32 s55, s29, s34")
        p("s_add_u32 s55, s55, 32")
    else:
        p("s_add_u32 s55, s29, 32")
        p("s_cmp_lt_u32 s29, 24")
        p("s_cselect_b32 s55, s55, s29")
    p(f"s_mul_i32 s64, s52, {64 * 3584}")
    p("s_lshl_b32 s63, s29, 6")
    p("s_add_u32 s35, s64, s63")
    p("s_lshl_b32 s63, s55, 6")
    p("s_add_u32 s64, s64, s63")
    if GUZ:
        p("s_and_b32 s63, s29, 3")
        p("s_cmp_eq_u32 s63, 3")
        p("s_cselect_b32 s64, 0x7f000000, s64")
    p("s_lshl_b32 s51, s29, 20")
    p(f"s_add_u32 s51, s51, {WS_KV:#x}")
    p("s_lshl_b32 s56, s29, 10")
    p(f"s_add_u32 s56, s56, {128 * 1024}")
    p("s_add_u32 s100, s56, s32")
    p("s_add_u32 s101, s56, s33")
    p("s_lshl_b32 s61, s34, 8")
    p("s_lshr_b32 s63, s60, 1")
    p(f"s_mul_i32 s63, s63, {8 * 3584}")
    p("s_add_u32 s61, s61, s63")
    p("s_lshl_b32 s52, s34, 10")
    p("s_lshl_b32 s63, s60, 15")
    p("s_add_u32 s52, s52, s63")
    if HYB: p("s_add_u32 s60, s58, s59")
    p("v_lshrrev_b32 v241, 3, v254")
    p("v_lshlrev_b32 v241, 13, v241")
    p("v_and_b32 v242, 7, v254")
    for n in range(8):
        p(f"v_xor_b32 v243, {n}, v242")
        p(f"v_lshl_add_u32 v{224 + n}, v243, 4, v241")
    p("v_and_b32 v241, 7, v254")
    p("v_bfe_u32 v242, v254, 3, 1")
    p("v_lshlrev_b32 v242, 7, v242")
    p("v_lshl_add_u32 v242, v241, 10, v242")
    p("v_add_u32 v242, s48, v242")
    p("v_lshrrev_b32 v243, 4, v254")
    for tt in range(2):
        p(f"v_add_u32 v244, {4 * tt}, v243")
        p("v_xor_b32 v244, v244, v241")
        p(f"v_lshl_add_u32 v{232 + tt}, v244, 4, v242")
    p("v_lshlrev_b32 v241, 9, v243")
    p("v_bfe_u32 v242, v254, 2, 2")
    p("v_lshl_add_u32 v241, v242, 6, v241")
    p("v_and_b32 v242, 3, v254")
    p("v_lshl_add_u32 v241, v242, 3, v241")
    p("v_and_b32 v242, 1, v243")
    p("v_lshl_add_u32 v234, v242, 5, v241")
    p("v_xor_b32 v237, 32, v234")
    for cf in range(2):
        p(f"v_add_u32 v{235 + 3 * cf}, 0x10000, v{234 + 3 * cf}")
        p(f"v_add_u32 v{236 + 3 * cf}, 0x20000, v{234 + 3 * cf}")
    p("v_lshrrev_b32 v244, 5, v254")
    p("v_lshlrev_b32 v251, 30, v244")
    p("v_lshlrev_b32 v244, 1, v244")
    p("v_and_b32 v245, 3, v254")
    p("v_xor_b32 v245, v245, v244")
    p("v_lshlrev_b32 v245, 4, v245")
    p("v_lshrrev_b32 v244, 2, v254")
    p("v_lshl_add_u32 v241, v244, 13, v245")
    p("v_mul_u32_u24 v244, 3584, v244")
    p("v_add_u32 v242, v244, v245")
    if ASYM:
        p("v_lshrrev_b32 v245, 3, v254")
        p("v_mul_u32_u24 v245, 3584, v245")
        p("v_and_b32 v244, 3, v254")
        p("v_lshl_add_u32 v245, v244, 7, v245")
        p("s_lshr_b32 s63, s34, 1")
        p("s_mul_i32 s63, s63, 384")
        p("s_add_u32 s63, s63, 2048")
        p("s_lshl_b32 s56, s34, 8")
        p("s_sub_u32 s63, s63, s56")
        p("v_bfe_u32 v244, v254, 2, 1")
        p("v_mad_u32_u24 v245, v244, s63, v245")
        p("v_and_b32 v244, 7, v254")
        p("v_lshrrev_b32 v244, v244, 0x8c" if False else "v_mov_b32 v53, 0x8c")
        p("v_lshrrev_b32 v244, v244, v53")
        p("v_and_b32 v244, 1, v244")
        p("v_lshl_or_b32 v245, v244, 30, v245")
    else:
        p("v_bfe_u32 v245, v254, 2, 3")
        p("v_mul_u32_u24 v245, 3584, v245")
        p("v_and_b32 v244, 1, v254")
        p("v_lshl_add_u32 v245, v244, 7, v245")
        p("v_bfe_u32 v244, v254, 1, 1")
        if GUZ:
            p("s_lshl_b32 s63, s34, 6")
            p("s_sub_u32 s63, 2048, s63")
            p("v_mad_u32_u24 v245, v244, s63, v245")
        else:
            p("v_lshl_add_u32 v245, v244, 11, v245")
        p("v_or_b32 v245, v245, v251")
    p("v_and_b32 v243, 15, v254" if not BYTEF else "v_mov_b32 v243, v254")
    p(f"v_lshlrev_b32 v243, {2 if BYTEF else XSH}, v243")
    p("v_lshlrev_b32 v48, 7, v254")
    p("v_lshl_add_u32 v48, v255, 5, v48")
    p("v_add_u32 v48, 0x24000, v48")
    p("v_lshl_add_u32 v49, v255, 11, v240")
    p("v_add_u32 v49, 0x24000, v49")
    p("v_lshrrev_b32 v50, 3, v254")
    p("v_lshlrev_b32 v50, 8, v50")
    p("v_and_b32 v51, 7, v254")
    p("v_lshl_add_u32 v50, v51, 4, v50")
    p("s_waitcnt lgkmcnt(0)")
    p("s_cmp_eq_u32 s45, 0")
    p("s_cselect_b32 s40, s40, s42")
    p("s_cselect_b32 s41, s41, s43")
    p("s_mov_b32 s4, s98")
    p("s_mov_b32 s5, s99")
    p("s_mov_b32 s6, 256")
    p("s_mov_b32 s7, 0x20000")
    p("s_load_dwordx2 s[42:43], s[0:1], 80")
    p("s_lshl_b32 s56, s55, 10")
    p(f"s_add_u32 s56, s56, {128 * 1024}")
    p("s_add_u32 s98, s56, s32")
    p("s_add_u32 s99, s56, s33")
    if GUZ:
        p("s_and_b32 s56, s29, 3")
        p("s_cmp_eq_u32 s56, 3")
        p("s_cselect_b32 s98, 0x7f000000, s98")
        p("s_cselect_b32 s99, 0x7f000000, s99")
    p("s_lshl_b32 s63, s2, 7")
    p(f"s_add_u32 s63, s63, {WS_FLAG:#x}")
    now(first[:EARLY])
    p.wait_vm("ln")
    if DIAG and not DIAG2: p.items.append(stamp(3))
    emit_ln(p)
    p("ds_write_b128 v48, v[40:43]")
    p("ds_write_b128 v48, v[44:47] offset:16")
    p("s_lshr_b32 s58, s2, 1")
    p("s_lshl_b32 s58, s58, 14")
    p("s_and_b32 s59, s2, 1")
    p("s_lshl_b32 s59, s59, 7")
    p("s_add_u32 s58, s58, s59")
    p("s_add_u32 s58, s58, s49")
    if WS_XN: p(f"s_add_u32 s58, s58, {WS_XN:#x}")
    p("s_waitcnt lgkmcnt(0)")
    p("s_barrier")
    p("ds_read_b128 v[40:43], v49")
    p("ds_read_b128 v[44:47], v49 offset:1024")
    p("s_lshr_b32 s59, s2, 4")
    p(f"s_lshl_b32 s59, s59, {XSH}")
    p("s_waitcnt lgkmcnt(0)")
    p(f"buffer_store_dwordx4 v[40:43], v50, s[20:23], s58 offen{STF}", "xnst")
    p(f"buffer_store_dwordx4 v[44:47], v50, s[20:23], s58 offen offset:2048{STF}", "xnst")
    p(f"buffer_store_dword v250, v248, s[20:23], s63 offen{STF}", "zf")
    p(f"buffer_store_dword v250, v248, s[20:23], s63 offen offset:4{STF}", "zf")
    p(f"buffer_store_dword v250, v248, s[20:23], s3 offen{STF}", "zf")
    if ASYM:
        p("s_getreg_b32 s56, hwreg(HW_REG_XCC_ID)")
        p("s_and_b32 s56, s56, 1")
        p("v_mov_b32 v53, s56")
        p("s_lshl_b32 s56, s2, 12")
        p(f"buffer_store_dword v53, v248, s[4:7], s56 offen offset:4{STF}", "zf")
    p(f"s_add_u32 s63, s63, 0x20000")
    p(f"buffer_store_dword v250, v248, s[20:23], s63 offen offset:8{STF}", "zf")
    p(f"buffer_store_dword v250, v248, s[20:23], s63 offen{STF}", "zf")
    p(f"buffer_store_dword v250, v248, s[20:23], s63 offen offset:4{STF}", "zf")

    if os.environ.get("PADS"):
        p(f"s_mov_b32 s56, {int(os.environ['PADS'])}")
        p.label("L_pads")
        for k in range(64): p("s_nop 3")
        p("s_sub_u32 s56, s56, 1")
        p("s_cmp_lg_u32 s56, 0")
        p("s_cbranch_scc1 L_pads")
    if os.environ.get('PFW8'):
        p('s_waitcnt vmcnt(0)'); p.items.append(stamp(2))
    if HYB and HP1 == 1: p(HPA, "pf")
    if HYB and HP2 == 0: p(HPW, "pf")
    now(first[EARLY:])
    if HYB and HP1 == 2: p(HPA, "pf")
    if HYB and HP2 == 1: p(HPW, "pf")

    groups = []
    def accT(base, c, cf, rb): return base + (c * 4 + rb) * 8 + cf * 4
    def accV(base, c, cf, rb): return base + ((c * 2 + cf) * 2 + (rb >> 1)) * 8 + (rb & 1) * 4
    def add_double(seg0, bases, vt=True):
        order = [(s, tt, c) for s in range(8) for tt in range(2) for c in range(4)]
        if KD and vt: order = sorted(order[:16], key=lambda x: x[2] >> 1) + order[16:]
        if KD and not vt: order = order[:56] + sorted(order[56:], key=lambda x: -(x[2] >> 1))
        order = [(s, tt, c, cf) for s, tt, c in order for cf in range(2)]
        if "g" in CH: order = [(s, tt, c, cf) for s in range(8) for c in range(4) for cf in range(2) for tt in range(2)]
        for s, tt, c, cf in order:
            if True:
                groups.append(dict(off=BLK[seg0 + s] * 16384 + c * 4096 + tt * 2048, cf=cf, t=2 * s + tt,
                                   acc=[(accV if vt else accT)(bases[c >> 1], c & 1, cf, rb) for rb in range(4)], vt=vt))
    def quad(seg): return 'G' in CH and (4 <= seg < 8 or seg >= 16)
    def add_single(seg0, base):
        if ASYM and seg0 == 20:
            for cf in range(2):
                for q in range(4):
                    for tq in range(4):
                        for c in range(2):
                            groups.append(dict(off=BLK[seg0 + q] * 16384 + c * 8192 + tq * 2048, cf=cf, t=4 * q + tq,
                                               acc=[accT(base, c, cf, rb) for rb in range(4)], vt=False))
            return
        for q in range(4):
            od = [(tq, c, cf) for c in range(2) for tq in range(4) for cf in range(2)] if seg0 + q == 31 else [(tq, c, cf) for tq in range(4) for c in range(2) for cf in range(2)]
            if "g" in CH:
                od = [(2 * tp + e, c, cf) for c in range(2) for tp in range(2) for cf in range(2) for e in range(2)] if seg0 + q == 31 else \
                     [(2 * tp + e, c, cf) for tp in range(2) for c in range(2) for cf in range(2) for e in range(2)]
            if quad(seg0 + q): od = [(tq, c, cf) for c in range(2) for cf in range(2) for tq in range(4)]
            for tq, c, cf in od:
                groups.append(dict(off=BLK[seg0 + q] * 16384 + c * 8192 + tq * 2048, cf=cf, t=4 * q + tq,
                                   acc=[accT(base, c, cf, rb) for rb in range(4)], vt=False))
    if KD: add_double(0, [0, 64], False)
    else: add_single(0, 0); add_single(4, 64)
    add_double(8, [128, 0])
    add_single(16, 64); add_single(20, 128); add_single(24, 0); add_single(28, 64)
    NG = len(groups)
    mf = []
    seqm = [(n, rb) for n in range(NG) for rb in range(4)]
    if "g" in CH: seqm = [(n + e, rb) for n in range(0, NG, 2) for rb in range(4) for e in range(2)]
    if "G" in CH:
        seqm = []
        for n in range(0, NG, 4):
            if quad(n // 16): seqm += [(n + (e if rb % 2 == 0 else 3 - e), rb) for rb in range(4) for e in range(4)]
            else: seqm += [(n + h + e, rb) for h in (0, 2) for rb in range(4) for e in range(2)]
    seen = set()
    for n, rb in seqm:
        G = groups[n]
        w = vr(192 + 4 * (n % 8))
        a = ar((rb * 16 + G["t"]) * 4)
        d = vr(G["acc"][rb])
        key = (d, n // 64 if not 128 <= n < 256 else 2)
        c = d if key in seen else 0
        seen.add(key)
        mf.append(f"{MF} {d}, {a}, {w}, {c}" if G["vt"] else f"{MF} {d}, {w}, {a}, {c}")
    S = Sched16(mf)
    def w_reads(n):
        G = groups[n]
        out = []
        for hf in range(2):
            off = G["off"] + hf * 256
            d = 192 + 4 * (n % 8) + 2 * hf
            out.append(f"ds_read_b64_tr_b16 v[{d}:{d + 1}], v{234 + 3 * G['cf'] + (off >> 16)} offset:{off & 0xffff}")
        return out
    def a_reads(s):
        return [f"ds_read_b128 {ar((rb * 16 + 2 * s + tt) * 4)}, v{232 + tt} offset:{(s % 3) * 8192 + rb * 256}" for tt in range(2) for rb in range(4)]
    RA = 5
    if DIAG and not DIAG2: p.items.append(stamp(4))
    p.wait_vm(("A", 0))
    p("s_barrier")
    if DIAG and not DIAG2: p.items.append(stamp(5))
    for x in a_reads(0): p(x, ("Ar", 0))
    for n in range(RA):
        for x in w_reads(n): p(x, ("W", n))
    p.wait_lgkm(("W", 1 if "g" in CH else 0))
    for n in range(RA, NG):
        k = n % 16
        if k <= 13: g = 4 * (n - RA)
        elif k == 14: g = 4 * (n - 6) + 2
        else: g = 4 * (n - 6)
        if quad(n // 16) or (n >= 8 and quad((n - 8) // 16)): g = 16 * (n // 4 - 1) + 2 * (n % 4)
        for i, x in enumerate(w_reads(n)): S.add_mem(g + i, x, ("W", n))
    if "g" in CH:
        for n in range(2, NG, 2): S.add_first(4 * n - 1 if not (quad(n // 16) and n % 4) else 4 * n - 7, Wait("lgkm", ("W", n + 1)))
    else:
        for n in range(1, NG): S.add_first(4 * n - 1, Wait("lgkm", ("W", n)))
    for s in range(1, 8):
        g = 32 * s - 22 if not KD else 64 * s - 38
        S.add_first(g, Wait("vm", ("A", s)))
        for i, x in enumerate(a_reads(s)): S.add_mem(g + [0, 0, 1, 1, 4, 4, 5, 5][i], x, ("Ar", s))
        S.add_first(g + 12, Wait("lgkm", ("Ar", s)))
    def gB(n): return 64 * n + 4 * 11
    GBS = [n for n in range(31) if n < 8 or not GB2 or n % 2 == 1]
    if GB2 == 4: GBS = list(range(8)) + [11, 15, 19, 23, 25, 27, 29]
    if ASYM: GBS = sorted(set(GBS) - {21} | {KVPUB})
    for n in GBS:
        nxt = min([x for x in GBS if x > n] + [31])
        if ASYM and n == 19: nxt = 23
        tags = [("L", nxt)]
        if n == 0: tags += ["xnst", "zf"]
        if n == KVPUB: tags.append("kvst")
        if n == 29: tags.append(("kv", 0, 0))
        S.add_first(gB(n) - 2, Ins("s_waitcnt lgkmcnt(0)"))
        S.add_first(gB(n), Wait("vm", tags))
        S.add_first(gB(n), "s_barrier")
    assert KVPUB in GBS
    def win(n): return gB(n - 1) + 1
    def freed(seg): return gB(min(x for x in GBS if x >= (23 if ASYM and 20 <= seg < 23 else seg))) + 1
    def lfree(n):
        prev = [m for m in range(n) if BLK[m] == BLK[n]]
        return freed(prev[-1]) if prev else freed(6 if KD else 3)
    def lmax(n):
        c = max(x for x in GBS if x < n); last = min([x for x in GBS if x > c] + [31])
        if ASYM and 20 <= n <= 23: c, last = 19, 23
        return gB(c) - 130 - 36 * (last - n)
    def bfree(blk): return freed(max(m for m in range(32) if BLK[m] == blk))
    LD = []
    def ld(ops, e, pace=1):
        for i, (pre, ins, tag) in enumerate(ops):
            for x in pre: LD.append(Op(x, e + i * pace - 3, 2040))
            LD.append(Op(ins, e + i * pace, 2040, tag=tag, deps=[LD[-2]] if len(pre) == 2 else []))
    one = lambda ins, tag, pre=(): [([], x, None) for x in pre] + [([], ins, tag)]
    if KD:
        pfv = one("buffer_load_dword v246, v253, s[16:19], s62 offen" + NTV, "pf")
        for st in range(2, 8):
            ld(dma_W(st), 0 if st < 4 else win(st - 3), 2)
            ld(dma_A(st), 0 if st < 4 else 64 * (st - 3) - 26, 2)
            if st == PFVP and "v" in PFW: ld(pfv, 0)
        ld(one("buffer_atomic_add v249, v248, s[4:7], s59 offen", "pub"), win(5))
        for n in range(8, 13): ld(dma_W(n), lfree(n), 3)
    else:
        if ALEAD == 3:
            ld(dma_A(3), 0); ld(dma_W(2), 8); ld(dma_A(4), 22)
            ld(dma_A(5), 54); ld(dma_W(3), 62); ld(dma_A(6), 86); ld(dma_A(7), 118); ld(dma_W(4), 126); ld(dma_W(5), 140, 4)
        else:
            ld(dma_W(1), 0); ld(dma_A(2), 0)
            if HYB and HP2 == 2: ld(one(HPW, "pf"), 0)
            k1 = lambda st: ld(one("buffer_load_dword v247, v253, s[12:15], s62 offen", "pf"), 0) if HP3 == st else None
            ld(dma_A(3), 20); k1(3); ld(dma_W(2), 40); ld(dma_A(4), 52); k1(4); ld(dma_A(5), 84); k1(5); ld(dma_W(3), 100)
            ld(dma_A(6), 116); ld(dma_A(7), 144); ld(dma_W(4), 156); ld(dma_W(5), 160)
        if not BYTEF: ld(one("buffer_atomic_add v249, v248, s[4:7], s59 offen", "pub"), win(3))
        else: S.add_mem(win(BYTEF), "buffer_store_byte v249, v248, s[4:7], s2 offen sc1", "pub")
        if "v" in PFW: ld(one("buffer_load_dword v246, v253, s[16:19], s62 offen" + NTV, "pf"), win(3))
        ld(dma_W(6), win(3), 2)
        ld(dma_W(7), VW0 - 24, 4)
        for n in range(8, 13): ld(dma_W(n), VW0 + (n - 8) * VWP, max(3, VWP // 4))
    ld(one("buffer_load_dword v250, v245, s[12:15], s61 offen", "pf", ["s_mov_b32 s12, s40", "s_mov_b32 s13, s41", f"s_mov_b32 s14, {512 * 3584}"])[:4 if "g" in PFW else 3], win(8 if KD else GPW))
    if WQE:
        S.add_valu(300, "v_and_b32 v253, 0xfffffbff, v253")
        S.add_valu(301, "v_bfe_u32 v224, v254, 3, 1")
        S.add_valu(302, "v_lshl_or_b32 v253, v224, 30, v253")
        ld(one("buffer_load_dword v225, v253, s[8:11], s52 offen", "pf", ["s_mov_b32 s8, s36", "s_mov_b32 s9, s37", "s_mov_b32 s10, 0x400000"]), 0)
    print("ld1", schedule(S, [LD], 0, 511, base_cap=LCAP), "last", LD[-1].g, [o.g for o in LD if o.tag in ("pf", "poll")])
    gc = XNC
    S.add_mem(XPL if XPL else gc - 50, XPOLL, "poll")
    S.add_first(gc, Wait("vm", "poll"))
    S.add_valu(gc, XCMP)
    S.add_valu(gc, "v_add_u32 v247, 0x10000, v240")
    S.add_last(gc + 2, "s_cbranch_vccnz L_xnwait")
    S.add_last(gc + 2, "L_xnok:")
    BK0, BK1 = 1408, 1536
    if ASYM:
        S.add_valu(gc + 4, "v_readfirstlane_b32 s48, v225")
        ro = ["s_xor_b32 s48, s48, s2", "s_and_b32 s48, s48, 1",
              "s_and_b32 s55, s29, 3", "s_lshr_b32 s56, s55, 1", "s_add_u32 s56, s56, 4", "s_and_b32 s31, s55, 1", "s_mul_i32 s31, s31, s48",
              ["s_cmp_eq_u32 s48, 1", "s_cselect_b32 s55, s56, s55"], "s_lshr_b32 s56, s34, 1", "s_mul_i32 s56, s56, 6", "s_add_u32 s55, s55, s56",
              "s_add_u32 s55, s55, 32",
              "s_lshr_b32 s56, s28, 1", f"s_mul_i32 s64, s56, {64 * 3584}", "s_lshl_b32 s56, s55, 6", "s_add_u32 s64, s64, s56",
              "s_lshl_b32 s56, s31, 5", "s_add_u32 s64, s64, s56",
              "s_lshl_b32 s56, s55, 10", f"s_add_u32 s56, s56, {128 * 1024}", "s_add_u32 s98, s56, s32", "s_add_u32 s99, s56, s33",
              "s_lshl_b32 s31, s31, 3", "s_add_u32 s54, s98, s31", "s_add_u32 s55, s99, s31", "s_mov_b32 s56, 0x7f000000",
              ["s_cmp_eq_u32 s48, 1", "s_cselect_b32 s98, s56, s98", "s_cselect_b32 s99, s56, s99", "s_cselect_b32 s54, s54, s56", "s_cselect_b32 s55, s55, s56"]]
        g = gc + 6
        for x in ro:
            while S.first[g]: g += 1
            for y in (x if isinstance(x, list) else [x]): S.add_first(g, y)
            g += 1
        for g in range(BK0, BK1): S.add_last(g, Ins("BLACK")); S.add_last(g, Ins("BLACK"))
    LD = []
    for n in range(13, 24): ld(dma_W(n), max(min(win(9) + (n - 13) * 44 if n < WSH else win(n - 4), lmax(n)), lfree(n)), 8)
    if not WQE:
        S.add_valu(64 * 12, "v_and_b32 v253, 0xfffffbff, v253")
        S.add_valu(64 * 12 + 1, "v_bfe_u32 v246, v254, 3, 1")
        S.add_valu(64 * 12 + 2, "v_lshl_or_b32 v253, v246, 30, v253")
        ld(one("buffer_load_dword v244, v253, s[8:11], s52 offen", "pf", ["s_mov_b32 s8, s36", "s_mov_b32 s9, s37", "s_mov_b32 s10, 0x400000"])[:4 if "q" in PFW else 3], win(17 if WSH > 20 else WQW) if not ASYM else 1170)
    for n in range(24, 32):
        if n == 28 and PFOG:
            S.add_valu(1400, "v_and_b32 v245, 0xfff, v252")
            S.add_valu(1401, "v_or_b32 v245, v245, v251")
            ld(one("buffer_load_dword v250, v245, s[4:7], s50 offen", "pf", ["s_mov_b32 s4, s38", "s_mov_b32 s5, s39", "s_mov_b32 s6, 0x400000", "s_mov_b32 s7, 0x20000",
                   "s_lshl_b32 s50, s2, 2", "s_add_u32 s50, s50, s28", "s_lshl_b32 s50, s50, 12"]), PFOG - 8)
            ld(one("buffer_load_dword v253, v245, s[12:15], s50 offen", "pf", ["s_mov_b32 s12, s96", "s_mov_b32 s13, s97", f"s_mov_b32 s14, {1792 * 1024}"]), PFOG - 8)
            if NTX: ld(one("buffer_load_dword v244, v245, s[24:27], s50 offen", "pf"), PFOG - 8)
        ld(dma_W(n), max((1270 if ASYM else win(19) if WSH > 20 else win(21) + 20) + (n - 24) * (32 if ASYM else 50 if WSH > 20 else 36), lfree(n), PFOG + 120 + 20 * (n - 28) if PFOG and n >= 28 else 0), 8 if n < 28 or not PFOG else 4)
    S.add_valu(64 * 26, "v_and_b32 v243, 0x380, v252")
    for x in ["s_add_u32 s16, s20, s51", "s_addc_u32 s17, s21, 0"]: S.add_last(64 * 26, x)
    for x in ["s_sub_u32 s18, 16, s30", "s_lshl_b32 s18, s18, 16"]: S.add_last(64 * 26 + 1, x)
    ld(one("buffer_load_dword v244, v243, s[20:23], s59 offen sc1", "poll2", ["s_lshl_b32 s59, s29, 10", f"s_add_u32 s59, s59, {WS_FLAG + 0x10000:#x}"]), 64 * 27 + KPD - KQD)
    gc = win(28) + 1 + KPD
    for k in range(7): ld(kv_half(k // 2, k % 2), max(gc + 4 + 16 * k, bfree(k)), 4)
    S.add_first(gc, Wait("vm", "poll2"))
    S.add_valu(gc, "v_cmp_ne_u32 vcc, 1, v244")
    S.add_last(gc + 2, "s_cbranch_vccnz L_kvwait")
    S.add_last(gc + 2, "L_kvok:")
    print("ld2", schedule(S, [LD], 512, 2046, base_cap=2), "last", LD[-1].g, [(o.tag, o.g) for o in LD if o.mem][::4])
    def xe(t, rb):
        if "g" in CH: return 512 + 64 * (t // 2 + 1) + (7 if t < 14 else 3) * (4 * (t & 1) + rb)
        return 512 + 32 * t + 32 + (6 * rb if t < 15 else 0)
    XL = []
    for t in range(16):
        for rb in range(4):
            pre = []
            if t % 4 == 0 and rb % 2 == 0: pre = [f"s_add_u32 s{62 + rb // 2}, s{46 + rb // 2}, {WS_XN + t * 1024}"]
            vo = 240 if rb % 2 == 0 else 247
            XL.append(Op(f"buffer_load_dwordx4 {ar((rb * 16 + t) * 4)}, v{vo}, s[20:23], s{62 + rb // 2} offen offset:{(t % 4) * 1024}{XSC}",
                         max(xe(t, rb), XNC + 4 + int(XP * (4 * t + rb))), 1024 + 16 * (t & ~3) - 60 if t < 10 else xe(t, rb) + 40, pre=pre, tag=("X", t)))
    for t in range(16): S.add_first(1024 + 16 * (t & ~3 if "G" in CH else t & ~1 if "g" in CH else t) - 2, Wait("vm", ("X", t)))
    def kv_epi(kind, u, base, g0, g1, st0):
        ops = []
        for k8 in range(8):
            R = base + 8 * k8
            if kind == "K":
                c, rb = k8 // 4, k8 % 4
                off = rb * 4096 + (2 * u + c) * 1024
                for r in range(8): ops.append(Op(f"v_mul_f32 v{R + r}, s58, v{R + r}", g0, g1))
            else:
                db, s = 4 * u + k8 // 2, k8 % 2
                off = 16384 + s * 8192 + db * 1024
            cv = [Op(f"v_cvt_pk_bf16_f32 v{R + k}, v{R + 2 * k}, v{R + 2 * k + 1}", g0, g1) for k in range(4)]
            ops += cv
            ops.append(Op(f"s_add_u32 s95, s94, {off & ~4095}", g0, g1))
            ops.append(Op(f"buffer_store_dwordx4 {vr(R)}, v240, s[20:23], s95 offen offset:{off & 4095}{STF}", max(g0, st0[0] + int(k8 * st0[1])), g1, [cv[-1]], tag="kvst"))
        return ops
    S.add_first(250, f"s_mov_b32 s58, {f2u(KSCALE):#x}")
    C0 = -2.0 * math.sqrt(2.0 / math.pi) * LOG2E
    C1 = C0 * 0.044715
    S.add_valu(64 * 17, f"v_mov_b32 v232, {f2u(C0):#x}")
    S.add_valu(64 * 17 + 1, f"v_mov_b32 v233, {f2u(C1):#x}")
    S.add_valu(64 * 17 + 2, f"v_add_u32 v246, {4 * ACT_ROW}, v240")
    def gu_epi(base, psg, g0, g1, gst):
        st = [[], []]; sto = []
        for rb in range(4):
            G = base + rb * 8; U = base + 32 + rb * 8
            L = st[rb & 1]
            for r in range(8):
                t = 224 + (r % 4) + 4 * (rb & 1)
                o4 = Op(f"v_exp_f32 v{t}, v{t}", g0, g1)
                o7 = Op(f"v_rcp_f32 v{t}, v{t}", g0, g1)
                L += [Op(f"v_mul_f32 v{t}, v{G + r}, v{G + r}", g0, g1), Op(f"v_fma_f32 v{t}, v{t}, v233, v232", g0, g1),
                      Op(f"v_mul_f32 v{t}, v{t}, v{G + r}", g0, g1), o4, Op(f"v_mul_f32 v{G + r}, v{G + r}, v{U + r}", g0, g1),
                      Op(f"v_add_f32 v{t}, 1.0, v{t}", g0, g1), o7, Op(f"v_mul_f32 v{G + r}, v{G + r}, v{t}", g0, g1, [o7])]
            cv = [Op(f"v_cvt_pk_bf16_f32 v{G + k}, v{G + 2 * k}, v{G + 2 * k + 1}", g0, g1 - 2) for k in range(4)]
            L += cv
            sto.append(Op(f"buffer_store_dwordx4 {vr(G)}, v{240 if rb % 2 == 0 else 246}, s[20:23], s{psg + rb // 2} offen{STF}", gst + 30 * rb, g1, [cv[-1]], tag="hst"))
            if ASYM and psg == 98:
                sto.append(Op(f"buffer_store_dwordx2 v[{G}:{G + 1}], v{240 if rb % 2 == 0 else 246}, s[20:23], s{54 + rb // 2} offen{STF}", gst + 30 * rb, g1, tag="hst"))
        return st, sto
    def q_epi(base, u, g0, g1, gmove):
        cvs = []; mv = []
        for c in range(2):
            for qb in range(4):
                R = base + (c * 4 + qb) * 8
                for k in range(4):
                    o = Op(f"v_cvt_pk_bf16_f32 v{R + k}, v{R + 2 * k}, v{R + 2 * k + 1}", g0, g1)
                    cvs.append(o)
                    mv.append(Op(f"v_accvgpr_write_b32 a{Qreg(qb, 2 * u + c) + k}, v{R + k}", gmove, g1, [o]))
        return cvs, mv
    PH = [256 * k for k in range(9)]
    PE = 2048
    kvs = kv_epi("K", 0, 0, PH[1] + 6, PH[2] - 3, (PH[1] + 16, STP)) + kv_epi("K", 1, 64, PH[2] + 6, PH[4] - 3, (PH[2] + 16, STPK1)) + \
          kv_epi("V", 0, 128, PH[4] + 6, PH[5] - 3, (PH[4] + 12, STPV)) + kv_epi("V", 1, 0, PH[4] + 6, (BK0 if ASYM else PH[6]) - 3, (PH[4] + 12 + 8 * STPV, STPV))
    kst = []
    if KD:
        kvs = []
        for u, base, g0 in ((1, 64, 512 - 32 + 6), (0, 0, 512 + 6)):
            for k8 in range(8):
                R = base + 8 * k8; P = 64 + 8 * k8 + (4 if u == 0 else 0)
                c, rb = k8 // 4, k8 % 4
                off = rb * 4096 + (2 * u + c) * 1024
                kvs += [Op(f"v_mul_f32 v{R + r}, s58, v{R + r}", g0, 573) for r in range(8)]
                cv = [Op(f"v_cvt_pk_bf16_f32 v{P + k}, v{R + 2 * k}, v{R + 2 * k + 1}", g0, 573) for k in range(4)]
                kvs += cv
                kst.append(Op(f"s_add_u32 s95, s94, {off & ~4095}", g0, PH[4] - 3))
                kst.append(Op(f"buffer_store_dwordx4 {vr(P)}, v240, s[20:23], s95 offen offset:{off & 4095}{STF}", 560 + int(len(kst) // 2 * STP), PH[4] - 3, [cv[-1]], tag="kvst"))
        kvs += kv_epi("V", 0, 128, PH[4] + 6, PH[5] - 3, (PH[4] + 12, STPV)) + kv_epi("V", 1, 0, PH[4] + 6, PH[6] - 3, (PH[4] + 12 + 8 * STPV, STPV))
    print("kv epi", schedule(S, [XL, kvs, kst], PH[1], PH[6]), "last store", kvs[-1].g, "pub at", gB(KVPUB))
    assert kvs[-1].g < gB(KVPUB)
    st0, so0 = gu_epi(64, 100, PH[5] + 6, PH[7] - 3, PH[6])
    st1, so1 = gu_epi(128, 98, PH[6] + 6, PE - 2, PH[6] + 130)
    q0c, q0m = q_epi(0, 0, PH[7] + 6, PE - 2, PH[7] + 130)
    q1c, q1m = q_epi(64, 1, PE - 32 + 5, PE - 1, PE - 32 + 5)
    k0r = [Op(f"ds_read_b128 {ar(Fbuf(f))}, v240 offset:{f * 1024}", max(gB(29) + 1, PH[7] + 16 * (f | 3) + 16), PE - 2, tag=("K0", f)) for f in range(12)]
    print("gu epi", schedule(S, [st0[0] + st1[0], st0[1] + st1[1], so0 + so1, q0c + q1c[:16], q0m + q1m[:16], k0r], PH[5], PE - 1))
    S.add_mem(gB(KVPUB) + 2, f"buffer_store_dword v249, v248, s[20:23], s3 offen{STF}", "pub")
    if DIAG and not DIAG2:
        S.add_first(512, stamp(6)); S.add_first(1024, stamp(7)); S.add_first(PE - 1, stamp(8))
    if DIAG2:
        for k, g in enumerate(DIAG2): S.add_first(g, stamp(2 + k))
    skip_stub = []
    if ASYM:
        for g in range(BK0, BK1): S.last[g] = [x for x in S.last[g] if not (isinstance(x, Ins) and x.t == "BLACK")]
        S.add_last(BK0 - 1, "s_cmp_eq_u32 s48, 1"); S.add_last(BK0 - 1, "s_cbranch_scc1 L_gskip"); S.add_last(BK0 - 1, "L_gblk:")
        S.add_last(BK1 - 1, "L_gjoin:")
    print(S.report("gemm")[:600])
    its = S.items()
    DROP = os.environ.get("DROP", "").split(",")
    def keep(i):
        if isinstance(i, Ins):
            tg = i.tag[0] if isinstance(i.tag, tuple) else i.tag
            if tg in DROP and tg: return False
        if isinstance(i, Wait):
            tags = i.tag if isinstance(i.tag, list) else [i.tag]
            tags = [t for t in tags if (t[0] if isinstance(t, tuple) else t) not in DROP]
            if not tags: return False
            i.tag = tags
        return True
    p.extend([i for i in its if keep(i)])
    gemm_items = list(p.items)
    if ASYM:
        i0 = [k for k, x in enumerate(gemm_items) if isinstance(x, Ins) and x.t == "L_gblk:"][0]
        i1 = [k for k, x in enumerate(gemm_items) if isinstance(x, Ins) and x.t == "L_gjoin:"][0]
        def inblk(tg): return isinstance(tg, tuple) and tg[0] == "W" and tg[1] < BK1 // 4
        body = [x for x in gemm_items[i0 + 1:i1] if not ((isinstance(x, Ins) and (x.t.startswith("v_mfma") or inblk(x.tag))) or
                                                         (isinstance(x, Wait) and all(inblk(t) for t in (x.tag if isinstance(x.tag, list) else [x.tag]))))]
        npre_ = len(resolve(gemm_items[:i0 + 1]))
        skip_stub = ["L_gskip:"] + [x.t for x in resolve(gemm_items[:i0 + 1] + body)][npre_:] + ["s_waitcnt lgkmcnt(0)", "s_branch L_gjoin"]
        print("skip stub", skip_stub)
    n_gemm = len(resolve(gemm_items))
    sa, va = tail_setup()
    def gen_qk0(masked):
        mf = []; last = {}
        for kb in range(4):
            for t in range(4):
                for qb in range(4):
                    d = Sreg(0, qb, kb)
                    c = vr(d) if t else (0 if kb < 2 else vr(NEGM(qb)))
                    mf.append(f"{MF} {vr(d)}, {ar(Fbuf(kb * 4 + t))}, {ar(Qreg(qb, t))}, {c}")
                    last[(qb, kb)] = len(mf) - 1
        S = Sched16(mf)
        for f in range(1, 16): S.add_first(4 * f - 1, Wait("lgkm", ("K0", f)))
        for f in range(12, 16): S.add_mem(f - 12, f"ds_read_b128 {ar(Fbuf(f))}, v240 offset:{f * 1024}", ("K0", f))
        c1, m1 = q_epi(64, 1, 4, 9, 4)
        c1 = c1[16:]; m1 = m1[16:]
        su = ["v_and_b32 v241, 15, v254", "v_lshl_add_u32 v241, v255, 4, v241", "v_lshrrev_b32 v245, 4, v254", "v_lshlrev_b32 v245, 2, v245",
              "v_sub_u32 v241, v241, v245", "v_cvt_f32_i32 v241, v241", "v_add_f32 v241, 0.5, v241", f"v_mul_f32 v{VTMASK}, {f2u(BIG):#x}, v241"]
        SU = [Op(x, 0, 18) for x in su]
        su2 = [f"v_mov_b32 v{VCUR}, v240", f"v_add_u32 v{VPREV}, 0x10000, v240", "v_and_b32 v206, 31, v254", "v_lshlrev_b32 v206, 10, v206",
               "v_and_b32 v252, 0xfff, v252", "v_or_b32 v252, v252, v251"] + ([f"v_mov_b32 v{ONES + k}, 0x3f803f80" for k in range(4)] if not ONE1 else
                 [f"v_and_b32 v{ONES}, 15, v254", f"v_min_u32 v{ONES}, 1, v{ONES}", f"v_subrev_u32 v{ONES}, 1, v{ONES}", f"v_and_b32 v{ONES}, 0x3f803f80, v{ONES}"] +
                 [f"v_mov_b32 v{ONES + k}, v{ONES}" for k in range(1, 4)]) + va[:8] + va[-4:]
        SU += [Op(x, 0, 63) for x in su2]
        ss = [f"s_mov_b32 s{S_THR}, {f2u(LMAX if FAST else THR):#x}", "s_lshl_b32 s99, s30, 7", f"s_add_u32 s99, s99, {WS_FLAG + 0x20000:#x}", "s_lshl_b32 s98, s29, 10",
              "s_add_u32 s98, s98, s99", "s_mov_b32 s52, s49", f"s_add_u32 s53, s49, {3 * 32768 + 16384}", f"s_add_u32 s54, s49, {4 * 32768}",
              f"s_add_u32 s55, s49, {3 * 32768 + 16384}", "s_mov_b32 s4, s38", "s_mov_b32 s5, s39", "s_mov_b32 s6, 0x400000", "s_mov_b32 s7, 0x20000",
              "s_lshl_b32 s59, s2, 2", "s_add_u32 s59, s59, s28", "s_lshl_b32 s50, s59, 12", "s_mov_b32 s12, s96", "s_mov_b32 s13, s97",
              f"s_mov_b32 s14, {1792 * 1024}", "s_mov_b32 m0, s52"]
        SS = [Op(x, 0, 60) for x in ss]
        def mask_ops(kb, e0, dl):
            out = []
            if not masked: return out
            for qb in (2,):
                for r in range(4):
                    kk = 16 * kb + r
                    out.append(Op(f"v_subrev_f32 v{TMP[r % 2]}, {f2u(kk * BIG):#x}, v{VTMASK}", 19, dl))
                    out.append(Op(f"v_min_f32 v{Sreg(0, qb, kb) + r}, v{Sreg(0, qb, kb) + r}, v{TMP[r % 2]}", e0, dl))
            return out
        T0 = [128 + 2 * q for q in range(4)]
        dl = 29
        I = mask_ops(0, 20, dl)
        for q in range(4):
            b = Sreg(0, q, 0)
            I += [Op(f"v_max3_f32 v{T0[q]}, v{b}, v{b + 1}, v{b + 2}", 20, dl), Op(f"v_max_f32 v{T0[q]}, v{T0[q]}, v{b + 3}", 20, dl)]
        for sw in ("v_permlane32_swap_b32", "v_permlane16_swap_b32"):
            I += [Op(f"v_mov_b32 v{T0[q] + 1}, v{T0[q]}", 20, dl) for q in range(4)]
            I += [Op(f"{sw} v{T0[q]}, v{T0[q] + 1}", 20, dl) for q in range(4)]
            I += [Op(f"v_max_f32 v{T0[q]}, v{T0[q]}, v{T0[q] + 1}", 20, dl) for q in range(4)]
        if FAST: I += [Op(f"v_add_f32 v{T0[q]}, {f2u(SH):#x}, v{T0[q]}", 20, dl) for q in range(4)]
        for q in range(4): I += [Op(f"v_sub_f32 v{NEGM(q) + r}, 0, v{T0[q]}", 20, dl) for r in range(4)]
        post = []
        for kb in range(2):
            if kb: I += mask_ops(1, 36, 63)
            for q in range(4): I += [Op(f"v_sub_f32 v{Sreg(0, q, kb) + r}, v{Sreg(0, q, kb) + r}, v{T0[q]}", 36 if kb else 20, 63) for r in range(4)]
        first = True
        for kb in range(1, 4):
            ops = mask_ops(kb, 16 * kb + 20, 63) if kb > 1 else []
            for q in range(0 if FAST else 4):
                b = Sreg(0, q, kb)
                ops.append(Op(f"v_max_f32 v{MX[0]}, v{b}, v{b + 1}" if first else f"v_max3_f32 v{MX[0]}, v{MX[0]}, v{b}, v{b + 1}", 16 * kb + 20, 63)); first = False
                ops.append(Op(f"v_max3_f32 v{MX[0]}, v{MX[0]}, v{b + 2}, v{b + 3}", 16 * kb + 20, 63))
            if kb < 3: I += ops
            else: post = [o.t for o in ops]
        I += [Op(f"v_exp_f32 v{Sreg(0, qb, 0) + r}, v{Sreg(0, qb, 0) + r}", 36 if r < 8 else 54, 63) for qb, r in predone([0, 1, 2, 3])]
        print("qk0", schedule(S, [c1, m1, SU, SS, I], 0, 63), S.report("qk0")[:140])
        q = Prog()
        q.wait_lgkm(("K0", 0))
        q.extend(S.items())
        q.wait_vm(("kv", 1, 0))
        q("s_barrier")
        for ins in tail_reads(VCUR, 32768): q(ins)
        if not PFOG:
            for x in PFL[:PFM]: q(x.replace("s39", "s50"), "pf")
            q("s_mov_b32 s39, s50")
        for k in range(4): q(f"buffer_load_dwordx4 v240, s[16:19], s54 offen offset:{k * 1024}{KSC} lds", "kv")
        q("s_mov_b32 m0, s53")
        for x in post: q(x)
        if not FAST: q(f"v_cmp_lt_f32 vcc, s{S_THR}, v{MX[0]}")
        q(f"s_waitcnt lgkmcnt({NPRE - 1})")
        return [i.t for i in resolve(gemm_items + q.items)][n_gemm:]
    pro = [i.t for i in resolve(gemm_items)]

    stubs = []
    def check(site, par, dual):
        if FAST: return []
        stubs.append((site, par, dual))
        return [f"s_cbranch_vccnz L_stub_{site}", f"L_ret_{site}:"]
    def it_odd(name, tq, tp, masked, **kw):
        return gen_iter(name, tq, tp, 0, masked, 0, VCUR, 0, VPREV, 49152, VCUR, 32768, end_ops=check(name, 0, tq), **kw)
    def it_even(name, tq, tp, masked, extra_end=(), first_pv=False, **kw):
        if first_pv: kw["vmn"] = 8 if PFOG else 8 + len(PFL[:PFM])
        last = tq == "S1"
        return gen_iter(name, tq, tp, 1, masked, 1, VCUR, 32768, VCUR, 16384, VCUR if last else VPREV, 49152 if last else 0, first_pv=first_pv,
                        end_ops=check(name, 1, tq) + list(extra_end[2:]), swap=not last, mid_ops=extra_end[:2], **kw)
    seg = {}
    seg["G"] = pro
    for m in (False, True):
        nm = "m" if m else "u"
        seg["P" + nm] = gen_qk0(m) + check("qk0" + nm, 0, "D") + it_even("it0" + nm, "D1" if m else "D", "D", m, first_pv=True, salu=sa)
    seg["UDD"] = it_odd("uddA", "D", "D", False) + it_even("uddB", "D", "D", False, ["s_sub_u32 s47, s47, 1", "s_cmp_lg_u32 s47, 0", "s_cbranch_scc1 L_udd"])
    seg["UDDm"] = it_odd("uddmA", "D", "D", True) + it_even("uddmB", "D1", "D", True)
    fake = lambda tag, n: [Ins("buffer_load_dwordx4 v240, s[16:19], s55 offen lds", tag) for _ in range(n)]
    ee = gen_early_epi()
    seg["UDS"] = it_odd("udsA", "S", "D1", False) + it_even("udsB", "S", "S", False, xops=ee, vmn="need", raw=fake("need", 4) + fake("x", 12))
    seg["USS"] = it_odd("ussA", "S", "S", False) + it_even("ussB", "S", "S", False, ["s_sub_u32 s47, s47, 1", "s_cmp_lg_u32 s47, 0", "s_cbranch_scc1 L_uss"])
    g1, g2 = gp1(), gp2()
    vd = lambda adv: [(["s_mov_b32 m0, s53"] if q == 0 else [], f"buffer_load_dwordx4 v240, s[16:19], s55 offen offset:{q * 1024}{KSC} lds", "v") for q in range(4)]
    advv = ["s_add_u32 s55, s55, 0x8000", "s_add_u32 s53, s53, 0x8000", "s_and_b32 s53, s53, 0x1ffff"]
    n1, n2, n3 = PRE_SPLIT
    g1a = [(advv + list(g1[0][0]), g1[0][1], g1[0][2])] + g1[1:n1]
    xa, xb, xc, xd = vd(0) + g1a, vd(0) + g1[n1:n2], g1[n2:n3] + g2[:12], g1[n3:] + g2[12:]
    seg["USSp"] = it_odd("usspA", "S", "S", False, extra=xa, vmn="need", raw=fake("need", 4) + fake("x", 12)) + \
                  it_even("usspB", "S", "S", False, extra=xb, vmn="need", raw=fake("need", 4) + fake("x", 4 + len(xa)))
    seg["USSm"] = it_odd("ussmA", "S", "S", True, extra=xc, vmn="need", raw=fake("need", 4) + fake("x", len(xa) - 4 + len(xb))) + \
                  it_even("ussmB", "S1", "S", True, extra=xd, vmn="need", raw=fake("need", 4) + fake("x", len(xb) - 4 + len(xc)))
    flat = lambda ops: [y for pre, ins, tag in ops for y in list(pre) + [ins]]
    w01 = chunk(0, a=False) + chunk(1, a=False)
    w01 = [(advv + list(w01[0][0]), w01[0][1], w01[0][2])] + w01[1:]
    ya, yb = vd(0) + w01 + [([], HPOLL, "hp")], vd(0) + sentinels()
    seg["UDDm7"] = it_odd("uddm7A", "D", "D", True, extra=ya, vmn="need", raw=fake("need", 4) + fake("x", 12)) + \
                   it_even("uddm7B", "D1", "D", True, extra=yb, vmn="need", raw=fake("need", 4) + fake("x", 4 + len(ya)))
    za = ee_one(2, 32) + flat(chunk(0, w=False) + chunk(1, w=False))
    zb = ee_one(3, 32) + flat(chunk(2, w=False) + chunk(3, w=False))
    seg["UDSm"] = it_odd("udsmA", "S", "D1", True, extra=g2[:12], xops=za, vmn="need", raw=fake("need", 4) + fake("x", len(ya) - 4 + len(yb))) + \
                  it_even("udsmB", "S1", "S", True, extra=g2[12:], xops=flat(chunk(4, w=False) + chunk(5, w=False)) + zb, vmn="need",
                          raw=fake("need", 4) + fake("x", len(yb) - 4 + 12 + 12))
    seg["E"], tail_slow = gen_tail()
    seg["EE"] = []
    HC = ["v_cmp_ne_u32 vcc, 1, v207", "s_nop 0"]
    gpl = []
    for c in range(6):
        for pre, ins, tag in chunk(c, w=False): gpl += list(pre) + [ins]
    pf2 = [] if PFOG else PFL[PFM:]
    hpub = ["s_bitcmp1_b32 s35, 0", "s_cselect_b64 vcc, -1, 0", "v_cndmask_b32 v196, v240, v246, vcc", "v_cndmask_b32 v198, v246, v240, vcc", f"buffer_store_dword v249, v248, s[20:23], s98 offen{STF}"]

    out = list(seg["G"])
    out += ["s_cmp_lg_u32 s30, 0", "s_cbranch_scc1 L_pu"] + seg["Pm"] + ([stamp(9).t] if DIAG and not DIAG2 else []) + hpub
    out += ["L_uds:"] + pf2 + st4(4) + seg["UDS"] + st4(5) + seg["EE"] + st4(6)
    out += ["s_lshl_b32 s47, s30, 1", "s_sub_u32 s47, 12, s47", "s_cmp_eq_u32 s47, 0", "s_cbranch_scc1 L_ussp"]
    out += [f".p2align {AL}", "L_uss:"] + seg["USS"]
    out += ["L_ussp:"] + st4(7) + ["s_waitcnt vmcnt(18)"] + HC + ["s_cbranch_vccnz L_hwait", "L_hok:"] + pretouch() + seg["USSp"] + seg["USSm"]
    out += ["L_fin:"] + st4(8) + seg["E"]
    out += ["L_f_end:", "s_endpgm"]
    out += ["L_pu:"] + seg["Pu"]
    if DIAG and not DIAG2: out.append(stamp(9).t)
    out += (hpub + st4(2) if os.environ.get("HS") else st4(2) + hpub) + ["s_sub_u32 s47, s30, 1", "s_cmp_eq_u32 s47, 0", "s_cbranch_scc1 L_uddm"]
    out += [f".p2align {AL}", "L_udd:"] + seg["UDD"]
    out += ["s_cmp_eq_u32 s30, 7", "s_cbranch_scc1 L_last7"]
    out += ["L_uddm:"] + pf2 + st4(3) + seg["UDDm"]
    out += ["s_branch L_uds"]
    out += ["L_last7:"] + pretouch() + seg["UDDm7"] + ["s_waitcnt vmcnt(10)"] + HC + ["s_cbranch_vccnz L_h2wait", "L_h2ok:"] + seg["UDSm"] + ["s_branch L_fin"]
    out += spin("h", HPOLL, HC[0]) + spin("h2", HPOLL, HC[0])
    out += tail_slow + skip_stub
    if FAST: out += gen_safe()
    out += ["L_xnwait:", "s_mov_b32 s44, 0x40000", "L_xnspin:", "s_sub_u32 s44, s44, 1", "s_cbranch_scc1 L_xnok", "s_sleep 2",
            XPOLL, "s_waitcnt vmcnt(0)",
            XCMP, "s_cbranch_vccnz L_xnspin", "s_branch L_xnok"]
    out += ["L_kvwait:", "s_mov_b32 s44, 0x40000", "L_kvspin:", "s_sub_u32 s44, s44, 1", "s_cbranch_scc1 L_kvok", "s_sleep 2",
            "buffer_load_dword v244, v243, s[20:23], s59 offen sc1", "s_waitcnt vmcnt(0)",
            "v_cmp_ne_u32 vcc, 1, v244", "s_cbranch_vccnz L_kvspin", "s_branch L_kvok"]
    for site, par, tq in stubs:
        out += [f"L_stub_{site}:", f"s_call_b64 s[62:63], L_rare_{par}{tq}", f"s_branch L_ret_{site}"]
    for par, tq in sorted({(par, tq) for _, par, tq in stubs}):
        out += [f"L_rare_{par}{tq}:"] + gen_rare(par, QSET[tq])
    for path in (["G", "Pu", "UDD", "UDD", "UDDm", "UDS", "EE", "USS", "USS", "USSp", "USSm", "E"], ["G", "Pm", "UDS"], ["UDD", "UDDm7", "UDSm", "E"]):
        tx = []
        for k in path: tx += seg[k]
        for e in lint(tx, "f")[:40]: print(e)
    return out

KVPUB = int(os.environ.get("KVPUB", "24" if ASYM else "23"))
STPV = float(os.environ.get("STPV", "23" if ASYM else "26"))
STP = float(os.environ.get("STP", "29"))
STPK1 = float(os.environ.get("STPK1", "50"))
VW0 = int(os.environ.get("VW0", "340"))
WP = int(os.environ.get("WP", "14"))
XNC = int(os.environ.get("XNC", "540"))
LCAP = int(os.environ.get("LCAP", "3"))
WSH = int(os.environ.get("WSH", "18"))
XP = float(os.environ.get("XP", "5"))
PFOG = int(os.environ.get("PFOG", "0"))
AL = int(os.environ.get("AL", "3"))
XBAR = int(os.environ.get("XBAR", "1"))
NTX = os.environ.get("NTX", "")
PFM = int(os.environ.get("PFM", "2"))
PFL = [] if os.environ.get("NOPFO") else ["buffer_load_dword v253, v252, s[4:7], s39 offen", "buffer_load_dword v251, v252, s[12:15], s39 offen", "buffer_load_dword v250, v252, s[24:27], s39 offen"][:3 if os.environ.get("NTX") else 2]
WQW = int(os.environ.get("WQW", "20"))
ONE1 = int(os.environ.get("ONE1", "1"))
GUZ = int(os.environ.get("GUZ", "1"))
KD = int(os.environ.get("KD", "0"))
PFVP = int(os.environ.get("PFVP", "3"))
KPD = int(os.environ.get("KPD", "0"))
HYB = int(os.environ.get("HYB", "1"))
HA = int(os.environ.get("HA", "0xf0"), 0)
HW = int(os.environ.get("HW", "0xfa"), 0)
HE = int(os.environ.get("HE", "12"))
HP1 = int(os.environ.get("HP1", "0"))
HP2 = int(os.environ.get("HP2", "2"))
HP3 = int(os.environ.get("HP3", "0"))
KQD = int(os.environ.get("KQD", "36"))
WQE = int(os.environ.get("WQE", "0"))
CPF = int(os.environ.get("CPF", "1"))
if __name__ == "__main__":
    print(len(gen_f_kernel()))
```

```python
import sys
from mb1_gen import kd
def body(shape, pattern, nm):
    out = []
    cnt = {}
    for g in range(nm):
        if shape >= 32:
            tri = [(t, c, rb) for t in range(8) for c in range(4) for rb in range(2)]
            if shape == 32: od = tri
            elif shape == 33: od = sorted(tri, key=lambda x: (x[0] // 2, x[1], x[2], x[0]))
            elif shape == 34: od = sorted(tri, key=lambda x: (x[0] // 4, x[1], x[2], x[0] if x[2] % 2 == 0 else -x[0]))
            elif shape == 35: od = sorted(tri, key=lambda x: (x[1], x[2], x[0] if x[2] % 2 == 0 else -x[0]))
            t, c, rb = od[g]
            acc = (c * 2 + rb) * 16; a = 192 + 4 * ((c % 2) * 8 + t); b = 128 + 4 * (rb * 8 + t)
            out.append(f"v_mfma_f32_32x32x16_bf16 a[{acc}:{acc + 15}], a[{a}:{a + 3}], a[{b}:{b + 3}], a[{acc}:{acc + 15}]")
        else:
            tri = [(t, c, rb) for t in range(4) for c in range(8) for rb in range(4)]
            od = tri
            if shape == 16: od = tri
            elif shape == 17: od = sorted(tri, key=lambda x: (x[1], x[0], x[2]))
            elif shape == 18: od = sorted(tri, key=lambda x: (x[1], x[2], x[0]))
            elif shape == 19: od = sorted(tri, key=lambda x: (x[0] // 2, x[1], x[2], x[0]))
            elif shape == 20: od = sorted(tri, key=lambda x: (x[1] // 4, x[0], x[1], x[2]))
            elif shape == 21: od = sorted(tri, key=lambda x: (x[0] // 2, x[1], x[2] // 2, x[0], x[2]))
            if shape in (22, 24, 25, 26): od = sorted(tri, key=lambda x: (x[0] // 2, x[1], x[2], x[0] if x[2] % 2 == 0 or shape != 22 else -x[0]))
            if shape == 23: od = sorted(tri, key=lambda x: (x[1], x[2], x[0] if x[2] % 2 == 0 else -x[0]))
            t, c, rb = od[g]
            acc = (c * 4 + rb) * 4; a = 192 + 4 * ((c % 4) * 4 + t); b = 128 + 4 * (rb * 4 + t)
            if shape == 27:
                tri8 = sorted([(t, c, rb) for t in range(8) for c in range(8) for rb in range(2)], key=lambda x: (x[1], x[2], x[0] if x[2] % 2 == 0 else -x[0]))
                t, c, rb = tri8[g]; acc = (c * 2 + rb) * 4; a = 192 + 4 * ((c % 2) * 8 + t); b = 128 + 4 * (rb * 8 + t)
            if shape == 24: out.append(f"v_mfma_f32_16x16x32_bf16 v[{128 + acc}:{131 + acc}], a[{a}:{a + 3}], a[{b}:{b + 3}], v[{128 + acc}:{131 + acc}]")
            elif shape == 25: out.append(f"v_mfma_f32_16x16x32_bf16 a[{acc}:{acc + 3}], a[{b}:{b + 3}], a[{a}:{a + 3}], a[{acc}:{acc + 3}]")
            else: out.append(f"v_mfma_f32_16x16x32_bf16 a[{acc}:{acc + 3}], a[{a}:{a + 3}], a[{b}:{b + 3}], a[{acc}:{acc + 3}]")
        for ch in pattern[g % len(pattern)]:
            i = cnt.get(ch, 0)
            if ch == 'e': out.append(f"v_exp_f32 v{128 + (i % 64)}, v{64 + (i % 64)}")
            elif ch == 'a': out.append(f"v_add_f32 v{200 + (i % 8)}, v{64 + ((i + 13) % 64)}, v{64 + ((i + 40) % 64)}")
            elif ch == 'c': out.append(f"v_cvt_pk_bf16_f32 v{208 + (i % 8)}, v{64 + ((2 * i + 20) % 64)}, v{65 + ((2 * i + 20) % 64)}")
            elif ch == 'd': out.append(f"ds_read_b128 a[{192 + 4 * (i % 16)}:{195 + 4 * (i % 16)}], v1 offset:{(i * 1024) % 65536}")
            elif ch == 'v': out.append(f"ds_read_b128 v[{16 + 4 * (i % 8)}:{19 + 4 * (i % 8)}], v1 offset:{(i * 1024) % 65536}")
            elif ch == 't': out.append(f"ds_read_b64_tr_b16 v[{16 + 2 * (i % 16)}:{17 + 2 * (i % 16)}], v6 offset:{(i * 512) % 65536}")
            elif ch == 'w': out.append("s_waitcnt lgkmcnt(8)")
            elif ch == 'n': out.append("s_nop 7")
            elif ch == 'N': out.append("s_nop 15")
            cnt[ch] = i + 1
    return out
def gen(cfgs, path, iters):
    s = ""
    for i, c in enumerate(cfgs):
        s += f"; @launch kernel=mb{i}_kernel grid=(256,1,1) block=(256,1,1) lds=131072\n"
    s += '.amdgcn_target "amdgcn-amd-amdhsa--gfx950"\n.text\n'
    for i, (shape, c) in enumerate(cfgs):
        name = f"mb{i}_kernel"
        s += f""".p2align 8
{name}:
    s_load_dwordx2 s[4:5], s[0:1], 0
    s_load_dwordx2 s[6:7], s[0:1], 8
    s_waitcnt lgkmcnt(0)
    s_mov_b32 s8, s4
    s_mov_b32 s9, s5
    s_mov_b32 s10, 0x2000000
    s_mov_b32 s11, 0x00020000
    s_mov_b32 s12, s6
    s_mov_b32 s13, s7
    s_mov_b32 s14, 65536
    s_mov_b32 s15, 0x00020000
    v_and_b32 v1, 63, v0
    v_lshlrev_b32 v6, 3, v1
    v_lshlrev_b32 v1, 4, v1
    v_lshlrev_b32 v2, 4, v0
    v_lshrrev_b32 v3, 6, v0
    s_nop 0
    v_readfirstlane_b32 s29, v3
"""
        for k in range(32):
            s += f"    s_mov_b32 s30, {k * 4096}\n    buffer_load_dwordx4 a[{128 + 4 * k}:{131 + 4 * k}], v2, s[8:11], s30 offen\n"
        for k in range(16):
            s += f"    s_mov_b32 s30, {0x100000 + k * 4096}\n    buffer_load_dwordx4 v[{64 + 4 * k}:{67 + 4 * k}], v2, s[8:11], s30 offen\n"
        for k in range(16):
            s += f"    s_mov_b32 s30, {k * 4096}\n    s_lshl_b32 s31, s29, 10\n    s_add_u32 m0, s31, {k * 4096}\n    s_nop 0\n    buffer_load_dwordx4 v2, s[8:11], s30 offen lds\n"
        for r in range(0, 128):
            s += f"    v_accvgpr_write_b32 a{r}, 0\n    v_mov_b32 v{128 + r}, 0\n"
        s += """    s_waitcnt vmcnt(0)
    s_mov_b32 s20, 0
    s_barrier
    s_memtime s[22:23]
    s_memrealtime s[42:43]
    s_waitcnt lgkmcnt(0)
.p2align 6
L_%s:
""" % name
        s += "".join("    " + x + "\n" for x in body(shape, c.split(","), 64 if shape >= 32 else 128))
        s += f"""    s_add_u32 s20, s20, 1
    s_cmp_lt_u32 s20, {iters}
    s_cbranch_scc1 L_{name}
    s_memtime s[24:25]
    s_memrealtime s[44:45]
    s_waitcnt lgkmcnt(0) vmcnt(0)
    s_sub_u32 s24, s24, s22
    s_sub_u32 s44, s44, s42
    v_mov_b32 v4, s24
    v_mov_b32 v5, s44
    s_lshl_b32 s26, s2, 5
    s_lshl_b32 s27, s29, 3
    s_add_u32 s26, s26, s27
    v_mov_b32 v7, s26
    buffer_store_dwordx2 v[4:5], v7, s[12:15], 0 offen
    s_waitcnt vmcnt(0)
    s_endpgm
"""
    s += '.section .rodata,"a"\n'
    for i, c in enumerate(cfgs): s += kd(f"mb{i}_kernel")
    open(path, "w").write(s)
    open(path + ".cfg", "w").write("\n".join(f"{a}:{b}" for a, b in cfgs))
gen([(19, p) for p in ["e", "cc", "aa", "ac", "vc,e", "vv,e", "va,e", "cc,e", "we", "wcc,e", "wvc,e", "wvv,e", "vv,e,e,e", "vc,e,vc,e", "vv,e,cc,e", "v,e", "wv,we"]], "mb5.s", 30)
```
